```python
import torch

def _softmax(x, axis=-1):
    return torch.softmax(x, dim=axis)
def _gelu(x):
    return torch.nn.functional.gelu(x, approximate="tanh")
def _silu(x):
    return torch.nn.functional.silu(x)
def _sigmoid(x):
    return torch.sigmoid(x)
def _layernorm(x, axis=-1, eps=1e-5):
    m = x.mean(dim=axis, keepdim=True)
    v = x.var(dim=axis, keepdim=True, unbiased=False)
    return (x - m) / torch.sqrt(v + eps)
def _scatter_add(tgt, idx, src, axis=0):
    return tgt.clone().index_add_(axis, idx, src)
def _segment_sum(src, seg, n):
    out = torch.zeros((n,) + src.shape[1:], dtype=src.dtype)
    return out.index_add_(0, seg, src)
def _pad(x, pw):
    flat = tuple(v for pair in reversed(pw) for v in pair)
    return torch.nn.functional.pad(x, flat)

kernel_name = 'parallel_sum__sliding_block_cached__glu_gated_reglu__decode'

def setup_inputs():

    _w = (lambda a: (lambda t: t.to(torch.bfloat16) if t.is_floating_point() else t)(torch.as_tensor(a)))
    def _A_setup():
        B, Sq, D = 4, 1, 448
        Hq, Hkv, Sk, Dh = 16, 8, 16384, 256
        assert Hq % Hkv == 0, (Hq, Hkv)
        return {
            "x": _w((lambda *s: torch.randn(*s, dtype=torch.bfloat16) * 0.05)(B, Sq, D)),
            "k_cache": _w((lambda *s: torch.randn(*s, dtype=torch.bfloat16) * 1.6)(B, Hkv, Sk, Dh)),
            "v_cache": _w((lambda *s: torch.randn(*s, dtype=torch.bfloat16) * 0.8)(B, Hkv, Sk, Dh)),
            "wq": _w((lambda *s: torch.randn(*s, dtype=torch.bfloat16) * 1.6)(D, Hq * Dh) * (D ** -0.5)),
            "wo": _w((lambda *s: torch.randn(*s, dtype=torch.bfloat16) * 0.8)(Hq * Dh, D) * ((Hq * Dh) ** -0.5)),
        }
    _A_in = _A_setup()

    def _B_setup():
        B, S, D, F = 4, 1, 448, 1792
        return {
            "x": _w((lambda *s: torch.randn(*s, dtype=torch.bfloat16) * 0.05)(B, S, D)),
            "W_gate": _w((lambda *s: torch.randn(*s, dtype=torch.bfloat16) * 0.4)(D, F) * (2.0 / D) ** 0.5),
            "W_up": _w((lambda *s: torch.randn(*s, dtype=torch.bfloat16) * 0.4)(D, F) * (2.0 / D) ** 0.5),
            "W_down": _w((lambda *s: torch.randn(*s, dtype=torch.bfloat16) * 0.4)(F, D) * (1.0 / F) ** 0.5),
        }
    _B_in = _B_setup()

    return {
        "A_x": _A_in["x"],
        "A_k_cache": _A_in["k_cache"],
        "A_v_cache": _A_in["v_cache"],
        "A_wq": _A_in["wq"],
        "A_wo": _A_in["wo"],
        "B_x": _B_in["x"],
        "B_W_gate": _B_in["W_gate"],
        "B_W_up": _B_in["W_up"],
        "B_W_down": _B_in["W_down"],
    }

def reference(A_x, A_k_cache, A_v_cache, A_wq, A_wo, B_x, B_W_gate, B_W_up, B_W_down):
    def _A_ref(x, k_cache, v_cache, wq, wo):
        B, Sq, D = x.shape
        Hq, Dh = 16, 256
        Hkv, Sk = k_cache.shape[1], k_cache.shape[2]
        W = min(4096, max(256, Sk // 4))
        rep = Hq // Hkv
        q = (lambda x, *d: x.permute(*d))((x @ wq).reshape(B, Sq, Hq, Dh), 0, 2, 1, 3)
        k = (lambda x, n, axis: torch.repeat_interleave(x, n, dim=axis))(k_cache[:, :, Sk - W:, :], rep, axis=1)
        v = (lambda x, n, axis: torch.repeat_interleave(x, n, dim=axis))(v_cache[:, :, Sk - W:, :], rep, axis=1)
        scores = torch.einsum("bhqd,bhkd->bhqk", q, k) * (Dh ** -0.5)
        p = _softmax(scores, axis=-1)
        o = torch.einsum("bhqk,bhkd->bhqd", p, v)
        return (lambda x, *d: x.permute(*d))(o, 0, 2, 1, 3).reshape(B, Sq, Hq * Dh) @ wo

    def _B_ref(x, W_gate, W_up, W_down):
        gate = torch.einsum("bsd,df->bsf", x, W_gate)
        up = torch.einsum("bsd,df->bsf", x, W_up)
        gate = gate * (lambda x, dt: x.to(dt))(gate > 0, gate.dtype)
        h = gate * up
        return torch.einsum("bsf,fd->bsd", h, W_down)

    x = A_x
    xn = _layernorm(x, axis=-1)
    return x + _A_ref(xn, A_k_cache, A_v_cache, A_wq, A_wo) + _B_ref(xn, B_W_gate, B_W_up, B_W_down)
```

```python
import re

TRANS = ('v_exp_f32', 'v_log_f32', 'v_rcp_f32', 'v_rsq_f32', 'v_sqrt_f32', 'v_sin_f32', 'v_cos_f32')

def split_ops(s):
    out, depth, cur = [], 0, ''
    for ch in s:
        if ch in '[(': depth += 1
        if ch in '])': depth -= 1
        if ch == ',' and depth == 0:
            out.append(cur.strip()); cur = ''
        else:
            cur += ch
    if cur.strip(): out.append(cur.strip())
    return out

def regs(tok):
    tok = tok.split()[0] if tok else tok
    tok = tok.strip().lstrip('-').replace('abs(', '').replace(')', '').replace('|', '')
    m = re.fullmatch(r'([vs])(\d+)', tok)
    if m: return {(m.group(1), int(m.group(2)))}
    m = re.fullmatch(r'([vs])\[(\d+):(\d+)\]', tok)
    if m: return {(m.group(1), i) for i in range(int(m.group(2)), int(m.group(3)) + 1)}
    if tok in ('vcc', 'vcc_lo', 'vcc_hi'): return {('vcc',)}
    if tok in ('exec', 'exec_lo', 'exec_hi'): return {('exec',)}
    if tok == 'm0': return {('m0',)}
    return set()

class Ins:
    def __init__(self, text):
        self.text = text
        t = text.split(';')[0].strip()
        parts = t.split(None, 1)
        self.mn = parts[0]
        rest = parts[1] if len(parts) > 1 else ''
        self.ops = split_ops(rest)
        mn = self.mn
        R = [regs(o) for o in self.ops]
        U = lambda xs: set().union(*xs) if xs else set()
        self.kind = 'other'; self.w = set(); self.r = set()
        self.dpp = ('_dpp' in mn) or bool(re.search(r'quad_perm|row_(shr|shl|ror|bcast|mirror|half_mirror)', rest))
        self.states = 1
        self.wide_data = set()
        self.mfma_c = set(); self.mfma_ab = set(); self.passes = 0
        self.lds_dma = False
        if mn == 's_nop':
            self.kind = 'nop'; self.states = int(self.ops[0], 0) + 1
        elif mn.startswith('v_mfma'):
            self.kind = 'mfma'; self.w = R[0]; self.mfma_ab = R[1] | R[2]; self.mfma_c = R[3]
            self.r = self.mfma_ab | self.mfma_c
            self.passes = 4 if '16x16' in mn else 8
        elif mn.startswith('v_'):
            self.kind = 'valu'
            if mn.startswith('v_permlane'):
                self.w = R[0] | R[1]; self.r = R[0] | R[1]
            elif re.match(r'v_(add|sub|subrev|addc|subb)_co', mn):
                self.w = R[0] | R[1]; self.r = U(R[2:])
            else:
                self.w = R[0]; self.r = U(R[1:])
                if mn.startswith('v_cmpx'): self.w = self.w | {('exec',)}
                if self.dpp or mn.startswith('v_fmac') or mn.startswith('v_writelane'): self.r = self.r | R[0]
        elif mn.startswith('ds_'):
            self.kind = 'ds'
            if mn.startswith('ds_read') or 'permute' in mn or 'swizzle' in mn or '_rtn' in mn:
                self.w = R[0]; self.r = U(R[1:])
            else:
                self.r = U(R)
        elif mn.startswith('buffer_') or mn.startswith('global_'):
            self.kind = 'vmem'
            lds = mn.startswith('global_load_lds') or bool(re.search(r'\blds\b', rest))
            if lds:
                self.lds_dma = True; self.r = U(R) | {('m0',)}
            elif '_load_' in mn:
                self.w = R[0]; self.r = U(R[1:])
            else:
                self.r = U(R)
                if mn.endswith('x4') or mn.endswith('x3'):
                    self.wide_data = R[0] if mn.startswith('buffer_') else R[1]
        elif mn.startswith('s_'):
            self.kind = 'salu'
            if re.match(r's_(cmp|cbranch|branch|waitcnt|barrier|sleep|setprio|endpgm|bitcmp)', mn):
                self.r = U(R)
            else:
                self.w = R[0] if R else set(); self.r = U(R[1:])
                if 'saveexec' in mn: self.w = self.w | {('exec',)}
        else:
            raise ValueError('unknown instruction: ' + text)

def vonly(s): return {x for x in s if x[0] == 'v'}
def sonly(s): return {x for x in s if x[0] in ('s', 'vcc')}

def need(p, c):
    n = 0
    if p.kind == 'valu':
        vw = vonly(p.w); sw = sonly(p.w)
        if c.kind == 'mfma' and vw & c.r: n = max(n, 2)
        if c.kind == 'valu':
            if c.dpp and vw & c.r: n = max(n, 2)
            if c.mn.startswith('v_permlane') and vw & c.r: n = max(n, 2)
            if c.mn.startswith(('v_readlane', 'v_readfirstlane')) and vw & c.r: n = max(n, 1)
            if sw & c.r: n = max(n, 4 if c.mn.startswith(('v_readlane', 'v_writelane')) else 2)
            if p.mn.replace('_e32', '').replace('_e64', '') in TRANS and vw & c.r: n = max(n, 1)
        if c.kind == 'vmem' and sw & c.r: n = max(n, 5)
        if ('exec',) in p.w:
            if c.kind == 'mfma': n = max(n, 4)
            if c.kind == 'valu' and c.dpp: n = max(n, 5)
            if c.kind == 'valu' and c.mn.startswith(('v_read', 'v_writelane', 'v_permlane')): n = max(n, 4)
    if p.kind == 'mfma':
        N = {4: 8, 8: 12}[p.passes]
        if c.kind == 'mfma':
            if p.w & c.mfma_ab: n = max(n, N)
            if p.w & c.mfma_c and not (p.w == c.mfma_c and p.passes == c.passes): n = max(n, N - 2)
            if p.w & c.w and not (p.w == c.mfma_c): n = max(n, N)
        elif c.kind in ('valu', 'ds', 'vmem'):
            if p.w & (c.r | c.w): n = max(n, N)
        if c.kind == 'valu' and p.mfma_c & c.w: n = max(n, {4: 3, 8: 7}[p.passes])
    if p.kind == 'salu' and ('m0',) in p.w and c.lds_dma: n = max(n, 1)
    if p.wide_data and p.wide_data & c.w: n = max(n, 2 if c.kind == 'valu' else 1)
    return n

class Asm:
    def __init__(self):
        self.lines = []
    def __call__(self, s):
        for ln in s.split('\n'):
            if ln.strip(): self.lines.append(ln.strip())
    @staticmethod
    def is_ins(ln):
        t = ln.split(';')[0].strip()
        return bool(t) and not t.endswith(':') and not t.startswith('.')
    def finalize(self):
        out = []
        def lack(hist, c):
            d = 0; worst = 0
            for p in reversed(hist):
                worst = max(worst, need(p, c) - d)
                d += p.states
                if d >= 12: break
            return worst
        hist = []
        for ln in self.lines:
            if not self.is_ins(ln):
                out.append((ln, None)); continue
            c = Ins(ln)
            k = lack(hist, c)
            if k > 0:
                nop = Ins(f's_nop {k-1}')
                out.append((nop.text, nop)); hist.append(nop)
            out.append((ln, c)); hist.append(c)
            if c.mn in ('s_branch', 's_endpgm'): hist = []
        labels = {}
        for i, (t, c) in enumerate(out):
            tt = t.split(';')[0].strip()
            if c is None and tt.endswith(':'): labels[tt[:-1]] = i
        for i, (t, c) in enumerate(out):
            if c is not None and (c.mn.startswith('s_cbranch') or c.mn == 's_branch'):
                tgt = labels[c.ops[0]]
                h = []
                for tt, cc in out[max(0, i-14):i+1]:
                    if cc is None: continue
                    if cc.mn in ('s_branch', 's_endpgm') and cc is not c: h = []; continue
                    h.append(cc)
                cnt = 0
                for tt, cc in out[tgt:]:
                    if cc is None: continue
                    k = lack(h, cc)
                    if k > 0: raise RuntimeError(f'hazard across branch "{t}" -> "{tt}": need {k} more')
                    h.append(cc); cnt += cc.states
                    if cnt >= 12 or cc.mn in ('s_branch', 's_endpgm'): break
        return '\n'.join(('  ' + t) if c is not None else t for t, c in out) + '\n'
```

```python
import sys, struct, math
from asmlib import Asm
NAME = 'parallel_sum__sliding_block_cached__glu_gated_reglu__decode'

def f32(x): return '0x%08x' % struct.unpack('<I', struct.pack('<f', x))[0]

RING = 0
STAGE = 131072
XN = STAGE + 14336
QL = XN + 3584
OACC = QL + 1024
MX = OACC + 2048
LS = MX + 8
FAC = MX + 16
TAGL = MX + 24
HL = MX + 32
LDS_TOTAL = HL + 64
EPOCH = 0
QX = 0x1000
HX = 0x11000
ST = 0x18000
P1 = 0x20000
P2 = 0xA0000
WS_END = 0x180000
STAMPS = 0x200000
SPIN = 400000

def gen(stamps=False, wnt='', kvnt=' nt'):
    A = Asm()
    NST = 16
    stamp_n = [0]
    def stamp(k):
        if stamps: A(f's_memrealtime s[{70+2*k}:{71+2*k}]')
    hdr = open('cdna_kernels/%s.s.ref' % NAME).read().split('; Override launch geometry')[0]
    top = hdr + f'; @launch grid=(256,1,1) block=(576,1,1) lds={LDS_TOTAL}\n'
    A('.amdgcn_target "amdgcn-amd-amdhsa--gfx950"')
    A('.text')
    A(f'.globl {NAME}_kernel')
    A('.p2align 8')
    A(f'.type {NAME}_kernel,@function')
    A(f'{NAME}_kernel:')
    A('''
    s_cmp_ge_u32 s2, 256
    s_cbranch_scc1 L_end
    s_load_dwordx16 s[16:31], s[0:1], 0
    s_load_dwordx8 s[32:39], s[0:1], 64
    ''')
    stamp(0)
    A('''
    v_lshrrev_b32 v1, 6, v0
    v_and_b32 v0, 63, v0                     ; lane
    v_readfirstlane_b32 s3, v1               ; wave
    s_and_b32 s4, s2, 7                      ; hkv
    s_bfe_u32 s5, s2, 0x30003                ; j
    s_lshr_b32 s6, s2, 6                     ; b
    s_and_b32 s7, s2, 63                     ; idx
    s_lshl_b32 s56, s6, 3
    s_add_u32 s56, s56, s4
    s_cmp_eq_u32 s3, 8
    s_cbranch_scc1 L_helper
    ''')
    vD = [4, 5, 6, 7]; vKA = [8, 9, 10, 11]; vVA = list(range(12, 20)); vTAG = 20
    KfA, KfB, Qf, Sx, Pk, Oa = 32, 64, 96, 128, 144, 152
    A(f'''
    v_lshrrev_b32 v1, 5, v0
    v_and_b32 v2, 31, v0
    v_lshlrev_b32 v3, 1, v1
    v_xor_b32 v2, v2, v3
    v_lshlrev_b32 v2, 4, v2
    v_lshl_add_u32 v4, v1, 9, v2
    v_xor_b32 v5, 64, v4
    v_xor_b32 v6, 0x80, v4
    v_xor_b32 v7, 0xc0, v4
    s_lshl_b32 s57, s56, 23
    s_add_u32 s57, s57, {12288*512}
    s_lshl_b32 s58, s5, 3
    s_add_u32 s58, s58, s3
    s_lshl_b32 s58, s58, 13
    s_lshl_b32 s59, s3, 14
    s_mov_b32 s10, 0x200000
    s_mov_b32 s11, 0x20000
    s_waitcnt lgkmcnt(0)
    s_add_u32 s8, s18, s57
    s_addc_u32 s9, s19, 0
    ''')
    def issue(srd, i, slot):
        for half in range(2):
            A(f's_add_u32 m0, s59, {slot*8192 + half*4096}')
            A(f's_add_u32 s60, s58, {i*524288 + half*4096}')
            for q in range(4):
                A(f'buffer_load_dwordx4 v{vD[q]}, {srd}, s60 offen offset:{q*1024}{kvnt} lds')
    KS, VS = 's[8:11]', 's[12:15]'
    issue(KS, 0, 0)
    issue(KS, 1, 1)
    stamp(1)
    A(f'''
    s_add_u32 s12, s20, s57
    s_addc_u32 s13, s21, 0
    s_mov_b32 s14, 0x200000
    s_mov_b32 s15, 0x20000
    s_mov_b32 s40, s38
    s_mov_b32 s41, s39
    s_mov_b32 s42, {0x300000 if stamps else WS_END}
    s_mov_b32 s43, 0x20000
    s_min_u32 s61, s7, 55
    s_lshl_b32 s61, s61, 3
    s_add_u32 s61, s61, s3
    s_mul_i32 s62, s6, 448
    s_add_u32 s61, s61, s62
    s_lshl_b32 s61, s61, 1
    s_and_b32 s62, s61, -4
    s_load_dword s63, s[16:17], s62
    s_mov_b32 s44, s24
    s_mov_b32 s45, s25
    s_cmp_lt_u32 s3, 7
    s_cselect_b32 s46, {4096*896}, 0
    s_mov_b32 s47, 0x20000
    s_mov_b32 s48, s32
    s_mov_b32 s49, s33
    s_cselect_b32 s50, {1792*896}, 0
    s_cmp_lt_u32 s7, 56
    s_cselect_b32 s50, s50, 0
    s_cselect_b32 s65, s7, 0
    s_mov_b32 s51, 0x20000
    s_mul_i32 s65, s65, {32*896}
    s_lshl_b32 s64, s4, 3
    s_add_u32 s64, s64, s5
    s_mul_i32 s64, s64, {64*896}
    s_mov_b32 s52, s34
    s_mov_b32 s53, s35
    s_mov_b32 s54, {1792*2}
    s_mov_b32 s55, 0x20000
    v_and_b32 v1, 15, v0                     ; row
    v_lshrrev_b32 v2, 4, v0                  ; g
    v_and_b32 v3, 7, v0
    v_lshlrev_b32 v3, 1, v3
    v_xor_b32 v3, v3, v2
    v_lshlrev_b32 v3, 4, v3
    v_lshl_add_u32 v3, v1, 9, v3
    v_add_u32 v8, s59, v3
    v_xor_b32 v9, 64, v8
    v_xor_b32 v10, 0x80, v8
    v_xor_b32 v11, 0xc0, v8
    v_lshrrev_b32 v21, 2, v0                 ; row = l/4
    v_and_b32 v22, 7, v21
    v_lshlrev_b32 v22, 5, v22
    v_lshl_add_u32 v22, v21, 9, v22
    v_and_b32 v23, 3, v0
    v_lshl_add_u32 v22, v23, 3, v22
    v_add_u32 v12, s59, v22
    ''')
    for t in range(1, 8):
        A(f'v_xor_b32 v{12+t}, {t*32}, v12')
    A(f'''
    v_and_b32 v24, 1, v0
    v_lshlrev_b32 v25, 2, v24                ; (n&1)*4
    v_lshlrev_b32 v24, 9, v24
    v_lshl_add_u32 v24, v2, 4, v24
    v_add_u32 v24, {QL}, v24
    v_add_u32 v25, {MX}, v25
    ''')
    def readK(dst, slot):
        for t in range(8):
            A(f'ds_read_b128 v[{dst+4*t}:{dst+4*t+3}], v{vKA[t&3]} offset:{slot*8192 + (t>>2)*256}')
    def qk(tile, src):
        for t in range(8):
            c = '0' if t == 0 else f'v[{Sx+4*tile}:{Sx+4*tile+3}]'
            A(f'v_mfma_f32_16x16x32_bf16 v[{Sx+4*tile}:{Sx+4*tile+3}], v[{src+4*t}:{src+4*t+3}], v[{Qf+4*t}:{Qf+4*t+3}], {c}')
    A('s_waitcnt vmcnt(8)')
    readK(KfA, 0)
    A('s_waitcnt lgkmcnt(0)')
    issue(KS, 2, 0)
    A('s_waitcnt vmcnt(8)')
    readK(KfB, 1)
    A('s_waitcnt lgkmcnt(0)')
    issue(KS, 3, 1)
    stamp(2)
    A('s_barrier')
    stamp(3)
    for t in range(8):
        A(f'ds_read_b128 v[{Qf+4*t}:{Qf+4*t+3}], v24 offset:{t*64}')
    A(f'''
    v_mov_b32 v21, {TAGL}
    ds_read_b32 v{vTAG}, v21
    s_waitcnt lgkmcnt(0)
    ''')
    qk(0, KfA)
    qk(1, KfB)
    A('s_waitcnt vmcnt(8)')
    readK(KfA, 0)
    A('s_waitcnt lgkmcnt(0)')
    issue(VS, 0, 0)
    qk(2, KfA)
    A('s_waitcnt vmcnt(8)')
    readK(KfB, 1)
    A('s_waitcnt lgkmcnt(0)')
    issue(VS, 1, 1)
    qk(3, KfB)
    MK = 84
    A(f's_mov_b32 s{MK}, 0x00030003')
    A(f's_mov_b32 s{MK+1}, 0x00030003')
    for u in range(1, 8):
        A(f's_lshl_b64 s[{MK+2*u}:{MK+2*u+1}], s[{MK}:{MK+1}], {2*u}')
    for i in range(8):
        a, b = Sx + 2*i, Sx + 2*i + 1
        A(f'v_cvt_pk_bf16_f32 v{b}, v{a}, v{b}')
        A(f'v_lshlrev_b32 v{a}, 16, v{b}')
        A(f'v_and_b32 v{b}, 0xffff0000, v{b}')
    A(f'v_max3_f32 v21, v{Sx}, v{Sx+1}, v{Sx+2}')
    for i in range(3, 15, 2):
        A(f'v_max3_f32 v21, v21, v{Sx+i}, v{Sx+i+1}')
    A(f'v_max_f32 v21, v21, v{Sx+15}')
    A(f'''
    s_mov_b64 exec, s[{MK}:{MK+1}]
    ds_max_f32 v25, v21
    s_mov_b64 exec, -1
    s_waitcnt lgkmcnt(0)
    s_barrier
    ds_read_b32 v21, v25
    s_mov_b32 s66, {f32(math.log2(math.e)/16)}
    s_waitcnt lgkmcnt(0)
    ''')
    for i in range(16):
        A(f'v_sub_f32 v{Sx+i}, v{Sx+i}, v21')
    for i in range(16):
        A(f'v_mul_f32 v{Sx+i}, s66, v{Sx+i}')
    for i in range(16):
        A(f'v_exp_f32 v{Sx+i}, v{Sx+i}')
    for i in range(8):
        A(f'v_cvt_pk_bf16_f32 v{Pk+i}, v{Sx+2*i}, v{Sx+2*i+1}')
    for i in range(8):
        A(f'v_add_f32 v{Sx+i}, v{Sx+i}, v{Sx+8+i}')
    for i in range(4):
        A(f'v_add_f32 v{Sx+i}, v{Sx+i}, v{Sx+4+i}')
    A(f'''
    v_add_f32 v{Sx}, v{Sx}, v{Sx+2}
    v_add_f32 v{Sx+1}, v{Sx+1}, v{Sx+3}
    v_add_f32 v{Sx}, v{Sx}, v{Sx+1}
    s_mov_b64 exec, s[{MK}:{MK+1}]
    ds_add_f32 v25, v{Sx} offset:8
    s_mov_b64 exec, -1
    s_waitcnt lgkmcnt(0)
    s_barrier
    ''')
    stamp(4)
    vWO, vOA, vOR, vFA, vP1s, vP1l, vP2s, vP2l = 21, 22, 23, 24, 25, 26, 27, 28
    vWA = [8, 9, 10, 11]
    vHA = 29
    A(f'''
    v_lshrrev_b32 v1, 3, v0
    v_mul_u32_u24 v1, 896, v1
    v_bfe_u32 v2, v0, 4, 2
    v_lshlrev_b32 v2, 1, v2
    v_and_b32 v3, 7, v0
    v_xor_b32 v2, v2, v3
    v_lshl_add_u32 v1, v2, 4, v1
    s_lshl_b32 s60, s3, 7
    v_add_u32 v{vWO}, s60, v1
    v_lshrrev_b32 v1, 2, v0
    v_lshlrev_b32 v1, 7, v1
    v_bfe_u32 v2, v0, 3, 2
    v_lshl_add_u32 v1, v2, 5, v1
    v_and_b32 v2, 3, v0
    v_lshl_add_u32 v1, v2, 3, v1
    v_add_u32 v8, s59, v1
    v_xor_b32 v9, 32, v8
    v_xor_b32 v10, 64, v8
    v_xor_b32 v11, 0x60, v8
    v_lshlrev_b32 v1, 2, v0
    v_add_u32 v{vOA}, {OACC}, v1
    s_lshr_b32 s60, s3, 2                    ; h
    s_bfe_u32 s62, s3, 0x10001               ; v
    s_lshl_b32 s62, s62, 2
    s_add_u32 s62, s62, s60
    s_lshl_b32 s62, s62, 8                   ; (v*4+h)*256 bytes
    s_and_b32 s67, s3, 1
    s_lshl_b32 s67, s67, 7                   ; 2*(w&1)*16*4
    s_add_u32 s62, s62, s67
    s_add_u32 s62, s62, {OACC}
    v_bfe_u32 v1, v0, 2, 1
    v_lshlrev_b32 v1, 9, v1                  ; rr*2*256
    v_bfe_u32 v2, v0, 3, 1
    v_lshl_add_u32 v1, v2, 6, v1             ; (lane>>3)*16*4
    v_and_b32 v2, 3, v0
    v_lshl_add_u32 v1, v2, 4, v1             ; c*4
    v_add_u32 v{vOR}, s62, v1
    s_lshl_b32 s60, s60, 2
    s_add_u32 s60, s60, {FAC}
    v_mov_b32 v{vFA}, s60
    s_lshl_b32 s60, s56, 3
    s_add_u32 s62, s60, s3
    s_lshl_b32 s62, s62, 3
    s_add_u32 s62, s62, s5
    s_lshl_b32 s62, s62, 8
    s_add_u32 s62, s62, {P1}
    v_lshlrev_b32 v1, 4, v0
    v_add_u32 v{vP1s}, s62, v1
    s_add_u32 s62, s60, s5
    s_lshl_b32 s62, s62, 11
    s_add_u32 s62, s62, {P1}
    v_and_b32 v1, 7, v0
    v_lshlrev_b32 v1, 8, v1
    v_lshrrev_b32 v2, 4, v0
    v_lshl_add_u32 v1, v2, 4, v1
    v_add_u32 v{vP1l}, s62, v1
    v_lshlrev_b32 v2, 3, v2
    v_add_u32 v{vHA}, {HL}, v2
    s_mul_i32 s60, s6, 56
    s_lshl_b32 s62, s3, 3
    s_add_u32 s62, s62, s60
    s_lshl_b32 s62, s62, 6
    s_add_u32 s62, s62, s7
    s_lshl_b32 s62, s62, 6
    s_add_u32 s62, s62, {P2}
    v_lshrrev_b32 v1, 3, v0
    v_lshlrev_b32 v1, 12, v1
    v_and_b32 v2, 7, v0
    v_lshl_add_u32 v1, v2, 3, v1
    v_add_u32 v{vP2s}, s62, v1
    s_add_u32 s62, s60, s7
    s_lshl_b32 s62, s62, 12
    s_lshl_b32 s60, s3, 3
    s_add_u32 s62, s62, s60
    s_add_u32 s62, s62, {P2}
    v_lshlrev_b32 v1, 6, v0
    v_add_u32 v{vP2l}, s62, v1
    s_lshl_b32 s60, s63, 16
    s_and_b32 s63, s63, 0xffff0000
    s_bitcmp1_b32 s61, 1
    s_cselect_b32 s63, s63, s60
    ''')
    def issueW(srd, soff, n, slot):
        for i in range(n):
            A(f's_add_u32 m0, s59, {slot*8192 + i*1024}')
            A(f's_add_u32 s60, {soff}, {i*7168}')
            A(f'buffer_load_dwordx4 v{vWO}, {srd}, s60 offen{wnt} lds')
    Vf = KfA; Mk = KfB
    for i in range(4):
        M = Mk + 16*(i & 1)
        for u in range(8):
            A(f'v_cndmask_b32 v{M+2*u}, 0, v{Pk+2*i}, s[{MK+2*u}:{MK+2*u+1}]')
            A(f'v_cndmask_b32 v{M+2*u+1}, 0, v{Pk+2*i+1}, s[{MK+2*u}:{MK+2*u+1}]')
        A('s_waitcnt vmcnt(8)')
        if i == 3: stamp(5)
        for t in range(16):
            A(f'ds_read_b64_tr_b16 v[{Vf+2*t}:{Vf+2*t+1}], v{vVA[t&7]} offset:{(i&1)*8192 + (t>>3)*256}')
        for ii in range(8):
            A(f's_waitcnt lgkmcnt({14-2*ii})')
            acc = Oa + 4*(ii >> 2)
            c = '0' if (i == 0 and (ii & 3) == 0) else f'v[{acc}:{acc+3}]'
            A(f'v_mfma_f32_16x16x32_bf16 v[{acc}:{acc+3}], v[{M+4*(ii&3)}:{M+4*(ii&3)+3}], v[{Vf+4*ii}:{Vf+4*ii+3}], {c}')
        if i < 2: issue(VS, i + 2, i & 1)
        elif i == 2: issueW('s[44:47]', 's64', 8, 0)
        else: issueW('s[48:51]', 's65', 4, 1)
    for r in range(8):
        A(f'ds_add_f32 v{vOA}, v{Oa+r} offset:{r*256}')
    A(f'''
    s_waitcnt lgkmcnt(0)
    s_barrier
    s_mov_b64 exec, 0xffff
    ds_read_b128 v[32:35], v{vOR}
    ds_read_b32 v36, v{vFA}
    v_mov_b32 v41, v{vTAG}
    v_mov_b32 v43, v{vTAG}
    s_waitcnt lgkmcnt(0)
    v_mul_f32 v32, v32, v36
    v_mul_f32 v33, v33, v36
    v_mul_f32 v34, v34, v36
    v_mul_f32 v35, v35, v36
    v_cvt_pk_bf16_f32 v40, v32, v33
    v_cvt_pk_bf16_f32 v42, v34, v35
    buffer_store_dwordx4 v[40:43], v{vP1s}, s[40:43], 0 offen sc1
    s_mov_b64 exec, -1
    ''')
    stamp(6)
    A(f'''
    s_cmp_eq_u32 s3, 7
    s_cbranch_scc1 L_final
    s_waitcnt vmcnt(1)
    ''')
    WOf, WDf = Qf, Sx
    for T in range(4):
        for half in range(2):
            A(f'ds_read_b64_tr_b16 v[{WDf+4*T+2*half}:{WDf+4*T+2*half+1}], v{vWA[T]} offset:{8192 + half*2048}')
    A(f'ds_read2_b64 v[44:47], v{vHA} offset0:0 offset1:4')
    for ks in range(2):
        for T in range(4):
            for half in range(2):
                d = WOf + 16*ks + 4*T + 2*half
                A(f'ds_read_b64_tr_b16 v[{d}:{d+1}], v{vWA[T]} offset:{ks*4096 + half*2048}')
    A(f'''
    s_mov_b32 s{MK}, 0x00010001
    s_mov_b32 s{MK+1}, 0x00010001
    s_mov_b32 s{MK+2}, 0x01000100
    s_mov_b32 s{MK+3}, 0x01000100
    s_mov_b32 s{MK+4}, 0x00ff00ff
    s_mov_b32 s{MK+5}, 0x00ff00ff
    s_waitcnt lgkmcnt(0)
    ''')
    for r in range(4):
        A(f'v_cndmask_b32 v{48+r}, 0, v{44+r}, s[{MK}:{MK+1}]')
        A(f'v_cndmask_b32 v{52+r}, 0, v{44+r}, s[{MK+2}:{MK+3}]')
    FA_, FB_ = 56, 60
    A(f'''
    v_mfma_f32_16x16x32_bf16 v[56:59], v[48:51], v[{WDf}:{WDf+3}], 0
    v_mfma_f32_16x16x32_bf16 v[60:63], v[48:51], v[{WDf+4}:{WDf+7}], 0
    v_mfma_f32_16x16x32_bf16 v[56:59], v[52:55], v[{WDf+8}:{WDf+11}], v[56:59]
    v_mfma_f32_16x16x32_bf16 v[60:63], v[52:55], v[{WDf+12}:{WDf+15}], v[60:63]
    s_mov_b32 s60, {SPIN}
    L_poll1:
    ''')
    PL = 64
    for q in range(4):
        A(f'buffer_load_dwordx4 v[{PL+4*q}:{PL+4*q+3}], v{vP1l}, s[40:43], 0 offen offset:{q*64} sc1')
    A(f'''
    s_sub_u32 s60, s60, 1
    s_cbranch_scc1 L_poll1_done
    s_waitcnt vmcnt(0)
    v_min3_u32 v1, v{PL+1}, v{PL+3}, v{PL+5}
    v_max3_u32 v2, v{PL+1}, v{PL+3}, v{PL+5}
    v_min3_u32 v1, v1, v{PL+7}, v{PL+9}
    v_max3_u32 v2, v2, v{PL+7}, v{PL+9}
    v_min3_u32 v1, v1, v{PL+11}, v{PL+13}
    v_max3_u32 v2, v2, v{PL+11}, v{PL+13}
    v_min3_u32 v1, v1, v{PL+15}, v{vTAG}
    v_max3_u32 v2, v2, v{PL+15}, v{vTAG}
    v_cmp_ne_u32 vcc, v1, v2
    s_cbranch_vccnz L_poll1
    L_poll1_done:
    s_waitcnt vmcnt(0)
    ''')
    stamp(7)
    LO, HI = 80, 88
    for q in range(8):
        A(f'v_cndmask_b32 v{LO+q}, 0, v{PL+2*q}, s[{MK+4}:{MK+5}]')
    for q in range(8):
        A(f'v_cndmask_b32 v{HI+q}, v{PL+2*q}, 0, s[{MK+4}:{MK+5}]')
    for (a, T0) in ((LO, 0), (HI, 2)):
        for ks in range(2):
            for x in range(2):
                acc = 56 + 4*x
                bb = WOf + 16*ks + 4*(T0 + x)
                A(f'v_mfma_f32_16x16x32_bf16 v[{acc}:{acc+3}], v[{a+4*ks}:{a+4*ks+3}], v[{bb}:{bb+3}], v[{acc}:{acc+3}]')
    A(f'''
    v_mov_b32 v3, v{vTAG}
    v_add_f32 v56, v56, v57
    v_add_f32 v58, v58, v59
    v_add_f32 v60, v60, v61
    v_add_f32 v62, v62, v63
    v_add_f32 v56, v56, v58
    v_add_f32 v60, v60, v62
    v_permlane16_swap_b32 v56, v60
    v_add_f32 v2, v56, v60
    buffer_store_dwordx2 v[2:3], v{vP2s}, s[40:43], 0 offen sc1
    L_final:
    ''')
    stamp(8)
    A(f'''
    s_cmp_ge_u32 s7, 56
    s_cbranch_scc1 L_done
    s_mov_b32 s60, {SPIN}
    L_poll2:
    buffer_load_dwordx2 v[32:33], v{vP2l}, s[40:43], 0 offen sc1
    s_sub_u32 s60, s60, 1
    s_cbranch_scc1 L_poll2_done
    s_waitcnt vmcnt(0)
    v_cmp_ne_u32 vcc, v33, v{vTAG}
    s_mov_b64 exec, vcc
    s_cbranch_vccnz L_poll2
    L_poll2_done:
    s_mov_b64 exec, -1
    s_waitcnt vmcnt(0)
    ''')
    stamp(9)
    A(f'''
    v_add_f32_dpp v32, v32, v32 row_shr:1 row_mask:0xf bank_mask:0xf bound_ctrl:0
    v_add_f32_dpp v32, v32, v32 row_shr:2 row_mask:0xf bank_mask:0xf bound_ctrl:0
    v_add_f32_dpp v32, v32, v32 row_shr:4 row_mask:0xf bank_mask:0xf bound_ctrl:0
    v_add_f32_dpp v32, v32, v32 row_shr:8 row_mask:0xf bank_mask:0xf bound_ctrl:0
    v_add_f32_dpp v32, v32, v32 row_bcast:15 row_mask:0xa bank_mask:0xf
    v_add_f32_dpp v32, v32, v32 row_bcast:31 row_mask:0xc bank_mask:0xf
    v_mov_b32 v1, s61
    v_add_f32 v32, s63, v32
    v_cvt_pk_bf16_f32 v32, v32, v32
    s_mov_b32 exec_lo, 0
    s_brev_b32 exec_hi, 1
    buffer_store_short v32, v1, s[52:55], 0 offen sc1
    s_or_b32 s60, s2, s3
    s_cmp_lg_u32 s60, 0
    s_cbranch_scc1 L_done
    v_mov_b32 v1, {EPOCH}
    buffer_store_dword v{vTAG}, v1, s[40:43], 0 offen sc1
    L_done:
    ''')
    def dump_stamps(slot0, n0, n1, lab):
        A('s_waitcnt vmcnt(0) lgkmcnt(0)')
        A('s_mov_b64 exec, 1')
        A(f's_lshl_b32 s60, s2, {int(math.log2(NST*8))}')
        A(f's_add_u32 s60, s60, {STAMPS}')
        A('v_mov_b32 v1, s60')
        for k in range(n0, n1):
            A(f'v_mov_b32 v2, s{70+2*k}')
            A(f'v_mov_b32 v3, s{71+2*k}')
            A(f'buffer_store_dwordx2 v[2:3], v1, s[40:43], 0 offen offset:{8*(slot0+k)}')
    if stamps:
        raise NotImplementedError
    A('s_endpgm')

    A(f'''
    L_helper:
    v_lshrrev_b32 v1, 4, v0                  ; b' = l/16 (also g)
    v_and_b32 v2, 15, v0                     ; i
    v_mul_u32_u24 v3, 896, v1
    v_lshl_add_u32 v3, v2, 3, v3
    s_lshr_b32 s57, s2, 3                    ; r = wg>>3
    s_lshl_b32 s58, s4, 5
    s_add_u32 s58, s58, s57                  ; p' = hkv*32 + r
    s_lshl_b32 s59, s58, 5
    v_lshrrev_b32 v4, 1, v0
    v_and_b32 v5, 1, v0
    v_lshlrev_b32 v6, 13, v4
    v_lshl_add_u32 v6, v5, 4, v6
    v_add_u32 v6, s59, v6
    s_mov_b32 s54, 3584
    s_mov_b32 s55, 0x20000
    s_mov_b32 s46, {448*8192}
    s_mov_b32 s47, 0x20000
    s_mov_b32 s42, {0x300000 if stamps else WS_END}
    s_mov_b32 s43, 0x20000
    s_waitcnt lgkmcnt(0)
    s_mov_b32 s52, s16
    s_mov_b32 s53, s17
    s_mov_b32 s44, s22
    s_mov_b32 s45, s23
    s_mov_b32 s40, s38
    s_mov_b32 s41, s39
    s_load_dword s62, s[38:39], {EPOCH}
    ''')
    XR = 8
    for u in range(7):
        A(f'buffer_load_dwordx2 v[{XR+2*u}:{XR+2*u+1}], v3, s[52:55], 0 offen offset:{128*u}')
    A(f'''
    s_mov_b32 s60, 0
    s_mov_b32 m0, {STAGE}
    L_wq:
    buffer_load_dwordx4 v6, s[44:47], s60 offen{wnt} lds
    s_add_u32 m0, m0, 1024
    s_add_u32 s60, s60, {32*8192}
    s_cmp_lt_u32 s60, {448*8192}
    s_cbranch_scc1 L_wq
    v_mov_b32 v24, 0
    v_mov_b32 v25, 0
    v_mov_b32 v26, 0
    v_mov_b32 v27, 0
    v_lshlrev_b32 v7, 4, v0
    v_add_u32 v7, {OACC}, v7
    ds_write_b128 v7, v[24:27]
    ds_write_b128 v7, v[24:27] offset:1024
    s_waitcnt lgkmcnt(0)
    s_mul_i32 s62, s62, 1664525
    s_add_u32 s62, s62, 1013904223
    v_mov_b32 v24, 0xff800000
    v_mov_b32 v25, 0xff800000
    v_mov_b32 v7, {MX}
    v_mov_b32 v28, s62
    ds_write_b128 v7, v[24:27]               ; m = -inf, l = 0
    ds_write_b32 v7, v28 offset:24           ; tag
    s_waitcnt vmcnt(14)
    ''')
    XF = 32
    for u in range(14):
        A(f'v_lshlrev_b32 v{XF+2*u}, 16, v{XR+u}')
        A(f'v_and_b32 v{XF+2*u+1}, 0xffff0000, v{XR+u}')
    def rowsum(r):
        for sh in (8, 4, 2, 1):
            A(f'v_add_f32_dpp v{r}, v{r}, v{r} row_ror:{sh} row_mask:0xf bank_mask:0xf')
    A(f'v_add_f32 v24, v{XF}, v{XF+1}')
    A(f'v_add_f32 v25, v{XF+2}, v{XF+3}')
    for u in range(4, 28, 2):
        A(f'v_add_f32 v24, v24, v{XF+u}')
        A(f'v_add_f32 v25, v25, v{XF+u+1}')
    A('v_add_f32 v24, v24, v25')
    rowsum(24)
    A(f'v_mul_f32 v24, {f32(1/448)}, v24       ; mean')
    A('v_mov_b32 v25, 0')
    A('v_mov_b32 v26, 0')
    for u in range(0, 28, 2):
        A(f'v_sub_f32 v29, v{XF+u}, v24')
        A(f'v_sub_f32 v30, v{XF+u+1}, v24')
        A('v_fmac_f32 v25, v29, v29')
        A('v_fmac_f32 v26, v30, v30')
    A('v_add_f32 v25, v25, v26')
    rowsum(25)
    A(f'''
    v_mul_f32 v25, {f32(1/448)}, v25           ; var
    v_cvt_pk_bf16_f32 v25, v24, v25
    v_lshlrev_b32 v24, 16, v25               ; bf16(mean)
    v_and_b32 v25, 0xffff0000, v25           ; bf16(var)
    v_add_f32 v25, {f32(1e-5)}, v25
    v_cvt_pk_bf16_f32 v25, v25, v25
    v_and_b32 v25, 0xffff0000, v25
    v_sqrt_f32 v25, v25
    v_cvt_pk_bf16_f32 v25, v25, v25
    v_and_b32 v25, 0xffff0000, v25
    v_rcp_f32 v25, v25
    v_add_u32 v3, {XN}, v3
    ''')
    for u in range(14):
        a, b = XF + 2*u, XF + 2*u + 1
        A(f'v_sub_f32 v{a}, v{a}, v24')
        A(f'v_sub_f32 v{b}, v{b}, v24')
        A(f'v_cvt_pk_bf16_f32 v{b}, v{a}, v{b}')
        A(f'v_lshlrev_b32 v{a}, 16, v{b}')
        A(f'v_and_b32 v{b}, 0xffff0000, v{b}')
        A(f'v_mul_f32 v{a}, v{a}, v25')
        A(f'v_mul_f32 v{b}, v{b}, v25')
        A(f'v_cvt_pk_bf16_f32 v{XR+u}, v{a}, v{b}')
    for u in range(7):
        A(f'ds_write_b64 v3, v[{XR+2*u}:{XR+2*u+1}] offset:{128*u}')
    XB = 32
    WF = 88
    A(f'''
    v_and_b32 v3, 3, v0
    v_mul_u32_u24 v3, 896, v3
    v_lshl_add_u32 v3, v1, 3, v3
    v_add_u32 v3, {XN}, v3
    v_lshlrev_b32 v7, 3, v0
    v_add_u32 v7, {STAGE}, v7
    s_waitcnt lgkmcnt(0)
    ''')
    for t in range(14):
        A(f'ds_read2_b64 v[{XB+4*t}:{XB+4*t+3}], v3 offset0:{8*t} offset1:{8*t+4}')
    def gemv():
        for t in range(14):
            for half in range(2):
                A(f'ds_read_b64_tr_b16 v[{WF+4*t+2*half}:{WF+4*t+2*half+1}], v7 offset:{1024*t + 512*half}')
        A('s_waitcnt lgkmcnt(0)')
        for t in range(14):
            c = '0' if t == 0 else 'v[24:27]'
            A(f'v_mfma_f32_16x16x32_bf16 v[24:27], v[{WF+4*t}:{WF+4*t+3}], v[{XB+4*t}:{XB+4*t+3}], {c}')
    A('s_waitcnt vmcnt(0)')
    gemv()
    A(f'''
    s_lshl_b32 s60, s58, 6
    s_add_u32 s60, s60, {QX}
    v_lshlrev_b32 v8, 14, v2
    v_lshl_add_u32 v8, v1, 4, v8
    v_add_u32 v8, s60, v8
    v_mov_b32 v13, v28
    v_mov_b32 v15, v28
    s_mov_b32 s64, 0x000f000f
    s_mov_b32 s65, 0x000f000f
    v_cvt_pk_bf16_f32 v12, v24, v25
    v_cvt_pk_bf16_f32 v14, v26, v27
    s_mov_b64 exec, s[64:65]
    buffer_store_dwordx4 v[12:15], v8, s[40:43], 0 offen sc1
    s_mov_b64 exec, -1
    s_cmp_ge_u32 s57, 28
    s_cbranch_scc1 L_nogu_load
    s_mul_i32 s59, s4, 28
    s_add_u32 s59, s59, s57                  ; f'
    s_lshl_b32 s60, s59, 4
    v_mul_u32_u24 v8, 3584, v4
    v_add_u32 v8, s60, v8
    v_cmp_eq_u32 vcc, 1, v5
    v_mov_b32 v10, s28
    v_mov_b32 v11, s29
    v_mov_b32 v16, s30
    v_mov_b32 v17, s31
    v_cndmask_b32 v10, v10, v16, vcc
    v_cndmask_b32 v11, v11, v17, vcc
    v_add_co_u32 v10, vcc, v10, v8
    v_addc_co_u32 v11, vcc, 0, v11, vcc
    s_mov_b32 s66, {32*3584}
    s_mov_b32 s67, 0
    s_mov_b32 s60, 14
    s_mov_b32 m0, {STAGE}
    L_gu:
    global_load_lds_dwordx4 v[10:11], off{wnt}
    s_add_u32 m0, m0, 1024
    v_lshl_add_u64 v[10:11], v[10:11], 0, s[66:67]
    s_sub_u32 s60, s60, 1
    s_cmp_lg_u32 s60, 0
    s_cbranch_scc1 L_gu
    L_nogu_load:
    s_lshl_b32 s60, s56, 11                  ; b*16384 + hkv*2048
    s_add_u32 s60, s60, {QX}
    v_lshlrev_b32 v8, 4, v0
    v_add_u32 v8, s60, v8
    s_mov_b32 s60, {SPIN}
    L_pollq:
    buffer_load_dwordx4 v[16:19], v8, s[40:43], 0 offen sc1
    buffer_load_dwordx4 v[20:23], v8, s[40:43], 0 offen offset:1024 sc1
    s_sub_u32 s60, s60, 1
    s_cbranch_scc1 L_pollq_done
    s_waitcnt vmcnt(0)
    v_min3_u32 v9, v17, v19, v21
    v_max3_u32 v10, v17, v19, v21
    v_min3_u32 v9, v9, v23, v28
    v_max3_u32 v10, v10, v23, v28
    v_cmp_ne_u32 vcc, v9, v10
    s_cbranch_vccz L_pollq_done
    s_sleep 4
    s_branch L_pollq
    L_pollq_done:
    s_waitcnt vmcnt(0)
    v_lshlrev_b32 v9, 3, v0
    v_add_u32 v9, {QL}, v9
    ds_write2_b32 v9, v16, v18 offset0:0 offset1:1
    ds_write2_b32 v9, v20, v22 offset0:128 offset1:129
    s_cmp_ge_u32 s57, 28
    s_cbranch_scc1 L_nogu
    ''')
    gemv()
    A(f'''
    v_cvt_pk_bf16_f32 v16, v24, v25
    v_cvt_pk_bf16_f32 v17, v26, v27
    v_mov_b32 v18, v16
    v_mov_b32 v19, v17
    v_permlane32_swap_b32 v16, v18
    v_permlane32_swap_b32 v17, v19
    v_lshlrev_b32 v20, 16, v16
    v_and_b32 v21, 0xffff0000, v16
    v_lshlrev_b32 v22, 16, v17
    v_and_b32 v23, 0xffff0000, v17
    v_max_f32 v20, 0, v20
    v_max_f32 v21, 0, v21
    v_max_f32 v22, 0, v22
    v_max_f32 v23, 0, v23
    v_lshlrev_b32 v24, 16, v18
    v_and_b32 v25, 0xffff0000, v18
    v_lshlrev_b32 v26, 16, v19
    v_and_b32 v27, 0xffff0000, v19
    v_mul_f32 v20, v20, v24
    v_mul_f32 v21, v21, v25
    v_mul_f32 v22, v22, v26
    v_mul_f32 v23, v23, v27
    v_cvt_pk_bf16_f32 v12, v20, v21
    v_cvt_pk_bf16_f32 v14, v22, v23
    s_lshl_b32 s60, s59, 5
    s_add_u32 s60, s60, {HX}
    v_mul_u32_u24 v8, 7168, v2
    v_lshl_add_u32 v8, v1, 4, v8
    v_add_u32 v8, s60, v8
    s_mov_b32 exec_lo, 0x000f000f
    s_mov_b32 exec_hi, 0
    buffer_store_dwordx4 v[12:15], v8, s[40:43], 0 offen sc1
    s_mov_b64 exec, -1
    L_nogu:
    s_waitcnt lgkmcnt(0)
    s_barrier                               ; #1
    s_barrier                               ; #2
    s_barrier                               ; #3
    v_lshlrev_b32 v8, 2, v0
    v_add_u32 v8, {MX}, v8
    s_mov_b64 exec, 3
    ds_read_b32 v12, v8
    ds_read_b32 v14, v8 offset:8
    s_lshl_b32 s60, s56, 8
    s_add_u32 s60, s60, {ST}
    s_lshl_b32 s61, s5, 4
    s_add_u32 s61, s61, s60
    v_lshlrev_b32 v9, 7, v0
    v_add_u32 v9, s61, v9
    s_waitcnt lgkmcnt(0)
    buffer_store_dwordx4 v[12:15], v9, s[40:43], 0 offen sc1
    s_mov_b64 exec, 0xff
    v_mov_b32 v16, 0
    v_mov_b32 v18, 0
    s_cmp_ge_u32 s7, 56
    s_cbranch_scc1 L_pollh_done
    s_mul_i32 s61, s6, 7168
    s_lshl_b32 s63, s7, 7
    s_add_u32 s61, s61, s63
    s_add_u32 s61, s61, {HX}
    v_lshlrev_b32 v9, 4, v0
    v_add_u32 v9, s61, v9
    s_mov_b32 s63, {SPIN}
    L_pollh:
    buffer_load_dwordx4 v[16:19], v9, s[40:43], 0 offen sc1
    s_sub_u32 s63, s63, 1
    s_cbranch_scc1 L_pollh_done
    s_waitcnt vmcnt(0)
    v_min3_u32 v10, v17, v19, v28
    v_max3_u32 v11, v17, v19, v28
    v_cmp_ne_u32 vcc, v10, v11
    s_cbranch_vccz L_pollh_done
    s_sleep 4
    s_branch L_pollh
    L_pollh_done:
    s_waitcnt vmcnt(0)
    v_lshlrev_b32 v9, 3, v0
    v_add_u32 v9, {HL}, v9
    ds_write2_b32 v9, v16, v18 offset0:0 offset1:1
    s_mov_b64 exec, 0xffff
    v_lshlrev_b32 v9, 4, v0
    v_add_u32 v9, s60, v9
    s_mov_b32 s63, {SPIN}
    L_polls:
    buffer_load_dwordx4 v[16:19], v9, s[40:43], 0 offen sc1
    s_sub_u32 s63, s63, 1
    s_cbranch_scc1 L_polls_done
    s_waitcnt vmcnt(0)
    v_min3_u32 v10, v17, v19, v28
    v_max3_u32 v11, v17, v19, v28
    v_cmp_ne_u32 vcc, v10, v11
    s_cbranch_vccz L_polls_done
    s_sleep 4
    s_branch L_polls
    L_polls_done:
    s_waitcnt vmcnt(0)
    v_max_f32_dpp v10, v16, v16 quad_perm:[1,0,3,2] row_mask:0xf bank_mask:0xf
    v_max_f32_dpp v10, v10, v10 quad_perm:[2,3,0,1] row_mask:0xf bank_mask:0xf
    v_max_f32_dpp v10, v10, v10 row_half_mirror row_mask:0xf bank_mask:0xf
    v_sub_f32 v10, v16, v10
    v_mul_f32 v10, {f32(math.log2(math.e)/16)}, v10
    v_exp_f32 v10, v10
    v_mul_f32 v11, v10, v18
    v_add_f32_dpp v11, v11, v11 quad_perm:[1,0,3,2] row_mask:0xf bank_mask:0xf
    v_add_f32_dpp v11, v11, v11 quad_perm:[2,3,0,1] row_mask:0xf bank_mask:0xf
    v_add_f32_dpp v11, v11, v11 row_half_mirror row_mask:0xf bank_mask:0xf
    v_rcp_f32 v11, v11
    v_mul_f32 v10, v10, v11
    v_lshrrev_b32 v9, 3, v0
    v_lshlrev_b32 v9, 2, v9
    v_add_u32 v9, {FAC}, v9
    s_lshl_b32 s60, 0x101, s5
    s_mov_b32 exec_lo, s60
    ds_write_b32 v9, v10
    s_waitcnt lgkmcnt(0)
    L_end:
    s_endpgm
    ''')
    A('.section .rodata,"a"')
    A('.p2align 6')
    A(f'.amdhsa_kernel {NAME}_kernel')
    A('.amdhsa_next_free_vgpr 160')
    A('.amdhsa_next_free_sgpr 102')
    A('.amdhsa_accum_offset 160')
    A('.amdhsa_group_segment_fixed_size 0')
    A('.amdhsa_kernarg_size 96')
    A('.amdhsa_user_sgpr_count 2')
    A('.amdhsa_user_sgpr_kernarg_segment_ptr 1')
    A('.amdhsa_system_sgpr_workgroup_id_x 1')
    A('.end_amdhsa_kernel')
    return top + A.finalize()

if __name__ == '__main__':
    out = sys.argv[1] if len(sys.argv) > 1 else f'cdna_kernels/{NAME}.s'
    open(out, 'w').write(gen())
    print('wrote', out)
```

```python
import sys, struct, math
from asmlib import Asm
NAME = 'parallel_sum__sliding_block_cached__glu_gated_reglu__decode'

def f32(x): return '0x%08x' % struct.unpack('<I', struct.pack('<f', x))[0]

WQS = 131072
GS = WQS + 14336
US = GS + 7168
XN = US + 7168
MISC = XN + 3584
FLQ = MISC
CNT = MISC + 4
FLS = MISC + 8
FLF = MISC + 16
STW = XN
FACW = XN + 128
HL = XN + 256
QL = WQS
YL = WQS
LDS_TOTAL = 163840
EPOCH = 0
QX = 0x1000
HX = 0x11000
ST = 0x18000
P1 = 0x20000
P2 = 0xA0000
WS_END = 0xC0000
STAMPS = 0x200000
SPIN = 400000
CEXP = f32(math.log2(math.e)/16)

def gen(stamps=0, wnt=' nt', kvnt=' nt', forceslow=False, nogu=False, nowq=False, now=False):
    A = Asm()
    def sreg(k): return 68 + 2*k if k < 3 else 16 + 2*(k-3)
    def stamp(k):
        if stamps: A(f's_memrealtime s[{sreg(k)}:{sreg(k)+1}]')
    def hstamp(k):
        if stamps: A(f's_memrealtime s[{68+2*k}:{69+2*k}]')
    def dump_stamps(slot0, regs_):
        A('s_waitcnt vmcnt(0) lgkmcnt(0)')
        A('s_mov_b64 exec, 1')
        A('s_lshl_b32 s60, s2, 9')
        A(f's_add_u32 s60, s60, {STAMPS}')
        A('v_mov_b32 v1, s60')
        for k, r in enumerate(regs_):
            A(f'v_mov_b32 v2, s{r}')
            A(f'v_mov_b32 v3, s{r+1}')
            A(f'buffer_store_dwordx2 v[2:3], v1, s[40:43], 0 offen offset:{8*(slot0+k)}')
    WSN = 0x300000 if stamps else WS_END
    hdr = open('cdna_kernels/%s.s.ref' % NAME).read().split('; Override launch geometry')[0]
    top = hdr + f'; @launch grid=(256,1,1) block=(576,1,1) lds={LDS_TOTAL}\n'
    A('.amdgcn_target "amdgcn-amd-amdhsa--gfx950"')
    A('.text')
    A(f'.globl {NAME}_kernel')
    A('.p2align 8')
    A(f'.type {NAME}_kernel,@function')
    A(f'{NAME}_kernel:')
    A('''
    s_cmp_ge_u32 s2, 256
    s_cbranch_scc1 L_end
    s_load_dwordx16 s[16:31], s[0:1], 0
    s_load_dwordx8 s[32:39], s[0:1], 64
    s_setprio 3
    ''')
    stamp(0)
    A('''
    v_lshrrev_b32 v1, 6, v0
    v_and_b32 v0, 63, v0                     ; lane
    v_readfirstlane_b32 s3, v1               ; wave
    s_and_b32 s4, s2, 7                      ; hkv
    s_bfe_u32 s5, s2, 0x30003                ; j
    s_lshr_b32 s6, s2, 6                     ; b
    s_lshl_b32 s56, s6, 3
    s_add_u32 s56, s56, s4
    s_lshr_b32 s66, s2, 3                    ; r = wg>>3
    s_lshl_b32 s67, s4, 5
    s_add_u32 s67, s67, s66                  ; p' = hkv*32 + r
    s_cmp_eq_u32 s3, 8
    s_cbranch_scc1 L_helper
    ''')
    vD = [4, 5, 6, 7]; vKA = [8, 9, 10, 11]; vVA = list(range(12, 20)); vTAG = 20
    KfA, KfB, Qf, Sx, Pk, Oa = 32, 64, 96, 128, 144, 152
    A(f'''
    v_lshrrev_b32 v1, 5, v0
    v_and_b32 v2, 31, v0
    v_lshlrev_b32 v3, 1, v1
    v_xor_b32 v2, v2, v3
    v_lshlrev_b32 v2, 4, v2
    v_lshl_add_u32 v4, v1, 9, v2
    v_xor_b32 v5, 64, v4
    v_xor_b32 v6, 0x80, v4
    v_xor_b32 v7, 0xc0, v4
    s_lshl_b32 s57, s56, 23
    s_add_u32 s57, s57, {12288*512}
    s_lshl_b32 s58, s5, 3
    s_add_u32 s58, s58, s3
    s_lshl_b32 s58, s58, 13
    s_lshl_b32 s59, s3, 14
    s_mov_b32 s10, 0x200000
    s_mov_b32 s11, 0x20000
    s_mov_b32 s47, 0x20000
    s_cmp_eq_u32 s3, 7
    s_cbranch_scc1 L_ldx
    v_lshrrev_b32 v1, 1, v0
    v_and_b32 v2, 1, v0
    v_lshlrev_b32 v1, 13, v1
    v_lshl_add_u32 v1, v2, 4, v1
    s_lshl_b32 s60, s67, 5
    s_lshl_b32 s61, s3, 19
    s_add_u32 s60, s60, s61
    s_add_u32 s61, s60, {32*8192}
    s_lshl_b32 s62, s3, 11
    s_add_u32 m0, s62, {WQS}
    s_mov_b32 s46, {0 if nowq else 448*8192}
    s_waitcnt lgkmcnt(0)
    s_mov_b64 s[44:45], s[22:23]
    buffer_load_dwordx4 v1, s[44:47], s60 offen{wnt} lds
    s_add_u32 m0, m0, 1024
    buffer_load_dwordx4 v1, s[44:47], s61 offen{wnt} lds
    s_branch L_ldk
    L_ldx:
    v_lshlrev_b32 v1, 4, v0
    s_mov_b32 m0, {XN}
    s_mov_b32 s46, 3584
    s_waitcnt lgkmcnt(0)
    s_mov_b64 s[44:45], s[16:17]
    buffer_load_dwordx4 v1, s[44:47], 0 offen lds
    buffer_load_dwordx4 v1, s[44:47], 0 offen offset:1024 lds
    buffer_load_dwordx4 v1, s[44:47], 0 offen offset:2048 lds
    buffer_load_dwordx4 v1, s[44:47], 0 offen offset:3072 lds
    L_ldk:
    s_setprio 0
    s_add_u32 s8, s18, s57
    s_addc_u32 s9, s19, 0
    ''')
    def issue(srd, i, slot):
        for half in range(2):
            A(f's_add_u32 m0, s59, {slot*8192 + half*4096}')
            A(f's_add_u32 s60, s58, {i*524288 + half*4096}')
            for q in range(4):
                A(f'buffer_load_dwordx4 v{vD[q]}, {srd}, s60 offen offset:{q*1024}{kvnt} lds')
    KS, VS = 's[8:11]', 's[12:15]'
    issue(KS, 0, 0)
    stamp(1)
    A(f'''
    s_waitcnt vmcnt(8)
    s_barrier
    ''')
    stamp(2)
    A(f'''
    s_add_u32 s12, s20, s57
    s_addc_u32 s13, s21, 0
    s_mov_b32 s14, 0x200000
    s_mov_b32 s15, 0x20000
    s_mov_b64 s[40:41], s[38:39]
    s_mov_b32 s42, {WSN}
    s_mov_b32 s43, 0x20000
    s_mov_b64 s[76:77], s[24:25]
    s_cmp_lt_u32 s5, 7
    s_cselect_b32 s78, {0 if now else 4096*896}, 0
    s_mov_b32 s79, 0x20000
    s_mov_b64 s[48:49], s[32:33]
    s_cselect_b32 s50, {0 if now else 1792*896}, 0
    s_mov_b32 s51, 0x20000
    s_cselect_b32 s61, s5, 0
    s_lshl_b32 s61, s61, 7
    s_lshl_b32 s64, s4, 4
    s_add_u32 s64, s64, s3
    s_mul_i32 s64, s64, {32*896}
    s_add_u32 s64, s64, s61
    s_mul_i32 s65, s4, 7
    s_add_u32 s65, s65, s3
    s_mul_i32 s65, s65, {32*896}
    s_add_u32 s65, s65, s61
    v_and_b32 v1, 15, v0                     ; row
    v_lshrrev_b32 v2, 4, v0                  ; g
    v_and_b32 v3, 7, v0
    v_lshlrev_b32 v3, 1, v3
    v_xor_b32 v3, v3, v2
    v_lshlrev_b32 v3, 4, v3
    v_lshl_add_u32 v3, v1, 9, v3
    v_add_u32 v8, s59, v3
    v_xor_b32 v9, 64, v8
    v_xor_b32 v10, 0x80, v8
    v_xor_b32 v11, 0xc0, v8
    s_mul_i32 s61, s4, 28
    s_add_u32 s61, s61, s66                  ; f'
    s_lshl_b32 s61, s61, 4
    s_mul_i32 s63, s3, {64*3584}
    s_add_u32 s63, s63, s61
    s_cmp_lt_u32 s66, 28
    s_cselect_b32 s46, {0 if nogu else 448*3584}, 0
    s_cselect_b32 s63, s63, 0
    v_mul_u32_u24 v21, 3584, v0
    s_lshl_b32 s62, s3, 10
    s_waitcnt vmcnt(0)
    ''')
    def readK(dst, slot):
        for t in range(8):
            A(f'ds_read_b128 v[{dst+4*t}:{dst+4*t+3}], v{vKA[t&3]} offset:{slot*8192 + (t>>2)*256}')
    def qk(tile, src):
        for t in range(8):
            c = '0' if t == 0 else f'v[{Sx+4*tile}:{Sx+4*tile+3}]'
            A(f'v_mfma_f32_16x16x32_bf16 v[{Sx+4*tile}:{Sx+4*tile+3}], v[{src+4*t}:{src+4*t+3}], v[{Qf+4*t}:{Qf+4*t+3}], {c}')
    readK(KfA, 0)
    issue(KS, 1, 1)
    A(f'''
    s_cmp_eq_u32 s3, 7
    s_cbranch_scc1 L_nogu
    s_add_u32 m0, s62, {GS}
    s_mov_b64 s[44:45], s[28:29]
    buffer_load_dwordx4 v21, s[44:47], s63 offen{wnt} lds
    s_add_u32 m0, s62, {US}
    s_mov_b64 s[44:45], s[30:31]
    buffer_load_dwordx4 v21, s[44:47], s63 offen{wnt} lds
    L_nogu:
    v_lshrrev_b32 v21, 2, v0                 ; row = l/4
    v_and_b32 v22, 7, v21
    v_lshlrev_b32 v22, 5, v22
    v_lshl_add_u32 v22, v21, 9, v22
    v_and_b32 v23, 3, v0
    v_lshl_add_u32 v22, v23, 3, v22
    v_add_u32 v12, s59, v22
    ''')
    for t in range(1, 8):
        A(f'v_xor_b32 v{12+t}, {t*32}, v12')
    A(f'''
    v_and_b32 v24, 1, v0
    v_lshlrev_b32 v25, 6, v24                ; head*64
    v_lshlrev_b32 v24, 9, v24
    v_lshl_add_u32 v24, v2, 4, v24
    v_add_u32 v24, {QL}, v24
    s_lshl_b32 s60, s3, 3
    s_add_u32 s60, s60, {STW}
    v_add_u32 v25, s60, v25
    v_mov_b32 v26, {MISC}
    s_waitcnt vmcnt(0) lgkmcnt(0)
    ''')
    def flagwait(off, lab):
        A(f'''
        s_mov_b32 s61, {SPIN*8}
        {lab}:
        ds_read_b32 v1, v26 offset:{off-MISC}
        s_sub_u32 s61, s61, 1
        s_cbranch_scc1 {lab}_done
        s_waitcnt lgkmcnt(0)
        v_cmp_ne_u32 vcc, 0, v1
        s_cbranch_vccnz {lab}_done
        s_sleep 1
        s_branch {lab}
        {lab}_done:
        ''')
    readK(KfB, 1)
    issue(KS, 2, 0)
    A('s_waitcnt vmcnt(0) lgkmcnt(0)')
    issue(KS, 3, 1)
    stamp(3)
    flagwait(FLQ, 'L_wq')
    stamp(4)
    for t in range(8):
        A(f'ds_read_b128 v[{Qf+4*t}:{Qf+4*t+3}], v24 offset:{t*64}')
    A('s_waitcnt lgkmcnt(0)')
    qk(0, KfA)
    readK(KfA, 0)
    qk(1, KfB)
    A('s_waitcnt lgkmcnt(0)')
    qk(2, KfA)
    A('s_waitcnt vmcnt(0)')
    readK(KfB, 1)
    issue(VS, 0, 0)
    A('s_waitcnt lgkmcnt(0)')
    qk(3, KfB)
    MK = 84
    A(f's_mov_b32 s{MK}, 0x00030003')
    A(f's_mov_b32 s{MK+1}, 0x00030003')
    for u in range(1, 8):
        A(f's_lshl_b64 s[{MK+2*u}:{MK+2*u+1}], s[{MK}:{MK+1}], {2*u}')
    A(f's_mov_b32 s63, {CEXP}')
    for i in range(8):
        a, b = Sx + 2*i, Sx + 2*i + 1
        A(f'v_cvt_pk_bf16_f32 v{b}, v{a}, v{b}')
        A(f'v_lshlrev_b32 v{a}, 16, v{b}')
        A(f'v_and_b32 v{b}, 0xffff0000, v{b}')
    A(f'v_max3_f32 v22, v{Sx}, v{Sx+1}, v{Sx+2}')
    for i in range(3, 15, 2):
        A(f'v_max3_f32 v22, v22, v{Sx+i}, v{Sx+i+1}')
    A(f'''
    v_max_f32 v22, v22, v{Sx+15}
    v_mov_b32 v1, v22
    v_permlane16_swap_b32 v22, v1
    v_max_f32 v22, v22, v1
    v_mov_b32 v1, v22
    v_permlane32_swap_b32 v22, v1
    v_max_f32 v22, v22, v1
    ''')
    for i in range(16):
        A(f'v_sub_f32 v{Sx+i}, v{Sx+i}, v22')
    for i in range(16):
        A(f'v_mul_f32 v{Sx+i}, s63, v{Sx+i}')
    for i in range(16):
        A(f'v_exp_f32 v{Sx+i}, v{Sx+i}')
    for i in range(8):
        A(f'v_cvt_pk_bf16_f32 v{Pk+i}, v{Sx+2*i}, v{Sx+2*i+1}')
    for i in range(8):
        A(f'v_add_f32 v{Sx+i}, v{Sx+i}, v{Sx+8+i}')
    for i in range(4):
        A(f'v_add_f32 v{Sx+i}, v{Sx+i}, v{Sx+4+i}')
    A(f'''
    v_add_f32 v{Sx}, v{Sx}, v{Sx+2}
    v_add_f32 v{Sx+1}, v{Sx+1}, v{Sx+3}
    v_add_f32 v23, v{Sx}, v{Sx+1}
    v_mov_b32 v1, v23
    v_permlane16_swap_b32 v23, v1
    v_add_f32 v23, v23, v1
    v_mov_b32 v1, v23
    v_permlane32_swap_b32 v23, v1
    v_add_f32 v23, v23, v1
    v_mov_b32 v1, 1
    s_mov_b64 exec, 3
    ds_write_b64 v25, v[22:23]
    s_mov_b64 exec, 1
    ds_add_u32 v26, v1 offset:{CNT-MISC}
    s_mov_b64 exec, -1
    ''')
    stamp(5)
    vWO, vWD, vOW, vOR, vP1s, vP1l, vYW, vHA = 22, 23, 24, 25, 27, 28, 29, 21
    vWA = [8, 9, 10, 11]
    A(f'''
    s_waitcnt lgkmcnt(0)
    ; W tile lane offsets
    v_bfe_u32 v2, v0, 4, 2
    v_lshlrev_b32 v2, 1, v2
    v_and_b32 v3, 7, v0
    v_xor_b32 v2, v2, v3
    v_lshlrev_b32 v2, 4, v2                  ; swizzled 16B chunk
    v_lshrrev_b32 v1, 3, v0
    s_movk_i32 s61, 896
    v_mad_u32_u24 v{vWD}, v1, s61, v2        ; WD: row l/8
    v_bfe_u32 v1, v0, 3, 1
    v_lshlrev_b32 v1, 8, v1
    v_and_b32 v3, 16, v0
    v_add_u32 v1, v1, v3
    v_lshrrev_b32 v3, 5, v0
    v_add_u32 v1, v1, v3
    v_mad_u32_u24 v{vWO}, v1, s61, v2        ; WO: row ((l>>3)&1)*256 + (l&16) + (l>>5)
    s_lshl_b32 s62, s3, 12
    s_add_u32 s62, s62, {WQS}                ; WD tile LDS base
    ; W fragment addresses
    v_lshrrev_b32 v1, 2, v0
    v_lshlrev_b32 v1, 7, v1
    v_bfe_u32 v2, v0, 3, 2
    v_lshl_add_u32 v1, v2, 5, v1
    v_and_b32 v2, 3, v0
    v_lshl_add_u32 v1, v2, 3, v1
    v_add_u32 v8, s59, v1
    v_xor_b32 v9, 32, v8
    v_xor_b32 v10, 64, v8
    v_xor_b32 v11, 0x60, v8
    v_add_u32 v30, s62, v1
    ; O partial write / read addresses
    v_lshlrev_b32 v1, 4, v0
    v_add_u32 v{vOW}, s59, v1
    v_lshrrev_b32 v2, 4, v0                  ; g
    v_and_b32 v3, 15, v0                     ; c
    v_lshlrev_b32 v31, 15, v2                ; waves 2g, 2g+1
    v_lshl_add_u32 v31, v3, 4, v31
    s_lshl_b32 s60, s3, 8
    s_add_u32 s61, s60, OSLOT
    v_add_u32 v{vOR}, s61, v31
    s_add_u32 s61, s60, {YL}
    v_lshlrev_b32 v31, 2, v0
    v_add_u32 v{vYW}, s61, v31
    ; P1 addresses: slice base = P1 + (group*8+w)*2048
    s_lshl_b32 s60, s56, 3
    s_add_u32 s60, s60, s3
    s_lshl_b32 s60, s60, 11
    s_add_u32 s60, s60, {P1}
    v_add_u32 v{vP1l}, s60, v1
    s_lshl_b32 s61, s5, 4
    s_add_u32 s61, s61, s60
    v_and_b32 v1, 7, v0
    v_lshlrev_b32 v1, 8, v1                  ; (half*4+g)*256
    v_and_b32 v3, 8, v0
    v_lshl_add_u32 v1, v3, 4, v1             ; ks*128
    v_add_u32 v{vP1s}, s61, v1
    s_lshl_b32 s60, s3, 6
    s_add_u32 s60, s60, {HL}
    v_lshlrev_b32 v1, 3, v2
    v_add_u32 v{vHA}, s60, v1
    v_lshlrev_b32 v31, 4, v2
    v_add_u32 v31, {FACW}, v31
    '''.replace('OSLOT', '8192'))
    Vf = KfA; Mk = KfB
    WOf, WDf = Qf, Sx
    PL = 64
    def masks(i):
        M = Mk + 16*(i & 1)
        for u in range(8):
            A(f'v_cndmask_b32 v{M+2*u}, 0, v{Pk+2*i}, s[{MK+2*u}:{MK+2*u+1}]')
            A(f'v_cndmask_b32 v{M+2*u+1}, 0, v{Pk+2*i+1}, s[{MK+2*u}:{MK+2*u+1}]')
    def pv(i, slot, mid=None):
        M = Mk + 16*(i & 1)
        for t in range(16):
            A(f'ds_read_b64_tr_b16 v[{Vf+2*t}:{Vf+2*t+1}], v{vVA[t&7]} offset:{slot*8192 + (t>>3)*256}')
        if mid: mid()
        for ii in range(8):
            A(f's_waitcnt lgkmcnt({14-2*ii})')
            acc = Oa + 4*(ii >> 2)
            c = '0' if (i == 0 and (ii & 3) == 0) else f'v[{acc}:{acc+3}]'
            A(f'v_mfma_f32_16x16x32_bf16 v[{acc}:{acc+3}], v[{M+4*(ii&3)}:{M+4*(ii&3)+3}], v[{Vf+4*ii}:{Vf+4*ii+3}], {c}')
    masks(0)
    A('s_waitcnt vmcnt(0)')
    pv(0, 0, lambda: issue(VS, 1, 1))
    masks(1)
    flagwait(FLS, 'L_ws')
    A('s_waitcnt vmcnt(0)')
    def midw():
        for k in range(8):
            A(f's_add_u32 m0, s59, {k*1024}')
            A(f's_add_u32 s60, s64, {k*2*896}')
            A(f'buffer_load_dwordx4 v{vWO}, s[76:79], s60 offen{wnt} lds')
        A('s_cmp_eq_u32 s3, 7')
        A('s_cbranch_scc1 L_nowd')
        for k in range(4):
            A(f's_add_u32 m0, s62, {k*1024}')
            A(f's_add_u32 s60, s65, {k*8*896}')
            A(f'buffer_load_dwordx4 v{vWD}, s[48:51], s60 offen{wnt} lds')
        A('L_nowd:')
    pv(1, 1, midw)
    A(f'''
    v_xor_b32 v22, 32, v30
    v_xor_b32 v23, 64, v30
    v_xor_b32 v1, 0x60, v30
    s_waitcnt vmcnt(0)
    ''')
    vDA = [30, 22, 23, 1]
    for ks in range(2):
        for T in range(4):
            for half in range(2):
                d = WOf + 16*ks + 4*T + 2*half
                A(f'ds_read_b64_tr_b16 v[{d}:{d+1}], v{vWA[T]} offset:{ks*4096 + half*2048}')
    issue(VS, 2, 1)
    A('s_cmp_eq_u32 s3, 7')
    A('s_cbranch_scc1 L_nowd2')
    for T in range(4):
        for half in range(2):
            A(f'ds_read_b64_tr_b16 v[{WDf+4*T+2*half}:{WDf+4*T+2*half+1}], v{vDA[T]} offset:{half*2048}')
    A('L_nowd2:')
    masks(2)
    A('s_waitcnt vmcnt(0) lgkmcnt(0)')
    def mid2():
        for q in range(2):
            A(f'buffer_load_dwordx4 v[{160}:{163}], v{vP1l}, s[40:43], 0 offen offset:{q*1024} sc1')
        issue(VS, 3, 0)
    pv(2, 1, mid2)
    masks(3)
    flagwait(FLF, 'L_wf')
    A(f'''
    ds_read_b128 v[4:7], v26 offset:{FLF-MISC}
    ds_read_b128 v[8:11], v31
    ds_read2_b64 v[64:67], v{vHA} offset0:0 offset1:4
    s_mov_b32 s{MK}, 0x00010001
    s_mov_b32 s{MK+1}, 0x00010001
    s_mov_b32 s{MK+2}, 0x01000100
    s_mov_b32 s{MK+3}, 0x01000100
    s_mov_b32 s{MK+4}, 0x00ff00ff
    s_mov_b32 s{MK+5}, 0x00ff00ff
    s_waitcnt lgkmcnt(0)
    v_readfirstlane_b32 s63, v5
    v_mov_b32 v{vTAG}, v6
    v_mov_b32 v5, v6
    v_mov_b32 v7, v6
    ''')
    FA = 144
    for r in range(8):
        A(f'v_mov_b32 v{FA+r}, 0')
    A('s_cmp_eq_u32 s3, 7')
    A('s_cbranch_scc1 L_noffn')
    for r in range(4):
        A(f'v_cndmask_b32 v{68+r}, 0, v{64+r}, s[{MK}:{MK+1}]')
        A(f'v_cndmask_b32 v{72+r}, 0, v{64+r}, s[{MK+2}:{MK+3}]')
    A(f'''
    v_mfma_f32_16x16x32_bf16 v[{FA}:{FA+3}], v[68:71], v[{WDf}:{WDf+3}], 0
    v_mfma_f32_16x16x32_bf16 v[{FA+4}:{FA+7}], v[68:71], v[{WDf+4}:{WDf+7}], 0
    v_mfma_f32_16x16x32_bf16 v[{FA}:{FA+3}], v[72:75], v[{WDf+8}:{WDf+11}], v[{FA}:{FA+3}]
    v_mfma_f32_16x16x32_bf16 v[{FA+4}:{FA+7}], v[72:75], v[{WDf+12}:{WDf+15}], v[{FA+4}:{FA+7}]
    L_noffn:
    s_mov_b32 s60, {SPIN}
    s_waitcnt vmcnt(0)
    ''')
    stamp(6)
    pv(3, 0)
    A(f'''
    ds_write_b128 v{vOW}, v[{Oa}:{Oa+3}] offset:8192
    ds_write_b128 v{vOW}, v[{Oa+4}:{Oa+7}] offset:{8192+1024}
    s_waitcnt lgkmcnt(0)
    ''')
    stamp(7)
    A(f'''
    s_barrier                               ; #4: O partials
    ds_read_b128 v[32:35], v{vOR}
    ds_read_b128 v[36:39], v{vOR} offset:16384
    s_cmp_eq_u32 s63, 0
    s_waitcnt lgkmcnt(1)
    v_mul_f32 v32, v32, v8
    v_mul_f32 v34, v34, v8
    v_mul_f32 v33, v33, v9
    v_mul_f32 v35, v35, v9
    s_waitcnt lgkmcnt(0)
    v_fmac_f32 v32, v36, v10
    v_fmac_f32 v34, v38, v10
    v_fmac_f32 v33, v37, v11
    v_fmac_f32 v35, v39, v11
    v_permlane32_swap_b32 v32, v34
    v_permlane32_swap_b32 v33, v35
    v_add_f32 v36, v32, v34
    v_add_f32 v37, v33, v35
    v_add_f32 v32, v32, v34
    v_add_f32 v33, v33, v35
    v_permlane16_swap_b32 v32, v36
    v_permlane16_swap_b32 v33, v37
    v_add_f32 v32, v32, v36
    v_add_f32 v33, v33, v37
    v_cvt_pk_bf16_f32 v4, v32, v33
    v_cvt_pk_bf16_f32 v6, v32, v33
    v_permlane32_swap_b32 v4, v6
    s_mov_b64 exec, 0xffff
    s_cbranch_scc1 L_slowpub
    buffer_store_dwordx4 v[4:7], v{vP1s}, s[40:43], 0 offen
    L_pubdone:
    s_mov_b64 exec, -1
    ''')
    stamp(8)
    A(f'''
    s_cmp_eq_u32 s5, 7
    s_cbranch_scc1 L_sdone
    L_poll1:
    ''')
    for q in range(2):
        A(f'buffer_load_dwordx4 v[{PL+4*q}:{PL+4*q+3}], v{vP1l}, s[40:43], 0 offen offset:{q*1024} sc1')
    A(f'''
    s_sub_u32 s60, s60, 1
    s_cbranch_scc1 L_poll1_done
    s_waitcnt vmcnt(0)
    v_min3_u32 v1, v{PL+1}, v{PL+3}, v{PL+5}
    v_max3_u32 v2, v{PL+1}, v{PL+3}, v{PL+5}
    v_min3_u32 v1, v1, v{PL+7}, v{vTAG}
    v_max3_u32 v2, v2, v{PL+7}, v{vTAG}
    v_cmp_ne_u32 vcc, v1, v2
    s_cbranch_vccnz L_poll1
    L_poll1_done:
    s_waitcnt vmcnt(0)
    ''')
    stamp(9)
    LO, HI = 80, 88
    def omm(a, ks, T0):
        for x in range(2):
            acc = FA + 4*x
            bb = WOf + 16*ks + 4*(T0 + x)
            A(f'v_mfma_f32_16x16x32_bf16 v[{acc}:{acc+3}], v[{a}:{a+3}], v[{bb}:{bb+3}], v[{acc}:{acc+3}]')
    for q in range(4):
        A(f'v_cndmask_b32 v{LO+q}, 0, v{PL+2*q}, s[{MK+4}:{MK+5}]')
    for q in range(4):
        A(f'v_cndmask_b32 v{HI+4+q}, v{PL+2*q}, 0, s[{MK+4}:{MK+5}]')
    omm(LO, 0, 0)
    for q in range(4):
        A(f'v_mov_b32_dpp v{HI+q}, v{PL+2*q} row_shr:8 row_mask:0xf bank_mask:0xf bound_ctrl:0')
    omm(HI+4, 1, 2)
    for q in range(4):
        A(f'v_mov_b32_dpp v{LO+4+q}, v{PL+2*q} row_shl:8 row_mask:0xf bank_mask:0xf bound_ctrl:0')
    omm(HI, 0, 2)
    omm(LO+4, 1, 0)
    A(f'''
    v_add_f32 v{FA}, v{FA}, v{FA+1}
    v_add_f32 v{FA+2}, v{FA+2}, v{FA+3}
    v_add_f32 v{FA+4}, v{FA+4}, v{FA+5}
    v_add_f32 v{FA+6}, v{FA+6}, v{FA+7}
    v_add_f32 v{FA}, v{FA}, v{FA+2}
    v_add_f32 v{FA+4}, v{FA+4}, v{FA+6}
    v_permlane16_swap_b32 v{FA}, v{FA+4}
    v_add_f32 v{FA}, v{FA}, v{FA+4}
    ds_write_b32 v{vYW}, v{FA}
    s_waitcnt lgkmcnt(0)
    ''')
    stamp(10)
    A('s_barrier                               ; #5')
    A('L_sdone:')
    if stamps:
        A(f's_cmp_eq_u32 s3, 0')
        A('s_cbranch_scc1 L_dump0')
        A(f's_cmp_lg_u32 s3, 7')
        A('s_cbranch_scc1 L_end')
        dump_stamps(16, [sreg(k) for k in range(11)])
        A('s_endpgm')
        A('L_dump0:')
        dump_stamps(0, [sreg(k) for k in range(11)])
    A('s_endpgm')
    A(f'''
    L_slowpub:
    buffer_store_dwordx4 v[4:7], v{vP1s}, s[40:43], 0 offen sc1
    s_branch L_pubdone
    ''')

    A(f'''
    L_helper:
    v_lshrrev_b32 v1, 4, v0                  ; b' = l/16 (also g)
    v_and_b32 v2, 15, v0                     ; i
    v_mul_u32_u24 v3, 896, v1
    v_lshl_add_u32 v3, v2, 3, v3
    v_add_u32 v3, {XN}, v3
    s_mov_b32 s42, {WSN}
    s_mov_b32 s43, 0x20000
    s_waitcnt lgkmcnt(0)
    s_mov_b64 s[40:41], s[38:39]
    s_load_dword s62, s[38:39], {EPOCH}
    v_mov_b32 v31, {MISC}
    s_waitcnt lgkmcnt(0)
    s_mul_i32 s62, s62, 1664525
    s_add_u32 s62, s62, 1013904223
    v_mov_b32 v28, s62
    s_barrier                               ; #0
    ''')
    hstamp(1)
    XR = 8
    for u in range(7):
        A(f'ds_read_b64 v[{XR+2*u}:{XR+2*u+1}], v3 offset:{128*u}')
    A(f'''
    s_waitcnt lgkmcnt(0)
    ''')
    XF = 32
    for u in range(14):
        A(f'v_lshlrev_b32 v{XF+2*u}, 16, v{XR+u}')
        A(f'v_and_b32 v{XF+2*u+1}, 0xffff0000, v{XR+u}')
    def rowsum(r):
        for sh in (8, 4, 2, 1):
            A(f'v_add_f32_dpp v{r}, v{r}, v{r} row_ror:{sh} row_mask:0xf bank_mask:0xf')
    A(f'v_add_f32 v24, v{XF}, v{XF+1}')
    A(f'v_add_f32 v25, v{XF+2}, v{XF+3}')
    for u in range(4, 28, 2):
        A(f'v_add_f32 v24, v24, v{XF+u}')
        A(f'v_add_f32 v25, v25, v{XF+u+1}')
    A('v_add_f32 v24, v24, v25')
    rowsum(24)
    A(f'v_mul_f32 v24, {f32(1/448)}, v24       ; mean')
    A('v_mov_b32 v25, 0')
    A('v_mov_b32 v26, 0')
    for u in range(0, 28, 2):
        A(f'v_sub_f32 v29, v{XF+u}, v24')
        A(f'v_sub_f32 v30, v{XF+u+1}, v24')
        A('v_fmac_f32 v25, v29, v29')
        A('v_fmac_f32 v26, v30, v30')
    A('v_add_f32 v25, v25, v26')
    rowsum(25)
    A(f'''
    v_mul_f32 v25, {f32(1/448)}, v25           ; var
    v_cvt_pk_bf16_f32 v25, v24, v25
    v_lshlrev_b32 v24, 16, v25               ; bf16(mean)
    v_and_b32 v25, 0xffff0000, v25           ; bf16(var)
    v_add_f32 v25, {f32(1e-5)}, v25
    v_cvt_pk_bf16_f32 v25, v25, v25
    v_and_b32 v25, 0xffff0000, v25
    v_sqrt_f32 v25, v25
    v_cvt_pk_bf16_f32 v25, v25, v25
    v_and_b32 v25, 0xffff0000, v25
    v_rcp_f32 v25, v25
    ''')
    for u in range(14):
        a, b = XF + 2*u, XF + 2*u + 1
        A(f'v_sub_f32 v{a}, v{a}, v24')
        A(f'v_sub_f32 v{b}, v{b}, v24')
        A(f'v_cvt_pk_bf16_f32 v{b}, v{a}, v{b}')
        A(f'v_lshlrev_b32 v{a}, 16, v{b}')
        A(f'v_and_b32 v{b}, 0xffff0000, v{b}')
        A(f'v_mul_f32 v{a}, v{a}, v25')
        A(f'v_mul_f32 v{b}, v{b}, v25')
        A(f'v_cvt_pk_bf16_f32 v{XR+u}, v{a}, v{b}')
    for u in range(7):
        A(f'ds_write_b64 v3, v[{XR+2*u}:{XR+2*u+1}] offset:{128*u}')
    XB = 32
    WF = 88
    A(f'''
    v_and_b32 v3, 3, v0
    v_mul_u32_u24 v3, 896, v3
    v_lshl_add_u32 v3, v1, 3, v3
    v_add_u32 v3, {XN}, v3
    v_lshlrev_b32 v7, 3, v0
    v_add_u32 v7, {WQS}, v7
    s_waitcnt lgkmcnt(0)
    ''')
    for t in range(14):
        A(f'ds_read2_b64 v[{XB+4*t}:{XB+4*t+3}], v3 offset0:{8*t} offset1:{8*t+4}')
    def gemv(step):
        for t in range(14):
            for half in range(2):
                A(f'ds_read_b64_tr_b16 v[{WF+4*t+2*half}:{WF+4*t+2*half+1}], v7 offset:{step*(2*t + half)}')
        A('s_waitcnt lgkmcnt(0)')
        for t in range(14):
            c = '0' if t == 0 else 'v[24:27]'
            A(f'v_mfma_f32_16x16x32_bf16 v[24:27], v[{WF+4*t}:{WF+4*t+3}], v[{XB+4*t}:{XB+4*t+3}], {c}')
    hstamp(2)
    gemv(512)
    A(f'''
    s_lshl_b32 s60, s67, 6
    s_add_u32 s60, s60, {QX}
    v_lshlrev_b32 v8, 14, v2
    v_lshl_add_u32 v8, v1, 4, v8
    v_add_u32 v8, s60, v8
    v_mov_b32 v13, v28
    v_mov_b32 v15, v28
    v_cvt_pk_bf16_f32 v12, v24, v25
    v_cvt_pk_bf16_f32 v14, v26, v27
    s_mov_b32 exec_lo, 0x000f000f
    s_mov_b32 exec_hi, 0x000f000f
    buffer_store_dwordx4 v[12:15], v8, s[40:43], 0 offen sc1
    s_mov_b64 exec, -1
    ''')
    hstamp(3)
    A(f'''
    s_lshl_b32 s60, s56, 11                  ; b*16384 + hkv*2048
    s_add_u32 s60, s60, {QX}
    v_lshlrev_b32 v9, 4, v0
    v_add_u32 v9, s60, v9
    s_mov_b32 s60, {SPIN}
    s_waitcnt vmcnt(0)
    L_pollq:
    buffer_load_dwordx4 v[16:19], v9, s[40:43], 0 offen sc1
    buffer_load_dwordx4 v[20:23], v9, s[40:43], 0 offen offset:1024 sc1
    s_sub_u32 s60, s60, 1
    s_cbranch_scc1 L_pollq_done
    s_waitcnt vmcnt(0)
    v_min3_u32 v10, v17, v19, v21
    v_max3_u32 v11, v17, v19, v21
    v_min3_u32 v10, v10, v23, v28
    v_max3_u32 v11, v11, v23, v28
    v_cmp_ne_u32 vcc, v10, v11
    s_cbranch_vccnz L_pollq
    L_pollq_done:
    s_waitcnt vmcnt(0)
    ''')
    hstamp(4)
    A(f'''
    ds_write2_b32 v7, v16, v18 offset0:0 offset1:1
    ds_write2_b32 v7, v20, v22 offset0:128 offset1:129
    v_lshrrev_b32 v7, 2, v0
    v_lshlrev_b32 v7, 4, v7
    v_and_b32 v9, 1, v0
    v_lshl_add_u32 v7, v9, 3, v7
    v_bfe_u32 v9, v0, 1, 1
    v_mul_u32_u24 v9, 7168, v9
    v_add_u32 v7, v7, v9
    v_add_u32 v7, {GS}, v7
    v_mov_b32 v30, 1
    ds_write_b32 v31, v30 offset:{FLQ-MISC}
    s_mov_b32 s63, {SPIN*8}
    L_wc:
    ds_read_b32 v9, v31 offset:{CNT-MISC}
    s_sub_u32 s63, s63, 1
    s_cbranch_scc1 L_wc_done
    s_waitcnt lgkmcnt(0)
    v_cmp_eq_u32 vcc, 8, v9
    s_cbranch_vccnz L_wc_done
    s_sleep 2
    s_branch L_wc
    L_wc_done:
    v_lshlrev_b32 v8, 3, v2
    v_add_u32 v8, {STW}, v8
    ds_read_b64 v[4:5], v8
    s_getreg_b32 s57, hwreg(HW_REG_XCC_ID)
    s_lshl_b32 s64, s56, 9
    s_add_u32 s64, s64, {ST}
    s_lshl_b32 s61, s5, 4
    s_add_u32 s61, s61, s64
    v_lshlrev_b32 v9, 4, v0
    v_add_u32 v9, s61, v9                    ; lanes 0,8,16 -> +0,+128,+256
    s_waitcnt lgkmcnt(0)
    v_max_f32_dpp v12, v4, v4 quad_perm:[1,0,3,2] row_mask:0xf bank_mask:0xf
    v_max_f32_dpp v12, v12, v12 quad_perm:[2,3,0,1] row_mask:0xf bank_mask:0xf
    v_max_f32_dpp v12, v12, v12 row_half_mirror row_mask:0xf bank_mask:0xf
    v_sub_f32 v14, v4, v12
    v_mul_f32 v14, {CEXP}, v14
    v_exp_f32 v14, v14
    v_mul_f32 v14, v14, v5
    v_add_f32_dpp v14, v14, v14 quad_perm:[1,0,3,2] row_mask:0xf bank_mask:0xf
    v_add_f32_dpp v14, v14, v14 quad_perm:[2,3,0,1] row_mask:0xf bank_mask:0xf
    v_add_f32_dpp v14, v14, v14 row_half_mirror row_mask:0xf bank_mask:0xf
    s_mov_b64 exec, 0x10000
    v_mov_b32 v12, s57
    s_mov_b64 exec, 0x10101
    buffer_store_dwordx4 v[12:15], v9, s[40:43], 0 offen sc1
    s_mov_b64 exec, -1
    s_cmp_ge_u32 s66, 28
    s_cbranch_scc1 L_noh
    ''')
    gemv(256)
    A(f'''
    v_cvt_pk_bf16_f32 v16, v24, v25
    v_cvt_pk_bf16_f32 v17, v26, v27
    v_mov_b32 v18, v16
    v_mov_b32 v19, v17
    v_permlane32_swap_b32 v16, v18
    v_permlane32_swap_b32 v17, v19
    v_lshlrev_b32 v20, 16, v16
    v_and_b32 v21, 0xffff0000, v16
    v_lshlrev_b32 v22, 16, v17
    v_and_b32 v23, 0xffff0000, v17
    v_max_f32 v20, 0, v20
    v_max_f32 v21, 0, v21
    v_max_f32 v22, 0, v22
    v_max_f32 v23, 0, v23
    v_lshlrev_b32 v24, 16, v18
    v_and_b32 v25, 0xffff0000, v18
    v_lshlrev_b32 v26, 16, v19
    v_and_b32 v27, 0xffff0000, v19
    v_mul_f32 v20, v20, v24
    v_mul_f32 v21, v21, v25
    v_mul_f32 v22, v22, v26
    v_mul_f32 v23, v23, v27
    v_cvt_pk_bf16_f32 v12, v20, v21
    v_cvt_pk_bf16_f32 v14, v22, v23
    s_mul_i32 s60, s4, 28
    s_add_u32 s60, s60, s66
    s_lshl_b32 s60, s60, 5
    s_add_u32 s60, s60, {HX}
    v_mul_u32_u24 v8, 7168, v2
    v_lshl_add_u32 v8, v1, 4, v8
    v_add_u32 v8, s60, v8
    s_mov_b32 exec_lo, 0x000f000f
    s_mov_b32 exec_hi, 0
    buffer_store_dwordx4 v[12:15], v8, s[40:43], 0 offen sc1
    s_mov_b64 exec, -1
    L_noh:
    ''')
    hstamp(5)
    A(f'''
    ds_write_b32 v31, v30 offset:{FLS-MISC}
    v_min_u32 v10, 23, v0
    v_lshlrev_b32 v10, 4, v10
    v_add_u32 v10, s64, v10
    s_mul_i32 s61, s6, 7168
    s_mul_i32 s63, s4, 896
    s_add_u32 s61, s61, s63
    s_add_u32 s61, s61, {HX}
    v_min_u32 v11, 55, v0
    v_lshlrev_b32 v29, 3, v11
    v_add_u32 v29, {HL}, v29
    v_lshlrev_b32 v11, 4, v11
    v_add_u32 v11, s61, v11
    s_mov_b32 s63, {SPIN}
    s_waitcnt vmcnt(0)
    L_polls:
    buffer_load_dwordx4 v[16:19], v10, s[40:43], 0 offen sc1
    buffer_load_dwordx4 v[20:23], v11, s[40:43], 0 offen sc1
    s_sub_u32 s63, s63, 1
    s_cbranch_scc1 L_polls_done
    s_waitcnt vmcnt(0)
    v_min3_u32 v24, v17, v19, v21
    v_max3_u32 v25, v17, v19, v21
    v_min3_u32 v24, v24, v23, v28
    v_max3_u32 v25, v25, v23, v28
    v_cmp_ne_u32 vcc, v24, v25
    s_cbranch_vccz L_polls_done
    s_sleep 2
    s_branch L_polls
    L_polls_done:
    s_waitcnt vmcnt(0)
    ''')
    hstamp(7)
    A(f'''
    ds_write2_b32 v29, v20, v22 offset0:0 offset1:1
    v_cmp_ne_u32 vcc, s57, v16
    s_and_b32 s58, vcc_lo, 0xff0000
    s_cselect_b32 s58, 0, {0 if forceslow else 1}
    v_max_f32_dpp v10, v16, v16 quad_perm:[1,0,3,2] row_mask:0xf bank_mask:0xf
    v_max_f32_dpp v10, v10, v10 quad_perm:[2,3,0,1] row_mask:0xf bank_mask:0xf
    v_max_f32_dpp v10, v10, v10 row_half_mirror row_mask:0xf bank_mask:0xf
    v_sub_f32 v11, v16, v10
    v_sub_f32 v10, v4, v10
    v_mul_f32 v11, {CEXP}, v11
    v_mul_f32 v10, {CEXP}, v10
    v_exp_f32 v11, v11
    v_exp_f32 v10, v10
    v_mul_f32 v11, v11, v18
    v_add_f32_dpp v11, v11, v11 quad_perm:[1,0,3,2] row_mask:0xf bank_mask:0xf
    v_add_f32_dpp v11, v11, v11 quad_perm:[2,3,0,1] row_mask:0xf bank_mask:0xf
    v_add_f32_dpp v11, v11, v11 row_half_mirror row_mask:0xf bank_mask:0xf
    v_rcp_f32 v11, v11
    v_mul_f32 v10, v10, v11
    v_and_b32 v9, 7, v0
    v_lshlrev_b32 v9, 3, v9
    v_lshrrev_b32 v8, 1, v0
    v_and_b32 v8, 4, v8
    v_add3_u32 v9, v9, v8, v31
    v_subrev_u32 v9, {MISC-FACW}, v9
    s_mov_b64 exec, 0xffff
    ds_write_b32 v9, v10
    s_mov_b64 exec, -1
    v_mov_b32 v24, 1
    v_mov_b32 v25, s58
    v_mov_b32 v26, v28
    v_mov_b32 v27, v28
    ds_write_b128 v31, v[24:27] offset:{FLF-MISC}
    s_waitcnt lgkmcnt(0)
    s_cmp_eq_u32 s5, 7
    s_cbranch_scc1 L_hdone
    s_mul_i32 s60, s6, 7
    s_add_u32 s60, s60, s5                   ; b*7 + j
    s_lshl_b32 s61, s60, 7
    v_lshlrev_b32 v4, 1, v0
    v_add_u32 v4, s61, v4
    s_mov_b64 s[44:45], s[16:17]
    s_mov_b32 s46, 3584
    s_mov_b32 s47, 0x20000
    buffer_load_ushort v5, v4, s[44:47], 0 offen
    s_mov_b64 s[52:53], s[34:35]
    s_mov_b32 s54, 3584
    s_mov_b32 s55, 0x20000
    s_lshl_b32 s60, s60, 12
    s_add_u32 s60, s60, {P2}
    v_lshlrev_b32 v6, 3, v0
    v_add_u32 v6, s60, v6
    v_lshlrev_b32 v7, 2, v0
    v_add_u32 v7, {YL}, v7
    ''')
    for i in range(8):
        A(f's_add_u32 s{8+i}, s4, {i}')
        A(f's_and_b32 s{8+i}, s{8+i}, 7')
        A(f's_lshl_b32 s{8+i}, s{8+i}, 9')
    def others():
        for i in range(1, 8):
            A(f'buffer_load_dwordx2 v[{32+2*i}:{33+2*i}], v6, s[40:43], s{8+i} offen sc1')
    def check_sum():
        A(f'''
        v_min3_u32 v24, v35, v37, v39
        v_max3_u32 v25, v35, v37, v39
        v_min3_u32 v24, v24, v41, v43
        v_max3_u32 v25, v25, v41, v43
        v_min3_u32 v24, v24, v45, v47
        v_max3_u32 v25, v25, v45, v47
        v_min3_u32 v24, v24, v25, v28
        v_max_u32 v25, v25, v28
        v_cmp_ne_u32 vcc, v24, v25
        v_add_f32 v34, v34, v36
        v_add_f32 v38, v38, v40
        v_add_f32 v42, v42, v44
        v_add_f32 v46, v46, v5
        v_add_f32 v34, v34, v38
        v_add_f32 v42, v42, v46
        v_add_f32 v34, v34, v42
        ''')
    A(f'''
    s_waitcnt vmcnt(0)
    v_lshlrev_b32 v5, 16, v5
    v_mov_b32 v31, v28
    s_barrier                               ; #4
    ''')
    hstamp(8)
    others()
    A('s_waitcnt vmcnt(0)')
    check_sum()
    hstamp(9)
    A(f'''
    s_barrier                               ; #5
    ds_read2st64_b32 v[48:49], v7 offset0:0 offset1:1
    ds_read2st64_b32 v[50:51], v7 offset0:2 offset1:3
    ds_read2st64_b32 v[52:53], v7 offset0:4 offset1:5
    ds_read2st64_b32 v[54:55], v7 offset0:6 offset1:7
    s_waitcnt lgkmcnt(2)
    v_add_f32 v48, v48, v49
    v_add_f32 v50, v50, v51
    s_waitcnt lgkmcnt(0)
    v_add_f32 v52, v52, v53
    v_add_f32 v54, v54, v55
    v_add_f32 v48, v48, v50
    v_add_f32 v52, v52, v54
    v_add_f32 v30, v48, v52
    s_cbranch_vccz L_finish
    buffer_store_dwordx2 v[30:31], v6, s[40:43], s8 offen sc1
    ''')
    others()
    A('s_waitcnt vmcnt(0)')
    check_sum()
    A('s_cbranch_vccz L_finish')
    others()
    A('s_waitcnt vmcnt(0)')
    check_sum()
    A(f'''
    s_cbranch_vccnz L_hdone
    L_finish:
    v_add_f32 v34, v34, v30
    v_cvt_pk_bf16_f32 v34, v34, v34
    buffer_store_short v34, v4, s[52:55], 0 offen
    ''')
    hstamp(10)
    A(f'''
    s_lshr_b32 s60, s2, 3
    s_cmp_lg_u32 s60, 0
    s_cbranch_scc1 L_hdone
    s_mov_b64 exec, 1
    v_mov_b32 v1, {EPOCH}
    buffer_store_dword v28, v1, s[40:43], 0 offen
    L_hdone:
    ''')
    if stamps:
        hstamp(11)
        dump_stamps(32, [68+2*k for k in range(12)])
    A('''
    L_end:
    s_endpgm
    ''')
    A('.section .rodata,"a"')
    A('.p2align 6')
    A(f'.amdhsa_kernel {NAME}_kernel')
    A('.amdhsa_next_free_vgpr 164')
    A('.amdhsa_next_free_sgpr 102')
    A('.amdhsa_accum_offset 164')
    A('.amdhsa_group_segment_fixed_size 0')
    A('.amdhsa_kernarg_size 96')
    A('.amdhsa_user_sgpr_count 2')
    A('.amdhsa_user_sgpr_kernarg_segment_ptr 1')
    A('.amdhsa_system_sgpr_workgroup_id_x 1')
    A('.end_amdhsa_kernel')
    return top + A.finalize()

if __name__ == '__main__':
    out = sys.argv[1] if len(sys.argv) > 1 else f'cdna_kernels/{NAME}.s'
    kw = eval('dict(%s)' % sys.argv[2]) if len(sys.argv) > 2 else {}
    open(out, 'w').write(gen(**kw))
    print('wrote', out)
```

```python
import re

TRANS = ('v_exp_f32', 'v_log_f32', 'v_rcp_f32', 'v_rsq_f32', 'v_sqrt_f32', 'v_sin_f32', 'v_cos_f32')

def split_ops(s):
    out, depth, cur = [], 0, ''
    for ch in s:
        if ch in '[(': depth += 1
        if ch in '])': depth -= 1
        if ch == ',' and depth == 0:
            out.append(cur.strip()); cur = ''
        else:
            cur += ch
    if cur.strip(): out.append(cur.strip())
    return out

def regs(tok):
    tok = tok.split()[0] if tok else tok
    tok = tok.strip().lstrip('-').replace('abs(', '').replace(')', '').replace('|', '')
    m = re.fullmatch(r'([vs])(\d+)', tok)
    if m: return {(m.group(1), int(m.group(2)))}
    m = re.fullmatch(r'([vs])\[(\d+):(\d+)\]', tok)
    if m: return {(m.group(1), i) for i in range(int(m.group(2)), int(m.group(3)) + 1)}
    if tok in ('vcc', 'vcc_lo', 'vcc_hi'): return {('vcc',)}
    if tok in ('exec', 'exec_lo', 'exec_hi'): return {('exec',)}
    if tok == 'm0': return {('m0',)}
    return set()

class Ins:
    def __init__(self, text):
        self.text = text
        t = text.split(';')[0].strip()
        parts = t.split(None, 1)
        self.mn = parts[0]
        rest = parts[1] if len(parts) > 1 else ''
        self.ops = split_ops(rest)
        mn = self.mn
        R = [regs(o) for o in self.ops]
        U = lambda xs: set().union(*xs) if xs else set()
        self.kind = 'other'; self.w = set(); self.r = set()
        self.dpp = ('_dpp' in mn) or bool(re.search(r'quad_perm|row_(shr|shl|ror|bcast|mirror|half_mirror)', rest))
        self.states = 1
        self.wide_data = set()
        self.mfma_c = set(); self.mfma_ab = set(); self.passes = 0
        self.lds_dma = False
        if mn == 's_nop':
            self.kind = 'nop'; self.states = int(self.ops[0], 0) + 1
        elif mn.startswith('v_mfma'):
            self.kind = 'mfma'; self.w = R[0]; self.mfma_ab = R[1] | R[2]; self.mfma_c = R[3]
            self.r = self.mfma_ab | self.mfma_c
            self.passes = 4 if '16x16' in mn else 8
        elif mn.startswith('v_'):
            self.kind = 'valu'
            if mn.startswith('v_permlane'):
                self.w = R[0] | R[1]; self.r = R[0] | R[1]
            elif re.match(r'v_(add|sub|subrev|addc|subb)_co', mn):
                self.w = R[0] | R[1]; self.r = U(R[2:])
            else:
                self.w = R[0]; self.r = U(R[1:])
                if mn.startswith('v_cmpx'): self.w = self.w | {('exec',)}
                if self.dpp or mn.startswith('v_fmac') or mn.startswith('v_writelane'): self.r = self.r | R[0]
        elif mn.startswith('ds_'):
            self.kind = 'ds'
            if mn.startswith('ds_read') or 'permute' in mn or 'swizzle' in mn or '_rtn' in mn:
                self.w = R[0]; self.r = U(R[1:])
            else:
                self.r = U(R)
        elif mn.startswith('buffer_') or mn.startswith('global_'):
            self.kind = 'vmem'
            if mn == 'buffer_wbl2': return
            lds = mn.startswith('global_load_lds') or bool(re.search(r'\blds\b', rest))
            if lds:
                self.lds_dma = True; self.r = U(R) | {('m0',)}
            elif '_load_' in mn:
                self.w = R[0]; self.r = U(R[1:])
            else:
                self.r = U(R)
                if mn.endswith('x4') or mn.endswith('x3'):
                    self.wide_data = R[0] if mn.startswith('buffer_') else R[1]
        elif mn.startswith('s_'):
            self.kind = 'salu'
            if re.match(r's_(cmp|cbranch|branch|waitcnt|barrier|sleep|setprio|endpgm|bitcmp|setpc)', mn):
                self.r = U(R)
            else:
                self.w = R[0] if R else set(); self.r = U(R[1:])
                if 'saveexec' in mn: self.w = self.w | {('exec',)}
        else:
            raise ValueError('unknown instruction: ' + text)

def vonly(s): return {x for x in s if x[0] == 'v'}
def sonly(s): return {x for x in s if x[0] in ('s', 'vcc')}

def need(p, c):
    n = 0
    if p.kind == 'valu':
        vw = vonly(p.w); sw = sonly(p.w)
        if c.kind == 'mfma' and vw & c.r: n = max(n, 2)
        if c.kind == 'valu':
            if c.dpp and vw & c.r: n = max(n, 2)
            if c.mn.startswith('v_permlane') and vw & c.r: n = max(n, 2)
            if c.mn.startswith(('v_readlane', 'v_readfirstlane')) and vw & c.r: n = max(n, 1)
            if sw & c.r: n = max(n, 4 if c.mn.startswith(('v_readlane', 'v_writelane')) else 2)
            if p.mn.replace('_e32', '').replace('_e64', '') in TRANS and vw & c.r: n = max(n, 1)
        if c.kind == 'vmem' and sw & c.r: n = max(n, 5)
        if ('exec',) in p.w:
            if c.kind == 'mfma': n = max(n, 4)
            if c.kind == 'valu' and c.dpp: n = max(n, 5)
            if c.kind == 'valu' and c.mn.startswith(('v_read', 'v_writelane', 'v_permlane')): n = max(n, 4)
    if p.kind == 'mfma':
        N = {4: 8, 8: 12}[p.passes]
        if c.kind == 'mfma':
            if p.w & c.mfma_ab: n = max(n, N)
            if p.w & c.mfma_c and not (p.w == c.mfma_c and p.passes == c.passes): n = max(n, N - 2)
            if p.w & c.w and not (p.w == c.mfma_c): n = max(n, N)
        elif c.kind in ('valu', 'ds', 'vmem'):
            if p.w & (c.r | c.w): n = max(n, N)
        if c.kind == 'valu' and p.mfma_c & c.w: n = max(n, {4: 3, 8: 7}[p.passes])
    if p.kind == 'salu' and ('m0',) in p.w and c.lds_dma: n = max(n, 1)
    if p.wide_data and p.wide_data & c.w: n = max(n, 2 if c.kind == 'valu' else 1)
    return n

class Asm:
    def __init__(self):
        self.lines = []
    def __call__(self, s):
        for ln in s.split('\n'):
            if ln.strip(): self.lines.append(ln.strip())
    @staticmethod
    def is_ins(ln):
        t = ln.split(';')[0].strip()
        return bool(t) and not t.endswith(':') and not t.startswith('.')
    def finalize(self):
        out = []
        def lack(hist, c):
            d = 0; worst = 0
            for p in reversed(hist):
                worst = max(worst, need(p, c) - d)
                d += p.states
                if d >= 12: break
            return worst
        hist = []
        for ln in self.lines:
            if not self.is_ins(ln):
                out.append((ln, None)); continue
            c = Ins(ln)
            k = lack(hist, c)
            if k > 0:
                nop = Ins(f's_nop {k-1}')
                out.append((nop.text, nop)); hist.append(nop)
            out.append((ln, c)); hist.append(c)
            if c.mn in ('s_branch', 's_endpgm', 's_setpc_b64'): hist = []
        labels = {}
        for i, (t, c) in enumerate(out):
            tt = t.split(';')[0].strip()
            if c is None and tt.endswith(':'): labels[tt[:-1]] = i
        for i, (t, c) in enumerate(out):
            if c is not None and (c.mn.startswith('s_cbranch') or c.mn in ('s_branch', 's_call_b64')):
                tgt = labels[c.ops[-1]]
                h = []
                for tt, cc in out[max(0, i-14):i+1]:
                    if cc is None: continue
                    if cc.mn in ('s_branch', 's_endpgm', 's_setpc_b64') and cc is not c: h = []; continue
                    h.append(cc)
                cnt = 0
                for tt, cc in out[tgt:]:
                    if cc is None: continue
                    k = lack(h, cc)
                    if k > 0: raise RuntimeError(f'hazard across branch "{t}" -> "{tt}": need {k} more')
                    h.append(cc); cnt += cc.states
                    if cnt >= 12 or cc.mn in ('s_branch', 's_endpgm', 's_setpc_b64'): break
        for i, (t, c) in enumerate(out):
            if c is not None and c.mn == 's_call_b64':
                k = labels[c.ops[-1]]
                while out[k][1] is None or out[k][1].mn != 's_setpc_b64': k += 1
                h = [cc for tt, cc in out[max(0, k-14):k+1] if cc is not None]
                cnt = 0
                for tt, cc in out[i+1:]:
                    if cc is None: continue
                    kk = lack(h, cc)
                    if kk > 0: raise RuntimeError(f'hazard across return from "{t}" -> "{tt}": need {kk} more')
                    h.append(cc); cnt += cc.states
                    if cnt >= 12 or cc.mn in ('s_branch', 's_endpgm', 's_setpc_b64'): break
        return '\n'.join(('  ' + t) if c is not None else t for t, c in out) + '\n'
```

```python
import sys, struct, math
from asmlib import Asm
NAME = 'parallel_sum__sliding_block_cached__glu_gated_reglu__decode'

def f32(x): return '0x%08x' % struct.unpack('<I', struct.pack('<f', x))[0]

AREA = 131072
TAB = AREA + 16384
STW = TAB
FACW = TAB + 128
HL = TAB + 512
QL = TAB + 1024
XN = TAB + 2048
MISC = XN + 3584
FLQ = MISC
CNT = MISC + 4
FLG = MISC + 8
FLF = MISC + 16
YL = AREA
LDS_TOTAL = MISC + 512
EPOCH = 0
XC = 0x400
QX = 0x1000
HX = 0x11000
ST = 0x19000
P1 = 0x20000
P2 = 0xA0000
QP = 0xC0000
WS_END = 0x2C0000
STAMPS = 0x300000
SPIN = 400000
CEXP = f32(math.log2(math.e)/16)

class VM:
    def __init__(self, A): self.A = A; self.q = []
    def add(self, name, n): self.q.append((name, n))
    def wait(self, name, extra=''):
        idx = max(i for i, (nm, _) in enumerate(self.q) if nm == name)
        n = sum(c for _, c in self.q[idx+1:])
        self.q = self.q[idx+1:]
        self.A(f's_waitcnt vmcnt({n}){extra}')
    def upto(self, n):
        if sum(c for _, c in self.q) > n: self.A(f's_waitcnt vmcnt({n})')

def gen(stamps=0, wnt='', snt=' nt', kvnt=' nt', forceslow=False, now=False, pad=0, padat=None, thr=2, cpf=False,
        hpre=True, psleep=4, xtries=12):
    A = Asm()
    def sreg(k): return 68 + 2*k if k < 3 else 16 + 2*(k-3)
    def stamp(k):
        if stamps: A(f's_memrealtime s[{sreg(k)}:{sreg(k)+1}]')
        if padat == f's{k}': A('s_memrealtime s[100:101]')
    def hstamp(k):
        if stamps:
            A(f's_memrealtime s[100:101]\ns_waitcnt lgkmcnt(0)\nv_writelane_b32 v164, s100, {k}\nv_writelane_b32 v165, s101, {k}')
        if padat == f'h{k}': A('s_memrealtime s[100:101]\ns_waitcnt lgkmcnt(0)')
    def dopad(lab):
        A(f'''
        {lab}:
        s_memrealtime s[98:99]
        s_waitcnt lgkmcnt(0)
        s_sub_u32 s98, s98, s100
        s_cmp_lt_u32 s98, {pad}
        s_cbranch_scc1 {lab}
        ''')
    def dump_stamps(slot0, regs_):
        A('s_waitcnt vmcnt(0) lgkmcnt(0)')
        A('s_mov_b64 exec, 1')
        A('s_lshl_b32 s60, s2, 9')
        A(f's_add_u32 s60, s60, {STAMPS}')
        A('v_mov_b32 v1, s60')
        for k, r in enumerate(regs_):
            A(f'v_mov_b32 v2, s{r}')
            A(f'v_mov_b32 v3, s{r+1}')
            A(f'buffer_store_dwordx2 v[2:3], v1, s[40:43], 0 offen offset:{8*(slot0+k)}')
    WSN = 0x400000 if stamps else WS_END
    Z = (lambda n: 0) if now else (lambda n: n)
    hdr = open('cdna_kernels/%s.s.ref' % NAME).read().split('; Override launch geometry')[0]
    top = hdr + f'; @launch grid=(256,1,1) block=(576,1,1) lds={LDS_TOTAL}\n'
    A('.amdgcn_target "amdgcn-amd-amdhsa--gfx950"')
    A('.text')
    A(f'.globl {NAME}_kernel')
    A('.p2align 8')
    A(f'.type {NAME}_kernel,@function')
    A(f'{NAME}_kernel:')
    A('''
    s_load_dwordx16 s[16:31], s[0:1], 0
    s_load_dwordx8 s[32:39], s[0:1], 64
    s_cmp_ge_u32 s2, 256
    s_cbranch_scc1 L_end
    s_setprio 3
    ''')
    stamp(0)
    A('''
    v_lshrrev_b32 v1, 6, v0
    v_and_b32 v0, 63, v0                     ; lane
    v_readfirstlane_b32 s3, v1               ; wave
    s_and_b32 s4, s2, 7                      ; hkv
    s_bfe_u32 s5, s2, 0x30003                ; j
    s_lshr_b32 s6, s2, 6                     ; b
    s_lshl_b32 s56, s6, 3
    s_add_u32 s56, s56, s4
    s_cmp_eq_u32 s3, 8
    s_cbranch_scc1 L_helper
    ''')
    vm = VM(A)
    vD = [4, 5, 6, 7]; vKA = [8, 9, 10, 11]; vVA = list(range(12, 20)); vTAG = 20
    KfA, KfB, Qf, Sx, Pk, Oa = 32, 64, 96, 128, 144, 152
    vCH, vR8 = 30, 31
    A(f'''
    v_bfe_u32 v2, v0, 4, 2
    v_lshlrev_b32 v2, 1, v2
    v_and_b32 v3, 7, v0
    v_xor_b32 v2, v2, v3
    v_lshlrev_b32 v{vCH}, 4, v2
    v_lshrrev_b32 v{vR8}, 3, v0
    v_lshl_add_u32 v21, v{vR8}, 13, v{vCH}
    s_movk_i32 s46, 3584
    v_mad_u32_u24 v23, v{vR8}, s46, v{vCH}
    s_lshl_b32 s61, s3, 9
    v_lshl_add_u32 v22, v0, 4, s61
    s_add_u32 m0, s61, {XN}
    s_lshl_b32 s58, s5, 3
    s_add_u32 s58, s58, s3                   ; 8j + w
    s_lshl_b32 s60, s4, 2
    s_add_u32 s60, s60, s6                   ; 4hkv + b
    s_lshl_b32 s63, s60, 7
    s_mul_i32 s64, s58, {8*3584}
    s_add_u32 s63, s63, s64
    s_lshl_b32 s60, s60, 8
    s_lshl_b32 s62, s58, 16
    s_add_u32 s60, s60, s62
    s_lshl_b32 s58, s58, 13
    s_lshl_b32 s62, s3, 10
    s_mov_b32 s47, 0x20000
    s_mov_b32 s51, 0x20000
    s_mov_b32 s55, 0x20000
    s_cmp_lt_u32 s5, 7
    s_cselect_b32 s50, {Z(448*8192)}, 0
    s_cselect_b32 s60, s60, 0
    s_add_u32 s61, s60, 128
    s_max_u32 s7, s4, s5
    s_cmp_lt_u32 s7, 7
    s_cselect_b32 s54, {Z(448*3584)}, 0
    s_cselect_b32 s63, s63, 0
    v_lshrrev_b32 v1, 5, v0
    v_and_b32 v2, 31, v0
    v_lshlrev_b32 v3, 1, v1
    v_xor_b32 v2, v2, v3
    v_lshlrev_b32 v2, 4, v2
    v_lshl_add_u32 v4, v1, 9, v2
    v_xor_b32 v5, 64, v4
    v_xor_b32 v6, 0x80, v4
    v_xor_b32 v7, 0xc0, v4
    s_lshl_b32 s57, s56, 23
    s_add_u32 s57, s57, {12288*512}
    s_lshl_b32 s59, s3, 14
    s_mov_b32 s10, 0x200000
    s_mov_b32 s11, 0x20000
    s_mov_b32 exec_hi, 0
    s_waitcnt lgkmcnt(0)
    s_mov_b64 s[44:45], s[16:17]
    buffer_load_dwordx4 v22, s[44:47], 0 offen lds
    s_mov_b32 exec_hi, -1
    s_add_u32 m0, s62, 8192
    s_mov_b64 s[48:49], s[22:23]
    buffer_load_dwordx4 v21, s[48:51], s60 offen{snt} lds
    s_add_u32 m0, s62, {16384+8192}
    s_mov_b64 s[52:53], s[28:29]
    buffer_load_dwordx4 v21, s[48:51], s61 offen{snt} lds
    s_add_u32 m0, s62, {AREA}
    s_add_u32 s8, s18, s57
    buffer_load_dwordx4 v23, s[52:55], s63 offen{snt} lds
    s_addc_u32 s9, s19, 0
    s_add_u32 m0, s62, {AREA+8192}
    s_mov_b64 s[52:53], s[30:31]
    buffer_load_dwordx4 v23, s[52:55], s63 offen{snt} lds
    s_setprio 0
    ''')
    vm.add('small', 5)
    KS, VS = 's[8:11]', 's[12:15]'
    def issue(name, slot, halves=(0, 1)):
        srd = KS if name[0] == 'K' else VS
        i = int(name[1])
        for half in halves:
            A(f's_add_u32 m0, s59, {slot*8192 + half*4096}')
            A(f's_add_u32 s60, s58, {i*524288 + half*4096}')
            for q in range(4):
                A(f'buffer_load_dwordx4 v{vD[q]}, {srd}, s60 offen offset:{q*1024}{kvnt} lds')
            vm.add(name, 4)
    def ha(name, slot):
        vm.upto(thr); issue(name, slot, (0,))
    def hb(name, slot):
        vm.upto(thr); issue(name, slot, (1,))
    issue('K0', 0, (0,))
    stamp(1)
    vm.wait('small')
    A('s_barrier')
    stamp(2)
    issue('K0', 0, (1,))
    A(f'''
    s_add_u32 s12, s20, s57
    s_addc_u32 s13, s21, 0
    s_mov_b32 s14, 0x200000
    s_mov_b32 s15, 0x20000
    s_mov_b64 s[40:41], s[38:39]
    s_mov_b32 s42, {WSN}
    s_mov_b32 s43, 0x20000
    s_mov_b64 s[52:53], s[24:25]
    s_mov_b64 s[48:49], s[32:33]
    s_cmp_lt_u32 s5, 7
    s_cselect_b32 s54, {Z(4096*896)}, 0
    s_cselect_b32 s61, s5, 0
    s_lshl_b32 s61, s61, 7
    s_lshl_b32 s64, s4, 4
    s_add_u32 s64, s64, s3
    s_mul_i32 s64, s64, {32*896}
    s_add_u32 s64, s64, s61
    s_lshl_b32 s65, s4, 3
    s_add_u32 s65, s65, s3
    s_mul_i32 s65, s65, {32*896}
    s_add_u32 s65, s65, s61
    s_cmp_lt_u32 s7, 7
    s_cselect_b32 s50, {Z(1792*896)}, 0
    s_cselect_b32 s65, s65, 0
    v_and_b32 v1, 15, v0                     ; row
    v_lshrrev_b32 v2, 4, v0                  ; g
    v_and_b32 v3, 7, v0
    v_lshlrev_b32 v3, 1, v3
    v_xor_b32 v3, v3, v2
    v_lshlrev_b32 v3, 4, v3
    v_lshl_add_u32 v3, v1, 9, v3
    v_add_u32 v8, s59, v3
    v_xor_b32 v9, 64, v8
    v_xor_b32 v10, 0x80, v8
    v_xor_b32 v11, 0xc0, v8
    v_mov_b32 v26, {MISC}
    ''')
    def readK(dst, slot):
        for t in range(8):
            A(f'ds_read_b128 v[{dst+4*t}:{dst+4*t+3}], v{vKA[t&3]} offset:{slot*8192 + (t>>2)*256}')
    def qk(tile, src):
        for t in range(8):
            c = '0' if t == 0 else f'v[{Sx+4*tile}:{Sx+4*tile+3}]'
            A(f'v_mfma_f32_16x16x32_bf16 v[{Sx+4*tile}:{Sx+4*tile+3}], v[{src+4*t}:{src+4*t+3}], v[{Qf+4*t}:{Qf+4*t+3}], {c}')
    def flagwait(off, lab):
        A(f'''
        s_mov_b32 s61, {SPIN*8}
        {lab}:
        ds_read_b32 v1, v26 offset:{off-MISC}
        s_sub_u32 s61, s61, 1
        s_waitcnt lgkmcnt(0)
        s_cbranch_scc1 {lab}_done
        v_cmp_ne_u32 vcc, 0, v1
        s_cbranch_vccnz {lab}_done
        s_sleep 1
        s_branch {lab}
        {lab}_done:
        ''')
    flagwait(FLG, 'L_wg')
    ha('K1', 1)
    vm.wait('K0')
    readK(KfA, 0)
    A(f'''
    v_lshrrev_b32 v21, 2, v0                 ; row = l/4
    v_and_b32 v22, 7, v21
    v_lshlrev_b32 v22, 5, v22
    v_lshl_add_u32 v22, v21, 9, v22
    v_and_b32 v23, 3, v0
    v_lshl_add_u32 v22, v23, 3, v22
    v_add_u32 v12, s59, v22
    ''')
    for t in range(1, 8):
        A(f'v_xor_b32 v{12+t}, {t*32}, v12')
    A(f'''
    v_and_b32 v24, 1, v0
    v_lshlrev_b32 v25, 6, v24                ; head*64
    v_lshlrev_b32 v24, 9, v24
    v_lshl_add_u32 v24, v2, 4, v24
    v_add_u32 v24, {QL}, v24
    s_lshl_b32 s60, s3, 3
    s_add_u32 s60, s60, {STW}
    v_add_u32 v25, s60, v25
    v_mov_b32 v28, 1
    ''')
    hb('K1', 1)
    A('s_waitcnt lgkmcnt(0)')
    ha('K2', 0)
    vm.wait('K1')
    readK(KfB, 1)
    hb('K2', 0)
    A('s_waitcnt lgkmcnt(0)')
    ha('K3', 1)
    vm.wait('K2')
    hb('K3', 1)
    stamp(3)
    flagwait(FLQ, 'L_wq')
    stamp(4)
    for t in range(8):
        A(f'ds_read_b128 v[{Qf+4*t}:{Qf+4*t+3}], v24 offset:{t*64}')
    A('s_waitcnt lgkmcnt(0)')
    qk(0, KfA)
    readK(KfA, 0)
    qk(1, KfB)
    A('s_waitcnt lgkmcnt(0)')
    qk(2, KfA)
    ha('V0', 0)
    vm.wait('K3')
    readK(KfB, 1)
    issue('V0', 0, (1,))
    A('s_waitcnt lgkmcnt(0)')
    qk(3, KfB)
    MK = 84
    A(f's_mov_b32 s{MK}, 0x00030003')
    A(f's_mov_b32 s{MK+1}, 0x00030003')
    for u in range(1, 8):
        A(f's_lshl_b64 s[{MK+2*u}:{MK+2*u+1}], s[{MK}:{MK+1}], {2*u}')
    A(f's_mov_b32 s63, {CEXP}')
    for i in range(8):
        a, b = Sx + 2*i, Sx + 2*i + 1
        A(f'v_cvt_pk_bf16_f32 v{b}, v{a}, v{b}')
        A(f'v_lshlrev_b32 v{a}, 16, v{b}')
        A(f'v_and_b32 v{b}, 0xffff0000, v{b}')
    A(f'v_max3_f32 v22, v{Sx}, v{Sx+1}, v{Sx+2}')
    for i in range(3, 15, 2):
        A(f'v_max3_f32 v22, v22, v{Sx+i}, v{Sx+i+1}')
    A(f'''
    v_max_f32 v22, v22, v{Sx+15}
    v_mov_b32 v1, v22
    v_permlane16_swap_b32 v22, v1
    v_max_f32 v22, v22, v1
    v_mov_b32 v1, v22
    v_permlane32_swap_b32 v22, v1
    v_max_f32 v22, v22, v1
    ''')
    for i in range(16):
        A(f'v_sub_f32 v{Sx+i}, v{Sx+i}, v22')
    for i in range(16):
        A(f'v_mul_f32 v{Sx+i}, s63, v{Sx+i}')
    for i in range(16):
        A(f'v_exp_f32 v{Sx+i}, v{Sx+i}')
    for i in range(8):
        A(f'v_cvt_pk_bf16_f32 v{Pk+i}, v{Sx+2*i}, v{Sx+2*i+1}')
    for i in range(8):
        A(f'v_add_f32 v{Sx+i}, v{Sx+i}, v{Sx+8+i}')
    for i in range(4):
        A(f'v_add_f32 v{Sx+i}, v{Sx+i}, v{Sx+4+i}')
    A(f'''
    v_add_f32 v{Sx}, v{Sx}, v{Sx+2}
    v_add_f32 v{Sx+1}, v{Sx+1}, v{Sx+3}
    v_add_f32 v23, v{Sx}, v{Sx+1}
    v_mov_b32 v1, v23
    v_permlane16_swap_b32 v23, v1
    v_add_f32 v23, v23, v1
    v_mov_b32 v1, v23
    v_permlane32_swap_b32 v23, v1
    v_add_f32 v23, v23, v1
    s_mov_b64 exec, 3
    ds_write_b64 v25, v[22:23]
    s_mov_b64 exec, 1
    ds_add_u32 v26, v28 offset:{CNT-MISC}
    s_mov_b64 exec, -1
    ''')
    stamp(5)
    ha('V1', 1)
    vWO, vWD, vOW, vOR, vP1s, vP1l, vYW, vHA = 22, 23, 24, 25, 27, 28, 29, 21
    vWA = [8, 9, 10, 11]
    A(f'''
    s_waitcnt lgkmcnt(0)
    s_movk_i32 s61, 896
    v_mad_u32_u24 v{vWD}, v{vR8}, s61, v{vCH}
    v_bfe_u32 v1, v0, 3, 1
    v_lshlrev_b32 v1, 8, v1
    v_and_b32 v3, 16, v0
    v_add_u32 v1, v1, v3
    v_lshrrev_b32 v3, 5, v0
    v_add_u32 v1, v1, v3
    v_mad_u32_u24 v{vWO}, v1, s61, v{vCH}
    v_lshrrev_b32 v1, 2, v0
    v_lshlrev_b32 v1, 7, v1
    v_bfe_u32 v2, v0, 3, 2
    v_lshl_add_u32 v1, v2, 5, v1
    v_and_b32 v2, 3, v0
    v_lshl_add_u32 v1, v2, 3, v1
    v_add_u32 v8, s59, v1
    v_xor_b32 v9, 32, v8
    v_xor_b32 v10, 64, v8
    v_xor_b32 v11, 0x60, v8
    v_lshlrev_b32 v1, 4, v0
    v_add_u32 v{vOW}, s59, v1
    v_lshrrev_b32 v2, 4, v0                  ; g
    v_and_b32 v3, 15, v0                     ; c
    v_lshlrev_b32 v31, 15, v2                ; waves 2g, 2g+1
    v_lshl_add_u32 v31, v3, 4, v31
    s_lshl_b32 s60, s3, 8
    v_add_u32 v{vOR}, s60, v31
    s_add_u32 s61, s60, {YL}
    v_lshlrev_b32 v31, 2, v0
    v_add_u32 v{vYW}, s61, v31
    s_lshl_b32 s60, s56, 3
    s_add_u32 s60, s60, s3
    s_lshl_b32 s60, s60, 11
    s_add_u32 s60, s60, {P1}
    v_add_u32 v{vP1l}, s60, v1
    s_lshl_b32 s61, s5, 4
    s_add_u32 s61, s61, s60
    v_and_b32 v1, 7, v0
    v_lshlrev_b32 v1, 8, v1                  ; (half*4+g)*256
    v_and_b32 v3, 8, v0
    v_lshl_add_u32 v1, v3, 4, v1             ; ks*128
    v_add_u32 v{vP1s}, s61, v1
    s_lshl_b32 s60, s3, 6
    s_add_u32 s60, s60, {HL}
    v_lshlrev_b32 v1, 3, v2
    v_add_u32 v{vHA}, s60, v1
    v_lshlrev_b32 v31, 4, v2
    v_add_u32 v31, {FACW}, v31
    ''')
    Vf = KfA; Mk = KfB
    WOf, WDf = Qf, Sx
    PL = 64
    def masks(i):
        M = Mk + 16*(i & 1)
        for u in range(8):
            A(f'v_cndmask_b32 v{M+2*u}, 0, v{Pk+2*i}, s[{MK+2*u}:{MK+2*u+1}]')
            A(f'v_cndmask_b32 v{M+2*u+1}, 0, v{Pk+2*i+1}, s[{MK+2*u}:{MK+2*u+1}]')
    def pv(i, slot, mid=None):
        M = Mk + 16*(i & 1)
        for t in range(16):
            A(f'ds_read_b64_tr_b16 v[{Vf+2*t}:{Vf+2*t+1}], v{vVA[t&7]} offset:{slot*8192 + (t>>3)*256}')
        if mid: mid()
        for ii in range(8):
            A(f's_waitcnt lgkmcnt({14-2*ii})')
            acc = Oa + 4*(ii >> 2)
            c = '0' if (i == 0 and (ii & 3) == 0) else f'v[{acc}:{acc+3}]'
            A(f'v_mfma_f32_16x16x32_bf16 v[{acc}:{acc+3}], v[{M+4*(ii&3)}:{M+4*(ii&3)+3}], v[{Vf+4*ii}:{Vf+4*ii+3}], {c}')
    def issueW(p):
        vm.upto(thr)
        for k in range(4):
            if p < 2:
                A(f's_add_u32 m0, s59, {(4*p+k)*1024}')
                A(f's_add_u32 s60, s64, {(4*p+k)*2*896}')
                A(f'buffer_load_dwordx4 v{vWO}, s[52:55], s60 offen{wnt} lds')
            else:
                A(f's_add_u32 m0, s59, {8192 + k*1024}')
                A(f's_add_u32 s60, s65, {k*8*896}')
                A(f'buffer_load_dwordx4 v{vWD}, s[48:51], s60 offen{wnt} lds')
        vm.add('WO' if p < 2 else 'WD', 4)
    masks(0)
    vm.wait('V0')
    pv(0, 0)
    masks(1)
    hb('V1', 1)
    issueW(0)
    vm.wait('V1')
    pv(1, 1)
    issueW(1)
    issueW(2)
    masks(2)
    vm.wait('WO')
    for ks in range(2):
        for T in range(4):
            for half in range(2):
                d = WOf + 16*ks + 4*T + 2*half
                A(f'ds_read_b64_tr_b16 v[{d}:{d+1}], v{vWA[T]} offset:{ks*4096 + half*2048}')
    A('s_waitcnt lgkmcnt(0)')
    issue('V2', 0, (0,))
    vm.wait('WD')
    for T in range(4):
        for half in range(2):
            A(f'ds_read_b64_tr_b16 v[{WDf+4*T+2*half}:{WDf+4*T+2*half+1}], v{vWA[T]} offset:{8192 + half*2048}')
    hb('V2', 0)
    for q in range(2):
        A(f'buffer_load_dwordx4 v[160:163], v{vP1l}, s[40:43], 0 offen offset:{q*1024} sc1')
    vm.add('pre', 2)
    A('s_waitcnt lgkmcnt(0)')
    vm.upto(thr + 2); issue('V3', 1, (0,))
    vm.wait('V2')
    pv(2, 0, lambda: issue('V3', 1, (1,)))
    masks(3)
    flagwait(FLF, 'L_wf')
    A(f'''
    ds_read_b128 v[4:7], v26 offset:{FLF-MISC}
    ds_read_b128 v[8:11], v31
    ds_read2_b64 v[64:67], v{vHA} offset0:0 offset1:4
    s_mov_b32 s{MK}, 0x00010001
    s_mov_b32 s{MK+1}, 0x00010001
    s_mov_b32 s{MK+2}, 0x01000100
    s_mov_b32 s{MK+3}, 0x01000100
    s_mov_b32 s{MK+4}, 0x00ff00ff
    s_mov_b32 s{MK+5}, 0x00ff00ff
    s_waitcnt lgkmcnt(0)
    v_readfirstlane_b32 s63, v5
    v_mov_b32 v{vTAG}, v6
    v_mov_b32 v5, v6
    ''')
    FA = 144
    for r in range(4):
        A(f'v_cndmask_b32 v{68+r}, 0, v{64+r}, s[{MK}:{MK+1}]')
        A(f'v_cndmask_b32 v{72+r}, 0, v{64+r}, s[{MK+2}:{MK+3}]')
    A(f'''
    v_mfma_f32_16x16x32_bf16 v[{FA}:{FA+3}], v[68:71], v[{WDf}:{WDf+3}], 0
    v_mfma_f32_16x16x32_bf16 v[{FA+4}:{FA+7}], v[68:71], v[{WDf+4}:{WDf+7}], 0
    v_mfma_f32_16x16x32_bf16 v[{FA}:{FA+3}], v[72:75], v[{WDf+8}:{WDf+11}], v[{FA}:{FA+3}]
    v_mfma_f32_16x16x32_bf16 v[{FA+4}:{FA+7}], v[72:75], v[{WDf+12}:{WDf+15}], v[{FA+4}:{FA+7}]
    s_mov_b32 s60, {SPIN}
    ''')
    vm.wait('V3')
    stamp(6)
    pv(3, 1)
    A(f'''
    ds_write_b128 v{vOW}, v[{Oa}:{Oa+3}]
    ds_write_b128 v{vOW}, v[{Oa+4}:{Oa+7}] offset:1024
    s_waitcnt lgkmcnt(0)
    ''')
    stamp(7)
    A(f'''
    s_barrier                               ; #4: O partials
    ds_read_b128 v[32:35], v{vOR}
    ds_read_b128 v[36:39], v{vOR} offset:16384
    s_cmp_eq_u32 s63, 0
    s_waitcnt lgkmcnt(1)
    v_mul_f32 v32, v32, v8
    v_mul_f32 v34, v34, v8
    v_mul_f32 v33, v33, v9
    v_mul_f32 v35, v35, v9
    s_waitcnt lgkmcnt(0)
    v_fmac_f32 v32, v36, v10
    v_fmac_f32 v34, v38, v10
    v_fmac_f32 v33, v37, v11
    v_fmac_f32 v35, v39, v11
    v_permlane32_swap_b32 v32, v34
    v_permlane32_swap_b32 v33, v35
    v_add_f32 v36, v32, v34
    v_add_f32 v37, v33, v35
    v_add_f32 v32, v32, v34
    v_add_f32 v33, v33, v35
    v_permlane16_swap_b32 v32, v36
    v_permlane16_swap_b32 v33, v37
    v_add_f32 v32, v32, v36
    v_add_f32 v33, v33, v37
    v_cvt_pk_bf16_f32 v4, v32, v33
    v_cvt_pk_bf16_f32 v6, v32, v33
    v_permlane32_swap_b32 v4, v6
    s_mov_b64 exec, 0xffff
    s_cbranch_scc1 L_slowpub
    buffer_store_dwordx4 v[4:7], v{vP1s}, s[40:43], 0 offen
    L_pubdone:
    s_mov_b64 exec, -1
    ''')
    stamp(8)
    A(f'''
    s_cmp_eq_u32 s5, 7
    s_cbranch_scc1 L_sdone
    L_poll1:
    ''')
    for q in range(2):
        A(f'buffer_load_dwordx4 v[{PL+4*q}:{PL+4*q+3}], v{vP1l}, s[40:43], 0 offen offset:{q*1024} sc1')
    A(f'''
    s_sub_u32 s60, s60, 1
    s_waitcnt vmcnt(0)
    s_cbranch_scc1 L_poll1_done
    v_min3_u32 v1, v{PL+1}, v{PL+3}, v{PL+5}
    v_max3_u32 v2, v{PL+1}, v{PL+3}, v{PL+5}
    v_min3_u32 v1, v1, v{PL+7}, v{vTAG}
    v_max3_u32 v2, v2, v{PL+7}, v{vTAG}
    v_cmp_ne_u32 vcc, v1, v2
    s_cbranch_vccnz L_poll1
    L_poll1_done:
    ''')
    stamp(9)
    LO, HI = 80, 88
    def omm(a, ks, T0):
        for x in range(2):
            acc = FA + 4*x
            bb = WOf + 16*ks + 4*(T0 + x)
            A(f'v_mfma_f32_16x16x32_bf16 v[{acc}:{acc+3}], v[{a}:{a+3}], v[{bb}:{bb+3}], v[{acc}:{acc+3}]')
    for q in range(4):
        A(f'v_cndmask_b32 v{LO+q}, 0, v{PL+2*q}, s[{MK+4}:{MK+5}]')
    for q in range(4):
        A(f'v_cndmask_b32 v{HI+4+q}, v{PL+2*q}, 0, s[{MK+4}:{MK+5}]')
    omm(LO, 0, 0)
    for q in range(4):
        A(f'v_mov_b32_dpp v{HI+q}, v{PL+2*q} row_shr:8 row_mask:0xf bank_mask:0xf bound_ctrl:0')
    omm(HI+4, 1, 2)
    for q in range(4):
        A(f'v_mov_b32_dpp v{LO+4+q}, v{PL+2*q} row_shl:8 row_mask:0xf bank_mask:0xf bound_ctrl:0')
    omm(HI, 0, 2)
    omm(LO+4, 1, 0)
    A(f'''
    v_add_f32 v{FA}, v{FA}, v{FA+1}
    v_add_f32 v{FA+2}, v{FA+2}, v{FA+3}
    v_add_f32 v{FA+4}, v{FA+4}, v{FA+5}
    v_add_f32 v{FA+6}, v{FA+6}, v{FA+7}
    v_add_f32 v{FA}, v{FA}, v{FA+2}
    v_add_f32 v{FA+4}, v{FA+4}, v{FA+6}
    v_permlane16_swap_b32 v{FA}, v{FA+4}
    v_add_f32 v{FA}, v{FA}, v{FA+4}
    ds_write_b32 v{vYW}, v{FA}
    s_waitcnt lgkmcnt(0)
    ''')
    stamp(10)
    A('s_barrier                               ; #5')
    if pad and padat[0] == 's': dopad('L_pads')
    A('L_sdone:')
    if stamps:
        A(f's_cmp_eq_u32 s3, 0')
        A('s_cbranch_scc1 L_dump0')
        A(f's_cmp_lg_u32 s3, 7')
        A('s_cbranch_scc1 L_end')
        dump_stamps(16, [sreg(k) for k in range(11)])
        A('s_endpgm')
        A('L_dump0:')
        dump_stamps(0, [sreg(k) for k in range(11)])
    A('s_endpgm')
    A(f'''
    L_slowpub:
    buffer_store_dwordx4 v[4:7], v{vP1s}, s[40:43], 0 offen sc1
    s_branch L_pubdone
    ''')

    XR = 8
    XF = 32
    RA = 156
    WF = 64
    PB = 136
    nstore = [0]
    def store2(ins):
        n = nstore[0]; nstore[0] += 1
        A(f's_cmp_eq_u32 s58, 0\ns_cbranch_scc1 L_ss{n}')
        for i in ins: A(i)
        A(f's_branch L_sd{n}\nL_ss{n}:')
        for i in ins: A(i + (' sc1' if i.startswith('buffer_') else ''))
        A(f'L_sd{n}:')
    A('L_helper:')
    if stamps: A('v_mov_b32 v164, 0\nv_mov_b32 v165, 0')
    if cpf:
        A(f'''
        s_getpc_b64 s[58:59]
        L_pc:
        s_sub_u32 s58, s58, L_pc-{NAME}_kernel
        s_subb_u32 s59, s59, 0
        s_bfe_u32 s60, s2, 0x40003
        s_lshl_b32 s60, s60, 10
        s_min_u32 s60, s60, L_end-{NAME}_kernel-1020
        v_lshl_add_u32 v3, v0, 4, s60
        global_load_dwordx4 v[132:135], v3, s[58:59]
        ''')
    A(f'''
    s_mov_b32 s42, {WSN}
    s_mov_b32 s43, 0x20000
    s_getreg_b32 s57, hwreg(HW_REG_XCC_ID)
    s_lshl_b32 s64, s56, 16
    s_add_u32 s64, s64, {QP}
    s_lshl_b32 s65, s5, 9
    s_add_u32 s65, s65, s64
    s_lshl_b32 s67, s5, 13
    s_add_u32 s67, s67, s64
    s_lshl_b32 s66, s4, 7
    s_add_u32 s66, s66, {XC}
    s_lshr_b32 s61, s2, 1
    s_and_b32 s61, s61, 0x7c
    s_add_u32 s61, s61, s66
    v_mov_b32 v9, s61
    v_lshlrev_b32 v8, 7, v0
    s_waitcnt lgkmcnt(0)
    s_load_dword s62, s[38:39], {EPOCH}
    s_mov_b64 s[40:41], s[38:39]
    ''')
    if hpre:
        A(f'''
        buffer_load_dword v132, v8, s[40:43], s67 offen sc1
        s_mov_b64 exec, 0xffff
        s_lshl_b32 s60, s56, 11
        s_add_u32 s60, s60, {QX}
        buffer_load_dword v133, v8, s[40:43], s60 offen sc1
        s_mov_b64 exec, 0xff
        s_lshl_b32 s60, s56, 10
        s_add_u32 s60, s60, {HX}
        buffer_load_dword v134, v8, s[40:43], s60 offen sc1
        s_mov_b64 exec, 3
        s_lshl_b32 s60, s56, 8
        s_add_u32 s60, s60, {ST}
        buffer_load_dword v135, v8, s[40:43], s60 offen sc1
        buffer_load_dword v135, v9, s[40:43], 0 offen sc1
        s_mov_b64 exec, -1
        ''')
    A(f'''
    v_lshrrev_b32 v1, 4, v0                  ; g
    v_and_b32 v2, 15, v0
    v_and_b32 v3, 3, v0
    v_mul_u32_u24 v3, 896, v3
    v_add_u32 v3, {XN}, v3                   ; row of batch l%4
    v_lshl_add_u32 v4, v1, 3, v3             ; + g*8
    v_and_b32 v5, 60, v0
    v_lshl_add_u32 v3, v5, 1, v3             ; + (l/4)*8
    s_min_u32 s60, s5, 6
    s_lshl_b32 s60, s60, 7
    v_add_u32 v5, s60, v4
    v_lshrrev_b32 v7, 2, v0
    v_lshlrev_b32 v7, 7, v7
    v_bfe_u32 v6, v0, 3, 2
    v_lshl_add_u32 v7, v6, 5, v7
    v_and_b32 v6, 3, v0
    v_lshl_add_u32 v128, v6, 3, v7
    v_xor_b32 v129, 32, v128
    v_xor_b32 v130, 64, v128
    v_xor_b32 v131, 0x60, v128
    s_mov_b64 s[8:9], 0xffff
    s_mov_b32 s10, 0xffff0000
    s_mov_b32 s11, 0
    s_mov_b32 s12, 0
    s_mov_b32 s13, 0xffff
    v_mov_b32 v31, {MISC}
    v_mov_b32 v30, 1
    v_lshlrev_b32 v29, 3, v0                 ; lane*8
    v_lshlrev_b32 v7, 4, v0
    v_and_b32 v6, 0x1f0, v7
    v_and_b32 v10, 32, v0
    v_lshl_add_u32 v6, v10, 8, v6
    v_and_b32 v23, 31, v0
    v_lshlrev_b32 v23, 2, v23
    v_add_u32 v60, s66, v23
    s_waitcnt lgkmcnt(0)
    s_mul_i32 s62, s62, 1664525
    s_add_u32 s62, s62, 1013904223
    s_mul_i32 s46, s57, 0x9e3779b1
    s_add_u32 s46, s46, s62
    v_mov_b32 v10, s46
    s_mov_b64 exec, 1
    buffer_store_dword v10, v9, s[40:43], 0 offen
    s_mov_b64 exec, -1
    v_mov_b32 v28, s62
    ''')
    for r in range(8):
        A(f'v_mov_b32 v{PB+2*r+1}, s62')
    A(f'''
    v_mov_b32 v152, 0
    v_mov_b32 v153, s62
    v_mov_b32 v154, 0
    v_mov_b32 v155, s62
    s_barrier                               ; #0
    ''')
    hstamp(1)
    A('buffer_load_dword v61, v60, s[40:43], 0 offen sc1')
    def wreads(base, stride):
        for s_ in range(2):
            for ks in range(2):
                for T in range(4):
                    for half in range(2):
                        d = WF + 32*s_ + 16*ks + 4*T + 2*half
                        A(f'ds_read_b64_tr_b16 v[{d}:{d+1}], v{128+T} offset:{base + s_*stride + ks*4096 + half*2048}')
    for u in range(7):
        A(f'ds_read_b64 v[{XR+2*u}:{XR+2*u+1}], v3 offset:{128*u}')
    for ks in range(2):
        A(f'ds_read2_b64 v[{RA+4*ks}:{RA+4*ks+3}], v5 offset0:{8*ks} offset1:{8*ks+4}')
    wreads(8192, 16384)
    A(f'''
    ds_write_b32 v31, v30 offset:{FLG-MISC}
    s_waitcnt lgkmcnt(0)
    ''')
    for u in range(14):
        A(f'v_lshlrev_b32 v{XF+2*u}, 16, v{XR+u}')
        A(f'v_and_b32 v{XF+2*u+1}, 0xffff0000, v{XR+u}')
    def allsum(r):
        A(f'''
        v_add_f32_dpp v{r}, v{r}, v{r} row_ror:4 row_mask:0xf bank_mask:0xf
        v_add_f32_dpp v{r}, v{r}, v{r} row_ror:8 row_mask:0xf bank_mask:0xf
        v_mov_b32 v8, v{r}
        v_permlane16_swap_b32 v{r}, v8
        v_add_f32 v{r}, v{r}, v8
        v_mov_b32 v8, v{r}
        v_permlane32_swap_b32 v{r}, v8
        v_add_f32 v{r}, v{r}, v8
        ''')
    A(f'v_pk_add_f32 v[22:23], v[{XF}:{XF+1}], v[{XF+2}:{XF+3}]')
    A(f'v_pk_add_f32 v[26:27], v[{XF+4}:{XF+5}], v[{XF+6}:{XF+7}]')
    for u in range(4, 14, 2):
        A(f'v_pk_add_f32 v[22:23], v[22:23], v[{XF+2*u}:{XF+2*u+1}]')
        A(f'v_pk_add_f32 v[26:27], v[26:27], v[{XF+2*u+2}:{XF+2*u+3}]')
    A('v_pk_add_f32 v[22:23], v[22:23], v[26:27]')
    A('v_add_f32 v22, v22, v23')
    allsum(22)
    A(f'''
    v_mul_f32 v22, {f32(1/448)}, v22           ; mean
    v_cvt_pk_bf16_f32 v24, v22, v22
    v_and_b32 v24, 0xffff0000, v24           ; bf16(mean)
    v_sub_f32 v22, v22, v24
    ''')
    for u in range(14):
        A(f'v_pk_add_f32 v[{XF+2*u}:{XF+2*u+1}], v[{XF+2*u}:{XF+2*u+1}], v[24:25] op_sel_hi:[1,0] neg_lo:[0,1] neg_hi:[0,1]')
    A(f'v_pk_mul_f32 v[26:27], v[{XF}:{XF+1}], v[{XF}:{XF+1}]')
    A(f'v_pk_mul_f32 v[10:11], v[{XF+2}:{XF+3}], v[{XF+2}:{XF+3}]')
    for u in range(2, 14, 2):
        A(f'v_pk_fma_f32 v[26:27], v[{XF+2*u}:{XF+2*u+1}], v[{XF+2*u}:{XF+2*u+1}], v[26:27]')
        A(f'v_pk_fma_f32 v[10:11], v[{XF+2*u+2}:{XF+2*u+3}], v[{XF+2*u+2}:{XF+2*u+3}], v[10:11]')
    A('v_pk_add_f32 v[26:27], v[26:27], v[10:11]')
    A('v_add_f32 v26, v26, v27')
    allsum(26)
    A(f'''
    v_mul_f32 v26, {f32(1/448)}, v26
    v_fma_f32 v26, -v22, v22, v26            ; var
    v_max_f32 v26, 0, v26
    v_cvt_pk_bf16_f32 v26, v26, v26
    v_and_b32 v26, 0xffff0000, v26           ; bf16(var)
    v_add_f32 v26, {f32(1e-5)}, v26
    v_cvt_pk_bf16_f32 v26, v26, v26
    v_and_b32 v26, 0xffff0000, v26
    v_sqrt_f32 v26, v26
    v_cvt_pk_bf16_f32 v26, v26, v26
    v_and_b32 v26, 0xffff0000, v26
    v_rcp_f32 v26, v26
    ''')
    for u in range(8):
        a, b = XF + 2*u, XF + 2*u + 1
        A(f'v_lshlrev_b32 v{a}, 16, v{RA+u}')
        A(f'v_and_b32 v{b}, 0xffff0000, v{RA+u}')
    for u in range(8):
        a, b = XF + 2*u, XF + 2*u + 1
        A(f'v_pk_add_f32 v[{a}:{b}], v[{a}:{b}], v[24:25] op_sel_hi:[1,0] neg_lo:[0,1] neg_hi:[0,1]')
    for u in range(8):
        a, b = XF + 2*u, XF + 2*u + 1
        A(f'v_cvt_pk_bf16_f32 v{b}, v{a}, v{b}')
    for u in range(8):
        a, b = XF + 2*u, XF + 2*u + 1
        A(f'v_lshlrev_b32 v{a}, 16, v{b}')
        A(f'v_and_b32 v{b}, 0xffff0000, v{b}')
    for u in range(8):
        a, b = XF + 2*u, XF + 2*u + 1
        A(f'v_pk_mul_f32 v[{a}:{b}], v[{a}:{b}], v[26:27] op_sel_hi:[1,0]')
    for u in range(8):
        a, b = XF + 2*u, XF + 2*u + 1
        A(f'v_cvt_pk_bf16_f32 v{RA+u}, v{a}, v{b}')
    A(f'''
    s_mov_b32 s58, {0 if forceslow else 1}
    s_movk_i32 s63, {xtries}
    L_xc:
    s_waitcnt vmcnt(0)
    v_cmp_ne_u32 vcc, s46, v61
    s_cbranch_vccz L_xc_done
    buffer_load_dword v61, v60, s[40:43], 0 offen sc1
    s_sub_u32 s63, s63, 1
    s_cbranch_scc0 L_xc
    s_mov_b32 s58, 0
    s_waitcnt vmcnt(0)
    L_xc_done:
    ''')
    hstamp(2)
    if stamps:
        A('s_mul_i32 s60, s58, 1000\ns_add_u32 s100, s100, s60\ns_addc_u32 s101, s101, 0\nv_writelane_b32 v164, s100, 14\nv_writelane_b32 v165, s101, 14')
    A(f'''
    s_cmp_eq_u32 s5, 7
    s_cbranch_scc1 L_nopiece
    s_call_b64 s[14:15], L_gemv
    s_cmp_eq_u32 s4, 7
    s_cbranch_scc1 L_nopiece
    v_add_u32 v128, {AREA}, v128
    v_add_u32 v129, {AREA}, v129
    v_add_u32 v130, {AREA}, v130
    v_add_u32 v131, {AREA}, v131
    ''')
    wreads(0, 8192)
    A(f'''
    s_add_u32 s65, s65, 4096
    s_waitcnt lgkmcnt(0)
    s_call_b64 s[14:15], L_gemv
    L_nopiece:
    ''')
    hstamp(3)
    A(f'''
    s_call_b64 s[14:15], L_poll7
    s_mov_b32 vcc_lo, 0xaaaaaaaa
    s_mov_b32 vcc_hi, 0xaaaaaaaa
    v_cndmask_b32 v35, v36, v34, vcc
    s_lshr_b32 s64, s5, 1
    s_lshl_b32 s64, s64, 3
    s_add_u32 s64, s64, s4
    s_lshl_b32 s64, s64, 2
    v_mov_b32_dpp v37, v35 quad_perm:[1,0,3,2] row_mask:0xf bank_mask:0xf
    s_add_u32 s64, s64, s6
    s_lshl_b32 s64, s64, 1
    s_and_b32 s61, s5, 1
    s_add_u32 s64, s64, s61
    s_lshl_b32 s60, s64, 8
    s_add_u32 s60, s60, {QX}
    v_cndmask_b32 v34, v34, v37, vcc
    v_cndmask_b32 v36, v37, v36, vcc
    v_and_b32 v9, 1, v0
    v_mul_u32_u24 v9, 124, v9
    v_lshl_add_u32 v9, v0, 2, v9
    v_cvt_pk_bf16_f32 v{PB}, v34, v36
    s_mov_b32 exec_hi, 0
    ''')
    store2([f'buffer_store_dwordx2 v[{PB}:{PB+1}], v9, s[40:43], s60 offen'])
    A('s_mov_b64 exec, -1')
    hstamp(4)
    A(f'''
    s_cmp_eq_u32 s4, 7
    s_cbranch_scc1 L_noh
    s_add_u32 s67, s67, 4096
    ''')
    A(f'''
    s_call_b64 s[14:15], L_poll7
    v_cvt_pk_bf16_f32 v35, v34, v36
    v_lshlrev_b32 v34, 16, v35               ; gate
    v_and_b32 v35, 0xffff0000, v35           ; up
    v_max_f32 v34, 0, v34
    v_mul_f32 v34, v34, v35
    s_lshl_b32 s60, s64, 7
    s_add_u32 s60, s60, {HX}
    v_mov_b32_dpp v35, v34 quad_perm:[1,0,3,2] row_mask:0xf bank_mask:0xf
    v_lshlrev_b32 v9, 2, v0
    v_cvt_pk_bf16_f32 v{PB+2}, v34, v35
    s_mov_b64 exec, 0x55555555
    ''')
    store2([f'buffer_store_dwordx2 v[{PB+2}:{PB+3}], v9, s[40:43], s60 offen'])
    A(f'''
    s_mov_b64 exec, -1
    L_noh:
    ''')
    hstamp(5)
    A(f'''
    s_lshl_b32 s60, s56, 11
    s_add_u32 s60, s60, {QX}
    v_add_u32 v10, s60, v7
    v_add_u32 v11, 1024, v10
    ''')
    A('s_call_b64 s[14:15], L_poll2')
    hstamp(6)
    A(f'''
    v_and_b32 v9, 0x138, v29                 ; l5*256 + (l&7)*8
    v_and_b32 v8, 8, v0
    v_lshl_add_u32 v9, v8, 4, v9
    v_and_b32 v8, 16, v0
    v_lshl_add_u32 v9, v8, 2, v9
    v_add_u32 v9, {QL}, v9
    ds_write2_b32 v9, v16, v18 offset0:0 offset1:1
    ds_write2_b32 v9, v20, v22 offset0:128 offset1:129
    ds_write_b32 v31, v30 offset:{FLQ-MISC}
    s_mov_b32 s63, {SPIN*8}
    L_wc:
    ds_read_b32 v9, v31 offset:{CNT-MISC}
    s_sub_u32 s63, s63, 1
    s_waitcnt lgkmcnt(0)
    s_cbranch_scc1 L_wc_done
    v_cmp_eq_u32 vcc, 8, v9
    s_cbranch_vccnz L_wc_done
    s_sleep 4
    s_branch L_wc
    L_wc_done:
    ''')
    hstamp(7)
    A(f'''
    v_lshlrev_b32 v8, 3, v2
    v_add_u32 v8, {STW}, v8
    ds_read_b64 v[4:5], v8
    s_lshl_b32 s66, s56, 8
    s_add_u32 s66, s66, {ST}
    s_lshl_b32 s61, s5, 4
    s_add_u32 s61, s61, s66
    s_waitcnt lgkmcnt(0)
    v_max_f32_dpp v{PB+4}, v4, v4 quad_perm:[1,0,3,2] row_mask:0xf bank_mask:0xf
    v_max_f32_dpp v{PB+4}, v{PB+4}, v{PB+4} quad_perm:[2,3,0,1] row_mask:0xf bank_mask:0xf
    v_max_f32_dpp v{PB+4}, v{PB+4}, v{PB+4} row_half_mirror row_mask:0xf bank_mask:0xf
    v_sub_f32 v{PB+6}, v4, v{PB+4}
    v_mul_f32 v{PB+6}, {CEXP}, v{PB+6}
    v_exp_f32 v{PB+6}, v{PB+6}
    v_mul_f32 v{PB+6}, v{PB+6}, v5
    v_add_f32_dpp v{PB+6}, v{PB+6}, v{PB+6} quad_perm:[1,0,3,2] row_mask:0xf bank_mask:0xf
    v_add_f32_dpp v{PB+6}, v{PB+6}, v{PB+6} quad_perm:[2,3,0,1] row_mask:0xf bank_mask:0xf
    v_add_f32_dpp v{PB+6}, v{PB+6}, v{PB+6} row_half_mirror row_mask:0xf bank_mask:0xf
    s_mov_b64 exec, 0x101
    ''')
    store2([f'buffer_store_dwordx4 v[{PB+4}:{PB+7}], v7, s[40:43], s61 offen'])
    A(f'''
    s_mov_b64 exec, -1
    v_lshlrev_b32 v10, 4, v2
    v_add_u32 v10, s66, v10
    v_mov_b32 v11, v10
    s_cmp_eq_u32 s4, 7
    s_cbranch_scc1 L_noh2
    s_lshl_b32 s61, s56, 10
    s_add_u32 s61, s61, {HX}
    v_add_u32 v11, s61, v7
    L_noh2:
    ''')
    A('s_call_b64 s[14:15], L_poll2')
    hstamp(8)
    A(f'''
    s_cmp_eq_u32 s4, 7
    s_cselect_b32 s60, 0, -1
    v_and_b32 v20, s60, v20
    v_and_b32 v22, s60, v22
    v_add_u32 v8, {HL}, v29
    ds_write2_b32 v8, v20, v22 offset0:0 offset1:1
    v_max_f32_dpp v10, v16, v16 quad_perm:[1,0,3,2] row_mask:0xf bank_mask:0xf
    v_max_f32_dpp v10, v10, v10 quad_perm:[2,3,0,1] row_mask:0xf bank_mask:0xf
    v_max_f32_dpp v10, v10, v10 row_half_mirror row_mask:0xf bank_mask:0xf
    v_sub_f32 v11, v16, v10
    v_sub_f32 v10, v4, v10
    v_mul_f32 v11, {CEXP}, v11
    v_mul_f32 v10, {CEXP}, v10
    v_exp_f32 v11, v11
    v_exp_f32 v10, v10
    v_mul_f32 v11, v11, v18
    v_add_f32_dpp v11, v11, v11 quad_perm:[1,0,3,2] row_mask:0xf bank_mask:0xf
    v_add_f32_dpp v11, v11, v11 quad_perm:[2,3,0,1] row_mask:0xf bank_mask:0xf
    v_add_f32_dpp v11, v11, v11 row_half_mirror row_mask:0xf bank_mask:0xf
    v_rcp_f32 v11, v11
    v_mul_f32 v10, v10, v11
    v_and_b32 v9, 56, v29
    v_lshrrev_b32 v8, 1, v0
    v_and_b32 v8, 4, v8
    v_add3_u32 v9, v9, v8, v31
    v_subrev_u32 v9, {MISC-FACW}, v9
    ds_write_b32 v9, v10
    v_mov_b32 v24, 1
    v_mov_b32 v25, s58
    v_mov_b32 v26, v28
    v_mov_b32 v27, v28
    ds_write_b128 v31, v[24:27] offset:{FLF-MISC}
    s_waitcnt lgkmcnt(0)
    s_cmp_eq_u32 s5, 7
    s_cbranch_scc1 {'L_end' if pad else 'L_hdone'}
    s_mul_i32 s64, s6, 7
    s_add_u32 s64, s64, s5                   ; 7b + j
    s_lshl_b32 s61, s64, 7
    v_lshlrev_b32 v4, 1, v0
    v_add_u32 v4, s61, v4
    s_mov_b64 s[44:45], s[16:17]
    s_movk_i32 s46, 3584
    s_mov_b32 s47, 0x20000
    buffer_load_ushort v5, v4, s[44:47], 0 offen
    s_mov_b64 s[52:53], s[34:35]
    s_movk_i32 s54, 3584
    s_mov_b32 s55, 0x20000
    s_lshl_b32 s60, s64, 12
    s_add_u32 s60, s60, {P2}
    v_add_u32 v6, s60, v29
    v_lshlrev_b32 v7, 2, v0
    v_add_u32 v7, {YL}, v7
    ''')
    for i in range(8):
        A(f's_add_u32 s{18+i}, s4, {i}')
        A(f's_and_b32 s{18+i}, s{18+i}, 7')
        A(f's_lshl_b32 s{18+i}, s{18+i}, 9')
    A(f'''
    s_waitcnt vmcnt(0)
    v_lshlrev_b32 v5, 16, v5
    s_barrier                               ; #4
    ''')
    hstamp(9)
    A('s_call_b64 s[14:15], L_others')
    hstamp(10)
    A(f'''
    s_barrier                               ; #5
    ds_read2st64_b32 v[48:49], v7 offset0:0 offset1:1
    ds_read2st64_b32 v[50:51], v7 offset0:2 offset1:3
    ds_read2st64_b32 v[52:53], v7 offset0:4 offset1:5
    ds_read2st64_b32 v[54:55], v7 offset0:6 offset1:7
    s_waitcnt lgkmcnt(2)
    v_add_f32 v48, v48, v49
    v_add_f32 v50, v50, v51
    s_waitcnt lgkmcnt(0)
    v_add_f32 v52, v52, v53
    v_add_f32 v54, v54, v55
    v_add_f32 v48, v48, v50
    v_add_f32 v52, v52, v54
    v_add_f32 v{PB}, v48, v52
    s_cbranch_vccnz L_late
    L_finish:
    v_add_f32 v34, v34, v{PB}
    v_cvt_pk_bf16_f32 v34, v34, v34
    buffer_store_short v34, v4, s[52:55], 0 offen
    ''')
    hstamp(11)
    A(f'''
    s_cmp_lg_u32 s64, 21
    s_cbranch_scc1 L_hdone
    s_mov_b64 exec, 1
    v_mov_b32 v1, {EPOCH}
    buffer_store_dword v28, v1, s[40:43], 0 offen
    L_hdone:
    ''')
    if pad and padat[0] == 'h': dopad('L_padh')
    if stamps:
        hstamp(12)
        A(f'''
        s_mov_b64 exec, 0xffff
        s_lshl_b32 s60, s2, 9
        s_add_u32 s60, s60, {STAMPS+256}
        buffer_store_dwordx2 v[164:165], v29, s[40:43], s60 offen
        ''')
    A(f'''
    s_endpgm
    L_late:
    buffer_store_dwordx2 v[{PB}:{PB+1}], v6, s[40:43], s18 offen sc1
    s_call_b64 s[14:15], L_others
    s_cbranch_vccz L_finish
    s_call_b64 s[14:15], L_others
    s_cbranch_vccz L_finish
    s_branch L_hdone
    ''')
    A('L_others:')
    for i in range(1, 8):
        A(f'buffer_load_dwordx2 v[{32+2*i}:{33+2*i}], v6, s[40:43], s{18+i} offen sc1')
    A(f'''
    s_waitcnt vmcnt(0)
    v_min3_u32 v12, v35, v37, v39
    v_max3_u32 v13, v35, v37, v39
    v_min3_u32 v12, v12, v41, v43
    v_max3_u32 v13, v13, v41, v43
    v_min3_u32 v12, v12, v45, v47
    v_max3_u32 v13, v13, v45, v47
    v_min_u32 v12, v12, v28
    v_max_u32 v13, v13, v28
    v_cmp_ne_u32 vcc, v12, v13
    v_add_f32 v34, v34, v36
    v_add_f32 v38, v38, v40
    v_add_f32 v42, v42, v44
    v_add_f32 v46, v46, v5
    v_add_f32 v34, v34, v38
    v_add_f32 v42, v42, v46
    v_add_f32 v34, v34, v42
    s_setpc_b64 s[14:15]
    L_poll7:
    s_mov_b32 s63, {SPIN}
    L_poll7_loop:
    buffer_load_dwordx4 v[34:37], v7, s[40:43], s67 offen sc1
    buffer_load_dwordx4 v[38:41], v7, s[40:43], s67 offen offset:1024 sc1
    buffer_load_dwordx4 v[42:45], v7, s[40:43], s67 offen offset:2048 sc1
    s_mov_b32 exec_hi, 0
    buffer_load_dwordx4 v[152:155], v7, s[40:43], s67 offen offset:3072 sc1
    s_mov_b32 exec_hi, -1
    s_sub_u32 s63, s63, 1
    s_waitcnt vmcnt(0)
    s_cbranch_scc1 L_poll7_done
    v_min3_u32 v12, v35, v37, v39
    v_max3_u32 v13, v35, v37, v39
    v_min3_u32 v12, v12, v41, v43
    v_max3_u32 v13, v13, v41, v43
    v_min3_u32 v12, v12, v45, v153
    v_max3_u32 v13, v13, v45, v153
    v_min3_u32 v12, v12, v155, v28
    v_max3_u32 v13, v13, v155, v28
    v_cmp_ne_u32 vcc, v12, v13
    s_cbranch_vccz L_poll7_done
    s_sleep {psleep}
    s_branch L_poll7_loop
    L_poll7_done:
    v_add_f32 v34, v34, v38
    v_add_f32 v36, v36, v40
    v_add_f32 v42, v42, v152
    v_add_f32 v44, v44, v154
    v_add_f32 v38, v34, v42
    v_add_f32 v40, v36, v44
    v_add_f32 v34, v34, v42
    v_add_f32 v36, v36, v44
    v_permlane32_swap_b32 v34, v38
    v_permlane32_swap_b32 v36, v40
    v_add_f32 v34, v34, v38
    v_add_f32 v36, v36, v40
    s_setpc_b64 s[14:15]
    L_poll2:
    s_mov_b32 s63, {SPIN}
    L_poll2_loop:
    buffer_load_dwordx4 v[16:19], v10, s[40:43], 0 offen sc1
    buffer_load_dwordx4 v[20:23], v11, s[40:43], 0 offen sc1
    s_sub_u32 s63, s63, 1
    s_waitcnt vmcnt(0)
    s_cbranch_scc1 L_poll2_done
    v_min3_u32 v12, v17, v19, v21
    v_max3_u32 v13, v17, v19, v21
    v_min3_u32 v12, v12, v23, v28
    v_max3_u32 v13, v13, v23, v28
    v_cmp_ne_u32 vcc, v12, v13
    s_cbranch_vccz L_poll2_done
    s_sleep {psleep}
    s_branch L_poll2_loop
    L_poll2_done:
    s_setpc_b64 s[14:15]
    L_gemv:
    ''')
    for ks in range(2):
        for s_ in range(2):
            for T in range(4):
                acc = 32 + 16*s_ + 4*T
                bb = WF + 32*s_ + 16*ks + 4*T
                c = '0' if ks == 0 else f'v[{acc}:{acc+3}]'
                A(f'v_mfma_f32_16x16x32_bf16 v[{acc}:{acc+3}], v[{RA+4*ks}:{RA+4*ks+3}], v[{bb}:{bb+3}], {c}')
    A('s_add_u32 s60, s65, 16384')
    A('s_add_u32 s61, s65, 32768')
    A('s_add_u32 s63, s65, 49152')
    for s_ in range(2):
        a = 32 + 16*s_
        for r in range(4):
            A(f'v_cndmask_b32 v{a+12+r}, v{a+12+r}, v{a+8+r}, s[12:13]')
        for r in range(4):
            A(f'v_cndmask_b32 v{a+12+r}, v{a+12+r}, v{a+4+r}, s[10:11]')
        for r in range(4):
            A(f'v_cndmask_b32 v{PB+4*r+2*s_}, v{a+12+r}, v{a+r}, s[8:9]')
    store2([f'buffer_store_dwordx4 v[{PB+4*r}:{PB+4*r+3}], v6, s[40:43], {so} offen' for r, so in enumerate(('s65', 's60', 's61', 's63'))])
    A(f'''
    s_setpc_b64 s[14:15]
    L_end:
    s_endpgm
    ''')
    A('.section .rodata,"a"')
    A('.p2align 6')
    A(f'.amdhsa_kernel {NAME}_kernel')
    A('.amdhsa_next_free_vgpr 168')
    A('.amdhsa_next_free_sgpr 102')
    A('.amdhsa_accum_offset 168')
    A('.amdhsa_group_segment_fixed_size 0')
    A('.amdhsa_kernarg_size 96')
    A('.amdhsa_user_sgpr_count 2')
    A('.amdhsa_user_sgpr_kernarg_segment_ptr 1')
    A('.amdhsa_system_sgpr_workgroup_id_x 1')
    A('.end_amdhsa_kernel')
    return top + A.finalize()

if __name__ == '__main__':
    out = sys.argv[1] if len(sys.argv) > 1 else f'cdna_kernels/{NAME}.s'
    kw = eval('dict(%s)' % sys.argv[2]) if len(sys.argv) > 2 else {}
    open(out, 'w').write(gen(**kw))
    print('wrote', out)
```

```python
import sys, struct, math
from asmlib import Asm
NAME = 'parallel_sum__sliding_block_cached__glu_gated_reglu__decode'

def f32(x): return '0x%08x' % struct.unpack('<I', struct.pack('<f', x))[0]

AREA = 131072
TAB = AREA + 16384
STW = TAB
FACW = TAB + 128
MISC = TAB + 256
FLQ = MISC
CNT = MISC + 4
FLG = MISC + 8
CNT0 = MISC + 12
FLF = MISC + 16
HL = TAB + 512
QL = TAB + 1024
XN = TAB + 2048
YL = XN
LDS_TOTAL = XN + 4096
EPOCH = 0
ST = 0x1000
QX = 0x4000
P2 = 0x24000
P1 = 0x40000
QP = 0xC0000
WS_END = 0x1C0000
STAMPS = 0x300000
SPIN = 400000
CEXP = f32(math.log2(math.e)/16)

class VM:
    def __init__(self, A): self.A = A; self.q = []
    def add(self, name, n): self.q.append((name, n))
    def wait(self, name, extra=''):
        idx = max(i for i, (nm, _) in enumerate(self.q) if nm == name)
        n = sum(c for _, c in self.q[idx+1:])
        self.q = self.q[idx+1:]
        self.A(f's_waitcnt vmcnt({n}){extra}')
    d = 0; nl = 0
    def upto(self, n):
        tot = sum(c for _, c in self.q)
        if tot > n: self.A(f's_waitcnt vmcnt({n})')
        if self.d and n < 50 and tot > max(n - self.d, 0):
            self.nl += 1
            self.A(f's_cbranch_vccz L_pc{self.nl}\ns_waitcnt vmcnt({max(n - self.d, 0)})\nL_pc{self.nl}:')

def gen(stamps=0, wnt='', snt=' nt', kvnt=' nt', forceslow=False, now=False, pad=0, padat=None, thr=2,
        hpre=True, psleep=4, xtries=12, sync=False, xs=('s3', 0), light=False, kfirst=True, k3=True, wlast=0, wthr=4, fastmask=0, dthr=1, exempt=7):
    A = Asm()
    def sreg(k): return 68 + 2*k if k < 3 else 16 + 2*(k-3)
    def stamp(k):
        if stamps and (not light or k in (0, 6, 10)): A(f's_memrealtime s[{sreg(k)}:{sreg(k)+1}]')
        if padat == f's{k}': A('s_memrealtime s[100:101]')
    def hstamp(k):
        if stamps and (not light or k in (6, 12)):
            A(f's_memrealtime s[100:101]\ns_waitcnt lgkmcnt(0)\nv_writelane_b32 v164, s100, {k}\nv_writelane_b32 v165, s101, {k}')
        if padat == f'h{k}': A('s_memrealtime s[100:101]\ns_waitcnt lgkmcnt(0)')
    def dopad(lab):
        A(f'''
        {lab}:
        s_memrealtime s[98:99]
        s_waitcnt lgkmcnt(0)
        s_sub_u32 s98, s98, s100
        s_cmp_lt_u32 s98, {pad}
        s_cbranch_scc1 {lab}
        ''')
    def dump_stamps(slot0, regs_):
        A('s_waitcnt vmcnt(0) lgkmcnt(0)')
        A('s_mov_b64 exec, 1')
        A('s_lshl_b32 s60, s2, 9')
        A(f's_add_u32 s60, s60, {STAMPS}')
        A('v_mov_b32 v1, s60')
        for k, r in enumerate(regs_):
            A(f'v_mov_b32 v2, s{r}')
            A(f'v_mov_b32 v3, s{r+1}')
            A(f'buffer_store_dwordx2 v[2:3], v1, s[40:43], 0 offen offset:{8*(slot0+k)}')
    WSN = 0x400000 if stamps else WS_END
    Z = (lambda n: 0) if now else (lambda n: n)
    hdr = open('cdna_kernels/%s.s.ref' % NAME).read().split('; Override launch geometry')[0]
    top = hdr + f'; @launch grid=(256,1,1) block=(576,1,1) lds={LDS_TOTAL}\n'
    A('.amdgcn_target "amdgcn-amd-amdhsa--gfx950"')
    A('.text')
    A(f'.globl {NAME}_kernel')
    A('.p2align 8')
    A(f'.type {NAME}_kernel,@function')
    A(f'{NAME}_kernel:')
    if sync:
        A('''
        s_memrealtime s[4:5]
        s_waitcnt lgkmcnt(0)
        s_add_u32 s6, s4, 4096+600
        s_and_b32 s6, s6, -4096
        L_sync:
        s_memrealtime s[4:5]
        s_waitcnt lgkmcnt(0)
        s_sub_u32 s4, s4, s6
        s_cmp_lt_i32 s4, 0
        s_cbranch_scc1 L_sync
        s_branch L_go
        .p2align 10
        L_go:
        ''')
    stamp(0)
    vm = VM(A)
    vD = [4, 5, 6, 7]; vKA = [8, 9, 10, 11]; vVA = list(range(12, 20)); vTAG = 20
    KfA, KfB, KfC, Sx, Pk, Oa = 32, 64, 96, 128, 144, 152
    vCH, vR8 = 30, 31
    KS, VS = 's[8:11]', 's[12:15]'
    def issue(name, slot, halves=(0, 1)):
        srd = KS if name[0] == 'K' else VS
        i = int(name[1])
        for half in halves:
            first = (name == 'K0' and half == 0)
            if not first:
                A(f's_add_u32 m0, s59, {slot*8192 + half*4096}')
                A(f's_xor_b32 s60, s58, {i*524288 + half*4096}')
            for q in range(4):
                A(f'buffer_load_dwordx4 v{vD[q]}, {srd}, {"s58" if first else "s60"} offen offset:{q*1024}{kvnt} lds')
            vm.add(name, 4)
    def ha(name, slot, t=None):
        vm.upto(thr if t is None else t); issue(name, slot, (0,))
    def hb(name, slot, t=None):
        vm.upto(thr if t is None else t); issue(name, slot, (1,))
    A(f'''
    s_load_dwordx16 s[16:31], s[0:1], 0
    s_load_dwordx8 s[32:39], s[0:1], 64
    v_readfirstlane_b32 s3, v0
    s_cmpk_ge_u32 s2, 256
    s_cbranch_scc1 L_end
    v_and_b32 v0, 63, v0                     ; lane
    s_lshr_b32 s3, s3, 6                     ; wave
    s_and_b32 s4, s2, 7                      ; hkv
    s_bfe_u32 s5, s2, 0x30003                ; j
    s_lshr_b32 s6, s2, 6                     ; b
    s_lshl3_add_u32 s56, s6, s4
    s_cmp_eq_u32 s3, 8
    s_cbranch_scc1 L_helper
    v_lshrrev_b32 v1, 4, v0
    v_and_b32 v1, 2, v1
    v_xor_b32 v1, v1, v0
    v_lshlrev_b32 v4, 4, v1
    v_xor_b32 v5, 64, v4
    v_xor_b32 v6, 0x80, v4
    v_xor_b32 v7, 64, v6
    s_lshl3_add_u32 s66, s5, s3              ; 8j + w
    s_lshl_b32 s57, s56, 23
    s_add_u32 s57, s57, {12288*512}
    s_lshl_b32 s59, s3, 14
    s_lshl_b32 s58, s66, 13
    {f's_bfe_u32 s62, {xs[0]}, {0x20000 + xs[1]}' if xs else ''}
    {'s_lshl_b32 s62, s62, 19' if xs else ''}
    {'s_or_b32 s58, s58, s62' if xs else ''}
    s_mov_b32 s10, 0x200000
    s_mov_b32 s11, 0x20000
    ''')
    saddr = f'''
    v_bfe_u32 v2, v0, 4, 2
    v_lshlrev_b32 v2, 1, v2
    v_and_b32 v3, 7, v0
    v_xor_b32 v2, v2, v3
    v_lshlrev_b32 v{vCH}, 4, v2
    v_lshrrev_b32 v{vR8}, 3, v0
    v_lshl_add_u32 v21, v{vR8}, 13, v{vCH}
    s_movk_i32 s46, 3584
    v_mad_u32_u24 v23, v{vR8}, s46, v{vCH}
    s_lshl_b32 s65, s3, 9
    v_lshl_add_u32 v22, v0, 4, s65
    s_lshl2_add_u32 s67, s4, s6              ; 4hkv + b
    s_lshl_b32 s63, s67, 7
    s_mul_i32 s64, s66, {8*3584}
    s_add_u32 s63, s63, s64
    s_lshl_b32 s67, s67, 8
    s_lshl_b32 s64, s66, 16
    s_add_u32 s67, s67, s64
    s_lshl_b32 s62, s3, 10
    s_mov_b32 s47, s11
    s_mov_b32 s51, s11
    s_mov_b32 s55, s11
    s_cmp_lt_u32 s5, 7
    s_cselect_b32 s50, {Z(448*8192)}, 0
    s_cselect_b32 s67, s67, 0
    s_add_u32 s61, s67, 128
    s_max_u32 s7, s4, s5
    s_cmp_lt_u32 s7, 7
    s_cselect_b32 s54, {Z(448*3584)}, 0
    s_cselect_b32 s63, s63, 0
    '''
    if not kfirst: A(saddr)
    A(f'''
    s_mov_b32 m0, s59
    {'s_memrealtime s[100:101]' if padat == 'sa' else ''}
    s_waitcnt lgkmcnt(0)
    {'s_memrealtime s[100:101]' if padat == 'sb' else ''}
    s_add_u32 s8, s18, s57
    s_addc_u32 s9, s19, 0
    ''')
    if kfirst:
        issue('K0', 0, (0,))
        A(saddr)
    A(f'''
    s_add_u32 m0, s65, {XN}
    s_mov_b32 exec_hi, 0
    s_mov_b64 s[44:45], s[16:17]
    buffer_load_dwordx4 v22, s[44:47], 0 offen lds
    s_mov_b32 exec_hi, -1
    s_add_u32 m0, s62, 8192
    s_mov_b64 s[48:49], s[22:23]
    buffer_load_dwordx4 v21, s[48:51], s67 offen{snt} lds
    s_add_u32 m0, s62, {16384+8192}
    s_mov_b64 s[52:53], s[28:29]
    buffer_load_dwordx4 v21, s[48:51], s61 offen{snt} lds
    s_add_u32 m0, s62, {AREA}
    v_mov_b32 v28, 1
    buffer_load_dwordx4 v23, s[52:55], s63 offen{snt} lds
    s_add_u32 m0, s62, {AREA+8192}
    s_mov_b64 s[52:53], s[30:31]
    buffer_load_dwordx4 v23, s[52:55], s63 offen{snt} lds
    ''')
    vm.add('small', 5)
    if not kfirst:
        A('s_mov_b32 m0, s59')
        issue('K0', 0, (0,))
    stamp(1)
    A('s_branch L_stream')

    XR = 8
    XF = 32
    RA = 156
    WF = 64
    AC = 132
    PB = 64
    nstore = [0]
    def store2(ins):
        n = nstore[0]; nstore[0] += 1
        A(f's_cmp_eq_u32 s58, 0\ns_cbranch_scc1 L_ss{n}')
        for i in ins: A(i)
        A(f's_branch L_sd{n}\nL_ss{n}:')
        for i in ins: A(i + ' sc1')
        A(f'L_sd{n}:')
    def cntwait(off, lab, sl):
        A(f'''
        s_mov_b32 s63, {SPIN*8}
        {lab}:
        ds_read_b32 v9, v31 offset:{off-MISC}
        s_sub_u32 s63, s63, 1
        s_waitcnt lgkmcnt(0)
        s_cbranch_scc1 {lab}_done
        v_cmp_eq_u32 vcc, 8, v9
        s_cbranch_vccnz {lab}_done
        s_sleep {sl}
        s_branch {lab}
        {lab}_done:
        ''')
    A(f'''
    L_helper:
    s_setprio 3
    s_getreg_b32 s57, hwreg(HW_REG_XCC_ID, 0, 7)
    s_lshl_b32 s66, s4, 5
    s_lshr_b32 s61, s2, 3
    s_add_u32 s61, s61, s66
    s_add_u32 s57, s57, 1
    v_mov_b32 v9, s61
    v_mov_b32 v10, s57
    v_mov_b32 v31, {MISC}
    v_lshl_add_u32 v1, v0, 2, v31
    v_mov_b32 v2, 0
    ds_write_b32 v1, v2                      ; flags = 0
    s_mov_b64 exec, 1
    s_waitcnt lgkmcnt(0)
    global_store_byte v9, v10, s[36:37]
    s_load_dword s62, s[38:39], {EPOCH}
    s_mov_b64 exec, -1
    ''')
    if stamps: A('v_mov_b32 v164, 0\nv_mov_b32 v165, 0')
    A(f'''
    s_mov_b64 s[40:41], s[38:39]
    s_mov_b32 s42, {WSN}
    s_mov_b32 s43, 0x20000
    s_lshl_b32 s64, s56, 15
    s_add_u32 s64, s64, {QP}
    s_lshl_b32 s65, s5, 9
    s_add_u32 s65, s65, s64
    s_lshl_b32 s67, s5, 12
    s_add_u32 s67, s67, s64
    s_lshl_b32 s59, s56, 12
    s_add_u32 s59, s59, {QX}
    s_lshl_b32 s7, s56, 8
    s_add_u32 s7, s7, {ST}
    ''')
    if hpre:
        A(f'''
        v_lshlrev_b32 v8, 7, v0
        s_mov_b64 exec, 0xfffffff
        buffer_load_dword v128, v8, s[40:43], s67 offen sc1
        s_mov_b64 exec, 0xffffff
        buffer_load_dword v128, v8, s[40:43], s59 offen sc1
        s_mov_b64 exec, 3
        buffer_load_dword v128, v8, s[40:43], s7 offen sc1
        s_mov_b64 exec, -1
        ''')
    A(f'''
    v_lshrrev_b32 v1, 4, v0                  ; g
    v_and_b32 v2, 15, v0
    v_and_b32 v3, 3, v0
    v_mul_u32_u24 v3, 896, v3
    v_add_u32 v3, {XN}, v3                   ; row of batch l%4
    v_lshl_add_u32 v4, v1, 3, v3             ; + g*8
    v_and_b32 v5, 60, v0
    v_lshl_add_u32 v3, v5, 1, v3             ; + (l/4)*8
    s_min_u32 s60, s5, 6
    s_lshl_b32 s60, s60, 7
    v_add_u32 v5, s60, v4
    v_lshrrev_b32 v7, 2, v0
    v_lshlrev_b32 v7, 7, v7
    v_bfe_u32 v6, v0, 3, 2
    v_lshl_add_u32 v7, v6, 5, v7
    v_and_b32 v6, 3, v0
    v_lshl_add_u32 v148, v6, 3, v7
    v_xor_b32 v149, 32, v148
    v_xor_b32 v150, 64, v148
    v_xor_b32 v151, 0x60, v148
    v_add_u32 v152, {AREA}, v148
    v_add_u32 v153, {AREA}, v149
    v_add_u32 v154, {AREA}, v150
    v_add_u32 v155, {AREA}, v151
    s_mov_b32 s8, 0x000f000f
    s_mov_b32 s9, s8
    s_lshl_b64 s[10:11], s[8:9], 4
    s_lshl_b64 s[12:13], s[8:9], 8
    s_lshl_b64 s[14:15], s[8:9], 12
    v_mov_b32 v30, 1
    v_lshlrev_b32 v29, 3, v0                 ; lane*8
    v_lshlrev_b32 v7, 4, v0                  ; lane*16
    v_and_b32 v6, 0x1f0, v7
    v_and_b32 v10, 32, v0
    v_lshl_add_u32 v6, v10, 7, v6
    v_and_b32 v129, 7, v0
    v_lshlrev_b32 v129, 2, v129
    v_add_u32 v129, s66, v129
    s_mul_i32 s46, s57, 0x01010101
    global_load_dword v130, v129, s[36:37] sc1
    s_barrier
    ''')
    hstamp(0)
    cntwait(CNT0, 'L_w0', 1)
    hstamp(1)
    def wreads(areg, base, stride):
        for s_ in range(2):
            for ks in range(2):
                for T in range(4):
                    for half in range(2):
                        d = WF + 32*s_ + 16*ks + 4*T + 2*half
                        A(f'ds_read_b64_tr_b16 v[{d}:{d+1}], v{areg+T} offset:{base + s_*stride + ks*4096 + half*2048}')
    for u in range(7):
        A(f'ds_read_b64 v[{XR+2*u}:{XR+2*u+1}], v3 offset:{128*u}')
    for ks in range(2):
        A(f'ds_read2_b64 v[{RA+4*ks}:{RA+4*ks+3}], v5 offset0:{8*ks} offset1:{8*ks+4}')
    wreads(148, 8192, 16384)
    A(f'''
    ds_write_b32 v31, v30 offset:{FLG-MISC}
    s_mul_i32 s62, s62, 1664525
    s_add_u32 s62, s62, 1013904223
    s_lshr_b32 s60, s62, 8
    v_mov_b32 v28, s62
    v_mov_b32 v131, s60
    s_movk_i32 s47, 0xff
    s_waitcnt lgkmcnt(15)
    ''')
    for u in range(14):
        A(f'v_lshlrev_b32 v{XF+2*u}, 16, v{XR+u}')
        A(f'v_and_b32 v{XF+2*u+1}, 0xffff0000, v{XR+u}')
    def allsum(r):
        A(f'''
        v_add_f32_dpp v{r}, v{r}, v{r} row_ror:4 row_mask:0xf bank_mask:0xf
        v_add_f32_dpp v{r}, v{r}, v{r} row_ror:8 row_mask:0xf bank_mask:0xf
        v_mov_b32 v8, v{r}
        v_permlane16_swap_b32 v{r}, v8
        v_add_f32 v{r}, v{r}, v8
        v_mov_b32 v8, v{r}
        v_permlane32_swap_b32 v{r}, v8
        v_add_f32 v{r}, v{r}, v8
        ''')
    A(f'v_pk_add_f32 v[22:23], v[{XF}:{XF+1}], v[{XF+2}:{XF+3}]')
    A(f'v_pk_add_f32 v[26:27], v[{XF+4}:{XF+5}], v[{XF+6}:{XF+7}]')
    for u in range(4, 14, 2):
        A(f'v_pk_add_f32 v[22:23], v[22:23], v[{XF+2*u}:{XF+2*u+1}]')
        A(f'v_pk_add_f32 v[26:27], v[26:27], v[{XF+2*u+2}:{XF+2*u+3}]')
    A('v_pk_add_f32 v[22:23], v[22:23], v[26:27]')
    A('v_add_f32 v22, v22, v23')
    allsum(22)
    A(f'''
    v_mul_f32 v22, {f32(1/448)}, v22           ; mean
    v_cvt_pk_bf16_f32 v24, v22, v22
    v_and_b32 v24, 0xffff0000, v24           ; bf16(mean)
    v_sub_f32 v22, v22, v24
    ''')
    for u in range(14):
        A(f'v_pk_add_f32 v[{XF+2*u}:{XF+2*u+1}], v[{XF+2*u}:{XF+2*u+1}], v[24:25] op_sel_hi:[1,0] neg_lo:[0,1] neg_hi:[0,1]')
    A(f'v_pk_mul_f32 v[26:27], v[{XF}:{XF+1}], v[{XF}:{XF+1}]')
    A(f'v_pk_mul_f32 v[10:11], v[{XF+2}:{XF+3}], v[{XF+2}:{XF+3}]')
    for u in range(2, 14, 2):
        A(f'v_pk_fma_f32 v[26:27], v[{XF+2*u}:{XF+2*u+1}], v[{XF+2*u}:{XF+2*u+1}], v[26:27]')
        A(f'v_pk_fma_f32 v[10:11], v[{XF+2*u+2}:{XF+2*u+3}], v[{XF+2*u+2}:{XF+2*u+3}], v[10:11]')
    A('v_pk_add_f32 v[26:27], v[26:27], v[10:11]')
    A('v_add_f32 v26, v26, v27')
    allsum(26)
    A(f'''
    v_mul_f32 v26, {f32(1/448)}, v26
    v_fma_f32 v26, -v22, v22, v26            ; var
    v_max_f32 v26, 0, v26
    v_cvt_pk_bf16_f32 v26, v26, v26
    v_and_b32 v26, 0xffff0000, v26           ; bf16(var)
    v_add_f32 v26, {f32(1e-5)}, v26
    v_cvt_pk_bf16_f32 v26, v26, v26
    v_and_b32 v26, 0xffff0000, v26
    v_sqrt_f32 v26, v26
    v_cvt_pk_bf16_f32 v26, v26, v26
    v_and_b32 v26, 0xffff0000, v26
    v_rcp_f32 v26, v26
    ''')
    NF = 8
    for u in range(8):
        a, b = NF + 2*u, NF + 2*u + 1
        A(f'v_lshlrev_b32 v{a}, 16, v{RA+u}')
        A(f'v_and_b32 v{b}, 0xffff0000, v{RA+u}')
    for u in range(8):
        a, b = NF + 2*u, NF + 2*u + 1
        A(f'v_pk_add_f32 v[{a}:{b}], v[{a}:{b}], v[24:25] op_sel_hi:[1,0] neg_lo:[0,1] neg_hi:[0,1]')
    for u in range(8):
        a, b = NF + 2*u, NF + 2*u + 1
        A(f'v_cvt_pk_bf16_f32 v{b}, v{a}, v{b}')
    for u in range(8):
        a, b = NF + 2*u, NF + 2*u + 1
        A(f'v_lshlrev_b32 v{a}, 16, v{b}')
        A(f'v_and_b32 v{b}, 0xffff0000, v{b}')
    for u in range(8):
        a, b = NF + 2*u, NF + 2*u + 1
        A(f'v_pk_mul_f32 v[{a}:{b}], v[{a}:{b}], v[26:27] op_sel_hi:[1,0]')
    for u in range(8):
        a, b = NF + 2*u, NF + 2*u + 1
        A(f'v_cvt_pk_bf16_f32 v{RA+u}, v{a}, v{b}')
    for T in range(4):
        for u in range(8):
            A(f'v_cndmask_b32 v{XF+8*T+u}, 0, v{RA+u}, s[{8+2*T}:{9+2*T}]')
    def mm(p):
        for ks in range(2):
            for T in range(4):
                for s_ in range(2):
                    acc = AC + 8*p + 4*s_
                    bb = WF + 32*s_ + 16*ks + 4*T
                    c = '0' if (ks == 0 and T == 0) else f'v[{acc}:{acc+3}]'
                    A(f'v_mfma_f32_16x16x32_bf16 v[{acc}:{acc+3}], v[{XF+8*T+4*ks}:{XF+8*T+4*ks+3}], v[{bb}:{bb+3}], {c}')
    hstamp(2)
    A('s_waitcnt lgkmcnt(0)')
    mm(0)
    wreads(152, 0, 8192)
    A(f'''
    s_mov_b32 s58, {0 if forceslow else 1}
    s_movk_i32 s63, {xtries}
    L_xc:
    s_waitcnt vmcnt(0)
    v_cmp_ne_u32 vcc, s46, v130
    s_cbranch_vccz L_xc_done
    global_load_dword v130, v129, s[36:37] sc1
    s_sub_u32 s63, s63, 1
    s_cbranch_scc0 L_xc
    s_mov_b32 s58, 0
    L_xc_done:
    s_waitcnt lgkmcnt(0)
    ''')
    mm(1)
    A(f'''
    s_add_u32 s60, s65, 8192
    s_add_u32 s61, s65, 16384
    s_add_u32 s63, s65, 24576
    v_mov_b32 v20, v28
    v_mov_b32 v21, v131
    v_mov_b32 v22, v28
    v_mov_b32 v23, v131
    s_cmp_eq_u32 s5, 7
    s_cbranch_scc1 L_nopiece
    ''')
    for q in range(4):
        for r in range(4):
            A(f'v_bfi_b32 v{PB+4*r+q}, s47, v{131 if q & 1 else 28}, v{AC+4*q+r}')
    store2([f'buffer_store_dwordx4 v[{PB+4*r}:{PB+4*r+3}], v6, s[40:43], {so} offen' for r, so in enumerate(('s65', 's60', 's61', 's63'))])
    A('L_nopiece:')
    hstamp(3)
    A(f'''
    v_and_b32 v20, s47, v20
    v_and_b32 v21, s47, v21
    v_and_b32 v22, s47, v22
    v_and_b32 v23, s47, v23
    s_mov_b32 s63, {SPIN}
    L_poll7:
    buffer_load_dwordx4 v[8:11], v7, s[40:43], s67 offen sc1
    buffer_load_dwordx4 v[12:15], v7, s[40:43], s67 offen offset:1024 sc1
    buffer_load_dwordx4 v[16:19], v7, s[40:43], s67 offen offset:2048 sc1
    s_mov_b32 exec_hi, 0
    buffer_load_dwordx4 v[20:23], v7, s[40:43], s67 offen offset:3072 sc1
    s_mov_b32 exec_hi, -1
    s_sub_u32 s63, s63, 1
    s_waitcnt vmcnt(0)
    s_cbranch_scc1 L_poll7_done
    v_xor_b32 v24, v8, v28
    v_xor_b32 v25, v9, v131
    ''')
    for r in range(10, 24, 2):
        A(f'v_bitop3_b32 v24, v{r}, v28, v24 bitop3:0xbe')
        A(f'v_bitop3_b32 v25, v{r+1}, v131, v25 bitop3:0xbe')
    A(f'''
    v_or_b32 v24, v24, v25
    v_and_b32 v24, s47, v24
    v_cmp_ne_u32 vcc, 0, v24
    s_cbranch_vccz L_poll7_done
    s_sleep {psleep}
    s_branch L_poll7
    L_poll7_done:
    v_pk_add_f32 v[8:9], v[8:9], v[12:13]
    v_pk_add_f32 v[10:11], v[10:11], v[14:15]
    v_pk_add_f32 v[16:17], v[16:17], v[20:21]
    v_pk_add_f32 v[18:19], v[18:19], v[22:23]
    v_pk_add_f32 v[8:9], v[8:9], v[16:17]
    v_pk_add_f32 v[10:11], v[10:11], v[18:19]
    s_mov_b32 vcc_lo, 0xaaaaaaaa
    s_mov_b32 vcc_hi, 0
    v_permlane32_swap_b32 v8, v10
    v_permlane32_swap_b32 v9, v11
    v_add_f32 v8, v8, v10
    v_add_f32 v9, v9, v11
    v_cvt_pk_bf16_f32 v10, v8, v9
    v_lshlrev_b32 v11, 16, v10
    v_and_b32 v10, 0xffff0000, v10
    v_max_f32 v11, 0, v11
    s_mov_b32 exec_lo, 0
    v_mul_f32 v8, v11, v10
    v_mul_f32 v9, v11, v10
    s_mov_b32 exec_lo, -1
    v_cndmask_b32 v10, v9, v8, vcc
    s_lshr_b32 s60, s5, 1
    s_lshl3_add_u32 s60, s60, s4
    s_lshl_b32 s60, s60, 12
    v_mov_b32_dpp v11, v10 quad_perm:[1,0,3,2] row_mask:0xf bank_mask:0xf
    s_add_u32 s60, s60, {QX}
    s_and_b32 s61, s5, 1
    s_lshl1_add_u32 s61, s6, s61             ; 2b + half
    v_cndmask_b32 v8, v8, v11, vcc
    v_cndmask_b32 v9, v11, v9, vcc
    v_cvt_pk_bf16_f32 v26, v8, v9
    v_mov_b32 v27, v28
    s_lshl_b32 s63, s61, 7
    s_add_u32 s63, s63, {2048-128}
    s_lshl_b32 s61, s61, 8
    v_and_b32 v9, 1, v0
    v_mul_u32_u24 v9, 124, v9
    v_add_u32 v9, s61, v9
    s_mov_b32 exec_lo, 0
    v_mov_b32 v9, s63
    s_mov_b32 exec_lo, -1
    v_lshl_add_u32 v9, v0, 2, v9
    s_mov_b32 exec_hi, 0x55555555
    ''')
    store2([f'buffer_store_dwordx2 v[26:27], v9, s[40:43], s60 offen'])
    A('s_mov_b32 exec_hi, -1')
    hstamp(4)
    A(f'''
    s_mov_b32 s63, {SPIN}
    L_poll3:
    buffer_load_dwordx4 v[8:11], v7, s[40:43], s59 offen sc1
    buffer_load_dwordx4 v[12:15], v7, s[40:43], s59 offen offset:1024 sc1
    buffer_load_dwordx4 v[16:19], v7, s[40:43], s59 offen offset:2048 sc1
    s_sub_u32 s63, s63, 1
    s_waitcnt vmcnt(0)
    s_cbranch_scc1 L_poll3_done
    v_min3_u32 v24, v9, v11, v13
    v_max3_u32 v25, v9, v11, v13
    v_min3_u32 v24, v24, v15, v17
    v_max3_u32 v25, v25, v15, v17
    v_min3_u32 v24, v24, v19, v28
    v_max3_u32 v25, v25, v19, v28
    v_cmp_ne_u32 vcc, v24, v25
    s_cbranch_vccz L_poll3_done
    s_sleep {psleep}
    s_branch L_poll3
    L_poll3_done:
    v_and_b32 v24, 0x138, v29                ; l5*256 + (l&7)*8
    v_and_b32 v25, 8, v0
    v_lshl_add_u32 v24, v25, 4, v24
    v_and_b32 v25, 16, v0
    v_lshl_add_u32 v24, v25, 2, v24
    v_add_u32 v24, {QL}, v24
    v_add_u32 v25, {HL}, v29
    ds_write2_b32 v24, v8, v10 offset0:0 offset1:1
    ds_write2_b32 v24, v12, v14 offset0:128 offset1:129
    ds_write2_b32 v25, v16, v18 offset0:0 offset1:1
    ds_write_b32 v31, v30 offset:{FLQ-MISC}
    ''')
    hstamp(6)
    cntwait(CNT, 'L_wc', 4)
    hstamp(7)
    A(f'''
    v_lshlrev_b32 v8, 3, v2
    v_add_u32 v8, {STW}, v8
    ds_read_b64 v[4:5], v8
    s_lshl4_add_u32 s61, s5, s7
    v_mov_b32 v25, v28
    s_waitcnt lgkmcnt(0)
    v_max_f32_dpp v24, v4, v4 quad_perm:[1,0,3,2] row_mask:0xf bank_mask:0xf
    v_max_f32_dpp v24, v24, v24 quad_perm:[2,3,0,1] row_mask:0xf bank_mask:0xf
    v_max_f32_dpp v24, v24, v24 row_half_mirror row_mask:0xf bank_mask:0xf
    v_sub_f32 v26, v4, v24
    v_mul_f32 v26, {CEXP}, v26
    v_exp_f32 v26, v26
    v_mul_f32 v26, v26, v5
    v_add_f32_dpp v26, v26, v26 quad_perm:[1,0,3,2] row_mask:0xf bank_mask:0xf
    v_add_f32_dpp v26, v26, v26 quad_perm:[2,3,0,1] row_mask:0xf bank_mask:0xf
    v_add_f32_dpp v26, v26, v26 row_half_mirror row_mask:0xf bank_mask:0xf
    s_mov_b64 exec, 0x101
    ''')
    store2([f'buffer_store_dwordx4 v[24:27], v7, s[40:43], s61 offen'])
    A(f'''
    s_mov_b64 exec, 0xffff
    s_mov_b32 s63, {SPIN}
    L_polls:
    buffer_load_dwordx4 v[16:19], v7, s[40:43], s7 offen sc1
    s_sub_u32 s63, s63, 1
    s_waitcnt vmcnt(0)
    s_cbranch_scc1 L_polls_done
    v_min3_u32 v10, v17, v19, v28
    v_max3_u32 v11, v17, v19, v28
    v_cmp_ne_u32 vcc, v10, v11
    s_cbranch_vccz L_polls_done
    s_sleep {psleep}
    s_branch L_polls
    L_polls_done:
    ''')
    hstamp(8)
    A(f'''
    v_max_f32_dpp v10, v16, v16 quad_perm:[1,0,3,2] row_mask:0xf bank_mask:0xf
    v_max_f32_dpp v10, v10, v10 quad_perm:[2,3,0,1] row_mask:0xf bank_mask:0xf
    v_max_f32_dpp v10, v10, v10 row_half_mirror row_mask:0xf bank_mask:0xf
    v_sub_f32 v11, v16, v10
    v_sub_f32 v10, v4, v10
    v_mul_f32 v11, {CEXP}, v11
    v_mul_f32 v10, {CEXP}, v10
    v_exp_f32 v11, v11
    v_exp_f32 v10, v10
    v_mul_f32 v11, v11, v18
    v_add_f32_dpp v11, v11, v11 quad_perm:[1,0,3,2] row_mask:0xf bank_mask:0xf
    v_add_f32_dpp v11, v11, v11 quad_perm:[2,3,0,1] row_mask:0xf bank_mask:0xf
    v_add_f32_dpp v11, v11, v11 row_half_mirror row_mask:0xf bank_mask:0xf
    v_rcp_f32 v11, v11
    v_mul_f32 v10, v10, v11
    v_and_b32 v9, 56, v29
    v_lshrrev_b32 v8, 1, v0
    v_and_b32 v8, 4, v8
    v_add3_u32 v9, v9, v8, v31
    v_subrev_u32 v9, {MISC-FACW}, v9
    ds_write_b32 v9, v10
    s_mov_b64 exec, -1
    v_mov_b32 v24, 1
    v_mov_b32 v25, s58
    v_mov_b32 v26, v28
    ds_write_b128 v31, v[24:27] offset:{FLF-MISC}
    s_cmp_eq_u32 s5, 7
    s_waitcnt lgkmcnt(0)
    s_cbranch_scc1 {'L_end' if pad else 'L_hdone'}
    s_mul_i32 s64, s6, 7
    s_add_u32 s64, s64, s5                   ; 7b + j
    s_lshl_b32 s61, s64, 7
    v_lshlrev_b32 v4, 1, v0
    v_add_u32 v4, s61, v4
    v_add_u32 v5, {XN}, v4
    ds_read_u16 v5, v5                       ; residual x
    s_mov_b64 s[52:53], s[34:35]
    s_movk_i32 s54, 3584
    s_mov_b32 s55, 0x20000
    s_lshl_b32 s60, s64, 12
    s_add_u32 s60, s60, {P2}
    v_add_u32 v6, s60, v29
    v_lshlrev_b32 v7, 2, v0
    v_add_u32 v7, {YL}, v7
    ''')
    for i in range(8):
        A(f's_add_u32 s{18+i}, s4, {i}')
        A(f's_and_b32 s{18+i}, s{18+i}, 7')
        A(f's_lshl_b32 s{18+i}, s{18+i}, 9')
    A(f'''
    s_waitcnt lgkmcnt(0)
    v_lshlrev_b32 v5, 16, v5
    s_barrier                               ; #4
    ''')
    hstamp(9)
    A('s_call_b64 s[14:15], L_others')
    hstamp(10)
    A(f'''
    s_barrier                               ; #5
    ds_read2st64_b32 v[48:49], v7 offset0:0 offset1:1
    ds_read2st64_b32 v[50:51], v7 offset0:2 offset1:3
    ds_read2st64_b32 v[52:53], v7 offset0:4 offset1:5
    ds_read2st64_b32 v[54:55], v7 offset0:6 offset1:7
    s_waitcnt lgkmcnt(2)
    v_add_f32 v48, v48, v49
    v_add_f32 v50, v50, v51
    s_waitcnt lgkmcnt(0)
    v_add_f32 v52, v52, v53
    v_add_f32 v54, v54, v55
    v_add_f32 v48, v48, v50
    v_add_f32 v52, v52, v54
    v_add_f32 v26, v48, v52
    s_cbranch_vccnz L_late
    L_finish:
    v_add_f32 v34, v34, v26
    v_cvt_pk_bf16_f32 v34, v34, v34
    buffer_store_short v34, v4, s[52:55], 0 offen
    ''')
    hstamp(11)
    A(f'''
    s_cmp_lg_u32 s64, 21
    s_cbranch_scc1 L_hdone
    s_mov_b64 exec, 1
    v_mov_b32 v1, {EPOCH}
    buffer_store_dword v28, v1, s[40:43], 0 offen
    L_hdone:
    ''')
    if pad and padat[0] == 'h': dopad('L_padh')
    if stamps:
        hstamp(12)
        A(f'''
        s_mov_b64 exec, 0xffff
        s_lshl_b32 s60, s2, 9
        s_add_u32 s60, s60, {STAMPS+256}
        buffer_store_dwordx2 v[164:165], v29, s[40:43], s60 offen
        ''')
    A(f'''
    L_end:
    s_endpgm
    L_late:
    buffer_store_dwordx2 v[26:27], v6, s[40:43], s18 offen sc1
    s_call_b64 s[14:15], L_others
    s_cbranch_vccz L_finish
    s_call_b64 s[14:15], L_others
    s_cbranch_vccz L_finish
    s_branch L_hdone
    L_others:
    ''')
    for i in range(1, 8):
        A(f'buffer_load_dwordx2 v[{32+2*i}:{33+2*i}], v6, s[40:43], s{18+i} offen sc1')
    A(f'''
    s_waitcnt vmcnt(0)
    v_min3_u32 v12, v35, v37, v39
    v_max3_u32 v13, v35, v37, v39
    v_min3_u32 v12, v12, v41, v43
    v_max3_u32 v13, v13, v41, v43
    v_min3_u32 v12, v12, v45, v47
    v_max3_u32 v13, v13, v45, v47
    v_min_u32 v12, v12, v28
    v_max_u32 v13, v13, v28
    v_cmp_ne_u32 vcc, v12, v13
    v_add_f32 v34, v34, v36
    v_add_f32 v38, v38, v40
    v_add_f32 v42, v42, v44
    v_add_f32 v46, v46, v5
    v_add_f32 v34, v34, v38
    v_add_f32 v42, v42, v46
    v_add_f32 v34, v34, v42
    s_setpc_b64 s[14:15]
    ''')

    A(f'''
    L_stream:
    s_barrier
    s_add_u32 s12, s20, s57
    s_addc_u32 s13, s21, 0
    s_mov_b64 s[14:15], s[10:11]
    s_mov_b64 s[40:41], s[38:39]
    s_mov_b32 s42, {WSN}
    s_mov_b32 s43, s11
    v_mov_b32 v26, {MISC}
    ''')
    if fastmask:
        A(f'''
        s_getreg_b32 s60, hwreg(HW_REG_XCC_ID, 0, 3)
        s_bitcmp1_b32 {fastmask}, s60
        s_cselect_b64 vcc, -1, 0
        ''')
        vm.d = dthr
    if kfirst: hb('K0', 0, thr + 3)
    A(f'''
    s_mov_b64 s[52:53], s[24:25]
    s_mov_b64 s[48:49], s[32:33]
    s_cmp_lt_u32 s5, 7
    s_cselect_b32 s54, {Z(4096*896)}, 0
    s_cselect_b32 s61, s5, 0
    s_lshl_b32 s61, s61, 7
    s_lshl4_add_u32 s64, s4, s3
    s_mul_i32 s64, s64, {32*896}
    s_add_u32 s64, s64, s61
    s_lshl3_add_u32 s65, s4, s3
    s_mul_i32 s65, s65, {32*896}
    s_add_u32 s65, s65, s61
    s_cmp_lt_u32 s7, 7
    s_cselect_b32 s50, {Z(1792*896)}, 0
    s_cselect_b32 s65, s65, 0
    v_and_b32 v1, 15, v0                     ; row
    v_lshrrev_b32 v2, 4, v0                  ; g
    v_and_b32 v3, 7, v0
    v_lshlrev_b32 v3, 1, v3
    v_xor_b32 v3, v3, v2
    v_lshlrev_b32 v3, 4, v3
    v_lshl_add_u32 v3, v1, 9, v3
    v_add_u32 v8, s59, v3
    v_xor_b32 v9, 64, v8
    v_xor_b32 v10, 0x80, v8
    v_xor_b32 v11, 0xc0, v8
    ''')
    def readK(dst, slot):
        for t in range(8):
            A(f'ds_read_b128 v[{dst+4*t}:{dst+4*t+3}], v{vKA[t&3]} offset:{slot*8192 + (t>>2)*256}')
    def readQ(dst, ts):
        for n, t in enumerate(ts):
            A(f'ds_read_b128 v[{dst+4*n}:{dst+4*n+3}], v24 offset:{t*64}')
    def qk(tile, src, qf, ts=range(8)):
        for n, t in enumerate(ts):
            c = '0' if t == 0 else f'v[{Sx+4*tile}:{Sx+4*tile+3}]'
            A(f'v_mfma_f32_16x16x32_bf16 v[{Sx+4*tile}:{Sx+4*tile+3}], v[{src+4*t}:{src+4*t+3}], v[{qf+4*n}:{qf+4*n+3}], {c}')
    def flagwait(off, lab):
        A(f'''
        s_mov_b32 s61, {SPIN*8}
        {lab}:
        ds_read_b32 v1, v26 offset:{off-MISC}
        s_sub_u32 s61, s61, 1
        s_waitcnt lgkmcnt(0)
        s_cbranch_scc1 {lab}_done
        v_readfirstlane_b32 s67, v1
        s_cmp_lg_u32 s67, 0
        s_cbranch_scc1 {lab}_done
        s_sleep 1
        s_branch {lab}
        {lab}_done:
        ''')
    vm.wait('small')
    A(f'''
    s_mov_b64 exec, 1
    ds_add_u32 v26, v28 offset:{CNT0-MISC}
    s_mov_b64 exec, -1
    ''')
    stamp(2)
    if not kfirst: hb('K0', 0)
    A('s_cmp_gt_u32 s3, 1')
    A('s_cbranch_scc1 L_wg_done')
    flagwait(FLG, 'L_wg')
    ha('K1', 1)
    vm.wait('K0')
    readK(KfA, 0)
    A(f'''
    v_lshrrev_b32 v21, 2, v0                 ; row = l/4
    v_and_b32 v22, 7, v21
    v_lshlrev_b32 v22, 5, v22
    v_lshl_add_u32 v22, v21, 9, v22
    v_and_b32 v23, 3, v0
    v_lshl_add_u32 v22, v23, 3, v22
    v_add_u32 v12, s59, v22
    ''')
    for t in range(1, 8):
        A(f'v_xor_b32 v{12+t}, {t*32}, v12')
    A(f'''
    v_and_b32 v24, 1, v0
    v_lshlrev_b32 v25, 6, v24                ; head*64
    v_lshlrev_b32 v24, 9, v24
    v_lshl_add_u32 v24, v2, 4, v24
    v_add_u32 v24, {QL}, v24
    s_lshl_b32 s60, s3, 3
    s_add_u32 s60, s60, {STW}
    v_add_u32 v25, s60, v25
    ''')
    hb('K1', 1)
    A('s_waitcnt lgkmcnt(0)')
    ha('K2', 0)
    vm.wait('K1')
    readK(KfB, 1)
    hb('K2', 0)
    A('s_waitcnt lgkmcnt(0)')
    ha('K3', 1)
    vm.wait('K2')
    if k3:
        readK(KfC, 0)
        hb('K3', 1)
        A('s_waitcnt lgkmcnt(0)')
        ha('V0', 0)
        vm.wait('K3')
        hb('V0', 0)
        stamp(3)
        flagwait(FLQ, 'L_wq')
        stamp(4)
        readQ(Pk, range(4))
        readQ(160, range(4, 6))
        A('s_waitcnt lgkmcnt(2)')
        for tile, src in enumerate((KfA, KfB, KfC)): qk(tile, src, Pk, range(4))
        readQ(Pk, range(6, 8))
        A('s_waitcnt lgkmcnt(2)')
        for tile, src in enumerate((KfA, KfB, KfC)): qk(tile, src, 160, range(4, 6))
        A('s_waitcnt lgkmcnt(0)')
        for tile, src in enumerate((KfA, KfB, KfC)): qk(tile, src, Pk, range(6, 8))
        readK(KfA, 1)
        readQ(KfB, range(8))
        A('s_waitcnt lgkmcnt(0)')
        issue('V1', 1, (0,))
        qk(3, KfA, KfB)
    else:
        hb('K3', 1)
        stamp(3)
        flagwait(FLQ, 'L_wq')
        stamp(4)
        readQ(KfC, range(8))
        A('s_waitcnt lgkmcnt(0)')
        qk(0, KfA, KfC)
        readK(KfA, 0)
        qk(1, KfB, KfC)
        A('s_waitcnt lgkmcnt(0)')
        qk(2, KfA, KfC)
        ha('V0', 0)
        vm.wait('K3')
        readK(KfB, 1)
        issue('V0', 0, (1,))
        A('s_waitcnt lgkmcnt(0)')
        qk(3, KfB, KfC)
    MK = 84
    A(f's_mov_b32 s{MK}, 0x00030003')
    A(f's_mov_b32 s{MK+1}, 0x00030003')
    for u in range(1, 8):
        A(f's_lshl_b64 s[{MK+2*u}:{MK+2*u+1}], s[{MK}:{MK+1}], {2*u}')
    A(f's_mov_b32 s63, {CEXP}')
    for i in range(8):
        a, b = Sx + 2*i, Sx + 2*i + 1
        A(f'v_cvt_pk_bf16_f32 v{b}, v{a}, v{b}')
        A(f'v_lshlrev_b32 v{a}, 16, v{b}')
        A(f'v_and_b32 v{b}, 0xffff0000, v{b}')
    A(f'v_max3_f32 v22, v{Sx}, v{Sx+1}, v{Sx+2}')
    for i in range(3, 15, 2):
        A(f'v_max3_f32 v22, v22, v{Sx+i}, v{Sx+i+1}')
    A(f'''
    v_max_f32 v22, v22, v{Sx+15}
    v_mov_b32 v1, v22
    v_permlane16_swap_b32 v22, v1
    v_max_f32 v22, v22, v1
    v_mov_b32 v1, v22
    v_permlane32_swap_b32 v22, v1
    v_max_f32 v22, v22, v1
    ''')
    for i in range(16):
        A(f'v_sub_f32 v{Sx+i}, v{Sx+i}, v22')
    for i in range(16):
        A(f'v_mul_f32 v{Sx+i}, s63, v{Sx+i}')
    for i in range(16):
        A(f'v_exp_f32 v{Sx+i}, v{Sx+i}')
    for i in range(8):
        A(f'v_cvt_pk_bf16_f32 v{Pk+i}, v{Sx+2*i}, v{Sx+2*i+1}')
    for i in range(8):
        A(f'v_add_f32 v{Sx+i}, v{Sx+i}, v{Sx+8+i}')
    for i in range(4):
        A(f'v_add_f32 v{Sx+i}, v{Sx+i}, v{Sx+4+i}')
    A(f'''
    v_add_f32 v{Sx}, v{Sx}, v{Sx+2}
    v_add_f32 v{Sx+1}, v{Sx+1}, v{Sx+3}
    v_add_f32 v23, v{Sx}, v{Sx+1}
    v_mov_b32 v1, v23
    v_permlane16_swap_b32 v23, v1
    v_add_f32 v23, v23, v1
    v_mov_b32 v1, v23
    v_permlane32_swap_b32 v23, v1
    v_add_f32 v23, v23, v1
    s_mov_b64 exec, 3
    ds_write_b64 v25, v[22:23]
    s_mov_b64 exec, 1
    ds_add_u32 v26, v28 offset:{CNT-MISC}
    s_mov_b64 exec, -1
    ''')
    stamp(5)
    if not k3: ha('V1', 1)
    vWO, vWD, vOW, vOR, vP1s, vP1l, vYW, vHA = 22, 23, 24, 25, 27, 28, 29, 21
    vWA = [8, 9, 10, 11]
    A(f'''
    s_waitcnt lgkmcnt(0)
    s_movk_i32 s61, 896
    v_mad_u32_u24 v{vWD}, v{vR8}, s61, v{vCH}
    v_bfe_u32 v1, v0, 3, 1
    v_lshlrev_b32 v1, 8, v1
    v_and_b32 v3, 16, v0
    v_add_u32 v1, v1, v3
    v_lshrrev_b32 v3, 5, v0
    v_add_u32 v1, v1, v3
    v_mad_u32_u24 v{vWO}, v1, s61, v{vCH}
    v_lshrrev_b32 v1, 2, v0
    v_lshlrev_b32 v1, 7, v1
    v_bfe_u32 v2, v0, 3, 2
    v_lshl_add_u32 v1, v2, 5, v1
    v_and_b32 v2, 3, v0
    v_lshl_add_u32 v1, v2, 3, v1
    v_add_u32 v8, s59, v1
    v_xor_b32 v9, 32, v8
    v_xor_b32 v10, 64, v8
    v_xor_b32 v11, 0x60, v8
    v_lshlrev_b32 v1, 4, v0
    s_lshl_b32 s60, s3, 11
    s_add_u32 s60, s60, {AREA}
    v_add_u32 v{vOW}, s60, v1
    v_lshrrev_b32 v2, 4, v0                  ; g
    v_and_b32 v3, 15, v0                     ; c
    v_lshlrev_b32 v31, 12, v2                ; waves 2g, 2g+1
    v_lshl_add_u32 v31, v3, 4, v31
    s_lshl_b32 s60, s3, 8
    s_add_u32 s61, s60, {AREA}
    v_add_u32 v{vOR}, s61, v31
    s_add_u32 s61, s60, {YL}
    v_lshlrev_b32 v31, 2, v0
    v_add_u32 v{vYW}, s61, v31
    s_lshl3_add_u32 s60, s56, s3
    s_lshl_b32 s60, s60, 11
    s_add_u32 s60, s60, {P1}
    v_add_u32 v{vP1l}, s60, v1
    s_lshl4_add_u32 s61, s5, s60
    v_and_b32 v1, 7, v0
    v_lshlrev_b32 v1, 8, v1                  ; (half*4+g)*256
    v_and_b32 v3, 8, v0
    v_lshl_add_u32 v1, v3, 4, v1             ; ks*128
    v_add_u32 v{vP1s}, s61, v1
    s_lshl_b32 s60, s3, 6
    s_add_u32 s60, s60, {HL}
    v_lshlrev_b32 v1, 3, v2
    v_add_u32 v{vHA}, s60, v1
    v_lshlrev_b32 v31, 4, v2
    v_add_u32 v31, {FACW}, v31
    ''')
    Vf = KfA; Mk = KfB
    WOf, WDf = KfC, Sx
    PL = 64
    def masks(i):
        M = Mk + 16*(i & 1)
        for u in range(8):
            A(f'v_cndmask_b32 v{M+2*u}, 0, v{Pk+2*i}, s[{MK+2*u}:{MK+2*u+1}]')
            A(f'v_cndmask_b32 v{M+2*u+1}, 0, v{Pk+2*i+1}, s[{MK+2*u}:{MK+2*u+1}]')
    def pv(i, slot, mid=None):
        M = Mk + 16*(i & 1)
        for t in range(16):
            A(f'ds_read_b64_tr_b16 v[{Vf+2*t}:{Vf+2*t+1}], v{vVA[t&7]} offset:{slot*8192 + (t>>3)*256}')
        if mid: mid()
        for ii in range(8):
            A(f's_waitcnt lgkmcnt({14-2*ii})')
            acc = Oa + 4*(ii >> 2)
            c = '0' if (i == 0 and (ii & 3) == 0) else f'v[{acc}:{acc+3}]'
            A(f'v_mfma_f32_16x16x32_bf16 v[{acc}:{acc+3}], v[{M+4*(ii&3)}:{M+4*(ii&3)+3}], v[{Vf+4*ii}:{Vf+4*ii+3}], {c}')
    def issueW(p, slot, t=None):
        vm.upto(thr if t is None else t)
        for k in range(4):
            if p < 2:
                A(f's_add_u32 m0, s59, {slot*8192 + (4*p+k)*1024}')
                A(f's_add_u32 s60, s64, {(4*p+k)*2*896}')
                A(f'buffer_load_dwordx4 v{vWO}, s[52:55], s60 offen{wnt} lds')
            else:
                A(f's_add_u32 m0, s59, {slot*8192 + k*1024}')
                A(f's_add_u32 s60, s65, {k*8*896}')
                A(f'buffer_load_dwordx4 v{vWD}, s[48:51], s60 offen{wnt} lds')
        vm.add('WO' if p < 2 else 'WD', 4)
    def readWO(slot):
        for ks in range(2):
            for T in range(4):
                for half in range(2):
                    d = WOf + 16*ks + 4*T + 2*half
                    A(f'ds_read_b64_tr_b16 v[{d}:{d+1}], v{vWA[T]} offset:{slot*8192 + ks*4096 + half*2048}')
    def readWD(slot):
        for T in range(4):
            for half in range(2):
                A(f'ds_read_b64_tr_b16 v[{WDf+4*T+2*half}:{WDf+4*T+2*half+1}], v{vWA[T]} offset:{slot*8192 + half*2048}')
    def pretouch():
        for q in range(2):
            A(f'buffer_load_dwordx4 v[160:163], v{vP1l}, s[40:43], 0 offen offset:{q*1024} sc1')
        vm.add('pre', 2)
    masks(0)
    vm.wait('V0')
    pv(0, 0)
    masks(1)
    hb('V1', 1)
    if not wlast:
        issueW(0, 0)
        vm.wait('V1')
        pv(1, 1)
        issueW(1, 0)
        issueW(2, 1)
        masks(2)
        vm.wait('WO')
        readWO(0)
        A('s_waitcnt lgkmcnt(0)')
        issue('V2', 0, (0,))
        vm.wait('WD')
        readWD(1)
        hb('V2', 0)
        pretouch()
        A('s_waitcnt lgkmcnt(0)')
        ha('V3', 1, thr + 2)
        vm.wait('V2')
        pv(2, 0, lambda: issue('V3', 1, (1,)))
        s3 = 1
    else:
        issueW(2, 0)
        vm.wait('V1')
        pv(1, 1)
        ha('V2', 1)
        masks(2)
        vm.wait('WD')
        readWD(0)
        hb('V2', 1)
        pretouch()
        A('s_waitcnt lgkmcnt(0)')
        ha('V3', 0, thr + 2)
        vm.wait('V2')
        pv(2, 1, lambda: issue('V3', 0, (1,)))
        s3 = 0
    masks(3)
    flagwait(FLF, 'L_wf')
    FC = 160
    A(f'''
    ds_read_b128 v[4:7], v26 offset:{FLF-MISC}
    ds_read2_b64 v[64:67], v{vHA} offset0:0 offset1:4
    s_mov_b32 s{MK}, 0x00010001
    s_mov_b32 s{MK+1}, 0x00010001
    s_mov_b32 s{MK+2}, 0x01000100
    s_mov_b32 s{MK+3}, 0x01000100
    s_mov_b32 s{MK+4}, 0x00ff00ff
    s_mov_b32 s{MK+5}, 0x00ff00ff
    ''')
    vm.wait('pre')
    A(f'''
    ds_read_b128 v[{FC}:{FC+3}], v31
    s_waitcnt lgkmcnt(0)
    v_readfirstlane_b32 s63, v5
    v_mov_b32 v{vTAG}, v6
    v_mov_b32 v5, v6
    ''')
    FA = 144
    for r in range(4):
        A(f'v_cndmask_b32 v{68+r}, 0, v{64+r}, s[{MK}:{MK+1}]')
        A(f'v_cndmask_b32 v{72+r}, 0, v{64+r}, s[{MK+2}:{MK+3}]')
    A(f'''
    v_mfma_f32_16x16x32_bf16 v[{FA}:{FA+3}], v[68:71], v[{WDf}:{WDf+3}], 0
    v_mfma_f32_16x16x32_bf16 v[{FA+4}:{FA+7}], v[68:71], v[{WDf+4}:{WDf+7}], 0
    v_mfma_f32_16x16x32_bf16 v[{FA}:{FA+3}], v[72:75], v[{WDf+8}:{WDf+11}], v[{FA}:{FA+3}]
    v_mfma_f32_16x16x32_bf16 v[{FA+4}:{FA+7}], v[72:75], v[{WDf+12}:{WDf+15}], v[{FA+4}:{FA+7}]
    s_mov_b32 s62, {SPIN}
    ''')
    if wlast:
        issueW(0, 1, wthr)
        if wlast == 1: issueW(1, 1, wthr + 2)
    vm.wait('V3')
    stamp(6)
    pv(3, s3, (lambda: issueW(1, 1, 99)) if wlast == 2 else None)
    A(f'''
    ds_write_b128 v{vOW}, v[{Oa}:{Oa+3}]
    ds_write_b128 v{vOW}, v[{Oa+4}:{Oa+7}] offset:1024
    s_waitcnt lgkmcnt(0)
    ''')
    stamp(7)
    A(f'''
    s_barrier                               ; #4: O partials
    ds_read_b128 v[32:35], v{vOR}
    ds_read_b128 v[36:39], v{vOR} offset:2048
    s_cmp_eq_u32 s63, 0
    s_waitcnt lgkmcnt(1)
    v_mul_f32 v32, v32, v{FC}
    v_mul_f32 v34, v34, v{FC}
    v_mul_f32 v33, v33, v{FC+1}
    v_mul_f32 v35, v35, v{FC+1}
    s_waitcnt lgkmcnt(0)
    v_fmac_f32 v32, v36, v{FC+2}
    v_fmac_f32 v34, v38, v{FC+2}
    v_fmac_f32 v33, v37, v{FC+3}
    v_fmac_f32 v35, v39, v{FC+3}
    v_permlane32_swap_b32 v32, v34
    v_permlane32_swap_b32 v33, v35
    v_add_f32 v36, v32, v34
    v_add_f32 v37, v33, v35
    v_add_f32 v32, v32, v34
    v_add_f32 v33, v33, v35
    v_permlane16_swap_b32 v32, v36
    v_permlane16_swap_b32 v33, v37
    v_add_f32 v32, v32, v36
    v_add_f32 v33, v33, v37
    v_cvt_pk_bf16_f32 v4, v32, v33
    v_cvt_pk_bf16_f32 v6, v32, v33
    v_permlane32_swap_b32 v4, v6
    s_mov_b64 exec, 0xffff
    s_cbranch_scc1 L_slowpub
    buffer_store_dwordx4 v[4:7], v{vP1s}, s[40:43], 0 offen
    L_pubdone:
    s_mov_b64 exec, -1
    ''')
    vm.add('pub', 1)
    stamp(8)
    A(f'''
    s_cmp_eq_u32 s5, 7
    s_cbranch_scc1 L_sdone
    ''')
    def polls():
        for q in range(2):
            A(f'buffer_load_dwordx4 v[{PL+4*q}:{PL+4*q+3}], v{vP1l}, s[40:43], 0 offen offset:{q*1024} sc1')
    if wlast:
        polls(); vm.add('poll', 2)
        vm.wait('WO')
        readWO(1)
        A('s_branch L_poll1_chk')
    A('L_poll1:')
    polls()
    A(f'''
    L_poll1_chk:
    s_sub_u32 s62, s62, 1
    s_waitcnt vmcnt(0)
    s_cbranch_scc1 L_poll1_done
    v_min3_u32 v1, v{PL+1}, v{PL+3}, v{PL+5}
    v_max3_u32 v2, v{PL+1}, v{PL+3}, v{PL+5}
    v_min3_u32 v1, v1, v{PL+7}, v{vTAG}
    v_max3_u32 v2, v2, v{PL+7}, v{vTAG}
    v_cmp_ne_u32 vcc, v1, v2
    s_cbranch_vccnz L_poll1
    L_poll1_done:
    ''')
    stamp(9)
    LO, HI = 80, 88
    def omm(a, ks, T0):
        for x in range(2):
            acc = FA + 4*x
            bb = WOf + 16*ks + 4*(T0 + x)
            A(f'v_mfma_f32_16x16x32_bf16 v[{acc}:{acc+3}], v[{a}:{a+3}], v[{bb}:{bb+3}], v[{acc}:{acc+3}]')
    for q in range(4):
        A(f'v_cndmask_b32 v{LO+q}, 0, v{PL+2*q}, s[{MK+4}:{MK+5}]')
    for q in range(4):
        A(f'v_cndmask_b32 v{HI+4+q}, v{PL+2*q}, 0, s[{MK+4}:{MK+5}]')
    if wlast: A('s_waitcnt lgkmcnt(0)')
    omm(LO, 0, 0)
    for q in range(4):
        A(f'v_mov_b32_dpp v{HI+q}, v{PL+2*q} row_shr:8 row_mask:0xf bank_mask:0xf bound_ctrl:0')
    omm(HI+4, 1, 2)
    for q in range(4):
        A(f'v_mov_b32_dpp v{LO+4+q}, v{PL+2*q} row_shl:8 row_mask:0xf bank_mask:0xf bound_ctrl:0')
    omm(HI, 0, 2)
    omm(LO+4, 1, 0)
    A(f'''
    v_add_f32 v{FA}, v{FA}, v{FA+1}
    v_add_f32 v{FA+2}, v{FA+2}, v{FA+3}
    v_add_f32 v{FA+4}, v{FA+4}, v{FA+5}
    v_add_f32 v{FA+6}, v{FA+6}, v{FA+7}
    v_add_f32 v{FA}, v{FA}, v{FA+2}
    v_add_f32 v{FA+4}, v{FA+4}, v{FA+6}
    v_permlane16_swap_b32 v{FA}, v{FA+4}
    v_add_f32 v{FA}, v{FA}, v{FA+4}
    ds_write_b32 v{vYW}, v{FA}
    s_waitcnt lgkmcnt(0)
    ''')
    stamp(10)
    A('s_barrier                               ; #5')
    if pad and padat[0] == 's': dopad('L_pads')
    A('L_sdone:')
    if stamps:
        A(f's_cmp_eq_u32 s3, 0')
        A('s_cbranch_scc1 L_dump0')
        A(f's_cmp_lg_u32 s3, 7')
        A('s_cbranch_scc1 L_end')
        dump_stamps(16, [sreg(k) for k in range(11)])
        A('s_endpgm')
        A('L_dump0:')
        dump_stamps(0, [sreg(k) for k in range(11)])
    A('s_endpgm')
    A(f'''
    L_slowpub:
    buffer_store_dwordx4 v[4:7], v{vP1s}, s[40:43], 0 offen sc1
    s_branch L_pubdone
    ''')
    A('.section .rodata,"a"')
    A('.p2align 6')
    A(f'.amdhsa_kernel {NAME}_kernel')
    A('.amdhsa_next_free_vgpr 168')
    A('.amdhsa_next_free_sgpr 102')
    A('.amdhsa_accum_offset 168')
    A('.amdhsa_group_segment_fixed_size 0')
    A('.amdhsa_kernarg_size 96')
    A('.amdhsa_user_sgpr_count 2')
    A('.amdhsa_user_sgpr_kernarg_segment_ptr 1')
    A('.amdhsa_system_sgpr_workgroup_id_x 1')
    A('.end_amdhsa_kernel')
    return top + A.finalize()

if __name__ == '__main__':
    out = sys.argv[1] if len(sys.argv) > 1 else f'cdna_kernels/{NAME}.s'
    kw = eval('dict(%s)' % sys.argv[2]) if len(sys.argv) > 2 else {}
    open(out, 'w').write(gen(**kw))
    print('wrote', out)
```

```python
import sys, struct, math
from asmlib import Asm
NAME = 'parallel_sum__sliding_block_cached__glu_gated_reglu__decode'

def f32(x): return '0x%08x' % struct.unpack('<I', struct.pack('<f', x))[0]

AREA = 131072
TAB = AREA + 16384
STW = TAB
FACW = TAB + 128
MISC = TAB + 256
FLQ = MISC
CNT = MISC + 4
FLG = MISC + 8
CNT0 = MISC + 12
FLF = MISC + 16
HL = TAB + 512
QL = TAB + 1024
XN = TAB + 2048
YL = XN
LDS_TOTAL = XN + 4096
EPOCH = 0
ST = 0x1000
QX = 0x4000
P2 = 0x24000
P1 = 0x40000
QP = 0xC0000
WS_END = 0x1C0000
STAMPS = 0x300000
SPIN = 400000
CEXP = f32(math.log2(math.e)/16)

class VM:
    def __init__(self, A): self.A = A; self.q = []
    def add(self, name, n): self.q.append((name, n))
    def wait(self, name, extra=''):
        idx = max(i for i, (nm, _) in enumerate(self.q) if nm == name)
        n = sum(c for _, c in self.q[idx+1:])
        self.q = self.q[idx+1:]
        self.A(f's_waitcnt vmcnt({n}){extra}')
    d = 0; nl = 0
    def upto(self, n):
        tot = sum(c for _, c in self.q)
        if tot > n: self.A(f's_waitcnt vmcnt({n})')
        if self.d and n < 50 and tot > max(n - self.d, 0):
            self.nl += 1
            self.A(f's_cbranch_vccz L_pc{self.nl}\ns_waitcnt vmcnt({max(n - self.d, 0)})\nL_pc{self.nl}:')

def gen(stamps=0, wnt='', snt=' nt', kvnt=' nt', forceslow=False, now=False, pad=0, padat=None, thr=2,
        hpre=True, psleep=4, xtries=12, sync=False, xs=('s3', 0), light=False, kfirst=False, k3=True, wlast=1, hs=None, wthr=4, fastmask=0, dthr=1, exempt=7):
    A = Asm()
    def sreg(k): return 68 + 2*k if k < 3 else 16 + 2*(k-3)
    def stamp(k):
        if stamps and (not light or k in (0, 6, 10)): A(f's_memrealtime s[{sreg(k)}:{sreg(k)+1}]')
        if padat == f's{k}': A('s_memrealtime s[100:101]')
    def hstamp(k):
        if stamps and (not light or k in (6, 12)):
            A(f's_memrealtime s[100:101]\ns_waitcnt lgkmcnt(0)\nv_writelane_b32 v164, s100, {k}\nv_writelane_b32 v165, s101, {k}')
        if padat == f'h{k}': A('s_memrealtime s[100:101]\ns_waitcnt lgkmcnt(0)')
    def dopad(lab):
        A(f'''
        {lab}:
        s_memrealtime s[98:99]
        s_waitcnt lgkmcnt(0)
        s_sub_u32 s98, s98, s100
        s_cmp_lt_u32 s98, {pad}
        s_cbranch_scc1 {lab}
        ''')
    def dump_stamps(slot0, regs_):
        A('s_waitcnt vmcnt(0) lgkmcnt(0)')
        A('s_mov_b64 exec, 1')
        A('s_lshl_b32 s60, s2, 9')
        A(f's_add_u32 s60, s60, {STAMPS}')
        A('v_mov_b32 v1, s60')
        for k, r in enumerate(regs_):
            A(f'v_mov_b32 v2, s{r}')
            A(f'v_mov_b32 v3, s{r+1}')
            A(f'buffer_store_dwordx2 v[2:3], v1, s[40:43], 0 offen offset:{8*(slot0+k)}')
    WSN = 0x400000 if stamps else WS_END
    Z = (lambda n: 0) if now else (lambda n: n)
    hdr = open('cdna_kernels/%s.s.ref' % NAME).read().split('; Override launch geometry')[0]
    top = hdr + f'; @launch grid=(256,1,1) block=(576,1,1) lds={LDS_TOTAL}\n'
    A('.amdgcn_target "amdgcn-amd-amdhsa--gfx950"')
    A('.text')
    A(f'.globl {NAME}_kernel')
    A('.p2align 8')
    A(f'.type {NAME}_kernel,@function')
    A(f'{NAME}_kernel:')
    if sync:
        A('''
        s_memrealtime s[4:5]
        s_waitcnt lgkmcnt(0)
        s_add_u32 s6, s4, 4096+600
        s_and_b32 s6, s6, -4096
        L_sync:
        s_memrealtime s[4:5]
        s_waitcnt lgkmcnt(0)
        s_sub_u32 s4, s4, s6
        s_cmp_lt_i32 s4, 0
        s_cbranch_scc1 L_sync
        s_branch L_go
        .p2align 10
        L_go:
        ''')
    stamp(0)
    vm = VM(A)
    vD = [4, 5, 6, 7]; vKA = [8, 9, 10, 11]; vVA = list(range(12, 20)); vTAG = 20
    KfA, KfB, KfC, Sx, Pk, Oa = 32, 64, 96, 128, 144, 152
    vCH, vR8 = 30, 31
    KS, VS = 's[8:11]', 's[12:15]'
    def issue(name, slot, halves=(0, 1)):
        srd = KS if name[0] == 'K' else VS
        i = int(name[1])
        for half in halves:
            first = (name == 'K0' and half == 0)
            if not first:
                A(f's_xor_b32 m0, {"s74" if hs else "s59"}, {slot*8192 + half*4096}')
                A(f's_xor_b32 s60, s58, {i*524288 + half*4096}')
            for q in range(4):
                A(f'buffer_load_dwordx4 v{vD[q]}, {srd}, {"s58" if first else "s60"} offen offset:{q*1024}{kvnt} lds')
            vm.add(name, 4)
    def ha(name, slot, t=None):
        vm.upto(thr if t is None else t); issue(name, slot, (0,))
    def hb(name, slot, t=None):
        vm.upto(thr if t is None else t); issue(name, slot, (1,))
    A(f'''
    s_load_dwordx16 s[16:31], s[0:1], 0
    s_load_dwordx8 s[32:39], s[0:1], 64
    v_readfirstlane_b32 s3, v0
    s_cmpk_ge_u32 s2, 256
    s_cbranch_scc1 L_end
    v_and_b32 v0, 63, v0                     ; lane
    s_lshr_b32 s3, s3, 6                     ; wave
    s_and_b32 s4, s2, 7                      ; hkv
    s_bfe_u32 s5, s2, 0x30003                ; j
    s_lshr_b32 s6, s2, 6                     ; b
    s_lshl3_add_u32 s56, s6, s4
    s_cmp_eq_u32 s3, 8
    s_cbranch_scc1 L_helper
    v_lshrrev_b32 v1, 4, v0
    v_and_b32 v1, 2, v1
    v_xor_b32 v1, v1, v0
    v_lshlrev_b32 v4, 4, v1
    v_xor_b32 v5, 64, v4
    v_xor_b32 v6, 0x80, v4
    v_xor_b32 v7, 64, v6
    s_lshl3_add_u32 s66, s5, s3              ; 8j + w
    s_lshl_b32 s57, s56, 23
    s_add_u32 s57, s57, {12288*512}
    s_lshl_b32 s59, s3, 14
    s_lshl_b32 s58, s66, 13
    {f's_bfe_u32 s62, {xs[0]}, {0x20000 + xs[1]}' if xs else ''}
    {'s_lshl_b32 s62, s62, 19' if xs else ''}
    {'s_or_b32 s58, s58, s62' if xs else ''}
    {f's_bfe_u32 s62, {hs[0]}, {0x10000 + hs[1]}' if hs else ''}
    {'s_lshl_b32 s62, s62, 12' if hs else ''}
    {'s_or_b32 s58, s58, s62' if hs else ''}
    {'s_or_b32 s74, s59, s62' if hs else ''}
    s_mov_b32 s10, 0x200000
    s_mov_b32 s11, 0x20000
    ''')
    saddr = f'''
    v_bfe_u32 v2, v0, 4, 2
    v_lshlrev_b32 v2, 1, v2
    v_and_b32 v3, 7, v0
    v_xor_b32 v2, v2, v3
    v_lshlrev_b32 v{vCH}, 4, v2
    v_lshrrev_b32 v{vR8}, 3, v0
    v_lshl_add_u32 v21, v{vR8}, 13, v{vCH}
    s_movk_i32 s46, 3584
    v_mad_u32_u24 v23, v{vR8}, s46, v{vCH}
    s_lshl_b32 s65, s3, 9
    v_lshl_add_u32 v22, v0, 4, s65
    s_lshl2_add_u32 s67, s4, s6              ; 4hkv + b
    s_lshl_b32 s63, s67, 7
    s_mul_i32 s64, s66, {8*3584}
    s_add_u32 s63, s63, s64
    s_lshl_b32 s67, s67, 8
    s_lshl_b32 s64, s66, 16
    s_add_u32 s67, s67, s64
    s_lshl_b32 s62, s3, 10
    s_mov_b32 s47, s11
    s_mov_b32 s51, s11
    s_mov_b32 s55, s11
    s_cmp_lt_u32 s5, 7
    s_cselect_b32 s50, {Z(448*8192)}, 0
    s_cselect_b32 s67, s67, 0
    s_add_u32 s61, s67, 128
    s_max_u32 s7, s4, s5
    s_cmp_lt_u32 s7, 7
    s_cselect_b32 s54, {Z(448*3584)}, 0
    s_cselect_b32 s63, s63, 0
    '''
    if not kfirst: A(saddr)
    A(f'''
    s_mov_b32 m0, {'s74' if hs else 's59'}
    {'s_memrealtime s[100:101]' if padat == 'sa' else ''}
    s_waitcnt lgkmcnt(0)
    {'s_memrealtime s[100:101]' if padat == 'sb' else ''}
    s_add_u32 s8, s18, s57
    s_addc_u32 s9, s19, 0
    ''')
    if kfirst:
        issue('K0', 0, (0,))
        A(saddr)
    A(f'''
    s_add_u32 m0, s65, {XN}
    s_mov_b32 exec_hi, 0
    s_mov_b64 s[44:45], s[16:17]
    buffer_load_dwordx4 v22, s[44:47], 0 offen lds
    s_mov_b32 exec_hi, -1
    s_add_u32 m0, s62, 8192
    s_mov_b64 s[48:49], s[22:23]
    buffer_load_dwordx4 v21, s[48:51], s67 offen{snt} lds
    s_add_u32 m0, s62, {16384+8192}
    s_mov_b64 s[52:53], s[28:29]
    buffer_load_dwordx4 v21, s[48:51], s61 offen{snt} lds
    s_add_u32 m0, s62, {AREA}
    v_mov_b32 v28, 1
    buffer_load_dwordx4 v23, s[52:55], s63 offen{snt} lds
    s_add_u32 m0, s62, {AREA+8192}
    s_mov_b64 s[52:53], s[30:31]
    buffer_load_dwordx4 v23, s[52:55], s63 offen{snt} lds
    ''')
    vm.add('small', 5)
    if not kfirst:
        A(f's_mov_b32 m0, {"s74" if hs else "s59"}')
        issue('K0', 0, (0,))
    stamp(1)
    A('s_branch L_stream')

    XR = 8
    XF = 32
    RA = 156
    WF = 64
    AC = 132
    PB = 64
    nstore = [0]
    def store2(ins):
        n = nstore[0]; nstore[0] += 1
        A(f's_cmp_eq_u32 s58, 0\ns_cbranch_scc1 L_ss{n}')
        for i in ins: A(i)
        A(f's_branch L_sd{n}\nL_ss{n}:')
        for i in ins: A(i + ' sc1')
        A(f'L_sd{n}:')
    def cntwait(off, lab, sl):
        A(f'''
        s_mov_b32 s63, {SPIN*8}
        {lab}:
        ds_read_b32 v9, v31 offset:{off-MISC}
        s_sub_u32 s63, s63, 1
        s_waitcnt lgkmcnt(0)
        s_cbranch_scc1 {lab}_done
        v_cmp_eq_u32 vcc, 8, v9
        s_cbranch_vccnz {lab}_done
        s_sleep {sl}
        s_branch {lab}
        {lab}_done:
        ''')
    A(f'''
    L_helper:
    s_setprio 3
    s_getreg_b32 s57, hwreg(HW_REG_XCC_ID, 0, 7)
    s_lshl_b32 s66, s4, 5
    s_lshr_b32 s61, s2, 3
    s_add_u32 s61, s61, s66
    s_add_u32 s57, s57, 1
    v_mov_b32 v9, s61
    v_mov_b32 v10, s57
    v_mov_b32 v31, {MISC}
    v_lshl_add_u32 v1, v0, 2, v31
    v_mov_b32 v2, 0
    ds_write_b32 v1, v2                      ; flags = 0
    s_mov_b64 exec, 1
    s_waitcnt lgkmcnt(0)
    global_store_byte v9, v10, s[36:37]
    s_load_dword s62, s[38:39], {EPOCH}
    s_mov_b64 exec, -1
    ''')
    if stamps: A('v_mov_b32 v164, 0\nv_mov_b32 v165, 0')
    A(f'''
    s_mov_b64 s[40:41], s[38:39]
    s_mov_b32 s42, {WSN}
    s_mov_b32 s43, 0x20000
    s_lshl_b32 s64, s56, 15
    s_add_u32 s64, s64, {QP}
    s_lshl_b32 s65, s5, 9
    s_add_u32 s65, s65, s64
    s_lshl_b32 s67, s5, 12
    s_add_u32 s67, s67, s64
    s_lshl_b32 s59, s56, 12
    s_add_u32 s59, s59, {QX}
    s_lshl_b32 s7, s56, 8
    s_add_u32 s7, s7, {ST}
    ''')
    if hpre:
        A(f'''
        v_lshlrev_b32 v8, 7, v0
        s_mov_b64 exec, 0xfffffff
        buffer_load_dword v128, v8, s[40:43], s67 offen sc1
        s_mov_b64 exec, 0xffffff
        buffer_load_dword v128, v8, s[40:43], s59 offen sc1
        s_mov_b64 exec, 3
        buffer_load_dword v128, v8, s[40:43], s7 offen sc1
        s_mov_b64 exec, -1
        ''')
    A(f'''
    v_lshrrev_b32 v1, 4, v0                  ; g
    v_and_b32 v2, 15, v0
    v_and_b32 v3, 3, v0
    v_mul_u32_u24 v3, 896, v3
    v_add_u32 v3, {XN}, v3                   ; row of batch l%4
    v_lshl_add_u32 v4, v1, 3, v3             ; + g*8
    v_and_b32 v5, 60, v0
    v_lshl_add_u32 v3, v5, 1, v3             ; + (l/4)*8
    s_min_u32 s60, s5, 6
    s_lshl_b32 s60, s60, 7
    v_add_u32 v5, s60, v4
    v_lshrrev_b32 v7, 2, v0
    v_lshlrev_b32 v7, 7, v7
    v_bfe_u32 v6, v0, 3, 2
    v_lshl_add_u32 v7, v6, 5, v7
    v_and_b32 v6, 3, v0
    v_lshl_add_u32 v148, v6, 3, v7
    v_xor_b32 v149, 32, v148
    v_xor_b32 v150, 64, v148
    v_xor_b32 v151, 0x60, v148
    v_add_u32 v152, {AREA}, v148
    v_add_u32 v153, {AREA}, v149
    v_add_u32 v154, {AREA}, v150
    v_add_u32 v155, {AREA}, v151
    s_mov_b32 s8, 0x000f000f
    s_mov_b32 s9, s8
    s_lshl_b64 s[10:11], s[8:9], 4
    s_lshl_b64 s[12:13], s[8:9], 8
    s_lshl_b64 s[14:15], s[8:9], 12
    v_mov_b32 v30, 1
    v_lshlrev_b32 v29, 3, v0                 ; lane*8
    v_lshlrev_b32 v7, 4, v0                  ; lane*16
    v_and_b32 v6, 0x1f0, v7
    v_and_b32 v10, 32, v0
    v_lshl_add_u32 v6, v10, 7, v6
    v_and_b32 v129, 7, v0
    v_lshlrev_b32 v129, 2, v129
    v_add_u32 v129, s66, v129
    s_mul_i32 s46, s57, 0x01010101
    global_load_dword v130, v129, s[36:37] sc1
    s_barrier
    ''')
    hstamp(0)
    cntwait(CNT0, 'L_w0', 1)
    hstamp(1)
    def wreads(areg, base, stride):
        for s_ in range(2):
            for ks in range(2):
                for T in range(4):
                    for half in range(2):
                        d = WF + 32*s_ + 16*ks + 4*T + 2*half
                        A(f'ds_read_b64_tr_b16 v[{d}:{d+1}], v{areg+T} offset:{base + s_*stride + ks*4096 + half*2048}')
    for u in range(7):
        A(f'ds_read_b64 v[{XR+2*u}:{XR+2*u+1}], v3 offset:{128*u}')
    for ks in range(2):
        A(f'ds_read2_b64 v[{RA+4*ks}:{RA+4*ks+3}], v5 offset0:{8*ks} offset1:{8*ks+4}')
    wreads(148, 8192, 16384)
    A(f'''
    ds_write_b32 v31, v30 offset:{FLG-MISC}
    s_mul_i32 s62, s62, 1664525
    s_add_u32 s62, s62, 1013904223
    s_lshr_b32 s60, s62, 8
    v_mov_b32 v28, s62
    v_mov_b32 v131, s60
    s_movk_i32 s47, 0xff
    s_waitcnt lgkmcnt(15)
    ''')
    for u in range(14):
        A(f'v_lshlrev_b32 v{XF+2*u}, 16, v{XR+u}')
        A(f'v_and_b32 v{XF+2*u+1}, 0xffff0000, v{XR+u}')
    def allsum(r):
        A(f'''
        v_add_f32_dpp v{r}, v{r}, v{r} row_ror:4 row_mask:0xf bank_mask:0xf
        v_add_f32_dpp v{r}, v{r}, v{r} row_ror:8 row_mask:0xf bank_mask:0xf
        v_mov_b32 v8, v{r}
        v_permlane16_swap_b32 v{r}, v8
        v_add_f32 v{r}, v{r}, v8
        v_mov_b32 v8, v{r}
        v_permlane32_swap_b32 v{r}, v8
        v_add_f32 v{r}, v{r}, v8
        ''')
    A(f'v_pk_add_f32 v[22:23], v[{XF}:{XF+1}], v[{XF+2}:{XF+3}]')
    A(f'v_pk_add_f32 v[26:27], v[{XF+4}:{XF+5}], v[{XF+6}:{XF+7}]')
    for u in range(4, 14, 2):
        A(f'v_pk_add_f32 v[22:23], v[22:23], v[{XF+2*u}:{XF+2*u+1}]')
        A(f'v_pk_add_f32 v[26:27], v[26:27], v[{XF+2*u+2}:{XF+2*u+3}]')
    A('v_pk_add_f32 v[22:23], v[22:23], v[26:27]')
    A('v_add_f32 v22, v22, v23')
    allsum(22)
    A(f'''
    v_mul_f32 v22, {f32(1/448)}, v22           ; mean
    v_cvt_pk_bf16_f32 v24, v22, v22
    v_and_b32 v24, 0xffff0000, v24           ; bf16(mean)
    v_sub_f32 v22, v22, v24
    ''')
    for u in range(14):
        A(f'v_pk_add_f32 v[{XF+2*u}:{XF+2*u+1}], v[{XF+2*u}:{XF+2*u+1}], v[24:25] op_sel_hi:[1,0] neg_lo:[0,1] neg_hi:[0,1]')
    A(f'v_pk_mul_f32 v[26:27], v[{XF}:{XF+1}], v[{XF}:{XF+1}]')
    A(f'v_pk_mul_f32 v[10:11], v[{XF+2}:{XF+3}], v[{XF+2}:{XF+3}]')
    for u in range(2, 14, 2):
        A(f'v_pk_fma_f32 v[26:27], v[{XF+2*u}:{XF+2*u+1}], v[{XF+2*u}:{XF+2*u+1}], v[26:27]')
        A(f'v_pk_fma_f32 v[10:11], v[{XF+2*u+2}:{XF+2*u+3}], v[{XF+2*u+2}:{XF+2*u+3}], v[10:11]')
    A('v_pk_add_f32 v[26:27], v[26:27], v[10:11]')
    A('v_add_f32 v26, v26, v27')
    allsum(26)
    A(f'''
    v_mul_f32 v26, {f32(1/448)}, v26
    v_fma_f32 v26, -v22, v22, v26            ; var
    v_max_f32 v26, 0, v26
    v_cvt_pk_bf16_f32 v26, v26, v26
    v_and_b32 v26, 0xffff0000, v26           ; bf16(var)
    v_add_f32 v26, {f32(1e-5)}, v26
    v_cvt_pk_bf16_f32 v26, v26, v26
    v_and_b32 v26, 0xffff0000, v26
    v_sqrt_f32 v26, v26
    v_cvt_pk_bf16_f32 v26, v26, v26
    v_and_b32 v26, 0xffff0000, v26
    v_rcp_f32 v26, v26
    ''')
    NF = 8
    for u in range(8):
        a, b = NF + 2*u, NF + 2*u + 1
        A(f'v_lshlrev_b32 v{a}, 16, v{RA+u}')
        A(f'v_and_b32 v{b}, 0xffff0000, v{RA+u}')
    for u in range(8):
        a, b = NF + 2*u, NF + 2*u + 1
        A(f'v_pk_add_f32 v[{a}:{b}], v[{a}:{b}], v[24:25] op_sel_hi:[1,0] neg_lo:[0,1] neg_hi:[0,1]')
    for u in range(8):
        a, b = NF + 2*u, NF + 2*u + 1
        A(f'v_cvt_pk_bf16_f32 v{b}, v{a}, v{b}')
    for u in range(8):
        a, b = NF + 2*u, NF + 2*u + 1
        A(f'v_lshlrev_b32 v{a}, 16, v{b}')
        A(f'v_and_b32 v{b}, 0xffff0000, v{b}')
    for u in range(8):
        a, b = NF + 2*u, NF + 2*u + 1
        A(f'v_pk_mul_f32 v[{a}:{b}], v[{a}:{b}], v[26:27] op_sel_hi:[1,0]')
    for u in range(8):
        a, b = NF + 2*u, NF + 2*u + 1
        A(f'v_cvt_pk_bf16_f32 v{RA+u}, v{a}, v{b}')
    for T in range(4):
        for u in range(8):
            A(f'v_cndmask_b32 v{XF+8*T+u}, 0, v{RA+u}, s[{8+2*T}:{9+2*T}]')
    def mm(p):
        for ks in range(2):
            for T in range(4):
                for s_ in range(2):
                    acc = AC + 8*p + 4*s_
                    bb = WF + 32*s_ + 16*ks + 4*T
                    c = '0' if (ks == 0 and T == 0) else f'v[{acc}:{acc+3}]'
                    A(f'v_mfma_f32_16x16x32_bf16 v[{acc}:{acc+3}], v[{XF+8*T+4*ks}:{XF+8*T+4*ks+3}], v[{bb}:{bb+3}], {c}')
    hstamp(2)
    A('s_waitcnt lgkmcnt(0)')
    mm(0)
    wreads(152, 0, 8192)
    A(f'''
    s_mov_b32 s58, {0 if forceslow else 1}
    s_movk_i32 s63, {xtries}
    L_xc:
    s_waitcnt vmcnt(0)
    v_cmp_ne_u32 vcc, s46, v130
    s_cbranch_vccz L_xc_done
    global_load_dword v130, v129, s[36:37] sc1
    s_sub_u32 s63, s63, 1
    s_cbranch_scc0 L_xc
    s_mov_b32 s58, 0
    L_xc_done:
    s_waitcnt lgkmcnt(0)
    ''')
    mm(1)
    A(f'''
    s_add_u32 s60, s65, 8192
    s_add_u32 s61, s65, 16384
    s_add_u32 s63, s65, 24576
    v_mov_b32 v20, v28
    v_mov_b32 v21, v131
    v_mov_b32 v22, v28
    v_mov_b32 v23, v131
    s_cmp_eq_u32 s5, 7
    s_cbranch_scc1 L_nopiece
    ''')
    for q in range(4):
        for r in range(4):
            A(f'v_bfi_b32 v{PB+4*r+q}, s47, v{131 if q & 1 else 28}, v{AC+4*q+r}')
    store2([f'buffer_store_dwordx4 v[{PB+4*r}:{PB+4*r+3}], v6, s[40:43], {so} offen' for r, so in enumerate(('s65', 's60', 's61', 's63'))])
    A('L_nopiece:')
    hstamp(3)
    A(f'''
    v_and_b32 v20, s47, v20
    v_and_b32 v21, s47, v21
    v_and_b32 v22, s47, v22
    v_and_b32 v23, s47, v23
    s_mov_b32 s63, {SPIN}
    L_poll7:
    buffer_load_dwordx4 v[8:11], v7, s[40:43], s67 offen sc1
    buffer_load_dwordx4 v[12:15], v7, s[40:43], s67 offen offset:1024 sc1
    buffer_load_dwordx4 v[16:19], v7, s[40:43], s67 offen offset:2048 sc1
    s_mov_b32 exec_hi, 0
    buffer_load_dwordx4 v[20:23], v7, s[40:43], s67 offen offset:3072 sc1
    s_mov_b32 exec_hi, -1
    s_sub_u32 s63, s63, 1
    s_waitcnt vmcnt(0)
    s_cbranch_scc1 L_poll7_done
    v_xor_b32 v24, v8, v28
    v_xor_b32 v25, v9, v131
    ''')
    for r in range(10, 24, 2):
        A(f'v_bitop3_b32 v24, v{r}, v28, v24 bitop3:0xbe')
        A(f'v_bitop3_b32 v25, v{r+1}, v131, v25 bitop3:0xbe')
    A(f'''
    v_or_b32 v24, v24, v25
    v_and_b32 v24, s47, v24
    v_cmp_ne_u32 vcc, 0, v24
    s_cbranch_vccz L_poll7_done
    s_sleep {psleep}
    s_branch L_poll7
    L_poll7_done:
    v_pk_add_f32 v[8:9], v[8:9], v[12:13]
    v_pk_add_f32 v[10:11], v[10:11], v[14:15]
    v_pk_add_f32 v[16:17], v[16:17], v[20:21]
    v_pk_add_f32 v[18:19], v[18:19], v[22:23]
    v_pk_add_f32 v[8:9], v[8:9], v[16:17]
    v_pk_add_f32 v[10:11], v[10:11], v[18:19]
    s_mov_b32 vcc_lo, 0xaaaaaaaa
    s_mov_b32 vcc_hi, 0
    v_permlane32_swap_b32 v8, v10
    v_permlane32_swap_b32 v9, v11
    v_add_f32 v8, v8, v10
    v_add_f32 v9, v9, v11
    v_cvt_pk_bf16_f32 v10, v8, v9
    v_lshlrev_b32 v11, 16, v10
    v_and_b32 v10, 0xffff0000, v10
    v_max_f32 v11, 0, v11
    s_mov_b32 exec_lo, 0
    v_mul_f32 v8, v11, v10
    v_mul_f32 v9, v11, v10
    s_mov_b32 exec_lo, -1
    v_cndmask_b32 v10, v9, v8, vcc
    s_lshr_b32 s60, s5, 1
    s_lshl3_add_u32 s60, s60, s4
    s_lshl_b32 s60, s60, 12
    v_mov_b32_dpp v11, v10 quad_perm:[1,0,3,2] row_mask:0xf bank_mask:0xf
    s_add_u32 s60, s60, {QX}
    s_and_b32 s61, s5, 1
    s_lshl1_add_u32 s61, s6, s61             ; 2b + half
    v_cndmask_b32 v8, v8, v11, vcc
    v_cndmask_b32 v9, v11, v9, vcc
    v_cvt_pk_bf16_f32 v26, v8, v9
    v_mov_b32 v27, v28
    s_lshl_b32 s63, s61, 7
    s_add_u32 s63, s63, {2048-128}
    s_lshl_b32 s61, s61, 8
    v_and_b32 v9, 1, v0
    v_mul_u32_u24 v9, 124, v9
    v_add_u32 v9, s61, v9
    s_mov_b32 exec_lo, 0
    v_mov_b32 v9, s63
    s_mov_b32 exec_lo, -1
    v_lshl_add_u32 v9, v0, 2, v9
    s_mov_b32 exec_hi, 0x55555555
    ''')
    store2([f'buffer_store_dwordx2 v[26:27], v9, s[40:43], s60 offen'])
    A('s_mov_b32 exec_hi, -1')
    hstamp(4)
    A(f'''
    s_mov_b32 s63, {SPIN}
    L_poll3:
    buffer_load_dwordx4 v[8:11], v7, s[40:43], s59 offen sc1
    buffer_load_dwordx4 v[12:15], v7, s[40:43], s59 offen offset:1024 sc1
    buffer_load_dwordx4 v[16:19], v7, s[40:43], s59 offen offset:2048 sc1
    s_sub_u32 s63, s63, 1
    s_waitcnt vmcnt(0)
    s_cbranch_scc1 L_poll3_done
    v_min3_u32 v24, v9, v11, v13
    v_max3_u32 v25, v9, v11, v13
    v_min3_u32 v24, v24, v15, v17
    v_max3_u32 v25, v25, v15, v17
    v_min3_u32 v24, v24, v19, v28
    v_max3_u32 v25, v25, v19, v28
    v_cmp_ne_u32 vcc, v24, v25
    s_cbranch_vccz L_poll3_done
    s_sleep {psleep}
    s_branch L_poll3
    L_poll3_done:
    v_and_b32 v24, 0x138, v29                ; l5*256 + (l&7)*8
    v_and_b32 v25, 8, v0
    v_lshl_add_u32 v24, v25, 4, v24
    v_and_b32 v25, 16, v0
    v_lshl_add_u32 v24, v25, 2, v24
    v_add_u32 v24, {QL}, v24
    v_add_u32 v25, {HL}, v29
    ds_write2_b32 v24, v8, v10 offset0:0 offset1:1
    ds_write2_b32 v24, v12, v14 offset0:128 offset1:129
    ds_write2_b32 v25, v16, v18 offset0:0 offset1:1
    ds_write_b32 v31, v30 offset:{FLQ-MISC}
    ''')
    hstamp(6)
    cntwait(CNT, 'L_wc', 4)
    hstamp(7)
    A(f'''
    v_lshlrev_b32 v8, 3, v2
    v_add_u32 v8, {STW}, v8
    ds_read_b64 v[4:5], v8
    s_lshl4_add_u32 s61, s5, s7
    v_mov_b32 v25, v28
    s_waitcnt lgkmcnt(0)
    v_max_f32_dpp v24, v4, v4 quad_perm:[1,0,3,2] row_mask:0xf bank_mask:0xf
    v_max_f32_dpp v24, v24, v24 quad_perm:[2,3,0,1] row_mask:0xf bank_mask:0xf
    v_max_f32_dpp v24, v24, v24 row_half_mirror row_mask:0xf bank_mask:0xf
    v_sub_f32 v26, v4, v24
    v_mul_f32 v26, {CEXP}, v26
    v_exp_f32 v26, v26
    v_mul_f32 v26, v26, v5
    v_add_f32_dpp v26, v26, v26 quad_perm:[1,0,3,2] row_mask:0xf bank_mask:0xf
    v_add_f32_dpp v26, v26, v26 quad_perm:[2,3,0,1] row_mask:0xf bank_mask:0xf
    v_add_f32_dpp v26, v26, v26 row_half_mirror row_mask:0xf bank_mask:0xf
    s_mov_b64 exec, 0x101
    ''')
    store2([f'buffer_store_dwordx4 v[24:27], v7, s[40:43], s61 offen'])
    A(f'''
    s_mov_b64 exec, 0xffff
    s_mov_b32 s63, {SPIN}
    L_polls:
    buffer_load_dwordx4 v[16:19], v7, s[40:43], s7 offen sc1
    s_sub_u32 s63, s63, 1
    s_waitcnt vmcnt(0)
    s_cbranch_scc1 L_polls_done
    v_min3_u32 v10, v17, v19, v28
    v_max3_u32 v11, v17, v19, v28
    v_cmp_ne_u32 vcc, v10, v11
    s_cbranch_vccz L_polls_done
    s_sleep {psleep}
    s_branch L_polls
    L_polls_done:
    ''')
    hstamp(8)
    A(f'''
    v_max_f32_dpp v10, v16, v16 quad_perm:[1,0,3,2] row_mask:0xf bank_mask:0xf
    v_max_f32_dpp v10, v10, v10 quad_perm:[2,3,0,1] row_mask:0xf bank_mask:0xf
    v_max_f32_dpp v10, v10, v10 row_half_mirror row_mask:0xf bank_mask:0xf
    v_sub_f32 v11, v16, v10
    v_sub_f32 v10, v4, v10
    v_mul_f32 v11, {CEXP}, v11
    v_mul_f32 v10, {CEXP}, v10
    v_exp_f32 v11, v11
    v_exp_f32 v10, v10
    v_mul_f32 v11, v11, v18
    v_add_f32_dpp v11, v11, v11 quad_perm:[1,0,3,2] row_mask:0xf bank_mask:0xf
    v_add_f32_dpp v11, v11, v11 quad_perm:[2,3,0,1] row_mask:0xf bank_mask:0xf
    v_add_f32_dpp v11, v11, v11 row_half_mirror row_mask:0xf bank_mask:0xf
    v_rcp_f32 v11, v11
    v_mul_f32 v10, v10, v11
    v_and_b32 v9, 56, v29
    v_lshrrev_b32 v8, 1, v0
    v_and_b32 v8, 4, v8
    v_add3_u32 v9, v9, v8, v31
    v_subrev_u32 v9, {MISC-FACW}, v9
    ds_write_b32 v9, v10
    s_mov_b64 exec, -1
    v_mov_b32 v24, 1
    v_mov_b32 v25, s58
    v_mov_b32 v26, v28
    ds_write_b128 v31, v[24:27] offset:{FLF-MISC}
    s_cmp_eq_u32 s5, 7
    s_waitcnt lgkmcnt(0)
    s_cbranch_scc1 {'L_end' if pad else 'L_hdone'}
    s_mul_i32 s64, s6, 7
    s_add_u32 s64, s64, s5                   ; 7b + j
    s_lshl_b32 s61, s64, 7
    v_lshlrev_b32 v4, 1, v0
    v_add_u32 v4, s61, v4
    v_add_u32 v5, {XN}, v4
    ds_read_u16 v5, v5                       ; residual x
    s_mov_b64 s[52:53], s[34:35]
    s_movk_i32 s54, 3584
    s_mov_b32 s55, 0x20000
    s_lshl_b32 s60, s64, 12
    s_add_u32 s60, s60, {P2}
    v_add_u32 v6, s60, v29
    v_lshlrev_b32 v7, 2, v0
    v_add_u32 v7, {YL}, v7
    ''')
    for i in range(8):
        A(f's_add_u32 s{18+i}, s4, {i}')
        A(f's_and_b32 s{18+i}, s{18+i}, 7')
        A(f's_lshl_b32 s{18+i}, s{18+i}, 9')
    A(f'''
    s_waitcnt lgkmcnt(0)
    v_lshlrev_b32 v5, 16, v5
    s_barrier                               ; #4
    ''')
    hstamp(9)
    A('s_call_b64 s[14:15], L_others')
    hstamp(10)
    A(f'''
    s_barrier                               ; #5
    ds_read2st64_b32 v[48:49], v7 offset0:0 offset1:1
    ds_read2st64_b32 v[50:51], v7 offset0:2 offset1:3
    ds_read2st64_b32 v[52:53], v7 offset0:4 offset1:5
    ds_read2st64_b32 v[54:55], v7 offset0:6 offset1:7
    s_waitcnt lgkmcnt(2)
    v_add_f32 v48, v48, v49
    v_add_f32 v50, v50, v51
    s_waitcnt lgkmcnt(0)
    v_add_f32 v52, v52, v53
    v_add_f32 v54, v54, v55
    v_add_f32 v48, v48, v50
    v_add_f32 v52, v52, v54
    v_add_f32 v26, v48, v52
    s_cbranch_vccnz L_late
    L_finish:
    v_add_f32 v34, v34, v26
    v_cvt_pk_bf16_f32 v34, v34, v34
    buffer_store_short v34, v4, s[52:55], 0 offen
    ''')
    hstamp(11)
    A(f'''
    s_cmp_lg_u32 s64, 21
    s_cbranch_scc1 L_hdone
    s_mov_b64 exec, 1
    v_mov_b32 v1, {EPOCH}
    buffer_store_dword v28, v1, s[40:43], 0 offen
    L_hdone:
    ''')
    if pad and padat[0] == 'h': dopad('L_padh')
    if stamps:
        hstamp(12)
        A(f'''
        s_mov_b64 exec, 0xffff
        s_lshl_b32 s60, s2, 9
        s_add_u32 s60, s60, {STAMPS+256}
        buffer_store_dwordx2 v[164:165], v29, s[40:43], s60 offen
        ''')
    A(f'''
    L_end:
    s_endpgm
    L_late:
    buffer_store_dwordx2 v[26:27], v6, s[40:43], s18 offen sc1
    s_call_b64 s[14:15], L_others
    s_cbranch_vccz L_finish
    s_call_b64 s[14:15], L_others
    s_cbranch_vccz L_finish
    s_branch L_hdone
    L_others:
    ''')
    for i in range(1, 8):
        A(f'buffer_load_dwordx2 v[{32+2*i}:{33+2*i}], v6, s[40:43], s{18+i} offen sc1')
    A(f'''
    s_waitcnt vmcnt(0)
    v_min3_u32 v12, v35, v37, v39
    v_max3_u32 v13, v35, v37, v39
    v_min3_u32 v12, v12, v41, v43
    v_max3_u32 v13, v13, v41, v43
    v_min3_u32 v12, v12, v45, v47
    v_max3_u32 v13, v13, v45, v47
    v_min_u32 v12, v12, v28
    v_max_u32 v13, v13, v28
    v_cmp_ne_u32 vcc, v12, v13
    v_add_f32 v34, v34, v36
    v_add_f32 v38, v38, v40
    v_add_f32 v42, v42, v44
    v_add_f32 v46, v46, v5
    v_add_f32 v34, v34, v38
    v_add_f32 v42, v42, v46
    v_add_f32 v34, v34, v42
    s_setpc_b64 s[14:15]
    ''')

    A(f'''
    L_stream:
    s_barrier
    s_add_u32 s12, s20, s57
    s_addc_u32 s13, s21, 0
    s_mov_b64 s[14:15], s[10:11]
    s_mov_b64 s[40:41], s[38:39]
    s_mov_b32 s42, {WSN}
    s_mov_b32 s43, s11
    v_mov_b32 v26, {MISC}
    ''')
    if fastmask:
        A(f'''
        s_getreg_b32 s60, hwreg(HW_REG_XCC_ID, 0, 3)
        s_bitcmp1_b32 {fastmask}, s60
        s_cselect_b64 vcc, -1, 0
        ''')
        vm.d = dthr
    if kfirst: hb('K0', 0, thr + 3)
    A(f'''
    s_mov_b64 s[52:53], s[24:25]
    s_mov_b64 s[48:49], s[32:33]
    s_cmp_lt_u32 s5, 7
    s_cselect_b32 s54, {Z(4096*896)}, 0
    s_cselect_b32 s61, s5, 0
    s_lshl_b32 s61, s61, 7
    s_lshl4_add_u32 s64, s4, s3
    s_mul_i32 s64, s64, {32*896}
    s_add_u32 s64, s64, s61
    s_lshl3_add_u32 s65, s4, s3
    s_mul_i32 s65, s65, {32*896}
    s_add_u32 s65, s65, s61
    s_cmp_lt_u32 s7, 7
    s_cselect_b32 s50, {Z(1792*896)}, 0
    s_cselect_b32 s65, s65, 0
    v_and_b32 v1, 15, v0                     ; row
    v_lshrrev_b32 v2, 4, v0                  ; g
    v_and_b32 v3, 7, v0
    v_lshlrev_b32 v3, 1, v3
    v_xor_b32 v3, v3, v2
    v_lshlrev_b32 v3, 4, v3
    v_lshl_add_u32 v3, v1, 9, v3
    v_add_u32 v8, s59, v3
    v_xor_b32 v9, 64, v8
    v_xor_b32 v10, 0x80, v8
    v_xor_b32 v11, 0xc0, v8
    ''')
    def readK(dst, slot):
        for t in range(8):
            A(f'ds_read_b128 v[{dst+4*t}:{dst+4*t+3}], v{vKA[t&3]} offset:{slot*8192 + (t>>2)*256}')
    def readQ(dst, ts):
        for n, t in enumerate(ts):
            A(f'ds_read_b128 v[{dst+4*n}:{dst+4*n+3}], v24 offset:{t*64}')
    def qk(tile, src, qf, ts=range(8)):
        for n, t in enumerate(ts):
            c = '0' if t == 0 else f'v[{Sx+4*tile}:{Sx+4*tile+3}]'
            A(f'v_mfma_f32_16x16x32_bf16 v[{Sx+4*tile}:{Sx+4*tile+3}], v[{src+4*t}:{src+4*t+3}], v[{qf+4*n}:{qf+4*n+3}], {c}')
    def flagwait(off, lab):
        A(f'''
        s_mov_b32 s61, {SPIN*8}
        {lab}:
        ds_read_b32 v1, v26 offset:{off-MISC}
        s_sub_u32 s61, s61, 1
        s_waitcnt lgkmcnt(0)
        s_cbranch_scc1 {lab}_done
        v_readfirstlane_b32 s67, v1
        s_cmp_lg_u32 s67, 0
        s_cbranch_scc1 {lab}_done
        s_sleep 1
        s_branch {lab}
        {lab}_done:
        ''')
    vm.wait('small')
    A(f'''
    s_mov_b64 exec, 1
    ds_add_u32 v26, v28 offset:{CNT0-MISC}
    s_mov_b64 exec, -1
    ''')
    stamp(2)
    if not kfirst: hb('K0', 0)
    A('s_cmp_gt_u32 s3, 1')
    A('s_cbranch_scc1 L_wg_done')
    flagwait(FLG, 'L_wg')
    ha('K1', 1)
    vm.wait('K0')
    readK(KfA, 0)
    A(f'''
    v_lshrrev_b32 v21, 2, v0                 ; row = l/4
    v_and_b32 v22, 7, v21
    v_lshlrev_b32 v22, 5, v22
    v_lshl_add_u32 v22, v21, 9, v22
    v_and_b32 v23, 3, v0
    v_lshl_add_u32 v22, v23, 3, v22
    v_add_u32 v12, s59, v22
    ''')
    for t in range(1, 8):
        A(f'v_xor_b32 v{12+t}, {t*32}, v12')
    A(f'''
    v_and_b32 v24, 1, v0
    v_lshlrev_b32 v25, 6, v24                ; head*64
    v_lshlrev_b32 v24, 9, v24
    v_lshl_add_u32 v24, v2, 4, v24
    v_add_u32 v24, {QL}, v24
    s_lshl_b32 s60, s3, 3
    s_add_u32 s60, s60, {STW}
    v_add_u32 v25, s60, v25
    ''')
    hb('K1', 1)
    A('s_waitcnt lgkmcnt(0)')
    ha('K2', 0)
    vm.wait('K1')
    readK(KfB, 1)
    hb('K2', 0)
    A('s_waitcnt lgkmcnt(0)')
    ha('K3', 1)
    vm.wait('K2')
    if k3:
        readK(KfC, 0)
        hb('K3', 1)
        A('s_waitcnt lgkmcnt(0)')
        ha('V0', 0)
        vm.wait('K3')
        hb('V0', 0)
        stamp(3)
        flagwait(FLQ, 'L_wq')
        stamp(4)
        readQ(Pk, range(4))
        readQ(160, range(4, 6))
        A('s_waitcnt lgkmcnt(2)')
        for tile, src in enumerate((KfA, KfB, KfC)): qk(tile, src, Pk, range(4))
        readQ(Pk, range(6, 8))
        A('s_waitcnt lgkmcnt(2)')
        for tile, src in enumerate((KfA, KfB, KfC)): qk(tile, src, 160, range(4, 6))
        A('s_waitcnt lgkmcnt(0)')
        for tile, src in enumerate((KfA, KfB, KfC)): qk(tile, src, Pk, range(6, 8))
        readK(KfA, 1)
        readQ(KfB, range(8))
        A('s_waitcnt lgkmcnt(0)')
        issue('V1', 1, (0,))
        qk(3, KfA, KfB)
    else:
        hb('K3', 1)
        stamp(3)
        flagwait(FLQ, 'L_wq')
        stamp(4)
        readQ(KfC, range(8))
        A('s_waitcnt lgkmcnt(0)')
        qk(0, KfA, KfC)
        readK(KfA, 0)
        qk(1, KfB, KfC)
        A('s_waitcnt lgkmcnt(0)')
        qk(2, KfA, KfC)
        ha('V0', 0)
        vm.wait('K3')
        readK(KfB, 1)
        issue('V0', 0, (1,))
        A('s_waitcnt lgkmcnt(0)')
        qk(3, KfB, KfC)
    MK = 84
    A(f's_mov_b32 s{MK}, 0x00030003')
    A(f's_mov_b32 s{MK+1}, 0x00030003')
    for u in range(1, 8):
        A(f's_lshl_b64 s[{MK+2*u}:{MK+2*u+1}], s[{MK}:{MK+1}], {2*u}')
    A(f's_mov_b32 s63, {CEXP}')
    for i in range(8):
        a, b = Sx + 2*i, Sx + 2*i + 1
        A(f'v_cvt_pk_bf16_f32 v{b}, v{a}, v{b}')
        A(f'v_lshlrev_b32 v{a}, 16, v{b}')
        A(f'v_and_b32 v{b}, 0xffff0000, v{b}')
    A(f'v_max3_f32 v22, v{Sx}, v{Sx+1}, v{Sx+2}')
    for i in range(3, 15, 2):
        A(f'v_max3_f32 v22, v22, v{Sx+i}, v{Sx+i+1}')
    A(f'''
    v_max_f32 v22, v22, v{Sx+15}
    v_mov_b32 v1, v22
    v_permlane16_swap_b32 v22, v1
    v_max_f32 v22, v22, v1
    v_mov_b32 v1, v22
    v_permlane32_swap_b32 v22, v1
    v_max_f32 v22, v22, v1
    ''')
    for i in range(16):
        A(f'v_sub_f32 v{Sx+i}, v{Sx+i}, v22')
    for i in range(16):
        A(f'v_mul_f32 v{Sx+i}, s63, v{Sx+i}')
    for i in range(16):
        A(f'v_exp_f32 v{Sx+i}, v{Sx+i}')
    for i in range(8):
        A(f'v_cvt_pk_bf16_f32 v{Pk+i}, v{Sx+2*i}, v{Sx+2*i+1}')
    for i in range(8):
        A(f'v_add_f32 v{Sx+i}, v{Sx+i}, v{Sx+8+i}')
    for i in range(4):
        A(f'v_add_f32 v{Sx+i}, v{Sx+i}, v{Sx+4+i}')
    A(f'''
    v_add_f32 v{Sx}, v{Sx}, v{Sx+2}
    v_add_f32 v{Sx+1}, v{Sx+1}, v{Sx+3}
    v_add_f32 v23, v{Sx}, v{Sx+1}
    v_mov_b32 v1, v23
    v_permlane16_swap_b32 v23, v1
    v_add_f32 v23, v23, v1
    v_mov_b32 v1, v23
    v_permlane32_swap_b32 v23, v1
    v_add_f32 v23, v23, v1
    s_mov_b64 exec, 3
    ds_write_b64 v25, v[22:23]
    s_mov_b64 exec, 1
    ds_add_u32 v26, v28 offset:{CNT-MISC}
    s_mov_b64 exec, -1
    ''')
    stamp(5)
    if not k3: ha('V1', 1)
    vWO, vWD, vOW, vOR, vP1s, vP1l, vYW, vHA = 22, 23, 24, 25, 27, 28, 29, 21
    vWA = [8, 9, 10, 11]
    A(f'''
    s_waitcnt lgkmcnt(0)
    s_movk_i32 s61, 896
    v_mad_u32_u24 v{vWD}, v{vR8}, s61, v{vCH}
    v_bfe_u32 v1, v0, 3, 1
    v_lshlrev_b32 v1, 8, v1
    v_and_b32 v3, 16, v0
    v_add_u32 v1, v1, v3
    v_lshrrev_b32 v3, 5, v0
    v_add_u32 v1, v1, v3
    v_mad_u32_u24 v{vWO}, v1, s61, v{vCH}
    v_lshrrev_b32 v1, 2, v0
    v_lshlrev_b32 v1, 7, v1
    v_bfe_u32 v2, v0, 3, 2
    v_lshl_add_u32 v1, v2, 5, v1
    v_and_b32 v2, 3, v0
    v_lshl_add_u32 v1, v2, 3, v1
    v_add_u32 v8, s59, v1
    v_xor_b32 v9, 32, v8
    v_xor_b32 v10, 64, v8
    v_xor_b32 v11, 0x60, v8
    v_lshlrev_b32 v1, 4, v0
    s_lshl_b32 s60, s3, 11
    s_add_u32 s60, s60, {AREA}
    v_add_u32 v{vOW}, s60, v1
    v_lshrrev_b32 v2, 4, v0                  ; g
    v_and_b32 v3, 15, v0                     ; c
    v_lshlrev_b32 v31, 12, v2                ; waves 2g, 2g+1
    v_lshl_add_u32 v31, v3, 4, v31
    s_lshl_b32 s60, s3, 8
    s_add_u32 s61, s60, {AREA}
    v_add_u32 v{vOR}, s61, v31
    s_add_u32 s61, s60, {YL}
    v_lshlrev_b32 v31, 2, v0
    v_add_u32 v{vYW}, s61, v31
    s_lshl3_add_u32 s60, s56, s3
    s_lshl_b32 s60, s60, 11
    s_add_u32 s60, s60, {P1}
    v_add_u32 v{vP1l}, s60, v1
    s_lshl4_add_u32 s61, s5, s60
    v_and_b32 v1, 7, v0
    v_lshlrev_b32 v1, 8, v1                  ; (half*4+g)*256
    v_and_b32 v3, 8, v0
    v_lshl_add_u32 v1, v3, 4, v1             ; ks*128
    v_add_u32 v{vP1s}, s61, v1
    s_lshl_b32 s60, s3, 6
    s_add_u32 s60, s60, {HL}
    v_lshlrev_b32 v1, 3, v2
    v_add_u32 v{vHA}, s60, v1
    v_lshlrev_b32 v31, 4, v2
    v_add_u32 v31, {FACW}, v31
    ''')
    Vf = KfA; Mk = KfB
    WOf, WDf = KfC, Sx
    PL = 64
    def masks(i):
        M = Mk + 16*(i & 1)
        for u in range(8):
            A(f'v_cndmask_b32 v{M+2*u}, 0, v{Pk+2*i}, s[{MK+2*u}:{MK+2*u+1}]')
            A(f'v_cndmask_b32 v{M+2*u+1}, 0, v{Pk+2*i+1}, s[{MK+2*u}:{MK+2*u+1}]')
    def pv(i, slot, mid=None):
        M = Mk + 16*(i & 1)
        for t in range(16):
            A(f'ds_read_b64_tr_b16 v[{Vf+2*t}:{Vf+2*t+1}], v{vVA[t&7]} offset:{slot*8192 + (t>>3)*256}')
        if mid: mid()
        for ii in range(8):
            A(f's_waitcnt lgkmcnt({14-2*ii})')
            acc = Oa + 4*(ii >> 2)
            c = '0' if (i == 0 and (ii & 3) == 0) else f'v[{acc}:{acc+3}]'
            A(f'v_mfma_f32_16x16x32_bf16 v[{acc}:{acc+3}], v[{M+4*(ii&3)}:{M+4*(ii&3)+3}], v[{Vf+4*ii}:{Vf+4*ii+3}], {c}')
    def issueW(p, slot, t=None):
        vm.upto(thr if t is None else t)
        for k in range(4):
            if p < 2:
                A(f's_add_u32 m0, s59, {slot*8192 + (4*p+k)*1024}')
                A(f's_add_u32 s60, s64, {(4*p+k)*2*896}')
                A(f'buffer_load_dwordx4 v{vWO}, s[52:55], s60 offen{wnt} lds')
            else:
                A(f's_add_u32 m0, s59, {slot*8192 + k*1024}')
                A(f's_add_u32 s60, s65, {k*8*896}')
                A(f'buffer_load_dwordx4 v{vWD}, s[48:51], s60 offen{wnt} lds')
        vm.add('WO' if p < 2 else 'WD', 4)
    def readWO(slot):
        for ks in range(2):
            for T in range(4):
                for half in range(2):
                    d = WOf + 16*ks + 4*T + 2*half
                    A(f'ds_read_b64_tr_b16 v[{d}:{d+1}], v{vWA[T]} offset:{slot*8192 + ks*4096 + half*2048}')
    def readWD(slot):
        for T in range(4):
            for half in range(2):
                A(f'ds_read_b64_tr_b16 v[{WDf+4*T+2*half}:{WDf+4*T+2*half+1}], v{vWA[T]} offset:{slot*8192 + half*2048}')
    def pretouch():
        for q in range(2):
            A(f'buffer_load_dwordx4 v[160:163], v{vP1l}, s[40:43], 0 offen offset:{q*1024} sc1')
        vm.add('pre', 2)
    masks(0)
    vm.wait('V0')
    pv(0, 0)
    masks(1)
    hb('V1', 1)
    if not wlast:
        issueW(0, 0)
        vm.wait('V1')
        pv(1, 1)
        issueW(1, 0)
        issueW(2, 1)
        masks(2)
        vm.wait('WO')
        readWO(0)
        A('s_waitcnt lgkmcnt(0)')
        issue('V2', 0, (0,))
        vm.wait('WD')
        readWD(1)
        hb('V2', 0)
        pretouch()
        A('s_waitcnt lgkmcnt(0)')
        ha('V3', 1, thr + 2)
        vm.wait('V2')
        pv(2, 0, lambda: issue('V3', 1, (1,)))
        s3 = 1
    else:
        issueW(2, 0)
        vm.wait('V1')
        pv(1, 1)
        ha('V2', 1)
        masks(2)
        vm.wait('WD')
        readWD(0)
        hb('V2', 1)
        pretouch()
        A('s_waitcnt lgkmcnt(0)')
        ha('V3', 0, thr + 2)
        vm.wait('V2')
        pv(2, 1, lambda: issue('V3', 0, (1,)))
        s3 = 0
    masks(3)
    flagwait(FLF, 'L_wf')
    FC = 160
    A(f'''
    ds_read_b128 v[4:7], v26 offset:{FLF-MISC}
    ds_read2_b64 v[64:67], v{vHA} offset0:0 offset1:4
    s_mov_b32 s{MK}, 0x00010001
    s_mov_b32 s{MK+1}, 0x00010001
    s_mov_b32 s{MK+2}, 0x01000100
    s_mov_b32 s{MK+3}, 0x01000100
    s_mov_b32 s{MK+4}, 0x00ff00ff
    s_mov_b32 s{MK+5}, 0x00ff00ff
    ''')
    vm.wait('pre')
    A(f'''
    ds_read_b128 v[{FC}:{FC+3}], v31
    s_waitcnt lgkmcnt(0)
    v_readfirstlane_b32 s63, v5
    v_mov_b32 v{vTAG}, v6
    v_mov_b32 v5, v6
    ''')
    FA = 144
    for r in range(4):
        A(f'v_cndmask_b32 v{68+r}, 0, v{64+r}, s[{MK}:{MK+1}]')
        A(f'v_cndmask_b32 v{72+r}, 0, v{64+r}, s[{MK+2}:{MK+3}]')
    A(f'''
    v_mfma_f32_16x16x32_bf16 v[{FA}:{FA+3}], v[68:71], v[{WDf}:{WDf+3}], 0
    v_mfma_f32_16x16x32_bf16 v[{FA+4}:{FA+7}], v[68:71], v[{WDf+4}:{WDf+7}], 0
    v_mfma_f32_16x16x32_bf16 v[{FA}:{FA+3}], v[72:75], v[{WDf+8}:{WDf+11}], v[{FA}:{FA+3}]
    v_mfma_f32_16x16x32_bf16 v[{FA+4}:{FA+7}], v[72:75], v[{WDf+12}:{WDf+15}], v[{FA+4}:{FA+7}]
    s_mov_b32 s62, {SPIN}
    ''')
    if wlast:
        issueW(0, 1, wthr)
        if wlast == 1: issueW(1, 1, wthr + 2)
    vm.wait('V3')
    stamp(6)
    pv(3, s3, (lambda: issueW(1, 1, 99)) if wlast == 2 else None)
    A(f'''
    ds_write_b128 v{vOW}, v[{Oa}:{Oa+3}]
    ds_write_b128 v{vOW}, v[{Oa+4}:{Oa+7}] offset:1024
    s_waitcnt lgkmcnt(0)
    ''')
    stamp(7)
    A(f'''
    s_barrier                               ; #4: O partials
    ds_read_b128 v[32:35], v{vOR}
    ds_read_b128 v[36:39], v{vOR} offset:2048
    s_cmp_eq_u32 s63, 0
    s_waitcnt lgkmcnt(1)
    v_mul_f32 v32, v32, v{FC}
    v_mul_f32 v34, v34, v{FC}
    v_mul_f32 v33, v33, v{FC+1}
    v_mul_f32 v35, v35, v{FC+1}
    s_waitcnt lgkmcnt(0)
    v_fmac_f32 v32, v36, v{FC+2}
    v_fmac_f32 v34, v38, v{FC+2}
    v_fmac_f32 v33, v37, v{FC+3}
    v_fmac_f32 v35, v39, v{FC+3}
    v_permlane32_swap_b32 v32, v34
    v_permlane32_swap_b32 v33, v35
    v_add_f32 v36, v32, v34
    v_add_f32 v37, v33, v35
    v_add_f32 v32, v32, v34
    v_add_f32 v33, v33, v35
    v_permlane16_swap_b32 v32, v36
    v_permlane16_swap_b32 v33, v37
    v_add_f32 v32, v32, v36
    v_add_f32 v33, v33, v37
    v_cvt_pk_bf16_f32 v4, v32, v33
    v_cvt_pk_bf16_f32 v6, v32, v33
    v_permlane32_swap_b32 v4, v6
    s_mov_b64 exec, 0xffff
    s_cbranch_scc1 L_slowpub
    buffer_store_dwordx4 v[4:7], v{vP1s}, s[40:43], 0 offen
    L_pubdone:
    s_mov_b64 exec, -1
    ''')
    vm.add('pub', 1)
    stamp(8)
    A(f'''
    s_cmp_eq_u32 s5, 7
    s_cbranch_scc1 L_sdone
    ''')
    def polls():
        for q in range(2):
            A(f'buffer_load_dwordx4 v[{PL+4*q}:{PL+4*q+3}], v{vP1l}, s[40:43], 0 offen offset:{q*1024} sc1')
    if wlast:
        polls(); vm.add('poll', 2)
        vm.wait('WO')
        readWO(1)
        A('s_branch L_poll1_chk')
    A('L_poll1:')
    polls()
    A(f'''
    L_poll1_chk:
    s_sub_u32 s62, s62, 1
    s_waitcnt vmcnt(0)
    s_cbranch_scc1 L_poll1_done
    v_min3_u32 v1, v{PL+1}, v{PL+3}, v{PL+5}
    v_max3_u32 v2, v{PL+1}, v{PL+3}, v{PL+5}
    v_min3_u32 v1, v1, v{PL+7}, v{vTAG}
    v_max3_u32 v2, v2, v{PL+7}, v{vTAG}
    v_cmp_ne_u32 vcc, v1, v2
    s_cbranch_vccnz L_poll1
    L_poll1_done:
    ''')
    stamp(9)
    LO, HI = 80, 88
    def omm(a, ks, T0):
        for x in range(2):
            acc = FA + 4*x
            bb = WOf + 16*ks + 4*(T0 + x)
            A(f'v_mfma_f32_16x16x32_bf16 v[{acc}:{acc+3}], v[{a}:{a+3}], v[{bb}:{bb+3}], v[{acc}:{acc+3}]')
    for q in range(4):
        A(f'v_cndmask_b32 v{LO+q}, 0, v{PL+2*q}, s[{MK+4}:{MK+5}]')
    for q in range(4):
        A(f'v_cndmask_b32 v{HI+4+q}, v{PL+2*q}, 0, s[{MK+4}:{MK+5}]')
    if wlast: A('s_waitcnt lgkmcnt(0)')
    omm(LO, 0, 0)
    for q in range(4):
        A(f'v_mov_b32_dpp v{HI+q}, v{PL+2*q} row_shr:8 row_mask:0xf bank_mask:0xf bound_ctrl:0')
    omm(HI+4, 1, 2)
    for q in range(4):
        A(f'v_mov_b32_dpp v{LO+4+q}, v{PL+2*q} row_shl:8 row_mask:0xf bank_mask:0xf bound_ctrl:0')
    omm(HI, 0, 2)
    omm(LO+4, 1, 0)
    A(f'''
    v_add_f32 v{FA}, v{FA}, v{FA+1}
    v_add_f32 v{FA+2}, v{FA+2}, v{FA+3}
    v_add_f32 v{FA+4}, v{FA+4}, v{FA+5}
    v_add_f32 v{FA+6}, v{FA+6}, v{FA+7}
    v_add_f32 v{FA}, v{FA}, v{FA+2}
    v_add_f32 v{FA+4}, v{FA+4}, v{FA+6}
    v_permlane16_swap_b32 v{FA}, v{FA+4}
    v_add_f32 v{FA}, v{FA}, v{FA+4}
    ds_write_b32 v{vYW}, v{FA}
    s_waitcnt lgkmcnt(0)
    ''')
    stamp(10)
    A('s_barrier                               ; #5')
    if pad and padat[0] == 's': dopad('L_pads')
    A('L_sdone:')
    if stamps:
        A(f's_cmp_eq_u32 s3, 0')
        A('s_cbranch_scc1 L_dump0')
        A(f's_cmp_lg_u32 s3, 7')
        A('s_cbranch_scc1 L_end')
        dump_stamps(16, [sreg(k) for k in range(11)])
        A('s_endpgm')
        A('L_dump0:')
        dump_stamps(0, [sreg(k) for k in range(11)])
    A('s_endpgm')
    A(f'''
    L_slowpub:
    buffer_store_dwordx4 v[4:7], v{vP1s}, s[40:43], 0 offen sc1
    s_branch L_pubdone
    ''')
    A('.section .rodata,"a"')
    A('.p2align 6')
    A(f'.amdhsa_kernel {NAME}_kernel')
    A('.amdhsa_next_free_vgpr 168')
    A('.amdhsa_next_free_sgpr 102')
    A('.amdhsa_accum_offset 168')
    A('.amdhsa_group_segment_fixed_size 0')
    A('.amdhsa_kernarg_size 96')
    A('.amdhsa_user_sgpr_count 2')
    A('.amdhsa_user_sgpr_kernarg_segment_ptr 1')
    A('.amdhsa_system_sgpr_workgroup_id_x 1')
    A('.end_amdhsa_kernel')
    return top + A.finalize()

if __name__ == '__main__':
    out = sys.argv[1] if len(sys.argv) > 1 else f'cdna_kernels/{NAME}.s'
    kw = eval('dict(%s)' % sys.argv[2]) if len(sys.argv) > 2 else {}
    open(out, 'w').write(gen(**kw))
    print('wrote', out)
```

```python
import sys, struct, math
from asmlib import Asm
NAME = 'parallel_sum__sliding_block_cached__glu_gated_reglu__decode'

def f32(x): return '0x%08x' % struct.unpack('<I', struct.pack('<f', x))[0]

AREA = 131072
TAB = AREA + 16384
STW = TAB
FACW = TAB + 128
MISC = TAB + 256
FLQ = MISC
CNT = MISC + 4
FLG = MISC + 8
CNT0 = MISC + 12
FLF = MISC + 16
HL = TAB + 512
QL = TAB + 1024
XN = TAB + 2048
YL = XN
LDS_TOTAL = XN + 4096
EPOCH = 0
ST = 0x1000
TK = 0x3000
QX = 0x4000
P2 = 0x24000
P1 = 0x40000
QP = 0xC0000
WS_END = 0x1C0000
STAMPS = 0x300000
SPIN = 400000
CEXP = f32(math.log2(math.e)/16)

class VM:
    def __init__(self, A): self.A = A; self.q = []
    def add(self, name, n): self.q.append((name, n))
    def wait(self, name, extra=''):
        idx = max(i for i, (nm, _) in enumerate(self.q) if nm == name)
        n = sum(c for _, c in self.q[idx+1:])
        self.q = self.q[idx+1:]
        self.A(f's_waitcnt vmcnt({n}){extra}')
    d = 0; nl = 0
    def upto(self, n):
        tot = sum(c for _, c in self.q)
        if tot > n: self.A(f's_waitcnt vmcnt({n})')
        if self.d and n < 50 and tot > max(n - self.d, 0):
            self.nl += 1
            self.A(f's_cbranch_vccz L_pc{self.nl}\ns_waitcnt vmcnt({max(n - self.d, 0)})\nL_pc{self.nl}:')

def gen(stamps=0, wnt='', snt=' nt', kvnt=' nt', forceslow=False, now=False, pad=0, padat=None, thr=2,
        hpre=True, psleep=4, xtries=12, sync=False, xs=('s3', 0), light=False, kfirst=False, k3=True, wlast=1, hs=None, wthr=4, fastmask=0, dthr=0, fh=(), fin='T', spec=False, fsleep=0, hl=(6, 12)):
    A = Asm()
    def sreg(k): return 68 + 2*k if k < 3 else 16 + 2*(k-3)
    def stamp(k):
        if stamps and (not light or k in (0, 6, 10)): A(f's_memrealtime s[{sreg(k)}:{sreg(k)+1}]')
        if padat == f's{k}': A('s_memrealtime s[100:101]')
    def hstamp(k):
        if stamps and (not light or k in hl):
            A(f's_memrealtime s[100:101]\ns_waitcnt lgkmcnt(0)\nv_writelane_b32 v164, s100, {k}\nv_writelane_b32 v165, s101, {k}')
        if padat == f'h{k}': A('s_memrealtime s[100:101]\ns_waitcnt lgkmcnt(0)')
    def dopad(lab):
        A(f'''
        {lab}:
        s_memrealtime s[98:99]
        s_waitcnt lgkmcnt(0)
        s_sub_u32 s98, s98, s100
        s_cmp_lt_u32 s98, {pad}
        s_cbranch_scc1 {lab}
        ''')
    def dump_stamps(slot0, regs_):
        A('s_waitcnt vmcnt(0) lgkmcnt(0)')
        A('s_mov_b64 exec, 1')
        A('s_lshl_b32 s60, s2, 9')
        A(f's_add_u32 s60, s60, {STAMPS}')
        A('v_mov_b32 v1, s60')
        for k, r in enumerate(regs_):
            A(f'v_mov_b32 v2, s{r}')
            A(f'v_mov_b32 v3, s{r+1}')
            A(f'buffer_store_dwordx2 v[2:3], v1, s[40:43], 0 offen offset:{8*(slot0+k)}')
    WSN = 0x400000 if stamps else WS_END
    Z = (lambda n: 0) if now else (lambda n: n)
    hdr = open('cdna_kernels/%s.s.ref' % NAME).read().split('; Override launch geometry')[0]
    top = hdr + f'; @launch grid=(256,1,1) block=(576,1,1) lds={LDS_TOTAL}\n'
    A('.amdgcn_target "amdgcn-amd-amdhsa--gfx950"')
    A('.text')
    A(f'.globl {NAME}_kernel')
    A('.p2align 8')
    A(f'.type {NAME}_kernel,@function')
    A(f'{NAME}_kernel:')
    if sync:
        A('''
        s_memrealtime s[4:5]
        s_waitcnt lgkmcnt(0)
        s_add_u32 s6, s4, 4096+600
        s_and_b32 s6, s6, -4096
        L_sync:
        s_memrealtime s[4:5]
        s_waitcnt lgkmcnt(0)
        s_sub_u32 s4, s4, s6
        s_cmp_lt_i32 s4, 0
        s_cbranch_scc1 L_sync
        s_branch L_go
        .p2align 10
        L_go:
        ''')
    stamp(0)
    vm = VM(A)
    vD = [4, 5, 6, 7]; vKA = [8, 9, 10, 11]; vVA = list(range(12, 20)); vTAG = 20
    KfA, KfB, KfC, Sx, Pk, Oa = 32, 64, 96, 128, 144, 152
    vCH, vR8 = 30, 31
    KS, VS = 's[8:11]', 's[12:15]'
    def issue(name, slot, halves=(0, 1)):
        srd = KS if name[0] == 'K' else VS
        i = int(name[1])
        for half in halves:
            first = (name == 'K0' and half == 0)
            if not first:
                A(f's_xor_b32 m0, {"s74" if hs else "s59"}, {slot*8192 + half*4096}')
                A(f's_xor_b32 s60, s58, {i*524288 + half*4096}')
            for q in range(4):
                if q in (0, 2) and name + 'ab'[half] in fh:
                    A(f's_cbranch_vccz L_f{name}{half}{q}\ns_waitcnt vmcnt(1)\nL_f{name}{half}{q}:')
                A(f'buffer_load_dwordx4 v{vD[q]}, {srd}, {"s58" if first else "s60"} offen offset:{q*1024}{kvnt} lds')
            vm.add(name, 4)
    def ha(name, slot, t=None):
        vm.upto(thr if t is None else t); issue(name, slot, (0,))
    def hb(name, slot, t=None):
        vm.upto(thr if t is None else t); issue(name, slot, (1,))
    A(f'''
    s_load_dwordx16 s[16:31], s[0:1], 0
    s_load_dwordx8 s[32:39], s[0:1], 64
    v_readfirstlane_b32 s3, v0
    s_cmpk_ge_u32 s2, 256
    s_cbranch_scc1 L_end
    v_and_b32 v0, 63, v0                     ; lane
    s_lshr_b32 s3, s3, 6                     ; wave
    s_and_b32 s4, s2, 7                      ; hkv
    s_bfe_u32 s5, s2, 0x30003                ; j
    s_lshr_b32 s6, s2, 6                     ; b
    s_lshl3_add_u32 s56, s6, s4
    s_cmp_eq_u32 s3, 8
    s_cbranch_scc1 L_helper
    v_lshrrev_b32 v1, 4, v0
    v_and_b32 v1, 2, v1
    v_xor_b32 v1, v1, v0
    v_lshlrev_b32 v4, 4, v1
    v_xor_b32 v5, 64, v4
    v_xor_b32 v6, 0x80, v4
    v_xor_b32 v7, 64, v6
    s_lshl3_add_u32 s66, s5, s3              ; 8j + w
    s_lshl_b32 s57, s56, 23
    s_add_u32 s57, s57, {12288*512}
    s_lshl_b32 s59, s3, 14
    s_lshl_b32 s58, s66, 13
    {f's_bfe_u32 s62, {xs[0]}, {0x20000 + xs[1]}' if xs else ''}
    {'s_lshl_b32 s62, s62, 19' if xs else ''}
    {'s_or_b32 s58, s58, s62' if xs else ''}
    {f's_bfe_u32 s62, {hs[0]}, {0x10000 + hs[1]}' if hs else ''}
    {'s_lshl_b32 s62, s62, 12' if hs else ''}
    {'s_or_b32 s58, s58, s62' if hs else ''}
    {'s_or_b32 s74, s59, s62' if hs else ''}
    s_mov_b32 s10, 0x200000
    s_mov_b32 s11, 0x20000
    ''')
    saddr = f'''
    v_bfe_u32 v2, v0, 4, 2
    v_lshlrev_b32 v2, 1, v2
    v_and_b32 v3, 7, v0
    v_xor_b32 v2, v2, v3
    v_lshlrev_b32 v{vCH}, 4, v2
    v_lshrrev_b32 v{vR8}, 3, v0
    v_lshl_add_u32 v21, v{vR8}, 13, v{vCH}
    s_movk_i32 s46, 3584
    v_mad_u32_u24 v23, v{vR8}, s46, v{vCH}
    s_lshl_b32 s65, s3, 9
    v_lshl_add_u32 v22, v0, 4, s65
    s_lshl2_add_u32 s67, s4, s6              ; 4hkv + b
    s_lshl_b32 s63, s67, 7
    s_mul_i32 s64, s66, {8*3584}
    s_add_u32 s63, s63, s64
    s_lshl_b32 s67, s67, 8
    s_lshl_b32 s64, s66, 16
    s_add_u32 s67, s67, s64
    s_lshl_b32 s62, s3, 10
    s_mov_b32 s47, s11
    s_mov_b32 s51, s11
    s_mov_b32 s55, s11
    s_cmp_lt_u32 s5, 7
    s_cselect_b32 s50, {Z(448*8192)}, 0
    s_cselect_b32 s67, s67, 0
    s_add_u32 s61, s67, 128
    s_max_u32 s7, s4, s5
    s_cmp_lt_u32 s7, 7
    s_cselect_b32 s54, {Z(448*3584)}, 0
    s_cselect_b32 s63, s63, 0
    '''
    if not kfirst: A(saddr)
    A(f'''
    s_mov_b32 m0, {'s74' if hs else 's59'}
    {'s_memrealtime s[100:101]' if padat == 'sa' else ''}
    s_waitcnt lgkmcnt(0)
    {'s_memrealtime s[100:101]' if padat == 'sb' else ''}
    s_add_u32 s8, s18, s57
    s_addc_u32 s9, s19, 0
    ''')
    if kfirst:
        issue('K0', 0, (0,))
        A(saddr)
    A(f'''
    s_add_u32 m0, s65, {XN}
    s_mov_b32 exec_hi, 0
    s_mov_b64 s[44:45], s[16:17]
    buffer_load_dwordx4 v22, s[44:47], 0 offen lds
    s_mov_b32 exec_hi, -1
    s_add_u32 m0, s62, 8192
    s_mov_b64 s[48:49], s[22:23]
    buffer_load_dwordx4 v21, s[48:51], s67 offen{snt} lds
    s_add_u32 m0, s62, {16384+8192}
    s_mov_b64 s[52:53], s[28:29]
    buffer_load_dwordx4 v21, s[48:51], s61 offen{snt} lds
    s_add_u32 m0, s62, {AREA}
    v_mov_b32 v28, 1
    buffer_load_dwordx4 v23, s[52:55], s63 offen{snt} lds
    s_add_u32 m0, s62, {AREA+8192}
    s_mov_b64 s[52:53], s[30:31]
    buffer_load_dwordx4 v23, s[52:55], s63 offen{snt} lds
    ''')
    vm.add('small', 5)
    if not kfirst:
        A(f's_mov_b32 m0, {"s74" if hs else "s59"}')
        issue('K0', 0, (0,))
    stamp(1)
    A('s_branch L_stream')

    XR = 8
    XF = 32
    RA = 156
    WF = 64
    AC = 132
    PB = 64
    nstore = [0]
    def store2(ins):
        n = nstore[0]; nstore[0] += 1
        A(f's_cmp_eq_u32 s58, 0\ns_cbranch_scc1 L_ss{n}')
        for i in ins: A(i)
        A(f's_branch L_sd{n}\nL_ss{n}:')
        for i in ins: A(i + ' sc1')
        A(f'L_sd{n}:')
    def cntwait(off, lab, sl):
        A(f'''
        s_mov_b32 s63, {SPIN*8}
        {lab}:
        ds_read_b32 v9, v31 offset:{off-MISC}
        s_sub_u32 s63, s63, 1
        s_waitcnt lgkmcnt(0)
        s_cbranch_scc1 {lab}_done
        v_cmp_eq_u32 vcc, 8, v9
        s_cbranch_vccnz {lab}_done
        s_sleep {sl}
        s_branch {lab}
        {lab}_done:
        ''')
    A(f'''
    L_helper:
    s_setprio 3
    s_getreg_b32 s57, hwreg(HW_REG_XCC_ID, 0, 7)
    s_lshl_b32 s66, s4, 5
    s_lshr_b32 s61, s2, 3
    s_add_u32 s61, s61, s66
    s_add_u32 s57, s57, 1
    v_mov_b32 v9, s61
    v_mov_b32 v10, s57
    v_mov_b32 v31, {MISC}
    v_lshl_add_u32 v1, v0, 2, v31
    v_mov_b32 v2, 0
    ds_write_b32 v1, v2                      ; flags = 0
    s_mov_b64 exec, 1
    s_waitcnt lgkmcnt(0)
    global_store_byte v9, v10, s[36:37]
    s_load_dword s62, s[38:39], {EPOCH}
    s_mov_b64 exec, -1
    ''')
    if stamps: A('v_mov_b32 v164, 0\nv_mov_b32 v165, 0')
    A(f'''
    s_mov_b64 s[40:41], s[38:39]
    s_mov_b32 s42, {WSN}
    s_mov_b32 s43, 0x20000
    s_lshl_b32 s64, s56, 15
    s_add_u32 s64, s64, {QP}
    s_lshl_b32 s65, s5, 9
    s_add_u32 s65, s65, s64
    s_lshl_b32 s67, s5, 12
    s_add_u32 s67, s67, s64
    s_lshl_b32 s59, s56, 12
    s_add_u32 s59, s59, {QX}
    s_lshl_b32 s7, s56, 8
    s_add_u32 s7, s7, {ST}
    ''')
    if hpre:
        A(f'''
        v_lshlrev_b32 v8, 7, v0
        s_mov_b64 exec, 0xfffffff
        buffer_load_dword v128, v8, s[40:43], s67 offen sc1
        s_mov_b64 exec, 0xffffff
        buffer_load_dword v128, v8, s[40:43], s59 offen sc1
        s_mov_b64 exec, 3
        buffer_load_dword v128, v8, s[40:43], s7 offen sc1
        s_mov_b64 exec, -1
        ''')
    A(f'''
    v_lshrrev_b32 v1, 4, v0                  ; g
    v_and_b32 v2, 15, v0
    v_and_b32 v3, 3, v0
    v_mul_u32_u24 v3, 896, v3
    v_add_u32 v3, {XN}, v3                   ; row of batch l%4
    v_lshl_add_u32 v4, v1, 3, v3             ; + g*8
    v_and_b32 v5, 60, v0
    v_lshl_add_u32 v3, v5, 1, v3             ; + (l/4)*8
    s_min_u32 s60, s5, 6
    s_lshl_b32 s60, s60, 7
    v_add_u32 v5, s60, v4
    v_lshrrev_b32 v7, 2, v0
    v_lshlrev_b32 v7, 7, v7
    v_bfe_u32 v6, v0, 3, 2
    v_lshl_add_u32 v7, v6, 5, v7
    v_and_b32 v6, 3, v0
    v_lshl_add_u32 v148, v6, 3, v7
    v_xor_b32 v149, 32, v148
    v_xor_b32 v150, 64, v148
    v_xor_b32 v151, 0x60, v148
    v_add_u32 v152, {AREA}, v148
    v_add_u32 v153, {AREA}, v149
    v_add_u32 v154, {AREA}, v150
    v_add_u32 v155, {AREA}, v151
    s_mov_b32 s8, 0x000f000f
    s_mov_b32 s9, s8
    s_lshl_b64 s[10:11], s[8:9], 4
    s_lshl_b64 s[12:13], s[8:9], 8
    s_lshl_b64 s[14:15], s[8:9], 12
    v_mov_b32 v30, 1
    v_lshlrev_b32 v29, 3, v0                 ; lane*8
    v_lshlrev_b32 v7, 4, v0                  ; lane*16
    v_and_b32 v6, 0x1f0, v7
    v_and_b32 v10, 32, v0
    v_lshl_add_u32 v6, v10, 7, v6
    v_and_b32 v129, 7, v0
    v_lshlrev_b32 v129, 2, v129
    v_add_u32 v129, s66, v129                ; XCD table offset
    s_mul_i32 s46, s57, 0x01010101
    global_load_dword v130, v129, s[36:37] sc1
    s_barrier
    ''')
    hstamp(0)
    cntwait(CNT0, 'L_w0', 1)
    hstamp(1)
    def wreads(areg, base, stride):
        for s_ in range(2):
            for ks in range(2):
                for T in range(4):
                    for half in range(2):
                        d = WF + 32*s_ + 16*ks + 4*T + 2*half
                        A(f'ds_read_b64_tr_b16 v[{d}:{d+1}], v{areg+T} offset:{base + s_*stride + ks*4096 + half*2048}')
    for u in range(7):
        A(f'ds_read_b64 v[{XR+2*u}:{XR+2*u+1}], v3 offset:{128*u}')
    for ks in range(2):
        A(f'ds_read2_b64 v[{RA+4*ks}:{RA+4*ks+3}], v5 offset0:{8*ks} offset1:{8*ks+4}')
    wreads(148, 8192, 16384)
    A(f'''
    ds_write_b32 v31, v30 offset:{FLG-MISC}
    s_mul_i32 s62, s62, 1664525
    s_add_u32 s62, s62, 1013904223
    s_lshr_b32 s60, s62, 8
    v_mov_b32 v28, s62
    v_mov_b32 v131, s60
    s_movk_i32 s47, 0xff
    s_waitcnt lgkmcnt(15)
    ''')
    for u in range(14):
        A(f'v_lshlrev_b32 v{XF+2*u}, 16, v{XR+u}')
        A(f'v_and_b32 v{XF+2*u+1}, 0xffff0000, v{XR+u}')
    def allsum(r):
        A(f'''
        v_add_f32_dpp v{r}, v{r}, v{r} row_ror:4 row_mask:0xf bank_mask:0xf
        v_add_f32_dpp v{r}, v{r}, v{r} row_ror:8 row_mask:0xf bank_mask:0xf
        v_mov_b32 v8, v{r}
        v_permlane16_swap_b32 v{r}, v8
        v_add_f32 v{r}, v{r}, v8
        v_mov_b32 v8, v{r}
        v_permlane32_swap_b32 v{r}, v8
        v_add_f32 v{r}, v{r}, v8
        ''')
    A(f'v_pk_add_f32 v[22:23], v[{XF}:{XF+1}], v[{XF+2}:{XF+3}]')
    A(f'v_pk_add_f32 v[26:27], v[{XF+4}:{XF+5}], v[{XF+6}:{XF+7}]')
    for u in range(4, 14, 2):
        A(f'v_pk_add_f32 v[22:23], v[22:23], v[{XF+2*u}:{XF+2*u+1}]')
        A(f'v_pk_add_f32 v[26:27], v[26:27], v[{XF+2*u+2}:{XF+2*u+3}]')
    A('v_pk_add_f32 v[22:23], v[22:23], v[26:27]')
    A('v_add_f32 v22, v22, v23')
    allsum(22)
    A(f'''
    v_mul_f32 v22, {f32(1/448)}, v22           ; mean
    v_cvt_pk_bf16_f32 v24, v22, v22
    v_and_b32 v24, 0xffff0000, v24           ; bf16(mean)
    v_sub_f32 v22, v22, v24
    ''')
    for u in range(14):
        A(f'v_pk_add_f32 v[{XF+2*u}:{XF+2*u+1}], v[{XF+2*u}:{XF+2*u+1}], v[24:25] op_sel_hi:[1,0] neg_lo:[0,1] neg_hi:[0,1]')
    A(f'v_pk_mul_f32 v[26:27], v[{XF}:{XF+1}], v[{XF}:{XF+1}]')
    A(f'v_pk_mul_f32 v[10:11], v[{XF+2}:{XF+3}], v[{XF+2}:{XF+3}]')
    for u in range(2, 14, 2):
        A(f'v_pk_fma_f32 v[26:27], v[{XF+2*u}:{XF+2*u+1}], v[{XF+2*u}:{XF+2*u+1}], v[26:27]')
        A(f'v_pk_fma_f32 v[10:11], v[{XF+2*u+2}:{XF+2*u+3}], v[{XF+2*u+2}:{XF+2*u+3}], v[10:11]')
    A('v_pk_add_f32 v[26:27], v[26:27], v[10:11]')
    A('v_add_f32 v26, v26, v27')
    allsum(26)
    A(f'''
    v_mul_f32 v26, {f32(1/448)}, v26
    v_fma_f32 v26, -v22, v22, v26            ; var
    v_max_f32 v26, 0, v26
    v_cvt_pk_bf16_f32 v26, v26, v26
    v_and_b32 v26, 0xffff0000, v26           ; bf16(var)
    v_add_f32 v26, {f32(1e-5)}, v26
    v_cvt_pk_bf16_f32 v26, v26, v26
    v_and_b32 v26, 0xffff0000, v26
    v_sqrt_f32 v26, v26
    v_cvt_pk_bf16_f32 v26, v26, v26
    v_and_b32 v26, 0xffff0000, v26
    v_rcp_f32 v26, v26
    ''')
    NF = 8
    for u in range(8):
        a, b = NF + 2*u, NF + 2*u + 1
        A(f'v_lshlrev_b32 v{a}, 16, v{RA+u}')
        A(f'v_and_b32 v{b}, 0xffff0000, v{RA+u}')
    for u in range(8):
        a, b = NF + 2*u, NF + 2*u + 1
        A(f'v_pk_add_f32 v[{a}:{b}], v[{a}:{b}], v[24:25] op_sel_hi:[1,0] neg_lo:[0,1] neg_hi:[0,1]')
    for u in range(8):
        a, b = NF + 2*u, NF + 2*u + 1
        A(f'v_cvt_pk_bf16_f32 v{b}, v{a}, v{b}')
    for u in range(8):
        a, b = NF + 2*u, NF + 2*u + 1
        A(f'v_lshlrev_b32 v{a}, 16, v{b}')
        A(f'v_and_b32 v{b}, 0xffff0000, v{b}')
    for u in range(8):
        a, b = NF + 2*u, NF + 2*u + 1
        A(f'v_pk_mul_f32 v[{a}:{b}], v[{a}:{b}], v[26:27] op_sel_hi:[1,0]')
    for u in range(8):
        a, b = NF + 2*u, NF + 2*u + 1
        A(f'v_cvt_pk_bf16_f32 v{RA+u}, v{a}, v{b}')
    for T in range(4):
        for u in range(8):
            A(f'v_cndmask_b32 v{XF+8*T+u}, 0, v{RA+u}, s[{8+2*T}:{9+2*T}]')
    def mm(p):
        for ks in range(2):
            for T in range(4):
                for s_ in range(2):
                    acc = AC + 8*p + 4*s_
                    bb = WF + 32*s_ + 16*ks + 4*T
                    c = '0' if (ks == 0 and T == 0) else f'v[{acc}:{acc+3}]'
                    A(f'v_mfma_f32_16x16x32_bf16 v[{acc}:{acc+3}], v[{XF+8*T+4*ks}:{XF+8*T+4*ks+3}], v[{bb}:{bb+3}], {c}')
    hstamp(2)
    A('s_waitcnt lgkmcnt(0)')
    mm(0)
    wreads(152, 0, 8192)
    A(f'''
    s_mov_b32 s58, {0 if forceslow else 1}
    s_movk_i32 s63, {xtries}
    L_xc:
    s_waitcnt vmcnt(0)
    v_cmp_ne_u32 vcc, s46, v130
    s_cbranch_vccz L_xc_done
    global_load_dword v130, v129, s[36:37] sc1
    s_sub_u32 s63, s63, 1
    s_cbranch_scc0 L_xc
    s_mov_b32 s58, 0
    L_xc_done:
    s_waitcnt lgkmcnt(0)
    ''')
    mm(1)
    A(f'''
    s_add_u32 s60, s65, 8192
    s_add_u32 s61, s65, 16384
    s_add_u32 s63, s65, 24576
    v_mov_b32 v20, v28
    v_mov_b32 v21, v131
    v_mov_b32 v22, v28
    v_mov_b32 v23, v131
    s_cmp_eq_u32 s5, 7
    s_cbranch_scc1 L_nopiece
    ''')
    for q in range(4):
        for r in range(4):
            A(f'v_bfi_b32 v{PB+4*r+q}, s47, v{131 if q & 1 else 28}, v{AC+4*q+r}')
    store2([f'buffer_store_dwordx4 v[{PB+4*r}:{PB+4*r+3}], v6, s[40:43], {so} offen' for r, so in enumerate(('s65', 's60', 's61', 's63'))])
    A('L_nopiece:')
    hstamp(3)
    A(f'''
    v_and_b32 v20, s47, v20
    v_and_b32 v21, s47, v21
    v_and_b32 v22, s47, v22
    v_and_b32 v23, s47, v23
    s_mov_b32 s63, {SPIN}
    L_poll7:
    buffer_load_dwordx4 v[8:11], v7, s[40:43], s67 offen sc1
    buffer_load_dwordx4 v[12:15], v7, s[40:43], s67 offen offset:1024 sc1
    buffer_load_dwordx4 v[16:19], v7, s[40:43], s67 offen offset:2048 sc1
    s_mov_b32 exec_hi, 0
    buffer_load_dwordx4 v[20:23], v7, s[40:43], s67 offen offset:3072 sc1
    s_mov_b32 exec_hi, -1
    s_sub_u32 s63, s63, 1
    s_waitcnt vmcnt(0)
    s_cbranch_scc1 L_poll7_done
    v_xor_b32 v24, v8, v28
    v_xor_b32 v25, v9, v131
    ''')
    for r in range(10, 24, 2):
        A(f'v_bitop3_b32 v24, v{r}, v28, v24 bitop3:0xbe')
        A(f'v_bitop3_b32 v25, v{r+1}, v131, v25 bitop3:0xbe')
    A(f'''
    v_or_b32 v24, v24, v25
    v_and_b32 v24, s47, v24
    v_cmp_ne_u32 vcc, 0, v24
    s_cbranch_vccz L_poll7_done
    s_sleep {psleep}
    s_branch L_poll7
    L_poll7_done:
    v_pk_add_f32 v[8:9], v[8:9], v[12:13]
    v_pk_add_f32 v[10:11], v[10:11], v[14:15]
    v_pk_add_f32 v[16:17], v[16:17], v[20:21]
    v_pk_add_f32 v[18:19], v[18:19], v[22:23]
    v_pk_add_f32 v[8:9], v[8:9], v[16:17]
    v_pk_add_f32 v[10:11], v[10:11], v[18:19]
    s_mov_b32 vcc_lo, 0xaaaaaaaa
    s_mov_b32 vcc_hi, 0
    v_permlane32_swap_b32 v8, v10
    v_permlane32_swap_b32 v9, v11
    v_add_f32 v8, v8, v10
    v_add_f32 v9, v9, v11
    v_cvt_pk_bf16_f32 v10, v8, v9
    v_lshlrev_b32 v11, 16, v10
    v_and_b32 v10, 0xffff0000, v10
    v_max_f32 v11, 0, v11
    s_mov_b32 exec_lo, 0
    v_mul_f32 v8, v11, v10
    v_mul_f32 v9, v11, v10
    s_mov_b32 exec_lo, -1
    v_cndmask_b32 v10, v9, v8, vcc
    s_lshr_b32 s60, s5, 1
    s_lshl3_add_u32 s60, s60, s4
    s_lshl_b32 s60, s60, 12
    v_mov_b32_dpp v11, v10 quad_perm:[1,0,3,2] row_mask:0xf bank_mask:0xf
    s_add_u32 s60, s60, {QX}
    s_and_b32 s61, s5, 1
    s_lshl1_add_u32 s61, s6, s61             ; 2b + half
    v_cndmask_b32 v8, v8, v11, vcc
    v_cndmask_b32 v9, v11, v9, vcc
    v_cvt_pk_bf16_f32 v26, v8, v9
    v_mov_b32 v27, v28
    s_lshl_b32 s63, s61, 7
    s_add_u32 s63, s63, {2048-128}
    s_lshl_b32 s61, s61, 8
    v_and_b32 v9, 1, v0
    v_mul_u32_u24 v9, 124, v9
    v_add_u32 v9, s61, v9
    s_mov_b32 exec_lo, 0
    v_mov_b32 v9, s63
    s_mov_b32 exec_lo, -1
    v_lshl_add_u32 v9, v0, 2, v9
    s_mov_b32 exec_hi, 0x55555555
    ''')
    store2([f'buffer_store_dwordx2 v[26:27], v9, s[40:43], s60 offen'])
    A('s_mov_b32 exec_hi, -1')
    hstamp(4)
    A(f'''
    s_mov_b32 s63, {SPIN}
    L_poll3:
    buffer_load_dwordx4 v[8:11], v7, s[40:43], s59 offen sc1
    buffer_load_dwordx4 v[12:15], v7, s[40:43], s59 offen offset:1024 sc1
    buffer_load_dwordx4 v[16:19], v7, s[40:43], s59 offen offset:2048 sc1
    s_sub_u32 s63, s63, 1
    s_waitcnt vmcnt(0)
    s_cbranch_scc1 L_poll3_done
    v_min3_u32 v24, v9, v11, v13
    v_max3_u32 v25, v9, v11, v13
    v_min3_u32 v24, v24, v15, v17
    v_max3_u32 v25, v25, v15, v17
    v_min3_u32 v24, v24, v19, v28
    v_max3_u32 v25, v25, v19, v28
    v_cmp_ne_u32 vcc, v24, v25
    s_cbranch_vccz L_poll3_done
    s_sleep {psleep}
    s_branch L_poll3
    L_poll3_done:
    v_and_b32 v24, 0x138, v29                ; l5*256 + (l&7)*8
    v_and_b32 v25, 8, v0
    v_lshl_add_u32 v24, v25, 4, v24
    v_and_b32 v25, 16, v0
    v_lshl_add_u32 v24, v25, 2, v24
    v_add_u32 v24, {QL}, v24
    v_add_u32 v25, {HL}, v29
    ds_write2_b32 v24, v8, v10 offset0:0 offset1:1
    ds_write2_b32 v24, v12, v14 offset0:128 offset1:129
    ds_write2_b32 v25, v16, v18 offset0:0 offset1:1
    ds_write_b32 v31, v30 offset:{FLQ-MISC}
    ''')
    hstamp(6)
    A(f'''
    s_mul_i32 s64, s6, 7
    s_add_u32 s64, s64, s5                   ; 7b + j
    ''')
    if fin != 'D':
        A(f'''
        s_cmp_eq_u32 s5, 7
        s_cbranch_scc1 L_notk
        s_lshl_b32 s60, s64, 7
        s_add_u32 s60, s60, {TK}
        v_mov_b32 v56, s60
        v_not_b32 v57, v28
        s_mov_b64 exec, 1
        buffer_store_byte v57, v56, s[40:43], s4 offen sc1
        s_mov_b64 exec, -1
        L_notk:
        ''')
    cntwait(CNT, 'L_wc', 4)
    hstamp(7)
    A(f'''
    v_lshlrev_b32 v8, 3, v2
    v_add_u32 v8, {STW}, v8
    ds_read_b64 v[4:5], v8
    s_lshl4_add_u32 s61, s5, s7
    v_mov_b32 v25, v28
    s_waitcnt lgkmcnt(0)
    v_max_f32_dpp v24, v4, v4 quad_perm:[1,0,3,2] row_mask:0xf bank_mask:0xf
    v_max_f32_dpp v24, v24, v24 quad_perm:[2,3,0,1] row_mask:0xf bank_mask:0xf
    v_max_f32_dpp v24, v24, v24 row_half_mirror row_mask:0xf bank_mask:0xf
    v_sub_f32 v26, v4, v24
    v_mul_f32 v26, {CEXP}, v26
    v_exp_f32 v26, v26
    v_mul_f32 v26, v26, v5
    v_add_f32_dpp v26, v26, v26 quad_perm:[1,0,3,2] row_mask:0xf bank_mask:0xf
    v_add_f32_dpp v26, v26, v26 quad_perm:[2,3,0,1] row_mask:0xf bank_mask:0xf
    v_add_f32_dpp v26, v26, v26 row_half_mirror row_mask:0xf bank_mask:0xf
    s_mov_b64 exec, 0x101
    ''')
    store2([f'buffer_store_dwordx4 v[24:27], v7, s[40:43], s61 offen'])
    A(f'''
    s_mov_b64 exec, 0xffff
    s_mov_b32 s63, {SPIN}
    L_polls:
    buffer_load_dwordx4 v[16:19], v7, s[40:43], s7 offen sc1
    s_sub_u32 s63, s63, 1
    s_waitcnt vmcnt(0)
    s_cbranch_scc1 L_polls_done
    v_min3_u32 v10, v17, v19, v28
    v_max3_u32 v11, v17, v19, v28
    v_cmp_ne_u32 vcc, v10, v11
    s_cbranch_vccz L_polls_done
    s_sleep {psleep}
    s_branch L_polls
    L_polls_done:
    ''')
    hstamp(8)
    A(f'''
    v_max_f32_dpp v10, v16, v16 quad_perm:[1,0,3,2] row_mask:0xf bank_mask:0xf
    v_max_f32_dpp v10, v10, v10 quad_perm:[2,3,0,1] row_mask:0xf bank_mask:0xf
    v_max_f32_dpp v10, v10, v10 row_half_mirror row_mask:0xf bank_mask:0xf
    v_sub_f32 v11, v16, v10
    v_sub_f32 v10, v4, v10
    v_mul_f32 v11, {CEXP}, v11
    v_mul_f32 v10, {CEXP}, v10
    v_exp_f32 v11, v11
    v_exp_f32 v10, v10
    v_mul_f32 v11, v11, v18
    v_add_f32_dpp v11, v11, v11 quad_perm:[1,0,3,2] row_mask:0xf bank_mask:0xf
    v_add_f32_dpp v11, v11, v11 quad_perm:[2,3,0,1] row_mask:0xf bank_mask:0xf
    v_add_f32_dpp v11, v11, v11 row_half_mirror row_mask:0xf bank_mask:0xf
    v_rcp_f32 v11, v11
    v_mul_f32 v10, v10, v11
    v_and_b32 v9, 56, v29
    v_lshrrev_b32 v8, 1, v0
    v_and_b32 v8, 4, v8
    v_add3_u32 v9, v9, v8, v31
    v_subrev_u32 v9, {MISC-FACW}, v9
    ds_write_b32 v9, v10
    s_mov_b64 exec, -1
    v_mov_b32 v24, 1
    v_mov_b32 v25, s58
    v_mov_b32 v26, v28
    ds_write_b128 v31, v[24:27] offset:{FLF-MISC}
    s_cmp_eq_u32 s5, 7
    s_waitcnt lgkmcnt(0)
    s_cbranch_scc1 {'L_end' if pad else 'L_hdone'}
    s_lshl_b32 s61, s64, 7
    v_lshlrev_b32 v4, 1, v0
    v_add_u32 v4, s61, v4
    v_add_u32 v5, {XN}, v4
    ds_read_u16 v5, v5                       ; residual x
    s_mov_b64 s[52:53], s[34:35]
    s_movk_i32 s54, 3584
    s_mov_b32 s55, 0x20000
    s_lshl_b32 s60, s64, 12
    s_add_u32 s60, s60, {P2}
    v_add_u32 v6, s60, v29
    v_lshlrev_b32 v7, 2, v0
    v_add_u32 v7, {YL}, v7
    ''')
    for i in range(8):
        A(f's_add_u32 s{18+i}, s4, {i}')
        A(f's_and_b32 s{18+i}, s{18+i}, 7')
        A(f's_lshl_b32 s{18+i}, s{18+i}, 9')
    if fin == 'D':
        A(f'''
    s_waitcnt lgkmcnt(0)
    v_lshlrev_b32 v5, 16, v5
    s_barrier                               ; #4
    ''')
        hstamp(9)
        A('s_call_b64 s[14:15], L_others')
        hstamp(10)
        A(f'''
    s_barrier                               ; #5
    ds_read2st64_b32 v[48:49], v7 offset0:0 offset1:1
    ds_read2st64_b32 v[50:51], v7 offset0:2 offset1:3
    ds_read2st64_b32 v[52:53], v7 offset0:4 offset1:5
    ds_read2st64_b32 v[54:55], v7 offset0:6 offset1:7
    s_waitcnt lgkmcnt(2)
    v_add_f32 v48, v48, v49
    v_add_f32 v50, v50, v51
    s_waitcnt lgkmcnt(0)
    v_add_f32 v52, v52, v53
    v_add_f32 v54, v54, v55
    v_add_f32 v48, v48, v50
    v_add_f32 v52, v52, v54
    v_add_f32 v26, v48, v52
    s_cbranch_vccnz L_late
    ''')
    else:
        A(f'''
    s_lshl_b32 s60, s56, 14
    s_add_u32 s60, s60, {P1 + 16384 - 128}
    v_lshl_add_u32 v57, v0, 4, s60
    s_and_b32 s60, s62, 0xff
    s_mul_i32 s26, s60, 0x01010101
    s_mov_b32 s27, s26
    s_lshl_b32 s60, s4, 3
    s_lshl_b64 s[28:29], 0xff, s60
    s_waitcnt lgkmcnt(0)
    v_lshlrev_b32 v5, 16, v5
    v_mov_b32 v58, s28
    v_mov_b32 v59, s29
    s_mov_b32 s63, {SPIN}
    s_barrier                               ; #4
        ''')
        hstamp(9)
        A(f'''
    s_mov_b64 exec, 0xff
    L_trig:
    buffer_load_dwordx2 v[60:61], v57, s[40:43], 0 offen sc1
    s_sub_u32 s63, s63, 1
    s_waitcnt vmcnt(0)
    s_cbranch_scc1 L_trig_done
    v_cmp_ne_u32 vcc, v61, v28
    s_cbranch_vccnz L_trig
    L_trig_done:
    s_mov_b64 exec, 1
    buffer_atomic_xor_x2 v[58:59], v56, s[40:43], 0 offen sc0 sc1
    s_mov_b64 exec, -1
        ''')
        if spec:
            for i in range(1, 8):
                A(f'buffer_load_dwordx2 v[{32+2*i}:{33+2*i}], v6, s[40:43], s{18+i} offen sc1')
        hstamp(10)
        A(f'''
    s_barrier                               ; #5
    ds_read2st64_b32 v[48:49], v7 offset0:0 offset1:1
    ds_read2st64_b32 v[50:51], v7 offset0:2 offset1:3
    ds_read2st64_b32 v[52:53], v7 offset0:4 offset1:5
    ds_read2st64_b32 v[54:55], v7 offset0:6 offset1:7
    s_waitcnt lgkmcnt(2)
    v_add_f32 v48, v48, v49
    v_add_f32 v50, v50, v51
    s_waitcnt lgkmcnt(0)
    v_add_f32 v52, v52, v53
    v_add_f32 v54, v54, v55
    v_add_f32 v48, v48, v50
    v_add_f32 v52, v52, v54
    v_add_f32 v26, v48, v52
    s_waitcnt vmcnt({7 if spec else 0})
    v_readfirstlane_b32 s30, v58
    v_readfirstlane_b32 s31, v59
    s_xor_b64 s[30:31], s[30:31], s[26:27]
    s_andn2_b64 s[30:31], s[30:31], s[28:29]
    s_cbranch_scc1 L_late
        ''')
        hstamp(13)
        A(f'''
    s_mov_b32 s63, {SPIN}
    {'s_branch L_fchk' if spec else ''}
    L_fpoll:
        ''')
        for i in range(1, 8):
            A(f'buffer_load_dwordx2 v[{32+2*i}:{33+2*i}], v6, s[40:43], s{18+i} offen sc1')
        A(f'''
    L_fchk:
    s_sub_u32 s63, s63, 1
    s_waitcnt vmcnt(0)
    s_cbranch_scc1 L_fsum
    v_min3_u32 v12, v35, v37, v39
    v_max3_u32 v13, v35, v37, v39
    v_min3_u32 v12, v12, v41, v43
    v_max3_u32 v13, v13, v41, v43
    v_min3_u32 v12, v12, v45, v47
    v_max3_u32 v13, v13, v45, v47
    v_min_u32 v12, v12, v28
    v_max_u32 v13, v13, v28
    v_cmp_ne_u32 vcc, v12, v13
    s_cbranch_vccnz L_fwait
    L_fsum:
    v_add_f32 v34, v34, v36
    v_add_f32 v38, v38, v40
    v_add_f32 v42, v42, v44
    v_add_f32 v46, v46, v5
    v_add_f32 v34, v34, v38
    v_add_f32 v42, v42, v46
    v_add_f32 v34, v34, v42
        ''')
    A(f'''
    L_finish:
    v_add_f32 v34, v34, v26
    v_cvt_pk_bf16_f32 v34, v34, v34
    buffer_store_short v34, v4, s[52:55], 0 offen
    {'' if fin == 'D' else 'buffer_store_dwordx2 v[26:27], v6, s[40:43], s18 offen sc1'}
    ''')
    hstamp(11)
    if stamps and 14 in hl:
        A(f's_sub_u32 s60, {SPIN}, s63\ns_mul_i32 s60, s60, 100\ns_add_u32 s60, s68, s60\ns_addc_u32 s61, s69, 0\nv_writelane_b32 v164, s60, 14\nv_writelane_b32 v165, s61, 14')
    A(f'''
    s_cmp_lg_u32 s64, 21
    s_cbranch_scc1 L_hdone
    s_mov_b64 exec, 1
    v_mov_b32 v1, {EPOCH}
    buffer_store_dword v28, v1, s[40:43], 0 offen
    L_hdone:
    ''')
    if pad and padat[0] == 'h': dopad('L_padh')
    if stamps:
        hstamp(12)
        A(f'''
        s_mov_b64 exec, 0xffff
        s_lshl_b32 s60, s2, 9
        s_add_u32 s60, s60, {STAMPS+256}
        buffer_store_dwordx2 v[164:165], v29, s[40:43], s60 offen
        ''')
    A(f'''
    L_end:
    s_endpgm
    ''')
    if fin != 'D':
        A(f'''
    L_late:
    buffer_store_dwordx2 v[26:27], v6, s[40:43], s18 offen sc1
    s_branch L_hdone
    L_fwait:
    s_cmp_lg_u32 s63, {SPIN-8}
    s_cbranch_scc1 L_fnopub
    buffer_store_dwordx2 v[26:27], v6, s[40:43], s18 offen sc1
    L_fnopub:
    {f's_sleep {fsleep}' if fsleep else ''}
    s_branch L_fpoll
        ''')
    else:
        A(f'''
    L_late:
    buffer_store_dwordx2 v[26:27], v6, s[40:43], s18 offen sc1
    s_call_b64 s[14:15], L_others
    s_cbranch_vccz L_finish
    s_call_b64 s[14:15], L_others
    s_cbranch_vccz L_finish
    s_branch L_hdone
    L_others:
    ''')
        for i in range(1, 8):
            A(f'buffer_load_dwordx2 v[{32+2*i}:{33+2*i}], v6, s[40:43], s{18+i} offen sc1')
        A(f'''
    s_waitcnt vmcnt(0)
    v_min3_u32 v12, v35, v37, v39
    v_max3_u32 v13, v35, v37, v39
    v_min3_u32 v12, v12, v41, v43
    v_max3_u32 v13, v13, v41, v43
    v_min3_u32 v12, v12, v45, v47
    v_max3_u32 v13, v13, v45, v47
    v_min_u32 v12, v12, v28
    v_max_u32 v13, v13, v28
    v_cmp_ne_u32 vcc, v12, v13
    v_add_f32 v34, v34, v36
    v_add_f32 v38, v38, v40
    v_add_f32 v42, v42, v44
    v_add_f32 v46, v46, v5
    v_add_f32 v34, v34, v38
    v_add_f32 v42, v42, v46
    v_add_f32 v34, v34, v42
    s_setpc_b64 s[14:15]
    ''')

    A(f'''
    L_stream:
    s_barrier
    s_add_u32 s12, s20, s57
    s_addc_u32 s13, s21, 0
    s_mov_b64 s[14:15], s[10:11]
    s_mov_b64 s[40:41], s[38:39]
    s_mov_b32 s42, {WSN}
    s_mov_b32 s43, s11
    v_mov_b32 v26, {MISC}
    ''')
    if fastmask:
        A(f'''
        s_getreg_b32 s60, hwreg(HW_REG_XCC_ID, 0, 3)
        s_bitcmp1_b32 {fastmask}, s60
        s_cselect_b64 vcc, -1, 0
        ''')
        vm.d = dthr
    if kfirst: hb('K0', 0, thr + 3)
    A(f'''
    s_mov_b64 s[52:53], s[24:25]
    s_mov_b64 s[48:49], s[32:33]
    s_cmp_lt_u32 s5, 7
    s_cselect_b32 s54, {Z(4096*896)}, 0
    s_cselect_b32 s61, s5, 0
    s_lshl_b32 s61, s61, 7
    s_lshl4_add_u32 s64, s4, s3
    s_mul_i32 s64, s64, {32*896}
    s_add_u32 s64, s64, s61
    s_lshl3_add_u32 s65, s4, s3
    s_mul_i32 s65, s65, {32*896}
    s_add_u32 s65, s65, s61
    s_cmp_lt_u32 s7, 7
    s_cselect_b32 s50, {Z(1792*896)}, 0
    s_cselect_b32 s65, s65, 0
    v_and_b32 v1, 15, v0                     ; row
    v_lshrrev_b32 v2, 4, v0                  ; g
    v_and_b32 v3, 7, v0
    v_lshlrev_b32 v3, 1, v3
    v_xor_b32 v3, v3, v2
    v_lshlrev_b32 v3, 4, v3
    v_lshl_add_u32 v3, v1, 9, v3
    v_add_u32 v8, s59, v3
    v_xor_b32 v9, 64, v8
    v_xor_b32 v10, 0x80, v8
    v_xor_b32 v11, 0xc0, v8
    ''')
    def readK(dst, slot):
        for t in range(8):
            A(f'ds_read_b128 v[{dst+4*t}:{dst+4*t+3}], v{vKA[t&3]} offset:{slot*8192 + (t>>2)*256}')
    def readQ(dst, ts):
        for n, t in enumerate(ts):
            A(f'ds_read_b128 v[{dst+4*n}:{dst+4*n+3}], v24 offset:{t*64}')
    def qk(tile, src, qf, ts=range(8)):
        for n, t in enumerate(ts):
            c = '0' if t == 0 else f'v[{Sx+4*tile}:{Sx+4*tile+3}]'
            A(f'v_mfma_f32_16x16x32_bf16 v[{Sx+4*tile}:{Sx+4*tile+3}], v[{src+4*t}:{src+4*t+3}], v[{qf+4*n}:{qf+4*n+3}], {c}')
    def flagwait(off, lab):
        A(f'''
        s_mov_b32 s61, {SPIN*8}
        {lab}:
        ds_read_b32 v1, v26 offset:{off-MISC}
        s_sub_u32 s61, s61, 1
        s_waitcnt lgkmcnt(0)
        s_cbranch_scc1 {lab}_done
        v_readfirstlane_b32 s67, v1
        s_cmp_lg_u32 s67, 0
        s_cbranch_scc1 {lab}_done
        s_sleep 1
        s_branch {lab}
        {lab}_done:
        ''')
    vm.wait('small')
    A(f'''
    s_mov_b64 exec, 1
    ds_add_u32 v26, v28 offset:{CNT0-MISC}
    s_mov_b64 exec, -1
    ''')
    stamp(2)
    if not kfirst: hb('K0', 0)
    A('s_cmp_gt_u32 s3, 1')
    A('s_cbranch_scc1 L_wg_done')
    flagwait(FLG, 'L_wg')
    ha('K1', 1)
    vm.wait('K0')
    readK(KfA, 0)
    A(f'''
    v_lshrrev_b32 v21, 2, v0                 ; row = l/4
    v_and_b32 v22, 7, v21
    v_lshlrev_b32 v22, 5, v22
    v_lshl_add_u32 v22, v21, 9, v22
    v_and_b32 v23, 3, v0
    v_lshl_add_u32 v22, v23, 3, v22
    v_add_u32 v12, s59, v22
    ''')
    for t in range(1, 8):
        A(f'v_xor_b32 v{12+t}, {t*32}, v12')
    A(f'''
    v_and_b32 v24, 1, v0
    v_lshlrev_b32 v25, 6, v24                ; head*64
    v_lshlrev_b32 v24, 9, v24
    v_lshl_add_u32 v24, v2, 4, v24
    v_add_u32 v24, {QL}, v24
    s_lshl_b32 s60, s3, 3
    s_add_u32 s60, s60, {STW}
    v_add_u32 v25, s60, v25
    ''')
    hb('K1', 1)
    A('s_waitcnt lgkmcnt(0)')
    ha('K2', 0)
    vm.wait('K1')
    readK(KfB, 1)
    hb('K2', 0)
    A('s_waitcnt lgkmcnt(0)')
    ha('K3', 1)
    vm.wait('K2')
    if k3:
        readK(KfC, 0)
        hb('K3', 1)
        A('s_waitcnt lgkmcnt(0)')
        ha('V0', 0)
        vm.wait('K3')
        hb('V0', 0)
        stamp(3)
        flagwait(FLQ, 'L_wq')
        stamp(4)
        readQ(Pk, range(4))
        readQ(160, range(4, 6))
        A('s_waitcnt lgkmcnt(2)')
        for tile, src in enumerate((KfA, KfB, KfC)): qk(tile, src, Pk, range(4))
        readQ(Pk, range(6, 8))
        A('s_waitcnt lgkmcnt(2)')
        for tile, src in enumerate((KfA, KfB, KfC)): qk(tile, src, 160, range(4, 6))
        A('s_waitcnt lgkmcnt(0)')
        for tile, src in enumerate((KfA, KfB, KfC)): qk(tile, src, Pk, range(6, 8))
        readK(KfA, 1)
        readQ(KfB, range(8))
        A('s_waitcnt lgkmcnt(0)')
        issue('V1', 1, (0,))
        qk(3, KfA, KfB)
    else:
        hb('K3', 1)
        stamp(3)
        flagwait(FLQ, 'L_wq')
        stamp(4)
        readQ(KfC, range(8))
        A('s_waitcnt lgkmcnt(0)')
        qk(0, KfA, KfC)
        readK(KfA, 0)
        qk(1, KfB, KfC)
        A('s_waitcnt lgkmcnt(0)')
        qk(2, KfA, KfC)
        ha('V0', 0)
        vm.wait('K3')
        readK(KfB, 1)
        issue('V0', 0, (1,))
        A('s_waitcnt lgkmcnt(0)')
        qk(3, KfB, KfC)
    MK = 84
    A(f's_mov_b32 s{MK}, 0x00030003')
    A(f's_mov_b32 s{MK+1}, 0x00030003')
    for u in range(1, 8):
        A(f's_lshl_b64 s[{MK+2*u}:{MK+2*u+1}], s[{MK}:{MK+1}], {2*u}')
    A(f's_mov_b32 s63, {CEXP}')
    for i in range(8):
        a, b = Sx + 2*i, Sx + 2*i + 1
        A(f'v_cvt_pk_bf16_f32 v{b}, v{a}, v{b}')
        A(f'v_lshlrev_b32 v{a}, 16, v{b}')
        A(f'v_and_b32 v{b}, 0xffff0000, v{b}')
    A(f'v_max3_f32 v22, v{Sx}, v{Sx+1}, v{Sx+2}')
    for i in range(3, 15, 2):
        A(f'v_max3_f32 v22, v22, v{Sx+i}, v{Sx+i+1}')
    A(f'''
    v_max_f32 v22, v22, v{Sx+15}
    v_mov_b32 v1, v22
    v_permlane16_swap_b32 v22, v1
    v_max_f32 v22, v22, v1
    v_mov_b32 v1, v22
    v_permlane32_swap_b32 v22, v1
    v_max_f32 v22, v22, v1
    ''')
    for i in range(16):
        A(f'v_sub_f32 v{Sx+i}, v{Sx+i}, v22')
    for i in range(16):
        A(f'v_mul_f32 v{Sx+i}, s63, v{Sx+i}')
    for i in range(16):
        A(f'v_exp_f32 v{Sx+i}, v{Sx+i}')
    for i in range(8):
        A(f'v_cvt_pk_bf16_f32 v{Pk+i}, v{Sx+2*i}, v{Sx+2*i+1}')
    for i in range(8):
        A(f'v_add_f32 v{Sx+i}, v{Sx+i}, v{Sx+8+i}')
    for i in range(4):
        A(f'v_add_f32 v{Sx+i}, v{Sx+i}, v{Sx+4+i}')
    A(f'''
    v_add_f32 v{Sx}, v{Sx}, v{Sx+2}
    v_add_f32 v{Sx+1}, v{Sx+1}, v{Sx+3}
    v_add_f32 v23, v{Sx}, v{Sx+1}
    v_mov_b32 v1, v23
    v_permlane16_swap_b32 v23, v1
    v_add_f32 v23, v23, v1
    v_mov_b32 v1, v23
    v_permlane32_swap_b32 v23, v1
    v_add_f32 v23, v23, v1
    s_mov_b64 exec, 3
    ds_write_b64 v25, v[22:23]
    s_mov_b64 exec, 1
    ds_add_u32 v26, v28 offset:{CNT-MISC}
    s_mov_b64 exec, -1
    ''')
    stamp(5)
    if not k3: ha('V1', 1)
    vWO, vWD, vOW, vOR, vP1s, vP1l, vYW, vHA = 22, 23, 24, 25, 27, 28, 29, 21
    vWA = [8, 9, 10, 11]
    A(f'''
    s_waitcnt lgkmcnt(0)
    s_movk_i32 s61, 896
    v_mad_u32_u24 v{vWD}, v{vR8}, s61, v{vCH}
    v_bfe_u32 v1, v0, 3, 1
    v_lshlrev_b32 v1, 8, v1
    v_and_b32 v3, 16, v0
    v_add_u32 v1, v1, v3
    v_lshrrev_b32 v3, 5, v0
    v_add_u32 v1, v1, v3
    v_mad_u32_u24 v{vWO}, v1, s61, v{vCH}
    v_lshrrev_b32 v1, 2, v0
    v_lshlrev_b32 v1, 7, v1
    v_bfe_u32 v2, v0, 3, 2
    v_lshl_add_u32 v1, v2, 5, v1
    v_and_b32 v2, 3, v0
    v_lshl_add_u32 v1, v2, 3, v1
    v_add_u32 v8, s59, v1
    v_xor_b32 v9, 32, v8
    v_xor_b32 v10, 64, v8
    v_xor_b32 v11, 0x60, v8
    v_lshlrev_b32 v1, 4, v0
    s_lshl_b32 s60, s3, 11
    s_add_u32 s60, s60, {AREA}
    v_add_u32 v{vOW}, s60, v1
    v_lshrrev_b32 v2, 4, v0                  ; g
    v_and_b32 v3, 15, v0                     ; c
    v_lshlrev_b32 v31, 12, v2                ; waves 2g, 2g+1
    v_lshl_add_u32 v31, v3, 4, v31
    s_lshl_b32 s60, s3, 8
    s_add_u32 s61, s60, {AREA}
    v_add_u32 v{vOR}, s61, v31
    s_add_u32 s61, s60, {YL}
    v_lshlrev_b32 v31, 2, v0
    v_add_u32 v{vYW}, s61, v31
    s_lshl3_add_u32 s60, s56, s3
    s_lshl_b32 s60, s60, 11
    s_add_u32 s60, s60, {P1}
    v_add_u32 v{vP1l}, s60, v1
    s_lshl4_add_u32 s61, s5, s60
    v_and_b32 v1, 7, v0
    v_lshlrev_b32 v1, 8, v1                  ; (half*4+g)*256
    v_and_b32 v3, 8, v0
    v_lshl_add_u32 v1, v3, 4, v1             ; ks*128
    v_add_u32 v{vP1s}, s61, v1
    s_lshl_b32 s60, s3, 6
    s_add_u32 s60, s60, {HL}
    v_lshlrev_b32 v1, 3, v2
    v_add_u32 v{vHA}, s60, v1
    v_lshlrev_b32 v31, 4, v2
    v_add_u32 v31, {FACW}, v31
    ''')
    Vf = KfA; Mk = KfB
    WOf, WDf = KfC, Sx
    PL = 64
    def masks(i):
        M = Mk + 16*(i & 1)
        for u in range(8):
            A(f'v_cndmask_b32 v{M+2*u}, 0, v{Pk+2*i}, s[{MK+2*u}:{MK+2*u+1}]')
            A(f'v_cndmask_b32 v{M+2*u+1}, 0, v{Pk+2*i+1}, s[{MK+2*u}:{MK+2*u+1}]')
    def pv(i, slot, mid=None):
        M = Mk + 16*(i & 1)
        for t in range(16):
            A(f'ds_read_b64_tr_b16 v[{Vf+2*t}:{Vf+2*t+1}], v{vVA[t&7]} offset:{slot*8192 + (t>>3)*256}')
        if mid: mid()
        for ii in range(8):
            A(f's_waitcnt lgkmcnt({14-2*ii})')
            acc = Oa + 4*(ii >> 2)
            c = '0' if (i == 0 and (ii & 3) == 0) else f'v[{acc}:{acc+3}]'
            A(f'v_mfma_f32_16x16x32_bf16 v[{acc}:{acc+3}], v[{M+4*(ii&3)}:{M+4*(ii&3)+3}], v[{Vf+4*ii}:{Vf+4*ii+3}], {c}')
    def issueW(p, slot, t=None):
        vm.upto(thr if t is None else t)
        for k in range(4):
            if p < 2:
                A(f's_add_u32 m0, s59, {slot*8192 + (4*p+k)*1024}')
                A(f's_add_u32 s60, s64, {(4*p+k)*2*896}')
                A(f'buffer_load_dwordx4 v{vWO}, s[52:55], s60 offen{wnt} lds')
            else:
                A(f's_add_u32 m0, s59, {slot*8192 + k*1024}')
                A(f's_add_u32 s60, s65, {k*8*896}')
                A(f'buffer_load_dwordx4 v{vWD}, s[48:51], s60 offen{wnt} lds')
        vm.add('WO' if p < 2 else 'WD', 4)
    def readWO(slot):
        for ks in range(2):
            for T in range(4):
                for half in range(2):
                    d = WOf + 16*ks + 4*T + 2*half
                    A(f'ds_read_b64_tr_b16 v[{d}:{d+1}], v{vWA[T]} offset:{slot*8192 + ks*4096 + half*2048}')
    def readWD(slot):
        for T in range(4):
            for half in range(2):
                A(f'ds_read_b64_tr_b16 v[{WDf+4*T+2*half}:{WDf+4*T+2*half+1}], v{vWA[T]} offset:{slot*8192 + half*2048}')
    def pretouch():
        for q in range(2):
            A(f'buffer_load_dwordx4 v[160:163], v{vP1l}, s[40:43], 0 offen offset:{q*1024} sc1')
        vm.add('pre', 2)
    masks(0)
    vm.wait('V0')
    pv(0, 0)
    masks(1)
    hb('V1', 1)
    if not wlast:
        issueW(0, 0)
        vm.wait('V1')
        pv(1, 1)
        issueW(1, 0)
        issueW(2, 1)
        masks(2)
        vm.wait('WO')
        readWO(0)
        A('s_waitcnt lgkmcnt(0)')
        issue('V2', 0, (0,))
        vm.wait('WD')
        readWD(1)
        hb('V2', 0)
        pretouch()
        A('s_waitcnt lgkmcnt(0)')
        ha('V3', 1, thr + 2)
        vm.wait('V2')
        pv(2, 0, lambda: issue('V3', 1, (1,)))
        s3 = 1
    else:
        issueW(2, 0)
        vm.wait('V1')
        pv(1, 1)
        ha('V2', 1)
        masks(2)
        vm.wait('WD')
        readWD(0)
        hb('V2', 1)
        pretouch()
        A('s_waitcnt lgkmcnt(0)')
        ha('V3', 0, thr + 2)
        vm.wait('V2')
        pv(2, 1, lambda: issue('V3', 0, (1,)))
        s3 = 0
    masks(3)
    flagwait(FLF, 'L_wf')
    FC = 160
    A(f'''
    ds_read_b128 v[4:7], v26 offset:{FLF-MISC}
    ds_read2_b64 v[64:67], v{vHA} offset0:0 offset1:4
    s_mov_b32 s{MK}, 0x00010001
    s_mov_b32 s{MK+1}, 0x00010001
    s_mov_b32 s{MK+2}, 0x01000100
    s_mov_b32 s{MK+3}, 0x01000100
    s_mov_b32 s{MK+4}, 0x00ff00ff
    s_mov_b32 s{MK+5}, 0x00ff00ff
    ''')
    vm.wait('pre')
    A(f'''
    ds_read_b128 v[{FC}:{FC+3}], v31
    s_waitcnt lgkmcnt(0)
    v_readfirstlane_b32 s63, v5
    v_mov_b32 v{vTAG}, v6
    v_mov_b32 v5, v6
    ''')
    FA = 144
    for r in range(4):
        A(f'v_cndmask_b32 v{68+r}, 0, v{64+r}, s[{MK}:{MK+1}]')
        A(f'v_cndmask_b32 v{72+r}, 0, v{64+r}, s[{MK+2}:{MK+3}]')
    A(f'''
    v_mfma_f32_16x16x32_bf16 v[{FA}:{FA+3}], v[68:71], v[{WDf}:{WDf+3}], 0
    v_mfma_f32_16x16x32_bf16 v[{FA+4}:{FA+7}], v[68:71], v[{WDf+4}:{WDf+7}], 0
    v_mfma_f32_16x16x32_bf16 v[{FA}:{FA+3}], v[72:75], v[{WDf+8}:{WDf+11}], v[{FA}:{FA+3}]
    v_mfma_f32_16x16x32_bf16 v[{FA+4}:{FA+7}], v[72:75], v[{WDf+12}:{WDf+15}], v[{FA+4}:{FA+7}]
    s_mov_b32 s62, {SPIN}
    ''')
    if wlast:
        issueW(0, 1, wthr)
        if wlast == 1: issueW(1, 1, wthr + 2)
    vm.wait('V3')
    stamp(6)
    pv(3, s3, (lambda: issueW(1, 1, 99)) if wlast == 2 else None)
    A(f'''
    ds_write_b128 v{vOW}, v[{Oa}:{Oa+3}]
    ds_write_b128 v{vOW}, v[{Oa+4}:{Oa+7}] offset:1024
    s_waitcnt lgkmcnt(0)
    ''')
    stamp(7)
    A(f'''
    s_barrier                               ; #4: O partials
    ds_read_b128 v[32:35], v{vOR}
    ds_read_b128 v[36:39], v{vOR} offset:2048
    s_cmp_eq_u32 s63, 0
    s_waitcnt lgkmcnt(1)
    v_mul_f32 v32, v32, v{FC}
    v_mul_f32 v34, v34, v{FC}
    v_mul_f32 v33, v33, v{FC+1}
    v_mul_f32 v35, v35, v{FC+1}
    s_waitcnt lgkmcnt(0)
    v_fmac_f32 v32, v36, v{FC+2}
    v_fmac_f32 v34, v38, v{FC+2}
    v_fmac_f32 v33, v37, v{FC+3}
    v_fmac_f32 v35, v39, v{FC+3}
    v_permlane32_swap_b32 v32, v34
    v_permlane32_swap_b32 v33, v35
    v_add_f32 v36, v32, v34
    v_add_f32 v37, v33, v35
    v_add_f32 v32, v32, v34
    v_add_f32 v33, v33, v35
    v_permlane16_swap_b32 v32, v36
    v_permlane16_swap_b32 v33, v37
    v_add_f32 v32, v32, v36
    v_add_f32 v33, v33, v37
    v_cvt_pk_bf16_f32 v4, v32, v33
    v_cvt_pk_bf16_f32 v6, v32, v33
    v_permlane32_swap_b32 v4, v6
    s_mov_b64 exec, 0xffff
    s_cbranch_scc1 L_slowpub
    buffer_store_dwordx4 v[4:7], v{vP1s}, s[40:43], 0 offen
    L_pubdone:
    s_mov_b64 exec, -1
    ''')
    vm.add('pub', 1)
    stamp(8)
    A(f'''
    s_cmp_eq_u32 s5, 7
    s_cbranch_scc1 L_sdone
    ''')
    def polls():
        for q in range(2):
            A(f'buffer_load_dwordx4 v[{PL+4*q}:{PL+4*q+3}], v{vP1l}, s[40:43], 0 offen offset:{q*1024} sc1')
    if wlast:
        polls(); vm.add('poll', 2)
        vm.wait('WO')
        readWO(1)
        A('s_branch L_poll1_chk')
    A('L_poll1:')
    polls()
    A(f'''
    L_poll1_chk:
    s_sub_u32 s62, s62, 1
    s_waitcnt vmcnt(0)
    s_cbranch_scc1 L_poll1_done
    v_min3_u32 v1, v{PL+1}, v{PL+3}, v{PL+5}
    v_max3_u32 v2, v{PL+1}, v{PL+3}, v{PL+5}
    v_min3_u32 v1, v1, v{PL+7}, v{vTAG}
    v_max3_u32 v2, v2, v{PL+7}, v{vTAG}
    v_cmp_ne_u32 vcc, v1, v2
    s_cbranch_vccnz L_poll1
    L_poll1_done:
    ''')
    stamp(9)
    LO, HI = 80, 88
    def omm(a, ks, T0):
        for x in range(2):
            acc = FA + 4*x
            bb = WOf + 16*ks + 4*(T0 + x)
            A(f'v_mfma_f32_16x16x32_bf16 v[{acc}:{acc+3}], v[{a}:{a+3}], v[{bb}:{bb+3}], v[{acc}:{acc+3}]')
    for q in range(4):
        A(f'v_cndmask_b32 v{LO+q}, 0, v{PL+2*q}, s[{MK+4}:{MK+5}]')
    for q in range(4):
        A(f'v_cndmask_b32 v{HI+4+q}, v{PL+2*q}, 0, s[{MK+4}:{MK+5}]')
    if wlast: A('s_waitcnt lgkmcnt(0)')
    omm(LO, 0, 0)
    for q in range(4):
        A(f'v_mov_b32_dpp v{HI+q}, v{PL+2*q} row_shr:8 row_mask:0xf bank_mask:0xf bound_ctrl:0')
    omm(HI+4, 1, 2)
    for q in range(4):
        A(f'v_mov_b32_dpp v{LO+4+q}, v{PL+2*q} row_shl:8 row_mask:0xf bank_mask:0xf bound_ctrl:0')
    omm(HI, 0, 2)
    omm(LO+4, 1, 0)
    A(f'''
    v_add_f32 v{FA}, v{FA}, v{FA+1}
    v_add_f32 v{FA+2}, v{FA+2}, v{FA+3}
    v_add_f32 v{FA+4}, v{FA+4}, v{FA+5}
    v_add_f32 v{FA+6}, v{FA+6}, v{FA+7}
    v_add_f32 v{FA}, v{FA}, v{FA+2}
    v_add_f32 v{FA+4}, v{FA+4}, v{FA+6}
    v_permlane16_swap_b32 v{FA}, v{FA+4}
    v_add_f32 v{FA}, v{FA}, v{FA+4}
    ds_write_b32 v{vYW}, v{FA}
    s_waitcnt lgkmcnt(0)
    ''')
    stamp(10)
    A('s_barrier                               ; #5')
    if pad and padat[0] == 's': dopad('L_pads')
    A('L_sdone:')
    if stamps:
        A(f's_cmp_eq_u32 s3, 0')
        A('s_cbranch_scc1 L_dump0')
        A(f's_cmp_lg_u32 s3, 7')
        A('s_cbranch_scc1 L_end')
        dump_stamps(16, [sreg(k) for k in range(11)])
        A('s_endpgm')
        A('L_dump0:')
        dump_stamps(0, [sreg(k) for k in range(11)])
    A('s_endpgm')
    A(f'''
    L_slowpub:
    buffer_store_dwordx4 v[4:7], v{vP1s}, s[40:43], 0 offen sc1
    s_branch L_pubdone
    ''')
    A('.section .rodata,"a"')
    A('.p2align 6')
    A(f'.amdhsa_kernel {NAME}_kernel')
    A('.amdhsa_next_free_vgpr 168')
    A('.amdhsa_next_free_sgpr 102')
    A('.amdhsa_accum_offset 168')
    A('.amdhsa_group_segment_fixed_size 0')
    A('.amdhsa_kernarg_size 96')
    A('.amdhsa_user_sgpr_count 2')
    A('.amdhsa_user_sgpr_kernarg_segment_ptr 1')
    A('.amdhsa_system_sgpr_workgroup_id_x 1')
    A('.end_amdhsa_kernel')
    return top + A.finalize()

if __name__ == '__main__':
    out = sys.argv[1] if len(sys.argv) > 1 else f'cdna_kernels/{NAME}.s'
    kw = eval('dict(%s)' % sys.argv[2]) if len(sys.argv) > 2 else {}
    open(out, 'w').write(gen(**kw))
    print('wrote', out)
```

```python
import sys, struct, math
from asmlib import Asm
NAME = 'parallel_sum__sliding_block_cached__glu_gated_reglu__decode'

def f32(x): return '0x%08x' % struct.unpack('<I', struct.pack('<f', x))[0]

AREA = 131072
TAB = AREA + 16384
STW = TAB
FACW = TAB + 128
MISC = TAB + 256
FLQ = MISC
CNT = MISC + 4
FLG = MISC + 8
CNT0 = MISC + 12
FLF = MISC + 16
HL = TAB + 512
QL = TAB + 1024
XN = TAB + 2048
YL = XN
LDS_TOTAL = XN + 4096
EPOCH = 0
ST = 0x1000
TK = 0x3000
QX = 0x4000
P2 = 0x24000
P1 = 0x40000
QP = 0xC0000
WS_END = 0x1C0000
STAMPS = 0x300000
SPIN = 400000
CEXP = f32(math.log2(math.e)/16)

class VM:
    def __init__(self, A): self.A = A; self.q = []
    def add(self, name, n): self.q.append((name, n))
    def wait(self, name, extra=''):
        idx = max(i for i, (nm, _) in enumerate(self.q) if nm == name)
        n = sum(c for _, c in self.q[idx+1:])
        self.q = self.q[idx+1:]
        self.A(f's_waitcnt vmcnt({n}){extra}')
    d = 0; nl = 0
    def upto(self, n):
        tot = sum(c for _, c in self.q)
        if tot > n: self.A(f's_waitcnt vmcnt({n})')
        if self.d and n < 50 and tot > max(n - self.d, 0):
            self.nl += 1
            self.A(f's_cbranch_vccz L_pc{self.nl}\ns_waitcnt vmcnt({max(n - self.d, 0)})\nL_pc{self.nl}:')

def gen(stamps=0, wnt='', snt=' nt', kvnt=' nt', forceslow=False, now=False, pad=0, padat=None, thr=2,
        hpre=True, psleep=4, xtries=12, sync=False, xs=('s3', 0), light=False, kfirst=False, k3=True, wlast=1, hs=None, wthr=4, fastmask=0, dthr=0, fh=(), fin='T', spec=False, fsleep=0, hl=(6, 12)):
    A = Asm()
    def sreg(k): return 68 + 2*k if k < 3 else 16 + 2*(k-3)
    def stamp(k):
        if stamps and (not light or k in (0, 6, 10)): A(f's_memrealtime s[{sreg(k)}:{sreg(k)+1}]')
        if padat == f's{k}': A('s_memrealtime s[100:101]')
    def hstamp(k):
        if stamps and (not light or k in hl):
            A(f's_memrealtime s[100:101]\ns_waitcnt lgkmcnt(0)\nv_writelane_b32 v164, s100, {k}\nv_writelane_b32 v165, s101, {k}')
        if padat == f'h{k}': A('s_memrealtime s[100:101]\ns_waitcnt lgkmcnt(0)')
    def dopad(lab):
        A(f'''
        {lab}:
        s_memrealtime s[98:99]
        s_waitcnt lgkmcnt(0)
        s_sub_u32 s98, s98, s100
        s_cmp_lt_u32 s98, {pad}
        s_cbranch_scc1 {lab}
        ''')
    def dump_stamps(slot0, regs_):
        A('s_waitcnt vmcnt(0) lgkmcnt(0)')
        A('s_mov_b64 exec, 1')
        A('s_lshl_b32 s60, s2, 9')
        A(f's_add_u32 s60, s60, {STAMPS}')
        A('v_mov_b32 v1, s60')
        for k, r in enumerate(regs_):
            A(f'v_mov_b32 v2, s{r}')
            A(f'v_mov_b32 v3, s{r+1}')
            A(f'buffer_store_dwordx2 v[2:3], v1, s[40:43], 0 offen offset:{8*(slot0+k)}')
    WSN = 0x400000 if stamps else WS_END
    Z = (lambda n: 0) if now else (lambda n: n)
    hdr = open('cdna_kernels/%s.s.ref' % NAME).read().split('; Override launch geometry')[0]
    top = hdr + f'; @launch grid=(256,1,1) block=(576,1,1) lds={LDS_TOTAL}\n'
    A('.amdgcn_target "amdgcn-amd-amdhsa--gfx950"')
    A('.text')
    A(f'.globl {NAME}_kernel')
    A('.p2align 8')
    A(f'.type {NAME}_kernel,@function')
    A(f'{NAME}_kernel:')
    if sync:
        A('''
        s_memrealtime s[4:5]
        s_waitcnt lgkmcnt(0)
        s_add_u32 s6, s4, 4096+600
        s_and_b32 s6, s6, -4096
        L_sync:
        s_memrealtime s[4:5]
        s_waitcnt lgkmcnt(0)
        s_sub_u32 s4, s4, s6
        s_cmp_lt_i32 s4, 0
        s_cbranch_scc1 L_sync
        s_branch L_go
        .p2align 10
        L_go:
        ''')
    stamp(0)
    vm = VM(A)
    vD = [4, 5, 6, 7]; vKA = [8, 9, 10, 11]; vVA = list(range(12, 20)); vTAG = 20
    KfA, KfB, KfC, Sx, Pk, Oa = 32, 64, 96, 128, 144, 152
    vCH, vR8 = 30, 31
    KS, VS = 's[8:11]', 's[12:15]'
    def issue(name, slot, halves=(0, 1)):
        srd = KS if name[0] == 'K' else VS
        i = int(name[1])
        for half in halves:
            first = (name == 'K0' and half == 0)
            if not first:
                A(f's_xor_b32 m0, {"s74" if hs else "s59"}, {slot*8192 + half*4096}')
                A(f's_xor_b32 s60, s58, {i*524288 + half*4096}')
            for q in range(4):
                if q in (0, 2) and name + 'ab'[half] in fh:
                    A(f's_cbranch_vccz L_f{name}{half}{q}\ns_waitcnt vmcnt(1)\nL_f{name}{half}{q}:')
                A(f'buffer_load_dwordx4 v{vD[q]}, {srd}, {"s58" if first else "s60"} offen offset:{q*1024}{kvnt} lds')
            vm.add(name, 4)
    def ha(name, slot, t=None):
        vm.upto(thr if t is None else t); issue(name, slot, (0,))
    def hb(name, slot, t=None):
        vm.upto(thr if t is None else t); issue(name, slot, (1,))
    A(f'''
    s_load_dwordx16 s[16:31], s[0:1], 0
    s_load_dwordx8 s[32:39], s[0:1], 64
    v_readfirstlane_b32 s3, v0
    s_cmpk_ge_u32 s2, 256
    s_cbranch_scc1 L_end
    v_and_b32 v0, 63, v0                     ; lane
    s_lshr_b32 s3, s3, 6                     ; wave
    s_and_b32 s4, s2, 7                      ; hkv
    s_bfe_u32 s5, s2, 0x30003                ; j
    s_lshr_b32 s6, s2, 6                     ; b
    s_lshl3_add_u32 s56, s6, s4
    s_cmp_eq_u32 s3, 8
    s_cbranch_scc1 L_helper
    v_lshrrev_b32 v1, 4, v0
    v_and_b32 v1, 2, v1
    v_xor_b32 v1, v1, v0
    v_lshlrev_b32 v4, 4, v1
    v_xor_b32 v5, 64, v4
    v_xor_b32 v6, 0x80, v4
    v_xor_b32 v7, 64, v6
    s_lshl3_add_u32 s66, s5, s3              ; 8j + w
    s_lshl_b32 s57, s56, 23
    s_add_u32 s57, s57, {12288*512}
    s_lshl_b32 s59, s3, 14
    s_lshl_b32 s58, s66, 13
    {f's_bfe_u32 s62, {xs[0]}, {0x20000 + xs[1]}' if xs else ''}
    {'s_lshl_b32 s62, s62, 19' if xs else ''}
    {'s_or_b32 s58, s58, s62' if xs else ''}
    {f's_bfe_u32 s62, {hs[0]}, {0x10000 + hs[1]}' if hs else ''}
    {'s_lshl_b32 s62, s62, 12' if hs else ''}
    {'s_or_b32 s58, s58, s62' if hs else ''}
    {'s_or_b32 s74, s59, s62' if hs else ''}
    s_mov_b32 s10, 0x200000
    s_mov_b32 s11, 0x20000
    ''')
    saddr = f'''
    v_bfe_u32 v2, v0, 4, 2
    v_lshlrev_b32 v2, 1, v2
    v_and_b32 v3, 7, v0
    v_xor_b32 v2, v2, v3
    v_lshlrev_b32 v{vCH}, 4, v2
    v_lshrrev_b32 v{vR8}, 3, v0
    v_lshl_add_u32 v21, v{vR8}, 13, v{vCH}
    s_movk_i32 s46, 3584
    v_mad_u32_u24 v23, v{vR8}, s46, v{vCH}
    s_lshl_b32 s65, s3, 9
    v_lshl_add_u32 v22, v0, 4, s65
    s_lshl2_add_u32 s67, s4, s6              ; 4hkv + b
    s_lshl_b32 s63, s67, 7
    s_mul_i32 s64, s66, {8*3584}
    s_add_u32 s63, s63, s64
    s_lshl_b32 s67, s67, 8
    s_lshl_b32 s64, s66, 16
    s_add_u32 s67, s67, s64
    s_lshl_b32 s62, s3, 10
    s_mov_b32 s47, s11
    s_mov_b32 s51, s11
    s_mov_b32 s55, s11
    s_cmp_lt_u32 s5, 7
    s_cselect_b32 s50, {Z(448*8192)}, 0
    s_cselect_b32 s67, s67, 0
    s_add_u32 s61, s67, 128
    s_max_u32 s7, s4, s5
    s_cmp_lt_u32 s7, 7
    s_cselect_b32 s54, {Z(448*3584)}, 0
    s_cselect_b32 s63, s63, 0
    '''
    if not kfirst: A(saddr)
    A(f'''
    s_mov_b32 m0, {'s74' if hs else 's59'}
    {'s_memrealtime s[100:101]' if padat == 'sa' else ''}
    s_waitcnt lgkmcnt(0)
    {'s_memrealtime s[100:101]' if padat == 'sb' else ''}
    s_add_u32 s8, s18, s57
    s_addc_u32 s9, s19, 0
    ''')
    if kfirst:
        issue('K0', 0, (0,))
        A(saddr)
    A(f'''
    s_add_u32 m0, s65, {XN}
    s_mov_b32 exec_hi, 0
    s_mov_b64 s[44:45], s[16:17]
    buffer_load_dwordx4 v22, s[44:47], 0 offen lds
    s_mov_b32 exec_hi, -1
    s_add_u32 m0, s62, 8192
    s_mov_b64 s[48:49], s[22:23]
    buffer_load_dwordx4 v21, s[48:51], s67 offen{snt} lds
    s_add_u32 m0, s62, {16384+8192}
    s_mov_b64 s[52:53], s[28:29]
    buffer_load_dwordx4 v21, s[48:51], s61 offen{snt} lds
    s_add_u32 m0, s62, {AREA}
    v_mov_b32 v28, 1
    buffer_load_dwordx4 v23, s[52:55], s63 offen{snt} lds
    s_add_u32 m0, s62, {AREA+8192}
    s_mov_b64 s[52:53], s[30:31]
    buffer_load_dwordx4 v23, s[52:55], s63 offen{snt} lds
    ''')
    vm.add('small', 5)
    if not kfirst:
        A(f's_mov_b32 m0, {"s74" if hs else "s59"}')
        issue('K0', 0, (0,))
    stamp(1)
    A('s_branch L_stream')

    XR = 8
    XF = 32
    RA = 156
    WF = 64
    AC = 132
    PB = 64
    nstore = [0]
    def store2(ins):
        n = nstore[0]; nstore[0] += 1
        A(f's_cmp_eq_u32 s58, 0\ns_cbranch_scc1 L_ss{n}')
        for i in ins: A(i)
        A(f's_branch L_sd{n}\nL_ss{n}:')
        for i in ins: A(i + ' sc1')
        A(f'L_sd{n}:')
    def cntwait(off, lab, sl):
        A(f'''
        s_mov_b32 s63, {SPIN*8}
        {lab}:
        ds_read_b32 v9, v31 offset:{off-MISC}
        s_sub_u32 s63, s63, 1
        s_waitcnt lgkmcnt(0)
        s_cbranch_scc1 {lab}_done
        v_cmp_eq_u32 vcc, 8, v9
        s_cbranch_vccnz {lab}_done
        s_sleep {sl}
        s_branch {lab}
        {lab}_done:
        ''')
    A(f'''
    L_helper:
    s_setprio 3
    s_getreg_b32 s57, hwreg(HW_REG_XCC_ID, 0, 7)
    s_lshl_b32 s66, s4, 5
    s_lshr_b32 s61, s2, 3
    s_add_u32 s61, s61, s66
    s_add_u32 s57, s57, 1
    v_mov_b32 v9, s61
    v_mov_b32 v10, s57
    v_mov_b32 v31, {MISC}
    v_lshl_add_u32 v1, v0, 2, v31
    v_mov_b32 v2, 0
    ds_write_b32 v1, v2                      ; flags = 0
    s_mov_b64 exec, 1
    s_waitcnt lgkmcnt(0)
    global_store_byte v9, v10, s[36:37]
    s_load_dword s62, s[38:39], {EPOCH}
    s_mov_b64 exec, -1
    ''')
    if stamps: A('v_mov_b32 v164, 0\nv_mov_b32 v165, 0')
    A(f'''
    s_mov_b64 s[40:41], s[38:39]
    s_mov_b32 s42, {WSN}
    s_mov_b32 s43, 0x20000
    s_lshl_b32 s64, s56, 15
    s_add_u32 s64, s64, {QP}
    s_lshl_b32 s65, s5, 9
    s_add_u32 s65, s65, s64
    s_lshl_b32 s67, s5, 12
    s_add_u32 s67, s67, s64
    s_lshl_b32 s59, s56, 12
    s_add_u32 s59, s59, {QX}
    s_lshl_b32 s7, s56, 8
    s_add_u32 s7, s7, {ST}
    ''')
    if hpre:
        A(f'''
        v_lshlrev_b32 v8, 7, v0
        s_mov_b64 exec, 0xfffffff
        buffer_load_dword v128, v8, s[40:43], s67 offen sc1
        s_mov_b64 exec, 0xffffff
        buffer_load_dword v128, v8, s[40:43], s59 offen sc1
        s_mov_b64 exec, 3
        buffer_load_dword v128, v8, s[40:43], s7 offen sc1
        s_mov_b64 exec, -1
        ''')
    A(f'''
    v_lshrrev_b32 v1, 4, v0                  ; g
    v_and_b32 v2, 15, v0
    v_and_b32 v3, 3, v0
    v_mul_u32_u24 v3, 896, v3
    v_add_u32 v3, {XN}, v3                   ; row of batch l%4
    v_lshl_add_u32 v4, v1, 3, v3             ; + g*8
    v_and_b32 v5, 60, v0
    v_lshl_add_u32 v3, v5, 1, v3             ; + (l/4)*8
    s_min_u32 s60, s5, 6
    s_lshl_b32 s60, s60, 7
    v_add_u32 v5, s60, v4
    v_lshrrev_b32 v7, 2, v0
    v_lshlrev_b32 v7, 7, v7
    v_bfe_u32 v6, v0, 3, 2
    v_lshl_add_u32 v7, v6, 5, v7
    v_and_b32 v6, 3, v0
    v_lshl_add_u32 v148, v6, 3, v7
    v_xor_b32 v149, 32, v148
    v_xor_b32 v150, 64, v148
    v_xor_b32 v151, 0x60, v148
    v_add_u32 v152, {AREA}, v148
    v_add_u32 v153, {AREA}, v149
    v_add_u32 v154, {AREA}, v150
    v_add_u32 v155, {AREA}, v151
    s_mov_b32 s8, 0x000f000f
    s_mov_b32 s9, s8
    s_lshl_b64 s[10:11], s[8:9], 4
    s_lshl_b64 s[12:13], s[8:9], 8
    s_lshl_b64 s[14:15], s[8:9], 12
    v_mov_b32 v30, 1
    v_lshlrev_b32 v29, 3, v0                 ; lane*8
    v_lshlrev_b32 v7, 4, v0                  ; lane*16
    v_and_b32 v6, 0x1f0, v7
    v_and_b32 v10, 32, v0
    v_lshl_add_u32 v6, v10, 7, v6
    v_and_b32 v129, 7, v0
    v_lshlrev_b32 v129, 2, v129
    v_add_u32 v129, s66, v129                ; XCD table offset
    s_mul_i32 s46, s57, 0x01010101
    global_load_dword v130, v129, s[36:37] sc1
    s_barrier
    ''')
    hstamp(0)
    cntwait(CNT0, 'L_w0', 1)
    hstamp(1)
    def wreads(areg, base, stride):
        for s_ in range(2):
            for ks in range(2):
                for T in range(4):
                    for half in range(2):
                        d = WF + 32*s_ + 16*ks + 4*T + 2*half
                        A(f'ds_read_b64_tr_b16 v[{d}:{d+1}], v{areg+T} offset:{base + s_*stride + ks*4096 + half*2048}')
    for u in range(7):
        A(f'ds_read_b64 v[{XR+2*u}:{XR+2*u+1}], v3 offset:{128*u}')
    for ks in range(2):
        A(f'ds_read2_b64 v[{RA+4*ks}:{RA+4*ks+3}], v5 offset0:{8*ks} offset1:{8*ks+4}')
    wreads(148, 8192, 16384)
    A(f'''
    ds_write_b32 v31, v30 offset:{FLG-MISC}
    s_mul_i32 s62, s62, 1664525
    s_add_u32 s62, s62, 1013904223
    s_lshr_b32 s60, s62, 8
    v_mov_b32 v28, s62
    v_mov_b32 v131, s60
    s_movk_i32 s47, 0xff
    s_waitcnt lgkmcnt(15)
    ''')
    for u in range(14):
        A(f'v_lshlrev_b32 v{XF+2*u}, 16, v{XR+u}')
        A(f'v_and_b32 v{XF+2*u+1}, 0xffff0000, v{XR+u}')
    def allsum(r):
        A(f'''
        v_add_f32_dpp v{r}, v{r}, v{r} row_ror:4 row_mask:0xf bank_mask:0xf
        v_add_f32_dpp v{r}, v{r}, v{r} row_ror:8 row_mask:0xf bank_mask:0xf
        v_mov_b32 v8, v{r}
        v_permlane16_swap_b32 v{r}, v8
        v_add_f32 v{r}, v{r}, v8
        v_mov_b32 v8, v{r}
        v_permlane32_swap_b32 v{r}, v8
        v_add_f32 v{r}, v{r}, v8
        ''')
    A(f'v_pk_add_f32 v[22:23], v[{XF}:{XF+1}], v[{XF+2}:{XF+3}]')
    A(f'v_pk_add_f32 v[26:27], v[{XF+4}:{XF+5}], v[{XF+6}:{XF+7}]')
    for u in range(4, 14, 2):
        A(f'v_pk_add_f32 v[22:23], v[22:23], v[{XF+2*u}:{XF+2*u+1}]')
        A(f'v_pk_add_f32 v[26:27], v[26:27], v[{XF+2*u+2}:{XF+2*u+3}]')
    A('v_pk_add_f32 v[22:23], v[22:23], v[26:27]')
    A('v_add_f32 v22, v22, v23')
    allsum(22)
    A(f'''
    v_mul_f32 v22, {f32(1/448)}, v22           ; mean
    v_cvt_pk_bf16_f32 v24, v22, v22
    v_and_b32 v24, 0xffff0000, v24           ; bf16(mean)
    v_sub_f32 v22, v22, v24
    ''')
    for u in range(14):
        A(f'v_pk_add_f32 v[{XF+2*u}:{XF+2*u+1}], v[{XF+2*u}:{XF+2*u+1}], v[24:25] op_sel_hi:[1,0] neg_lo:[0,1] neg_hi:[0,1]')
    A(f'v_pk_mul_f32 v[26:27], v[{XF}:{XF+1}], v[{XF}:{XF+1}]')
    A(f'v_pk_mul_f32 v[10:11], v[{XF+2}:{XF+3}], v[{XF+2}:{XF+3}]')
    for u in range(2, 14, 2):
        A(f'v_pk_fma_f32 v[26:27], v[{XF+2*u}:{XF+2*u+1}], v[{XF+2*u}:{XF+2*u+1}], v[26:27]')
        A(f'v_pk_fma_f32 v[10:11], v[{XF+2*u+2}:{XF+2*u+3}], v[{XF+2*u+2}:{XF+2*u+3}], v[10:11]')
    A('v_pk_add_f32 v[26:27], v[26:27], v[10:11]')
    A('v_add_f32 v26, v26, v27')
    allsum(26)
    A(f'''
    v_mul_f32 v26, {f32(1/448)}, v26
    v_fma_f32 v26, -v22, v22, v26            ; var
    v_max_f32 v26, 0, v26
    v_cvt_pk_bf16_f32 v26, v26, v26
    v_and_b32 v26, 0xffff0000, v26           ; bf16(var)
    v_add_f32 v26, {f32(1e-5)}, v26
    v_cvt_pk_bf16_f32 v26, v26, v26
    v_and_b32 v26, 0xffff0000, v26
    v_sqrt_f32 v26, v26
    v_cvt_pk_bf16_f32 v26, v26, v26
    v_and_b32 v26, 0xffff0000, v26
    v_rcp_f32 v26, v26
    ''')
    NF = 8
    for u in range(8):
        a, b = NF + 2*u, NF + 2*u + 1
        A(f'v_lshlrev_b32 v{a}, 16, v{RA+u}')
        A(f'v_and_b32 v{b}, 0xffff0000, v{RA+u}')
    for u in range(8):
        a, b = NF + 2*u, NF + 2*u + 1
        A(f'v_pk_add_f32 v[{a}:{b}], v[{a}:{b}], v[24:25] op_sel_hi:[1,0] neg_lo:[0,1] neg_hi:[0,1]')
    for u in range(8):
        a, b = NF + 2*u, NF + 2*u + 1
        A(f'v_cvt_pk_bf16_f32 v{b}, v{a}, v{b}')
    for u in range(8):
        a, b = NF + 2*u, NF + 2*u + 1
        A(f'v_lshlrev_b32 v{a}, 16, v{b}')
        A(f'v_and_b32 v{b}, 0xffff0000, v{b}')
    for u in range(8):
        a, b = NF + 2*u, NF + 2*u + 1
        A(f'v_pk_mul_f32 v[{a}:{b}], v[{a}:{b}], v[26:27] op_sel_hi:[1,0]')
    for u in range(8):
        a, b = NF + 2*u, NF + 2*u + 1
        A(f'v_cvt_pk_bf16_f32 v{RA+u}, v{a}, v{b}')
    for T in range(4):
        for u in range(8):
            A(f'v_cndmask_b32 v{XF+8*T+u}, 0, v{RA+u}, s[{8+2*T}:{9+2*T}]')
    def mm(p):
        for ks in range(2):
            for T in range(4):
                for s_ in range(2):
                    acc = AC + 8*p + 4*s_
                    bb = WF + 32*s_ + 16*ks + 4*T
                    c = '0' if (ks == 0 and T == 0) else f'v[{acc}:{acc+3}]'
                    A(f'v_mfma_f32_16x16x32_bf16 v[{acc}:{acc+3}], v[{XF+8*T+4*ks}:{XF+8*T+4*ks+3}], v[{bb}:{bb+3}], {c}')
    hstamp(2)
    A('s_waitcnt lgkmcnt(0)')
    mm(0)
    wreads(152, 0, 8192)
    A(f'''
    s_mov_b32 s58, {0 if forceslow else 1}
    s_movk_i32 s63, {xtries}
    L_xc:
    s_waitcnt vmcnt(0)
    v_cmp_ne_u32 vcc, s46, v130
    s_cbranch_vccz L_xc_done
    global_load_dword v130, v129, s[36:37] sc1
    s_sub_u32 s63, s63, 1
    s_cbranch_scc0 L_xc
    s_mov_b32 s58, 0
    L_xc_done:
    s_waitcnt lgkmcnt(0)
    ''')
    mm(1)
    A(f'''
    s_add_u32 s60, s65, 8192
    s_add_u32 s61, s65, 16384
    s_add_u32 s63, s65, 24576
    v_mov_b32 v20, v28
    v_mov_b32 v21, v131
    v_mov_b32 v22, v28
    v_mov_b32 v23, v131
    s_cmp_eq_u32 s5, 7
    s_cbranch_scc1 L_nopiece
    ''')
    for q in range(4):
        for r in range(4):
            A(f'v_bfi_b32 v{PB+4*r+q}, s47, v{131 if q & 1 else 28}, v{AC+4*q+r}')
    store2([f'buffer_store_dwordx4 v[{PB+4*r}:{PB+4*r+3}], v6, s[40:43], {so} offen' for r, so in enumerate(('s65', 's60', 's61', 's63'))])
    A('L_nopiece:')
    hstamp(3)
    A(f'''
    v_and_b32 v20, s47, v20
    v_and_b32 v21, s47, v21
    v_and_b32 v22, s47, v22
    v_and_b32 v23, s47, v23
    s_mov_b32 s63, {SPIN}
    L_poll7:
    buffer_load_dwordx4 v[8:11], v7, s[40:43], s67 offen sc1
    buffer_load_dwordx4 v[12:15], v7, s[40:43], s67 offen offset:1024 sc1
    buffer_load_dwordx4 v[16:19], v7, s[40:43], s67 offen offset:2048 sc1
    s_mov_b32 exec_hi, 0
    buffer_load_dwordx4 v[20:23], v7, s[40:43], s67 offen offset:3072 sc1
    s_mov_b32 exec_hi, -1
    s_sub_u32 s63, s63, 1
    s_waitcnt vmcnt(0)
    s_cbranch_scc1 L_poll7_done
    v_xor_b32 v24, v8, v28
    v_xor_b32 v25, v9, v131
    ''')
    for r in range(10, 24, 2):
        A(f'v_bitop3_b32 v24, v{r}, v28, v24 bitop3:0xbe')
        A(f'v_bitop3_b32 v25, v{r+1}, v131, v25 bitop3:0xbe')
    A(f'''
    v_or_b32 v24, v24, v25
    v_and_b32 v24, s47, v24
    v_cmp_ne_u32 vcc, 0, v24
    s_cbranch_vccz L_poll7_done
    s_sleep {psleep}
    s_branch L_poll7
    L_poll7_done:
    v_pk_add_f32 v[8:9], v[8:9], v[12:13]
    v_pk_add_f32 v[10:11], v[10:11], v[14:15]
    v_pk_add_f32 v[16:17], v[16:17], v[20:21]
    v_pk_add_f32 v[18:19], v[18:19], v[22:23]
    v_pk_add_f32 v[8:9], v[8:9], v[16:17]
    v_pk_add_f32 v[10:11], v[10:11], v[18:19]
    s_mov_b32 vcc_lo, 0xaaaaaaaa
    s_mov_b32 vcc_hi, 0
    v_permlane32_swap_b32 v8, v10
    v_permlane32_swap_b32 v9, v11
    v_add_f32 v8, v8, v10
    v_add_f32 v9, v9, v11
    v_cvt_pk_bf16_f32 v10, v8, v9
    v_lshlrev_b32 v11, 16, v10
    v_and_b32 v10, 0xffff0000, v10
    v_max_f32 v11, 0, v11
    s_mov_b32 exec_lo, 0
    v_mul_f32 v8, v11, v10
    v_mul_f32 v9, v11, v10
    s_mov_b32 exec_lo, -1
    v_cndmask_b32 v10, v9, v8, vcc
    s_lshr_b32 s60, s5, 1
    s_lshl3_add_u32 s60, s60, s4
    s_lshl_b32 s60, s60, 12
    v_mov_b32_dpp v11, v10 quad_perm:[1,0,3,2] row_mask:0xf bank_mask:0xf
    s_add_u32 s60, s60, {QX}
    s_and_b32 s61, s5, 1
    s_lshl1_add_u32 s61, s6, s61             ; 2b + half
    v_cndmask_b32 v8, v8, v11, vcc
    v_cndmask_b32 v9, v11, v9, vcc
    v_cvt_pk_bf16_f32 v26, v8, v9
    v_mov_b32 v27, v28
    s_lshl_b32 s63, s61, 7
    s_add_u32 s63, s63, {2048-128}
    s_lshl_b32 s61, s61, 8
    v_and_b32 v9, 1, v0
    v_mul_u32_u24 v9, 124, v9
    v_add_u32 v9, s61, v9
    s_mov_b32 exec_lo, 0
    v_mov_b32 v9, s63
    s_mov_b32 exec_lo, -1
    v_lshl_add_u32 v9, v0, 2, v9
    s_mov_b32 exec_hi, 0x55555555
    ''')
    store2([f'buffer_store_dwordx2 v[26:27], v9, s[40:43], s60 offen'])
    A('s_mov_b32 exec_hi, -1')
    hstamp(4)
    A(f'''
    s_mov_b32 s63, {SPIN}
    L_poll3:
    buffer_load_dwordx4 v[8:11], v7, s[40:43], s59 offen sc1
    buffer_load_dwordx4 v[12:15], v7, s[40:43], s59 offen offset:1024 sc1
    buffer_load_dwordx4 v[16:19], v7, s[40:43], s59 offen offset:2048 sc1
    s_sub_u32 s63, s63, 1
    s_waitcnt vmcnt(0)
    s_cbranch_scc1 L_poll3_done
    v_min3_u32 v24, v9, v11, v13
    v_max3_u32 v25, v9, v11, v13
    v_min3_u32 v24, v24, v15, v17
    v_max3_u32 v25, v25, v15, v17
    v_min3_u32 v24, v24, v19, v28
    v_max3_u32 v25, v25, v19, v28
    v_cmp_ne_u32 vcc, v24, v25
    s_cbranch_vccz L_poll3_done
    s_sleep {psleep}
    s_branch L_poll3
    L_poll3_done:
    v_and_b32 v24, 0x138, v29                ; l5*256 + (l&7)*8
    v_and_b32 v25, 8, v0
    v_lshl_add_u32 v24, v25, 4, v24
    v_and_b32 v25, 16, v0
    v_lshl_add_u32 v24, v25, 2, v24
    v_add_u32 v24, {QL}, v24
    v_add_u32 v25, {HL}, v29
    ds_write2_b32 v24, v8, v10 offset0:0 offset1:1
    ds_write2_b32 v24, v12, v14 offset0:128 offset1:129
    ds_write2_b32 v25, v16, v18 offset0:0 offset1:1
    ds_write_b32 v31, v30 offset:{FLQ-MISC}
    ''')
    hstamp(6)
    A(f'''
    s_mul_i32 s64, s6, 7
    s_add_u32 s64, s64, s5                   ; 7b + j
    ''')
    if fin != 'D':
        A(f'''
        s_cmp_eq_u32 s5, 7
        s_cbranch_scc1 L_notk
        s_lshl_b32 s60, s64, 7
        s_add_u32 s60, s60, {TK}
        v_mov_b32 v56, s60
        v_not_b32 v57, v28
        s_mov_b64 exec, 1
        buffer_store_byte v57, v56, s[40:43], s4 offen sc1
        s_mov_b64 exec, -1
        L_notk:
        ''')
    cntwait(CNT, 'L_wc', 4)
    hstamp(7)
    A(f'''
    v_lshlrev_b32 v8, 3, v2
    v_add_u32 v8, {STW}, v8
    ds_read_b64 v[4:5], v8
    s_lshl4_add_u32 s61, s5, s7
    v_mov_b32 v25, v28
    s_waitcnt lgkmcnt(0)
    v_max_f32_dpp v24, v4, v4 quad_perm:[1,0,3,2] row_mask:0xf bank_mask:0xf
    v_max_f32_dpp v24, v24, v24 quad_perm:[2,3,0,1] row_mask:0xf bank_mask:0xf
    v_max_f32_dpp v24, v24, v24 row_half_mirror row_mask:0xf bank_mask:0xf
    v_sub_f32 v26, v4, v24
    v_mul_f32 v26, {CEXP}, v26
    v_exp_f32 v26, v26
    v_mul_f32 v26, v26, v5
    v_add_f32_dpp v26, v26, v26 quad_perm:[1,0,3,2] row_mask:0xf bank_mask:0xf
    v_add_f32_dpp v26, v26, v26 quad_perm:[2,3,0,1] row_mask:0xf bank_mask:0xf
    v_add_f32_dpp v26, v26, v26 row_half_mirror row_mask:0xf bank_mask:0xf
    s_mov_b64 exec, 0x101
    ''')
    store2([f'buffer_store_dwordx4 v[24:27], v7, s[40:43], s61 offen'])
    A(f'''
    s_mov_b64 exec, 0xffff
    s_mov_b32 s63, {SPIN}
    L_polls:
    buffer_load_dwordx4 v[16:19], v7, s[40:43], s7 offen sc1
    s_sub_u32 s63, s63, 1
    s_waitcnt vmcnt(0)
    s_cbranch_scc1 L_polls_done
    v_min3_u32 v10, v17, v19, v28
    v_max3_u32 v11, v17, v19, v28
    v_cmp_ne_u32 vcc, v10, v11
    s_cbranch_vccz L_polls_done
    s_sleep {psleep}
    s_branch L_polls
    L_polls_done:
    ''')
    hstamp(8)
    A(f'''
    v_max_f32_dpp v10, v16, v16 quad_perm:[1,0,3,2] row_mask:0xf bank_mask:0xf
    v_max_f32_dpp v10, v10, v10 quad_perm:[2,3,0,1] row_mask:0xf bank_mask:0xf
    v_max_f32_dpp v10, v10, v10 row_half_mirror row_mask:0xf bank_mask:0xf
    v_sub_f32 v11, v16, v10
    v_sub_f32 v10, v4, v10
    v_mul_f32 v11, {CEXP}, v11
    v_mul_f32 v10, {CEXP}, v10
    v_exp_f32 v11, v11
    v_exp_f32 v10, v10
    v_mul_f32 v11, v11, v18
    v_add_f32_dpp v11, v11, v11 quad_perm:[1,0,3,2] row_mask:0xf bank_mask:0xf
    v_add_f32_dpp v11, v11, v11 quad_perm:[2,3,0,1] row_mask:0xf bank_mask:0xf
    v_add_f32_dpp v11, v11, v11 row_half_mirror row_mask:0xf bank_mask:0xf
    v_rcp_f32 v11, v11
    v_mul_f32 v10, v10, v11
    v_and_b32 v9, 56, v29
    v_lshrrev_b32 v8, 1, v0
    v_and_b32 v8, 4, v8
    v_add3_u32 v9, v9, v8, v31
    v_subrev_u32 v9, {MISC-FACW}, v9
    ds_write_b32 v9, v10
    s_mov_b64 exec, -1
    v_mov_b32 v24, 1
    v_mov_b32 v25, s58
    v_mov_b32 v26, v28
    ds_write_b128 v31, v[24:27] offset:{FLF-MISC}
    s_cmp_eq_u32 s5, 7
    s_waitcnt lgkmcnt(0)
    s_cbranch_scc1 {'L_end' if pad else 'L_hdone'}
    s_lshl_b32 s61, s64, 7
    v_lshlrev_b32 v4, 1, v0
    v_add_u32 v4, s61, v4
    v_add_u32 v5, {XN}, v4
    ds_read_u16 v5, v5                       ; residual x
    s_mov_b64 s[52:53], s[34:35]
    s_movk_i32 s54, 3584
    s_mov_b32 s55, 0x20000
    s_lshl_b32 s60, s64, 12
    s_add_u32 s60, s60, {P2}
    v_add_u32 v6, s60, v29
    v_lshlrev_b32 v7, 2, v0
    v_add_u32 v7, {YL}, v7
    ''')
    for i in range(8):
        A(f's_add_u32 s{18+i}, s4, {i}')
        A(f's_and_b32 s{18+i}, s{18+i}, 7')
        A(f's_lshl_b32 s{18+i}, s{18+i}, 9')
    if fin == 'D':
        A(f'''
    s_waitcnt lgkmcnt(0)
    v_lshlrev_b32 v5, 16, v5
    s_barrier                               ; #4
    ''')
        hstamp(9)
        A('s_call_b64 s[14:15], L_others')
        hstamp(10)
        A(f'''
    s_barrier                               ; #5
    ds_read2st64_b32 v[48:49], v7 offset0:0 offset1:1
    ds_read2st64_b32 v[50:51], v7 offset0:2 offset1:3
    ds_read2st64_b32 v[52:53], v7 offset0:4 offset1:5
    ds_read2st64_b32 v[54:55], v7 offset0:6 offset1:7
    s_waitcnt lgkmcnt(2)
    v_add_f32 v48, v48, v49
    v_add_f32 v50, v50, v51
    s_waitcnt lgkmcnt(0)
    v_add_f32 v52, v52, v53
    v_add_f32 v54, v54, v55
    v_add_f32 v48, v48, v50
    v_add_f32 v52, v52, v54
    v_add_f32 v26, v48, v52
    s_cbranch_vccnz L_late
    ''')
    else:
        A(f'''
    s_lshl_b32 s60, s56, 14
    s_add_u32 s60, s60, {P1 + 16384 - 128}
    v_lshl_add_u32 v57, v0, 4, s60
    s_and_b32 s60, s62, 0xff
    s_mul_i32 s26, s60, 0x01010101
    s_mov_b32 s27, s26
    s_lshl_b32 s60, s4, 3
    s_lshl_b64 s[28:29], 0xff, s60
    s_waitcnt lgkmcnt(0)
    v_lshlrev_b32 v5, 16, v5
    v_mov_b32 v58, s28
    v_mov_b32 v59, s29
    s_mov_b32 s63, {SPIN}
    s_barrier                               ; #4
        ''')
        hstamp(9)
        A(f'''
    s_mov_b64 exec, 0xff
    L_trig:
    buffer_load_dwordx2 v[60:61], v57, s[40:43], 0 offen sc1
    s_sub_u32 s63, s63, 1
    s_waitcnt vmcnt(0)
    s_cbranch_scc1 L_trig_done
    v_cmp_ne_u32 vcc, v61, v28
    s_cbranch_vccnz L_trig
    L_trig_done:
    s_mov_b64 exec, 1
    buffer_atomic_xor_x2 v[58:59], v56, s[40:43], 0 offen sc0 sc1
    s_mov_b64 exec, -1
        ''')
        if spec:
            for i in range(1, 8):
                A(f'buffer_load_dwordx2 v[{32+2*i}:{33+2*i}], v6, s[40:43], s{18+i} offen sc1')
        hstamp(10)
        A(f'''
    s_barrier                               ; #5
    ds_read2st64_b32 v[48:49], v7 offset0:0 offset1:1
    ds_read2st64_b32 v[50:51], v7 offset0:2 offset1:3
    ds_read2st64_b32 v[52:53], v7 offset0:4 offset1:5
    ds_read2st64_b32 v[54:55], v7 offset0:6 offset1:7
    s_waitcnt lgkmcnt(2)
    v_add_f32 v48, v48, v49
    v_add_f32 v50, v50, v51
    s_waitcnt lgkmcnt(0)
    v_add_f32 v52, v52, v53
    v_add_f32 v54, v54, v55
    v_add_f32 v48, v48, v50
    v_add_f32 v52, v52, v54
    v_add_f32 v26, v48, v52
    s_waitcnt vmcnt({7 if spec else 0})
    v_readfirstlane_b32 s30, v58
    v_readfirstlane_b32 s31, v59
    s_xor_b64 s[30:31], s[30:31], s[26:27]
    s_andn2_b64 s[30:31], s[30:31], s[28:29]
    s_cbranch_scc1 L_hdone
        ''')
        hstamp(13)
        A(f'''
    s_mov_b32 s63, {SPIN}
    {'s_branch L_fchk' if spec else ''}
    L_fpoll:
        ''')
        for i in range(1, 8):
            A(f'buffer_load_dwordx2 v[{32+2*i}:{33+2*i}], v6, s[40:43], s{18+i} offen sc1')
        A(f'''
    L_fchk:
    s_sub_u32 s63, s63, 1
    s_waitcnt vmcnt(0)
    s_cbranch_scc1 L_fsum
    v_min3_u32 v12, v35, v37, v39
    v_max3_u32 v13, v35, v37, v39
    v_min3_u32 v12, v12, v41, v43
    v_max3_u32 v13, v13, v41, v43
    v_min3_u32 v12, v12, v45, v47
    v_max3_u32 v13, v13, v45, v47
    v_min_u32 v12, v12, v28
    v_max_u32 v13, v13, v28
    v_cmp_ne_u32 vcc, v12, v13
    s_cbranch_vccnz L_fpoll
    L_fsum:
    v_add_f32 v34, v34, v36
    v_add_f32 v38, v38, v40
    v_add_f32 v42, v42, v44
    v_add_f32 v46, v46, v5
    v_add_f32 v34, v34, v38
    v_add_f32 v42, v42, v46
    v_add_f32 v34, v34, v42
        ''')
    A(f'''
    L_finish:
    v_add_f32 v34, v34, v26
    v_cvt_pk_bf16_f32 v34, v34, v34
    buffer_store_short v34, v4, s[52:55], 0 offen
    ''')
    hstamp(11)
    if stamps and 14 in hl:
        A(f's_sub_u32 s60, {SPIN}, s63\ns_mul_i32 s60, s60, 100\ns_add_u32 s60, s68, s60\ns_addc_u32 s61, s69, 0\nv_writelane_b32 v164, s60, 14\nv_writelane_b32 v165, s61, 14')
    A(f'''
    s_cmp_lg_u32 s64, 21
    s_cbranch_scc1 L_hdone
    s_mov_b64 exec, 1
    v_mov_b32 v1, {EPOCH}
    buffer_store_dword v28, v1, s[40:43], 0 offen
    L_hdone:
    ''')
    if pad and padat[0] == 'h': dopad('L_padh')
    if stamps:
        A('s_waitcnt vmcnt(0)')
        hstamp(12)
        A(f'''
        s_mov_b64 exec, 0xffff
        s_lshl_b32 s60, s2, 9
        s_add_u32 s60, s60, {STAMPS+256}
        buffer_store_dwordx2 v[164:165], v29, s[40:43], s60 offen
        ''')
    A(f'''
    L_end:
    s_endpgm
    ''')
    if fin != 'D':
        pass
    else:
        A(f'''
    L_late:
    buffer_store_dwordx2 v[26:27], v6, s[40:43], s18 offen sc1
    s_call_b64 s[14:15], L_others
    s_cbranch_vccz L_finish
    s_call_b64 s[14:15], L_others
    s_cbranch_vccz L_finish
    s_branch L_hdone
    L_others:
    ''')
        for i in range(1, 8):
            A(f'buffer_load_dwordx2 v[{32+2*i}:{33+2*i}], v6, s[40:43], s{18+i} offen sc1')
        A(f'''
    s_waitcnt vmcnt(0)
    v_min3_u32 v12, v35, v37, v39
    v_max3_u32 v13, v35, v37, v39
    v_min3_u32 v12, v12, v41, v43
    v_max3_u32 v13, v13, v41, v43
    v_min3_u32 v12, v12, v45, v47
    v_max3_u32 v13, v13, v45, v47
    v_min_u32 v12, v12, v28
    v_max_u32 v13, v13, v28
    v_cmp_ne_u32 vcc, v12, v13
    v_add_f32 v34, v34, v36
    v_add_f32 v38, v38, v40
    v_add_f32 v42, v42, v44
    v_add_f32 v46, v46, v5
    v_add_f32 v34, v34, v38
    v_add_f32 v42, v42, v46
    v_add_f32 v34, v34, v42
    s_setpc_b64 s[14:15]
    ''')

    A(f'''
    L_stream:
    s_barrier
    s_add_u32 s12, s20, s57
    s_addc_u32 s13, s21, 0
    s_mov_b64 s[14:15], s[10:11]
    s_mov_b64 s[40:41], s[38:39]
    s_mov_b32 s42, {WSN}
    s_mov_b32 s43, s11
    v_mov_b32 v26, {MISC}
    ''')
    if fastmask:
        A(f'''
        s_getreg_b32 s60, hwreg(HW_REG_XCC_ID, 0, 3)
        s_bitcmp1_b32 {fastmask}, s60
        s_cselect_b64 vcc, -1, 0
        ''')
        vm.d = dthr
    if kfirst: hb('K0', 0, thr + 3)
    A(f'''
    s_mov_b64 s[52:53], s[24:25]
    s_mov_b64 s[48:49], s[32:33]
    s_cmp_lt_u32 s5, 7
    s_cselect_b32 s54, {Z(4096*896)}, 0
    s_cselect_b32 s61, s5, 0
    s_lshl_b32 s61, s61, 7
    s_lshl4_add_u32 s64, s4, s3
    s_mul_i32 s64, s64, {32*896}
    s_add_u32 s64, s64, s61
    s_lshl3_add_u32 s65, s4, s3
    s_mul_i32 s65, s65, {32*896}
    s_add_u32 s65, s65, s61
    s_cmp_lt_u32 s7, 7
    s_cselect_b32 s50, {Z(1792*896)}, 0
    s_cselect_b32 s65, s65, 0
    v_and_b32 v1, 15, v0                     ; row
    v_lshrrev_b32 v2, 4, v0                  ; g
    v_and_b32 v3, 7, v0
    v_lshlrev_b32 v3, 1, v3
    v_xor_b32 v3, v3, v2
    v_lshlrev_b32 v3, 4, v3
    v_lshl_add_u32 v3, v1, 9, v3
    v_add_u32 v8, s59, v3
    v_xor_b32 v9, 64, v8
    v_xor_b32 v10, 0x80, v8
    v_xor_b32 v11, 0xc0, v8
    ''')
    def readK(dst, slot):
        for t in range(8):
            A(f'ds_read_b128 v[{dst+4*t}:{dst+4*t+3}], v{vKA[t&3]} offset:{slot*8192 + (t>>2)*256}')
    def readQ(dst, ts):
        for n, t in enumerate(ts):
            A(f'ds_read_b128 v[{dst+4*n}:{dst+4*n+3}], v24 offset:{t*64}')
    def qk(tile, src, qf, ts=range(8)):
        for n, t in enumerate(ts):
            c = '0' if t == 0 else f'v[{Sx+4*tile}:{Sx+4*tile+3}]'
            A(f'v_mfma_f32_16x16x32_bf16 v[{Sx+4*tile}:{Sx+4*tile+3}], v[{src+4*t}:{src+4*t+3}], v[{qf+4*n}:{qf+4*n+3}], {c}')
    def flagwait(off, lab):
        A(f'''
        s_mov_b32 s61, {SPIN*8}
        {lab}:
        ds_read_b32 v1, v26 offset:{off-MISC}
        s_sub_u32 s61, s61, 1
        s_waitcnt lgkmcnt(0)
        s_cbranch_scc1 {lab}_done
        v_readfirstlane_b32 s67, v1
        s_cmp_lg_u32 s67, 0
        s_cbranch_scc1 {lab}_done
        s_sleep 1
        s_branch {lab}
        {lab}_done:
        ''')
    vm.wait('small')
    A(f'''
    s_mov_b64 exec, 1
    ds_add_u32 v26, v28 offset:{CNT0-MISC}
    s_mov_b64 exec, -1
    ''')
    stamp(2)
    if not kfirst: hb('K0', 0)
    A('s_cmp_gt_u32 s3, 1')
    A('s_cbranch_scc1 L_wg_done')
    flagwait(FLG, 'L_wg')
    ha('K1', 1)
    vm.wait('K0')
    readK(KfA, 0)
    A(f'''
    v_lshrrev_b32 v21, 2, v0                 ; row = l/4
    v_and_b32 v22, 7, v21
    v_lshlrev_b32 v22, 5, v22
    v_lshl_add_u32 v22, v21, 9, v22
    v_and_b32 v23, 3, v0
    v_lshl_add_u32 v22, v23, 3, v22
    v_add_u32 v12, s59, v22
    ''')
    for t in range(1, 8):
        A(f'v_xor_b32 v{12+t}, {t*32}, v12')
    A(f'''
    v_and_b32 v24, 1, v0
    v_lshlrev_b32 v25, 6, v24                ; head*64
    v_lshlrev_b32 v24, 9, v24
    v_lshl_add_u32 v24, v2, 4, v24
    v_add_u32 v24, {QL}, v24
    s_lshl_b32 s60, s3, 3
    s_add_u32 s60, s60, {STW}
    v_add_u32 v25, s60, v25
    ''')
    hb('K1', 1)
    A('s_waitcnt lgkmcnt(0)')
    ha('K2', 0)
    vm.wait('K1')
    readK(KfB, 1)
    hb('K2', 0)
    A('s_waitcnt lgkmcnt(0)')
    ha('K3', 1)
    vm.wait('K2')
    if k3:
        readK(KfC, 0)
        hb('K3', 1)
        A('s_waitcnt lgkmcnt(0)')
        ha('V0', 0)
        vm.wait('K3')
        hb('V0', 0)
        stamp(3)
        flagwait(FLQ, 'L_wq')
        stamp(4)
        readQ(Pk, range(4))
        readQ(160, range(4, 6))
        A('s_waitcnt lgkmcnt(2)')
        for tile, src in enumerate((KfA, KfB, KfC)): qk(tile, src, Pk, range(4))
        readQ(Pk, range(6, 8))
        A('s_waitcnt lgkmcnt(2)')
        for tile, src in enumerate((KfA, KfB, KfC)): qk(tile, src, 160, range(4, 6))
        A('s_waitcnt lgkmcnt(0)')
        for tile, src in enumerate((KfA, KfB, KfC)): qk(tile, src, Pk, range(6, 8))
        readK(KfA, 1)
        readQ(KfB, range(8))
        A('s_waitcnt lgkmcnt(0)')
        issue('V1', 1, (0,))
        qk(3, KfA, KfB)
    else:
        hb('K3', 1)
        stamp(3)
        flagwait(FLQ, 'L_wq')
        stamp(4)
        readQ(KfC, range(8))
        A('s_waitcnt lgkmcnt(0)')
        qk(0, KfA, KfC)
        readK(KfA, 0)
        qk(1, KfB, KfC)
        A('s_waitcnt lgkmcnt(0)')
        qk(2, KfA, KfC)
        ha('V0', 0)
        vm.wait('K3')
        readK(KfB, 1)
        issue('V0', 0, (1,))
        A('s_waitcnt lgkmcnt(0)')
        qk(3, KfB, KfC)
    MK = 84
    A(f's_mov_b32 s{MK}, 0x00030003')
    A(f's_mov_b32 s{MK+1}, 0x00030003')
    for u in range(1, 8):
        A(f's_lshl_b64 s[{MK+2*u}:{MK+2*u+1}], s[{MK}:{MK+1}], {2*u}')
    A(f's_mov_b32 s63, {CEXP}')
    for i in range(8):
        a, b = Sx + 2*i, Sx + 2*i + 1
        A(f'v_cvt_pk_bf16_f32 v{b}, v{a}, v{b}')
        A(f'v_lshlrev_b32 v{a}, 16, v{b}')
        A(f'v_and_b32 v{b}, 0xffff0000, v{b}')
    A(f'v_max3_f32 v22, v{Sx}, v{Sx+1}, v{Sx+2}')
    for i in range(3, 15, 2):
        A(f'v_max3_f32 v22, v22, v{Sx+i}, v{Sx+i+1}')
    A(f'''
    v_max_f32 v22, v22, v{Sx+15}
    v_mov_b32 v1, v22
    v_permlane16_swap_b32 v22, v1
    v_max_f32 v22, v22, v1
    v_mov_b32 v1, v22
    v_permlane32_swap_b32 v22, v1
    v_max_f32 v22, v22, v1
    ''')
    for i in range(16):
        A(f'v_sub_f32 v{Sx+i}, v{Sx+i}, v22')
    for i in range(16):
        A(f'v_mul_f32 v{Sx+i}, s63, v{Sx+i}')
    for i in range(16):
        A(f'v_exp_f32 v{Sx+i}, v{Sx+i}')
    for i in range(8):
        A(f'v_cvt_pk_bf16_f32 v{Pk+i}, v{Sx+2*i}, v{Sx+2*i+1}')
    for i in range(8):
        A(f'v_add_f32 v{Sx+i}, v{Sx+i}, v{Sx+8+i}')
    for i in range(4):
        A(f'v_add_f32 v{Sx+i}, v{Sx+i}, v{Sx+4+i}')
    A(f'''
    v_add_f32 v{Sx}, v{Sx}, v{Sx+2}
    v_add_f32 v{Sx+1}, v{Sx+1}, v{Sx+3}
    v_add_f32 v23, v{Sx}, v{Sx+1}
    v_mov_b32 v1, v23
    v_permlane16_swap_b32 v23, v1
    v_add_f32 v23, v23, v1
    v_mov_b32 v1, v23
    v_permlane32_swap_b32 v23, v1
    v_add_f32 v23, v23, v1
    s_mov_b64 exec, 3
    ds_write_b64 v25, v[22:23]
    s_mov_b64 exec, 1
    ds_add_u32 v26, v28 offset:{CNT-MISC}
    s_mov_b64 exec, -1
    ''')
    stamp(5)
    if not k3: ha('V1', 1)
    vWO, vWD, vOW, vOR, vP1s, vP1l, vYW, vHA = 22, 23, 24, 25, 27, 28, 29, 21
    vWA = [8, 9, 10, 11]
    A(f'''
    s_waitcnt lgkmcnt(0)
    s_movk_i32 s61, 896
    v_mad_u32_u24 v{vWD}, v{vR8}, s61, v{vCH}
    v_bfe_u32 v1, v0, 3, 1
    v_lshlrev_b32 v1, 8, v1
    v_and_b32 v3, 16, v0
    v_add_u32 v1, v1, v3
    v_lshrrev_b32 v3, 5, v0
    v_add_u32 v1, v1, v3
    v_mad_u32_u24 v{vWO}, v1, s61, v{vCH}
    v_lshrrev_b32 v1, 2, v0
    v_lshlrev_b32 v1, 7, v1
    v_bfe_u32 v2, v0, 3, 2
    v_lshl_add_u32 v1, v2, 5, v1
    v_and_b32 v2, 3, v0
    v_lshl_add_u32 v1, v2, 3, v1
    v_add_u32 v8, s59, v1
    v_xor_b32 v9, 32, v8
    v_xor_b32 v10, 64, v8
    v_xor_b32 v11, 0x60, v8
    v_lshlrev_b32 v1, 4, v0
    s_lshl_b32 s60, s3, 11
    s_add_u32 s60, s60, {AREA}
    v_add_u32 v{vOW}, s60, v1
    v_lshrrev_b32 v2, 4, v0                  ; g
    v_and_b32 v3, 15, v0                     ; c
    v_lshlrev_b32 v31, 12, v2                ; waves 2g, 2g+1
    v_lshl_add_u32 v31, v3, 4, v31
    s_lshl_b32 s60, s3, 8
    s_add_u32 s61, s60, {AREA}
    v_add_u32 v{vOR}, s61, v31
    s_add_u32 s61, s60, {YL}
    v_lshlrev_b32 v31, 2, v0
    v_add_u32 v{vYW}, s61, v31
    s_lshl3_add_u32 s60, s56, s3
    s_lshl_b32 s60, s60, 11
    s_add_u32 s60, s60, {P1}
    v_add_u32 v{vP1l}, s60, v1
    s_lshl4_add_u32 s61, s5, s60
    v_and_b32 v1, 7, v0
    v_lshlrev_b32 v1, 8, v1                  ; (half*4+g)*256
    v_and_b32 v3, 8, v0
    v_lshl_add_u32 v1, v3, 4, v1             ; ks*128
    v_add_u32 v{vP1s}, s61, v1
    s_lshl_b32 s60, s3, 6
    s_add_u32 s60, s60, {HL}
    v_lshlrev_b32 v1, 3, v2
    v_add_u32 v{vHA}, s60, v1
    v_lshlrev_b32 v31, 4, v2
    v_add_u32 v31, {FACW}, v31
    s_mul_i32 s60, s6, 7
    s_add_u32 s60, s60, s5
    s_lshl3_add_u32 s60, s60, s4
    s_lshl_b32 s60, s60, 9
    s_add_u32 s60, s60, {P2}
    v_lshl_add_u32 v30, v0, 3, s60
    ''')
    Vf = KfA; Mk = KfB
    WOf, WDf = KfC, Sx
    PL = 64
    def masks(i):
        M = Mk + 16*(i & 1)
        for u in range(8):
            A(f'v_cndmask_b32 v{M+2*u}, 0, v{Pk+2*i}, s[{MK+2*u}:{MK+2*u+1}]')
            A(f'v_cndmask_b32 v{M+2*u+1}, 0, v{Pk+2*i+1}, s[{MK+2*u}:{MK+2*u+1}]')
    def pv(i, slot, mid=None):
        M = Mk + 16*(i & 1)
        for t in range(16):
            A(f'ds_read_b64_tr_b16 v[{Vf+2*t}:{Vf+2*t+1}], v{vVA[t&7]} offset:{slot*8192 + (t>>3)*256}')
        if mid: mid()
        for ii in range(8):
            A(f's_waitcnt lgkmcnt({14-2*ii})')
            acc = Oa + 4*(ii >> 2)
            c = '0' if (i == 0 and (ii & 3) == 0) else f'v[{acc}:{acc+3}]'
            A(f'v_mfma_f32_16x16x32_bf16 v[{acc}:{acc+3}], v[{M+4*(ii&3)}:{M+4*(ii&3)+3}], v[{Vf+4*ii}:{Vf+4*ii+3}], {c}')
    def issueW(p, slot, t=None):
        vm.upto(thr if t is None else t)
        for k in range(4):
            if p < 2:
                A(f's_add_u32 m0, s59, {slot*8192 + (4*p+k)*1024}')
                A(f's_add_u32 s60, s64, {(4*p+k)*2*896}')
                A(f'buffer_load_dwordx4 v{vWO}, s[52:55], s60 offen{wnt} lds')
            else:
                A(f's_add_u32 m0, s59, {slot*8192 + k*1024}')
                A(f's_add_u32 s60, s65, {k*8*896}')
                A(f'buffer_load_dwordx4 v{vWD}, s[48:51], s60 offen{wnt} lds')
        vm.add('WO' if p < 2 else 'WD', 4)
    def readWO(slot):
        for ks in range(2):
            for T in range(4):
                for half in range(2):
                    d = WOf + 16*ks + 4*T + 2*half
                    A(f'ds_read_b64_tr_b16 v[{d}:{d+1}], v{vWA[T]} offset:{slot*8192 + ks*4096 + half*2048}')
    def readWD(slot):
        for T in range(4):
            for half in range(2):
                A(f'ds_read_b64_tr_b16 v[{WDf+4*T+2*half}:{WDf+4*T+2*half+1}], v{vWA[T]} offset:{slot*8192 + half*2048}')
    def pretouch():
        for q in range(2):
            A(f'buffer_load_dwordx4 v[160:163], v{vP1l}, s[40:43], 0 offen offset:{q*1024} sc1')
        vm.add('pre', 2)
    masks(0)
    vm.wait('V0')
    pv(0, 0)
    masks(1)
    hb('V1', 1)
    if not wlast:
        issueW(0, 0)
        vm.wait('V1')
        pv(1, 1)
        issueW(1, 0)
        issueW(2, 1)
        masks(2)
        vm.wait('WO')
        readWO(0)
        A('s_waitcnt lgkmcnt(0)')
        issue('V2', 0, (0,))
        vm.wait('WD')
        readWD(1)
        hb('V2', 0)
        pretouch()
        A('s_waitcnt lgkmcnt(0)')
        ha('V3', 1, thr + 2)
        vm.wait('V2')
        pv(2, 0, lambda: issue('V3', 1, (1,)))
        s3 = 1
    else:
        issueW(2, 0)
        vm.wait('V1')
        pv(1, 1)
        ha('V2', 1)
        masks(2)
        vm.wait('WD')
        readWD(0)
        hb('V2', 1)
        pretouch()
        A('s_waitcnt lgkmcnt(0)')
        ha('V3', 0, thr + 2)
        vm.wait('V2')
        pv(2, 1, lambda: issue('V3', 0, (1,)))
        s3 = 0
    masks(3)
    flagwait(FLF, 'L_wf')
    FC = 160
    A(f'''
    ds_read_b128 v[4:7], v26 offset:{FLF-MISC}
    ds_read2_b64 v[64:67], v{vHA} offset0:0 offset1:4
    s_mov_b32 s{MK}, 0x00010001
    s_mov_b32 s{MK+1}, 0x00010001
    s_mov_b32 s{MK+2}, 0x01000100
    s_mov_b32 s{MK+3}, 0x01000100
    s_mov_b32 s{MK+4}, 0x00ff00ff
    s_mov_b32 s{MK+5}, 0x00ff00ff
    ''')
    vm.wait('pre')
    A(f'''
    ds_read_b128 v[{FC}:{FC+3}], v31
    s_waitcnt lgkmcnt(0)
    v_readfirstlane_b32 s63, v5
    v_mov_b32 v{vTAG}, v6
    v_mov_b32 v5, v6
    ''')
    FA = 144
    for r in range(4):
        A(f'v_cndmask_b32 v{68+r}, 0, v{64+r}, s[{MK}:{MK+1}]')
        A(f'v_cndmask_b32 v{72+r}, 0, v{64+r}, s[{MK+2}:{MK+3}]')
    A(f'''
    v_mfma_f32_16x16x32_bf16 v[{FA}:{FA+3}], v[68:71], v[{WDf}:{WDf+3}], 0
    v_mfma_f32_16x16x32_bf16 v[{FA+4}:{FA+7}], v[68:71], v[{WDf+4}:{WDf+7}], 0
    v_mfma_f32_16x16x32_bf16 v[{FA}:{FA+3}], v[72:75], v[{WDf+8}:{WDf+11}], v[{FA}:{FA+3}]
    v_mfma_f32_16x16x32_bf16 v[{FA+4}:{FA+7}], v[72:75], v[{WDf+12}:{WDf+15}], v[{FA+4}:{FA+7}]
    s_mov_b32 s62, {SPIN}
    ''')
    if wlast:
        issueW(0, 1, wthr)
        if wlast == 1: issueW(1, 1, wthr + 2)
    vm.wait('V3')
    stamp(6)
    pv(3, s3, (lambda: issueW(1, 1, 99)) if wlast == 2 else None)
    A(f'''
    ds_write_b128 v{vOW}, v[{Oa}:{Oa+3}]
    ds_write_b128 v{vOW}, v[{Oa+4}:{Oa+7}] offset:1024
    s_waitcnt lgkmcnt(0)
    ''')
    stamp(7)
    A(f'''
    s_barrier                               ; #4: O partials
    ds_read_b128 v[32:35], v{vOR}
    ds_read_b128 v[36:39], v{vOR} offset:2048
    s_cmp_eq_u32 s63, 0
    s_waitcnt lgkmcnt(1)
    v_mul_f32 v32, v32, v{FC}
    v_mul_f32 v34, v34, v{FC}
    v_mul_f32 v33, v33, v{FC+1}
    v_mul_f32 v35, v35, v{FC+1}
    s_waitcnt lgkmcnt(0)
    v_fmac_f32 v32, v36, v{FC+2}
    v_fmac_f32 v34, v38, v{FC+2}
    v_fmac_f32 v33, v37, v{FC+3}
    v_fmac_f32 v35, v39, v{FC+3}
    v_permlane32_swap_b32 v32, v34
    v_permlane32_swap_b32 v33, v35
    v_add_f32 v36, v32, v34
    v_add_f32 v37, v33, v35
    v_add_f32 v32, v32, v34
    v_add_f32 v33, v33, v35
    v_permlane16_swap_b32 v32, v36
    v_permlane16_swap_b32 v33, v37
    v_add_f32 v32, v32, v36
    v_add_f32 v33, v33, v37
    v_cvt_pk_bf16_f32 v4, v32, v33
    v_cvt_pk_bf16_f32 v6, v32, v33
    v_permlane32_swap_b32 v4, v6
    s_mov_b64 exec, 0xffff
    s_cbranch_scc1 L_slowpub
    buffer_store_dwordx4 v[4:7], v{vP1s}, s[40:43], 0 offen
    L_pubdone:
    s_mov_b64 exec, -1
    ''')
    vm.add('pub', 1)
    stamp(8)
    A(f'''
    s_cmp_eq_u32 s5, 7
    s_cbranch_scc1 L_sdone
    ''')
    def polls():
        for q in range(2):
            A(f'buffer_load_dwordx4 v[{PL+4*q}:{PL+4*q+3}], v{vP1l}, s[40:43], 0 offen offset:{q*1024} sc1')
    if wlast:
        polls(); vm.add('poll', 2)
        vm.wait('WO')
        readWO(1)
        A('s_branch L_poll1_chk')
    A('L_poll1:')
    polls()
    A(f'''
    L_poll1_chk:
    s_sub_u32 s62, s62, 1
    s_waitcnt vmcnt(0)
    s_cbranch_scc1 L_poll1_done
    v_min3_u32 v1, v{PL+1}, v{PL+3}, v{PL+5}
    v_max3_u32 v2, v{PL+1}, v{PL+3}, v{PL+5}
    v_min3_u32 v1, v1, v{PL+7}, v{vTAG}
    v_max3_u32 v2, v2, v{PL+7}, v{vTAG}
    v_cmp_ne_u32 vcc, v1, v2
    s_cbranch_vccnz L_poll1
    L_poll1_done:
    ''')
    stamp(9)
    LO, HI = 80, 88
    def omm(a, ks, T0):
        for x in range(2):
            acc = FA + 4*x
            bb = WOf + 16*ks + 4*(T0 + x)
            A(f'v_mfma_f32_16x16x32_bf16 v[{acc}:{acc+3}], v[{a}:{a+3}], v[{bb}:{bb+3}], v[{acc}:{acc+3}]')
    for q in range(4):
        A(f'v_cndmask_b32 v{LO+q}, 0, v{PL+2*q}, s[{MK+4}:{MK+5}]')
    for q in range(4):
        A(f'v_cndmask_b32 v{HI+4+q}, v{PL+2*q}, 0, s[{MK+4}:{MK+5}]')
    if wlast: A('s_waitcnt lgkmcnt(0)')
    omm(LO, 0, 0)
    for q in range(4):
        A(f'v_mov_b32_dpp v{HI+q}, v{PL+2*q} row_shr:8 row_mask:0xf bank_mask:0xf bound_ctrl:0')
    omm(HI+4, 1, 2)
    for q in range(4):
        A(f'v_mov_b32_dpp v{LO+4+q}, v{PL+2*q} row_shl:8 row_mask:0xf bank_mask:0xf bound_ctrl:0')
    omm(HI, 0, 2)
    omm(LO+4, 1, 0)
    A(f'''
    v_add_f32 v{FA}, v{FA}, v{FA+1}
    v_add_f32 v{FA+2}, v{FA+2}, v{FA+3}
    v_add_f32 v{FA+4}, v{FA+4}, v{FA+5}
    v_add_f32 v{FA+6}, v{FA+6}, v{FA+7}
    v_add_f32 v{FA}, v{FA}, v{FA+2}
    v_add_f32 v{FA+4}, v{FA+4}, v{FA+6}
    v_permlane16_swap_b32 v{FA}, v{FA+4}
    v_add_f32 v{FA}, v{FA}, v{FA+4}
    ds_write_b32 v{vYW}, v{FA}
    s_waitcnt lgkmcnt(0)
    ''')
    stamp(10)
    if fin != 'D': A('s_cmp_lg_u32 s3, 0')
    A('s_barrier                               ; #5')
    if fin != 'D':
        A(f'''
        s_cbranch_scc1 L_sdone
        ds_read2st64_b32 v[48:49], v{vYW} offset0:0 offset1:1
        ds_read2st64_b32 v[50:51], v{vYW} offset0:2 offset1:3
        ds_read2st64_b32 v[52:53], v{vYW} offset0:4 offset1:5
        ds_read2st64_b32 v[54:55], v{vYW} offset0:6 offset1:7
        s_waitcnt lgkmcnt(2)
        v_add_f32 v48, v48, v49
        v_add_f32 v50, v50, v51
        s_waitcnt lgkmcnt(0)
        v_add_f32 v52, v52, v53
        v_add_f32 v54, v54, v55
        v_add_f32 v48, v48, v50
        v_add_f32 v52, v52, v54
        v_add_f32 v4, v48, v52
        buffer_store_dwordx2 v[4:5], v30, s[40:43], 0 offen sc1
        ''')
        if stamps: A('s_waitcnt vmcnt(0)\ns_memrealtime s[70:71]')
    if pad and padat[0] == 's': dopad('L_pads')
    A('L_sdone:')
    if stamps:
        A(f's_cmp_eq_u32 s3, 0')
        A('s_cbranch_scc1 L_dump0')
        A(f's_cmp_lg_u32 s3, 7')
        A('s_cbranch_scc1 L_end')
        dump_stamps(16, [sreg(k) for k in range(11)])
        A('s_endpgm')
        A('L_dump0:')
        dump_stamps(0, [sreg(k) for k in range(11)])
    A('s_endpgm')
    A(f'''
    L_slowpub:
    buffer_store_dwordx4 v[4:7], v{vP1s}, s[40:43], 0 offen sc1
    s_branch L_pubdone
    ''')
    A('.section .rodata,"a"')
    A('.p2align 6')
    A(f'.amdhsa_kernel {NAME}_kernel')
    A('.amdhsa_next_free_vgpr 168')
    A('.amdhsa_next_free_sgpr 102')
    A('.amdhsa_accum_offset 168')
    A('.amdhsa_group_segment_fixed_size 0')
    A('.amdhsa_kernarg_size 96')
    A('.amdhsa_user_sgpr_count 2')
    A('.amdhsa_user_sgpr_kernarg_segment_ptr 1')
    A('.amdhsa_system_sgpr_workgroup_id_x 1')
    A('.end_amdhsa_kernel')
    return top + A.finalize()

if __name__ == '__main__':
    out = sys.argv[1] if len(sys.argv) > 1 else f'cdna_kernels/{NAME}.s'
    kw = eval('dict(%s)' % sys.argv[2]) if len(sys.argv) > 2 else {}
    open(out, 'w').write(gen(**kw))
    print('wrote', out)
```

```python
import sys, struct, math
from asmlib import Asm
NAME = 'parallel_sum__sliding_block_cached__glu_gated_reglu__decode'

def f32(x): return '0x%08x' % struct.unpack('<I', struct.pack('<f', x))[0]

AREA = 131072
TAB = AREA + 16384
STW = TAB
FACW = TAB + 128
MISC = TAB + 256
FLQ = MISC
CNT = MISC + 4
FLG = MISC + 8
CNT0 = MISC + 12
CNTV = MISC + 32
FLF = MISC + 16
HL = TAB + 512
QL = TAB + 1024
XN = TAB + 2048
YL = XN
LDS_TOTAL = XN + 4096
EPOCH = 0
ST = 0x3C000
TK = 0x3000
QX = 0x4000
P2 = 0x1C0000
P1 = 0x40000
QP = 0xC0000
WS_END = 0x1E0000
STAMPS = 0x300000
SPIN = 400000
CEXP = f32(math.log2(math.e)/16)

class VM:
    def __init__(self, A): self.A = A; self.q = []
    def add(self, name, n): self.q.append((name, n))
    def wait(self, name, extra=''):
        idx = max(i for i, (nm, _) in enumerate(self.q) if nm == name)
        n = sum(c for _, c in self.q[idx+1:])
        self.q = self.q[idx+1:]
        self.A(f's_waitcnt vmcnt({n}){extra}')
    d = 0; nl = 0
    def upto(self, n):
        tot = sum(c for _, c in self.q)
        if tot > n: self.A(f's_waitcnt vmcnt({n})')
        if self.d and n < 50 and tot > max(n - self.d, 0):
            self.nl += 1
            self.A(f's_cbranch_vccz L_pc{self.nl}\ns_waitcnt vmcnt({max(n - self.d, 0)})\nL_pc{self.nl}:')

def gen(stamps=0, wnt='', snt=' nt', kvnt=' nt', forceslow=False, now=False, pad=0, padat=None, thr=2,
        hpre=True, psleep=4, xtries=12, sync=False, xs=('s3', 0), light=False, kfirst=False, k3=True, wlast=1, hs=None, wthr=4, fastmask=0, dthr=0, fh=(), fin='T', spec=False, fsleep=0, hl=(6, 12), early=False, satom=True):
    A = Asm()
    def sreg(k): return 68 + 2*k if k < 3 else 16 + 2*(k-3)
    def stamp(k):
        if stamps and (not light or k in (0, 6, 10)): A(f's_memrealtime s[{sreg(k)}:{sreg(k)+1}]')
        if padat == f's{k}': A('s_memrealtime s[100:101]')
    def hstamp(k):
        if stamps and (not light or k in hl):
            A(f's_memrealtime s[100:101]\ns_waitcnt lgkmcnt(0)\nv_writelane_b32 v164, s100, {k}\nv_writelane_b32 v165, s101, {k}')
        if padat == f'h{k}': A('s_memrealtime s[100:101]\ns_waitcnt lgkmcnt(0)')
    def dopad(lab):
        A(f'''
        {lab}:
        s_memrealtime s[98:99]
        s_waitcnt lgkmcnt(0)
        s_sub_u32 s98, s98, s100
        s_cmp_lt_u32 s98, {pad}
        s_cbranch_scc1 {lab}
        ''')
    def dump_stamps(slot0, regs_):
        A('s_waitcnt vmcnt(0) lgkmcnt(0)')
        A('s_mov_b64 exec, 1')
        A('s_lshl_b32 s60, s2, 9')
        A(f's_add_u32 s60, s60, {STAMPS}')
        A('v_mov_b32 v1, s60')
        for k, r in enumerate(regs_):
            A(f'v_mov_b32 v2, s{r}')
            A(f'v_mov_b32 v3, s{r+1}')
            A(f'buffer_store_dwordx2 v[2:3], v1, s[40:43], 0 offen offset:{8*(slot0+k)}')
    WSN = 0x400000 if stamps else WS_END
    Z = (lambda n: 0) if now else (lambda n: n)
    hdr = open('cdna_kernels/%s.s.ref' % NAME).read().split('; Override launch geometry')[0]
    top = hdr + f'; @launch grid=(256,1,1) block=(576,1,1) lds={LDS_TOTAL}\n'
    A('.amdgcn_target "amdgcn-amd-amdhsa--gfx950"')
    A('.text')
    A(f'.globl {NAME}_kernel')
    A('.p2align 8')
    A(f'.type {NAME}_kernel,@function')
    A(f'{NAME}_kernel:')
    if sync:
        A('''
        s_memrealtime s[4:5]
        s_waitcnt lgkmcnt(0)
        s_add_u32 s6, s4, 4096+600
        s_and_b32 s6, s6, -4096
        L_sync:
        s_memrealtime s[4:5]
        s_waitcnt lgkmcnt(0)
        s_sub_u32 s4, s4, s6
        s_cmp_lt_i32 s4, 0
        s_cbranch_scc1 L_sync
        s_branch L_go
        .p2align 10
        L_go:
        ''')
    stamp(0)
    vm = VM(A)
    vD = [4, 5, 6, 7]; vKA = [8, 9, 10, 11]; vVA = list(range(12, 20)); vTAG = 20
    KfA, KfB, KfC, Sx, Pk, Oa = 32, 64, 96, 128, 144, 152
    vCH, vR8 = 30, 31
    KS, VS = 's[8:11]', 's[12:15]'
    def issue(name, slot, halves=(0, 1)):
        srd = KS if name[0] == 'K' else VS
        i = int(name[1])
        for half in halves:
            first = (name == 'K0' and half == 0)
            if not first:
                A(f's_xor_b32 m0, {"s74" if hs else "s59"}, {slot*8192 + half*4096}')
                A(f's_xor_b32 s60, s58, {i*524288 + half*4096}')
            for q in range(4):
                if q in (0, 2) and name + 'ab'[half] in fh:
                    A(f's_cbranch_vccz L_f{name}{half}{q}\ns_waitcnt vmcnt(1)\nL_f{name}{half}{q}:')
                A(f'buffer_load_dwordx4 v{vD[q]}, {srd}, {"s58" if first else "s60"} offen offset:{q*1024}{kvnt} lds')
            vm.add(name, 4)
    def ha(name, slot, t=None):
        vm.upto(thr if t is None else t); issue(name, slot, (0,))
    def hb(name, slot, t=None):
        vm.upto(thr if t is None else t); issue(name, slot, (1,))
    A(f'''
    s_load_dwordx16 s[16:31], s[0:1], 0
    s_load_dwordx8 s[32:39], s[0:1], 64
    v_readfirstlane_b32 s3, v0
    s_cmpk_ge_u32 s2, 256
    s_cbranch_scc1 L_end
    v_and_b32 v0, 63, v0                     ; lane
    s_lshr_b32 s3, s3, 6                     ; wave
    s_and_b32 s4, s2, 7                      ; hkv
    s_bfe_u32 s5, s2, 0x30003                ; j
    s_lshr_b32 s6, s2, 6                     ; b
    s_lshl3_add_u32 s56, s6, s4
    s_cmp_eq_u32 s3, 8
    s_cbranch_scc1 L_helper
    v_lshrrev_b32 v1, 4, v0
    v_and_b32 v1, 2, v1
    v_xor_b32 v1, v1, v0
    v_lshlrev_b32 v4, 4, v1
    v_xor_b32 v5, 64, v4
    v_xor_b32 v6, 0x80, v4
    v_xor_b32 v7, 64, v6
    s_lshl3_add_u32 s66, s5, s3              ; 8j + w
    s_lshl_b32 s57, s56, 23
    s_add_u32 s57, s57, {12288*512}
    s_lshl_b32 s59, s3, 14
    s_lshl_b32 s58, s66, 13
    {f's_bfe_u32 s62, {xs[0]}, {0x20000 + xs[1]}' if xs else ''}
    {'s_lshl_b32 s62, s62, 19' if xs else ''}
    {'s_or_b32 s58, s58, s62' if xs else ''}
    {f's_bfe_u32 s62, {hs[0]}, {0x10000 + hs[1]}' if hs else ''}
    {'s_lshl_b32 s62, s62, 12' if hs else ''}
    {'s_or_b32 s58, s58, s62' if hs else ''}
    {'s_or_b32 s74, s59, s62' if hs else ''}
    s_mov_b32 s10, 0x200000
    s_mov_b32 s11, 0x20000
    ''')
    saddr = f'''
    v_bfe_u32 v2, v0, 4, 2
    v_lshlrev_b32 v2, 1, v2
    v_and_b32 v3, 7, v0
    v_xor_b32 v2, v2, v3
    v_lshlrev_b32 v{vCH}, 4, v2
    v_lshrrev_b32 v{vR8}, 3, v0
    v_lshl_add_u32 v21, v{vR8}, 13, v{vCH}
    s_movk_i32 s46, 3584
    v_mad_u32_u24 v23, v{vR8}, s46, v{vCH}
    s_lshl_b32 s65, s3, 9
    v_lshl_add_u32 v22, v0, 4, s65
    s_lshl2_add_u32 s67, s4, s6              ; 4hkv + b
    s_lshl_b32 s63, s67, 7
    s_mul_i32 s64, s66, {8*3584}
    s_add_u32 s63, s63, s64
    s_lshl_b32 s67, s67, 8
    s_lshl_b32 s64, s66, 16
    s_add_u32 s67, s67, s64
    s_lshl_b32 s62, s3, 10
    s_mov_b32 s47, s11
    s_mov_b32 s51, s11
    s_mov_b32 s55, s11
    s_cmp_lt_u32 s5, 7
    s_cselect_b32 s50, {Z(448*8192)}, 0
    s_cselect_b32 s67, s67, 0
    s_add_u32 s61, s67, 128
    s_max_u32 s7, s4, s5
    s_cmp_lt_u32 s7, 7
    s_cselect_b32 s54, {Z(448*3584)}, 0
    s_cselect_b32 s63, s63, 0
    '''
    if not kfirst: A(saddr)
    A(f'''
    s_mov_b32 m0, {'s74' if hs else 's59'}
    {'s_memrealtime s[100:101]' if padat == 'sa' else ''}
    s_waitcnt lgkmcnt(0)
    {'s_memrealtime s[100:101]' if padat == 'sb' else ''}
    s_add_u32 s8, s18, s57
    s_addc_u32 s9, s19, 0
    ''')
    if kfirst:
        issue('K0', 0, (0,))
        A(saddr)
    A(f'''
    s_add_u32 m0, s65, {XN}
    s_mov_b32 exec_hi, 0
    s_mov_b64 s[44:45], s[16:17]
    buffer_load_dwordx4 v22, s[44:47], 0 offen lds
    s_mov_b32 exec_hi, -1
    s_add_u32 m0, s62, 8192
    s_mov_b64 s[48:49], s[22:23]
    buffer_load_dwordx4 v21, s[48:51], s67 offen{snt} lds
    s_add_u32 m0, s62, {16384+8192}
    s_mov_b64 s[52:53], s[28:29]
    buffer_load_dwordx4 v21, s[48:51], s61 offen{snt} lds
    s_add_u32 m0, s62, {AREA}
    v_mov_b32 v28, 1
    buffer_load_dwordx4 v23, s[52:55], s63 offen{snt} lds
    s_add_u32 m0, s62, {AREA+8192}
    s_mov_b64 s[52:53], s[30:31]
    buffer_load_dwordx4 v23, s[52:55], s63 offen{snt} lds
    ''')
    vm.add('small', 5)
    if not kfirst:
        A(f's_mov_b32 m0, {"s74" if hs else "s59"}')
        issue('K0', 0, (0,))
    stamp(1)
    A('s_branch L_stream')

    XR = 8
    XF = 32
    RA = 156
    WF = 64
    AC = 132
    PB = 64
    nstore = [0]
    def store2(ins):
        n = nstore[0]; nstore[0] += 1
        A(f's_cmp_eq_u32 s58, 0\ns_cbranch_scc1 L_ss{n}')
        for i in ins: A(i)
        A(f's_branch L_sd{n}\nL_ss{n}:')
        for i in ins: A(i + ' sc1')
        A(f'L_sd{n}:')
    def cntwait(off, lab, sl):
        A(f'''
        s_mov_b32 s63, {SPIN*8}
        {lab}:
        ds_read_b32 v9, v31 offset:{off-MISC}
        s_sub_u32 s63, s63, 1
        s_waitcnt lgkmcnt(0)
        s_cbranch_scc1 {lab}_done
        v_cmp_eq_u32 vcc, 8, v9
        s_cbranch_vccnz {lab}_done
        {f's_sleep {sl}' if sl else ''}
        s_branch {lab}
        {lab}_done:
        ''')
    A(f'''
    L_helper:
    s_setprio 3
    s_getreg_b32 s57, hwreg(HW_REG_XCC_ID, 0, 7)
    s_lshl_b32 s66, s4, 5
    s_lshr_b32 s61, s2, 3
    s_add_u32 s61, s61, s66
    s_add_u32 s57, s57, 1
    v_mov_b32 v9, s61
    v_mov_b32 v10, s57
    v_mov_b32 v31, {MISC}
    v_lshl_add_u32 v1, v0, 2, v31
    v_mov_b32 v2, 0
    ds_write_b32 v1, v2                      ; flags = 0
    s_mov_b64 exec, 1
    s_waitcnt lgkmcnt(0)
    global_store_byte v9, v10, s[36:37]
    s_load_dword s62, s[38:39], {EPOCH}
    s_mov_b64 exec, -1
    ''')
    if stamps: A('v_mov_b32 v164, 0\nv_mov_b32 v165, 0')
    A(f'''
    s_mov_b64 s[40:41], s[38:39]
    s_mov_b32 s42, {WSN}
    s_mov_b32 s43, 0x20000
    s_lshl_b32 s64, s56, 15
    s_add_u32 s64, s64, {QP}
    s_lshl_b32 s65, s5, 9
    s_add_u32 s65, s65, s64
    s_lshl_b32 s67, s5, 12
    s_add_u32 s67, s67, s64
    s_lshl_b32 s59, s56, 12
    s_add_u32 s59, s59, {QX}
    s_lshl_b32 s7, s56, 9
    s_add_u32 s7, s7, {ST}
    ''')
    if hpre:
        A(f'''
        v_lshlrev_b32 v8, 7, v0
        s_mov_b64 exec, 0xfffffff
        buffer_load_dword v128, v8, s[40:43], s67 offen sc1
        s_mov_b64 exec, 0xffffff
        buffer_load_dword v128, v8, s[40:43], s59 offen sc1
        s_mov_b64 exec, 7
        buffer_load_dword v128, v8, s[40:43], s7 offen sc1
        s_mov_b64 exec, -1
        ''')
    A(f'''
    v_lshrrev_b32 v1, 4, v0                  ; g
    v_and_b32 v2, 15, v0
    v_and_b32 v3, 3, v0
    v_mul_u32_u24 v3, 896, v3
    v_add_u32 v3, {XN}, v3                   ; row of batch l%4
    v_lshl_add_u32 v4, v1, 3, v3             ; + g*8
    v_and_b32 v5, 60, v0
    v_lshl_add_u32 v3, v5, 1, v3             ; + (l/4)*8
    s_min_u32 s60, s5, 6
    s_lshl_b32 s60, s60, 7
    v_add_u32 v5, s60, v4
    v_lshrrev_b32 v7, 2, v0
    v_lshlrev_b32 v7, 7, v7
    v_bfe_u32 v6, v0, 3, 2
    v_lshl_add_u32 v7, v6, 5, v7
    v_and_b32 v6, 3, v0
    v_lshl_add_u32 v148, v6, 3, v7
    v_xor_b32 v149, 32, v148
    v_xor_b32 v150, 64, v148
    v_xor_b32 v151, 0x60, v148
    v_add_u32 v152, {AREA}, v148
    v_add_u32 v153, {AREA}, v149
    v_add_u32 v154, {AREA}, v150
    v_add_u32 v155, {AREA}, v151
    s_mov_b32 s8, 0x000f000f
    s_mov_b32 s9, s8
    s_lshl_b64 s[10:11], s[8:9], 4
    s_lshl_b64 s[12:13], s[8:9], 8
    s_lshl_b64 s[14:15], s[8:9], 12
    v_mov_b32 v30, 1
    v_lshlrev_b32 v29, 3, v0                 ; lane*8
    v_lshlrev_b32 v7, 4, v0                  ; lane*16
    v_and_b32 v6, 0x1f0, v7
    v_and_b32 v10, 32, v0
    v_lshl_add_u32 v6, v10, 7, v6
    v_and_b32 v129, 7, v0
    v_lshlrev_b32 v129, 2, v129
    v_add_u32 v129, s66, v129                ; XCD table offset
    s_mul_i32 s46, s57, 0x01010101
    global_load_dword v130, v129, s[36:37] sc1
    s_barrier
    ''')
    hstamp(0)
    cntwait(CNT0, 'L_w0', 1)
    hstamp(1)
    def wreads(areg, base, stride):
        for s_ in range(2):
            for ks in range(2):
                for T in range(4):
                    for half in range(2):
                        d = WF + 32*s_ + 16*ks + 4*T + 2*half
                        A(f'ds_read_b64_tr_b16 v[{d}:{d+1}], v{areg+T} offset:{base + s_*stride + ks*4096 + half*2048}')
    for u in range(7):
        A(f'ds_read_b64 v[{XR+2*u}:{XR+2*u+1}], v3 offset:{128*u}')
    for ks in range(2):
        A(f'ds_read2_b64 v[{RA+4*ks}:{RA+4*ks+3}], v5 offset0:{8*ks} offset1:{8*ks+4}')
    wreads(148, 8192, 16384)
    A(f'''
    ds_write_b32 v31, v30 offset:{FLG-MISC}
    s_mul_i32 s62, s62, 1664525
    s_add_u32 s62, s62, 1013904223
    s_lshr_b32 s60, s62, 8
    v_mov_b32 v28, s62
    v_mov_b32 v131, s60
    s_movk_i32 s47, 0xff
    s_waitcnt lgkmcnt(15)
    ''')
    for u in range(14):
        A(f'v_lshlrev_b32 v{XF+2*u}, 16, v{XR+u}')
        A(f'v_and_b32 v{XF+2*u+1}, 0xffff0000, v{XR+u}')
    def allsum(r):
        A(f'''
        v_add_f32_dpp v{r}, v{r}, v{r} row_ror:4 row_mask:0xf bank_mask:0xf
        v_add_f32_dpp v{r}, v{r}, v{r} row_ror:8 row_mask:0xf bank_mask:0xf
        v_mov_b32 v8, v{r}
        v_permlane16_swap_b32 v{r}, v8
        v_add_f32 v{r}, v{r}, v8
        v_mov_b32 v8, v{r}
        v_permlane32_swap_b32 v{r}, v8
        v_add_f32 v{r}, v{r}, v8
        ''')
    A(f'v_pk_add_f32 v[22:23], v[{XF}:{XF+1}], v[{XF+2}:{XF+3}]')
    A(f'v_pk_add_f32 v[26:27], v[{XF+4}:{XF+5}], v[{XF+6}:{XF+7}]')
    for u in range(4, 14, 2):
        A(f'v_pk_add_f32 v[22:23], v[22:23], v[{XF+2*u}:{XF+2*u+1}]')
        A(f'v_pk_add_f32 v[26:27], v[26:27], v[{XF+2*u+2}:{XF+2*u+3}]')
    A('v_pk_add_f32 v[22:23], v[22:23], v[26:27]')
    A('v_add_f32 v22, v22, v23')
    allsum(22)
    A(f'''
    v_mul_f32 v22, {f32(1/448)}, v22           ; mean
    v_cvt_pk_bf16_f32 v24, v22, v22
    v_and_b32 v24, 0xffff0000, v24           ; bf16(mean)
    v_sub_f32 v22, v22, v24
    ''')
    for u in range(14):
        A(f'v_pk_add_f32 v[{XF+2*u}:{XF+2*u+1}], v[{XF+2*u}:{XF+2*u+1}], v[24:25] op_sel_hi:[1,0] neg_lo:[0,1] neg_hi:[0,1]')
    A(f'v_pk_mul_f32 v[26:27], v[{XF}:{XF+1}], v[{XF}:{XF+1}]')
    A(f'v_pk_mul_f32 v[10:11], v[{XF+2}:{XF+3}], v[{XF+2}:{XF+3}]')
    for u in range(2, 14, 2):
        A(f'v_pk_fma_f32 v[26:27], v[{XF+2*u}:{XF+2*u+1}], v[{XF+2*u}:{XF+2*u+1}], v[26:27]')
        A(f'v_pk_fma_f32 v[10:11], v[{XF+2*u+2}:{XF+2*u+3}], v[{XF+2*u+2}:{XF+2*u+3}], v[10:11]')
    A('v_pk_add_f32 v[26:27], v[26:27], v[10:11]')
    A('v_add_f32 v26, v26, v27')
    allsum(26)
    A(f'''
    v_mul_f32 v26, {f32(1/448)}, v26
    v_fma_f32 v26, -v22, v22, v26            ; var
    v_max_f32 v26, 0, v26
    v_cvt_pk_bf16_f32 v26, v26, v26
    v_and_b32 v26, 0xffff0000, v26           ; bf16(var)
    v_add_f32 v26, {f32(1e-5)}, v26
    v_cvt_pk_bf16_f32 v26, v26, v26
    v_and_b32 v26, 0xffff0000, v26
    v_sqrt_f32 v26, v26
    v_cvt_pk_bf16_f32 v26, v26, v26
    v_and_b32 v26, 0xffff0000, v26
    v_rcp_f32 v26, v26
    ''')
    NF = 8
    for u in range(8):
        a, b = NF + 2*u, NF + 2*u + 1
        A(f'v_lshlrev_b32 v{a}, 16, v{RA+u}')
        A(f'v_and_b32 v{b}, 0xffff0000, v{RA+u}')
    for u in range(8):
        a, b = NF + 2*u, NF + 2*u + 1
        A(f'v_pk_add_f32 v[{a}:{b}], v[{a}:{b}], v[24:25] op_sel_hi:[1,0] neg_lo:[0,1] neg_hi:[0,1]')
    for u in range(8):
        a, b = NF + 2*u, NF + 2*u + 1
        A(f'v_cvt_pk_bf16_f32 v{b}, v{a}, v{b}')
    for u in range(8):
        a, b = NF + 2*u, NF + 2*u + 1
        A(f'v_lshlrev_b32 v{a}, 16, v{b}')
        A(f'v_and_b32 v{b}, 0xffff0000, v{b}')
    for u in range(8):
        a, b = NF + 2*u, NF + 2*u + 1
        A(f'v_pk_mul_f32 v[{a}:{b}], v[{a}:{b}], v[26:27] op_sel_hi:[1,0]')
    for u in range(8):
        a, b = NF + 2*u, NF + 2*u + 1
        A(f'v_cvt_pk_bf16_f32 v{RA+u}, v{a}, v{b}')
    for T in range(4):
        for u in range(8):
            A(f'v_cndmask_b32 v{XF+8*T+u}, 0, v{RA+u}, s[{8+2*T}:{9+2*T}]')
    def mm(p):
        for ks in range(2):
            for T in range(4):
                for s_ in range(2):
                    acc = AC + 8*p + 4*s_
                    bb = WF + 32*s_ + 16*ks + 4*T
                    c = '0' if (ks == 0 and T == 0) else f'v[{acc}:{acc+3}]'
                    A(f'v_mfma_f32_16x16x32_bf16 v[{acc}:{acc+3}], v[{XF+8*T+4*ks}:{XF+8*T+4*ks+3}], v[{bb}:{bb+3}], {c}')
    hstamp(2)
    A('s_waitcnt lgkmcnt(0)')
    mm(0)
    wreads(152, 0, 8192)
    A(f'''
    s_mov_b32 s58, {0 if forceslow else 1}
    s_movk_i32 s63, {xtries}
    L_xc:
    s_waitcnt vmcnt(0)
    v_cmp_ne_u32 vcc, s46, v130
    s_cbranch_vccz L_xc_done
    global_load_dword v130, v129, s[36:37] sc1
    s_sub_u32 s63, s63, 1
    s_cbranch_scc0 L_xc
    s_mov_b32 s58, 0
    L_xc_done:
    s_waitcnt lgkmcnt(0)
    ''')
    mm(1)
    A(f'''
    s_add_u32 s60, s65, 8192
    s_add_u32 s61, s65, 16384
    s_add_u32 s63, s65, 24576
    v_mov_b32 v20, v28
    v_mov_b32 v21, v131
    v_mov_b32 v22, v28
    v_mov_b32 v23, v131
    s_cmp_eq_u32 s5, 7
    s_cbranch_scc1 L_nopiece
    ''')
    for q in range(4):
        for r in range(4):
            A(f'v_bfi_b32 v{PB+4*r+q}, s47, v{131 if q & 1 else 28}, v{AC+4*q+r}')
    store2([f'buffer_store_dwordx4 v[{PB+4*r}:{PB+4*r+3}], v6, s[40:43], {so} offen' for r, so in enumerate(('s65', 's60', 's61', 's63'))])
    A('L_nopiece:')
    hstamp(3)
    A(f'''
    v_and_b32 v20, s47, v20
    v_and_b32 v21, s47, v21
    v_and_b32 v22, s47, v22
    v_and_b32 v23, s47, v23
    s_mov_b32 s63, {SPIN}
    L_poll7:
    buffer_load_dwordx4 v[8:11], v7, s[40:43], s67 offen sc1
    buffer_load_dwordx4 v[12:15], v7, s[40:43], s67 offen offset:1024 sc1
    buffer_load_dwordx4 v[16:19], v7, s[40:43], s67 offen offset:2048 sc1
    s_mov_b32 exec_hi, 0
    buffer_load_dwordx4 v[20:23], v7, s[40:43], s67 offen offset:3072 sc1
    s_mov_b32 exec_hi, -1
    s_sub_u32 s63, s63, 1
    s_waitcnt vmcnt(0)
    s_cbranch_scc1 L_poll7_done
    v_xor_b32 v24, v8, v28
    v_xor_b32 v25, v9, v131
    ''')
    for r in range(10, 24, 2):
        A(f'v_bitop3_b32 v24, v{r}, v28, v24 bitop3:0xbe')
        A(f'v_bitop3_b32 v25, v{r+1}, v131, v25 bitop3:0xbe')
    A(f'''
    v_or_b32 v24, v24, v25
    v_and_b32 v24, s47, v24
    v_cmp_ne_u32 vcc, 0, v24
    s_cbranch_vccz L_poll7_done
    s_sleep {psleep}
    s_branch L_poll7
    L_poll7_done:
    v_pk_add_f32 v[8:9], v[8:9], v[12:13]
    v_pk_add_f32 v[10:11], v[10:11], v[14:15]
    v_pk_add_f32 v[16:17], v[16:17], v[20:21]
    v_pk_add_f32 v[18:19], v[18:19], v[22:23]
    v_pk_add_f32 v[8:9], v[8:9], v[16:17]
    v_pk_add_f32 v[10:11], v[10:11], v[18:19]
    s_mov_b32 vcc_lo, 0xaaaaaaaa
    s_mov_b32 vcc_hi, 0
    v_permlane32_swap_b32 v8, v10
    v_permlane32_swap_b32 v9, v11
    v_add_f32 v8, v8, v10
    v_add_f32 v9, v9, v11
    v_cvt_pk_bf16_f32 v10, v8, v9
    v_lshlrev_b32 v11, 16, v10
    v_and_b32 v10, 0xffff0000, v10
    v_max_f32 v11, 0, v11
    s_mov_b32 exec_lo, 0
    v_mul_f32 v8, v11, v10
    v_mul_f32 v9, v11, v10
    s_mov_b32 exec_lo, -1
    v_cndmask_b32 v10, v9, v8, vcc
    s_lshr_b32 s60, s5, 1
    s_lshl3_add_u32 s60, s60, s4
    s_lshl_b32 s60, s60, 12
    v_mov_b32_dpp v11, v10 quad_perm:[1,0,3,2] row_mask:0xf bank_mask:0xf
    s_add_u32 s60, s60, {QX}
    s_and_b32 s61, s5, 1
    s_lshl1_add_u32 s61, s6, s61             ; 2b + half
    v_cndmask_b32 v8, v8, v11, vcc
    v_cndmask_b32 v9, v11, v9, vcc
    v_cvt_pk_bf16_f32 v26, v8, v9
    v_mov_b32 v27, v28
    s_lshl_b32 s63, s61, 7
    s_add_u32 s63, s63, {2048-128}
    s_lshl_b32 s61, s61, 8
    v_and_b32 v9, 1, v0
    v_mul_u32_u24 v9, 124, v9
    v_add_u32 v9, s61, v9
    s_mov_b32 exec_lo, 0
    v_mov_b32 v9, s63
    s_mov_b32 exec_lo, -1
    v_lshl_add_u32 v9, v0, 2, v9
    s_mov_b32 exec_hi, 0x55555555
    ''')
    store2([f'buffer_store_dwordx2 v[26:27], v9, s[40:43], s60 offen'])
    A('s_mov_b32 exec_hi, -1')
    hstamp(4)
    A(f'''
    s_mov_b32 s63, {SPIN}
    L_poll3:
    buffer_load_dwordx4 v[8:11], v7, s[40:43], s59 offen sc1
    buffer_load_dwordx4 v[12:15], v7, s[40:43], s59 offen offset:1024 sc1
    buffer_load_dwordx4 v[16:19], v7, s[40:43], s59 offen offset:2048 sc1
    s_sub_u32 s63, s63, 1
    s_waitcnt vmcnt(0)
    s_cbranch_scc1 L_poll3_done
    v_min3_u32 v24, v9, v11, v13
    v_max3_u32 v25, v9, v11, v13
    v_min3_u32 v24, v24, v15, v17
    v_max3_u32 v25, v25, v15, v17
    v_min3_u32 v24, v24, v19, v28
    v_max3_u32 v25, v25, v19, v28
    v_cmp_ne_u32 vcc, v24, v25
    s_cbranch_vccz L_poll3_done
    s_sleep {psleep}
    s_branch L_poll3
    L_poll3_done:
    v_and_b32 v24, 0x138, v29                ; l5*256 + (l&7)*8
    v_and_b32 v25, 8, v0
    v_lshl_add_u32 v24, v25, 4, v24
    v_and_b32 v25, 16, v0
    v_lshl_add_u32 v24, v25, 2, v24
    v_add_u32 v24, {QL}, v24
    v_add_u32 v25, {HL}, v29
    ds_write2_b32 v24, v8, v10 offset0:0 offset1:1
    ds_write2_b32 v24, v12, v14 offset0:128 offset1:129
    ds_write2_b32 v25, v16, v18 offset0:0 offset1:1
    ds_write_b32 v31, v30 offset:{FLQ-MISC}
    ''')
    hstamp(6)
    A(f'''
    s_mul_i32 s64, s6, 7
    s_add_u32 s64, s64, s5                   ; 7b + j
    ''')
    if fin != 'D':
        A(f'''
        s_cmp_eq_u32 s5, 7
        s_cbranch_scc1 L_notk
        s_lshl_b32 s60, s64, 7
        s_add_u32 s60, s60, {TK}
        v_mov_b32 v56, s60
        v_not_b32 v57, v28
        s_mov_b64 exec, 1
        buffer_store_byte v57, v56, s[40:43], s4 offen sc1
        s_mov_b64 exec, -1
        L_notk:
        ''')
    cntwait(CNT, 'L_wc', 4)
    hstamp(7)
    A(f'''
    v_lshlrev_b32 v8, 3, v2
    v_add_u32 v8, {STW}, v8
    ds_read_b64 v[4:5], v8
    s_lshl4_add_u32 s61, s5, s7
    v_mov_b32 v25, v28
    s_waitcnt lgkmcnt(0)
    v_max_f32_dpp v24, v4, v4 quad_perm:[1,0,3,2] row_mask:0xf bank_mask:0xf
    v_max_f32_dpp v24, v24, v24 quad_perm:[2,3,0,1] row_mask:0xf bank_mask:0xf
    v_max_f32_dpp v24, v24, v24 row_half_mirror row_mask:0xf bank_mask:0xf
    v_sub_f32 v26, v4, v24
    v_mul_f32 v26, {CEXP}, v26
    v_exp_f32 v26, v26
    v_mul_f32 v26, v26, v5
    v_add_f32_dpp v26, v26, v26 quad_perm:[1,0,3,2] row_mask:0xf bank_mask:0xf
    v_add_f32_dpp v26, v26, v26 quad_perm:[2,3,0,1] row_mask:0xf bank_mask:0xf
    v_add_f32_dpp v26, v26, v26 row_half_mirror row_mask:0xf bank_mask:0xf
    s_mov_b64 exec, 0x101
    ''')
    store2([f'buffer_store_dwordx4 v[24:27], v7, s[40:43], s61 offen'])
    A(f'''
    s_mov_b64 exec, 0xffff
    s_mov_b32 s63, {SPIN}
    L_polls:
    buffer_load_dwordx4 v[16:19], v7, s[40:43], s7 offen sc1
    s_sub_u32 s63, s63, 1
    s_waitcnt vmcnt(0)
    s_cbranch_scc1 L_polls_done
    v_min3_u32 v10, v17, v19, v28
    v_max3_u32 v11, v17, v19, v28
    v_cmp_ne_u32 vcc, v10, v11
    s_cbranch_vccz L_polls_done
    s_sleep {psleep}
    s_branch L_polls
    L_polls_done:
    ''')
    hstamp(8)
    A(f'''
    v_max_f32_dpp v10, v16, v16 quad_perm:[1,0,3,2] row_mask:0xf bank_mask:0xf
    v_max_f32_dpp v10, v10, v10 quad_perm:[2,3,0,1] row_mask:0xf bank_mask:0xf
    v_max_f32_dpp v10, v10, v10 row_half_mirror row_mask:0xf bank_mask:0xf
    v_sub_f32 v11, v16, v10
    v_sub_f32 v10, v4, v10
    v_mul_f32 v11, {CEXP}, v11
    v_mul_f32 v10, {CEXP}, v10
    v_exp_f32 v11, v11
    v_exp_f32 v10, v10
    v_mul_f32 v11, v11, v18
    v_add_f32_dpp v11, v11, v11 quad_perm:[1,0,3,2] row_mask:0xf bank_mask:0xf
    v_add_f32_dpp v11, v11, v11 quad_perm:[2,3,0,1] row_mask:0xf bank_mask:0xf
    v_add_f32_dpp v11, v11, v11 row_half_mirror row_mask:0xf bank_mask:0xf
    v_rcp_f32 v11, v11
    v_mul_f32 v10, v10, v11
    v_and_b32 v9, 56, v29
    v_lshrrev_b32 v8, 1, v0
    v_and_b32 v8, 4, v8
    v_add3_u32 v9, v9, v8, v31
    v_subrev_u32 v9, {MISC-FACW}, v9
    ds_write_b32 v9, v10
    s_mov_b64 exec, -1
    v_mov_b32 v24, 1
    v_mov_b32 v25, s58
    v_mov_b32 v26, v28
    ds_write_b128 v31, v[24:27] offset:{FLF-MISC}
    s_cmp_eq_u32 s5, 7
    s_waitcnt lgkmcnt(0)
    {'' if early else 's_cbranch_scc1 ' + ('L_end' if pad else 'L_hdone')}
    s_lshl_b32 s61, s64, 7
    v_lshlrev_b32 v4, 1, v0
    v_add_u32 v4, s61, v4
    v_add_u32 v5, {XN}, v4
    ds_read_u16 v5, v5                       ; residual x
    s_mov_b64 s[52:53], s[34:35]
    s_movk_i32 s54, 3584
    s_mov_b32 s55, 0x20000
    s_lshl_b32 s60, s64, 12
    s_add_u32 s60, s60, {P2}
    v_add_u32 v6, s60, v29
    v_lshlrev_b32 v7, 2, v0
    v_add_u32 v7, {YL}, v7
    ''')
    for i in range(8):
        A(f's_add_u32 s{18+i}, s4, {i}')
        A(f's_and_b32 s{18+i}, s{18+i}, 7')
        A(f's_lshl_b32 s{18+i}, s{18+i}, 9')
    if fin == 'D':
        A(f'''
    s_waitcnt lgkmcnt(0)
    v_lshlrev_b32 v5, 16, v5
    s_barrier                               ; #4
    ''')
        hstamp(9)
        A('s_call_b64 s[14:15], L_others')
        hstamp(10)
        if early:
            A(f'''
            s_waitcnt vmcnt(0) lgkmcnt(0)
            {'' if satom else 'v_readfirstlane_b32 s30, v58'}
            {'' if satom else 'v_readfirstlane_b32 s31, v59'}
            s_xor_b64 s[30:31], s[30:31], s[26:27]
            s_andn2_b64 s[30:31], s[30:31], s[28:29]
            s_cbranch_scc1 L_hdone
            ''')
            if early == 2:
                A(f'''
                s_mov_b64 exec, 0xff
                L_trig2:
                buffer_load_dwordx2 v[60:61], v62, s[40:43], 0 offen sc1
                s_sub_u32 s63, s63, 1
                s_waitcnt vmcnt(0)
                s_cbranch_scc1 L_trig2_done
                v_cmp_ne_u32 vcc, v61, v28
                s_cbranch_vccnz L_trig2
                L_trig2_done:
                s_mov_b64 exec, -1
                ''')
            for i in range(1, 8):
                A(f'buffer_load_dwordx2 v[{32+2*i}:{33+2*i}], v6, s[40:43], s{18+i} offen sc1')
        A(f'''
    s_barrier                               ; #5
    ds_read2st64_b32 v[48:49], v7 offset0:0 offset1:1
    ds_read2st64_b32 v[50:51], v7 offset0:2 offset1:3
    ds_read2st64_b32 v[52:53], v7 offset0:4 offset1:5
    ds_read2st64_b32 v[54:55], v7 offset0:6 offset1:7
    s_waitcnt lgkmcnt(2)
    v_add_f32 v48, v48, v49
    v_add_f32 v50, v50, v51
    s_waitcnt lgkmcnt(0)
    v_add_f32 v52, v52, v53
    v_add_f32 v54, v54, v55
    v_add_f32 v48, v48, v50
    v_add_f32 v52, v52, v54
    v_add_f32 v26, v48, v52
    s_cbranch_vccnz L_late
    ''')
    else:
        A(f'''
    s_lshl_b32 s60, s56, 14
    s_add_u32 s60, s60, {P1 + 16384 - 128}
    v_lshl_add_u32 v57, v0, 4, s60
    s_and_b32 s60, s62, 0xff
    s_mul_i32 s26, s60, 0x01010101
    s_mov_b32 s27, s26
    s_lshl_b32 s60, s4, 3
    s_lshl_b64 s[28:29], 0xff, s60
    s_waitcnt lgkmcnt(0)
    v_lshlrev_b32 v5, 16, v5
    v_mov_b32 v58, s28
    v_mov_b32 v59, s29
    v_mov_b32 v62, v57
    s_mov_b64 s[30:31], s[28:29]
    s_lshl_b32 s60, s64, 7
    s_add_u32 s60, s60, {TK}
    s_add_u32 s32, s38, s60
    s_addc_u32 s33, s39, 0
        ''')
        if early:
            A(f'''
            s_add_u32 s60, s7, 256
            v_lshl_add_u32 v57, v0, 2, s60
            s_lshl_b32 s61, s5, 2
            ''')
            cntwait(CNTV, 'L_wv', 1)
            A('s_mov_b64 exec, 1')
            store2(['buffer_store_dword v28, v57, s[40:43], s61 offen'])
            A(f'''
            s_cmp_eq_u32 s5, 7
            s_cbranch_scc1 {'L_end' if pad else 'L_hdone'}
            ''')
        A(f'''
    s_mov_b32 s63, {SPIN}
    s_barrier                               ; #4
        ''')
        hstamp(9)
        A(f'''
    s_mov_b64 exec, 0xff
    L_trig:
    {'buffer_load_dword v61, v57, s[40:43], 0 offen sc1' if early else 'buffer_load_dwordx2 v[60:61], v57, s[40:43], 0 offen sc1'}
    s_sub_u32 s63, s63, 1
    s_waitcnt vmcnt(0)
    s_cbranch_scc1 L_trig_done
    v_cmp_ne_u32 vcc, v61, v28
    s_cbranch_vccnz L_trig
    L_trig_done:
        ''')
        if satom:
            A('s_atomic_xor_x2 s[30:31], s[32:33], 0 glc\ns_mov_b64 exec, -1')
        else:
            A('''
            s_mov_b64 exec, 1
            buffer_atomic_xor_x2 v[58:59], v56, s[40:43], 0 offen sc0 sc1
            s_mov_b64 exec, -1
            ''')
        if spec:
            for i in range(1, 8):
                A(f'buffer_load_dwordx2 v[{32+2*i}:{33+2*i}], v6, s[40:43], s{18+i} offen sc1')
        hstamp(10)
        if early:
            A(f'''
            s_waitcnt vmcnt(0) lgkmcnt(0)
            {'' if satom else 'v_readfirstlane_b32 s30, v58'}
            {'' if satom else 'v_readfirstlane_b32 s31, v59'}
            s_xor_b64 s[30:31], s[30:31], s[26:27]
            s_andn2_b64 s[30:31], s[30:31], s[28:29]
            s_cbranch_scc1 L_hdone
            ''')
            if early == 2:
                A(f'''
                s_mov_b64 exec, 0xff
                L_trig2:
                buffer_load_dwordx2 v[60:61], v62, s[40:43], 0 offen sc1
                s_sub_u32 s63, s63, 1
                s_waitcnt vmcnt(0)
                s_cbranch_scc1 L_trig2_done
                v_cmp_ne_u32 vcc, v61, v28
                s_cbranch_vccnz L_trig2
                L_trig2_done:
                s_mov_b64 exec, -1
                ''')
            for i in range(1, 8):
                A(f'buffer_load_dwordx2 v[{32+2*i}:{33+2*i}], v6, s[40:43], s{18+i} offen sc1')
        A(f'''
    s_barrier                               ; #5
    ds_read2st64_b32 v[48:49], v7 offset0:0 offset1:1
    ds_read2st64_b32 v[50:51], v7 offset0:2 offset1:3
    ds_read2st64_b32 v[52:53], v7 offset0:4 offset1:5
    ds_read2st64_b32 v[54:55], v7 offset0:6 offset1:7
    s_waitcnt lgkmcnt(2)
    v_add_f32 v48, v48, v49
    v_add_f32 v50, v50, v51
    s_waitcnt lgkmcnt(0)
    v_add_f32 v52, v52, v53
    v_add_f32 v54, v54, v55
    v_add_f32 v48, v48, v50
    v_add_f32 v52, v52, v54
    v_add_f32 v26, v48, v52
        ''')
        if not early:
            A(f'''
    {'' if satom else f's_waitcnt vmcnt({7 if spec else 0})'}
    {'' if satom else 'v_readfirstlane_b32 s30, v58'}
    {'' if satom else 'v_readfirstlane_b32 s31, v59'}
    s_xor_b64 s[30:31], s[30:31], s[26:27]
    s_andn2_b64 s[30:31], s[30:31], s[28:29]
    s_cbranch_scc1 L_hdone
        ''')
        hstamp(13)
        A(f'''
    s_mov_b32 s63, {SPIN}
    {'s_branch L_fchk' if (spec or early) else ''}
    L_fpoll:
        ''')
        for i in range(1, 8):
            A(f'buffer_load_dwordx2 v[{32+2*i}:{33+2*i}], v6, s[40:43], s{18+i} offen sc1')
        A(f'''
    L_fchk:
    s_sub_u32 s63, s63, 1
    s_waitcnt vmcnt(0)
    s_cbranch_scc1 L_fsum
    v_min3_u32 v12, v35, v37, v39
    v_max3_u32 v13, v35, v37, v39
    v_min3_u32 v12, v12, v41, v43
    v_max3_u32 v13, v13, v41, v43
    v_min3_u32 v12, v12, v45, v47
    v_max3_u32 v13, v13, v45, v47
    v_min_u32 v12, v12, v28
    v_max_u32 v13, v13, v28
    v_cmp_ne_u32 vcc, v12, v13
    s_cbranch_vccnz L_fpoll
    L_fsum:
    v_add_f32 v34, v34, v36
    v_add_f32 v38, v38, v40
    v_add_f32 v42, v42, v44
    v_add_f32 v46, v46, v5
    v_add_f32 v34, v34, v38
    v_add_f32 v42, v42, v46
    v_add_f32 v34, v34, v42
        ''')
    A(f'''
    L_finish:
    v_add_f32 v34, v34, v26
    v_cvt_pk_bf16_f32 v34, v34, v34
    buffer_store_short v34, v4, s[52:55], 0 offen
    ''')
    hstamp(11)
    if stamps and 14 in hl:
        A(f's_sub_u32 s60, {SPIN}, s63\ns_mul_i32 s60, s60, 100\ns_add_u32 s60, s68, s60\ns_addc_u32 s61, s69, 0\nv_writelane_b32 v164, s60, 14\nv_writelane_b32 v165, s61, 14')
    A(f'''
    s_cmp_lg_u32 s64, 21
    s_cbranch_scc1 L_hdone
    s_mov_b64 exec, 1
    v_mov_b32 v1, {EPOCH}
    buffer_store_dword v28, v1, s[40:43], 0 offen
    L_hdone:
    ''')
    if pad and padat[0] == 'h': dopad('L_padh')
    if stamps:
        A('s_waitcnt vmcnt(0)')
        hstamp(12)
        A(f'''
        s_mov_b64 exec, 0xffff
        s_lshl_b32 s60, s2, 9
        s_add_u32 s60, s60, {STAMPS+256}
        buffer_store_dwordx2 v[164:165], v29, s[40:43], s60 offen
        ''')
    A(f'''
    L_end:
    s_endpgm
    ''')
    if fin != 'D':
        pass
    else:
        A(f'''
    L_late:
    buffer_store_dwordx2 v[26:27], v6, s[40:43], s18 offen sc1
    s_call_b64 s[14:15], L_others
    s_cbranch_vccz L_finish
    s_call_b64 s[14:15], L_others
    s_cbranch_vccz L_finish
    s_branch L_hdone
    L_others:
    ''')
        for i in range(1, 8):
            A(f'buffer_load_dwordx2 v[{32+2*i}:{33+2*i}], v6, s[40:43], s{18+i} offen sc1')
        A(f'''
    s_waitcnt vmcnt(0)
    v_min3_u32 v12, v35, v37, v39
    v_max3_u32 v13, v35, v37, v39
    v_min3_u32 v12, v12, v41, v43
    v_max3_u32 v13, v13, v41, v43
    v_min3_u32 v12, v12, v45, v47
    v_max3_u32 v13, v13, v45, v47
    v_min_u32 v12, v12, v28
    v_max_u32 v13, v13, v28
    v_cmp_ne_u32 vcc, v12, v13
    v_add_f32 v34, v34, v36
    v_add_f32 v38, v38, v40
    v_add_f32 v42, v42, v44
    v_add_f32 v46, v46, v5
    v_add_f32 v34, v34, v38
    v_add_f32 v42, v42, v46
    v_add_f32 v34, v34, v42
    s_setpc_b64 s[14:15]
    ''')

    A(f'''
    L_stream:
    s_barrier
    s_add_u32 s12, s20, s57
    s_addc_u32 s13, s21, 0
    s_mov_b64 s[14:15], s[10:11]
    s_mov_b64 s[40:41], s[38:39]
    s_mov_b32 s42, {WSN}
    s_mov_b32 s43, s11
    v_mov_b32 v26, {MISC}
    ''')
    if fastmask:
        A(f'''
        s_getreg_b32 s60, hwreg(HW_REG_XCC_ID, 0, 3)
        s_bitcmp1_b32 {fastmask}, s60
        s_cselect_b64 vcc, -1, 0
        ''')
        vm.d = dthr
    if kfirst: hb('K0', 0, thr + 3)
    A(f'''
    s_mov_b64 s[52:53], s[24:25]
    s_mov_b64 s[48:49], s[32:33]
    s_cmp_lt_u32 s5, 7
    s_cselect_b32 s54, {Z(4096*896)}, 0
    s_cselect_b32 s61, s5, 0
    s_lshl_b32 s61, s61, 7
    s_lshl4_add_u32 s64, s4, s3
    s_mul_i32 s64, s64, {32*896}
    s_add_u32 s64, s64, s61
    s_lshl3_add_u32 s65, s4, s3
    s_mul_i32 s65, s65, {32*896}
    s_add_u32 s65, s65, s61
    s_cmp_lt_u32 s7, 7
    s_cselect_b32 s50, {Z(1792*896)}, 0
    s_cselect_b32 s65, s65, 0
    v_and_b32 v1, 15, v0                     ; row
    v_lshrrev_b32 v2, 4, v0                  ; g
    v_and_b32 v3, 7, v0
    v_lshlrev_b32 v3, 1, v3
    v_xor_b32 v3, v3, v2
    v_lshlrev_b32 v3, 4, v3
    v_lshl_add_u32 v3, v1, 9, v3
    v_add_u32 v8, s59, v3
    v_xor_b32 v9, 64, v8
    v_xor_b32 v10, 0x80, v8
    v_xor_b32 v11, 0xc0, v8
    ''')
    def readK(dst, slot):
        for t in range(8):
            A(f'ds_read_b128 v[{dst+4*t}:{dst+4*t+3}], v{vKA[t&3]} offset:{slot*8192 + (t>>2)*256}')
    def readQ(dst, ts):
        for n, t in enumerate(ts):
            A(f'ds_read_b128 v[{dst+4*n}:{dst+4*n+3}], v24 offset:{t*64}')
    def qk(tile, src, qf, ts=range(8)):
        for n, t in enumerate(ts):
            c = '0' if t == 0 else f'v[{Sx+4*tile}:{Sx+4*tile+3}]'
            A(f'v_mfma_f32_16x16x32_bf16 v[{Sx+4*tile}:{Sx+4*tile+3}], v[{src+4*t}:{src+4*t+3}], v[{qf+4*n}:{qf+4*n+3}], {c}')
    def flagwait(off, lab):
        A(f'''
        s_mov_b32 s61, {SPIN*8}
        {lab}:
        ds_read_b32 v1, v26 offset:{off-MISC}
        s_sub_u32 s61, s61, 1
        s_waitcnt lgkmcnt(0)
        s_cbranch_scc1 {lab}_done
        v_readfirstlane_b32 s67, v1
        s_cmp_lg_u32 s67, 0
        s_cbranch_scc1 {lab}_done
        s_sleep 1
        s_branch {lab}
        {lab}_done:
        ''')
    vm.wait('small')
    A(f'''
    s_mov_b64 exec, 1
    ds_add_u32 v26, v28 offset:{CNT0-MISC}
    s_mov_b64 exec, -1
    ''')
    stamp(2)
    if not kfirst: hb('K0', 0)
    A('s_cmp_gt_u32 s3, 1')
    A('s_cbranch_scc1 L_wg_done')
    flagwait(FLG, 'L_wg')
    ha('K1', 1)
    vm.wait('K0')
    readK(KfA, 0)
    A(f'''
    v_lshrrev_b32 v21, 2, v0                 ; row = l/4
    v_and_b32 v22, 7, v21
    v_lshlrev_b32 v22, 5, v22
    v_lshl_add_u32 v22, v21, 9, v22
    v_and_b32 v23, 3, v0
    v_lshl_add_u32 v22, v23, 3, v22
    v_add_u32 v12, s59, v22
    ''')
    for t in range(1, 8):
        A(f'v_xor_b32 v{12+t}, {t*32}, v12')
    A(f'''
    v_and_b32 v24, 1, v0
    v_lshlrev_b32 v25, 6, v24                ; head*64
    v_lshlrev_b32 v24, 9, v24
    v_lshl_add_u32 v24, v2, 4, v24
    v_add_u32 v24, {QL}, v24
    s_lshl_b32 s60, s3, 3
    s_add_u32 s60, s60, {STW}
    v_add_u32 v25, s60, v25
    ''')
    hb('K1', 1)
    A('s_waitcnt lgkmcnt(0)')
    ha('K2', 0)
    vm.wait('K1')
    readK(KfB, 1)
    hb('K2', 0)
    A('s_waitcnt lgkmcnt(0)')
    ha('K3', 1)
    vm.wait('K2')
    if k3:
        readK(KfC, 0)
        hb('K3', 1)
        A('s_waitcnt lgkmcnt(0)')
        ha('V0', 0)
        vm.wait('K3')
        hb('V0', 0)
        stamp(3)
        flagwait(FLQ, 'L_wq')
        stamp(4)
        readQ(Pk, range(4))
        readQ(160, range(4, 6))
        A('s_waitcnt lgkmcnt(2)')
        for tile, src in enumerate((KfA, KfB, KfC)): qk(tile, src, Pk, range(4))
        readQ(Pk, range(6, 8))
        A('s_waitcnt lgkmcnt(2)')
        for tile, src in enumerate((KfA, KfB, KfC)): qk(tile, src, 160, range(4, 6))
        A('s_waitcnt lgkmcnt(0)')
        for tile, src in enumerate((KfA, KfB, KfC)): qk(tile, src, Pk, range(6, 8))
        readK(KfA, 1)
        readQ(KfB, range(8))
        A('s_waitcnt lgkmcnt(0)')
        issue('V1', 1, (0,))
        qk(3, KfA, KfB)
    else:
        hb('K3', 1)
        stamp(3)
        flagwait(FLQ, 'L_wq')
        stamp(4)
        readQ(KfC, range(8))
        A('s_waitcnt lgkmcnt(0)')
        qk(0, KfA, KfC)
        readK(KfA, 0)
        qk(1, KfB, KfC)
        A('s_waitcnt lgkmcnt(0)')
        qk(2, KfA, KfC)
        ha('V0', 0)
        vm.wait('K3')
        readK(KfB, 1)
        issue('V0', 0, (1,))
        A('s_waitcnt lgkmcnt(0)')
        qk(3, KfB, KfC)
    MK = 84
    A(f's_mov_b32 s{MK}, 0x00030003')
    A(f's_mov_b32 s{MK+1}, 0x00030003')
    for u in range(1, 8):
        A(f's_lshl_b64 s[{MK+2*u}:{MK+2*u+1}], s[{MK}:{MK+1}], {2*u}')
    A(f's_mov_b32 s63, {CEXP}')
    for i in range(8):
        a, b = Sx + 2*i, Sx + 2*i + 1
        A(f'v_cvt_pk_bf16_f32 v{b}, v{a}, v{b}')
        A(f'v_lshlrev_b32 v{a}, 16, v{b}')
        A(f'v_and_b32 v{b}, 0xffff0000, v{b}')
    A(f'v_max3_f32 v22, v{Sx}, v{Sx+1}, v{Sx+2}')
    for i in range(3, 15, 2):
        A(f'v_max3_f32 v22, v22, v{Sx+i}, v{Sx+i+1}')
    A(f'''
    v_max_f32 v22, v22, v{Sx+15}
    v_mov_b32 v1, v22
    v_permlane16_swap_b32 v22, v1
    v_max_f32 v22, v22, v1
    v_mov_b32 v1, v22
    v_permlane32_swap_b32 v22, v1
    v_max_f32 v22, v22, v1
    ''')
    for i in range(16):
        A(f'v_sub_f32 v{Sx+i}, v{Sx+i}, v22')
    for i in range(16):
        A(f'v_mul_f32 v{Sx+i}, s63, v{Sx+i}')
    for i in range(16):
        A(f'v_exp_f32 v{Sx+i}, v{Sx+i}')
    for i in range(8):
        A(f'v_cvt_pk_bf16_f32 v{Pk+i}, v{Sx+2*i}, v{Sx+2*i+1}')
    for i in range(8):
        A(f'v_add_f32 v{Sx+i}, v{Sx+i}, v{Sx+8+i}')
    for i in range(4):
        A(f'v_add_f32 v{Sx+i}, v{Sx+i}, v{Sx+4+i}')
    A(f'''
    v_add_f32 v{Sx}, v{Sx}, v{Sx+2}
    v_add_f32 v{Sx+1}, v{Sx+1}, v{Sx+3}
    v_add_f32 v23, v{Sx}, v{Sx+1}
    v_mov_b32 v1, v23
    v_permlane16_swap_b32 v23, v1
    v_add_f32 v23, v23, v1
    v_mov_b32 v1, v23
    v_permlane32_swap_b32 v23, v1
    v_add_f32 v23, v23, v1
    s_mov_b64 exec, 3
    ds_write_b64 v25, v[22:23]
    s_mov_b64 exec, 1
    ds_add_u32 v26, v28 offset:{CNT-MISC}
    s_mov_b64 exec, -1
    ''')
    stamp(5)
    if not k3: ha('V1', 1)
    vWO, vWD, vOW, vOR, vP1s, vP1l, vYW, vHA = 22, 23, 24, 25, 27, 28, 29, 21
    vWA = [8, 9, 10, 11]
    A(f'''
    s_waitcnt lgkmcnt(0)
    s_movk_i32 s61, 896
    v_mad_u32_u24 v{vWD}, v{vR8}, s61, v{vCH}
    v_bfe_u32 v1, v0, 3, 1
    v_lshlrev_b32 v1, 8, v1
    v_and_b32 v3, 16, v0
    v_add_u32 v1, v1, v3
    v_lshrrev_b32 v3, 5, v0
    v_add_u32 v1, v1, v3
    v_mad_u32_u24 v{vWO}, v1, s61, v{vCH}
    v_lshrrev_b32 v1, 2, v0
    v_lshlrev_b32 v1, 7, v1
    v_bfe_u32 v2, v0, 3, 2
    v_lshl_add_u32 v1, v2, 5, v1
    v_and_b32 v2, 3, v0
    v_lshl_add_u32 v1, v2, 3, v1
    v_add_u32 v8, s59, v1
    v_xor_b32 v9, 32, v8
    v_xor_b32 v10, 64, v8
    v_xor_b32 v11, 0x60, v8
    v_lshlrev_b32 v1, 4, v0
    s_lshl_b32 s60, s3, 11
    s_add_u32 s60, s60, {AREA}
    v_add_u32 v{vOW}, s60, v1
    v_lshrrev_b32 v2, 4, v0                  ; g
    v_and_b32 v3, 15, v0                     ; c
    v_lshlrev_b32 v31, 12, v2                ; waves 2g, 2g+1
    v_lshl_add_u32 v31, v3, 4, v31
    s_lshl_b32 s60, s3, 8
    s_add_u32 s61, s60, {AREA}
    v_add_u32 v{vOR}, s61, v31
    s_add_u32 s61, s60, {YL}
    v_lshlrev_b32 v31, 2, v0
    v_add_u32 v{vYW}, s61, v31
    s_lshl3_add_u32 s60, s56, s3
    s_lshl_b32 s60, s60, 11
    s_add_u32 s60, s60, {P1}
    v_add_u32 v{vP1l}, s60, v1
    s_lshl4_add_u32 s61, s5, s60
    v_and_b32 v1, 7, v0
    v_lshlrev_b32 v1, 8, v1                  ; (half*4+g)*256
    v_and_b32 v3, 8, v0
    v_lshl_add_u32 v1, v3, 4, v1             ; ks*128
    v_add_u32 v{vP1s}, s61, v1
    s_lshl_b32 s60, s3, 6
    s_add_u32 s60, s60, {HL}
    v_lshlrev_b32 v1, 3, v2
    v_add_u32 v{vHA}, s60, v1
    v_lshlrev_b32 v31, 4, v2
    v_add_u32 v31, {FACW}, v31
    s_mul_i32 s60, s6, 7
    s_add_u32 s60, s60, s5
    s_lshl3_add_u32 s60, s60, s4
    s_lshl_b32 s60, s60, 9
    s_add_u32 s60, s60, {P2}
    v_lshl_add_u32 v30, v0, 3, s60
    ''')
    Vf = KfA; Mk = KfB
    WOf, WDf = KfC, Sx
    PL = 64
    def masks(i):
        M = Mk + 16*(i & 1)
        for u in range(8):
            A(f'v_cndmask_b32 v{M+2*u}, 0, v{Pk+2*i}, s[{MK+2*u}:{MK+2*u+1}]')
            A(f'v_cndmask_b32 v{M+2*u+1}, 0, v{Pk+2*i+1}, s[{MK+2*u}:{MK+2*u+1}]')
    def pv(i, slot, mid=None):
        M = Mk + 16*(i & 1)
        for t in range(16):
            A(f'ds_read_b64_tr_b16 v[{Vf+2*t}:{Vf+2*t+1}], v{vVA[t&7]} offset:{slot*8192 + (t>>3)*256}')
        if mid: mid()
        for ii in range(8):
            A(f's_waitcnt lgkmcnt({14-2*ii})')
            acc = Oa + 4*(ii >> 2)
            c = '0' if (i == 0 and (ii & 3) == 0) else f'v[{acc}:{acc+3}]'
            A(f'v_mfma_f32_16x16x32_bf16 v[{acc}:{acc+3}], v[{M+4*(ii&3)}:{M+4*(ii&3)+3}], v[{Vf+4*ii}:{Vf+4*ii+3}], {c}')
    def issueW(p, slot, t=None):
        vm.upto(thr if t is None else t)
        for k in range(4):
            if p < 2:
                A(f's_add_u32 m0, s59, {slot*8192 + (4*p+k)*1024}')
                A(f's_add_u32 s60, s64, {(4*p+k)*2*896}')
                A(f'buffer_load_dwordx4 v{vWO}, s[52:55], s60 offen{wnt} lds')
            else:
                A(f's_add_u32 m0, s59, {slot*8192 + k*1024}')
                A(f's_add_u32 s60, s65, {k*8*896}')
                A(f'buffer_load_dwordx4 v{vWD}, s[48:51], s60 offen{wnt} lds')
        vm.add('WO' if p < 2 else 'WD', 4)
    def readWO(slot):
        for ks in range(2):
            for T in range(4):
                for half in range(2):
                    d = WOf + 16*ks + 4*T + 2*half
                    A(f'ds_read_b64_tr_b16 v[{d}:{d+1}], v{vWA[T]} offset:{slot*8192 + ks*4096 + half*2048}')
    def readWD(slot):
        for T in range(4):
            for half in range(2):
                A(f'ds_read_b64_tr_b16 v[{WDf+4*T+2*half}:{WDf+4*T+2*half+1}], v{vWA[T]} offset:{slot*8192 + half*2048}')
    def pretouch():
        for q in range(2):
            A(f'buffer_load_dwordx4 v[160:163], v{vP1l}, s[40:43], 0 offen offset:{q*1024} sc1')
        vm.add('pre', 2)
    masks(0)
    vm.wait('V0')
    pv(0, 0)
    masks(1)
    hb('V1', 1)
    if not wlast:
        issueW(0, 0)
        vm.wait('V1')
        pv(1, 1)
        issueW(1, 0)
        issueW(2, 1)
        masks(2)
        vm.wait('WO')
        readWO(0)
        A('s_waitcnt lgkmcnt(0)')
        issue('V2', 0, (0,))
        vm.wait('WD')
        readWD(1)
        hb('V2', 0)
        pretouch()
        A('s_waitcnt lgkmcnt(0)')
        ha('V3', 1, thr + 2)
        vm.wait('V2')
        pv(2, 0, lambda: issue('V3', 1, (1,)))
        s3 = 1
    else:
        issueW(2, 0)
        vm.wait('V1')
        pv(1, 1)
        ha('V2', 1)
        masks(2)
        vm.wait('WD')
        readWD(0)
        hb('V2', 1)
        pretouch()
        A('s_waitcnt lgkmcnt(0)')
        ha('V3', 0, thr + 2)
        vm.wait('V2')
        pv(2, 1, lambda: issue('V3', 0, (1,)))
        s3 = 0
    masks(3)
    flagwait(FLF, 'L_wf')
    FC = 160
    A(f'''
    ds_read_b128 v[4:7], v26 offset:{FLF-MISC}
    ds_read2_b64 v[64:67], v{vHA} offset0:0 offset1:4
    s_mov_b32 s{MK}, 0x00010001
    s_mov_b32 s{MK+1}, 0x00010001
    s_mov_b32 s{MK+2}, 0x01000100
    s_mov_b32 s{MK+3}, 0x01000100
    s_mov_b32 s{MK+4}, 0x00ff00ff
    s_mov_b32 s{MK+5}, 0x00ff00ff
    ''')
    vm.wait('pre')
    A(f'''
    ds_read_b128 v[{FC}:{FC+3}], v31
    s_waitcnt lgkmcnt(0)
    v_readfirstlane_b32 s63, v5
    v_mov_b32 v{vTAG}, v6
    v_mov_b32 v5, v6
    ''')
    FA = 144
    for r in range(4):
        A(f'v_cndmask_b32 v{68+r}, 0, v{64+r}, s[{MK}:{MK+1}]')
        A(f'v_cndmask_b32 v{72+r}, 0, v{64+r}, s[{MK+2}:{MK+3}]')
    A(f'''
    v_mfma_f32_16x16x32_bf16 v[{FA}:{FA+3}], v[68:71], v[{WDf}:{WDf+3}], 0
    v_mfma_f32_16x16x32_bf16 v[{FA+4}:{FA+7}], v[68:71], v[{WDf+4}:{WDf+7}], 0
    v_mfma_f32_16x16x32_bf16 v[{FA}:{FA+3}], v[72:75], v[{WDf+8}:{WDf+11}], v[{FA}:{FA+3}]
    v_mfma_f32_16x16x32_bf16 v[{FA+4}:{FA+7}], v[72:75], v[{WDf+12}:{WDf+15}], v[{FA+4}:{FA+7}]
    s_mov_b32 s62, {SPIN}
    ''')
    if wlast:
        issueW(0, 1, wthr)
        if wlast == 1: issueW(1, 1, wthr + 2)
    if early: A('v_mov_b32 v1, 1\ns_mov_b64 exec, 1')
    vm.wait('V3')
    if early: A(f'ds_add_u32 v26, v1 offset:{CNTV-MISC}\ns_mov_b64 exec, -1')
    stamp(6)
    pv(3, s3, (lambda: issueW(1, 1, 99)) if wlast == 2 else None)
    A(f'''
    ds_write_b128 v{vOW}, v[{Oa}:{Oa+3}]
    ds_write_b128 v{vOW}, v[{Oa+4}:{Oa+7}] offset:1024
    s_waitcnt lgkmcnt(0)
    ''')
    stamp(7)
    A(f'''
    s_barrier                               ; #4: O partials
    ds_read_b128 v[32:35], v{vOR}
    ds_read_b128 v[36:39], v{vOR} offset:2048
    s_cmp_eq_u32 s63, 0
    s_waitcnt lgkmcnt(1)
    v_mul_f32 v32, v32, v{FC}
    v_mul_f32 v34, v34, v{FC}
    v_mul_f32 v33, v33, v{FC+1}
    v_mul_f32 v35, v35, v{FC+1}
    s_waitcnt lgkmcnt(0)
    v_fmac_f32 v32, v36, v{FC+2}
    v_fmac_f32 v34, v38, v{FC+2}
    v_fmac_f32 v33, v37, v{FC+3}
    v_fmac_f32 v35, v39, v{FC+3}
    v_permlane32_swap_b32 v32, v34
    v_permlane32_swap_b32 v33, v35
    v_add_f32 v36, v32, v34
    v_add_f32 v37, v33, v35
    v_add_f32 v32, v32, v34
    v_add_f32 v33, v33, v35
    v_permlane16_swap_b32 v32, v36
    v_permlane16_swap_b32 v33, v37
    v_add_f32 v32, v32, v36
    v_add_f32 v33, v33, v37
    v_cvt_pk_bf16_f32 v4, v32, v33
    v_cvt_pk_bf16_f32 v6, v32, v33
    v_permlane32_swap_b32 v4, v6
    s_mov_b64 exec, 0xffff
    s_cbranch_scc1 L_slowpub
    buffer_store_dwordx4 v[4:7], v{vP1s}, s[40:43], 0 offen
    L_pubdone:
    s_mov_b64 exec, -1
    ''')
    vm.add('pub', 1)
    stamp(8)
    A(f'''
    s_cmp_eq_u32 s5, 7
    s_cbranch_scc1 L_sdone
    ''')
    def polls():
        for q in range(2):
            A(f'buffer_load_dwordx4 v[{PL+4*q}:{PL+4*q+3}], v{vP1l}, s[40:43], 0 offen offset:{q*1024} sc1')
    if wlast:
        polls(); vm.add('poll', 2)
        vm.wait('WO')
        readWO(1)
        A('s_branch L_poll1_chk')
    A('L_poll1:')
    polls()
    A(f'''
    L_poll1_chk:
    s_sub_u32 s62, s62, 1
    s_waitcnt vmcnt(0)
    s_cbranch_scc1 L_poll1_done
    v_min3_u32 v1, v{PL+1}, v{PL+3}, v{PL+5}
    v_max3_u32 v2, v{PL+1}, v{PL+3}, v{PL+5}
    v_min3_u32 v1, v1, v{PL+7}, v{vTAG}
    v_max3_u32 v2, v2, v{PL+7}, v{vTAG}
    v_cmp_ne_u32 vcc, v1, v2
    s_cbranch_vccnz L_poll1
    L_poll1_done:
    ''')
    stamp(9)
    LO, HI = 80, 88
    def omm(a, ks, T0):
        for x in range(2):
            acc = FA + 4*x
            bb = WOf + 16*ks + 4*(T0 + x)
            A(f'v_mfma_f32_16x16x32_bf16 v[{acc}:{acc+3}], v[{a}:{a+3}], v[{bb}:{bb+3}], v[{acc}:{acc+3}]')
    for q in range(4):
        A(f'v_cndmask_b32 v{LO+q}, 0, v{PL+2*q}, s[{MK+4}:{MK+5}]')
    for q in range(4):
        A(f'v_cndmask_b32 v{HI+4+q}, v{PL+2*q}, 0, s[{MK+4}:{MK+5}]')
    if wlast: A('s_waitcnt lgkmcnt(0)')
    omm(LO, 0, 0)
    for q in range(4):
        A(f'v_mov_b32_dpp v{HI+q}, v{PL+2*q} row_shr:8 row_mask:0xf bank_mask:0xf bound_ctrl:0')
    omm(HI+4, 1, 2)
    for q in range(4):
        A(f'v_mov_b32_dpp v{LO+4+q}, v{PL+2*q} row_shl:8 row_mask:0xf bank_mask:0xf bound_ctrl:0')
    omm(HI, 0, 2)
    omm(LO+4, 1, 0)
    A(f'''
    v_add_f32 v{FA}, v{FA}, v{FA+1}
    v_add_f32 v{FA+2}, v{FA+2}, v{FA+3}
    v_add_f32 v{FA+4}, v{FA+4}, v{FA+5}
    v_add_f32 v{FA+6}, v{FA+6}, v{FA+7}
    v_add_f32 v{FA}, v{FA}, v{FA+2}
    v_add_f32 v{FA+4}, v{FA+4}, v{FA+6}
    v_permlane16_swap_b32 v{FA}, v{FA+4}
    v_add_f32 v{FA}, v{FA}, v{FA+4}
    ds_write_b32 v{vYW}, v{FA}
    s_waitcnt lgkmcnt(0)
    ''')
    stamp(10)
    if fin != 'D': A('s_cmp_lg_u32 s3, 0')
    A('s_barrier                               ; #5')
    if fin != 'D':
        A(f'''
        s_cbranch_scc1 L_sdone
        ds_read2st64_b32 v[48:49], v{vYW} offset0:0 offset1:1
        ds_read2st64_b32 v[50:51], v{vYW} offset0:2 offset1:3
        ds_read2st64_b32 v[52:53], v{vYW} offset0:4 offset1:5
        ds_read2st64_b32 v[54:55], v{vYW} offset0:6 offset1:7
        s_waitcnt lgkmcnt(2)
        v_add_f32 v48, v48, v49
        v_add_f32 v50, v50, v51
        s_waitcnt lgkmcnt(0)
        v_add_f32 v52, v52, v53
        v_add_f32 v54, v54, v55
        v_add_f32 v48, v48, v50
        v_add_f32 v52, v52, v54
        v_add_f32 v4, v48, v52
        buffer_store_dwordx2 v[4:5], v30, s[40:43], 0 offen sc1
        ''')
        if stamps: A('s_waitcnt vmcnt(0)\ns_memrealtime s[70:71]')
    if pad and padat[0] == 's': dopad('L_pads')
    A('L_sdone:')
    if stamps:
        A(f's_cmp_eq_u32 s3, 0')
        A('s_cbranch_scc1 L_dump0')
        A(f's_cmp_lg_u32 s3, 7')
        A('s_cbranch_scc1 L_end')
        dump_stamps(16, [sreg(k) for k in range(11)])
        A('s_endpgm')
        A('L_dump0:')
        dump_stamps(0, [sreg(k) for k in range(11)])
    A('s_endpgm')
    A(f'''
    L_slowpub:
    buffer_store_dwordx4 v[4:7], v{vP1s}, s[40:43], 0 offen sc1
    s_branch L_pubdone
    ''')
    A('.section .rodata,"a"')
    A('.p2align 6')
    A(f'.amdhsa_kernel {NAME}_kernel')
    A('.amdhsa_next_free_vgpr 168')
    A('.amdhsa_next_free_sgpr 102')
    A('.amdhsa_accum_offset 168')
    A('.amdhsa_group_segment_fixed_size 0')
    A('.amdhsa_kernarg_size 96')
    A('.amdhsa_user_sgpr_count 2')
    A('.amdhsa_user_sgpr_kernarg_segment_ptr 1')
    A('.amdhsa_system_sgpr_workgroup_id_x 1')
    A('.end_amdhsa_kernel')
    return top + A.finalize()

if __name__ == '__main__':
    out = sys.argv[1] if len(sys.argv) > 1 else f'cdna_kernels/{NAME}.s'
    kw = eval('dict(%s)' % sys.argv[2]) if len(sys.argv) > 2 else {}
    open(out, 'w').write(gen(**kw))
    print('wrote', out)
```

```python
import sys, struct, math
from asmlib import Asm
NAME = 'parallel_sum__sliding_block_cached__glu_gated_reglu__decode'

def f32(x): return '0x%08x' % struct.unpack('<I', struct.pack('<f', x))[0]

AREA = 131072
TAB = AREA + 16384
STW = TAB
FACW = TAB + 128
MISC = TAB + 256
FLQ = MISC
CNT = MISC + 4
FLG = MISC + 8
CNT0 = MISC + 12
CNTV = MISC + 32
THR = MISC + 36
FLF = MISC + 16
HL = TAB + 512
QL = TAB + 1024
XN = TAB + 2048
YL = XN
LDS_TOTAL = XN + 4096
EPOCH = 0
ST = 0x3C000
TK2 = 0x2000
TK = 0x3000
QX = 0x4000
P2 = 0x1C0000
P1 = 0x40000
QP = 0xC0000
WS_END = 0x1E0000
STAMPS = 0x300000
SPIN = 400000
CEXP = f32(math.log2(math.e)/16)

class VM:
    def __init__(self, A): self.A = A; self.q = []
    def add(self, name, n): self.q.append((name, n))
    def wait(self, name, extra=''):
        idx = max(i for i, (nm, _) in enumerate(self.q) if nm == name)
        n = sum(c for _, c in self.q[idx+1:])
        self.q = self.q[idx+1:]
        self.A(f's_waitcnt vmcnt({n}){extra}')
    d = 0; nl = 0
    def upto(self, n):
        tot = sum(c for _, c in self.q)
        if tot > n: self.A(f's_waitcnt vmcnt({n})')
        if self.d and n < 50 and tot > max(n - self.d, 0):
            self.nl += 1
            self.A(f's_cbranch_vccz L_pc{self.nl}\ns_waitcnt vmcnt({max(n - self.d, 0)})\nL_pc{self.nl}:')

def gen(stamps=0, wnt='', snt=' nt', kvnt=' nt', forceslow=False, now=False, pad=0, padat=None, thr=2,
        hpre=3, psleep=32, xlast=0, xtries=12, sync=False, xs=('s3', 0), light=False, kfirst=False, k3=True, wlast=6, hs=None, wthr=4, fastmask=0, dthr=0, fh=(), fin='T', spec=False, fsleep=0, hl=(6, 12), early=False, satom=True, noxc=False, p2pre=1, outf='', perm=0, gov=None, govh=('V2a', 'V2b', 'V3a'), govn=4, ilv=True, mpoll=True, nohelp=False, nodep=False, tlb=False, presl=32, pref=' sc1', pollf=' sc1', p1pre=2, sl=(0, 6, 10)):
    A = Asm()
    def sreg(k): return 68 + 2*k if k < 3 else 16 + 2*(k-3)
    def stamp(k):
        if stamps and (not light or k in sl): A(f's_memrealtime s[{sreg(k)}:{sreg(k)+1}]')
        if padat == f's{k}': A('s_memrealtime s[100:101]')
    def hstamp(k):
        if nohelp and nohelp - 1 == k: A('s_endpgm')
        if stamps and (not light or k in hl):
            A(f's_memrealtime s[100:101]\ns_waitcnt lgkmcnt(0)\nv_writelane_b32 v164, s100, {k}\nv_writelane_b32 v165, s101, {k}')
        if padat == f'h{k}': A('s_memrealtime s[100:101]\ns_waitcnt lgkmcnt(0)')
    def dopad(lab):
        A(f'''
        {lab}:
        s_memrealtime s[98:99]
        s_waitcnt lgkmcnt(0)
        s_sub_u32 s98, s98, s100
        s_cmp_lt_u32 s98, {pad}
        s_cbranch_scc1 {lab}
        ''')
    def dump_stamps(slot0, regs_):
        A('s_waitcnt vmcnt(0) lgkmcnt(0)')
        A('s_mov_b64 exec, 1')
        A('s_lshl_b32 s60, s2, 9')
        A(f's_add_u32 s60, s60, {STAMPS}')
        A('v_mov_b32 v1, s60')
        for k, r in enumerate(regs_):
            A(f'v_mov_b32 v2, s{r}')
            A(f'v_mov_b32 v3, s{r+1}')
            A(f'buffer_store_dwordx2 v[2:3], v1, s[40:43], 0 offen offset:{8*(slot0+k)}')
    WSN = 0x400000 if stamps else WS_END
    Z = (lambda n: 0) if now else (lambda n: n)
    hdr = open('cdna_kernels/%s.s.ref' % NAME).read().split('; Override launch geometry')[0]
    top = hdr + f'; @launch grid=(256,1,1) block=(576,1,1) lds={LDS_TOTAL}\n'
    A('.amdgcn_target "amdgcn-amd-amdhsa--gfx950"')
    A('.text')
    A(f'.globl {NAME}_kernel')
    A('.p2align 8')
    A(f'.type {NAME}_kernel,@function')
    A(f'{NAME}_kernel:')
    if sync:
        A('''
        s_memrealtime s[4:5]
        s_waitcnt lgkmcnt(0)
        s_add_u32 s6, s4, 4096+600
        s_and_b32 s6, s6, -4096
        L_sync:
        s_memrealtime s[4:5]
        s_waitcnt lgkmcnt(0)
        s_sub_u32 s4, s4, s6
        s_cmp_lt_i32 s4, 0
        s_cbranch_scc1 L_sync
        s_branch L_go
        .p2align 10
        L_go:
        ''')
    if perm == 1:
        A('s_cmpk_ge_u32 s2, 256\ns_cbranch_scc1 L_end\ns_lshr_b32 s3, s2, 3\ns_and_b32 s3, s3, 7\ns_xor_b32 s2, s2, s3')
    if perm == 2:
        A('s_and_b32 s3, s2, -2\ns_cmp_eq_u32 s3, 74\ns_cselect_b32 s3, 1, 0\ns_xor_b32 s2, s2, s3')
    stamp(0)
    vm = VM(A)
    vD = [4, 5, 6, 7]; vKA = [8, 9, 10, 11]; vVA = list(range(12, 20)); vTAG = 20
    KfA, KfB, KfC, Sx, Pk, Oa = 32, 64, 96, 128, 144, 152
    vCH, vR8 = 30, 31
    KS, VS = 's[8:11]', 's[12:15]'
    def issue(name, slot, halves=(0, 1)):
        srd = KS if name[0] == 'K' else VS
        i = int(name[1])
        for half in halves:
            first = (name == 'K0' and half == 0)
            hn = name + 'ab'[half]
            if gov and hn in govh:
                A(f'ds_read_b32 v1, v26 offset:{THR-MISC}\ns_waitcnt lgkmcnt(0)\nv_cmp_lt_u32 vcc, {govh.index(hn)}, v1')
            if not first:
                A(f's_xor_b32 m0, {"s74" if hs else "s59"}, {slot*8192 + half*4096}')
                A(f's_xor_b32 s60, s58, {i*524288 + half*4096}')
            for q in range(4):
                if q in (0, 2) and (hn in fh or (gov and hn in govh)):
                    A(f's_cbranch_vccz L_f{name}{half}{q}\ns_waitcnt vmcnt(1)\nL_f{name}{half}{q}:')
                A(f'buffer_load_dwordx4 v{vD[q]}, {srd}, {"s58" if first else "s60"} offen offset:{q*1024}{kvnt} lds')
            vm.add(name, 4)
    def ha(name, slot, t=None):
        vm.upto(thr if t is None else t); issue(name, slot, (0,))
    def hb(name, slot, t=None):
        vm.upto(thr if t is None else t); issue(name, slot, (1,))
    A(f'''
    s_load_dwordx16 s[16:31], s[0:1], 0
    s_load_dwordx8 s[32:39], s[0:1], 64
    v_readfirstlane_b32 s3, v0
    s_cmpk_ge_u32 s2, 256
    s_cbranch_scc1 L_end
    v_and_b32 v0, 63, v0                     ; lane
    s_lshr_b32 s3, s3, 6                     ; wave
    s_and_b32 s4, s2, 7                      ; hkv
    s_bfe_u32 s5, s2, 0x30003                ; j
    s_lshr_b32 s6, s2, 6                     ; b
    s_lshl3_add_u32 s56, s6, s4
    s_cmp_eq_u32 s3, 8
    s_cbranch_scc1 L_helper
    v_lshrrev_b32 v1, 4, v0
    v_and_b32 v1, 2, v1
    v_xor_b32 v1, v1, v0
    v_lshlrev_b32 v4, 4, v1
    v_xor_b32 v5, 64, v4
    v_xor_b32 v6, 0x80, v4
    v_xor_b32 v7, 64, v6
    s_lshl3_add_u32 s66, s5, s3              ; 8j + w
    s_lshl_b32 s57, s56, 23
    s_add_u32 s57, s57, {12288*512}
    s_lshl_b32 s59, s3, 14
    s_lshl_b32 s58, s66, 13
    {f's_bfe_u32 s62, {xs[0]}, {0x20000 + xs[1]}' if xs else ''}
    {'s_lshl_b32 s62, s62, 19' if xs else ''}
    {'s_or_b32 s58, s58, s62' if xs else ''}
    {f's_bfe_u32 s62, {hs[0]}, {0x10000 + hs[1]}' if hs else ''}
    {'s_lshl_b32 s62, s62, 12' if hs else ''}
    {'s_or_b32 s58, s58, s62' if hs else ''}
    {'s_or_b32 s74, s59, s62' if hs else ''}
    s_mov_b32 s10, 0x200000
    s_mov_b32 s11, 0x20000
    ''')
    saddr = f'''
    v_bfe_u32 v2, v0, 4, 2
    v_lshlrev_b32 v2, 1, v2
    v_and_b32 v3, 7, v0
    v_xor_b32 v2, v2, v3
    v_lshlrev_b32 v{vCH}, 4, v2
    v_lshrrev_b32 v{vR8}, 3, v0
    v_lshl_add_u32 v21, v{vR8}, 13, v{vCH}
    s_movk_i32 s46, 3584
    v_mad_u32_u24 v23, v{vR8}, s46, v{vCH}
    s_lshl_b32 s65, s3, 9
    v_lshl_add_u32 v22, v0, 4, s65
    s_lshl2_add_u32 s67, s4, s6              ; 4hkv + b
    s_lshl_b32 s63, s67, 7
    s_mul_i32 s64, s66, {8*3584}
    s_add_u32 s63, s63, s64
    s_lshl_b32 s67, s67, 8
    s_lshl_b32 s64, s66, 16
    s_add_u32 s67, s67, s64
    s_lshl_b32 s62, s3, 10
    s_mov_b32 s47, s11
    s_mov_b32 s51, s11
    s_mov_b32 s55, s11
    s_cmp_lt_u32 s5, 7
    s_cselect_b32 s50, {Z(448*8192)}, 0
    s_cselect_b32 s67, s67, 0
    s_add_u32 s61, s67, 128
    s_max_u32 s7, s4, s5
    s_cmp_lt_u32 s7, 7
    s_cselect_b32 s54, {Z(448*3584)}, 0
    s_cselect_b32 s63, s63, 0
    '''
    xload = f'''
    s_add_u32 m0, s65, {XN}
    s_mov_b32 exec_hi, 0
    s_mov_b64 s[44:45], s[16:17]
    buffer_load_dwordx4 v22, s[44:47], 0 offen lds
    s_mov_b32 exec_hi, -1
    '''
    if not kfirst: A(saddr)
    A(f'''
    s_mov_b32 m0, {'s74' if hs else 's59'}
    {'s_memrealtime s[100:101]' if padat == 'sa' else ''}
    s_waitcnt lgkmcnt(0)
    {'s_memrealtime s[100:101]' if padat == 'sb' else ''}
    s_add_u32 s8, s18, s57
    s_addc_u32 s9, s19, 0
    ''')
    if kfirst:
        issue('K0', 0, (0,))
        A(saddr)
    A(f'''
    {'' if xlast else xload}
    s_add_u32 m0, s62, 8192
    s_mov_b64 s[48:49], s[22:23]
    buffer_load_dwordx4 v21, s[48:51], s67 offen{snt} lds
    s_add_u32 m0, s62, {16384+8192}
    s_mov_b64 s[52:53], s[28:29]
    buffer_load_dwordx4 v21, s[48:51], s61 offen{snt} lds
    s_add_u32 m0, s62, {AREA}
    v_mov_b32 v28, 1
    buffer_load_dwordx4 v23, s[52:55], s63 offen{snt} lds
    s_add_u32 m0, s62, {AREA+8192}
    s_mov_b64 s[52:53], s[30:31]
    buffer_load_dwordx4 v23, s[52:55], s63 offen{snt} lds
    ''')
    if xlast == 1: A(xload)
    vm.add('small', 4 if xlast == 2 else 5)
    if not kfirst:
        A(f's_mov_b32 m0, {"s74" if hs else "s59"}')
        issue('K0', 0, (0,))
    if xlast == 2:
        A(xload); vm.add('small', 1)
    stamp(1)
    A('s_branch L_stream')

    XR = 8
    XF = 32
    RA = 156
    WF = 64
    AC = 132
    PB = 64
    nstore = [0]
    def store2(ins):
        n = nstore[0]; nstore[0] += 1
        A(f's_cmp_eq_u32 s58, 0\ns_cbranch_scc1 L_ss{n}')
        for i in ins: A(i)
        A(f's_branch L_sd{n}\nL_ss{n}:')
        for i in ins: A(i + ' sc1')
        A(f'L_sd{n}:')
    def cntwait(off, lab, sl, n=8):
        A(f'''
        s_mov_b32 s63, {SPIN*8}
        {lab}:
        ds_read_b32 v9, v31 offset:{off-MISC}
        s_sub_u32 s63, s63, 1
        s_waitcnt lgkmcnt(0)
        s_cbranch_scc1 {lab}_done
        v_cmp_le_u32 vcc, {n}, v9
        s_cbranch_vccnz {lab}_done
        {f's_sleep {sl}' if sl else ''}
        s_branch {lab}
        {lab}_done:
        ''')
    A(f'''
    L_helper:
    s_setprio 3
    s_getreg_b32 s57, hwreg(HW_REG_XCC_ID, 0, 7)
    s_lshl_b32 s66, s4, 5
    s_lshr_b32 s61, s2, 3
    s_add_u32 s61, s61, s66
    s_add_u32 s57, s57, 1
    v_mov_b32 v9, s61
    v_mov_b32 v10, s57
    v_mov_b32 v31, {MISC}
    v_lshl_add_u32 v1, v0, 2, v31
    v_mov_b32 v2, 0
    ds_write_b32 v1, v2                      ; flags = 0
    s_mov_b64 exec, 1
    s_waitcnt lgkmcnt(0)
    {'' if noxc else 'global_store_byte v9, v10, s[36:37]      ; my XCD, for the workgroups that share my heads'}
    s_load_dword s62, s[38:39], {EPOCH}
    s_mov_b64 exec, -1
    ''')
    if tlb:
        A(f'''
        s_lshl_b32 s60, s56, 23
        s_add_u32 s60, s60, {12288*512}
        s_load_dword s76, s[20:21], s60
        s_add_u32 s60, s60, {(1<<21) - 64}
        s_load_dword s77, s[20:21], s60
        s_mul_i32 s60, s4, {512*896}
        s_load_dword s78, s[24:25], s60
        s_add_u32 s60, s60, {512*896 - 64}
        s_load_dword s79, s[24:25], s60
        s_load_dword s80, s[32:33], 0
        s_mov_b32 s60, {1792*896 - 64}
        s_load_dword s81, s[32:33], s60
        s_load_dword s82, s[34:35], 0
        ''')
    if stamps: A('v_mov_b32 v164, 0\nv_mov_b32 v165, 0\ns_memtime s[94:95]\ns_memrealtime s[96:97]')
    A(f'''
    s_mov_b64 s[40:41], s[38:39]
    s_mov_b32 s42, {WSN}
    s_mov_b32 s43, 0x20000
    s_lshl_b32 s64, s56, 15
    s_add_u32 s64, s64, {QP}
    s_lshl_b32 s65, s5, 9
    s_add_u32 s65, s65, s64
    s_lshl_b32 s67, s5, 12
    s_add_u32 s67, s67, s64
    s_lshl_b32 s59, s56, 12
    s_add_u32 s59, s59, {QX}
    s_lshl_b32 s7, s56, 9
    s_add_u32 s7, s7, {ST}
    ''')
    if hpre:
        A('v_lshlrev_b32 v8, 7, v0')
        if hpre in (1, 2):
            A(f's_mov_b64 exec, 0xfffffff\nbuffer_load_dword v128, v8, s[40:43], s67 offen{pref}')
        if hpre == 1:
            A(f'''
            s_mov_b64 exec, 0xffffff
            buffer_load_dword v128, v8, s[40:43], s59 offen{pref}
            s_mov_b64 exec, 7
            buffer_load_dword v128, v8, s[40:43], s7 offen{pref}
            ''')
        if hpre in (2, 3):
            A(f'''
            s_cmp_lg_u32 s5, 7
            s_cbranch_scc1 L_nopre
            s_mov_b64 exec, 3
            buffer_load_dword v128, v8, s[40:43], s7 offen{pref}
            L_nopre:
            ''')
        A('s_mov_b64 exec, -1')
    A(f'''
    v_lshrrev_b32 v1, 4, v0                  ; g
    v_and_b32 v2, 15, v0
    v_and_b32 v3, 3, v0
    v_mul_u32_u24 v3, 896, v3
    v_add_u32 v3, {XN}, v3                   ; row of batch l%4
    v_lshl_add_u32 v4, v1, 3, v3             ; + g*8
    v_and_b32 v5, 60, v0
    v_lshl_add_u32 v3, v5, 1, v3             ; + (l/4)*8
    s_min_u32 s60, s5, 6
    s_lshl_b32 s60, s60, 7
    v_add_u32 v5, s60, v4
    v_lshrrev_b32 v7, 2, v0
    v_lshlrev_b32 v7, 7, v7
    v_bfe_u32 v6, v0, 3, 2
    v_lshl_add_u32 v7, v6, 5, v7
    v_and_b32 v6, 3, v0
    v_lshl_add_u32 v148, v6, 3, v7
    v_xor_b32 v149, 32, v148
    v_xor_b32 v150, 64, v148
    v_xor_b32 v151, 0x60, v148
    v_add_u32 v152, {AREA}, v148
    v_add_u32 v153, {AREA}, v149
    v_add_u32 v154, {AREA}, v150
    v_add_u32 v155, {AREA}, v151
    s_mov_b32 s8, 0x000f000f
    s_mov_b32 s9, s8
    s_lshl_b64 s[10:11], s[8:9], 4
    s_lshl_b64 s[12:13], s[8:9], 8
    s_lshl_b64 s[14:15], s[8:9], 12
    v_mov_b32 v30, 1
    v_lshlrev_b32 v29, 3, v0                 ; lane*8
    v_lshlrev_b32 v7, 4, v0                  ; lane*16
    v_and_b32 v6, 0x1f0, v7
    v_and_b32 v10, 32, v0
    v_lshl_add_u32 v6, v10, 7, v6
    v_and_b32 v129, 7, v0
    v_lshlrev_b32 v129, 2, v129
    v_add_u32 v129, s66, v129
    s_mul_i32 s46, s57, 0x01010101
    {'v_mov_b32 v130, s46' if noxc else 'global_load_dword v130, v129, s[36:37] sc1'}
    s_barrier
    ''')
    hstamp(0)
    cntwait(CNT0, 'L_w0', 1)
    hstamp(1)
    def wreads(areg, base, stride):
        for s_ in range(2):
            for ks in range(2):
                for T in range(4):
                    for half in range(2):
                        d = WF + 32*s_ + 16*ks + 4*T + 2*half
                        A(f'ds_read_b64_tr_b16 v[{d}:{d+1}], v{areg+T} offset:{base + s_*stride + ks*4096 + half*2048}')
    for u in range(7):
        A(f'ds_read_b64 v[{XR+2*u}:{XR+2*u+1}], v3 offset:{128*u}')
    for ks in range(2):
        A(f'ds_read2_b64 v[{RA+4*ks}:{RA+4*ks+3}], v5 offset0:{8*ks} offset1:{8*ks+4}')
    wreads(148, 8192, 16384)
    A(f'''
    ds_write_b32 v31, v30 offset:{FLG-MISC}
    s_mul_i32 s62, s62, 1664525
    s_add_u32 s62, s62, 1013904223
    s_lshr_b32 s60, s62, 8
    v_mov_b32 v28, s62
    v_mov_b32 v131, s60
    s_movk_i32 s47, 0xff
    s_waitcnt lgkmcnt(15)
    ''')
    for u in range(14):
        A(f'v_lshlrev_b32 v{XF+2*u}, 16, v{XR+u}')
        A(f'v_and_b32 v{XF+2*u+1}, 0xffff0000, v{XR+u}')
    def allsum(r):
        A(f'''
        v_add_f32_dpp v{r}, v{r}, v{r} row_ror:4 row_mask:0xf bank_mask:0xf
        v_add_f32_dpp v{r}, v{r}, v{r} row_ror:8 row_mask:0xf bank_mask:0xf
        v_mov_b32 v8, v{r}
        v_permlane16_swap_b32 v{r}, v8
        v_add_f32 v{r}, v{r}, v8
        v_mov_b32 v8, v{r}
        v_permlane32_swap_b32 v{r}, v8
        v_add_f32 v{r}, v{r}, v8
        ''')
    A(f'v_pk_add_f32 v[22:23], v[{XF}:{XF+1}], v[{XF+2}:{XF+3}]')
    A(f'v_pk_add_f32 v[26:27], v[{XF+4}:{XF+5}], v[{XF+6}:{XF+7}]')
    for u in range(4, 14, 2):
        A(f'v_pk_add_f32 v[22:23], v[22:23], v[{XF+2*u}:{XF+2*u+1}]')
        A(f'v_pk_add_f32 v[26:27], v[26:27], v[{XF+2*u+2}:{XF+2*u+3}]')
    A('v_pk_add_f32 v[22:23], v[22:23], v[26:27]')
    A('v_add_f32 v22, v22, v23')
    allsum(22)
    A(f'''
    v_mul_f32 v22, {f32(1/448)}, v22           ; mean
    v_cvt_pk_bf16_f32 v24, v22, v22
    v_and_b32 v24, 0xffff0000, v24           ; bf16(mean)
    v_sub_f32 v22, v22, v24
    ''')
    for u in range(14):
        A(f'v_pk_add_f32 v[{XF+2*u}:{XF+2*u+1}], v[{XF+2*u}:{XF+2*u+1}], v[24:25] op_sel_hi:[1,0] neg_lo:[0,1] neg_hi:[0,1]')
    A(f'v_pk_mul_f32 v[26:27], v[{XF}:{XF+1}], v[{XF}:{XF+1}]')
    A(f'v_pk_mul_f32 v[10:11], v[{XF+2}:{XF+3}], v[{XF+2}:{XF+3}]')
    for u in range(2, 14, 2):
        A(f'v_pk_fma_f32 v[26:27], v[{XF+2*u}:{XF+2*u+1}], v[{XF+2*u}:{XF+2*u+1}], v[26:27]')
        A(f'v_pk_fma_f32 v[10:11], v[{XF+2*u+2}:{XF+2*u+3}], v[{XF+2*u+2}:{XF+2*u+3}], v[10:11]')
    A('v_pk_add_f32 v[26:27], v[26:27], v[10:11]')
    A('v_add_f32 v26, v26, v27')
    allsum(26)
    A(f'''
    v_mul_f32 v26, {f32(1/448)}, v26
    v_fma_f32 v26, -v22, v22, v26            ; var
    v_max_f32 v26, 0, v26
    v_cvt_pk_bf16_f32 v26, v26, v26
    v_and_b32 v26, 0xffff0000, v26           ; bf16(var)
    v_add_f32 v26, {f32(1e-5)}, v26
    v_cvt_pk_bf16_f32 v26, v26, v26
    v_and_b32 v26, 0xffff0000, v26
    v_sqrt_f32 v26, v26
    v_cvt_pk_bf16_f32 v26, v26, v26
    v_and_b32 v26, 0xffff0000, v26
    v_rcp_f32 v26, v26
    ''')
    NF = 8
    for u in range(8):
        a, b = NF + 2*u, NF + 2*u + 1
        A(f'v_lshlrev_b32 v{a}, 16, v{RA+u}')
        A(f'v_and_b32 v{b}, 0xffff0000, v{RA+u}')
    for u in range(8):
        a, b = NF + 2*u, NF + 2*u + 1
        A(f'v_pk_add_f32 v[{a}:{b}], v[{a}:{b}], v[24:25] op_sel_hi:[1,0] neg_lo:[0,1] neg_hi:[0,1]')
    for u in range(8):
        a, b = NF + 2*u, NF + 2*u + 1
        A(f'v_cvt_pk_bf16_f32 v{b}, v{a}, v{b}')
    for u in range(8):
        a, b = NF + 2*u, NF + 2*u + 1
        A(f'v_lshlrev_b32 v{a}, 16, v{b}')
        A(f'v_and_b32 v{b}, 0xffff0000, v{b}')
    for u in range(8):
        a, b = NF + 2*u, NF + 2*u + 1
        A(f'v_pk_mul_f32 v[{a}:{b}], v[{a}:{b}], v[26:27] op_sel_hi:[1,0]')
    for u in range(8):
        a, b = NF + 2*u, NF + 2*u + 1
        A(f'v_cvt_pk_bf16_f32 v{RA+u}, v{a}, v{b}')
    for T in range(4):
        for u in range(8):
            A(f'v_cndmask_b32 v{XF+8*T+u}, 0, v{RA+u}, s[{8+2*T}:{9+2*T}]')
    def mm(p):
        for ks in range(2):
            for T in range(4):
                for s_ in range(2):
                    acc = AC + 8*p + 4*s_
                    bb = WF + 32*s_ + 16*ks + 4*T
                    c = '0' if (ks == 0 and T == 0) else f'v[{acc}:{acc+3}]'
                    A(f'v_mfma_f32_16x16x32_bf16 v[{acc}:{acc+3}], v[{XF+8*T+4*ks}:{XF+8*T+4*ks+3}], v[{bb}:{bb+3}], {c}')
    hstamp(2)
    A('s_waitcnt lgkmcnt(0)')
    mm(0)
    wreads(152, 0, 8192)
    A(f'''
    s_mov_b32 s58, {0 if forceslow else 1}
    s_movk_i32 s63, {xtries}
    L_xc:
    s_waitcnt vmcnt(0)
    v_cmp_ne_u32 vcc, s46, v130
    s_cbranch_vccz L_xc_done
    global_load_dword v130, v129, s[36:37] sc1
    s_sub_u32 s63, s63, 1
    s_cbranch_scc0 L_xc
    s_mov_b32 s58, 0
    L_xc_done:
    s_waitcnt lgkmcnt(0)
    ''')
    mm(1)
    A(f'''
    s_add_u32 s60, s65, 8192
    s_add_u32 s61, s65, 16384
    s_add_u32 s63, s65, 24576
    v_mov_b32 v20, v28
    v_mov_b32 v21, v131
    v_mov_b32 v22, v28
    v_mov_b32 v23, v131
    s_cmp_eq_u32 s5, 7
    s_cbranch_scc1 L_nopiece
    ''')
    for q in range(4):
        for r in range(4):
            A(f'v_bfi_b32 v{PB+4*r+q}, s47, v{131 if q & 1 else 28}, v{AC+4*q+r}')
    store2([f'buffer_store_dwordx4 v[{PB+4*r}:{PB+4*r+3}], v6, s[40:43], {so} offen' for r, so in enumerate(('s65', 's60', 's61', 's63'))])
    A('L_nopiece:')
    hstamp(3)
    A(f'''
    v_and_b32 v20, s47, v20
    v_and_b32 v21, s47, v21
    v_and_b32 v22, s47, v22
    v_and_b32 v23, s47, v23
    s_mov_b32 s63, {SPIN}
    {f's_sleep {presl}' if presl else ''}
    L_poll7:
    buffer_load_dwordx4 v[8:11], v7, s[40:43], s67 offen{pollf}
    buffer_load_dwordx4 v[12:15], v7, s[40:43], s67 offen offset:1024{pollf}
    buffer_load_dwordx4 v[16:19], v7, s[40:43], s67 offen offset:2048{pollf}
    s_mov_b32 exec_hi, 0
    buffer_load_dwordx4 v[20:23], v7, s[40:43], s67 offen offset:3072{pollf}
    s_mov_b32 exec_hi, -1
    s_sub_u32 s63, s63, 1
    s_waitcnt vmcnt(0)
    s_cbranch_scc1 L_poll7_done
    v_xor_b32 v24, v8, v28
    v_xor_b32 v25, v9, v131
    ''')
    for r in range(10, 24, 2):
        A(f'v_bitop3_b32 v24, v{r}, v28, v24 bitop3:0xbe')
        A(f'v_bitop3_b32 v25, v{r+1}, v131, v25 bitop3:0xbe')
    A(f'''
    v_or_b32 v24, v24, v25
    v_and_b32 v24, s47, v24
    v_cmp_ne_u32 vcc, 0, v24
    s_cbranch_vccz L_poll7_done
    s_sleep {psleep}
    s_branch L_poll7
    L_poll7_done:
    v_pk_add_f32 v[8:9], v[8:9], v[12:13]
    v_pk_add_f32 v[10:11], v[10:11], v[14:15]
    v_pk_add_f32 v[16:17], v[16:17], v[20:21]
    v_pk_add_f32 v[18:19], v[18:19], v[22:23]
    v_pk_add_f32 v[8:9], v[8:9], v[16:17]
    v_pk_add_f32 v[10:11], v[10:11], v[18:19]
    s_mov_b32 vcc_lo, 0xaaaaaaaa
    s_mov_b32 vcc_hi, 0
    v_permlane32_swap_b32 v8, v10
    v_permlane32_swap_b32 v9, v11
    v_add_f32 v8, v8, v10
    v_add_f32 v9, v9, v11
    v_cvt_pk_bf16_f32 v10, v8, v9
    v_lshlrev_b32 v11, 16, v10
    v_and_b32 v10, 0xffff0000, v10
    v_max_f32 v11, 0, v11
    s_mov_b32 exec_lo, 0
    v_mul_f32 v8, v11, v10
    v_mul_f32 v9, v11, v10
    s_mov_b32 exec_lo, -1
    v_cndmask_b32 v10, v9, v8, vcc
    s_lshr_b32 s60, s5, 1
    s_lshl3_add_u32 s60, s60, s4
    s_lshl_b32 s60, s60, 12
    v_mov_b32_dpp v11, v10 quad_perm:[1,0,3,2] row_mask:0xf bank_mask:0xf
    s_add_u32 s60, s60, {QX}
    s_and_b32 s61, s5, 1
    s_lshl1_add_u32 s61, s6, s61             ; 2b + half
    v_cndmask_b32 v8, v8, v11, vcc
    v_cndmask_b32 v9, v11, v9, vcc
    v_cvt_pk_bf16_f32 v26, v8, v9
    v_mov_b32 v27, v28
    s_lshl_b32 s63, s61, 7
    s_add_u32 s63, s63, {2048-128}
    s_lshl_b32 s61, s61, 8
    v_and_b32 v9, 1, v0
    v_mul_u32_u24 v9, 124, v9
    v_add_u32 v9, s61, v9
    s_mov_b32 exec_lo, 0
    v_mov_b32 v9, s63
    s_mov_b32 exec_lo, -1
    v_lshl_add_u32 v9, v0, 2, v9
    s_mov_b32 exec_hi, 0x55555555
    ''')
    store2([f'buffer_store_dwordx2 v[26:27], v9, s[40:43], s60 offen'])
    A('s_mov_b32 exec_hi, -1')
    hstamp(4)
    A(f'''
    s_mov_b32 s63, {SPIN}
    {f's_sleep {presl}' if presl else ''}
    L_poll3:
    buffer_load_dwordx4 v[8:11], v7, s[40:43], s59 offen{pollf}
    buffer_load_dwordx4 v[12:15], v7, s[40:43], s59 offen offset:1024{pollf}
    buffer_load_dwordx4 v[16:19], v7, s[40:43], s59 offen offset:2048{pollf}
    s_sub_u32 s63, s63, 1
    s_waitcnt vmcnt(0)
    s_cbranch_scc1 L_poll3_done
    v_min3_u32 v24, v9, v11, v13
    v_max3_u32 v25, v9, v11, v13
    v_min3_u32 v24, v24, v15, v17
    v_max3_u32 v25, v25, v15, v17
    v_min3_u32 v24, v24, v19, v28
    v_max3_u32 v25, v25, v19, v28
    v_cmp_ne_u32 vcc, v24, v25
    s_cbranch_vccz L_poll3_done
    s_sleep {psleep}
    s_branch L_poll3
    L_poll3_done:
    v_and_b32 v24, 0x138, v29                ; l5*256 + (l&7)*8
    v_and_b32 v25, 8, v0
    v_lshl_add_u32 v24, v25, 4, v24
    v_and_b32 v25, 16, v0
    v_lshl_add_u32 v24, v25, 2, v24
    v_add_u32 v24, {QL}, v24
    v_add_u32 v25, {HL}, v29
    ds_write2_b32 v24, v8, v10 offset0:0 offset1:1
    ds_write2_b32 v24, v12, v14 offset0:128 offset1:129
    ds_write2_b32 v25, v16, v18 offset0:0 offset1:1
    ds_write_b32 v31, v30 offset:{FLQ-MISC}
    ''')
    hstamp(6)
    A(f'''
    s_mul_i32 s64, s6, 7
    s_add_u32 s64, s64, s5                   ; 7b + j
    ''')
    if gov:
        A(f'''
        s_lshr_b32 s60, s2, 3
        s_lshl_b32 s60, s60, 7
        s_add_u32 s60, s60, {TK2}
        s_add_u32 s32, s38, s60
        s_addc_u32 s33, s39, 0
        v_mov_b32 v56, s60
        v_not_b32 v57, v28
        s_mov_b64 exec, 1
        buffer_store_byte v57, v56, s[40:43], s4 offen sc1
        s_mov_b64 exec, -1
        s_lshl_b32 s60, s4, 3
        s_lshl_b64 s[30:31], 0xff, s60
        ''')
    if fin != 'D':
        A(f'''
        s_cmp_eq_u32 s5, 7
        s_cbranch_scc1 L_notk
        s_lshl_b32 s60, s64, 7
        s_add_u32 s60, s60, {TK}
        v_mov_b32 v56, s60
        v_not_b32 v57, v28
        s_mov_b64 exec, 1
        buffer_store_byte v57, v56, s[40:43], s4 offen sc1
        s_mov_b64 exec, -1
        L_notk:
        ''')
    if gov: A('s_waitcnt vmcnt(0)')
    cntwait(CNT, 'L_wc', 4, govn if gov else 8)
    if gov:
        tbl = sum(n << (4*(k+1)) for k, n in enumerate(gov))
        A(f'''
        s_atomic_xor_x2 s[30:31], s[32:33], 0 glc
        s_and_b32 s60, s62, 0xff
        s_mul_i32 s26, s60, 0x01010101
        s_mov_b32 s27, s26
        s_mov_b32 s28, {tbl & 0xffffffff}
        s_mov_b32 s29, {tbl >> 32}
        s_waitcnt lgkmcnt(0)
        s_xor_b64 s[30:31], s[30:31], s[26:27]
        s_bcnt1_i32_b64 s60, s[30:31]
        s_lshr_b32 s60, s60, 3
        s_lshl_b32 s60, s60, 2
        s_lshr_b64 s[28:29], s[28:29], s60
        s_and_b32 s60, s28, 15
        v_mov_b32 v9, s60
        ds_write_b32 v31, v9 offset:{THR-MISC}
        ''')
        cntwait(CNT, 'L_wc2', 4)
    hstamp(7)
    A(f'''
    v_lshlrev_b32 v8, 3, v2
    v_add_u32 v8, {STW}, v8
    ds_read_b64 v[4:5], v8
    s_lshl4_add_u32 s61, s5, s7
    v_mov_b32 v25, v28
    s_waitcnt lgkmcnt(0)
    v_max_f32_dpp v24, v4, v4 quad_perm:[1,0,3,2] row_mask:0xf bank_mask:0xf
    v_max_f32_dpp v24, v24, v24 quad_perm:[2,3,0,1] row_mask:0xf bank_mask:0xf
    v_max_f32_dpp v24, v24, v24 row_half_mirror row_mask:0xf bank_mask:0xf
    v_sub_f32 v26, v4, v24
    v_mul_f32 v26, {CEXP}, v26
    v_exp_f32 v26, v26
    v_mul_f32 v26, v26, v5
    v_add_f32_dpp v26, v26, v26 quad_perm:[1,0,3,2] row_mask:0xf bank_mask:0xf
    v_add_f32_dpp v26, v26, v26 quad_perm:[2,3,0,1] row_mask:0xf bank_mask:0xf
    v_add_f32_dpp v26, v26, v26 row_half_mirror row_mask:0xf bank_mask:0xf
    s_mov_b64 exec, 0x101
    ''')
    store2([f'buffer_store_dwordx4 v[24:27], v7, s[40:43], s61 offen'])
    A(f'''
    s_mov_b64 exec, 0xffff
    s_mov_b32 s63, {SPIN}
    {f's_sleep {presl}' if presl else ''}
    L_polls:
    buffer_load_dwordx4 v[16:19], v7, s[40:43], s7 offen{pollf}
    s_sub_u32 s63, s63, 1
    s_waitcnt vmcnt(0)
    s_cbranch_scc1 L_polls_done
    v_min3_u32 v10, v17, v19, v28
    v_max3_u32 v11, v17, v19, v28
    v_cmp_ne_u32 vcc, v10, v11
    s_cbranch_vccz L_polls_done
    s_sleep {psleep}
    s_branch L_polls
    L_polls_done:
    ''')
    hstamp(8)
    A(f'''
    v_max_f32_dpp v10, v16, v16 quad_perm:[1,0,3,2] row_mask:0xf bank_mask:0xf
    v_max_f32_dpp v10, v10, v10 quad_perm:[2,3,0,1] row_mask:0xf bank_mask:0xf
    v_max_f32_dpp v10, v10, v10 row_half_mirror row_mask:0xf bank_mask:0xf
    v_sub_f32 v11, v16, v10
    v_sub_f32 v10, v4, v10
    v_mul_f32 v11, {CEXP}, v11
    v_mul_f32 v10, {CEXP}, v10
    v_exp_f32 v11, v11
    v_exp_f32 v10, v10
    v_mul_f32 v11, v11, v18
    v_add_f32_dpp v11, v11, v11 quad_perm:[1,0,3,2] row_mask:0xf bank_mask:0xf
    v_add_f32_dpp v11, v11, v11 quad_perm:[2,3,0,1] row_mask:0xf bank_mask:0xf
    v_add_f32_dpp v11, v11, v11 row_half_mirror row_mask:0xf bank_mask:0xf
    v_rcp_f32 v11, v11
    v_mul_f32 v10, v10, v11
    v_and_b32 v9, 56, v29
    v_lshrrev_b32 v8, 1, v0
    v_and_b32 v8, 4, v8
    v_add3_u32 v9, v9, v8, v31
    v_subrev_u32 v9, {MISC-FACW}, v9
    ds_write_b32 v9, v10
    s_mov_b64 exec, -1
    v_mov_b32 v24, 1
    v_mov_b32 v25, s58
    v_mov_b32 v26, v28
    ds_write_b128 v31, v[24:27] offset:{FLF-MISC}
    s_cmp_eq_u32 s5, 7
    s_waitcnt lgkmcnt(0)
    {'' if early else 's_cbranch_scc1 ' + ('L_end' if pad else 'L_hdone')}
    s_lshl_b32 s61, s64, 7
    v_lshlrev_b32 v4, 1, v0
    v_add_u32 v4, s61, v4
    v_add_u32 v5, {XN}, v4
    ds_read_u16 v5, v5                       ; residual x
    s_mov_b64 s[52:53], s[34:35]
    s_movk_i32 s54, 3584
    s_mov_b32 s55, 0x20000
    s_lshl_b32 s60, s64, 12
    s_add_u32 s60, s60, {P2}
    v_add_u32 v6, s60, v29
    v_lshlrev_b32 v7, 2, v0
    v_add_u32 v7, {YL}, v7
    ''')
    for i in range(8):
        A(f's_add_u32 s{18+i}, s4, {i}')
        A(f's_and_b32 s{18+i}, s{18+i}, 7')
        A(f's_lshl_b32 s{18+i}, s{18+i}, 9')
    if fin == 'D':
        A(f'''
    s_waitcnt lgkmcnt(0)
    v_lshlrev_b32 v5, 16, v5
    s_barrier                               ; #4
    ''')
        hstamp(9)
        A('s_call_b64 s[14:15], L_others')
        hstamp(10)
        if early:
            A(f'''
            s_waitcnt vmcnt(0) lgkmcnt(0)
            {'' if satom else 'v_readfirstlane_b32 s30, v58'}
            {'' if satom else 'v_readfirstlane_b32 s31, v59'}
            s_xor_b64 s[30:31], s[30:31], s[26:27]
            s_andn2_b64 s[30:31], s[30:31], s[28:29]
            s_cbranch_scc1 L_hdone
            ''')
            if early == 2:
                A(f'''
                s_mov_b64 exec, 0xff
                L_trig2:
                buffer_load_dwordx2 v[60:61], v62, s[40:43], 0 offen sc1
                s_sub_u32 s63, s63, 1
                s_waitcnt vmcnt(0)
                s_cbranch_scc1 L_trig2_done
                v_cmp_ne_u32 vcc, v61, v28
                s_cbranch_vccnz L_trig2
                L_trig2_done:
                s_mov_b64 exec, -1
                ''')
            for i in range(1, 8):
                A(f'buffer_load_dwordx2 v[{32+2*i}:{33+2*i}], v6, s[40:43], s{18+i} offen sc1')
        A(f'''
    s_barrier                               ; #5
    ds_read2st64_b32 v[48:49], v7 offset0:0 offset1:1
    ds_read2st64_b32 v[50:51], v7 offset0:2 offset1:3
    ds_read2st64_b32 v[52:53], v7 offset0:4 offset1:5
    ds_read2st64_b32 v[54:55], v7 offset0:6 offset1:7
    s_waitcnt lgkmcnt(2)
    v_add_f32 v48, v48, v49
    v_add_f32 v50, v50, v51
    s_waitcnt lgkmcnt(0)
    v_add_f32 v52, v52, v53
    v_add_f32 v54, v54, v55
    v_add_f32 v48, v48, v50
    v_add_f32 v52, v52, v54
    v_add_f32 v26, v48, v52
    s_cbranch_vccnz L_late
    ''')
    else:
        A(f'''
    s_lshl_b32 s60, s56, 14
    s_add_u32 s60, s60, {P1 + 16384 - 128}
    v_lshl_add_u32 v57, v0, 4, s60
    s_and_b32 s60, s62, 0xff
    s_mul_i32 s26, s60, 0x01010101
    s_mov_b32 s27, s26
    s_lshl_b32 s60, s4, 3
    s_lshl_b64 s[28:29], 0xff, s60
    {'buffer_load_dwordx2 v[60:61], v6, s[40:43], s18 offen' if p2pre else ''}
    {'buffer_load_ushort v63, v4, s[52:55], 0 offen' if p2pre == 2 else ''}
    s_waitcnt lgkmcnt(0)
    v_lshlrev_b32 v5, 16, v5
    v_mov_b32 v58, s28
    v_mov_b32 v59, s29
    v_mov_b32 v62, v57
    s_mov_b64 s[30:31], s[28:29]
    s_lshl_b32 s60, s64, 7
    s_add_u32 s60, s60, {TK}
    s_add_u32 s32, s38, s60
    s_addc_u32 s33, s39, 0
        ''')
        if early:
            A(f'''
            s_add_u32 s60, s7, 256
            v_lshl_add_u32 v57, v0, 2, s60
            s_lshl_b32 s61, s5, 2
            ''')
            cntwait(CNTV, 'L_wv', 1)
            A('s_mov_b64 exec, 1')
            store2(['buffer_store_dword v28, v57, s[40:43], s61 offen'])
            A(f'''
            s_cmp_eq_u32 s5, 7
            s_cbranch_scc1 {'L_end' if pad else 'L_hdone'}
            ''')
        A(f'''
    s_mov_b32 s63, {SPIN}
    s_barrier                               ; #4
        ''')
        hstamp(9)
        A(f'''
    s_mov_b64 exec, 0xff
    L_trig:
    {'buffer_load_dword v61, v57, s[40:43], 0 offen sc1' if early else 'buffer_load_dwordx2 v[60:61], v57, s[40:43], 0 offen sc1'}
    s_sub_u32 s63, s63, 1
    s_waitcnt vmcnt(0)
    s_cbranch_scc1 L_trig_done
    v_cmp_ne_u32 vcc, v61, v28
    s_cbranch_vccnz L_trig
    L_trig_done:
        ''')
        if satom:
            A('s_atomic_xor_x2 s[30:31], s[32:33], 0 glc\ns_mov_b64 exec, -1')
        else:
            A('''
            s_mov_b64 exec, 1
            buffer_atomic_xor_x2 v[58:59], v56, s[40:43], 0 offen sc0 sc1
            s_mov_b64 exec, -1
            ''')
        if spec:
            for i in range(1, 8):
                A(f'buffer_load_dwordx2 v[{32+2*i}:{33+2*i}], v6, s[40:43], s{18+i} offen sc1')
        hstamp(10)
        if early:
            A(f'''
            s_waitcnt vmcnt(0) lgkmcnt(0)
            {'' if satom else 'v_readfirstlane_b32 s30, v58'}
            {'' if satom else 'v_readfirstlane_b32 s31, v59'}
            s_xor_b64 s[30:31], s[30:31], s[26:27]
            s_andn2_b64 s[30:31], s[30:31], s[28:29]
            s_cbranch_scc1 L_hdone
            ''')
            if early == 2:
                A(f'''
                s_mov_b64 exec, 0xff
                L_trig2:
                buffer_load_dwordx2 v[60:61], v62, s[40:43], 0 offen sc1
                s_sub_u32 s63, s63, 1
                s_waitcnt vmcnt(0)
                s_cbranch_scc1 L_trig2_done
                v_cmp_ne_u32 vcc, v61, v28
                s_cbranch_vccnz L_trig2
                L_trig2_done:
                s_mov_b64 exec, -1
                ''')
            for i in range(1, 8):
                A(f'buffer_load_dwordx2 v[{32+2*i}:{33+2*i}], v6, s[40:43], s{18+i} offen sc1')
        A(f'''
    s_barrier                               ; #5
    ds_read2st64_b32 v[48:49], v7 offset0:0 offset1:1
    ds_read2st64_b32 v[50:51], v7 offset0:2 offset1:3
    ds_read2st64_b32 v[52:53], v7 offset0:4 offset1:5
    ds_read2st64_b32 v[54:55], v7 offset0:6 offset1:7
    s_waitcnt lgkmcnt(2)
    v_add_f32 v48, v48, v49
    v_add_f32 v50, v50, v51
    s_waitcnt lgkmcnt(0)
    v_add_f32 v52, v52, v53
    v_add_f32 v54, v54, v55
    v_add_f32 v48, v48, v50
    v_add_f32 v52, v52, v54
    v_add_f32 v26, v48, v52
        ''')
        if not early:
            A(f'''
    {'' if satom else f's_waitcnt vmcnt({7 if spec else 0})'}
    {'' if satom else 'v_readfirstlane_b32 s30, v58'}
    {'' if satom else 'v_readfirstlane_b32 s31, v59'}
    s_xor_b64 s[30:31], s[30:31], s[26:27]
    s_andn2_b64 s[30:31], s[30:31], s[28:29]
    s_cbranch_scc1 L_hdone
        ''')
        hstamp(13)
        A(f'''
    s_mov_b32 s63, {SPIN}
    {'s_branch L_fchk' if (spec or early) else ''}
    L_fpoll:
        ''')
        for i in range(1, 8):
            A(f'buffer_load_dwordx2 v[{32+2*i}:{33+2*i}], v6, s[40:43], s{18+i} offen sc1')
        A(f'''
    L_fchk:
    s_sub_u32 s63, s63, 1
    s_waitcnt vmcnt(0)
    s_cbranch_scc1 L_fsum
    v_min3_u32 v12, v35, v37, v39
    v_max3_u32 v13, v35, v37, v39
    v_min3_u32 v12, v12, v41, v43
    v_max3_u32 v13, v13, v41, v43
    v_min3_u32 v12, v12, v45, v47
    v_max3_u32 v13, v13, v45, v47
    v_min_u32 v12, v12, v28
    v_max_u32 v13, v13, v28
    v_cmp_ne_u32 vcc, v12, v13
    s_cbranch_vccnz L_fpoll
    L_fsum:
    v_add_f32 v34, v34, v36
    v_add_f32 v38, v38, v40
    v_add_f32 v42, v42, v44
    v_add_f32 v46, v46, v5
    v_add_f32 v34, v34, v38
    v_add_f32 v42, v42, v46
    v_add_f32 v34, v34, v42
        ''')
    A(f'''
    L_finish:
    v_add_f32 v34, v34, v26
    v_cvt_pk_bf16_f32 v34, v34, v34
    buffer_store_short v34, v4, s[52:55], 0 offen{outf}
    ''')
    hstamp(11)
    if stamps and 14 in hl:
        A(f's_sub_u32 s60, {SPIN}, s63\ns_mul_i32 s60, s60, 100\ns_add_u32 s60, s68, s60\ns_addc_u32 s61, s69, 0\nv_writelane_b32 v164, s60, 14\nv_writelane_b32 v165, s61, 14')
    A(f'''
    s_cmp_lg_u32 s64, 21
    s_cbranch_scc1 L_hdone
    s_mov_b64 exec, 1
    v_mov_b32 v1, {EPOCH}
    buffer_store_dword v28, v1, s[40:43], 0 offen
    L_hdone:
    ''')
    if pad and padat[0] == 'h': dopad('L_padh')
    if stamps:
        A('s_waitcnt vmcnt(0)')
        hstamp(12)
        A('''
        s_memtime s[92:93]
        s_waitcnt lgkmcnt(0)
        s_sub_u32 s92, s92, s94
        s_sub_u32 s93, s100, s96
        v_cvt_f32_u32 v1, s92
        v_cvt_f32_u32 v2, s93
        v_rcp_f32 v2, v2
        v_mul_f32 v1, v1, v2
        v_mul_f32 v1, 0x42c80000, v1
        v_cvt_u32_f32 v1, v1
        v_readfirstlane_b32 s92, v1
        s_add_u32 s92, s92, s68
        s_addc_u32 s93, s69, 0
        v_writelane_b32 v164, s92, 15
        v_writelane_b32 v165, s93, 15
        ''')
        A(f'''
        s_mov_b64 exec, 0xffff
        s_lshl_b32 s60, s2, 9
        s_add_u32 s60, s60, {STAMPS+256}
        buffer_store_dwordx2 v[164:165], v29, s[40:43], s60 offen
        ''')
    A(f'''
    L_end:
    s_endpgm
    ''')
    if fin != 'D':
        pass
    else:
        A(f'''
    L_late:
    buffer_store_dwordx2 v[26:27], v6, s[40:43], s18 offen sc1
    s_call_b64 s[14:15], L_others
    s_cbranch_vccz L_finish
    s_call_b64 s[14:15], L_others
    s_cbranch_vccz L_finish
    s_branch L_hdone
    L_others:
    ''')
        for i in range(1, 8):
            A(f'buffer_load_dwordx2 v[{32+2*i}:{33+2*i}], v6, s[40:43], s{18+i} offen sc1')
        A(f'''
    s_waitcnt vmcnt(0)
    v_min3_u32 v12, v35, v37, v39
    v_max3_u32 v13, v35, v37, v39
    v_min3_u32 v12, v12, v41, v43
    v_max3_u32 v13, v13, v41, v43
    v_min3_u32 v12, v12, v45, v47
    v_max3_u32 v13, v13, v45, v47
    v_min_u32 v12, v12, v28
    v_max_u32 v13, v13, v28
    v_cmp_ne_u32 vcc, v12, v13
    v_add_f32 v34, v34, v36
    v_add_f32 v38, v38, v40
    v_add_f32 v42, v42, v44
    v_add_f32 v46, v46, v5
    v_add_f32 v34, v34, v38
    v_add_f32 v42, v42, v46
    v_add_f32 v34, v34, v42
    s_setpc_b64 s[14:15]
    ''')

    A(f'''
    L_stream:
    s_barrier
    s_add_u32 s12, s20, s57
    s_addc_u32 s13, s21, 0
    s_mov_b64 s[14:15], s[10:11]
    s_mov_b64 s[40:41], s[38:39]
    s_mov_b32 s42, {WSN}
    s_mov_b32 s43, s11
    v_mov_b32 v26, {MISC}
    ''')
    if fastmask:
        A(f'''
        s_getreg_b32 s60, hwreg(HW_REG_XCC_ID, 0, 3)
        s_bitcmp1_b32 {fastmask}, s60
        s_cselect_b64 vcc, -1, 0
        ''')
        vm.d = dthr
    if kfirst or xlast == 2: hb('K0', 0, thr + 3)
    A(f'''
    s_mov_b64 s[52:53], s[24:25]
    s_mov_b64 s[48:49], s[32:33]
    s_cmp_lt_u32 s5, 7
    s_cselect_b32 s54, {Z(4096*896)}, 0
    s_cselect_b32 s61, s5, 0
    s_lshl_b32 s61, s61, 7
    s_lshl4_add_u32 s64, s4, s3
    s_mul_i32 s64, s64, {32*896}
    s_add_u32 s64, s64, s61
    s_lshl3_add_u32 s65, s4, s3
    s_mul_i32 s65, s65, {32*896}
    s_add_u32 s65, s65, s61
    s_cmp_lt_u32 s7, 7
    s_cselect_b32 s50, {Z(1792*896)}, 0
    s_cselect_b32 s65, s65, 0
    v_and_b32 v1, 15, v0                     ; row
    v_lshrrev_b32 v2, 4, v0                  ; g
    v_and_b32 v3, 7, v0
    v_lshlrev_b32 v3, 1, v3
    v_xor_b32 v3, v3, v2
    v_lshlrev_b32 v3, 4, v3
    v_lshl_add_u32 v3, v1, 9, v3
    v_add_u32 v8, s59, v3
    v_xor_b32 v9, 64, v8
    v_xor_b32 v10, 0x80, v8
    v_xor_b32 v11, 0xc0, v8
    ''')
    def readK(dst, slot):
        for t in range(8):
            A(f'ds_read_b128 v[{dst+4*t}:{dst+4*t+3}], v{vKA[t&3]} offset:{slot*8192 + (t>>2)*256}')
    def readQ(dst, ts):
        for n, t in enumerate(ts):
            A(f'ds_read_b128 v[{dst+4*n}:{dst+4*n+3}], v24 offset:{t*64}')
    def qk(tile, src, qf, ts=range(8)):
        for n, t in enumerate(ts):
            c = '0' if t == 0 else f'v[{Sx+4*tile}:{Sx+4*tile+3}]'
            A(f'v_mfma_f32_16x16x32_bf16 v[{Sx+4*tile}:{Sx+4*tile+3}], v[{src+4*t}:{src+4*t+3}], v[{qf+4*n}:{qf+4*n+3}], {c}')
    def flagwait(off, lab):
        if nohelp:
            A(f'{lab}_done:')
            return
        A(f'''
        s_mov_b32 s61, {SPIN*8}
        {lab}:
        ds_read_b32 v1, v26 offset:{off-MISC}
        s_sub_u32 s61, s61, 1
        s_waitcnt lgkmcnt(0)
        s_cbranch_scc1 {lab}_done
        v_readfirstlane_b32 s67, v1
        s_cmp_lg_u32 s67, 0
        s_cbranch_scc1 {lab}_done
        s_sleep 1
        s_branch {lab}
        {lab}_done:
        ''')
    vm.wait('small')
    A(f'''
    s_mov_b64 exec, 1
    ds_add_u32 v26, v28 offset:{CNT0-MISC}
    s_mov_b64 exec, -1
    ''')
    stamp(2)
    if not (kfirst or xlast == 2): hb('K0', 0)
    A('s_cmp_gt_u32 s3, 1')
    A('s_cbranch_scc1 L_wg_done')
    flagwait(FLG, 'L_wg')
    ha('K1', 1)
    vm.wait('K0')
    readK(KfA, 0)
    A(f'''
    v_lshrrev_b32 v21, 2, v0                 ; row = l/4
    v_and_b32 v22, 7, v21
    v_lshlrev_b32 v22, 5, v22
    v_lshl_add_u32 v22, v21, 9, v22
    v_and_b32 v23, 3, v0
    v_lshl_add_u32 v22, v23, 3, v22
    v_add_u32 v12, s59, v22
    ''')
    for t in range(1, 8):
        A(f'v_xor_b32 v{12+t}, {t*32}, v12')
    A(f'''
    v_and_b32 v24, 1, v0
    v_lshlrev_b32 v25, 6, v24                ; head*64
    v_lshlrev_b32 v24, 9, v24
    v_lshl_add_u32 v24, v2, 4, v24
    v_add_u32 v24, {QL}, v24
    s_lshl_b32 s60, s3, 3
    s_add_u32 s60, s60, {STW}
    v_add_u32 v25, s60, v25
    ''')
    hb('K1', 1)
    A('s_waitcnt lgkmcnt(0)')
    ha('K2', 0)
    vm.wait('K1')
    readK(KfB, 1)
    hb('K2', 0)
    A('s_waitcnt lgkmcnt(0)')
    ha('K3', 1)
    vm.wait('K2')
    if k3:
        readK(KfC, 0)
        hb('K3', 1)
        A('s_waitcnt lgkmcnt(0)')
        ha('V0', 0)
        vm.wait('K3')
        hb('V0', 0)
        stamp(3)
        if not nodep: flagwait(FLQ, 'L_wq')
        stamp(4)
        readQ(Pk, range(4))
        readQ(160, range(4, 6))
        A('s_waitcnt lgkmcnt(2)')
        for tile, src in enumerate((KfA, KfB, KfC)): qk(tile, src, Pk, range(4))
        readQ(Pk, range(6, 8))
        A('s_waitcnt lgkmcnt(2)')
        for tile, src in enumerate((KfA, KfB, KfC)): qk(tile, src, 160, range(4, 6))
        A('s_waitcnt lgkmcnt(0)')
        for tile, src in enumerate((KfA, KfB, KfC)): qk(tile, src, Pk, range(6, 8))
        readK(KfA, 1)
        readQ(KfB, range(8))
        A('s_waitcnt lgkmcnt(0)')
        issue('V1', 1, (0,))
        qk(3, KfA, KfB)
    else:
        hb('K3', 1)
        stamp(3)
        if not nodep: flagwait(FLQ, 'L_wq')
        stamp(4)
        readQ(KfC, range(8))
        A('s_waitcnt lgkmcnt(0)')
        qk(0, KfA, KfC)
        readK(KfA, 0)
        qk(1, KfB, KfC)
        A('s_waitcnt lgkmcnt(0)')
        qk(2, KfA, KfC)
        ha('V0', 0)
        vm.wait('K3')
        readK(KfB, 1)
        issue('V0', 0, (1,))
        A('s_waitcnt lgkmcnt(0)')
        qk(3, KfB, KfC)
    MK = 84
    A(f's_mov_b32 s{MK}, 0x00030003')
    A(f's_mov_b32 s{MK+1}, 0x00030003')
    for u in range(1, 8):
        A(f's_lshl_b64 s[{MK+2*u}:{MK+2*u+1}], s[{MK}:{MK+1}], {2*u}')
    A(f's_mov_b32 s63, {CEXP}')
    for i in range(8):
        a, b = Sx + 2*i, Sx + 2*i + 1
        A(f'v_cvt_pk_bf16_f32 v{b}, v{a}, v{b}')
        A(f'v_lshlrev_b32 v{a}, 16, v{b}')
        A(f'v_and_b32 v{b}, 0xffff0000, v{b}')
    A(f'v_max3_f32 v22, v{Sx}, v{Sx+1}, v{Sx+2}')
    for i in range(3, 15, 2):
        A(f'v_max3_f32 v22, v22, v{Sx+i}, v{Sx+i+1}')
    A(f'''
    v_max_f32 v22, v22, v{Sx+15}
    v_mov_b32 v1, v22
    v_permlane16_swap_b32 v22, v1
    v_max_f32 v22, v22, v1
    v_mov_b32 v1, v22
    v_permlane32_swap_b32 v22, v1
    v_max_f32 v22, v22, v1
    ''')
    for i in range(16):
        A(f'v_sub_f32 v{Sx+i}, v{Sx+i}, v22')
    for i in range(16):
        A(f'v_mul_f32 v{Sx+i}, s63, v{Sx+i}')
    for i in range(16):
        A(f'v_exp_f32 v{Sx+i}, v{Sx+i}')
    for i in range(8):
        A(f'v_cvt_pk_bf16_f32 v{Pk+i}, v{Sx+2*i}, v{Sx+2*i+1}')
    for i in range(8):
        A(f'v_add_f32 v{Sx+i}, v{Sx+i}, v{Sx+8+i}')
    for i in range(4):
        A(f'v_add_f32 v{Sx+i}, v{Sx+i}, v{Sx+4+i}')
    A(f'''
    v_add_f32 v{Sx}, v{Sx}, v{Sx+2}
    v_add_f32 v{Sx+1}, v{Sx+1}, v{Sx+3}
    v_add_f32 v23, v{Sx}, v{Sx+1}
    v_mov_b32 v1, v23
    v_permlane16_swap_b32 v23, v1
    v_add_f32 v23, v23, v1
    v_mov_b32 v1, v23
    v_permlane32_swap_b32 v23, v1
    v_add_f32 v23, v23, v1
    s_mov_b64 exec, 3
    ds_write_b64 v25, v[22:23]
    s_mov_b64 exec, 1
    ds_add_u32 v26, v28 offset:{CNT-MISC}
    s_mov_b64 exec, -1
    ''')
    stamp(5)
    if not k3: ha('V1', 1)
    vWO, vWD, vOW, vOR, vP1s, vP1l, vYW, vHA = 22, 23, 24, 25, 27, 28, 29, 21
    vWA = [8, 9, 10, 11]
    A(f'''
    s_waitcnt lgkmcnt(0)
    s_movk_i32 s61, 896
    v_mad_u32_u24 v{vWD}, v{vR8}, s61, v{vCH}
    v_bfe_u32 v1, v0, 3, 1
    v_lshlrev_b32 v1, 8, v1
    v_and_b32 v3, 16, v0
    v_add_u32 v1, v1, v3
    v_lshrrev_b32 v3, 5, v0
    v_add_u32 v1, v1, v3
    v_mad_u32_u24 v{vWO}, v1, s61, v{vCH}
    v_lshrrev_b32 v1, 2, v0
    v_lshlrev_b32 v1, 7, v1
    v_bfe_u32 v2, v0, 3, 2
    v_lshl_add_u32 v1, v2, 5, v1
    v_and_b32 v2, 3, v0
    v_lshl_add_u32 v1, v2, 3, v1
    v_add_u32 v8, s59, v1
    v_xor_b32 v9, 32, v8
    v_xor_b32 v10, 64, v8
    v_xor_b32 v11, 0x60, v8
    v_lshlrev_b32 v1, 4, v0
    s_lshl_b32 s60, s3, 11
    s_add_u32 s60, s60, {AREA}
    v_add_u32 v{vOW}, s60, v1
    v_lshrrev_b32 v2, 4, v0                  ; g
    v_and_b32 v3, 15, v0                     ; c
    v_lshlrev_b32 v31, 12, v2                ; waves 2g, 2g+1
    v_lshl_add_u32 v31, v3, 4, v31
    s_lshl_b32 s60, s3, 8
    s_add_u32 s61, s60, {AREA}
    v_add_u32 v{vOR}, s61, v31
    s_add_u32 s61, s60, {YL}
    v_lshlrev_b32 v31, 2, v0
    v_add_u32 v{vYW}, s61, v31
    s_lshl3_add_u32 s60, s56, s3
    s_lshl_b32 s60, s60, 11
    s_add_u32 s60, s60, {P1}
    v_add_u32 v{vP1l}, s60, v1
    s_lshl4_add_u32 s61, s5, s60
    v_and_b32 v1, 7, v0
    v_lshlrev_b32 v1, 8, v1                  ; (half*4+g)*256
    v_and_b32 v3, 8, v0
    v_lshl_add_u32 v1, v3, 4, v1             ; ks*128
    v_add_u32 v{vP1s}, s61, v1
    s_lshl_b32 s60, s3, 6
    s_add_u32 s60, s60, {HL}
    v_lshlrev_b32 v1, 3, v2
    v_add_u32 v{vHA}, s60, v1
    v_lshlrev_b32 v31, 4, v2
    v_add_u32 v31, {FACW}, v31
    s_mul_i32 s60, s6, 7
    s_add_u32 s60, s60, s5
    s_lshl3_add_u32 s60, s60, s4
    s_lshl_b32 s60, s60, 9
    s_add_u32 s60, s60, {P2}
    v_lshl_add_u32 v30, v0, 3, s60
    ''')
    Vf = KfA; Mk = KfB
    WOf, WDf = KfC, Sx
    PL = 64
    def masks(i):
        M = Mk + 16*(i & 1)
        for u in range(8):
            A(f'v_cndmask_b32 v{M+2*u}, 0, v{Pk+2*i}, s[{MK+2*u}:{MK+2*u+1}]')
            A(f'v_cndmask_b32 v{M+2*u+1}, 0, v{Pk+2*i+1}, s[{MK+2*u}:{MK+2*u+1}]')
    def pv(i, slot, mid=None):
        M = Mk + 16*(i & 1)
        def rd(t): A(f'ds_read_b64_tr_b16 v[{Vf+2*t}:{Vf+2*t+1}], v{vVA[t&7]} offset:{slot*8192 + (t>>3)*256}')
        def mf(ii):
            acc = Oa + 4*(ii >> 2)
            c = '0' if (i == 0 and (ii & 3) == 0) else f'v[{acc}:{acc+3}]'
            A(f'v_mfma_f32_16x16x32_bf16 v[{acc}:{acc+3}], v[{M+4*(ii&3)}:{M+4*(ii&3)+3}], v[{Vf+4*ii}:{Vf+4*ii+3}], {c}')
        if ilv and i == 3 and mid is None:
            for t in range(8): rd(t)
            for ii in range(8):
                A(f's_waitcnt lgkmcnt({min(6, 14-2*ii)})')
                mf(ii)
                if ii < 4: rd(8+2*ii); rd(9+2*ii)
                if wlast == 6 and ii >= 4:
                    A(f's_add_u32 m0, s59, {8192 + ii*1024}')
                    A(f's_add_u32 s60, s64, {ii*2*896}')
                    A(f'buffer_load_dwordx4 v{vWO}, s[52:55], s60 offen{wnt} lds')
                    vm.add('WO', 1)
                if wlast == 3:
                    A(f's_add_u32 m0, s59, {8192 + ii*1024}')
                    A(f's_add_u32 s60, s64, {ii*2*896}')
                    A(f'buffer_load_dwordx4 v{vWO}, s[52:55], s60 offen{wnt} lds')
            if wlast == 3: vm.add('WO', 8)
            return
        for t in range(16): rd(t)
        if mid: mid()
        for ii in range(8):
            A(f's_waitcnt lgkmcnt({14-2*ii})')
            mf(ii)
    def issueW(p, slot, t=None, wdoff=0):
        vm.upto(thr if t is None else t)
        for k in range(4):
            if p < 2:
                A(f's_add_u32 m0, s59, {slot*8192 + (4*p+k)*1024}')
                A(f's_add_u32 s60, s64, {(4*p+k)*2*896}')
                A(f'buffer_load_dwordx4 v{vWO}, s[52:55], s60 offen{wnt} lds')
            else:
                A(f's_add_u32 m0, s59, {slot*8192 + wdoff + k*1024}')
                A(f's_add_u32 s60, s65, {k*8*896}')
                A(f'buffer_load_dwordx4 v{vWD}, s[48:51], s60 offen{wnt} lds')
        vm.add('WO' if p < 2 else 'WD', 4)
    def readWO(slot, kss=(0, 1)):
        for ks in kss:
            for T in range(4):
                for half in range(2):
                    d = WOf + 16*ks + 4*T + 2*half
                    A(f'ds_read_b64_tr_b16 v[{d}:{d+1}], v{vWA[T]} offset:{slot*8192 + ks*4096 + half*2048}')
    def readWD(slot, wdoff=0):
        for T in range(4):
            for half in range(2):
                A(f'ds_read_b64_tr_b16 v[{WDf+4*T+2*half}:{WDf+4*T+2*half+1}], v{vWA[T]} offset:{slot*8192 + wdoff + half*2048}')
    def pretouch():
        if p1pre == 2:
            A(f's_lshl_b32 s60, s5, 8\ns_mov_b64 exec, 0x101\nbuffer_load_dword v160, v{vP1l}, s[40:43], s60 offen{pref}\ns_mov_b64 exec, -1')
            vm.add('pre', 1)
            return
        for q in range(2):
            if p1pre: A(f'buffer_load_dwordx4 v[160:163], v{vP1l}, s[40:43], 0 offen offset:{q*1024}{pref}')
        vm.add('pre', 2 if p1pre else 0)
    masks(0)
    vm.wait('V0')
    pv(0, 0)
    masks(1)
    hb('V1', 1)
    if not wlast:
        issueW(0, 0)
        vm.wait('V1')
        pv(1, 1)
        issueW(1, 0)
        issueW(2, 1)
        masks(2)
        vm.wait('WO')
        readWO(0)
        A('s_waitcnt lgkmcnt(0)')
        issue('V2', 0, (0,))
        vm.wait('WD')
        readWD(1)
        hb('V2', 0)
        pretouch()
        A('s_waitcnt lgkmcnt(0)')
        ha('V3', 1, thr + 2)
        vm.wait('V2')
        pv(2, 0, lambda: issue('V3', 1, (1,)))
        s3 = 1
    elif wlast in (5, 6):
        issueW(0, 0)
        vm.wait('V1')
        pv(1, 1)
        issueW(2, 0, None, 4096)
        ha('V2', 1)
        masks(2)
        vm.wait('WD')
        readWO(0, (0,))
        readWD(0, 4096)
        hb('V2', 1)
        pretouch()
        A('s_waitcnt lgkmcnt(0)')
        ha('V3', 0, thr + 2)
        vm.wait('V2')
        pv(2, 1, lambda: issue('V3', 0, (1,)))
        s3 = 0
    else:
        issueW(2, 0)
        vm.wait('V1')
        pv(1, 1)
        ha('V2', 1)
        masks(2)
        vm.wait('WD')
        readWD(0)
        hb('V2', 1)
        pretouch()
        A('s_waitcnt lgkmcnt(0)')
        ha('V3', 0, thr + 2)
        vm.wait('V2')
        pv(2, 1, lambda: issue('V3', 0, (1,)))
        s3 = 0
    masks(3)
    flagwait(FLF, 'L_wf')
    FC = 160
    A(f'''
    ds_read_b128 v[4:7], v26 offset:{FLF-MISC}
    ds_read2_b64 v[64:67], v{vHA} offset0:0 offset1:4
    s_mov_b32 s{MK}, 0x00010001
    s_mov_b32 s{MK+1}, 0x00010001
    s_mov_b32 s{MK+2}, 0x01000100
    s_mov_b32 s{MK+3}, 0x01000100
    s_mov_b32 s{MK+4}, 0x00ff00ff
    s_mov_b32 s{MK+5}, 0x00ff00ff
    ''')
    vm.wait('pre')
    A(f'''
    ds_read_b128 v[{FC}:{FC+3}], v31
    s_waitcnt lgkmcnt(0)
    v_readfirstlane_b32 s63, v5
    v_mov_b32 v{vTAG}, v6
    v_mov_b32 v5, v6
    ''')
    FA = 144
    for r in range(4):
        A(f'v_cndmask_b32 v{68+r}, 0, v{64+r}, s[{MK}:{MK+1}]')
        A(f'v_cndmask_b32 v{72+r}, 0, v{64+r}, s[{MK+2}:{MK+3}]')
    A(f'''
    v_mfma_f32_16x16x32_bf16 v[{FA}:{FA+3}], v[68:71], v[{WDf}:{WDf+3}], 0
    v_mfma_f32_16x16x32_bf16 v[{FA+4}:{FA+7}], v[68:71], v[{WDf+4}:{WDf+7}], 0
    v_mfma_f32_16x16x32_bf16 v[{FA}:{FA+3}], v[72:75], v[{WDf+8}:{WDf+11}], v[{FA}:{FA+3}]
    v_mfma_f32_16x16x32_bf16 v[{FA+4}:{FA+7}], v[72:75], v[{WDf+12}:{WDf+15}], v[{FA+4}:{FA+7}]
    s_mov_b32 s62, {SPIN}
    ''')
    if wlast in (1, 2):
        issueW(0, 1, wthr)
        if wlast == 1: issueW(1, 1, wthr + 2)
    if early: A('v_mov_b32 v1, 1\ns_mov_b64 exec, 1')
    vm.wait('V3')
    if early: A(f'ds_add_u32 v26, v1 offset:{CNTV-MISC}\ns_mov_b64 exec, -1')
    stamp(6)
    pv(3, s3, (lambda: issueW(1, 1, 99)) if wlast == 2 else None)
    A(f'''
    ds_write_b128 v{vOW}, v[{Oa}:{Oa+3}]
    ds_write_b128 v{vOW}, v[{Oa+4}:{Oa+7}] offset:1024
    ''')
    if wlast == 4:
        issueW(0, 1, 99); issueW(1, 1, 99)
    if wlast == 5: issueW(1, 1, 99)
    A('s_waitcnt lgkmcnt(0)')
    stamp(7)
    A(f'''
    s_barrier                               ; #4: O partials
    ds_read_b128 v[32:35], v{vOR}
    ds_read_b128 v[36:39], v{vOR} offset:2048
    s_cmp_eq_u32 s63, 0
    s_waitcnt lgkmcnt(1)
    v_mul_f32 v32, v32, v{FC}
    v_mul_f32 v34, v34, v{FC}
    v_mul_f32 v33, v33, v{FC+1}
    v_mul_f32 v35, v35, v{FC+1}
    s_waitcnt lgkmcnt(0)
    v_fmac_f32 v32, v36, v{FC+2}
    v_fmac_f32 v34, v38, v{FC+2}
    v_fmac_f32 v33, v37, v{FC+3}
    v_fmac_f32 v35, v39, v{FC+3}
    v_permlane32_swap_b32 v32, v34
    v_permlane32_swap_b32 v33, v35
    v_add_f32 v36, v32, v34
    v_add_f32 v37, v33, v35
    v_add_f32 v32, v32, v34
    v_add_f32 v33, v33, v35
    v_permlane16_swap_b32 v32, v36
    v_permlane16_swap_b32 v33, v37
    v_add_f32 v32, v32, v36
    v_add_f32 v33, v33, v37
    v_cvt_pk_bf16_f32 v4, v32, v33
    v_cvt_pk_bf16_f32 v6, v32, v33
    v_permlane32_swap_b32 v4, v6
    s_mov_b64 exec, 0xffff
    s_cbranch_scc1 L_slowpub
    buffer_store_dwordx4 v[4:7], v{vP1s}, s[40:43], 0 offen
    L_pubdone:
    s_mov_b64 exec, -1
    ''')
    vm.add('pub', 1)
    stamp(8)
    A(f'''
    s_cmp_eq_u32 s5, 7
    s_cbranch_scc1 L_sdone
    ''')
    def polls():
        for q in range(2):
            A(f'buffer_load_dwordx4 v[{PL+4*q}:{PL+4*q+3}], v{vP1l}, s[40:43], 0 offen offset:{q*1024} sc1')
    if wlast:
        polls(); vm.add('poll', 2)
        vm.wait('WO')
        readWO(1, (1,) if wlast in (5, 6) else (0, 1))
        A('s_branch L_poll1_chk')
    A('L_poll1:')
    polls()
    A(f'''
    L_poll1_chk:
    s_sub_u32 s62, s62, 1
    s_waitcnt vmcnt(0)
    s_cbranch_scc1 L_poll1_done
    v_min3_u32 v1, v{PL+1}, v{PL+3}, v{PL+5}
    v_max3_u32 v2, v{PL+1}, v{PL+3}, v{PL+5}
    v_min3_u32 v1, v1, v{PL+7}, v{vTAG}
    v_max3_u32 v2, v2, v{PL+7}, v{vTAG}
    v_cmp_ne_u32 vcc, v1, v2
    {'s_mov_b64 exec, vcc' if mpoll else ''}
    {'' if nohelp else 's_cbranch_vccnz L_poll1'}
    L_poll1_done:
    {'s_mov_b64 exec, -1' if mpoll else ''}
    ''')
    stamp(9)
    LO, HI = 80, 88
    def omm(a, ks, T0):
        for x in range(2):
            acc = FA + 4*x
            bb = WOf + 16*ks + 4*(T0 + x)
            A(f'v_mfma_f32_16x16x32_bf16 v[{acc}:{acc+3}], v[{a}:{a+3}], v[{bb}:{bb+3}], v[{acc}:{acc+3}]')
    for q in range(4):
        A(f'v_cndmask_b32 v{LO+q}, 0, v{PL+2*q}, s[{MK+4}:{MK+5}]')
    for q in range(4):
        A(f'v_cndmask_b32 v{HI+4+q}, v{PL+2*q}, 0, s[{MK+4}:{MK+5}]')
    if wlast: A('s_waitcnt lgkmcnt(0)')
    omm(LO, 0, 0)
    for q in range(4):
        A(f'v_mov_b32_dpp v{HI+q}, v{PL+2*q} row_shr:8 row_mask:0xf bank_mask:0xf bound_ctrl:0')
    omm(HI+4, 1, 2)
    for q in range(4):
        A(f'v_mov_b32_dpp v{LO+4+q}, v{PL+2*q} row_shl:8 row_mask:0xf bank_mask:0xf bound_ctrl:0')
    omm(HI, 0, 2)
    omm(LO+4, 1, 0)
    A(f'''
    v_add_f32 v{FA}, v{FA}, v{FA+1}
    v_add_f32 v{FA+2}, v{FA+2}, v{FA+3}
    v_add_f32 v{FA+4}, v{FA+4}, v{FA+5}
    v_add_f32 v{FA+6}, v{FA+6}, v{FA+7}
    v_add_f32 v{FA}, v{FA}, v{FA+2}
    v_add_f32 v{FA+4}, v{FA+4}, v{FA+6}
    v_permlane16_swap_b32 v{FA}, v{FA+4}
    v_add_f32 v{FA}, v{FA}, v{FA+4}
    ds_write_b32 v{vYW}, v{FA}
    s_waitcnt lgkmcnt(0)
    ''')
    stamp(10)
    if fin != 'D': A('s_cmp_lg_u32 s3, 0')
    A('s_barrier                               ; #5')
    if fin != 'D':
        A(f'''
        s_cbranch_scc1 L_sdone
        ds_read2st64_b32 v[48:49], v{vYW} offset0:0 offset1:1
        ds_read2st64_b32 v[50:51], v{vYW} offset0:2 offset1:3
        ds_read2st64_b32 v[52:53], v{vYW} offset0:4 offset1:5
        ds_read2st64_b32 v[54:55], v{vYW} offset0:6 offset1:7
        s_waitcnt lgkmcnt(2)
        v_add_f32 v48, v48, v49
        v_add_f32 v50, v50, v51
        s_waitcnt lgkmcnt(0)
        v_add_f32 v52, v52, v53
        v_add_f32 v54, v54, v55
        v_add_f32 v48, v48, v50
        v_add_f32 v52, v52, v54
        v_add_f32 v4, v48, v52
        buffer_store_dwordx2 v[4:5], v30, s[40:43], 0 offen sc1
        ''')
        if stamps: A('s_waitcnt vmcnt(0)\ns_memrealtime s[70:71]')
    if pad and padat[0] == 's': dopad('L_pads')
    A('L_sdone:')
    if stamps:
        A(f's_cmp_eq_u32 s3, 0')
        A('s_cbranch_scc1 L_dump0')
        A(f's_cmp_lg_u32 s3, 7')
        A('s_cbranch_scc1 L_end')
        dump_stamps(16, [sreg(k) for k in range(11)])
        A('s_endpgm')
        A('L_dump0:')
        dump_stamps(0, [sreg(k) for k in range(11)])
    A('s_endpgm')
    A(f'''
    L_slowpub:
    buffer_store_dwordx4 v[4:7], v{vP1s}, s[40:43], 0 offen sc1
    s_branch L_pubdone
    ''')
    A('.section .rodata,"a"')
    A('.p2align 6')
    A(f'.amdhsa_kernel {NAME}_kernel')
    A('.amdhsa_next_free_vgpr 168')
    A('.amdhsa_next_free_sgpr 102')
    A('.amdhsa_accum_offset 168')
    A('.amdhsa_group_segment_fixed_size 0')
    A('.amdhsa_kernarg_size 96')
    A('.amdhsa_user_sgpr_count 2')
    A('.amdhsa_user_sgpr_kernarg_segment_ptr 1')
    A('.amdhsa_system_sgpr_workgroup_id_x 1')
    A('.end_amdhsa_kernel')
    return top + A.finalize()

if __name__ == '__main__':
    out = sys.argv[1] if len(sys.argv) > 1 else f'cdna_kernels/{NAME}.s'
    kw = eval('dict(%s)' % sys.argv[2]) if len(sys.argv) > 2 else {}
    open(out, 'w').write(gen(**kw))
    print('wrote', out)
```

```python
import sys, struct, math
from asmlib import Asm
NAME = 'parallel_sum__sliding_block_cached__glu_gated_reglu__decode'

def f32(x): return '0x%08x' % struct.unpack('<I', struct.pack('<f', x))[0]

AREA = 131072
TAB = AREA + 16384
STW = TAB
FACW = TAB + 128
HL = TAB + 512
QL = TAB + 1024
YL = TAB + 2048
MISC = AREA + 28672
FLQ = MISC
CNT = MISC + 4
CNT0 = MISC + 12
FLF = MISC + 16
CNTV = MISC + 32
THR = MISC + 36
XN = MISC + 256
LDS_TOTAL = 163840
EPOCH = 0
ST = 0x3C000
TK2 = 0x2000
TK = 0x3000
P2 = 0x1C0000
P1 = 0x40000
QP = 0xC0000
WS_END = 0x1E0000
STAMPS = 0x300000
SPIN = 400000
CEXP = f32(math.log2(math.e)/16)

class VM:
    def __init__(self, A): self.A = A; self.q = []
    def add(self, name, n): self.q.append((name, n))
    def wait(self, name, extra=''):
        idx = max(i for i, (nm, _) in enumerate(self.q) if nm == name)
        n = sum(c for _, c in self.q[idx+1:])
        self.q = self.q[idx+1:]
        self.A(f's_waitcnt vmcnt({n}){extra}')
    d = 0; nl = 0
    def upto(self, n):
        tot = sum(c for _, c in self.q)
        if tot > n: self.A(f's_waitcnt vmcnt({n})')
        if self.d and n < 50 and tot > max(n - self.d, 0):
            self.nl += 1
            self.A(f's_cbranch_vccz L_pc{self.nl}\ns_waitcnt vmcnt({max(n - self.d, 0)})\nL_pc{self.nl}:')

def gen(stamps=0, wnt='', snt=' nt', kvnt=' nt', forceslow=False, now=False, pad=0, padat=None, thr=2,
        hpre=3, psleep=32, xlast=0, xtries=12, sync=False, xs=('s3', 0), light=False, kfirst=True, k3=True, wlast=6, hs=None, wthr=4, fastmask=0, dthr=0, fh=(), fin='T', spec=False, fsleep=0, hl=(6, 12), early=False, satom=True, noxc=False, k0thr=5, dirty=0, wb=0, clean=0, p2pre=1, outf='', perm=0, gov=None, govh=('V2a', 'V2b', 'V3a'), govn=4, ilv=True, mpoll=True, nohelp=False, nodep=False, tlb=False, presl=32, pref=' sc1', pollf=' sc1', p1pre=2, sl=(0, 6, 10)):
    A = Asm()
    def sreg(k): return 68 + 2*k if k < 3 else 16 + 2*(k-3)
    def stamp(k):
        if stamps and (not light or k in sl): A(f's_memrealtime s[{sreg(k)}:{sreg(k)+1}]')
        if padat == f's{k}': A('s_memrealtime s[100:101]')
    def hstamp(k):
        if nohelp and nohelp - 1 == k: A('s_endpgm')
        if stamps and (not light or k in hl):
            A(f's_memrealtime s[100:101]\ns_waitcnt lgkmcnt(0)\nv_writelane_b32 v164, s100, {k}\nv_writelane_b32 v165, s101, {k}')
        if padat == f'h{k}': A('s_memrealtime s[100:101]\ns_waitcnt lgkmcnt(0)')
    def dopad(lab):
        A(f'''
        {lab}:
        s_memrealtime s[98:99]
        s_waitcnt lgkmcnt(0)
        s_sub_u32 s98, s98, s100
        s_cmp_lt_u32 s98, {pad}
        s_cbranch_scc1 {lab}
        ''')
    def dump_stamps(slot0, regs_):
        A('s_waitcnt vmcnt(0) lgkmcnt(0)')
        A('s_mov_b64 exec, 1')
        A('s_lshl_b32 s60, s2, 9')
        A(f's_add_u32 s60, s60, {STAMPS}')
        A('v_mov_b32 v1, s60')
        for k, r in enumerate(regs_):
            A(f'v_mov_b32 v2, s{r}')
            A(f'v_mov_b32 v3, s{r+1}')
            A(f'buffer_store_dwordx2 v[2:3], v1, s[40:43], 0 offen offset:{8*(slot0+k)}')
    WSN = 0x400000 if stamps else WS_END
    Z = (lambda n: 0) if now else (lambda n: n)
    hdr = open('cdna_kernels/%s.s.ref' % NAME).read().split('; Override launch geometry')[0]
    top = hdr + f'; @launch grid=(256,1,1) block=(576,1,1) lds={LDS_TOTAL}\n'
    A('.amdgcn_target "amdgcn-amd-amdhsa--gfx950"')
    A('.text')
    A(f'.globl {NAME}_kernel')
    A('.p2align 8')
    A(f'.type {NAME}_kernel,@function')
    A(f'{NAME}_kernel:')
    if sync:
        A('''
        s_memrealtime s[4:5]
        s_waitcnt lgkmcnt(0)
        s_add_u32 s6, s4, 4096+600
        s_and_b32 s6, s6, -4096
        s_load_dwordx2 s[8:9], s[0:1], 88
        s_lshl_b32 s7, s2, 3
        s_add_u32 s7, s7, 0x380000
        v_mov_b32 v2, s4
        v_mov_b32 v3, s6
        v_mov_b32 v1, s7
        s_waitcnt lgkmcnt(0)
        global_store_dwordx2 v1, v[2:3], s[8:9] sc1
        s_waitcnt vmcnt(0)
        L_sync:
        s_memrealtime s[4:5]
        s_waitcnt lgkmcnt(0)
        s_sub_u32 s4, s4, s6
        s_cmp_lt_i32 s4, 0
        s_cbranch_scc1 L_sync
        s_branch L_go
        .p2align 10
        L_go:
        ''')
    if perm == 1:
        A('s_cmpk_ge_u32 s2, 256\ns_cbranch_scc1 L_end\ns_lshr_b32 s3, s2, 3\ns_and_b32 s3, s3, 7\ns_xor_b32 s2, s2, s3')
    if perm == 2:
        A('s_and_b32 s3, s2, -2\ns_cmp_eq_u32 s3, 74\ns_cselect_b32 s3, 1, 0\ns_xor_b32 s2, s2, s3')
    if padat == 'he': A('s_memrealtime s[100:101]')
    stamp(0)
    vm = VM(A)
    vD = [4, 5, 6, 7]; vKA = [8, 9, 10, 11]; vVA = list(range(12, 20)); vTAG = 20
    KfA, KfB, KfC, Sx, Pk, Oa = 32, 64, 96, 128, 144, 152
    vCH, vR8 = 30, 31
    KS, VS = 's[8:11]', 's[12:15]'
    def issue(name, slot, halves=(0, 1)):
        srd = KS if name[0] == 'K' else VS
        i = int(name[1])
        for half in halves:
            first = (name == 'K0' and half == 0)
            hn = name + 'ab'[half]
            if gov and hn in govh:
                A(f'ds_read_b32 v1, v26 offset:{THR-MISC}\ns_waitcnt lgkmcnt(0)\nv_cmp_lt_u32 vcc, {govh.index(hn)}, v1')
            if not first:
                A(f's_xor_b32 m0, {"s74" if hs else "s59"}, {slot*8192 + half*4096}')
                A(f's_xor_b32 s60, s58, {i*524288 + half*4096}')
            for q in range(4):
                if q in (0, 2) and (hn in fh or (gov and hn in govh)):
                    A(f's_cbranch_vccz L_f{name}{half}{q}\ns_waitcnt vmcnt(1)\nL_f{name}{half}{q}:')
                A(f'buffer_load_dwordx4 v{vD[q]}, {srd}, {"s58" if first else "s60"} offen offset:{q*1024}{kvnt} lds')
            vm.add(name, 4)
    def ha(name, slot, t=None):
        vm.upto(thr if t is None else t); issue(name, slot, (0,))
    def hb(name, slot, t=None):
        vm.upto(thr if t is None else t); issue(name, slot, (1,))
    A(f'''
    s_load_dwordx16 s[16:31], s[0:1], 0
    s_load_dwordx8 s[32:39], s[0:1], 64
    v_readfirstlane_b32 s3, v0
    s_cmpk_ge_u32 s2, 256
    s_cbranch_scc1 L_end
    v_and_b32 v0, 63, v0                     ; lane
    s_lshr_b32 s3, s3, 6                     ; wave
    s_and_b32 s4, s2, 7                      ; hkv
    s_bfe_u32 s5, s2, 0x30003                ; j
    s_lshr_b32 s6, s2, 6                     ; b
    s_lshl3_add_u32 s56, s6, s4
    s_cmp_eq_u32 s3, 8
    s_cbranch_scc1 L_helper
    v_lshrrev_b32 v1, 4, v0
    v_and_b32 v1, 2, v1
    v_xor_b32 v1, v1, v0
    v_lshlrev_b32 v4, 4, v1
    v_xor_b32 v5, 64, v4
    v_xor_b32 v6, 0x80, v4
    v_xor_b32 v7, 64, v6
    s_lshl3_add_u32 s66, s5, s3              ; 8j + w
    s_lshl_b32 s57, s56, 23
    s_add_u32 s57, s57, {12288*512}
    s_lshl_b32 s59, s3, 14
    s_lshl_b32 s58, s66, 13
    {f's_bfe_u32 s62, {xs[0]}, {0x20000 + xs[1]}' if xs else ''}
    {'s_lshl_b32 s62, s62, 19' if xs else ''}
    {'s_or_b32 s58, s58, s62' if xs else ''}
    {f's_bfe_u32 s62, {hs[0]}, {0x10000 + hs[1]}' if hs else ''}
    {'s_lshl_b32 s62, s62, 12' if hs else ''}
    {'s_or_b32 s58, s58, s62' if hs else ''}
    {'s_or_b32 s74, s59, s62' if hs else ''}
    s_mov_b32 s10, 0x200000
    s_mov_b32 s11, 0x20000
    ''')
    saddr = f'''
    v_bfe_u32 v2, v0, 4, 2
    v_lshlrev_b32 v2, 1, v2
    v_and_b32 v3, 7, v0
    v_xor_b32 v2, v2, v3
    v_lshlrev_b32 v{vCH}, 4, v2
    v_lshrrev_b32 v{vR8}, 3, v0
    s_movk_i32 s61, 3584
    s_bfe_u32 s65, s2, 0x30004
    s_lshl3_add_u32 s65, s4, s65
    s_bfe_u32 s67, s2, 0x20005
    s_lshl2_add_u32 s67, s4, s67
    s_and_b32 s63, s5, 3                     ; K quarter
    s_and_b32 s64, s5, 1
    s_lshl_b32 s64, s64, 1
    s_cmp_lt_u32 s4, 7
    s_cselect_b32 s46, {Z(448*3584)}, 0
    s_cselect_b32 s67, s67, 0
    s_cmp_lt_u32 s6, 2
    s_cselect_b32 s46, {Z(448*8192)}, s46
    s_cselect_b32 s61, 0x2000, s61
    s_cselect_b32 s65, s65, s67
    s_cselect_b32 s63, s64, s63
    s_cselect_b32 s67, {112*8192}, 0
    s_cselect_b64 vcc, -1, 0
    s_mul_i32 s63, s63, 7
    s_add_u32 s63, s63, s3
    s_lshl_b32 s63, s63, 4
    s_mul_i32 s63, s63, s61
    s_lshl_b32 s65, s65, 7
    s_add_u32 s63, s63, s65
    s_add_u32 s67, s67, s63
    v_mad_u32_u24 v21, v{vR8}, s61, v{vCH}
    s_lshl_b32 s61, s61, 3
    s_lshl_b32 s62, s3, 11
    s_mov_b32 s47, s11
    s_max_u32 s7, s4, s5
    '''
    if not kfirst: A(saddr)
    A(f'''
    s_mov_b32 m0, {'s74' if hs else 's59'}
    {'s_memrealtime s[100:101]' if padat == 'sa' else ''}
    s_waitcnt lgkmcnt(0)
    {'s_memrealtime s[100:101]' if padat == 'sb' else ''}
    s_add_u32 s8, s18, s57
    s_addc_u32 s9, s19, 0
    ''')
    if kfirst:
        issue('K0', 0, (0, 1) if kfirst == 2 else (0,))
        A(saddr)
    A(f'''
    v_mov_b32 v28, 1
    s_cmp_eq_u32 s3, 7
    s_cbranch_scc1 L_ldx
    s_cmp_lg_u64 vcc, 0
    s_cselect_b64 s[44:45], s[22:23], s[28:29]
    s_cselect_b64 s[48:49], s[22:23], s[30:31]
    s_add_u32 m0, s62, {AREA}
    s_mov_b64 s[50:51], s[46:47]
    buffer_load_dwordx4 v21, s[44:47], s63 offen{snt} lds
    s_add_u32 m0, s62, {AREA+14336}
    s_add_u32 s63, s63, s61
    buffer_load_dwordx4 v21, s[48:51], s67 offen{snt} lds
    s_add_u32 m0, s62, {AREA+1024}
    s_add_u32 s67, s67, s61
    buffer_load_dwordx4 v21, s[44:47], s63 offen{snt} lds
    s_add_u32 m0, s62, {AREA+14336+1024}
    buffer_load_dwordx4 v21, s[48:51], s67 offen{snt} lds
    s_branch L_ldk
    L_ldx:
    v_lshlrev_b32 v21, 4, v0
    s_mov_b32 m0, {XN}
    s_mov_b64 s[44:45], s[16:17]
    s_movk_i32 s46, 3584
    buffer_load_dwordx4 v21, s[44:47], 0 offen lds
    buffer_load_dwordx4 v21, s[44:47], 0 offen offset:1024 lds
    buffer_load_dwordx4 v21, s[44:47], 0 offen offset:2048 lds
    s_mov_b32 exec_hi, 0
    buffer_load_dwordx4 v21, s[44:47], 0 offen offset:3072 lds
    s_mov_b32 exec_hi, -1
    L_ldk:
    ''')
    vm.add('small', 4)
    if not kfirst:
        A(f's_mov_b32 m0, {"s74" if hs else "s59"}')
        issue('K0', 0, (0,))
    stamp(1)
    A('s_branch L_stream')

    XR = 8
    XF = 32
    RA = 156
    WF = 64
    AC = 132
    PB = 64
    nstore = [0]
    def store2(ins):
        n = nstore[0]; nstore[0] += 1
        A(f's_cmp_eq_u32 s58, 0\ns_cbranch_scc1 L_ss{n}')
        for i in ins: A(i)
        A(f's_branch L_sd{n}\nL_ss{n}:')
        for i in ins: A(i + ' sc1')
        A(f'L_sd{n}:')
    def cntwait(off, lab, sl, n=8):
        A(f'''
        s_mov_b32 s63, {SPIN*8}
        {lab}:
        ds_read_b32 v9, v31 offset:{off-MISC}
        s_sub_u32 s63, s63, 1
        s_waitcnt lgkmcnt(0)
        s_cbranch_scc1 {lab}_done
        v_cmp_le_u32 vcc, {n}, v9
        s_cbranch_vccnz {lab}_done
        {f's_sleep {sl}' if sl else ''}
        s_branch {lab}
        {lab}_done:
        ''')
    A(f'''
    L_helper:
    s_setprio 3
    s_getreg_b32 s57, hwreg(HW_REG_XCC_ID, 0, 7)
    s_lshl_b32 s66, s4, 5
    s_lshr_b32 s61, s2, 3
    s_add_u32 s61, s61, s66
    s_add_u32 s57, s57, 1
    v_mov_b32 v9, s61
    v_mov_b32 v10, s57
    v_mov_b32 v31, {MISC}
    v_lshl_add_u32 v1, v0, 2, v31
    v_mov_b32 v2, 0
    ds_write_b32 v1, v2                      ; flags = 0
    s_mov_b64 exec, 1
    s_waitcnt lgkmcnt(0)
    {'' if noxc else 'global_store_byte v9, v10, s[36:37]      ; my XCD, for the workgroups that share my heads'}
    s_load_dword s62, s[38:39], {EPOCH}
    s_mov_b64 exec, -1
    ''')
    if tlb:
        A(f'''
        s_lshl_b32 s60, s56, 23
        s_add_u32 s60, s60, {12288*512}
        s_load_dword s76, s[20:21], s60          ; touch the pages used later: V window, wo, W_down, out
        s_add_u32 s60, s60, {(1<<21) - 64}
        s_load_dword s77, s[20:21], s60
        s_mul_i32 s60, s4, {512*896}
        s_load_dword s78, s[24:25], s60
        s_add_u32 s60, s60, {512*896 - 64}
        s_load_dword s79, s[24:25], s60
        s_load_dword s80, s[32:33], 0
        s_mov_b32 s60, {1792*896 - 64}
        s_load_dword s81, s[32:33], s60
        s_load_dword s82, s[34:35], 0
        ''')
    if stamps: A('v_mov_b32 v164, 0\nv_mov_b32 v165, 0\ns_memtime s[94:95]\ns_memrealtime s[96:97]')
    A(f'''
    s_mov_b64 s[40:41], s[38:39]
    s_mov_b32 s42, {WSN}
    s_mov_b32 s43, 0x20000
    s_mul_i32 s67, s56, 12288
    s_add_u32 s67, s67, {QP}
    s_mul_i32 s64, s6, 7
    s_add_u32 s64, s64, s5                   ; 7b + j
    s_lshl_b32 s7, s56, 9
    s_add_u32 s7, s7, {ST}
    ''')
    if hpre:
        A('v_lshlrev_b32 v8, 7, v0')
        if hpre in (2, 3):
            A(f'''
            s_cmp_lg_u32 s5, 7
            s_cbranch_scc1 L_nopre
            s_mov_b64 exec, 3
            buffer_load_dword v166, v8, s[40:43], s7 offen{pref}
            L_nopre:
            ''')
        A('s_mov_b64 exec, -1')
    XB = 128
    A(f'''
    v_lshrrev_b32 v1, 4, v0                  ; g
    v_and_b32 v2, 15, v0
    v_and_b32 v3, 3, v0
    v_mul_u32_u24 v3, 896, v3
    v_add_u32 v3, {XN}, v3                   ; row of batch l%4
    v_lshl_add_u32 v4, v1, 3, v3             ; + g*8
    v_and_b32 v5, 60, v0
    v_lshl_add_u32 v3, v5, 1, v3             ; + (l/4)*8
    s_and_b32 s60, s5, 3
    s_and_b32 s61, s5, 1
    s_lshl_b32 s65, s61, 11
    s_bfe_u32 s59, s2, 0x30004
    s_lshl_b32 s59, s59, 8
    s_add_u32 s65, s65, s59                  ;   + block * 256
    s_lshl_b32 s63, s60, 11
    s_bfe_u32 s59, s2, 0x20005
    s_lshl_b32 s59, s59, 9
    s_add_u32 s63, s63, s59                  ;   + block * 512
    s_add_u32 s63, s63, 4096
    s_lshl_b32 s61, s61, 1
    s_cmp_lt_u32 s6, 2
    s_cselect_b32 s60, s61, s60
    s_cselect_b32 s61, 224, 0
    s_cselect_b32 s65, s65, s63
    s_mul_i32 s60, s60, 224
    v_add_u32 v4, s60, v4
    v_add_u32 v5, s61, v4
    s_mul_i32 s60, s4, 12288
    s_add_u32 s65, s65, s60
    s_add_u32 s65, s65, {QP}
    v_lshrrev_b32 v7, 2, v0
    v_lshlrev_b32 v7, 7, v7
    v_bfe_u32 v6, v0, 3, 2
    v_lshl_add_u32 v7, v6, 5, v7
    v_and_b32 v6, 3, v0
    v_lshl_add_u32 v7, v6, 3, v7
    v_add_u32 v156, {AREA}, v7
    v_xor_b32 v157, 32, v156
    v_xor_b32 v158, 64, v156
    v_xor_b32 v159, 0x60, v156
    s_mov_b64 s[8:9], 0xffff
    s_lshl_b64 s[10:11], s[8:9], 16
    s_lshl_b64 s[12:13], s[8:9], 32
    v_mov_b32 v30, 1
    v_lshlrev_b32 v29, 3, v0                 ; lane*8
    v_lshlrev_b32 v7, 4, v0                  ; lane*16
    v_lshlrev_b32 v6, 2, v0                  ; lane*4
    s_min_u32 s60, s64, 27
    s_lshl_b32 s60, s60, 7
    v_lshl_add_u32 v162, v0, 1, s60
    v_add_u32 v163, {XN}, v162
    v_and_b32 v160, 7, v0
    v_lshlrev_b32 v160, 2, v160
    v_add_u32 v160, s66, v160
    s_mul_i32 s46, s57, 0x01010101
    {'v_mov_b32 v161, s46' if noxc else 'global_load_dword v161, v160, s[36:37] sc1'}
    s_barrier
    ''')
    hstamp(0)
    cntwait(CNT0, 'L_w0', 1)
    hstamp(1)
    def wreads(s_):
        for hs_ in range(7):
            for T in range(4):
                d = WF + 14*T + 2*hs_
                A(f'ds_read_b64_tr_b16 v[{d}:{d+1}], v{156+T} offset:{s_*14336 + hs_*2048}')
    for u in range(7):
        A(f'ds_read_b64 v[{XR+2*u}:{XR+2*u+1}], v3 offset:{128*u}')
    A('ds_read_u16 v163, v163                   ; residual x')
    wreads(0)
    A(f'''
    s_mul_i32 s62, s62, 1664525
    s_add_u32 s62, s62, 1013904223
    v_mov_b32 v28, s62
    s_movk_i32 s47, 0xff
    s_waitcnt lgkmcnt(15)
    ''')
    for u in range(14):
        A(f'v_lshlrev_b32 v{XF+2*u}, 16, v{XR+u}')
        A(f'v_and_b32 v{XF+2*u+1}, 0xffff0000, v{XR+u}')
    def allsum(r):
        A(f'''
        v_add_f32_dpp v{r}, v{r}, v{r} row_ror:4 row_mask:0xf bank_mask:0xf
        v_add_f32_dpp v{r}, v{r}, v{r} row_ror:8 row_mask:0xf bank_mask:0xf
        v_mov_b32 v23, v{r}
        v_permlane16_swap_b32 v{r}, v23
        v_add_f32 v{r}, v{r}, v23
        v_mov_b32 v23, v{r}
        v_permlane32_swap_b32 v{r}, v23
        v_add_f32 v{r}, v{r}, v23
        ''')
    A(f'v_pk_add_f32 v[22:23], v[{XF}:{XF+1}], v[{XF+2}:{XF+3}]')
    A(f'v_pk_add_f32 v[26:27], v[{XF+4}:{XF+5}], v[{XF+6}:{XF+7}]')
    for u in range(4, 14, 2):
        A(f'v_pk_add_f32 v[22:23], v[22:23], v[{XF+2*u}:{XF+2*u+1}]')
        A(f'v_pk_add_f32 v[26:27], v[26:27], v[{XF+2*u+2}:{XF+2*u+3}]')
    A('v_pk_add_f32 v[22:23], v[22:23], v[26:27]')
    A('v_add_f32 v22, v22, v23')
    allsum(22)
    A(f'''
    v_mul_f32 v22, {f32(1/448)}, v22           ; mean
    v_cvt_pk_bf16_f32 v24, v22, v22
    v_and_b32 v24, 0xffff0000, v24           ; bf16(mean)
    v_sub_f32 v22, v22, v24
    ''')
    for u in range(14):
        A(f'v_pk_add_f32 v[{XF+2*u}:{XF+2*u+1}], v[{XF+2*u}:{XF+2*u+1}], v[24:25] op_sel_hi:[1,0] neg_lo:[0,1] neg_hi:[0,1]')
    A(f'v_pk_mul_f32 v[26:27], v[{XF}:{XF+1}], v[{XF}:{XF+1}]')
    A(f'v_pk_mul_f32 v[24:25], v[{XF+2}:{XF+3}], v[{XF+2}:{XF+3}]')
    for u in range(2, 14, 2):
        A(f'v_pk_fma_f32 v[26:27], v[{XF+2*u}:{XF+2*u+1}], v[{XF+2*u}:{XF+2*u+1}], v[26:27]')
        A(f'v_pk_fma_f32 v[24:25], v[{XF+2*u+2}:{XF+2*u+3}], v[{XF+2*u+2}:{XF+2*u+3}], v[24:25]')
    A('v_pk_add_f32 v[26:27], v[26:27], v[24:25]')
    A('v_add_f32 v26, v26, v27')
    for u in range(14):
        A(f'v_cvt_pk_bf16_f32 v{XR+u}, v{XF+2*u}, v{XF+2*u+1}')
    allsum(26)
    A(f'''
    v_mul_f32 v26, {f32(1/448)}, v26
    v_fma_f32 v26, -v22, v22, v26            ; var
    v_max_f32 v26, 0, v26
    v_cvt_pk_bf16_f32 v26, v26, v26
    v_and_b32 v26, 0xffff0000, v26           ; bf16(var)
    v_add_f32 v26, {f32(1e-5)}, v26
    v_cvt_pk_bf16_f32 v26, v26, v26
    v_and_b32 v26, 0xffff0000, v26
    v_sqrt_f32 v26, v26
    v_cvt_pk_bf16_f32 v26, v26, v26
    v_and_b32 v26, 0xffff0000, v26
    v_rcp_f32 v26, v26
    ''')
    for u in range(14):
        A(f'v_lshlrev_b32 v{XF+2*u}, 16, v{XR+u}')
        A(f'v_and_b32 v{XF+2*u+1}, 0xffff0000, v{XR+u}')
    for u in range(14):
        A(f'v_pk_mul_f32 v[{XF+2*u}:{XF+2*u+1}], v[{XF+2*u}:{XF+2*u+1}], v[26:27] op_sel_hi:[1,0]')
    for u in range(14):
        A(f'v_cvt_pk_bf16_f32 v{XR+u}, v{XF+2*u}, v{XF+2*u+1}')
    for u in range(7):
        A(f'ds_write_b64 v3, v[{XR+2*u}:{XR+2*u+1}] offset:{128*u}')
    for s_ in range(2):
        for ks in range(3):
            A(f'ds_read2_b64 v[{XB+14*s_+4*ks}:{XB+14*s_+4*ks+3}], v{4+s_} offset0:{8*ks} offset1:{8*ks+4}')
        A(f'ds_read_b64 v[{XB+14*s_+12}:{XB+14*s_+13}], v{4+s_} offset:192')
    def mm(s_):
        for ks in range(4):
            for T in range(4):
                acc = 32 + 16*s_ + 4*T
                xa = XB + 14*s_ + 4*ks; bb = WF + 14*T + 4*ks
                c = '0' if ks == 0 else f'v[{acc}:{acc+3}]'
                if ks < 3: A(f'v_mfma_f32_16x16x32_bf16 v[{acc}:{acc+3}], v[{xa}:{xa+3}], v[{bb}:{bb+3}], {c}')
                else: A(f'v_mfma_f32_16x16x16_bf16 v[{acc}:{acc+3}], v[{xa}:{xa+1}], v[{bb}:{bb+1}], {c}')
    hstamp(2)
    A('s_waitcnt lgkmcnt(0)')
    mm(0)
    wreads(1)
    A(f'''
    s_mov_b32 s58, {0 if forceslow else 1}
    s_movk_i32 s63, {xtries}
    L_xc:
    s_waitcnt vmcnt(0)
    v_cmp_ne_u32 vcc, s46, v161
    s_cbranch_vccz L_xc_done
    global_load_dword v161, v160, s[36:37] sc1
    s_sub_u32 s63, s63, 1
    s_cbranch_scc0 L_xc
    s_mov_b32 s58, 0
    L_xc_done:
    s_waitcnt lgkmcnt(0)
    ''')
    mm(1)
    A(f'''
    s_add_u32 s60, s65, {8*12288}
    s_add_u32 s61, s65, {16*12288}
    s_add_u32 s63, s65, {24*12288}
    v_lshlrev_b32 v163, 16, v163
    ''')
    for s_ in range(2):
        a_ = 32 + 16*s_
        for r in range(4):
            A(f'v_cndmask_b32 v{a_+12+r}, v{a_+12+r}, v{a_+8+r}, s[12:13]')
        for r in range(4):
            A(f'v_cndmask_b32 v{a_+12+r}, v{a_+12+r}, v{a_+4+r}, s[10:11]')
        for r in range(4):
            A(f'v_cndmask_b32 v{8+2*r+s_}, v{a_+12+r}, v{a_+r}, s[8:9]')
    so4 = ('s65', 's60', 's61', 's63')
    A('s_cmp_lt_u32 s6, 2')
    A('s_cbranch_scc1 L_pubq')
    for r in range(8):
        A(f'v_bfi_b32 v{8+r}, s47, v28, v{8+r}')
    store2([f'buffer_store_dwordx2 v[{8+2*r}:{9+2*r}], v29, s[40:43], {so4[r]} offen' for r in range(4)])
    A('s_branch L_pubd')
    A('L_pubq:')
    for r in range(4):
        A(f'v_add_f32 v{8+2*r}, v{8+2*r}, v{9+2*r}')
    for r in range(4):
        A(f'v_bfi_b32 v{8+2*r}, s47, v28, v{8+2*r}')
    store2([f'buffer_store_dword v{8+2*r}, v6, s[40:43], {so4[r]} offen' for r in range(4)])
    A('L_pubd:')
    hstamp(3)
    def gather(lab, n, soffs):
        A(f's_mov_b32 s63, {SPIN}\n{lab}:\ns_sleep {psleep}')
        for k in range(n):
            A(f'buffer_load_dwordx4 v[{32+4*k}:{35+4*k}], v7, s[40:43], {soffs[k>>2]} offen offset:{(k&3)*1024}{pollf}')
        A(f'''
        s_sub_u32 s63, s63, 1
        s_waitcnt vmcnt(0)
        s_cbranch_scc1 {lab}_done
        v_xor_b32 v24, v32, v28
        v_xor_b32 v25, v33, v28
        ''')
        for r in range(34, 32 + 4*n, 2):
            A(f'v_bitop3_b32 v24, v{r}, v28, v24 bitop3:0xbe')
            A(f'v_bitop3_b32 v25, v{r+1}, v28, v25 bitop3:0xbe')
        A(f'''
        v_or_b32 v24, v24, v25
        v_and_b32 v24, s47, v24
        v_cmp_ne_u32 vcc, 0, v24
        s_cbranch_vccnz {lab}
        {lab}_done:
        ''')
    gather('L_gq', 4, ['s67'])
    A(f'''
    v_pk_add_f32 v[32:33], v[32:33], v[40:41]
    v_pk_add_f32 v[34:35], v[34:35], v[42:43]
    v_pk_add_f32 v[36:37], v[36:37], v[44:45]
    v_pk_add_f32 v[38:39], v[38:39], v[46:47]
    v_add_u32 v24, {QL}, v29
    v_cvt_pk_bf16_f32 v8, v32, v33
    v_cvt_pk_bf16_f32 v9, v34, v35
    v_cvt_pk_bf16_f32 v10, v36, v37
    v_cvt_pk_bf16_f32 v11, v38, v39
    ds_write_b64 v24, v[8:9]
    ds_write_b64 v24, v[10:11] offset:512
    ds_write_b32 v31, v30 offset:{FLQ-MISC}
    v_mov_b32 v27, v28
    ''')
    hstamp(6)
    A('s_add_u32 s60, s67, 4096\ns_add_u32 s61, s67, 8192')
    gather('L_gh', 8, ['s60', 's61'])
    for k in range(4):
        A(f'v_pk_add_f32 v[{32+2*k}:{33+2*k}], v[{32+2*k}:{33+2*k}], v[{40+2*k}:{41+2*k}]')
        A(f'v_pk_add_f32 v[{48+2*k}:{49+2*k}], v[{48+2*k}:{49+2*k}], v[{56+2*k}:{57+2*k}]')
    for k in range(4):
        A(f'v_pk_add_f32 v[{32+2*k}:{33+2*k}], v[{32+2*k}:{33+2*k}], v[{48+2*k}:{49+2*k}]')
    for k in range(4):
        A(f'v_cvt_pk_bf16_f32 v{33+2*k}, v{32+2*k}, v{33+2*k}')
        A(f'v_lshlrev_b32 v{32+2*k}, 16, v{33+2*k}')
        A(f'v_and_b32 v{33+2*k}, 0xffff0000, v{33+2*k}')
        A(f'v_max_f32 v{32+2*k}, 0, v{32+2*k}')
        A(f'v_mul_f32 v{32+2*k}, v{32+2*k}, v{33+2*k}')
    A(f'''
    v_cvt_pk_bf16_f32 v8, v32, v34
    v_cvt_pk_bf16_f32 v9, v36, v38
    v_add_u32 v24, {HL}, v6
    ds_write2st64_b32 v24, v8, v9 offset0:0 offset1:1
    ''')
    hstamp(5)
    if gov:
        A(f'''
        s_lshr_b32 s60, s2, 3
        s_lshl_b32 s60, s60, 7
        s_add_u32 s60, s60, {TK2}
        s_add_u32 s32, s38, s60
        s_addc_u32 s33, s39, 0
        v_mov_b32 v56, s60
        v_not_b32 v57, v28
        s_mov_b64 exec, 1
        buffer_store_byte v57, v56, s[40:43], s4 offen sc1
        s_mov_b64 exec, -1
        s_lshl_b32 s60, s4, 3
        s_lshl_b64 s[30:31], 0xff, s60
        ''')
    if fin != 'D':
        A(f'''
        s_cmp_eq_u32 s5, 7
        s_cbranch_scc1 L_notk
        s_lshl_b32 s60, s64, 7
        s_add_u32 s60, s60, {TK}
        v_mov_b32 v56, s60
        v_not_b32 v57, v28
        s_mov_b64 exec, 1
        buffer_store_byte v57, v56, s[40:43], s4 offen sc1
        s_mov_b64 exec, -1
        L_notk:
        ''')
    if gov: A('s_waitcnt vmcnt(0)')
    cntwait(CNT, 'L_wc', 4, govn if gov else 8)
    if gov:
        tbl = sum(n << (4*(k+1)) for k, n in enumerate(gov))
        A(f'''
        s_atomic_xor_x2 s[30:31], s[32:33], 0 glc
        s_and_b32 s60, s62, 0xff
        s_mul_i32 s26, s60, 0x01010101
        s_mov_b32 s27, s26
        s_mov_b32 s28, {tbl & 0xffffffff}
        s_mov_b32 s29, {tbl >> 32}
        s_waitcnt lgkmcnt(0)
        s_xor_b64 s[30:31], s[30:31], s[26:27]
        s_bcnt1_i32_b64 s60, s[30:31]
        s_lshr_b32 s60, s60, 3
        s_lshl_b32 s60, s60, 2
        s_lshr_b64 s[28:29], s[28:29], s60
        s_and_b32 s60, s28, 15
        v_mov_b32 v9, s60
        ds_write_b32 v31, v9 offset:{THR-MISC}
        ''')
        cntwait(CNT, 'L_wc2', 4)
    hstamp(7)
    A(f'''
    ; workgroup stats from the 8 waves (lane = h*8+w)
    v_lshlrev_b32 v8, 3, v2
    v_add_u32 v8, {STW}, v8
    ds_read_b64 v[4:5], v8
    s_lshl4_add_u32 s61, s5, s7
    v_mov_b32 v25, v28
    s_waitcnt lgkmcnt(0)
    v_max_f32_dpp v24, v4, v4 quad_perm:[1,0,3,2] row_mask:0xf bank_mask:0xf
    v_max_f32_dpp v24, v24, v24 quad_perm:[2,3,0,1] row_mask:0xf bank_mask:0xf
    v_max_f32_dpp v24, v24, v24 row_half_mirror row_mask:0xf bank_mask:0xf
    v_sub_f32 v26, v4, v24
    v_mul_f32 v26, {CEXP}, v26
    v_exp_f32 v26, v26
    v_mul_f32 v26, v26, v5
    v_add_f32_dpp v26, v26, v26 quad_perm:[1,0,3,2] row_mask:0xf bank_mask:0xf
    v_add_f32_dpp v26, v26, v26 quad_perm:[2,3,0,1] row_mask:0xf bank_mask:0xf
    v_add_f32_dpp v26, v26, v26 row_half_mirror row_mask:0xf bank_mask:0xf
    s_mov_b64 exec, 0x101
    ''')
    store2([f'buffer_store_dwordx4 v[24:27], v7, s[40:43], s61 offen'])
    A(f'''
    s_mov_b64 exec, 0xffff
    s_mov_b32 s63, {SPIN}
    L_polls:
    s_sleep {psleep}
    buffer_load_dwordx4 v[16:19], v7, s[40:43], s7 offen{pollf}
    s_sub_u32 s63, s63, 1
    s_waitcnt vmcnt(0)
    s_cbranch_scc1 L_polls_done
    v_min3_u32 v10, v17, v19, v28
    v_max3_u32 v11, v17, v19, v28
    v_cmp_ne_u32 vcc, v10, v11
    s_cbranch_vccnz L_polls
    L_polls_done:
    ''')
    hstamp(8)
    A(f'''
    v_max_f32_dpp v10, v16, v16 quad_perm:[1,0,3,2] row_mask:0xf bank_mask:0xf
    v_max_f32_dpp v10, v10, v10 quad_perm:[2,3,0,1] row_mask:0xf bank_mask:0xf
    v_max_f32_dpp v10, v10, v10 row_half_mirror row_mask:0xf bank_mask:0xf
    v_sub_f32 v11, v16, v10
    v_sub_f32 v10, v4, v10
    v_mul_f32 v11, {CEXP}, v11
    v_mul_f32 v10, {CEXP}, v10
    v_exp_f32 v11, v11
    v_exp_f32 v10, v10
    v_mul_f32 v11, v11, v18
    v_add_f32_dpp v11, v11, v11 quad_perm:[1,0,3,2] row_mask:0xf bank_mask:0xf
    v_add_f32_dpp v11, v11, v11 quad_perm:[2,3,0,1] row_mask:0xf bank_mask:0xf
    v_add_f32_dpp v11, v11, v11 row_half_mirror row_mask:0xf bank_mask:0xf
    v_rcp_f32 v11, v11
    v_mul_f32 v10, v10, v11                  ; factor for (wave = lane&7, head = lane>>3)
    v_and_b32 v9, 56, v29
    v_lshrrev_b32 v8, 1, v0
    v_and_b32 v8, 4, v8
    v_add3_u32 v9, v9, v8, v31
    v_subrev_u32 v9, {MISC-FACW}, v9
    ds_write_b32 v9, v10
    s_mov_b64 exec, -1
    v_mov_b32 v24, 1
    v_mov_b32 v25, s58
    v_mov_b32 v26, v28
    ds_write_b128 v31, v[24:27] offset:{FLF-MISC}
    s_cmp_eq_u32 s5, 7
    s_waitcnt lgkmcnt(0)
    {'' if early else 's_cbranch_scc1 ' + ('L_end' if pad else 'L_hdone')}
    ''')
    if dirty:
        A(f's_lshl_b32 s60, s2, 14\ns_add_u32 s60, s60, 0x400000\ns_mov_b32 s42, 0x1000000')
        for k in range(dirty):
            A(f'buffer_store_dwordx4 v[24:27], v7, s[40:43], s60 offen\ns_add_u32 s60, s60, 1024')
    if wb:
        A(f's_cmp_ge_u32 s2, {8*wb}\ns_cbranch_scc1 L_nowb\nbuffer_wbl2 sc1\ns_waitcnt vmcnt(0)\nL_nowb:')
    A(f'''
    v_mov_b32 v4, v162
    v_mov_b32 v5, v163
    s_mov_b64 s[52:53], s[34:35]
    s_movk_i32 s54, 3584
    s_mov_b32 s55, 0x20000
    s_lshl_b32 s60, s64, 12
    s_add_u32 s60, s60, {P2}
    v_add_u32 v6, s60, v29
    v_lshlrev_b32 v7, 2, v0
    v_add_u32 v7, {YL}, v7
    ''')
    for i in range(8):
        A(f's_add_u32 s{18+i}, s4, {i}')
        A(f's_and_b32 s{18+i}, s{18+i}, 7')
        A(f's_lshl_b32 s{18+i}, s{18+i}, 9')
    if fin == 'D':
        A(f'''
    s_waitcnt lgkmcnt(0)
    s_barrier                               ; #4
    ''')
        hstamp(9)
        A('s_call_b64 s[14:15], L_others')
        hstamp(10)
        if early:
            A(f'''
            s_waitcnt vmcnt(0) lgkmcnt(0)
            {'' if satom else 'v_readfirstlane_b32 s30, v58'}
            {'' if satom else 'v_readfirstlane_b32 s31, v59'}
            s_xor_b64 s[30:31], s[30:31], s[26:27]
            s_andn2_b64 s[30:31], s[30:31], s[28:29]
            s_cbranch_scc1 L_hdone
            ''')
            if early == 2:
                A(f'''
                s_mov_b64 exec, 0xff
                L_trig2:
                buffer_load_dwordx2 v[60:61], v62, s[40:43], 0 offen sc1
                s_sub_u32 s63, s63, 1
                s_waitcnt vmcnt(0)
                s_cbranch_scc1 L_trig2_done
                v_cmp_ne_u32 vcc, v61, v28
                s_cbranch_vccnz L_trig2
                L_trig2_done:
                s_mov_b64 exec, -1
                ''')
            for i in range(1, 8):
                A(f'buffer_load_dwordx2 v[{32+2*i}:{33+2*i}], v6, s[40:43], s{18+i} offen sc1')
        A(f'''
    s_barrier                               ; #5
    ds_read2st64_b32 v[48:49], v7 offset0:0 offset1:1
    ds_read2st64_b32 v[50:51], v7 offset0:2 offset1:3
    ds_read2st64_b32 v[52:53], v7 offset0:4 offset1:5
    ds_read2st64_b32 v[54:55], v7 offset0:6 offset1:7
    s_waitcnt lgkmcnt(2)
    v_add_f32 v48, v48, v49
    v_add_f32 v50, v50, v51
    s_waitcnt lgkmcnt(0)
    v_add_f32 v52, v52, v53
    v_add_f32 v54, v54, v55
    v_add_f32 v48, v48, v50
    v_add_f32 v52, v52, v54
    v_add_f32 v26, v48, v52
    s_cbranch_vccnz L_late
    ''')
    else:
        A(f'''
    s_lshl_b32 s60, s56, 14
    s_add_u32 s60, s60, {P1 + 16384 - 128}
    v_lshl_add_u32 v57, v0, 4, s60           ; last line of the group's O hand-off (8 producers x 16 B)
    s_and_b32 s60, s62, 0xff
    s_mul_i32 s26, s60, 0x01010101
    s_mov_b32 s27, s26
    s_lshl_b32 s60, s4, 3
    s_lshl_b64 s[28:29], 0xff, s60
    {'buffer_load_dwordx2 v[60:61], v6, s[40:43], s18 offen' if p2pre else ''}
    {'buffer_load_ushort v63, v4, s[52:55], 0 offen' if p2pre == 2 else ''}
    s_waitcnt lgkmcnt(0)
    v_mov_b32 v58, s28
    v_mov_b32 v59, s29
    v_mov_b32 v62, v57
    s_mov_b64 s[30:31], s[28:29]
    s_lshl_b32 s60, s64, 7
    s_add_u32 s60, s60, {TK}
    s_add_u32 s32, s38, s60
    s_addc_u32 s33, s39, 0
        ''')
        if early:
            A(f'''
            s_add_u32 s60, s7, 256
            v_lshl_add_u32 v57, v0, 2, s60
            s_lshl_b32 s61, s5, 2
            ''')
            cntwait(CNTV, 'L_wv', 1)
            A('s_mov_b64 exec, 1')
            store2(['buffer_store_dword v28, v57, s[40:43], s61 offen'])
            A(f'''
            s_cmp_eq_u32 s5, 7
            s_cbranch_scc1 {'L_end' if pad else 'L_hdone'}
            ''')
        A(f'''
    s_mov_b32 s63, {SPIN}
    s_barrier                               ; #4
        ''')
        hstamp(9)
        A(f'''
    s_mov_b64 exec, 0xff
    L_trig:
    {'buffer_load_dword v61, v57, s[40:43], 0 offen sc1' if early else 'buffer_load_dwordx2 v[60:61], v57, s[40:43], 0 offen sc1'}
    s_sub_u32 s63, s63, 1
    s_waitcnt vmcnt(0)
    s_cbranch_scc1 L_trig_done
    v_cmp_ne_u32 vcc, v61, v28
    s_cbranch_vccnz L_trig
    L_trig_done:
        ''')
        if satom:
            A('s_atomic_xor_x2 s[30:31], s[32:33], 0 glc\ns_mov_b64 exec, -1')
        else:
            A('''
            s_mov_b64 exec, 1
            buffer_atomic_xor_x2 v[58:59], v56, s[40:43], 0 offen sc0 sc1
            s_mov_b64 exec, -1
            ''')
        if spec:
            for i in range(1, 8):
                A(f'buffer_load_dwordx2 v[{32+2*i}:{33+2*i}], v6, s[40:43], s{18+i} offen sc1')
        hstamp(10)
        if early:
            A(f'''
            s_waitcnt vmcnt(0) lgkmcnt(0)
            {'' if satom else 'v_readfirstlane_b32 s30, v58'}
            {'' if satom else 'v_readfirstlane_b32 s31, v59'}
            s_xor_b64 s[30:31], s[30:31], s[26:27]
            s_andn2_b64 s[30:31], s[30:31], s[28:29]
            s_cbranch_scc1 L_hdone
            ''')
            if early == 2:
                A(f'''
                s_mov_b64 exec, 0xff
                L_trig2:
                buffer_load_dwordx2 v[60:61], v62, s[40:43], 0 offen sc1
                s_sub_u32 s63, s63, 1
                s_waitcnt vmcnt(0)
                s_cbranch_scc1 L_trig2_done
                v_cmp_ne_u32 vcc, v61, v28
                s_cbranch_vccnz L_trig2
                L_trig2_done:
                s_mov_b64 exec, -1
                ''')
            for i in range(1, 8):
                A(f'buffer_load_dwordx2 v[{32+2*i}:{33+2*i}], v6, s[40:43], s{18+i} offen sc1')
        A(f'''
    s_barrier                               ; #5
    ds_read2st64_b32 v[48:49], v7 offset0:0 offset1:1
    ds_read2st64_b32 v[50:51], v7 offset0:2 offset1:3
    ds_read2st64_b32 v[52:53], v7 offset0:4 offset1:5
    ds_read2st64_b32 v[54:55], v7 offset0:6 offset1:7
    s_waitcnt lgkmcnt(2)
    v_add_f32 v48, v48, v49
    v_add_f32 v50, v50, v51
    s_waitcnt lgkmcnt(0)
    v_add_f32 v52, v52, v53
    v_add_f32 v54, v54, v55
    v_add_f32 v48, v48, v50
    v_add_f32 v52, v52, v54
    v_add_f32 v26, v48, v52
        ''')
        if not early:
            A(f'''
    {'' if satom else f's_waitcnt vmcnt({7 if spec else 0})'}
    {'' if satom else 'v_readfirstlane_b32 s30, v58'}
    {'' if satom else 'v_readfirstlane_b32 s31, v59'}
    s_xor_b64 s[30:31], s[30:31], s[26:27]
    s_andn2_b64 s[30:31], s[30:31], s[28:29]
    s_cbranch_scc1 L_hdone
        ''')
        hstamp(13)
        A(f'''
    s_mov_b32 s63, {SPIN}
    {'s_branch L_fchk' if (spec or early) else ''}
    L_fpoll:
        ''')
        for i in range(1, 8):
            A(f'buffer_load_dwordx2 v[{32+2*i}:{33+2*i}], v6, s[40:43], s{18+i} offen sc1')
        A(f'''
    L_fchk:
    s_sub_u32 s63, s63, 1
    s_waitcnt vmcnt(0)
    s_cbranch_scc1 L_fsum
    v_min3_u32 v12, v35, v37, v39
    v_max3_u32 v13, v35, v37, v39
    v_min3_u32 v12, v12, v41, v43
    v_max3_u32 v13, v13, v41, v43
    v_min3_u32 v12, v12, v45, v47
    v_max3_u32 v13, v13, v45, v47
    v_min_u32 v12, v12, v28
    v_max_u32 v13, v13, v28
    v_cmp_ne_u32 vcc, v12, v13
    s_cbranch_vccnz L_fpoll
    L_fsum:
    v_add_f32 v34, v34, v36
    v_add_f32 v38, v38, v40
    v_add_f32 v42, v42, v44
    v_add_f32 v46, v46, v5
    v_add_f32 v34, v34, v38
    v_add_f32 v42, v42, v46
    v_add_f32 v34, v34, v42
        ''')
    A(f'''
    L_finish:
    v_add_f32 v34, v34, v26
    v_cvt_pk_bf16_f32 v34, v34, v34
    buffer_store_short v34, v4, s[52:55], 0 offen{outf}
    ''')
    hstamp(11)
    if stamps and 14 in hl:
        A(f's_sub_u32 s60, {SPIN}, s63\ns_mul_i32 s60, s60, 100\ns_add_u32 s60, s68, s60\ns_addc_u32 s61, s69, 0\nv_writelane_b32 v164, s60, 14\nv_writelane_b32 v165, s61, 14')
    A(f'''
    s_cmp_lg_u32 s64, 21
    s_cbranch_scc1 L_hdone
    s_mov_b64 exec, 1
    v_mov_b32 v1, {EPOCH}
    buffer_store_dword v28, v1, s[40:43], 0 offen
    L_hdone:
    ''')
    if padat == 'hz': A('s_waitcnt vmcnt(0)\ns_memrealtime s[100:101]\ns_waitcnt lgkmcnt(0)')
    if pad and padat[0] == 'h': dopad('L_padh')
    if stamps:
        A('s_waitcnt vmcnt(0)')
        hstamp(12)
        A('''
        s_memtime s[92:93]
        s_waitcnt lgkmcnt(0)
        s_sub_u32 s92, s92, s94
        s_sub_u32 s93, s100, s96
        v_cvt_f32_u32 v1, s92
        v_cvt_f32_u32 v2, s93
        v_rcp_f32 v2, v2
        v_mul_f32 v1, v1, v2
        v_mul_f32 v1, 0x42c80000, v1
        v_cvt_u32_f32 v1, v1
        v_readfirstlane_b32 s92, v1
        s_add_u32 s92, s92, s68
        s_addc_u32 s93, s69, 0
        v_writelane_b32 v164, s92, 15
        v_writelane_b32 v165, s93, 15
        ''')
        A(f'''
        s_mov_b64 exec, 0xffff
        s_lshl_b32 s60, s2, 9
        s_add_u32 s60, s60, {STAMPS+256}
        buffer_store_dwordx2 v[164:165], v29, s[40:43], s60 offen
        ''')
    A(f'''
    L_end:
    s_endpgm
    ''')
    if fin != 'D':
        pass
    else:
        A(f'''
    L_late:
    buffer_store_dwordx2 v[26:27], v6, s[40:43], s18 offen sc1
    s_call_b64 s[14:15], L_others
    s_cbranch_vccz L_finish
    s_call_b64 s[14:15], L_others
    s_cbranch_vccz L_finish
    s_branch L_hdone
    L_others:
    ''')
        for i in range(1, 8):
            A(f'buffer_load_dwordx2 v[{32+2*i}:{33+2*i}], v6, s[40:43], s{18+i} offen sc1')
        A(f'''
    s_waitcnt vmcnt(0)
    v_min3_u32 v12, v35, v37, v39
    v_max3_u32 v13, v35, v37, v39
    v_min3_u32 v12, v12, v41, v43
    v_max3_u32 v13, v13, v41, v43
    v_min3_u32 v12, v12, v45, v47
    v_max3_u32 v13, v13, v45, v47
    v_min_u32 v12, v12, v28
    v_max_u32 v13, v13, v28
    v_cmp_ne_u32 vcc, v12, v13
    v_add_f32 v34, v34, v36
    v_add_f32 v38, v38, v40
    v_add_f32 v42, v42, v44
    v_add_f32 v46, v46, v5
    v_add_f32 v34, v34, v38
    v_add_f32 v42, v42, v46
    v_add_f32 v34, v34, v42
    s_setpc_b64 s[14:15]
    ''')

    A(f'''
    L_stream:
    s_barrier
    s_add_u32 s12, s20, s57
    s_addc_u32 s13, s21, 0
    s_mov_b64 s[14:15], s[10:11]
    s_mov_b64 s[40:41], s[38:39]
    s_mov_b32 s42, {WSN}
    s_mov_b32 s43, s11
    v_mov_b32 v26, {MISC}
    ''')
    if fastmask:
        A(f'''
        s_getreg_b32 s60, hwreg(HW_REG_XCC_ID, 0, 3)
        s_bitcmp1_b32 {fastmask}, s60
        s_cselect_b64 vcc, -1, 0
        ''')
        vm.d = dthr
    if kfirst == 1: hb('K0', 0, k0thr)
    if kfirst == 2: ha('K1', 1, k0thr)
    A(f'''
    s_mov_b64 s[52:53], s[24:25]
    s_mov_b64 s[48:49], s[32:33]
    s_mov_b32 s51, s11
    s_mov_b32 s55, s11
    s_cmp_lt_u32 s5, 7
    s_cselect_b32 s54, {Z(4096*896)}, 0
    s_cselect_b32 s61, s5, 0
    s_lshl_b32 s61, s61, 7
    s_lshl4_add_u32 s64, s4, s3
    s_mul_i32 s64, s64, {32*896}
    s_add_u32 s64, s64, s61
    s_lshl3_add_u32 s65, s4, s3
    s_mul_i32 s65, s65, {32*896}
    s_add_u32 s65, s65, s61
    s_cmp_lt_u32 s7, 7
    s_cselect_b32 s50, {Z(1792*896)}, 0
    s_cselect_b32 s65, s65, 0
    v_and_b32 v1, 15, v0                     ; row
    v_lshrrev_b32 v2, 4, v0                  ; g
    v_and_b32 v3, 7, v0
    v_lshlrev_b32 v3, 1, v3
    v_xor_b32 v3, v3, v2
    v_lshlrev_b32 v3, 4, v3
    v_lshl_add_u32 v3, v1, 9, v3
    v_add_u32 v8, s59, v3
    v_xor_b32 v9, 64, v8
    v_xor_b32 v10, 0x80, v8
    v_xor_b32 v11, 0xc0, v8
    ''')
    def readK(dst, slot):
        for t in range(8):
            A(f'ds_read_b128 v[{dst+4*t}:{dst+4*t+3}], v{vKA[t&3]} offset:{slot*8192 + (t>>2)*256}')
    def readQ(dst, ts):
        for n, t in enumerate(ts):
            A(f'ds_read_b128 v[{dst+4*n}:{dst+4*n+3}], v24 offset:{t*64}')
    def qk(tile, src, qf, ts=range(8)):
        for n, t in enumerate(ts):
            c = '0' if t == 0 else f'v[{Sx+4*tile}:{Sx+4*tile+3}]'
            A(f'v_mfma_f32_16x16x32_bf16 v[{Sx+4*tile}:{Sx+4*tile+3}], v[{src+4*t}:{src+4*t+3}], v[{qf+4*n}:{qf+4*n+3}], {c}')
    def flagwait(off, lab):
        if nohelp:
            A(f'{lab}_done:')
            return
        A(f'''
        s_mov_b32 s61, {SPIN*8}
        {lab}:
        ds_read_b32 v1, v26 offset:{off-MISC}
        s_sub_u32 s61, s61, 1
        s_waitcnt lgkmcnt(0)
        s_cbranch_scc1 {lab}_done
        v_readfirstlane_b32 s67, v1
        s_cmp_lg_u32 s67, 0
        s_cbranch_scc1 {lab}_done
        s_sleep 1
        s_branch {lab}
        {lab}_done:
        ''')
    vm.wait('small')
    A(f'''
    s_mov_b64 exec, 1
    ds_add_u32 v26, v28 offset:{CNT0-MISC}
    s_mov_b64 exec, -1
    ''')
    stamp(2)
    if not (kfirst or xlast == 2): hb('K0', 0)
    if kfirst != 2: ha('K1', 1)
    if kfirst != 2: vm.wait('K0')
    readK(KfA, 0)
    A(f'''
    v_lshrrev_b32 v21, 2, v0                 ; row = l/4
    v_and_b32 v22, 7, v21
    v_lshlrev_b32 v22, 5, v22
    v_lshl_add_u32 v22, v21, 9, v22
    v_and_b32 v23, 3, v0
    v_lshl_add_u32 v22, v23, 3, v22
    v_add_u32 v12, s59, v22
    ''')
    for t in range(1, 8):
        A(f'v_xor_b32 v{12+t}, {t*32}, v12')
    A(f'''
    v_and_b32 v24, 1, v0
    v_lshlrev_b32 v25, 6, v24                ; head*64
    v_lshlrev_b32 v24, 9, v24
    v_lshl_add_u32 v24, v2, 4, v24
    v_add_u32 v24, {QL}, v24
    s_lshl_b32 s60, s3, 3
    s_add_u32 s60, s60, {STW}
    v_add_u32 v25, s60, v25
    ''')
    hb('K1', 1)
    A('s_waitcnt lgkmcnt(0)')
    ha('K2', 0)
    vm.wait('K1')
    readK(KfB, 1)
    hb('K2', 0)
    A('s_waitcnt lgkmcnt(0)')
    ha('K3', 1)
    vm.wait('K2')
    if k3:
        readK(KfC, 0)
        hb('K3', 1)
        A('s_waitcnt lgkmcnt(0)')
        ha('V0', 0)
        vm.wait('K3')
        hb('V0', 0)
        stamp(3)
        if not nodep: flagwait(FLQ, 'L_wq')
        stamp(4)
        readQ(Pk, range(4))
        readQ(160, range(4, 6))
        A('s_waitcnt lgkmcnt(2)')
        for tile, src in enumerate((KfA, KfB, KfC)): qk(tile, src, Pk, range(4))
        readQ(Pk, range(6, 8))
        A('s_waitcnt lgkmcnt(2)')
        for tile, src in enumerate((KfA, KfB, KfC)): qk(tile, src, 160, range(4, 6))
        A('s_waitcnt lgkmcnt(0)')
        for tile, src in enumerate((KfA, KfB, KfC)): qk(tile, src, Pk, range(6, 8))
        readK(KfA, 1)
        readQ(KfB, range(8))
        A('s_waitcnt lgkmcnt(0)')
        issue('V1', 1, (0,))
        qk(3, KfA, KfB)
    else:
        hb('K3', 1)
        stamp(3)
        if not nodep: flagwait(FLQ, 'L_wq')
        stamp(4)
        readQ(KfC, range(8))
        A('s_waitcnt lgkmcnt(0)')
        qk(0, KfA, KfC)
        readK(KfA, 0)
        qk(1, KfB, KfC)
        A('s_waitcnt lgkmcnt(0)')
        qk(2, KfA, KfC)
        ha('V0', 0)
        vm.wait('K3')
        readK(KfB, 1)
        issue('V0', 0, (1,))
        A('s_waitcnt lgkmcnt(0)')
        qk(3, KfB, KfC)
    MK = 84
    A(f's_mov_b32 s{MK}, 0x00030003')
    A(f's_mov_b32 s{MK+1}, 0x00030003')
    for u in range(1, 8):
        A(f's_lshl_b64 s[{MK+2*u}:{MK+2*u+1}], s[{MK}:{MK+1}], {2*u}')
    A(f's_mov_b32 s63, {CEXP}')
    for i in range(8):
        a, b = Sx + 2*i, Sx + 2*i + 1
        A(f'v_cvt_pk_bf16_f32 v{b}, v{a}, v{b}')
        A(f'v_lshlrev_b32 v{a}, 16, v{b}')
        A(f'v_and_b32 v{b}, 0xffff0000, v{b}')
    A(f'v_max3_f32 v22, v{Sx}, v{Sx+1}, v{Sx+2}')
    for i in range(3, 15, 2):
        A(f'v_max3_f32 v22, v22, v{Sx+i}, v{Sx+i+1}')
    A(f'''
    v_max_f32 v22, v22, v{Sx+15}
    v_mov_b32 v1, v22
    v_permlane16_swap_b32 v22, v1
    v_max_f32 v22, v22, v1
    v_mov_b32 v1, v22
    v_permlane32_swap_b32 v22, v1
    v_max_f32 v22, v22, v1                   ; wave max per head
    ''')
    for i in range(16):
        A(f'v_sub_f32 v{Sx+i}, v{Sx+i}, v22')
    for i in range(16):
        A(f'v_mul_f32 v{Sx+i}, s63, v{Sx+i}')
    for i in range(16):
        A(f'v_exp_f32 v{Sx+i}, v{Sx+i}')
    for i in range(8):
        A(f'v_cvt_pk_bf16_f32 v{Pk+i}, v{Sx+2*i}, v{Sx+2*i+1}')
    for i in range(8):
        A(f'v_add_f32 v{Sx+i}, v{Sx+i}, v{Sx+8+i}')
    for i in range(4):
        A(f'v_add_f32 v{Sx+i}, v{Sx+i}, v{Sx+4+i}')
    A(f'''
    v_add_f32 v{Sx}, v{Sx}, v{Sx+2}
    v_add_f32 v{Sx+1}, v{Sx+1}, v{Sx+3}
    v_add_f32 v23, v{Sx}, v{Sx+1}
    v_mov_b32 v1, v23
    v_permlane16_swap_b32 v23, v1
    v_add_f32 v23, v23, v1
    v_mov_b32 v1, v23
    v_permlane32_swap_b32 v23, v1
    v_add_f32 v23, v23, v1                   ; wave sum per head
    s_mov_b64 exec, 3
    ds_write_b64 v25, v[22:23]
    s_mov_b64 exec, 1
    ds_add_u32 v26, v28 offset:{CNT-MISC}
    s_mov_b64 exec, -1
    ''')
    stamp(5)
    if not k3: ha('V1', 1)
    vWO, vWD, vOW, vOR, vP1s, vP1l, vYW, vHA = 22, 23, 24, 25, 27, 28, 29, 21
    vWA = [8, 9, 10, 11]
    A(f'''
    s_waitcnt lgkmcnt(0)
    s_movk_i32 s61, 896
    v_mad_u32_u24 v{vWD}, v{vR8}, s61, v{vCH}
    v_bfe_u32 v1, v0, 3, 1
    v_lshlrev_b32 v1, 8, v1
    v_and_b32 v3, 16, v0
    v_add_u32 v1, v1, v3
    v_lshrrev_b32 v3, 5, v0
    v_add_u32 v1, v1, v3
    v_mad_u32_u24 v{vWO}, v1, s61, v{vCH}
    v_lshrrev_b32 v1, 2, v0
    v_lshlrev_b32 v1, 7, v1
    v_bfe_u32 v2, v0, 3, 2
    v_lshl_add_u32 v1, v2, 5, v1
    v_and_b32 v2, 3, v0
    v_lshl_add_u32 v1, v2, 3, v1
    v_add_u32 v8, s59, v1
    v_xor_b32 v9, 32, v8
    v_xor_b32 v10, 64, v8
    v_xor_b32 v11, 0x60, v8
    v_lshlrev_b32 v1, 4, v0
    s_lshl_b32 s60, s3, 11
    s_add_u32 s60, s60, {AREA}
    v_add_u32 v{vOW}, s60, v1
    v_lshrrev_b32 v2, 4, v0                  ; g
    v_and_b32 v3, 15, v0                     ; c
    v_lshlrev_b32 v31, 12, v2                ; waves 2g, 2g+1
    v_lshl_add_u32 v31, v3, 4, v31
    s_lshl_b32 s60, s3, 8
    s_add_u32 s61, s60, {AREA}
    v_add_u32 v{vOR}, s61, v31
    s_add_u32 s61, s60, {YL}
    v_lshlrev_b32 v31, 2, v0
    v_add_u32 v{vYW}, s61, v31
    s_lshl3_add_u32 s60, s56, s3
    s_lshl_b32 s60, s60, 11
    s_add_u32 s60, s60, {P1}
    v_add_u32 v{vP1l}, s60, v1
    s_lshl4_add_u32 s61, s5, s60
    v_and_b32 v1, 7, v0
    v_lshlrev_b32 v1, 8, v1                  ; (half*4+g)*256
    v_and_b32 v3, 8, v0
    v_lshl_add_u32 v1, v3, 4, v1             ; ks*128
    v_add_u32 v{vP1s}, s61, v1
    s_lshl_b32 s60, s3, 6
    s_add_u32 s60, s60, {HL}
    v_lshlrev_b32 v1, 3, v2
    v_add_u32 v{vHA}, s60, v1
    v_lshlrev_b32 v31, 4, v2
    v_add_u32 v31, {FACW}, v31
    s_mul_i32 s60, s6, 7
    s_add_u32 s60, s60, s5
    s_lshl3_add_u32 s60, s60, s4
    s_lshl_b32 s60, s60, 9
    s_add_u32 s60, s60, {P2}
    v_lshl_add_u32 v30, v0, 3, s60
    ''')
    Vf = KfA; Mk = KfB
    WOf, WDf = KfC, Sx
    PL = 64
    def masks(i):
        M = Mk + 16*(i & 1)
        for u in range(8):
            A(f'v_cndmask_b32 v{M+2*u}, 0, v{Pk+2*i}, s[{MK+2*u}:{MK+2*u+1}]')
            A(f'v_cndmask_b32 v{M+2*u+1}, 0, v{Pk+2*i+1}, s[{MK+2*u}:{MK+2*u+1}]')
    def pv(i, slot, mid=None):
        M = Mk + 16*(i & 1)
        def rd(t): A(f'ds_read_b64_tr_b16 v[{Vf+2*t}:{Vf+2*t+1}], v{vVA[t&7]} offset:{slot*8192 + (t>>3)*256}')
        def mf(ii):
            acc = Oa + 4*(ii >> 2)
            c = '0' if (i == 0 and (ii & 3) == 0) else f'v[{acc}:{acc+3}]'
            A(f'v_mfma_f32_16x16x32_bf16 v[{acc}:{acc+3}], v[{M+4*(ii&3)}:{M+4*(ii&3)+3}], v[{Vf+4*ii}:{Vf+4*ii+3}], {c}')
        if ilv and i == 3 and mid is None:
            for t in range(8): rd(t)
            for ii in range(8):
                A(f's_waitcnt lgkmcnt({min(6, 14-2*ii)})')
                mf(ii)
                if ii < 4: rd(8+2*ii); rd(9+2*ii)
                if wlast == 6 and ii >= 4:
                    A(f's_add_u32 m0, s59, {8192 + ii*1024}')
                    A(f's_add_u32 s60, s64, {ii*2*896}')
                    A(f'buffer_load_dwordx4 v{vWO}, s[52:55], s60 offen{wnt} lds')
                    vm.add('WO', 1)
                if wlast == 3:
                    A(f's_add_u32 m0, s59, {8192 + ii*1024}')
                    A(f's_add_u32 s60, s64, {ii*2*896}')
                    A(f'buffer_load_dwordx4 v{vWO}, s[52:55], s60 offen{wnt} lds')
            if wlast == 3: vm.add('WO', 8)
            return
        for t in range(16): rd(t)
        if mid: mid()
        for ii in range(8):
            A(f's_waitcnt lgkmcnt({14-2*ii})')
            mf(ii)
    def issueW(p, slot, t=None, wdoff=0):
        vm.upto(thr if t is None else t)
        for k in range(4):
            if p < 2:
                A(f's_add_u32 m0, s59, {slot*8192 + (4*p+k)*1024}')
                A(f's_add_u32 s60, s64, {(4*p+k)*2*896}')
                A(f'buffer_load_dwordx4 v{vWO}, s[52:55], s60 offen{wnt} lds')
            else:
                A(f's_add_u32 m0, s59, {slot*8192 + wdoff + k*1024}')
                A(f's_add_u32 s60, s65, {k*8*896}')
                A(f'buffer_load_dwordx4 v{vWD}, s[48:51], s60 offen{wnt} lds')
        vm.add('WO' if p < 2 else 'WD', 4)
    def readWO(slot, kss=(0, 1)):
        for ks in kss:
            for T in range(4):
                for half in range(2):
                    d = WOf + 16*ks + 4*T + 2*half
                    A(f'ds_read_b64_tr_b16 v[{d}:{d+1}], v{vWA[T]} offset:{slot*8192 + ks*4096 + half*2048}')
    def readWD(slot, wdoff=0):
        for T in range(4):
            for half in range(2):
                A(f'ds_read_b64_tr_b16 v[{WDf+4*T+2*half}:{WDf+4*T+2*half+1}], v{vWA[T]} offset:{slot*8192 + wdoff + half*2048}')
    def pretouch():
        if p1pre == 2:
            A(f's_lshl_b32 s60, s5, 8\ns_mov_b64 exec, 0x101\nbuffer_load_dword v160, v{vP1l}, s[40:43], s60 offen{pref}\ns_mov_b64 exec, -1')
            vm.add('pre', 1)
            return
        for q in range(2):
            if p1pre: A(f'buffer_load_dwordx4 v[160:163], v{vP1l}, s[40:43], 0 offen offset:{q*1024}{pref}')
        vm.add('pre', 2 if p1pre else 0)
    masks(0)
    vm.wait('V0')
    pv(0, 0)
    masks(1)
    hb('V1', 1)
    if not wlast:
        issueW(0, 0)
        vm.wait('V1')
        pv(1, 1)
        issueW(1, 0)
        issueW(2, 1)
        masks(2)
        vm.wait('WO')
        readWO(0)
        A('s_waitcnt lgkmcnt(0)')
        issue('V2', 0, (0,))
        vm.wait('WD')
        readWD(1)
        hb('V2', 0)
        pretouch()
        A('s_waitcnt lgkmcnt(0)')
        ha('V3', 1, thr + 2)
        vm.wait('V2')
        pv(2, 0, lambda: issue('V3', 1, (1,)))
        s3 = 1
    elif wlast in (5, 6):
        issueW(0, 0)
        vm.wait('V1')
        pv(1, 1)
        issueW(2, 0, None, 4096)
        ha('V2', 1)
        masks(2)
        vm.wait('WD')
        readWO(0, (0,))
        readWD(0, 4096)
        hb('V2', 1)
        pretouch()
        A('s_waitcnt lgkmcnt(0)')
        ha('V3', 0, thr + 2)
        vm.wait('V2')
        pv(2, 1, lambda: issue('V3', 0, (1,)))
        s3 = 0
    else:
        issueW(2, 0)
        vm.wait('V1')
        pv(1, 1)
        ha('V2', 1)
        masks(2)
        vm.wait('WD')
        readWD(0)
        hb('V2', 1)
        pretouch()
        A('s_waitcnt lgkmcnt(0)')
        ha('V3', 0, thr + 2)
        vm.wait('V2')
        pv(2, 1, lambda: issue('V3', 0, (1,)))
        s3 = 0
    masks(3)
    flagwait(FLF, 'L_wf')
    FC = 160
    A(f'''
    ds_read_b128 v[4:7], v26 offset:{FLF-MISC}
    ds_read2_b64 v[64:67], v{vHA} offset0:0 offset1:4
    s_mov_b32 s{MK}, 0x00010001
    s_mov_b32 s{MK+1}, 0x00010001
    s_mov_b32 s{MK+2}, 0x01000100
    s_mov_b32 s{MK+3}, 0x01000100
    s_mov_b32 s{MK+4}, 0x00ff00ff
    s_mov_b32 s{MK+5}, 0x00ff00ff
    ''')
    vm.wait('pre')
    A(f'''
    ds_read_b128 v[{FC}:{FC+3}], v31
    s_waitcnt lgkmcnt(0)
    v_readfirstlane_b32 s63, v5
    v_mov_b32 v{vTAG}, v6
    v_mov_b32 v5, v6
    ''')
    FA = 144
    for r in range(4):
        A(f'v_cndmask_b32 v{68+r}, 0, v{64+r}, s[{MK}:{MK+1}]')
        A(f'v_cndmask_b32 v{72+r}, 0, v{64+r}, s[{MK+2}:{MK+3}]')
    A(f'''
    v_mfma_f32_16x16x32_bf16 v[{FA}:{FA+3}], v[68:71], v[{WDf}:{WDf+3}], 0
    v_mfma_f32_16x16x32_bf16 v[{FA+4}:{FA+7}], v[68:71], v[{WDf+4}:{WDf+7}], 0
    v_mfma_f32_16x16x32_bf16 v[{FA}:{FA+3}], v[72:75], v[{WDf+8}:{WDf+11}], v[{FA}:{FA+3}]
    v_mfma_f32_16x16x32_bf16 v[{FA+4}:{FA+7}], v[72:75], v[{WDf+12}:{WDf+15}], v[{FA+4}:{FA+7}]
    s_mov_b32 s62, {SPIN}
    ''')
    if wlast in (1, 2):
        issueW(0, 1, wthr)
        if wlast == 1: issueW(1, 1, wthr + 2)
    if early: A('v_mov_b32 v1, 1\ns_mov_b64 exec, 1')
    vm.wait('V3')
    if early: A(f'ds_add_u32 v26, v1 offset:{CNTV-MISC}\ns_mov_b64 exec, -1')
    stamp(6)
    pv(3, s3, (lambda: issueW(1, 1, 99)) if wlast == 2 else None)
    A(f'''
    ds_write_b128 v{vOW}, v[{Oa}:{Oa+3}]
    ds_write_b128 v{vOW}, v[{Oa+4}:{Oa+7}] offset:1024
    ''')
    if wlast == 4:
        issueW(0, 1, 99); issueW(1, 1, 99)
    if wlast == 5: issueW(1, 1, 99)
    A('s_waitcnt lgkmcnt(0)')
    stamp(7)
    A(f'''
    s_barrier                               ; #4: O partials
    ds_read_b128 v[32:35], v{vOR}
    ds_read_b128 v[36:39], v{vOR} offset:2048
    s_cmp_eq_u32 s63, 0
    s_waitcnt lgkmcnt(1)
    v_mul_f32 v32, v32, v{FC}
    v_mul_f32 v34, v34, v{FC}
    v_mul_f32 v33, v33, v{FC+1}
    v_mul_f32 v35, v35, v{FC+1}
    s_waitcnt lgkmcnt(0)
    v_fmac_f32 v32, v36, v{FC+2}
    v_fmac_f32 v34, v38, v{FC+2}
    v_fmac_f32 v33, v37, v{FC+3}
    v_fmac_f32 v35, v39, v{FC+3}
    v_permlane32_swap_b32 v32, v34
    v_permlane32_swap_b32 v33, v35
    v_add_f32 v36, v32, v34
    v_add_f32 v37, v33, v35
    v_add_f32 v32, v32, v34
    v_add_f32 v33, v33, v35
    v_permlane16_swap_b32 v32, v36
    v_permlane16_swap_b32 v33, v37
    v_add_f32 v32, v32, v36
    v_add_f32 v33, v33, v37
    v_cvt_pk_bf16_f32 v4, v32, v33
    v_cvt_pk_bf16_f32 v6, v32, v33
    v_permlane32_swap_b32 v4, v6
    s_mov_b64 exec, 0xffff
    s_cbranch_scc1 L_slowpub
    buffer_store_dwordx4 v[4:7], v{vP1s}, s[40:43], 0 offen
    L_pubdone:
    s_mov_b64 exec, -1
    ''')
    vm.add('pub', 1)
    stamp(8)
    A(f'''
    s_cmp_eq_u32 s5, 7
    s_cbranch_scc1 L_sdone
    ''')
    def polls():
        for q in range(2):
            A(f'buffer_load_dwordx4 v[{PL+4*q}:{PL+4*q+3}], v{vP1l}, s[40:43], 0 offen offset:{q*1024} sc1')
    if wlast:
        polls(); vm.add('poll', 2)
        vm.wait('WO')
        readWO(1, (1,) if wlast in (5, 6) else (0, 1))
        A('s_branch L_poll1_chk')
    A('L_poll1:')
    polls()
    A(f'''
    L_poll1_chk:
    s_sub_u32 s62, s62, 1
    s_waitcnt vmcnt(0)
    s_cbranch_scc1 L_poll1_done
    v_min3_u32 v1, v{PL+1}, v{PL+3}, v{PL+5}
    v_max3_u32 v2, v{PL+1}, v{PL+3}, v{PL+5}
    v_min3_u32 v1, v1, v{PL+7}, v{vTAG}
    v_max3_u32 v2, v2, v{PL+7}, v{vTAG}
    v_cmp_ne_u32 vcc, v1, v2
    {'s_mov_b64 exec, vcc' if mpoll else ''}
    {'' if nohelp else 's_cbranch_vccnz L_poll1'}
    L_poll1_done:
    {'s_mov_b64 exec, -1' if mpoll else ''}
    ''')
    stamp(9)
    LO, HI = 80, 88
    def omm(a, ks, T0):
        for x in range(2):
            acc = FA + 4*x
            bb = WOf + 16*ks + 4*(T0 + x)
            A(f'v_mfma_f32_16x16x32_bf16 v[{acc}:{acc+3}], v[{a}:{a+3}], v[{bb}:{bb+3}], v[{acc}:{acc+3}]')
    for q in range(4):
        A(f'v_cndmask_b32 v{LO+q}, 0, v{PL+2*q}, s[{MK+4}:{MK+5}]')
    for q in range(4):
        A(f'v_cndmask_b32 v{HI+4+q}, v{PL+2*q}, 0, s[{MK+4}:{MK+5}]')
    if wlast: A('s_waitcnt lgkmcnt(0)')
    omm(LO, 0, 0)
    for q in range(4):
        A(f'v_mov_b32_dpp v{HI+q}, v{PL+2*q} row_shr:8 row_mask:0xf bank_mask:0xf bound_ctrl:0')
    omm(HI+4, 1, 2)
    for q in range(4):
        A(f'v_mov_b32_dpp v{LO+4+q}, v{PL+2*q} row_shl:8 row_mask:0xf bank_mask:0xf bound_ctrl:0')
    omm(HI, 0, 2)
    omm(LO+4, 1, 0)
    A(f'''
    v_add_f32 v{FA}, v{FA}, v{FA+1}
    v_add_f32 v{FA+2}, v{FA+2}, v{FA+3}
    v_add_f32 v{FA+4}, v{FA+4}, v{FA+5}
    v_add_f32 v{FA+6}, v{FA+6}, v{FA+7}
    v_add_f32 v{FA}, v{FA}, v{FA+2}
    v_add_f32 v{FA+4}, v{FA+4}, v{FA+6}
    v_permlane16_swap_b32 v{FA}, v{FA+4}
    v_add_f32 v{FA}, v{FA}, v{FA+4}
    ds_write_b32 v{vYW}, v{FA}
    s_waitcnt lgkmcnt(0)
    ''')
    stamp(10)
    if fin != 'D': A('s_cmp_lg_u32 s3, 0')
    A('s_barrier                               ; #5')
    if fin != 'D':
        A(f'''
        s_cbranch_scc1 {'L_clean' if clean else 'L_sdone'}
        ds_read2st64_b32 v[48:49], v{vYW} offset0:0 offset1:1
        ds_read2st64_b32 v[50:51], v{vYW} offset0:2 offset1:3
        ds_read2st64_b32 v[52:53], v{vYW} offset0:4 offset1:5
        ds_read2st64_b32 v[54:55], v{vYW} offset0:6 offset1:7
        s_waitcnt lgkmcnt(2)
        v_add_f32 v48, v48, v49
        v_add_f32 v50, v50, v51
        s_waitcnt lgkmcnt(0)
        v_add_f32 v52, v52, v53
        v_add_f32 v54, v54, v55
        v_add_f32 v48, v48, v50
        v_add_f32 v52, v52, v54
        v_add_f32 v4, v48, v52
        buffer_store_dwordx2 v[4:5], v30, s[40:43], 0 offen sc1
        ''')
        if stamps: A('s_waitcnt vmcnt(0)\ns_memrealtime s[70:71]')
        if clean:
            A(f'''
            L_clean:
            s_lshl_b32 s60, s5, 8
            s_cmp_eq_u32 s5, 6
            s_cselect_b32 s61, 0x1010101, 0x101
            s_mov_b32 exec_lo, s61
            s_mov_b32 exec_hi, 0
            buffer_store_dword v{vTAG}, v{vP1l}, s[40:43], s60 offen offset:4 sc1
            '''.replace('s_cselect_b32 s61, 0x1010101, 0x101', 's_movk_i32 s61, 0x101\ns_cselect_b32 s61, 0x1010101, s61'))
    if pad and padat[0] == 's': dopad('L_pads')
    A('L_sdone:')
    if stamps:
        A(f's_cmp_eq_u32 s3, 0')
        A('s_cbranch_scc1 L_dump0')
        A(f's_cmp_lg_u32 s3, 7')
        A('s_cbranch_scc1 L_end')
        dump_stamps(16, [sreg(k) for k in range(11)])
        A('s_endpgm')
        A('L_dump0:')
        dump_stamps(0, [sreg(k) for k in range(11)])
    A('s_endpgm')
    A(f'''
    L_slowpub:
    buffer_store_dwordx4 v[4:7], v{vP1s}, s[40:43], 0 offen sc1
    s_branch L_pubdone
    ''')
    A('.section .rodata,"a"')
    A('.p2align 6')
    A(f'.amdhsa_kernel {NAME}_kernel')
    A('.amdhsa_next_free_vgpr 168')
    A('.amdhsa_next_free_sgpr 102')
    A('.amdhsa_accum_offset 168')
    A('.amdhsa_group_segment_fixed_size 0')
    A('.amdhsa_kernarg_size 96')
    A('.amdhsa_user_sgpr_count 2')
    A('.amdhsa_user_sgpr_kernarg_segment_ptr 1')
    A('.amdhsa_system_sgpr_workgroup_id_x 1')
    A('.end_amdhsa_kernel')
    return top + A.finalize()

if __name__ == '__main__':
    out = sys.argv[1] if len(sys.argv) > 1 else f'cdna_kernels/{NAME}.s'
    kw = eval('dict(%s)' % sys.argv[2]) if len(sys.argv) > 2 else {}
    open(out, 'w').write(gen(**kw))
    print('wrote', out)
```

```python
import sys, struct, math
from asmlib import Asm
NAME = 'parallel_sum__sliding_block_cached__glu_gated_reglu__decode'

def f32(x): return '0x%08x' % struct.unpack('<I', struct.pack('<f', x))[0]

AREA = 131072
TAB = AREA + 16384
STW = TAB
FACW = TAB + 128
HL = TAB + 512
QL = TAB + 1024
YL = TAB + 2048
MISC = AREA + 28672
FLQ = MISC
CNT = MISC + 4
CNT0 = MISC + 12
FLF = MISC + 16
CNTV = MISC + 32
THR = MISC + 36
XN = MISC + 256
LDS_TOTAL = 163840
EPOCH = 0
ST = 0x3C000
TK2 = 0x2000
TK = 0x3000
P2 = 0x1C0000
P1 = 0x40000
QP = 0xC0000
WS_END = 0x1E0000
STAMPS = 0x300000
SPIN = 400000
CEXP = f32(math.log2(math.e)/16)

class VM:
    def __init__(self, A): self.A = A; self.q = []
    def add(self, name, n): self.q.append((name, n))
    def wait(self, name, extra=''):
        idx = max(i for i, (nm, _) in enumerate(self.q) if nm == name)
        n = sum(c for _, c in self.q[idx+1:])
        self.q = self.q[idx+1:]
        self.A(f's_waitcnt vmcnt({n}){extra}')
    d = 0; nl = 0
    def upto(self, n):
        tot = sum(c for _, c in self.q)
        if tot > n: self.A(f's_waitcnt vmcnt({n})')
        if self.d and n < 50 and tot > max(n - self.d, 0):
            self.nl += 1
            self.A(f's_cbranch_vccz L_pc{self.nl}\ns_waitcnt vmcnt({max(n - self.d, 0)})\nL_pc{self.nl}:')

def gen(stamps=0, wnt='', snt=' nt', kvnt=' nt', forceslow=False, now=False, pad=0, padat=None, thr=1,
        hpre=3, psleep=32, xlast=0, xtries=12, sync=False, xs='rev', light=False, kfirst=True, k3=True, wlast=5, hs=None, wthr=4, fastmask=0, dthr=0, fh=(), fin='T', spec=False, fsleep=0, hl=(6, 12), early=False, satom=True, noxc=False, bent=None, lin=None, p2b=True, v3thr=2, k0thr=5, dirty=0, wb=0, clean=0, p2pre=1, outf='', perm=0, gov=None, govh=('V2a', 'V2b', 'V3a'), govn=4, ilv=True, mpoll=True, nohelp=False, nodep=False, tlb=False, presl=32, pref=' sc1', pollf=' sc1', p1pre=0, sl=(0, 6, 10)):
    A = Asm()
    def sreg(k): return 68 + 2*k if k < 3 else 16 + 2*(k-3)
    def stamp(k):
        if stamps and (not light or k in sl): A(f's_memrealtime s[{sreg(k)}:{sreg(k)+1}]')
        if padat == f's{k}': A('s_memrealtime s[100:101]')
    def hstamp(k):
        if nohelp and nohelp - 1 == k: A('s_endpgm')
        if stamps and (not light or k in hl):
            A(f's_memrealtime s[100:101]\ns_waitcnt lgkmcnt(0)\nv_writelane_b32 v164, s100, {k}\nv_writelane_b32 v165, s101, {k}')
        if padat == f'h{k}': A('s_memrealtime s[100:101]\ns_waitcnt lgkmcnt(0)')
    def dopad(lab):
        A(f'''
        {lab}:
        s_memrealtime s[98:99]
        s_waitcnt lgkmcnt(0)
        s_sub_u32 s98, s98, s100
        s_cmp_lt_u32 s98, {pad}
        s_cbranch_scc1 {lab}
        ''')
    def dump_stamps(slot0, regs_):
        A('s_waitcnt vmcnt(0) lgkmcnt(0)')
        A('s_mov_b64 exec, 1')
        A('s_lshl_b32 s60, s2, 9')
        A(f's_add_u32 s60, s60, {STAMPS}')
        A('v_mov_b32 v1, s60')
        for k, r in enumerate(regs_):
            A(f'v_mov_b32 v2, s{r}')
            A(f'v_mov_b32 v3, s{r+1}')
            A(f'buffer_store_dwordx2 v[2:3], v1, s[40:43], 0 offen offset:{8*(slot0+k)}')
    WSN = 0x400000 if stamps else WS_END
    Z = (lambda n: 0) if now else (lambda n: n)
    hdr = open('cdna_kernels/%s.s.ref' % NAME).read().split('; Override launch geometry')[0]
    top = hdr + f'; @launch grid=(256,1,1) block=(576,1,1) lds={LDS_TOTAL}\n'
    A('.amdgcn_target "amdgcn-amd-amdhsa--gfx950"')
    A('.text')
    A(f'.globl {NAME}_kernel')
    A('.p2align 8')
    A(f'.type {NAME}_kernel,@function')
    A(f'{NAME}_kernel:')
    if sync:
        A('''
        s_memrealtime s[4:5]
        s_waitcnt lgkmcnt(0)
        s_add_u32 s6, s4, 4096+600
        s_and_b32 s6, s6, -4096
        s_load_dwordx2 s[8:9], s[0:1], 88
        s_lshl_b32 s7, s2, 3
        s_add_u32 s7, s7, 0x380000
        v_mov_b32 v2, s4
        v_mov_b32 v3, s6
        v_mov_b32 v1, s7
        s_waitcnt lgkmcnt(0)
        global_store_dwordx2 v1, v[2:3], s[8:9] sc1
        s_waitcnt vmcnt(0)
        L_sync:
        s_memrealtime s[4:5]
        s_waitcnt lgkmcnt(0)
        s_sub_u32 s4, s4, s6
        s_cmp_lt_i32 s4, 0
        s_cbranch_scc1 L_sync
        s_branch L_go
        .p2align 10
        L_go:
        ''')
    if perm == 1:
        A('s_cmpk_ge_u32 s2, 256\ns_cbranch_scc1 L_end\ns_lshr_b32 s3, s2, 3\ns_and_b32 s3, s3, 7\ns_xor_b32 s2, s2, s3')
    if perm == 2:
        A('s_and_b32 s3, s2, -2\ns_cmp_eq_u32 s3, 74\ns_cselect_b32 s3, 1, 0\ns_xor_b32 s2, s2, s3')
    if padat == 'he': A('s_memrealtime s[100:101]')
    stamp(0)
    def msk(bits): return sum(1 << x for x in bits)
    def tmask(i, half):
        if not lin: return i*524288 + half*4096
        t = [msk(x) for x in lin['t']]
        return (t[0] if half else 0) ^ (t[1] if i & 1 else 0) ^ (t[2] if i & 2 else 0)
    lincode = ''
    if xs == 'rev':
        xs = None
        if not (lin or bent): lincode = 's_brev_b32 s62, s5\ns_lshr_b32 s62, s62, 10\ns_and_b32 s62, s62, 0x180000\ns_or_b32 s58, s58, s62\n'
    if lin:
        xs = None
        lincode = 's_mov_b32 s58, 0\n'
        for key, reg in (('w', 's3'), ('j', 's5'), ('h', 's4'), ('b', 's6')):
            for bit, m in enumerate(lin.get(key, [])):
                if m: lincode += f's_bitcmp1_b32 {reg}, {bit}\ns_cselect_b32 s62, {msk(m)}, 0\ns_xor_b32 s58, s58, s62\n'
    if bent:
        xs = None
        def gmul(a, b):
            r = 0
            for k in range(3):
                if b >> k & 1: r ^= a << k
            for k in (4, 3):
                if r >> k & 1: r ^= 0xb << (k - 3)
            return r
        for k, bit in enumerate(bent):
            if bit is None: continue
            m = sum((gmul(i >> 3, i & 7) >> k & 1) << i for i in range(64))
            lincode += f's_mov_b32 s76, {m & 0xffffffff}\ns_mov_b32 s77, {m >> 32}\ns_bitcmp1_b64 s[76:77], s66\ns_cselect_b32 s62, {1 << bit}, 0\ns_xor_b32 s58, s58, s62\n'
    vm = VM(A)
    vD = [4, 5, 6, 7]; vKA = [8, 9, 10, 11]; vVA = list(range(12, 20)); vTAG = 20
    KfA, KfB, KfC, Sx, Pk, Oa = 32, 64, 96, 128, 144, 152
    vCH, vR8 = 30, 31
    KS, VS = 's[8:11]', 's[12:15]'
    def issue(name, slot, halves=(0, 1)):
        srd = KS if name[0] == 'K' else VS
        i = int(name[1])
        for half in halves:
            first = (name == 'K0' and half == 0)
            hn = name + 'ab'[half]
            if gov and hn in govh:
                A(f'ds_read_b32 v1, v26 offset:{THR-MISC}\ns_waitcnt lgkmcnt(0)\nv_cmp_lt_u32 vcc, {govh.index(hn)}, v1')
            if not first:
                A(f's_xor_b32 m0, {"s74" if hs else "s59"}, {slot*8192 + half*4096}')
                A(f's_xor_b32 s60, s58, {tmask(i, half)}')
            for q in range(4):
                if q in (0, 2) and (hn in fh or (gov and hn in govh)):
                    A(f's_cbranch_vccz L_f{name}{half}{q}\ns_waitcnt vmcnt(1)\nL_f{name}{half}{q}:')
                A(f'buffer_load_dwordx4 v{vD[q]}, {srd}, {"s58" if first else "s60"} offen offset:{q*1024}{kvnt} lds')
            vm.add(name, 4)
    def ha(name, slot, t=None):
        vm.upto(thr if t is None else t); issue(name, slot, (0,))
    def hb(name, slot, t=None):
        vm.upto(thr if t is None else t); issue(name, slot, (1,))
    A(f'''
    s_load_dwordx16 s[16:31], s[0:1], 0
    s_load_dwordx8 s[32:39], s[0:1], 64
    v_readfirstlane_b32 s3, v0
    s_cmpk_ge_u32 s2, 256
    s_cbranch_scc1 L_end
    v_and_b32 v0, 63, v0                     ; lane
    s_lshr_b32 s3, s3, 6                     ; wave
    s_and_b32 s4, s2, 7                      ; hkv
    s_bfe_u32 s5, s2, 0x30003                ; j
    s_lshr_b32 s6, s2, 6                     ; b
    s_lshl3_add_u32 s56, s6, s4
    s_cmp_eq_u32 s3, 8
    s_cbranch_scc1 L_helper
    v_lshrrev_b32 v1, 4, v0
    v_and_b32 v1, 2, v1
    v_xor_b32 v1, v1, v0
    v_lshlrev_b32 v4, 4, v1
    v_xor_b32 v5, 64, v4
    v_xor_b32 v6, 0x80, v4
    v_xor_b32 v7, 64, v6
    s_lshl3_add_u32 s66, s5, s3              ; 8j + w
    s_lshl_b32 s57, s56, 23
    s_add_u32 s57, s57, {12288*512}
    s_lshl_b32 s59, s3, 14
    s_lshl_b32 s58, s66, 13
    {lincode}
    {f's_bfe_u32 s62, {xs[0]}, {0x20000 + xs[1]}' if xs else ''}
    {'s_lshl_b32 s62, s62, 19' if xs else ''}
    {'s_or_b32 s58, s58, s62' if xs else ''}
    {f's_bfe_u32 s62, {hs[0]}, {0x10000 + hs[1]}' if hs else ''}
    {'s_lshl_b32 s62, s62, 12' if hs else ''}
    {'s_or_b32 s58, s58, s62' if hs else ''}
    {'s_or_b32 s74, s59, s62' if hs else ''}
    s_mov_b32 s10, 0x200000
    s_mov_b32 s11, 0x20000
    ''')
    saddr = f'''
    v_bfe_u32 v2, v0, 4, 2
    v_lshlrev_b32 v2, 1, v2
    v_and_b32 v3, 7, v0
    v_xor_b32 v2, v2, v3
    v_lshlrev_b32 v{vCH}, 4, v2
    v_lshrrev_b32 v{vR8}, 3, v0
    s_movk_i32 s61, 3584
    s_bfe_u32 s65, s2, 0x30004
    s_lshl3_add_u32 s65, s4, s65
    s_bfe_u32 s67, s2, 0x20005
    s_lshl2_add_u32 s67, s4, s67
    s_and_b32 s63, s5, 3                     ; K quarter
    s_and_b32 s64, s5, 1
    s_lshl_b32 s64, s64, 1
    s_cmp_lt_u32 s4, 7
    s_cselect_b32 s46, {Z(448*3584)}, 0
    s_cselect_b32 s67, s67, 0
    s_cmp_lt_u32 s6, 2
    s_cselect_b32 s46, {Z(448*8192)}, s46
    s_cselect_b32 s61, 0x2000, s61
    s_cselect_b32 s65, s65, s67
    s_cselect_b32 s63, s64, s63
    s_cselect_b32 s67, {112*8192}, 0
    s_cselect_b64 vcc, -1, 0
    s_mul_i32 s63, s63, 7
    s_add_u32 s63, s63, s3
    s_lshl_b32 s63, s63, 4
    s_mul_i32 s63, s63, s61
    s_lshl_b32 s65, s65, 7
    s_add_u32 s63, s63, s65
    s_add_u32 s67, s67, s63
    v_mad_u32_u24 v21, v{vR8}, s61, v{vCH}
    s_lshl_b32 s61, s61, 3
    s_lshl_b32 s62, s3, 11
    s_mov_b32 s47, s11
    s_max_u32 s7, s4, s5
    '''
    if not kfirst: A(saddr)
    A(f'''
    s_mov_b32 m0, {'s74' if hs else 's59'}
    {'s_memrealtime s[100:101]' if padat == 'sa' else ''}
    s_waitcnt lgkmcnt(0)
    {'s_memrealtime s[100:101]' if padat == 'sb' else ''}
    s_add_u32 s8, s18, s57
    s_addc_u32 s9, s19, 0
    ''')
    if kfirst:
        issue('K0', 0, (0, 1) if kfirst == 2 else (0,))
        A(saddr)
    A(f'''
    v_mov_b32 v28, 1
    s_cmp_eq_u32 s3, 7
    s_cbranch_scc1 L_ldx
    s_cmp_lg_u64 vcc, 0
    s_cselect_b64 s[44:45], s[22:23], s[28:29]
    s_cselect_b64 s[48:49], s[22:23], s[30:31]
    s_add_u32 m0, s62, {AREA}
    s_mov_b64 s[50:51], s[46:47]
    buffer_load_dwordx4 v21, s[44:47], s63 offen{snt} lds
    s_add_u32 m0, s62, {AREA+14336}
    s_add_u32 s63, s63, s61
    buffer_load_dwordx4 v21, s[48:51], s67 offen{snt} lds
    s_add_u32 m0, s62, {AREA+1024}
    s_add_u32 s67, s67, s61
    buffer_load_dwordx4 v21, s[44:47], s63 offen{snt} lds
    s_add_u32 m0, s62, {AREA+14336+1024}
    buffer_load_dwordx4 v21, s[48:51], s67 offen{snt} lds
    s_branch L_ldk
    L_ldx:
    v_lshlrev_b32 v21, 4, v0
    s_mov_b32 m0, {XN}
    s_mov_b64 s[44:45], s[16:17]
    s_movk_i32 s46, 3584
    buffer_load_dwordx4 v21, s[44:47], 0 offen lds
    buffer_load_dwordx4 v21, s[44:47], 0 offen offset:1024 lds
    buffer_load_dwordx4 v21, s[44:47], 0 offen offset:2048 lds
    s_mov_b32 exec_hi, 0
    buffer_load_dwordx4 v21, s[44:47], 0 offen offset:3072 lds
    s_mov_b32 exec_hi, -1
    L_ldk:
    ''')
    vm.add('small', 4)
    if not kfirst:
        A(f's_mov_b32 m0, {"s74" if hs else "s59"}')
        issue('K0', 0, (0,))
    stamp(1)
    A('s_branch L_stream')

    XR = 8
    XF = 32
    RA = 156
    WF = 64
    AC = 132
    PB = 64
    nstore = [0]
    def store2(ins):
        n = nstore[0]; nstore[0] += 1
        A(f's_cmp_eq_u32 s58, 0\ns_cbranch_scc1 L_ss{n}')
        for i in ins: A(i)
        A(f's_branch L_sd{n}\nL_ss{n}:')
        for i in ins: A(i + ' sc1')
        A(f'L_sd{n}:')
    def cntwait(off, lab, sl, n=8):
        A(f'''
        s_mov_b32 s63, {SPIN*8}
        {lab}:
        ds_read_b32 v9, v31 offset:{off-MISC}
        s_sub_u32 s63, s63, 1
        s_waitcnt lgkmcnt(0)
        s_cbranch_scc1 {lab}_done
        v_cmp_le_u32 vcc, {n}, v9
        s_cbranch_vccnz {lab}_done
        {f's_sleep {sl}' if sl else ''}
        s_branch {lab}
        {lab}_done:
        ''')
    A(f'''
    L_helper:
    s_setprio 3
    s_getreg_b32 s57, hwreg(HW_REG_XCC_ID, 0, 7)
    s_lshl_b32 s66, s4, 5
    s_lshr_b32 s61, s2, 3
    s_add_u32 s61, s61, s66
    s_add_u32 s57, s57, 1
    v_mov_b32 v9, s61
    v_mov_b32 v10, s57
    v_mov_b32 v31, {MISC}
    v_lshl_add_u32 v1, v0, 2, v31
    v_mov_b32 v2, 0
    ds_write_b32 v1, v2                      ; flags = 0
    s_mov_b64 exec, 1
    s_waitcnt lgkmcnt(0)
    {'' if noxc else 'global_store_byte v9, v10, s[36:37]      ; my XCD, for the workgroups that share my heads'}
    s_load_dword s62, s[38:39], {EPOCH}
    s_mov_b64 exec, -1
    ''')
    if tlb:
        A(f'''
        s_lshl_b32 s60, s56, 23
        s_add_u32 s60, s60, {12288*512}
        s_load_dword s76, s[20:21], s60          ; touch the pages used later: V window, wo, W_down, out
        s_add_u32 s60, s60, {(1<<21) - 64}
        s_load_dword s77, s[20:21], s60
        s_mul_i32 s60, s4, {512*896}
        s_load_dword s78, s[24:25], s60
        s_add_u32 s60, s60, {512*896 - 64}
        s_load_dword s79, s[24:25], s60
        s_load_dword s80, s[32:33], 0
        s_mov_b32 s60, {1792*896 - 64}
        s_load_dword s81, s[32:33], s60
        s_load_dword s82, s[34:35], 0
        ''')
    if stamps: A('v_mov_b32 v164, 0\nv_mov_b32 v165, 0\ns_memtime s[94:95]\ns_memrealtime s[96:97]')
    A(f'''
    s_mov_b64 s[40:41], s[38:39]
    s_mov_b32 s42, {WSN}
    s_mov_b32 s43, 0x20000
    s_mul_i32 s67, s56, 12288
    s_add_u32 s67, s67, {QP}
    s_mul_i32 s64, s6, 7
    s_add_u32 s64, s64, s5                   ; 7b + j
    s_lshl_b32 s7, s56, 9
    s_add_u32 s7, s7, {ST}
    ''')
    if hpre:
        A('v_lshlrev_b32 v8, 7, v0')
        if hpre in (2, 3):
            A(f'''
            s_cmp_lg_u32 s5, 7
            s_cbranch_scc1 L_nopre
            s_mov_b64 exec, 3
            buffer_load_dword v166, v8, s[40:43], s7 offen{pref}
            L_nopre:
            ''')
        A('s_mov_b64 exec, -1')
    XB = 128
    A(f'''
    v_lshrrev_b32 v1, 4, v0                  ; g
    v_and_b32 v2, 15, v0
    v_and_b32 v3, 3, v0
    v_mul_u32_u24 v3, 896, v3
    v_add_u32 v3, {XN}, v3                   ; row of batch l%4
    v_lshl_add_u32 v4, v1, 3, v3             ; + g*8
    v_and_b32 v5, 60, v0
    v_lshl_add_u32 v3, v5, 1, v3             ; + (l/4)*8
    s_and_b32 s60, s5, 3
    s_and_b32 s61, s5, 1
    s_lshl_b32 s65, s61, 11
    s_bfe_u32 s59, s2, 0x30004
    s_lshl_b32 s59, s59, 8
    s_add_u32 s65, s65, s59                  ;   + block * 256
    s_lshl_b32 s63, s60, 11
    s_bfe_u32 s59, s2, 0x20005
    s_lshl_b32 s59, s59, 9
    s_add_u32 s63, s63, s59                  ;   + block * 512
    s_add_u32 s63, s63, 4096
    s_lshl_b32 s61, s61, 1
    s_cmp_lt_u32 s6, 2
    s_cselect_b32 s60, s61, s60
    s_cselect_b32 s61, 224, 0
    s_cselect_b32 s65, s65, s63
    s_mul_i32 s60, s60, 224
    v_add_u32 v4, s60, v4
    v_add_u32 v5, s61, v4
    s_mul_i32 s60, s4, 12288
    s_add_u32 s65, s65, s60
    s_add_u32 s65, s65, {QP}
    v_lshrrev_b32 v7, 2, v0
    v_lshlrev_b32 v7, 7, v7
    v_bfe_u32 v6, v0, 3, 2
    v_lshl_add_u32 v7, v6, 5, v7
    v_and_b32 v6, 3, v0
    v_lshl_add_u32 v7, v6, 3, v7
    v_add_u32 v156, {AREA}, v7
    v_xor_b32 v157, 32, v156
    v_xor_b32 v158, 64, v156
    v_xor_b32 v159, 0x60, v156
    s_mov_b64 s[8:9], 0xffff
    s_lshl_b64 s[10:11], s[8:9], 16
    s_lshl_b64 s[12:13], s[8:9], 32
    v_mov_b32 v30, 1
    v_lshlrev_b32 v29, 3, v0                 ; lane*8
    v_lshlrev_b32 v7, 4, v0                  ; lane*16
    v_lshlrev_b32 v6, 2, v0                  ; lane*4
    s_min_u32 s60, s64, 27
    s_lshl_b32 s60, s60, 7
    v_lshl_add_u32 v162, v0, 1, s60
    v_add_u32 v163, {XN}, v162
    v_and_b32 v160, 7, v0
    v_lshlrev_b32 v160, 2, v160
    v_add_u32 v160, s66, v160
    s_mul_i32 s46, s57, 0x01010101
    {'v_mov_b32 v161, s46' if noxc else 'global_load_dword v161, v160, s[36:37] sc1'}
    s_barrier
    ''')
    hstamp(0)
    cntwait(CNT0, 'L_w0', 1)
    hstamp(1)
    def wreads(s_):
        for hs_ in range(7):
            for T in range(4):
                d = WF + 14*T + 2*hs_
                A(f'ds_read_b64_tr_b16 v[{d}:{d+1}], v{156+T} offset:{s_*14336 + hs_*2048}')
    for u in range(7):
        A(f'ds_read_b64 v[{XR+2*u}:{XR+2*u+1}], v3 offset:{128*u}')
    A('ds_read_u16 v163, v163                   ; residual x')
    wreads(0)
    A(f'''
    s_mul_i32 s62, s62, 1664525
    s_add_u32 s62, s62, 1013904223
    v_mov_b32 v28, s62
    s_movk_i32 s47, 0xff
    s_waitcnt lgkmcnt(15)
    ''')
    for u in range(14):
        A(f'v_lshlrev_b32 v{XF+2*u}, 16, v{XR+u}')
        A(f'v_and_b32 v{XF+2*u+1}, 0xffff0000, v{XR+u}')
    def allsum(r):
        A(f'''
        v_add_f32_dpp v{r}, v{r}, v{r} row_ror:4 row_mask:0xf bank_mask:0xf
        v_add_f32_dpp v{r}, v{r}, v{r} row_ror:8 row_mask:0xf bank_mask:0xf
        v_mov_b32 v23, v{r}
        v_permlane16_swap_b32 v{r}, v23
        v_add_f32 v{r}, v{r}, v23
        v_mov_b32 v23, v{r}
        v_permlane32_swap_b32 v{r}, v23
        v_add_f32 v{r}, v{r}, v23
        ''')
    A(f'v_pk_add_f32 v[22:23], v[{XF}:{XF+1}], v[{XF+2}:{XF+3}]')
    A(f'v_pk_add_f32 v[26:27], v[{XF+4}:{XF+5}], v[{XF+6}:{XF+7}]')
    for u in range(4, 14, 2):
        A(f'v_pk_add_f32 v[22:23], v[22:23], v[{XF+2*u}:{XF+2*u+1}]')
        A(f'v_pk_add_f32 v[26:27], v[26:27], v[{XF+2*u+2}:{XF+2*u+3}]')
    A('v_pk_add_f32 v[22:23], v[22:23], v[26:27]')
    A('v_add_f32 v22, v22, v23')
    allsum(22)
    A(f'''
    v_mul_f32 v22, {f32(1/448)}, v22           ; mean
    v_cvt_pk_bf16_f32 v24, v22, v22
    v_and_b32 v24, 0xffff0000, v24           ; bf16(mean)
    v_sub_f32 v22, v22, v24
    ''')
    for u in range(14):
        A(f'v_pk_add_f32 v[{XF+2*u}:{XF+2*u+1}], v[{XF+2*u}:{XF+2*u+1}], v[24:25] op_sel_hi:[1,0] neg_lo:[0,1] neg_hi:[0,1]')
    A(f'v_pk_mul_f32 v[26:27], v[{XF}:{XF+1}], v[{XF}:{XF+1}]')
    A(f'v_pk_mul_f32 v[24:25], v[{XF+2}:{XF+3}], v[{XF+2}:{XF+3}]')
    for u in range(2, 14, 2):
        A(f'v_pk_fma_f32 v[26:27], v[{XF+2*u}:{XF+2*u+1}], v[{XF+2*u}:{XF+2*u+1}], v[26:27]')
        A(f'v_pk_fma_f32 v[24:25], v[{XF+2*u+2}:{XF+2*u+3}], v[{XF+2*u+2}:{XF+2*u+3}], v[24:25]')
    A('v_pk_add_f32 v[26:27], v[26:27], v[24:25]')
    A('v_add_f32 v26, v26, v27')
    for u in range(14):
        A(f'v_cvt_pk_bf16_f32 v{XR+u}, v{XF+2*u}, v{XF+2*u+1}')
    allsum(26)
    A(f'''
    v_mul_f32 v26, {f32(1/448)}, v26
    v_fma_f32 v26, -v22, v22, v26            ; var
    v_max_f32 v26, 0, v26
    v_cvt_pk_bf16_f32 v26, v26, v26
    v_and_b32 v26, 0xffff0000, v26           ; bf16(var)
    v_add_f32 v26, {f32(1e-5)}, v26
    v_cvt_pk_bf16_f32 v26, v26, v26
    v_and_b32 v26, 0xffff0000, v26
    v_sqrt_f32 v26, v26
    v_cvt_pk_bf16_f32 v26, v26, v26
    v_and_b32 v26, 0xffff0000, v26
    v_rcp_f32 v26, v26
    ''')
    for u in range(14):
        A(f'v_lshlrev_b32 v{XF+2*u}, 16, v{XR+u}')
        A(f'v_and_b32 v{XF+2*u+1}, 0xffff0000, v{XR+u}')
    for u in range(14):
        A(f'v_pk_mul_f32 v[{XF+2*u}:{XF+2*u+1}], v[{XF+2*u}:{XF+2*u+1}], v[26:27] op_sel_hi:[1,0]')
    for u in range(14):
        A(f'v_cvt_pk_bf16_f32 v{XR+u}, v{XF+2*u}, v{XF+2*u+1}')
    for u in range(7):
        A(f'ds_write_b64 v3, v[{XR+2*u}:{XR+2*u+1}] offset:{128*u}')
    for s_ in range(2):
        for ks in range(3):
            A(f'ds_read2_b64 v[{XB+14*s_+4*ks}:{XB+14*s_+4*ks+3}], v{4+s_} offset0:{8*ks} offset1:{8*ks+4}')
        A(f'ds_read_b64 v[{XB+14*s_+12}:{XB+14*s_+13}], v{4+s_} offset:192')
    def mm(s_):
        for ks in range(4):
            for T in range(4):
                acc = 32 + 16*s_ + 4*T
                xa = XB + 14*s_ + 4*ks; bb = WF + 14*T + 4*ks
                c = '0' if ks == 0 else f'v[{acc}:{acc+3}]'
                if ks < 3: A(f'v_mfma_f32_16x16x32_bf16 v[{acc}:{acc+3}], v[{xa}:{xa+3}], v[{bb}:{bb+3}], {c}')
                else: A(f'v_mfma_f32_16x16x16_bf16 v[{acc}:{acc+3}], v[{xa}:{xa+1}], v[{bb}:{bb+1}], {c}')
    hstamp(2)
    A('s_waitcnt lgkmcnt(0)')
    mm(0)
    wreads(1)
    A(f'''
    s_mov_b32 s58, {0 if forceslow else 1}
    s_movk_i32 s63, {xtries}
    L_xc:
    s_waitcnt vmcnt(0)
    v_cmp_ne_u32 vcc, s46, v161
    s_cbranch_vccz L_xc_done
    global_load_dword v161, v160, s[36:37] sc1
    s_sub_u32 s63, s63, 1
    s_cbranch_scc0 L_xc
    s_mov_b32 s58, 0
    L_xc_done:
    s_waitcnt lgkmcnt(0)
    ''')
    mm(1)
    A(f'''
    s_add_u32 s60, s65, {8*12288}
    s_add_u32 s61, s65, {16*12288}
    s_add_u32 s63, s65, {24*12288}
    v_lshlrev_b32 v163, 16, v163
    ''')
    for s_ in range(2):
        a_ = 32 + 16*s_
        for r in range(4):
            A(f'v_cndmask_b32 v{a_+12+r}, v{a_+12+r}, v{a_+8+r}, s[12:13]')
        for r in range(4):
            A(f'v_cndmask_b32 v{a_+12+r}, v{a_+12+r}, v{a_+4+r}, s[10:11]')
        for r in range(4):
            A(f'v_cndmask_b32 v{8+2*r+s_}, v{a_+12+r}, v{a_+r}, s[8:9]')
    so4 = ('s65', 's60', 's61', 's63')
    A('s_cmp_lt_u32 s6, 2')
    A('s_cbranch_scc1 L_pubq')
    for r in range(8):
        A(f'v_bfi_b32 v{8+r}, s47, v28, v{8+r}')
    store2([f'buffer_store_dwordx2 v[{8+2*r}:{9+2*r}], v29, s[40:43], {so4[r]} offen' for r in range(4)])
    A('s_branch L_pubd')
    A('L_pubq:')
    for r in range(4):
        A(f'v_add_f32 v{8+2*r}, v{8+2*r}, v{9+2*r}')
    for r in range(4):
        A(f'v_bfi_b32 v{8+2*r}, s47, v28, v{8+2*r}')
    store2([f'buffer_store_dword v{8+2*r}, v6, s[40:43], {so4[r]} offen' for r in range(4)])
    A('L_pubd:')
    hstamp(3)
    def gather(lab, n, soffs):
        A(f's_mov_b32 s63, {SPIN}\n{lab}:\ns_sleep {psleep}')
        for k in range(n):
            A(f'buffer_load_dwordx4 v[{32+4*k}:{35+4*k}], v7, s[40:43], {soffs[k>>2]} offen offset:{(k&3)*1024}{pollf}')
        A(f'''
        s_sub_u32 s63, s63, 1
        s_waitcnt vmcnt(0)
        s_cbranch_scc1 {lab}_done
        v_xor_b32 v24, v32, v28
        v_xor_b32 v25, v33, v28
        ''')
        for r in range(34, 32 + 4*n, 2):
            A(f'v_bitop3_b32 v24, v{r}, v28, v24 bitop3:0xbe')
            A(f'v_bitop3_b32 v25, v{r+1}, v28, v25 bitop3:0xbe')
        A(f'''
        v_or_b32 v24, v24, v25
        v_and_b32 v24, s47, v24
        v_cmp_ne_u32 vcc, 0, v24
        s_cbranch_vccnz {lab}
        {lab}_done:
        ''')
    gather('L_gq', 4, ['s67'])
    A(f'''
    v_pk_add_f32 v[32:33], v[32:33], v[40:41]
    v_pk_add_f32 v[34:35], v[34:35], v[42:43]
    v_pk_add_f32 v[36:37], v[36:37], v[44:45]
    v_pk_add_f32 v[38:39], v[38:39], v[46:47]
    v_add_u32 v24, {QL}, v29
    v_cvt_pk_bf16_f32 v8, v32, v33
    v_cvt_pk_bf16_f32 v9, v34, v35
    v_cvt_pk_bf16_f32 v10, v36, v37
    v_cvt_pk_bf16_f32 v11, v38, v39
    ds_write_b64 v24, v[8:9]
    ds_write_b64 v24, v[10:11] offset:512
    ds_write_b32 v31, v30 offset:{FLQ-MISC}
    v_mov_b32 v27, v28
    ''')
    hstamp(6)
    A('s_add_u32 s60, s67, 4096\ns_add_u32 s61, s67, 8192')
    gather('L_gh', 8, ['s60', 's61'])
    for k in range(4):
        A(f'v_pk_add_f32 v[{32+2*k}:{33+2*k}], v[{32+2*k}:{33+2*k}], v[{40+2*k}:{41+2*k}]')
        A(f'v_pk_add_f32 v[{48+2*k}:{49+2*k}], v[{48+2*k}:{49+2*k}], v[{56+2*k}:{57+2*k}]')
    for k in range(4):
        A(f'v_pk_add_f32 v[{32+2*k}:{33+2*k}], v[{32+2*k}:{33+2*k}], v[{48+2*k}:{49+2*k}]')
    for k in range(4):
        A(f'v_cvt_pk_bf16_f32 v{33+2*k}, v{32+2*k}, v{33+2*k}')
        A(f'v_lshlrev_b32 v{32+2*k}, 16, v{33+2*k}')
        A(f'v_and_b32 v{33+2*k}, 0xffff0000, v{33+2*k}')
        A(f'v_max_f32 v{32+2*k}, 0, v{32+2*k}')
        A(f'v_mul_f32 v{32+2*k}, v{32+2*k}, v{33+2*k}')
    A(f'''
    v_cvt_pk_bf16_f32 v8, v32, v34
    v_cvt_pk_bf16_f32 v9, v36, v38
    v_add_u32 v24, {HL}, v6
    ds_write2st64_b32 v24, v8, v9 offset0:0 offset1:1
    ''')
    hstamp(5)
    if gov:
        A(f'''
        s_lshr_b32 s60, s2, 3
        s_lshl_b32 s60, s60, 7
        s_add_u32 s60, s60, {TK2}
        s_add_u32 s32, s38, s60
        s_addc_u32 s33, s39, 0
        v_mov_b32 v56, s60
        v_not_b32 v57, v28
        s_mov_b64 exec, 1
        buffer_store_byte v57, v56, s[40:43], s4 offen sc1
        s_mov_b64 exec, -1
        s_lshl_b32 s60, s4, 3
        s_lshl_b64 s[30:31], 0xff, s60
        ''')
    if fin != 'D':
        A(f'''
        s_cmp_eq_u32 s5, 7
        s_cbranch_scc1 L_notk
        s_lshl_b32 s60, s64, 7
        s_add_u32 s60, s60, {TK}
        v_mov_b32 v56, s60
        v_not_b32 v57, v28
        s_mov_b64 exec, 1
        buffer_store_byte v57, v56, s[40:43], s4 offen sc1
        s_mov_b64 exec, -1
        L_notk:
        ''')
    A(f'''
    v_mov_b32 v32, -1
    v_mov_b32 v33, -1
    v_mov_b32 v34, -1
    v_mov_b32 v35, -1
    s_lshl3_add_u32 s60, s56, s5
    s_lshl_b32 s60, s60, 10
    s_add_u32 s60, s60, {P1}
    ''')
    store2(['buffer_store_dwordx4 v[32:35], v7, s[40:43], s60 offen'])
    A('s_waitcnt vmcnt(0)')
    cntwait(CNT, 'L_wc', 4, govn if gov else 8)
    if gov:
        tbl = sum(n << (4*(k+1)) for k, n in enumerate(gov))
        A(f'''
        s_atomic_xor_x2 s[30:31], s[32:33], 0 glc
        s_and_b32 s60, s62, 0xff
        s_mul_i32 s26, s60, 0x01010101
        s_mov_b32 s27, s26
        s_mov_b32 s28, {tbl & 0xffffffff}
        s_mov_b32 s29, {tbl >> 32}
        s_waitcnt lgkmcnt(0)
        s_xor_b64 s[30:31], s[30:31], s[26:27]
        s_bcnt1_i32_b64 s60, s[30:31]
        s_lshr_b32 s60, s60, 3
        s_lshl_b32 s60, s60, 2
        s_lshr_b64 s[28:29], s[28:29], s60
        s_and_b32 s60, s28, 15
        v_mov_b32 v9, s60
        ds_write_b32 v31, v9 offset:{THR-MISC}
        ''')
        cntwait(CNT, 'L_wc2', 4)
    hstamp(7)
    A(f'''
    ; workgroup stats from the 8 waves (lane = h*8+w)
    v_lshlrev_b32 v8, 3, v2
    v_add_u32 v8, {STW}, v8
    ds_read_b64 v[4:5], v8
    s_lshl4_add_u32 s61, s5, s7
    v_mov_b32 v25, v28
    s_waitcnt lgkmcnt(0)
    v_max_f32_dpp v24, v4, v4 quad_perm:[1,0,3,2] row_mask:0xf bank_mask:0xf
    v_max_f32_dpp v24, v24, v24 quad_perm:[2,3,0,1] row_mask:0xf bank_mask:0xf
    v_max_f32_dpp v24, v24, v24 row_half_mirror row_mask:0xf bank_mask:0xf
    v_sub_f32 v26, v4, v24
    v_mul_f32 v26, {CEXP}, v26
    v_exp_f32 v26, v26
    v_mul_f32 v26, v26, v5
    v_add_f32_dpp v26, v26, v26 quad_perm:[1,0,3,2] row_mask:0xf bank_mask:0xf
    v_add_f32_dpp v26, v26, v26 quad_perm:[2,3,0,1] row_mask:0xf bank_mask:0xf
    v_add_f32_dpp v26, v26, v26 row_half_mirror row_mask:0xf bank_mask:0xf
    s_mov_b64 exec, 0x101
    ''')
    store2([f'buffer_store_dwordx4 v[24:27], v7, s[40:43], s61 offen'])
    A(f'''
    s_mov_b64 exec, 0xffff
    s_mov_b32 s63, {SPIN}
    L_polls:
    s_sleep {psleep}
    buffer_load_dwordx4 v[16:19], v7, s[40:43], s7 offen{pollf}
    s_sub_u32 s63, s63, 1
    s_waitcnt vmcnt(0)
    s_cbranch_scc1 L_polls_done
    v_min3_u32 v10, v17, v19, v28
    v_max3_u32 v11, v17, v19, v28
    v_cmp_ne_u32 vcc, v10, v11
    s_cbranch_vccnz L_polls
    L_polls_done:
    ''')
    hstamp(8)
    A(f'''
    v_max_f32_dpp v10, v16, v16 quad_perm:[1,0,3,2] row_mask:0xf bank_mask:0xf
    v_max_f32_dpp v10, v10, v10 quad_perm:[2,3,0,1] row_mask:0xf bank_mask:0xf
    v_max_f32_dpp v10, v10, v10 row_half_mirror row_mask:0xf bank_mask:0xf
    v_sub_f32 v11, v16, v10
    v_sub_f32 v10, v4, v10
    v_mul_f32 v11, {CEXP}, v11
    v_mul_f32 v10, {CEXP}, v10
    v_exp_f32 v11, v11
    v_exp_f32 v10, v10
    v_mul_f32 v11, v11, v18
    v_add_f32_dpp v11, v11, v11 quad_perm:[1,0,3,2] row_mask:0xf bank_mask:0xf
    v_add_f32_dpp v11, v11, v11 quad_perm:[2,3,0,1] row_mask:0xf bank_mask:0xf
    v_add_f32_dpp v11, v11, v11 row_half_mirror row_mask:0xf bank_mask:0xf
    v_rcp_f32 v11, v11
    v_mul_f32 v10, v10, v11                  ; factor for (wave = lane&7, head = lane>>3)
    v_and_b32 v9, 56, v29
    v_lshrrev_b32 v8, 1, v0
    v_and_b32 v8, 4, v8
    v_add3_u32 v9, v9, v8, v31
    v_subrev_u32 v9, {MISC-FACW}, v9
    ds_write_b32 v9, v10
    s_mov_b64 exec, -1
    v_mov_b32 v24, 1
    v_mov_b32 v25, s58
    v_mov_b32 v26, v28
    ds_write_b128 v31, v[24:27] offset:{FLF-MISC}
    s_cmp_eq_u32 s5, 7
    s_waitcnt lgkmcnt(0)
    {'' if early else 's_cbranch_scc1 ' + ('L_end' if pad else 'L_hdone')}
    ''')
    if dirty:
        A(f's_lshl_b32 s60, s2, 14\ns_add_u32 s60, s60, 0x400000\ns_mov_b32 s42, 0x1000000')
        for k in range(dirty):
            A(f'buffer_store_dwordx4 v[24:27], v7, s[40:43], s60 offen\ns_add_u32 s60, s60, 1024')
    if wb:
        A(f's_cmp_ge_u32 s2, {8*wb}\ns_cbranch_scc1 L_nowb\nbuffer_wbl2 sc1\ns_waitcnt vmcnt(0)\nL_nowb:')
    A(f'''
    v_mov_b32 v4, v162
    v_mov_b32 v5, v163
    s_mov_b64 s[52:53], s[34:35]
    s_movk_i32 s54, 3584
    s_mov_b32 s55, 0x20000
    s_lshl_b32 s60, s64, {11 if p2b else 12}
    s_add_u32 s60, s60, {P2}
    v_add_u32 v6, s60, {'v6' if p2b else 'v29'}
    v_lshlrev_b32 v7, 2, v0
    v_add_u32 v7, {YL}, v7
    ''')
    for i in range(8):
        A(f's_add_u32 s{18+i}, s4, {i}')
        A(f's_and_b32 s{18+i}, s{18+i}, 7')
        A(f's_lshl_b32 s{18+i}, s{18+i}, {8 if p2b else 9}')
    if fin == 'D':
        A(f'''
    s_waitcnt lgkmcnt(0)
    s_barrier                               ; #4
    ''')
        hstamp(9)
        A('s_call_b64 s[14:15], L_others')
        hstamp(10)
        if early:
            A(f'''
            s_waitcnt vmcnt(0) lgkmcnt(0)
            {'' if satom else 'v_readfirstlane_b32 s30, v58'}
            {'' if satom else 'v_readfirstlane_b32 s31, v59'}
            s_xor_b64 s[30:31], s[30:31], s[26:27]
            s_andn2_b64 s[30:31], s[30:31], s[28:29]
            s_cbranch_scc1 L_hdone
            ''')
            if early == 2:
                A(f'''
                s_mov_b64 exec, 0xff
                L_trig2:
                buffer_load_dwordx2 v[60:61], v62, s[40:43], 0 offen sc1
                s_sub_u32 s63, s63, 1
                s_waitcnt vmcnt(0)
                s_cbranch_scc1 L_trig2_done
                v_cmp_ne_u32 vcc, v61, v28
                s_cbranch_vccnz L_trig2
                L_trig2_done:
                s_mov_b64 exec, -1
                ''')
            for i in range(1, 8):
                A(f'buffer_load_dwordx2 v[{32+2*i}:{33+2*i}], v6, s[40:43], s{18+i} offen sc1')
        A(f'''
    s_barrier                               ; #5
    ds_read2st64_b32 v[48:49], v7 offset0:0 offset1:1
    ds_read2st64_b32 v[50:51], v7 offset0:2 offset1:3
    ds_read2st64_b32 v[52:53], v7 offset0:4 offset1:5
    ds_read2st64_b32 v[54:55], v7 offset0:6 offset1:7
    s_waitcnt lgkmcnt(2)
    v_add_f32 v48, v48, v49
    v_add_f32 v50, v50, v51
    s_waitcnt lgkmcnt(0)
    v_add_f32 v52, v52, v53
    v_add_f32 v54, v54, v55
    v_add_f32 v48, v48, v50
    v_add_f32 v52, v52, v54
    v_add_f32 v26, v48, v52
    s_cbranch_vccnz L_late
    ''')
    else:
        A(f'''
    s_lshl_b32 s60, s56, 13
    s_add_u32 s60, s60, {P1 + 8192 - 128}
    v_lshl_add_u32 v57, v0, 3, s60           ; last line of the group's O hand-off
    s_and_b32 s60, s62, 0xff
    s_mul_i32 s26, s60, 0x01010101
    s_mov_b32 s27, s26
    s_lshl_b32 s60, s4, 3
    s_lshl_b64 s[28:29], 0xff, s60
    {('buffer_load_dword v60, v6, s[40:43], s18 offen' if p2b else 'buffer_load_dwordx2 v[60:61], v6, s[40:43], s18 offen') if p2pre else ''}
    {'buffer_load_ushort v63, v4, s[52:55], 0 offen' if p2pre == 2 else ''}
    s_waitcnt lgkmcnt(0)
    v_mov_b32 v58, s28
    v_mov_b32 v59, s29
    v_mov_b32 v62, v57
    s_mov_b64 s[30:31], s[28:29]
    s_lshl_b32 s60, s64, 7
    s_add_u32 s60, s60, {TK}
    s_add_u32 s32, s38, s60
    s_addc_u32 s33, s39, 0
        ''')
        if early:
            A(f'''
            s_add_u32 s60, s7, 256
            v_lshl_add_u32 v57, v0, 2, s60
            s_lshl_b32 s61, s5, 2
            ''')
            cntwait(CNTV, 'L_wv', 1)
            A('s_mov_b64 exec, 1')
            store2(['buffer_store_dword v28, v57, s[40:43], s61 offen'])
            A(f'''
            s_cmp_eq_u32 s5, 7
            s_cbranch_scc1 {'L_end' if pad else 'L_hdone'}
            ''')
        A(f'''
    s_mov_b32 s63, {SPIN}
    s_barrier                               ; #4
        ''')
        hstamp(9)
        A(f'''
    s_mov_b64 exec, 0xffff
    L_trig:
    buffer_load_dword v61, v57, s[40:43], 0 offen sc1
    s_sub_u32 s63, s63, 1
    s_waitcnt vmcnt(0)
    s_cbranch_scc1 L_trig_done
    v_cmp_eq_u32 vcc, -1, v61
    s_cbranch_vccnz L_trig
    L_trig_done:
        ''')
        if satom:
            A('s_atomic_xor_x2 s[30:31], s[32:33], 0 glc\ns_mov_b64 exec, -1')
        else:
            A('''
            s_mov_b64 exec, 1
            buffer_atomic_xor_x2 v[58:59], v56, s[40:43], 0 offen sc0 sc1
            s_mov_b64 exec, -1
            ''')
        if spec:
            for i in range(1, 8):
                A(f'buffer_load_dwordx2 v[{32+2*i}:{33+2*i}], v6, s[40:43], s{18+i} offen sc1')
        hstamp(10)
        if early:
            A(f'''
            s_waitcnt vmcnt(0) lgkmcnt(0)
            {'' if satom else 'v_readfirstlane_b32 s30, v58'}
            {'' if satom else 'v_readfirstlane_b32 s31, v59'}
            s_xor_b64 s[30:31], s[30:31], s[26:27]
            s_andn2_b64 s[30:31], s[30:31], s[28:29]
            s_cbranch_scc1 L_hdone
            ''')
            if early == 2:
                A(f'''
                s_mov_b64 exec, 0xff
                L_trig2:
                buffer_load_dwordx2 v[60:61], v62, s[40:43], 0 offen sc1
                s_sub_u32 s63, s63, 1
                s_waitcnt vmcnt(0)
                s_cbranch_scc1 L_trig2_done
                v_cmp_ne_u32 vcc, v61, v28
                s_cbranch_vccnz L_trig2
                L_trig2_done:
                s_mov_b64 exec, -1
                ''')
            for i in range(1, 8):
                A(f'buffer_load_dwordx2 v[{32+2*i}:{33+2*i}], v6, s[40:43], s{18+i} offen sc1')
        A(f'''
    s_barrier                               ; #5
    ds_read2st64_b32 v[48:49], v7 offset0:0 offset1:1
    ds_read2st64_b32 v[50:51], v7 offset0:2 offset1:3
    ds_read2st64_b32 v[52:53], v7 offset0:4 offset1:5
    ds_read2st64_b32 v[54:55], v7 offset0:6 offset1:7
    s_waitcnt lgkmcnt(2)
    v_add_f32 v48, v48, v49
    v_add_f32 v50, v50, v51
    s_waitcnt lgkmcnt(0)
    v_add_f32 v52, v52, v53
    v_add_f32 v54, v54, v55
    v_add_f32 v48, v48, v50
    v_add_f32 v52, v52, v54
    v_add_f32 v26, v48, v52
        ''')
        if not early:
            A(f'''
    {'' if satom else f's_waitcnt vmcnt({7 if spec else 0})'}
    {'' if satom else 'v_readfirstlane_b32 s30, v58'}
    {'' if satom else 'v_readfirstlane_b32 s31, v59'}
    s_xor_b64 s[30:31], s[30:31], s[26:27]
    s_andn2_b64 s[30:31], s[30:31], s[28:29]
    s_cbranch_scc1 L_hdone
        ''')
        hstamp(13)
        A(f'''
    s_mov_b32 s63, {SPIN}
    {'s_branch L_fchk' if (spec or early) else ''}
    L_fpoll:
        ''')
        for i in range(1, 8):
            if p2b: A(f'buffer_load_dword v{32+2*i}, v6, s[40:43], s{18+i} offen sc1')
            else: A(f'buffer_load_dwordx2 v[{32+2*i}:{33+2*i}], v6, s[40:43], s{18+i} offen sc1')
        A(f'''
    L_fchk:
    s_sub_u32 s63, s63, 1
    s_waitcnt vmcnt(0)
    s_cbranch_scc1 L_fsum
        ''')
        if p2b:
            A('''
            v_xor_b32 v12, v34, v28
            v_xor_b32 v13, v36, v28
            v_bitop3_b32 v12, v38, v28, v12 bitop3:0xbe
            v_bitop3_b32 v13, v40, v28, v13 bitop3:0xbe
            v_bitop3_b32 v12, v42, v28, v12 bitop3:0xbe
            v_bitop3_b32 v13, v44, v28, v13 bitop3:0xbe
            v_bitop3_b32 v12, v46, v28, v12 bitop3:0xbe
            v_or_b32 v12, v12, v13
            v_and_b32 v12, s47, v12
            v_cmp_ne_u32 vcc, 0, v12
            ''')
        else:
            A('''
    v_min3_u32 v12, v35, v37, v39
    v_max3_u32 v13, v35, v37, v39
    v_min3_u32 v12, v12, v41, v43
    v_max3_u32 v13, v13, v41, v43
    v_min3_u32 v12, v12, v45, v47
    v_max3_u32 v13, v13, v45, v47
    v_min_u32 v12, v12, v28
    v_max_u32 v13, v13, v28
    v_cmp_ne_u32 vcc, v12, v13
            ''')
        A(f'''
    s_cbranch_vccnz L_fpoll
    L_fsum:
    v_add_f32 v34, v34, v36
    v_add_f32 v38, v38, v40
    v_add_f32 v42, v42, v44
    v_add_f32 v46, v46, v5
    v_add_f32 v34, v34, v38
    v_add_f32 v42, v42, v46
    v_add_f32 v34, v34, v42
        ''')
    A(f'''
    L_finish:
    v_add_f32 v34, v34, v26
    v_cvt_pk_bf16_f32 v34, v34, v34
    buffer_store_short v34, v4, s[52:55], 0 offen{outf}
    ''')
    hstamp(11)
    if stamps and 14 in hl:
        A(f's_sub_u32 s60, {SPIN}, s63\ns_mul_i32 s60, s60, 100\ns_add_u32 s60, s68, s60\ns_addc_u32 s61, s69, 0\nv_writelane_b32 v164, s60, 14\nv_writelane_b32 v165, s61, 14')
    A(f'''
    s_cmp_lg_u32 s64, 21
    s_cbranch_scc1 L_hdone
    s_mov_b64 exec, 1
    v_mov_b32 v1, {EPOCH}
    buffer_store_dword v28, v1, s[40:43], 0 offen
    L_hdone:
    ''')
    if padat == 'hz': A('s_waitcnt vmcnt(0)\ns_memrealtime s[100:101]\ns_waitcnt lgkmcnt(0)')
    if pad and padat[0] == 'h': dopad('L_padh')
    if stamps:
        A('s_waitcnt vmcnt(0)')
        hstamp(12)
        A('''
        s_memtime s[92:93]
        s_waitcnt lgkmcnt(0)
        s_sub_u32 s92, s92, s94
        s_sub_u32 s93, s100, s96
        v_cvt_f32_u32 v1, s92
        v_cvt_f32_u32 v2, s93
        v_rcp_f32 v2, v2
        v_mul_f32 v1, v1, v2
        v_mul_f32 v1, 0x42c80000, v1
        v_cvt_u32_f32 v1, v1
        v_readfirstlane_b32 s92, v1
        s_add_u32 s92, s92, s68
        s_addc_u32 s93, s69, 0
        v_writelane_b32 v164, s92, 15
        v_writelane_b32 v165, s93, 15
        ''')
        A(f'''
        s_mov_b64 exec, 0xffff
        s_lshl_b32 s60, s2, 9
        s_add_u32 s60, s60, {STAMPS+256}
        buffer_store_dwordx2 v[164:165], v29, s[40:43], s60 offen
        ''')
    A(f'''
    L_end:
    s_endpgm
    ''')
    if fin != 'D':
        pass
    else:
        A(f'''
    L_late:
    buffer_store_dwordx2 v[26:27], v6, s[40:43], s18 offen sc1
    s_call_b64 s[14:15], L_others
    s_cbranch_vccz L_finish
    s_call_b64 s[14:15], L_others
    s_cbranch_vccz L_finish
    s_branch L_hdone
    L_others:
    ''')
        for i in range(1, 8):
            A(f'buffer_load_dwordx2 v[{32+2*i}:{33+2*i}], v6, s[40:43], s{18+i} offen sc1')
        A(f'''
    s_waitcnt vmcnt(0)
    v_min3_u32 v12, v35, v37, v39
    v_max3_u32 v13, v35, v37, v39
    v_min3_u32 v12, v12, v41, v43
    v_max3_u32 v13, v13, v41, v43
    v_min3_u32 v12, v12, v45, v47
    v_max3_u32 v13, v13, v45, v47
    v_min_u32 v12, v12, v28
    v_max_u32 v13, v13, v28
    v_cmp_ne_u32 vcc, v12, v13
    v_add_f32 v34, v34, v36
    v_add_f32 v38, v38, v40
    v_add_f32 v42, v42, v44
    v_add_f32 v46, v46, v5
    v_add_f32 v34, v34, v38
    v_add_f32 v42, v42, v46
    v_add_f32 v34, v34, v42
    s_setpc_b64 s[14:15]
    ''')

    A(f'''
    L_stream:
    s_barrier
    s_add_u32 s12, s20, s57
    s_addc_u32 s13, s21, 0
    s_mov_b64 s[14:15], s[10:11]
    s_mov_b64 s[40:41], s[38:39]
    s_mov_b32 s42, {WSN}
    s_mov_b32 s43, s11
    v_mov_b32 v26, {MISC}
    ''')
    if fastmask:
        A(f'''
        s_getreg_b32 s60, hwreg(HW_REG_XCC_ID, 0, 3)
        s_bitcmp1_b32 {fastmask}, s60
        s_cselect_b64 vcc, -1, 0
        ''')
        vm.d = dthr
    if kfirst == 1: hb('K0', 0, k0thr)
    if kfirst == 2: ha('K1', 1, k0thr)
    A(f'''
    s_mov_b64 s[52:53], s[24:25]
    s_mov_b64 s[48:49], s[32:33]
    s_mov_b32 s51, s11
    s_mov_b32 s55, s11
    s_cmp_lt_u32 s5, 7
    s_cselect_b32 s54, {Z(4096*896)}, 0
    s_cselect_b32 s61, s5, 0
    s_lshl_b32 s61, s61, 7
    s_lshl4_add_u32 s64, s4, s3
    s_mul_i32 s64, s64, {32*896}
    s_add_u32 s64, s64, s61
    s_lshl3_add_u32 s65, s4, s3
    s_mul_i32 s65, s65, {32*896}
    s_add_u32 s65, s65, s61
    s_cmp_lt_u32 s7, 7
    s_cselect_b32 s50, {Z(1792*896)}, 0
    s_cselect_b32 s65, s65, 0
    v_and_b32 v1, 15, v0                     ; row
    v_lshrrev_b32 v2, 4, v0                  ; g
    v_and_b32 v3, 7, v0
    v_lshlrev_b32 v3, 1, v3
    v_xor_b32 v3, v3, v2
    v_lshlrev_b32 v3, 4, v3
    v_lshl_add_u32 v3, v1, 9, v3
    v_add_u32 v8, s59, v3
    v_xor_b32 v9, 64, v8
    v_xor_b32 v10, 0x80, v8
    v_xor_b32 v11, 0xc0, v8
    ''')
    def readK(dst, slot):
        for t in range(8):
            A(f'ds_read_b128 v[{dst+4*t}:{dst+4*t+3}], v{vKA[t&3]} offset:{slot*8192 + (t>>2)*256}')
    def readQ(dst, ts):
        for n, t in enumerate(ts):
            A(f'ds_read_b128 v[{dst+4*n}:{dst+4*n+3}], v24 offset:{t*64}')
    def qk(tile, src, qf, ts=range(8)):
        for n, t in enumerate(ts):
            c = '0' if t == 0 else f'v[{Sx+4*tile}:{Sx+4*tile+3}]'
            A(f'v_mfma_f32_16x16x32_bf16 v[{Sx+4*tile}:{Sx+4*tile+3}], v[{src+4*t}:{src+4*t+3}], v[{qf+4*n}:{qf+4*n+3}], {c}')
    def flagwait(off, lab):
        if nohelp:
            A(f'{lab}_done:')
            return
        A(f'''
        s_mov_b32 s61, {SPIN*8}
        {lab}:
        ds_read_b32 v1, v26 offset:{off-MISC}
        s_sub_u32 s61, s61, 1
        s_waitcnt lgkmcnt(0)
        s_cbranch_scc1 {lab}_done
        v_readfirstlane_b32 s67, v1
        s_cmp_lg_u32 s67, 0
        s_cbranch_scc1 {lab}_done
        s_sleep 1
        s_branch {lab}
        {lab}_done:
        ''')
    vm.wait('small')
    A(f'''
    s_mov_b64 exec, 1
    ds_add_u32 v26, v28 offset:{CNT0-MISC}
    s_mov_b64 exec, -1
    ''')
    stamp(2)
    if not (kfirst or xlast == 2): hb('K0', 0)
    if kfirst != 2: ha('K1', 1)
    if kfirst != 2: vm.wait('K0')
    readK(KfA, 0)
    A(f'''
    v_lshrrev_b32 v21, 2, v0                 ; row = l/4
    v_and_b32 v22, 7, v21
    v_lshlrev_b32 v22, 5, v22
    v_lshl_add_u32 v22, v21, 9, v22
    v_and_b32 v23, 3, v0
    v_lshl_add_u32 v22, v23, 3, v22
    v_add_u32 v12, s59, v22
    ''')
    for t in range(1, 8):
        A(f'v_xor_b32 v{12+t}, {t*32}, v12')
    A(f'''
    v_and_b32 v24, 1, v0
    v_lshlrev_b32 v25, 6, v24                ; head*64
    v_lshlrev_b32 v24, 9, v24
    v_lshl_add_u32 v24, v2, 4, v24
    v_add_u32 v24, {QL}, v24
    s_lshl_b32 s60, s3, 3
    s_add_u32 s60, s60, {STW}
    v_add_u32 v25, s60, v25
    ''')
    hb('K1', 1)
    A('s_waitcnt lgkmcnt(0)')
    ha('K2', 0)
    vm.wait('K1')
    readK(KfB, 1)
    hb('K2', 0)
    A('s_waitcnt lgkmcnt(0)')
    ha('K3', 1)
    vm.wait('K2')
    if k3:
        readK(KfC, 0)
        hb('K3', 1)
        A('s_waitcnt lgkmcnt(0)')
        ha('V0', 0)
        vm.wait('K3')
        hb('V0', 0)
        stamp(3)
        if not nodep: flagwait(FLQ, 'L_wq')
        stamp(4)
        readQ(Pk, range(4))
        readQ(160, range(4, 6))
        A('s_waitcnt lgkmcnt(2)')
        for tile, src in enumerate((KfA, KfB, KfC)): qk(tile, src, Pk, range(4))
        readQ(Pk, range(6, 8))
        A('s_waitcnt lgkmcnt(2)')
        for tile, src in enumerate((KfA, KfB, KfC)): qk(tile, src, 160, range(4, 6))
        A('s_waitcnt lgkmcnt(0)')
        for tile, src in enumerate((KfA, KfB, KfC)): qk(tile, src, Pk, range(6, 8))
        readK(KfA, 1)
        readQ(KfB, range(8))
        A('s_waitcnt lgkmcnt(0)')
        issue('V1', 1, (0,))
        qk(3, KfA, KfB)
    else:
        hb('K3', 1)
        stamp(3)
        if not nodep: flagwait(FLQ, 'L_wq')
        stamp(4)
        readQ(KfC, range(8))
        A('s_waitcnt lgkmcnt(0)')
        qk(0, KfA, KfC)
        readK(KfA, 0)
        qk(1, KfB, KfC)
        A('s_waitcnt lgkmcnt(0)')
        qk(2, KfA, KfC)
        ha('V0', 0)
        vm.wait('K3')
        readK(KfB, 1)
        issue('V0', 0, (1,))
        A('s_waitcnt lgkmcnt(0)')
        qk(3, KfB, KfC)
    MK = 84
    A(f's_mov_b32 s{MK}, 0x00030003')
    A(f's_mov_b32 s{MK+1}, 0x00030003')
    for u in range(1, 8):
        A(f's_lshl_b64 s[{MK+2*u}:{MK+2*u+1}], s[{MK}:{MK+1}], {2*u}')
    A(f's_mov_b32 s63, {CEXP}')
    for i in range(8):
        a, b = Sx + 2*i, Sx + 2*i + 1
        A(f'v_cvt_pk_bf16_f32 v{b}, v{a}, v{b}')
        A(f'v_lshlrev_b32 v{a}, 16, v{b}')
        A(f'v_and_b32 v{b}, 0xffff0000, v{b}')
    A(f'v_max3_f32 v22, v{Sx}, v{Sx+1}, v{Sx+2}')
    for i in range(3, 15, 2):
        A(f'v_max3_f32 v22, v22, v{Sx+i}, v{Sx+i+1}')
    A(f'''
    v_max_f32 v22, v22, v{Sx+15}
    v_mov_b32 v1, v22
    v_permlane16_swap_b32 v22, v1
    v_max_f32 v22, v22, v1
    v_mov_b32 v1, v22
    v_permlane32_swap_b32 v22, v1
    v_max_f32 v22, v22, v1                   ; wave max per head
    ''')
    for i in range(16):
        A(f'v_sub_f32 v{Sx+i}, v{Sx+i}, v22')
    for i in range(16):
        A(f'v_mul_f32 v{Sx+i}, s63, v{Sx+i}')
    for i in range(16):
        A(f'v_exp_f32 v{Sx+i}, v{Sx+i}')
    for i in range(8):
        A(f'v_cvt_pk_bf16_f32 v{Pk+i}, v{Sx+2*i}, v{Sx+2*i+1}')
    for i in range(8):
        A(f'v_add_f32 v{Sx+i}, v{Sx+i}, v{Sx+8+i}')
    for i in range(4):
        A(f'v_add_f32 v{Sx+i}, v{Sx+i}, v{Sx+4+i}')
    A(f'''
    v_add_f32 v{Sx}, v{Sx}, v{Sx+2}
    v_add_f32 v{Sx+1}, v{Sx+1}, v{Sx+3}
    v_add_f32 v23, v{Sx}, v{Sx+1}
    v_mov_b32 v1, v23
    v_permlane16_swap_b32 v23, v1
    v_add_f32 v23, v23, v1
    v_mov_b32 v1, v23
    v_permlane32_swap_b32 v23, v1
    v_add_f32 v23, v23, v1                   ; wave sum per head
    s_mov_b64 exec, 3
    ds_write_b64 v25, v[22:23]
    s_mov_b64 exec, 1
    ds_add_u32 v26, v28 offset:{CNT-MISC}
    s_mov_b64 exec, -1
    ''')
    stamp(5)
    if not k3: ha('V1', 1)
    vWO, vWD, vOW, vOR, vP1s, vP1l, vYW, vHA = 22, 23, 24, 25, 27, 28, 29, 21
    vWA = [8, 9, 10, 11]
    A(f'''
    s_waitcnt lgkmcnt(0)
    s_movk_i32 s61, 896
    v_mad_u32_u24 v{vWD}, v{vR8}, s61, v{vCH}
    v_bfe_u32 v1, v0, 3, 1
    v_lshlrev_b32 v1, 8, v1
    v_and_b32 v3, 16, v0
    v_add_u32 v1, v1, v3
    v_lshrrev_b32 v3, 5, v0
    v_add_u32 v1, v1, v3
    v_mad_u32_u24 v{vWO}, v1, s61, v{vCH}
    v_lshrrev_b32 v1, 2, v0
    v_lshlrev_b32 v1, 7, v1
    v_bfe_u32 v2, v0, 3, 2
    v_lshl_add_u32 v1, v2, 5, v1
    v_and_b32 v2, 3, v0
    v_lshl_add_u32 v1, v2, 3, v1
    v_add_u32 v8, s59, v1
    v_xor_b32 v9, 32, v8
    v_xor_b32 v10, 64, v8
    v_xor_b32 v11, 0x60, v8
    v_lshlrev_b32 v1, 4, v0
    s_lshl_b32 s60, s3, 11
    s_add_u32 s60, s60, {AREA}
    v_add_u32 v{vOW}, s60, v1
    v_lshrrev_b32 v2, 4, v0                  ; g
    v_and_b32 v3, 15, v0                     ; c
    v_lshlrev_b32 v31, 12, v2                ; waves 2g, 2g+1
    v_lshl_add_u32 v31, v3, 4, v31
    s_lshl_b32 s60, s3, 8
    s_add_u32 s61, s60, {AREA}
    v_add_u32 v{vOR}, s61, v31
    s_add_u32 s61, s60, {YL}
    v_lshlrev_b32 v31, 2, v0
    v_add_u32 v{vYW}, s61, v31
    s_lshl3_add_u32 s60, s56, s3
    s_lshl_b32 s60, s60, 10
    s_add_u32 s60, s60, {P1}
    v_add_u32 v{vP1l}, s60, v1
    s_lshl4_add_u32 s61, s5, s60
    v_and_b32 v1, 3, v0
    v_lshlrev_b32 v1, 8, v1                  ; g*256
    v_and_b32 v3, 4, v0
    v_lshl_add_u32 v1, v3, 1, v1             ; half*8
    v_and_b32 v3, 8, v0
    v_lshl_add_u32 v1, v3, 4, v1             ; ks*128
    v_add_u32 v{vP1s}, s61, v1
    s_lshl_b32 s60, s3, 6
    s_add_u32 s60, s60, {HL}
    v_lshlrev_b32 v1, 3, v2
    v_add_u32 v{vHA}, s60, v1
    v_lshlrev_b32 v31, 4, v2
    v_add_u32 v31, {FACW}, v31
    s_mul_i32 s60, s6, 7
    s_add_u32 s60, s60, s5
    s_lshl3_add_u32 s60, s60, s4
    s_lshl_b32 s60, s60, {8 if p2b else 9}
    s_add_u32 s60, s60, {P2}
    v_lshl_add_u32 v30, v0, {2 if p2b else 3}, s60
    s_movk_i32 s66, 0xff
    ''')
    Vf = KfA; Mk = KfB
    WOf, WDf = KfC, Sx
    PL = 64
    def masks(i):
        M = Mk + 16*(i & 1)
        for u in range(8):
            A(f'v_cndmask_b32 v{M+2*u}, 0, v{Pk+2*i}, s[{MK+2*u}:{MK+2*u+1}]')
            A(f'v_cndmask_b32 v{M+2*u+1}, 0, v{Pk+2*i+1}, s[{MK+2*u}:{MK+2*u+1}]')
    def pv(i, slot, mid=None):
        M = Mk + 16*(i & 1)
        def rd(t): A(f'ds_read_b64_tr_b16 v[{Vf+2*t}:{Vf+2*t+1}], v{vVA[t&7]} offset:{slot*8192 + (t>>3)*256}')
        def mf(ii):
            acc = Oa + 4*(ii >> 2)
            c = '0' if (i == 0 and (ii & 3) == 0) else f'v[{acc}:{acc+3}]'
            A(f'v_mfma_f32_16x16x32_bf16 v[{acc}:{acc+3}], v[{M+4*(ii&3)}:{M+4*(ii&3)+3}], v[{Vf+4*ii}:{Vf+4*ii+3}], {c}')
        if ilv and i == 3 and mid is None:
            for t in range(8): rd(t)
            for ii in range(8):
                A(f's_waitcnt lgkmcnt({min(6, 14-2*ii)})')
                mf(ii)
                if ii < 4: rd(8+2*ii); rd(9+2*ii)
                if wlast == 6 and ii >= 4:
                    A(f's_add_u32 m0, s59, {8192 + ii*1024}')
                    A(f's_add_u32 s60, s64, {ii*2*896}')
                    A(f'buffer_load_dwordx4 v{vWO}, s[52:55], s60 offen{wnt} lds')
                    vm.add('WO', 1)
                if wlast == 3:
                    A(f's_add_u32 m0, s59, {8192 + ii*1024}')
                    A(f's_add_u32 s60, s64, {ii*2*896}')
                    A(f'buffer_load_dwordx4 v{vWO}, s[52:55], s60 offen{wnt} lds')
            if wlast == 3: vm.add('WO', 8)
            return
        for t in range(16): rd(t)
        if mid: mid()
        for ii in range(8):
            A(f's_waitcnt lgkmcnt({14-2*ii})')
            mf(ii)
    def issueW(p, slot, t=None, wdoff=0):
        vm.upto(thr if t is None else t)
        for k in range(4):
            if p < 2:
                A(f's_add_u32 m0, s59, {slot*8192 + (4*p+k)*1024}')
                A(f's_add_u32 s60, s64, {(4*p+k)*2*896}')
                A(f'buffer_load_dwordx4 v{vWO}, s[52:55], s60 offen{wnt} lds')
            else:
                A(f's_add_u32 m0, s59, {slot*8192 + wdoff + k*1024}')
                A(f's_add_u32 s60, s65, {k*8*896}')
                A(f'buffer_load_dwordx4 v{vWD}, s[48:51], s60 offen{wnt} lds')
        vm.add('WO' if p < 2 else 'WD', 4)
    def readWO(slot, kss=(0, 1)):
        for ks in kss:
            for T in range(4):
                for half in range(2):
                    d = WOf + 16*ks + 4*T + 2*half
                    A(f'ds_read_b64_tr_b16 v[{d}:{d+1}], v{vWA[T]} offset:{slot*8192 + ks*4096 + half*2048}')
    def readWD(slot, wdoff=0):
        for T in range(4):
            for half in range(2):
                A(f'ds_read_b64_tr_b16 v[{WDf+4*T+2*half}:{WDf+4*T+2*half+1}], v{vWA[T]} offset:{slot*8192 + wdoff + half*2048}')
    def pretouch():
        if p1pre == 2:
            A(f's_lshl_b32 s60, s5, 8\ns_mov_b64 exec, 0x101\nbuffer_load_dword v160, v{vP1l}, s[40:43], s60 offen{pref}\ns_mov_b64 exec, -1')
            vm.add('pre', 1)
            return
        for q in range(2):
            if p1pre: A(f'buffer_load_dwordx4 v[160:163], v{vP1l}, s[40:43], 0 offen offset:{q*1024}{pref}')
        vm.add('pre', 2 if p1pre else 0)
    masks(0)
    vm.wait('V0')
    pv(0, 0)
    masks(1)
    hb('V1', 1)
    if not wlast:
        issueW(0, 0)
        vm.wait('V1')
        pv(1, 1)
        issueW(1, 0)
        issueW(2, 1)
        masks(2)
        vm.wait('WO')
        readWO(0)
        A('s_waitcnt lgkmcnt(0)')
        issue('V2', 0, (0,))
        vm.wait('WD')
        readWD(1)
        hb('V2', 0)
        pretouch()
        A('s_waitcnt lgkmcnt(0)')
        ha('V3', 1, thr + 2)
        vm.wait('V2')
        pv(2, 0, lambda: issue('V3', 1, (1,)))
        s3 = 1
    elif wlast in (5, 6):
        issueW(0, 0)
        vm.wait('V1')
        pv(1, 1)
        issueW(2, 0, None, 4096)
        ha('V2', 1)
        masks(2)
        vm.wait('WD')
        readWO(0, (0,))
        readWD(0, 4096)
        hb('V2', 1)
        pretouch()
        A('s_waitcnt lgkmcnt(0)')
        ha('V3', 0, v3thr)
        vm.wait('V2')
        pv(2, 1, lambda: issue('V3', 0, (1,)))
        s3 = 0
    else:
        issueW(2, 0)
        vm.wait('V1')
        pv(1, 1)
        ha('V2', 1)
        masks(2)
        vm.wait('WD')
        readWD(0)
        hb('V2', 1)
        pretouch()
        A('s_waitcnt lgkmcnt(0)')
        ha('V3', 0, v3thr)
        vm.wait('V2')
        pv(2, 1, lambda: issue('V3', 0, (1,)))
        s3 = 0
    masks(3)
    flagwait(FLF, 'L_wf')
    FC = 160
    A(f'''
    ds_read_b128 v[4:7], v26 offset:{FLF-MISC}
    ds_read2_b64 v[64:67], v{vHA} offset0:0 offset1:4
    s_mov_b32 s{MK}, 0x00010001
    s_mov_b32 s{MK+1}, 0x00010001
    s_mov_b32 s{MK+2}, 0x01000100
    s_mov_b32 s{MK+3}, 0x01000100
    s_mov_b32 s{MK+4}, 0x00ff00ff
    s_mov_b32 s{MK+5}, 0x00ff00ff
    ''')
    vm.wait('pre')
    A(f'''
    ds_read_b128 v[{FC}:{FC+3}], v31
    s_waitcnt lgkmcnt(0)
    v_readfirstlane_b32 s63, v5
    v_mov_b32 v{vTAG}, v6
    v_mov_b32 v5, v6
    ''')
    FA = 144
    for r in range(4):
        A(f'v_cndmask_b32 v{68+r}, 0, v{64+r}, s[{MK}:{MK+1}]')
        A(f'v_cndmask_b32 v{72+r}, 0, v{64+r}, s[{MK+2}:{MK+3}]')
    A(f'''
    v_mfma_f32_16x16x32_bf16 v[{FA}:{FA+3}], v[68:71], v[{WDf}:{WDf+3}], 0
    v_mfma_f32_16x16x32_bf16 v[{FA+4}:{FA+7}], v[68:71], v[{WDf+4}:{WDf+7}], 0
    v_mfma_f32_16x16x32_bf16 v[{FA}:{FA+3}], v[72:75], v[{WDf+8}:{WDf+11}], v[{FA}:{FA+3}]
    v_mfma_f32_16x16x32_bf16 v[{FA+4}:{FA+7}], v[72:75], v[{WDf+12}:{WDf+15}], v[{FA+4}:{FA+7}]
    s_mov_b32 s62, {SPIN}
    ''')
    if wlast in (1, 2):
        issueW(0, 1, wthr)
        if wlast == 1: issueW(1, 1, wthr + 2)
    if early: A('v_mov_b32 v1, 1\ns_mov_b64 exec, 1')
    vm.wait('V3')
    if early: A(f'ds_add_u32 v26, v1 offset:{CNTV-MISC}\ns_mov_b64 exec, -1')
    stamp(6)
    pv(3, s3, (lambda: issueW(1, 1, 99)) if wlast == 2 else None)
    A(f'''
    ds_write_b128 v{vOW}, v[{Oa}:{Oa+3}]
    ds_write_b128 v{vOW}, v[{Oa+4}:{Oa+7}] offset:1024
    ''')
    if wlast == 4:
        issueW(0, 1, 99); issueW(1, 1, 99)
    if wlast == 5: issueW(1, 1, 99)
    A('s_waitcnt lgkmcnt(0)')
    stamp(7)
    A(f'''
    s_barrier                               ; #4: O partials
    ds_read_b128 v[32:35], v{vOR}
    ds_read_b128 v[36:39], v{vOR} offset:2048
    s_cmp_eq_u32 s63, 0
    s_waitcnt lgkmcnt(1)
    v_mul_f32 v32, v32, v{FC}
    v_mul_f32 v34, v34, v{FC}
    v_mul_f32 v33, v33, v{FC+1}
    v_mul_f32 v35, v35, v{FC+1}
    s_waitcnt lgkmcnt(0)
    v_fmac_f32 v32, v36, v{FC+2}
    v_fmac_f32 v34, v38, v{FC+2}
    v_fmac_f32 v33, v37, v{FC+3}
    v_fmac_f32 v35, v39, v{FC+3}
    v_permlane32_swap_b32 v32, v34
    v_permlane32_swap_b32 v33, v35
    v_add_f32 v36, v32, v34
    v_add_f32 v37, v33, v35
    v_add_f32 v32, v32, v34
    v_add_f32 v33, v33, v35
    v_permlane16_swap_b32 v32, v36
    v_permlane16_swap_b32 v33, v37
    v_add_f32 v32, v32, v36
    v_add_f32 v33, v33, v37
    v_cvt_pk_bf16_f32 v32, v32, v33
    v_min_u32 v6, -2, v32
    v_min_u32 v7, -2, v32
    v_permlane32_swap_b32 v6, v7
    s_mov_b64 exec, 0xffff
    s_cbranch_scc1 L_slowpub
    buffer_store_dwordx2 v[6:7], v{vP1s}, s[40:43], 0 offen
    L_pubdone:
    s_mov_b64 exec, -1
    ''')
    vm.add('pub', 1)
    stamp(8)
    A(f'''
    s_cmp_eq_u32 s5, 7
    s_cbranch_scc1 L_sdone
    ''')
    def polls():
        A(f'buffer_load_dwordx4 v[{PL}:{PL+3}], v{vP1l}, s[40:43], 0 offen sc1')
    if wlast:
        polls(); vm.add('poll', 1)
        vm.wait('WO')
        readWO(1, (1,) if wlast in (5, 6) else (0, 1))
        A('s_branch L_poll1_chk')
    A('L_poll1:')
    polls()
    A(f'''
    L_poll1_chk:
    s_sub_u32 s62, s62, 1
    s_waitcnt vmcnt(0)
    s_cbranch_scc1 L_poll1_done
    v_max3_u32 v1, v{PL}, v{PL+1}, v{PL+2}
    v_max_u32 v1, v1, v{PL+3}
    v_cmp_eq_u32 vcc, -1, v1
    {'s_mov_b64 exec, vcc' if mpoll else ''}
    {'' if nohelp else 's_cbranch_vccnz L_poll1'}
    L_poll1_done:
    {'s_mov_b64 exec, -1' if mpoll else ''}
    ''')
    stamp(9)
    LO, HI = 80, 88
    def omm(a, ks, T0):
        for x in range(2):
            acc = FA + 4*x
            bb = WOf + 16*ks + 4*(T0 + x)
            A(f'v_mfma_f32_16x16x32_bf16 v[{acc}:{acc+3}], v[{a}:{a+3}], v[{bb}:{bb+3}], v[{acc}:{acc+3}]')
    for q in range(4):
        A(f'v_cndmask_b32 v{LO+q}, 0, v{PL+q}, s[{MK+4}:{MK+5}]')
    for q in range(4):
        A(f'v_cndmask_b32 v{HI+4+q}, v{PL+q}, 0, s[{MK+4}:{MK+5}]')
    if wlast: A('s_waitcnt lgkmcnt(0)')
    omm(LO, 0, 0)
    for q in range(4):
        A(f'v_mov_b32_dpp v{HI+q}, v{PL+q} row_shr:8 row_mask:0xf bank_mask:0xf bound_ctrl:0')
    omm(HI+4, 1, 2)
    for q in range(4):
        A(f'v_mov_b32_dpp v{LO+4+q}, v{PL+q} row_shl:8 row_mask:0xf bank_mask:0xf bound_ctrl:0')
    omm(HI, 0, 2)
    omm(LO+4, 1, 0)
    A(f'''
    v_add_f32 v{FA}, v{FA}, v{FA+1}
    v_add_f32 v{FA+2}, v{FA+2}, v{FA+3}
    v_add_f32 v{FA+4}, v{FA+4}, v{FA+5}
    v_add_f32 v{FA+6}, v{FA+6}, v{FA+7}
    v_add_f32 v{FA}, v{FA}, v{FA+2}
    v_add_f32 v{FA+4}, v{FA+4}, v{FA+6}
    v_permlane16_swap_b32 v{FA}, v{FA+4}
    v_add_f32 v{FA}, v{FA}, v{FA+4}
    ds_write_b32 v{vYW}, v{FA}
    s_waitcnt lgkmcnt(0)
    ''')
    stamp(10)
    if fin != 'D': A('s_cmp_lg_u32 s3, 0')
    A('s_barrier                               ; #5')
    if fin != 'D':
        A(f'''
        s_cbranch_scc1 {'L_clean' if clean else 'L_sdone'}
        ds_read2st64_b32 v[48:49], v{vYW} offset0:0 offset1:1
        ds_read2st64_b32 v[50:51], v{vYW} offset0:2 offset1:3
        ds_read2st64_b32 v[52:53], v{vYW} offset0:4 offset1:5
        ds_read2st64_b32 v[54:55], v{vYW} offset0:6 offset1:7
        s_waitcnt lgkmcnt(2)
        v_add_f32 v48, v48, v49
        v_add_f32 v50, v50, v51
        s_waitcnt lgkmcnt(0)
        v_add_f32 v52, v52, v53
        v_add_f32 v54, v54, v55
        v_add_f32 v48, v48, v50
        v_add_f32 v52, v52, v54
        v_add_f32 v4, v48, v52
        {'v_bfi_b32 v4, s66, v5, v4' if p2b else ''}
        {'buffer_store_dword v4, v30, s[40:43], 0 offen sc1' if p2b else 'buffer_store_dwordx2 v[4:5], v30, s[40:43], 0 offen sc1'}
        ''')
        if stamps: A('s_waitcnt vmcnt(0)\ns_memrealtime s[70:71]')
        if clean:
            A(f'''
            L_clean:
            s_lshl_b32 s60, s5, 8
            s_cmp_eq_u32 s5, 6
            s_cselect_b32 s61, 0x1010101, 0x101
            s_mov_b32 exec_lo, s61
            s_mov_b32 exec_hi, 0
            buffer_store_dword v{vTAG}, v{vP1l}, s[40:43], s60 offen offset:4 sc1
            '''.replace('s_cselect_b32 s61, 0x1010101, 0x101', 's_movk_i32 s61, 0x101\ns_cselect_b32 s61, 0x1010101, s61'))
    if pad and padat[0] == 's': dopad('L_pads')
    A('L_sdone:')
    if stamps:
        A(f's_cmp_eq_u32 s3, 0')
        A('s_cbranch_scc1 L_dump0')
        A(f's_cmp_lg_u32 s3, 7')
        A('s_cbranch_scc1 L_end')
        dump_stamps(16, [sreg(k) for k in range(11)])
        A('s_endpgm')
        A('L_dump0:')
        dump_stamps(0, [sreg(k) for k in range(11)])
    A('s_endpgm')
    A(f'''
    L_slowpub:
    buffer_store_dwordx2 v[6:7], v{vP1s}, s[40:43], 0 offen sc1
    s_branch L_pubdone
    ''')
    A('.section .rodata,"a"')
    A('.p2align 6')
    A(f'.amdhsa_kernel {NAME}_kernel')
    A('.amdhsa_next_free_vgpr 168')
    A('.amdhsa_next_free_sgpr 102')
    A('.amdhsa_accum_offset 168')
    A('.amdhsa_group_segment_fixed_size 0')
    A('.amdhsa_kernarg_size 96')
    A('.amdhsa_user_sgpr_count 2')
    A('.amdhsa_user_sgpr_kernarg_segment_ptr 1')
    A('.amdhsa_system_sgpr_workgroup_id_x 1')
    A('.end_amdhsa_kernel')
    return top + A.finalize()

if __name__ == '__main__':
    out = sys.argv[1] if len(sys.argv) > 1 else f'cdna_kernels/{NAME}.s'
    kw = eval('dict(%s)' % sys.argv[2]) if len(sys.argv) > 2 else {}
    open(out, 'w').write(gen(**kw))
    print('wrote', out)
```

```python
import sys, struct, math
from asmlib import Asm
NAME = 'parallel_sum__sliding_block_cached__glu_gated_reglu__decode'

def f32(x): return '0x%08x' % struct.unpack('<I', struct.pack('<f', x))[0]

AREA = 131072
TAB = AREA + 16384
STW = TAB
FACW = TAB + 128
HL = TAB + 512
QL = TAB + 1024
YL = TAB + 2048
MISC = AREA + 28672
FLQ = MISC
CNT = MISC + 4
CNT0 = MISC + 12
FLF = MISC + 16
CNTV = MISC + 32
THR = MISC + 36
RANK = MISC + 40
NOPUB = MISC + 44
XN = MISC + 256
LDS_TOTAL = 163840
EPOCH = 0
ST = 0x3C000
TK2 = 0x2000
TK = 0x3000
P2 = 0x1C0000
P1 = 0x40000
QP = 0xC0000
WS_END = 0x1E0000
STAMPS = 0x300000
SPIN = 400000
CEXP = f32(math.log2(math.e)/16)

class VM:
    def __init__(self, A): self.A = A; self.q = []
    def add(self, name, n): self.q.append((name, n))
    def wait(self, name, extra=''):
        idx = max(i for i, (nm, _) in enumerate(self.q) if nm == name)
        n = sum(c for _, c in self.q[idx+1:])
        self.q = self.q[idx+1:]
        self.A(f's_waitcnt vmcnt({n}){extra}')
    d = 0; nl = 0; skip = False
    def upto(self, n):
        tot = sum(c for _, c in self.q)
        if self.skip and tot > n:
            self.nl += 1
            self.A(f's_cbranch_vccnz L_pc{self.nl}\ns_waitcnt vmcnt({n})\nL_pc{self.nl}:')
            return
        if tot > n: self.A(f's_waitcnt vmcnt({n})')
        if self.d and n < 50 and tot > max(n - self.d, 0):
            self.nl += 1
            self.A(f's_cbranch_vccz L_pc{self.nl}\ns_waitcnt vmcnt({max(n - self.d, 0)})\nL_pc{self.nl}:')

def gen(stamps=0, wnt='', snt=' nt', kvnt=' nt', forceslow=False, now=False, pad=0, padat=None, thr=1,
        hpre=3, psleep=32, xlast=0, xtries=12, sync=False, xs='rev', light=False, kfirst=True, k3=True, wlast=5, hs=None, wthr=4, fastmask=0, dthr=0, fh=(), fin='T', spec=False, fsleep=0, hl=(6, 12), early=False, satom=True, noxc=False, peek=2, catch=0, bent=None, lin=None, p2b=True, v3thr=2, k0thr=5, dirty=0, wb=0, clean=0, p2pre=1, outf='', perm=0, gov=None, govh=('V2a', 'V2b', 'V3a'), govn=4, ilv=True, mpoll=True, nohelp=False, nodep=False, tlb=False, presl=32, pref=' sc1', pollf=' sc1', p1pre=0, sl=(0, 6, 10)):
    A = Asm()
    def sreg(k): return 68 + 2*k if k < 3 else 16 + 2*(k-3)
    def stamp(k):
        if stamps and (not light or k in sl): A(f's_memrealtime s[{sreg(k)}:{sreg(k)+1}]')
        if padat == f's{k}': A('s_memrealtime s[100:101]')
    def hstamp(k):
        if nohelp and nohelp - 1 == k: A('s_endpgm')
        if stamps and (not light or k in hl):
            A(f's_memrealtime s[100:101]\ns_waitcnt lgkmcnt(0)\nv_writelane_b32 v164, s100, {k}\nv_writelane_b32 v165, s101, {k}')
        if padat == f'h{k}': A('s_memrealtime s[100:101]\ns_waitcnt lgkmcnt(0)')
    def dopad(lab):
        A(f'''
        {lab}:
        s_memrealtime s[98:99]
        s_waitcnt lgkmcnt(0)
        s_sub_u32 s98, s98, s100
        s_cmp_lt_u32 s98, {pad}
        s_cbranch_scc1 {lab}
        ''')
    def dump_stamps(slot0, regs_):
        A('s_waitcnt vmcnt(0) lgkmcnt(0)')
        A('s_mov_b64 exec, 1')
        A('s_lshl_b32 s60, s2, 9')
        A(f's_add_u32 s60, s60, {STAMPS}')
        A('v_mov_b32 v1, s60')
        for k, r in enumerate(regs_):
            A(f'v_mov_b32 v2, s{r}')
            A(f'v_mov_b32 v3, s{r+1}')
            A(f'buffer_store_dwordx2 v[2:3], v1, s[40:43], 0 offen offset:{8*(slot0+k)}')
    WSN = 0x400000 if stamps else WS_END
    Z = (lambda n: 0) if now else (lambda n: n)
    hdr = open('cdna_kernels/%s.s.ref' % NAME).read().split('; Override launch geometry')[0]
    top = hdr + f'; @launch grid=(256,1,1) block=(576,1,1) lds={LDS_TOTAL}\n'
    A('.amdgcn_target "amdgcn-amd-amdhsa--gfx950"')
    A('.text')
    A(f'.globl {NAME}_kernel')
    A('.p2align 8')
    A(f'.type {NAME}_kernel,@function')
    A(f'{NAME}_kernel:')
    if sync:
        A('''
        s_memrealtime s[4:5]
        s_waitcnt lgkmcnt(0)
        s_add_u32 s6, s4, 4096+600
        s_and_b32 s6, s6, -4096
        s_load_dwordx2 s[8:9], s[0:1], 88
        s_lshl_b32 s7, s2, 3
        s_add_u32 s7, s7, 0x380000
        v_mov_b32 v2, s4
        v_mov_b32 v3, s6
        v_mov_b32 v1, s7
        s_waitcnt lgkmcnt(0)
        global_store_dwordx2 v1, v[2:3], s[8:9] sc1
        s_waitcnt vmcnt(0)
        L_sync:
        s_memrealtime s[4:5]
        s_waitcnt lgkmcnt(0)
        s_sub_u32 s4, s4, s6
        s_cmp_lt_i32 s4, 0
        s_cbranch_scc1 L_sync
        s_branch L_go
        .p2align 10
        L_go:
        ''')
    if perm == 1:
        A('s_cmpk_ge_u32 s2, 256\ns_cbranch_scc1 L_end\ns_lshr_b32 s3, s2, 3\ns_and_b32 s3, s3, 7\ns_xor_b32 s2, s2, s3')
    if perm == 2:
        A('s_and_b32 s3, s2, -2\ns_cmp_eq_u32 s3, 74\ns_cselect_b32 s3, 1, 0\ns_xor_b32 s2, s2, s3')
    if padat == 'he': A('s_memrealtime s[100:101]')
    stamp(0)
    def msk(bits): return sum(1 << x for x in bits)
    def tmask(i, half):
        if not lin: return i*524288 + half*4096
        t = [msk(x) for x in lin['t']]
        return (t[0] if half else 0) ^ (t[1] if i & 1 else 0) ^ (t[2] if i & 2 else 0)
    lincode = ''
    if xs == 'rev':
        xs = None
        if not (lin or bent): lincode = 's_brev_b32 s62, s5\ns_lshr_b32 s62, s62, 10\ns_and_b32 s62, s62, 0x180000\ns_or_b32 s58, s58, s62\n'
    if lin:
        xs = None
        lincode = 's_mov_b32 s58, 0\n'
        for key, reg in (('w', 's3'), ('j', 's5'), ('h', 's4'), ('b', 's6')):
            for bit, m in enumerate(lin.get(key, [])):
                if m: lincode += f's_bitcmp1_b32 {reg}, {bit}\ns_cselect_b32 s62, {msk(m)}, 0\ns_xor_b32 s58, s58, s62\n'
    if bent:
        xs = None
        def gmul(a, b):
            r = 0
            for k in range(3):
                if b >> k & 1: r ^= a << k
            for k in (4, 3):
                if r >> k & 1: r ^= 0xb << (k - 3)
            return r
        for k, bit in enumerate(bent):
            if bit is None: continue
            m = sum((gmul(i >> 3, i & 7) >> k & 1) << i for i in range(64))
            lincode += f's_mov_b32 s76, {m & 0xffffffff}\ns_mov_b32 s77, {m >> 32}\ns_bitcmp1_b64 s[76:77], s66\ns_cselect_b32 s62, {1 << bit}, 0\ns_xor_b32 s58, s58, s62\n'
    vm = VM(A)
    vD = [4, 5, 6, 7]; vKA = [8, 9, 10, 11]; vVA = list(range(12, 20)); vTAG = 20
    KfA, KfB, KfC, Sx, Pk, Oa = 32, 64, 96, 128, 144, 152
    vCH, vR8 = 30, 31
    KS, VS = 's[8:11]', 's[12:15]'
    def issue(name, slot, halves=(0, 1)):
        srd = KS if name[0] == 'K' else VS
        i = int(name[1])
        for half in halves:
            first = (name == 'K0' and half == 0)
            hn = name + 'ab'[half]
            if gov and hn in govh:
                A(f'ds_read_b32 v1, v26 offset:{THR-MISC}\ns_waitcnt lgkmcnt(0)\nv_cmp_lt_u32 vcc, {govh.index(hn)}, v1')
            if not first:
                A(f's_xor_b32 m0, {"s74" if hs else "s59"}, {slot*8192 + half*4096}')
                A(f's_xor_b32 s60, s58, {tmask(i, half)}')
            for q in range(4):
                if q in (0, 2) and (hn in fh or (gov and hn in govh)):
                    A(f's_cbranch_vccz L_f{name}{half}{q}\ns_waitcnt vmcnt(1)\nL_f{name}{half}{q}:')
                A(f'buffer_load_dwordx4 v{vD[q]}, {srd}, {"s58" if first else "s60"} offen offset:{q*1024}{kvnt} lds')
            vm.add(name, 4)
    def ha(name, slot, t=None):
        vm.upto(thr if t is None else t); issue(name, slot, (0,))
    def hb(name, slot, t=None):
        vm.upto(thr if t is None else t); issue(name, slot, (1,))
    A(f'''
    s_load_dwordx16 s[16:31], s[0:1], 0
    s_load_dwordx8 s[32:39], s[0:1], 64
    v_readfirstlane_b32 s3, v0
    s_cmpk_ge_u32 s2, 256
    s_cbranch_scc1 L_end
    v_and_b32 v0, 63, v0                     ; lane
    s_lshr_b32 s3, s3, 6                     ; wave
    s_and_b32 s4, s2, 7                      ; hkv
    s_bfe_u32 s5, s2, 0x30003                ; j
    s_lshr_b32 s6, s2, 6                     ; b
    s_lshl3_add_u32 s56, s6, s4
    s_cmp_eq_u32 s3, 8
    s_cbranch_scc1 L_helper
    v_lshrrev_b32 v1, 4, v0
    v_and_b32 v1, 2, v1
    v_xor_b32 v1, v1, v0
    v_lshlrev_b32 v4, 4, v1
    v_xor_b32 v5, 64, v4
    v_xor_b32 v6, 0x80, v4
    v_xor_b32 v7, 64, v6
    s_lshl3_add_u32 s66, s5, s3              ; 8j + w
    s_lshl_b32 s57, s56, 23
    s_add_u32 s57, s57, {12288*512}
    s_lshl_b32 s59, s3, 14
    s_lshl_b32 s58, s66, 13
    {lincode}
    {f's_bfe_u32 s62, {xs[0]}, {0x20000 + xs[1]}' if xs else ''}
    {'s_lshl_b32 s62, s62, 19' if xs else ''}
    {'s_or_b32 s58, s58, s62' if xs else ''}
    {f's_bfe_u32 s62, {hs[0]}, {0x10000 + hs[1]}' if hs else ''}
    {'s_lshl_b32 s62, s62, 12' if hs else ''}
    {'s_or_b32 s58, s58, s62' if hs else ''}
    {'s_or_b32 s74, s59, s62' if hs else ''}
    s_mov_b32 s10, 0x200000
    s_mov_b32 s11, 0x20000
    ''')
    saddr = f'''
    v_bfe_u32 v2, v0, 4, 2
    v_lshlrev_b32 v2, 1, v2
    v_and_b32 v3, 7, v0
    v_xor_b32 v2, v2, v3
    v_lshlrev_b32 v{vCH}, 4, v2
    v_lshrrev_b32 v{vR8}, 3, v0
    s_movk_i32 s61, 3584
    s_bfe_u32 s65, s2, 0x30004
    s_lshl3_add_u32 s65, s4, s65
    s_bfe_u32 s67, s2, 0x20005
    s_lshl2_add_u32 s67, s4, s67
    s_and_b32 s63, s5, 3                     ; K quarter
    s_and_b32 s64, s5, 1
    s_lshl_b32 s64, s64, 1
    s_cmp_lt_u32 s4, 7
    s_cselect_b32 s46, {Z(448*3584)}, 0
    s_cselect_b32 s67, s67, 0
    s_cmp_lt_u32 s6, 2
    s_cselect_b32 s46, {Z(448*8192)}, s46
    s_cselect_b32 s61, 0x2000, s61
    s_cselect_b32 s65, s65, s67
    s_cselect_b32 s63, s64, s63
    s_cselect_b32 s67, {112*8192}, 0
    s_cselect_b64 vcc, -1, 0
    s_mul_i32 s63, s63, 7
    s_add_u32 s63, s63, s3
    s_lshl_b32 s63, s63, 4
    s_mul_i32 s63, s63, s61
    s_lshl_b32 s65, s65, 7
    s_add_u32 s63, s63, s65
    s_add_u32 s67, s67, s63
    v_mad_u32_u24 v21, v{vR8}, s61, v{vCH}
    s_lshl_b32 s61, s61, 3
    s_lshl_b32 s62, s3, 11
    s_mov_b32 s47, s11
    s_max_u32 s7, s4, s5
    '''
    if not kfirst: A(saddr)
    A(f'''
    s_mov_b32 m0, {'s74' if hs else 's59'}
    {'s_memrealtime s[100:101]' if padat == 'sa' else ''}
    s_waitcnt lgkmcnt(0)
    {'s_memrealtime s[100:101]' if padat == 'sb' else ''}
    s_add_u32 s8, s18, s57
    s_addc_u32 s9, s19, 0
    ''')
    if kfirst:
        issue('K0', 0, (0, 1) if kfirst == 2 else (0,))
        A(saddr)
    A(f'''
    v_mov_b32 v28, 1
    s_cmp_eq_u32 s3, 7
    s_cbranch_scc1 L_ldx
    s_cmp_lg_u64 vcc, 0
    s_cselect_b64 s[44:45], s[22:23], s[28:29]
    s_cselect_b64 s[48:49], s[22:23], s[30:31]
    s_add_u32 m0, s62, {AREA}
    s_mov_b64 s[50:51], s[46:47]
    buffer_load_dwordx4 v21, s[44:47], s63 offen{snt} lds
    s_add_u32 m0, s62, {AREA+14336}
    s_add_u32 s63, s63, s61
    buffer_load_dwordx4 v21, s[48:51], s67 offen{snt} lds
    s_add_u32 m0, s62, {AREA+1024}
    s_add_u32 s67, s67, s61
    buffer_load_dwordx4 v21, s[44:47], s63 offen{snt} lds
    s_add_u32 m0, s62, {AREA+14336+1024}
    buffer_load_dwordx4 v21, s[48:51], s67 offen{snt} lds
    s_branch L_ldk
    L_ldx:
    v_lshlrev_b32 v21, 4, v0
    s_mov_b32 m0, {XN}
    s_mov_b64 s[44:45], s[16:17]
    s_movk_i32 s46, 3584
    buffer_load_dwordx4 v21, s[44:47], 0 offen lds
    buffer_load_dwordx4 v21, s[44:47], 0 offen offset:1024 lds
    buffer_load_dwordx4 v21, s[44:47], 0 offen offset:2048 lds
    s_mov_b32 exec_hi, 0
    buffer_load_dwordx4 v21, s[44:47], 0 offen offset:3072 lds
    s_mov_b32 exec_hi, -1
    L_ldk:
    ''')
    vm.add('small', 4)
    if not kfirst:
        A(f's_mov_b32 m0, {"s74" if hs else "s59"}')
        issue('K0', 0, (0,))
    stamp(1)
    A('s_branch L_stream')

    XR = 8
    XF = 32
    RA = 156
    WF = 64
    AC = 132
    PB = 64
    nstore = [0]
    def store2(ins):
        n = nstore[0]; nstore[0] += 1
        A(f's_cmp_eq_u32 s58, 0\ns_cbranch_scc1 L_ss{n}')
        for i in ins: A(i)
        A(f's_branch L_sd{n}\nL_ss{n}:')
        for i in ins: A(i + ' sc1')
        A(f'L_sd{n}:')
    def cntwait(off, lab, sl, n=8):
        A(f'''
        s_mov_b32 s63, {SPIN*8}
        {lab}:
        ds_read_b32 v9, v31 offset:{off-MISC}
        s_sub_u32 s63, s63, 1
        s_waitcnt lgkmcnt(0)
        s_cbranch_scc1 {lab}_done
        v_cmp_le_u32 vcc, {n}, v9
        s_cbranch_vccnz {lab}_done
        {f's_sleep {sl}' if sl else ''}
        s_branch {lab}
        {lab}_done:
        ''')
    A(f'''
    L_helper:
    s_setprio 3
    s_getreg_b32 s57, hwreg(HW_REG_XCC_ID, 0, 7)
    s_lshl_b32 s66, s4, 5
    s_lshr_b32 s61, s2, 3
    s_add_u32 s61, s61, s66
    s_add_u32 s57, s57, 1
    v_mov_b32 v9, s61
    v_mov_b32 v10, s57
    v_mov_b32 v31, {MISC}
    v_lshl_add_u32 v1, v0, 2, v31
    v_mov_b32 v2, 0
    ds_write_b32 v1, v2                      ; flags = 0
    s_mov_b64 exec, 1
    s_waitcnt lgkmcnt(0)
    {'' if noxc else 'global_store_byte v9, v10, s[36:37]      ; my XCD, for the workgroups that share my heads'}
    s_load_dword s62, s[38:39], {EPOCH}
    s_mov_b64 exec, -1
    ''')
    if tlb:
        A(f'''
        s_lshl_b32 s60, s56, 23
        s_add_u32 s60, s60, {12288*512}
        s_load_dword s76, s[20:21], s60          ; touch the pages used later: V window, wo, W_down, out
        s_add_u32 s60, s60, {(1<<21) - 64}
        s_load_dword s77, s[20:21], s60
        s_mul_i32 s60, s4, {512*896}
        s_load_dword s78, s[24:25], s60
        s_add_u32 s60, s60, {512*896 - 64}
        s_load_dword s79, s[24:25], s60
        s_load_dword s80, s[32:33], 0
        s_mov_b32 s60, {1792*896 - 64}
        s_load_dword s81, s[32:33], s60
        s_load_dword s82, s[34:35], 0
        ''')
    if stamps: A('v_mov_b32 v164, 0\nv_mov_b32 v165, 0\ns_memtime s[94:95]\ns_memrealtime s[96:97]')
    A(f'''
    s_mov_b64 s[40:41], s[38:39]
    s_mov_b32 s42, {WSN}
    s_mov_b32 s43, 0x20000
    s_mul_i32 s67, s56, 12288
    s_add_u32 s67, s67, {QP}
    s_mul_i32 s64, s6, 7
    s_add_u32 s64, s64, s5                   ; 7b + j
    s_lshl_b32 s7, s56, 9
    s_add_u32 s7, s7, {ST}
    ''')
    if hpre:
        A('v_lshlrev_b32 v8, 7, v0')
        if hpre in (2, 3):
            A(f'''
            s_cmp_lg_u32 s5, 7
            s_cbranch_scc1 L_nopre
            s_mov_b64 exec, 3
            buffer_load_dword v166, v8, s[40:43], s7 offen{pref}
            L_nopre:
            ''')
        A('s_mov_b64 exec, -1')
    XB = 128
    A(f'''
    v_lshrrev_b32 v1, 4, v0                  ; g
    v_and_b32 v2, 15, v0
    v_and_b32 v3, 3, v0
    v_mul_u32_u24 v3, 896, v3
    v_add_u32 v3, {XN}, v3                   ; row of batch l%4
    v_lshl_add_u32 v4, v1, 3, v3             ; + g*8
    v_and_b32 v5, 60, v0
    v_lshl_add_u32 v3, v5, 1, v3             ; + (l/4)*8
    s_and_b32 s60, s5, 3
    s_and_b32 s61, s5, 1
    s_lshl_b32 s65, s61, 11
    s_bfe_u32 s59, s2, 0x30004
    s_lshl_b32 s59, s59, 8
    s_add_u32 s65, s65, s59                  ;   + block * 256
    s_lshl_b32 s63, s60, 11
    s_bfe_u32 s59, s2, 0x20005
    s_lshl_b32 s59, s59, 9
    s_add_u32 s63, s63, s59                  ;   + block * 512
    s_add_u32 s63, s63, 4096
    s_lshl_b32 s61, s61, 1
    s_cmp_lt_u32 s6, 2
    s_cselect_b32 s60, s61, s60
    s_cselect_b32 s61, 224, 0
    s_cselect_b32 s65, s65, s63
    s_mul_i32 s60, s60, 224
    v_add_u32 v4, s60, v4
    v_add_u32 v5, s61, v4
    s_mul_i32 s60, s4, 12288
    s_add_u32 s65, s65, s60
    s_add_u32 s65, s65, {QP}
    v_lshrrev_b32 v7, 2, v0
    v_lshlrev_b32 v7, 7, v7
    v_bfe_u32 v6, v0, 3, 2
    v_lshl_add_u32 v7, v6, 5, v7
    v_and_b32 v6, 3, v0
    v_lshl_add_u32 v7, v6, 3, v7
    v_add_u32 v156, {AREA}, v7
    v_xor_b32 v157, 32, v156
    v_xor_b32 v158, 64, v156
    v_xor_b32 v159, 0x60, v156
    s_mov_b64 s[8:9], 0xffff
    s_lshl_b64 s[10:11], s[8:9], 16
    s_lshl_b64 s[12:13], s[8:9], 32
    v_mov_b32 v30, 1
    v_lshlrev_b32 v29, 3, v0                 ; lane*8
    v_lshlrev_b32 v7, 4, v0                  ; lane*16
    v_lshlrev_b32 v6, 2, v0                  ; lane*4
    s_min_u32 s60, s64, 27
    s_lshl_b32 s60, s60, 7
    v_lshl_add_u32 v162, v0, 1, s60
    v_add_u32 v163, {XN}, v162
    v_and_b32 v160, 7, v0
    v_lshlrev_b32 v160, 2, v160
    v_add_u32 v160, s66, v160
    s_mul_i32 s46, s57, 0x01010101
    {'v_mov_b32 v161, s46' if noxc else 'global_load_dword v161, v160, s[36:37] sc1'}
    s_barrier
    ''')
    hstamp(0)
    cntwait(CNT0, 'L_w0', 1)
    hstamp(1)
    def wreads(s_):
        for hs_ in range(7):
            for T in range(4):
                d = WF + 14*T + 2*hs_
                A(f'ds_read_b64_tr_b16 v[{d}:{d+1}], v{156+T} offset:{s_*14336 + hs_*2048}')
    for u in range(7):
        A(f'ds_read_b64 v[{XR+2*u}:{XR+2*u+1}], v3 offset:{128*u}')
    A('ds_read_u16 v163, v163                   ; residual x')
    wreads(0)
    A(f'''
    s_mul_i32 s62, s62, 1664525
    s_add_u32 s62, s62, 1013904223
    v_mov_b32 v28, s62
    s_movk_i32 s47, 0xff
    s_waitcnt lgkmcnt(15)
    ''')
    for u in range(14):
        A(f'v_lshlrev_b32 v{XF+2*u}, 16, v{XR+u}')
        A(f'v_and_b32 v{XF+2*u+1}, 0xffff0000, v{XR+u}')
    def allsum(r):
        A(f'''
        v_add_f32_dpp v{r}, v{r}, v{r} row_ror:4 row_mask:0xf bank_mask:0xf
        v_add_f32_dpp v{r}, v{r}, v{r} row_ror:8 row_mask:0xf bank_mask:0xf
        v_mov_b32 v23, v{r}
        v_permlane16_swap_b32 v{r}, v23
        v_add_f32 v{r}, v{r}, v23
        v_mov_b32 v23, v{r}
        v_permlane32_swap_b32 v{r}, v23
        v_add_f32 v{r}, v{r}, v23
        ''')
    A(f'v_pk_add_f32 v[22:23], v[{XF}:{XF+1}], v[{XF+2}:{XF+3}]')
    A(f'v_pk_add_f32 v[26:27], v[{XF+4}:{XF+5}], v[{XF+6}:{XF+7}]')
    for u in range(4, 14, 2):
        A(f'v_pk_add_f32 v[22:23], v[22:23], v[{XF+2*u}:{XF+2*u+1}]')
        A(f'v_pk_add_f32 v[26:27], v[26:27], v[{XF+2*u+2}:{XF+2*u+3}]')
    A('v_pk_add_f32 v[22:23], v[22:23], v[26:27]')
    A('v_add_f32 v22, v22, v23')
    allsum(22)
    A(f'''
    v_mul_f32 v22, {f32(1/448)}, v22           ; mean
    v_cvt_pk_bf16_f32 v24, v22, v22
    v_and_b32 v24, 0xffff0000, v24           ; bf16(mean)
    v_sub_f32 v22, v22, v24
    ''')
    for u in range(14):
        A(f'v_pk_add_f32 v[{XF+2*u}:{XF+2*u+1}], v[{XF+2*u}:{XF+2*u+1}], v[24:25] op_sel_hi:[1,0] neg_lo:[0,1] neg_hi:[0,1]')
    A(f'v_pk_mul_f32 v[26:27], v[{XF}:{XF+1}], v[{XF}:{XF+1}]')
    A(f'v_pk_mul_f32 v[24:25], v[{XF+2}:{XF+3}], v[{XF+2}:{XF+3}]')
    for u in range(2, 14, 2):
        A(f'v_pk_fma_f32 v[26:27], v[{XF+2*u}:{XF+2*u+1}], v[{XF+2*u}:{XF+2*u+1}], v[26:27]')
        A(f'v_pk_fma_f32 v[24:25], v[{XF+2*u+2}:{XF+2*u+3}], v[{XF+2*u+2}:{XF+2*u+3}], v[24:25]')
    A('v_pk_add_f32 v[26:27], v[26:27], v[24:25]')
    A('v_add_f32 v26, v26, v27')
    for u in range(14):
        A(f'v_cvt_pk_bf16_f32 v{XR+u}, v{XF+2*u}, v{XF+2*u+1}')
    allsum(26)
    A(f'''
    v_mul_f32 v26, {f32(1/448)}, v26
    v_fma_f32 v26, -v22, v22, v26            ; var
    v_max_f32 v26, 0, v26
    v_cvt_pk_bf16_f32 v26, v26, v26
    v_and_b32 v26, 0xffff0000, v26           ; bf16(var)
    v_add_f32 v26, {f32(1e-5)}, v26
    v_cvt_pk_bf16_f32 v26, v26, v26
    v_and_b32 v26, 0xffff0000, v26
    v_sqrt_f32 v26, v26
    v_cvt_pk_bf16_f32 v26, v26, v26
    v_and_b32 v26, 0xffff0000, v26
    v_rcp_f32 v26, v26
    ''')
    for u in range(14):
        A(f'v_lshlrev_b32 v{XF+2*u}, 16, v{XR+u}')
        A(f'v_and_b32 v{XF+2*u+1}, 0xffff0000, v{XR+u}')
    for u in range(14):
        A(f'v_pk_mul_f32 v[{XF+2*u}:{XF+2*u+1}], v[{XF+2*u}:{XF+2*u+1}], v[26:27] op_sel_hi:[1,0]')
    for u in range(14):
        A(f'v_cvt_pk_bf16_f32 v{XR+u}, v{XF+2*u}, v{XF+2*u+1}')
    for u in range(7):
        A(f'ds_write_b64 v3, v[{XR+2*u}:{XR+2*u+1}] offset:{128*u}')
    for s_ in range(2):
        for ks in range(3):
            A(f'ds_read2_b64 v[{XB+14*s_+4*ks}:{XB+14*s_+4*ks+3}], v{4+s_} offset0:{8*ks} offset1:{8*ks+4}')
        A(f'ds_read_b64 v[{XB+14*s_+12}:{XB+14*s_+13}], v{4+s_} offset:192')
    def mm(s_):
        for ks in range(4):
            for T in range(4):
                acc = 32 + 16*s_ + 4*T
                xa = XB + 14*s_ + 4*ks; bb = WF + 14*T + 4*ks
                c = '0' if ks == 0 else f'v[{acc}:{acc+3}]'
                if ks < 3: A(f'v_mfma_f32_16x16x32_bf16 v[{acc}:{acc+3}], v[{xa}:{xa+3}], v[{bb}:{bb+3}], {c}')
                else: A(f'v_mfma_f32_16x16x16_bf16 v[{acc}:{acc+3}], v[{xa}:{xa+1}], v[{bb}:{bb+1}], {c}')
    hstamp(2)
    A('s_waitcnt lgkmcnt(0)')
    mm(0)
    wreads(1)
    A(f'''
    s_mov_b32 s58, {0 if forceslow else 1}
    s_movk_i32 s63, {xtries}
    L_xc:
    s_waitcnt vmcnt(0)
    v_cmp_ne_u32 vcc, s46, v161
    s_cbranch_vccz L_xc_done
    global_load_dword v161, v160, s[36:37] sc1
    s_sub_u32 s63, s63, 1
    s_cbranch_scc0 L_xc
    s_mov_b32 s58, 0
    L_xc_done:
    s_waitcnt lgkmcnt(0)
    ''')
    mm(1)
    A(f'''
    s_add_u32 s60, s65, {8*12288}
    s_add_u32 s61, s65, {16*12288}
    s_add_u32 s63, s65, {24*12288}
    v_lshlrev_b32 v163, 16, v163
    v_and_b32 v16, 24, v29
    v_lshrrev_b32 v16, v16, v28
    v_and_b32 v17, 16, v7
    v_lshrrev_b32 v17, v17, v28
    v_lshrrev_b32 v18, 8, v17
    s_lshr_b32 s48, s62, 8
    s_lshr_b32 s49, s62, 16
    s_lshr_b32 s50, s62, 24
    s_movk_i32 s51, 0xff00
    ''')
    for s_ in range(2):
        a_ = 32 + 16*s_
        for r in range(4):
            A(f'v_cndmask_b32 v{a_+12+r}, v{a_+12+r}, v{a_+8+r}, s[12:13]')
        for r in range(4):
            A(f'v_cndmask_b32 v{a_+12+r}, v{a_+12+r}, v{a_+4+r}, s[10:11]')
        for r in range(4):
            A(f'v_cndmask_b32 v{8+2*r+s_}, v{a_+12+r}, v{a_+r}, s[8:9]')
    so4 = ('s65', 's60', 's61', 's63')
    A('s_cmp_lt_u32 s6, 2')
    A('s_cbranch_scc1 L_pubq')
    for r in range(8):
        A(f'v_bfi_b32 v{8+r}, s47, v{17 + (r & 1)}, v{8+r}')
    store2([f'buffer_store_dwordx2 v[{8+2*r}:{9+2*r}], v29, s[40:43], {so4[r]} offen' for r in range(4)])
    A('s_branch L_pubd')
    A('L_pubq:')
    for r in range(4):
        A(f'v_add_f32 v{8+2*r}, v{8+2*r}, v{9+2*r}')
    for r in range(4):
        A(f'v_bfi_b32 v{8+2*r}, s47, v16, v{8+2*r}')
    store2([f'buffer_store_dword v{8+2*r}, v6, s[40:43], {so4[r]} offen' for r in range(4)])
    A('L_pubd:')
    hstamp(3)
    def gather(lab, n, soffs):
        A(f's_mov_b32 s63, {SPIN}\n{lab}:\ns_sleep {psleep}')
        for k in range(n):
            A(f'buffer_load_dwordx4 v[{32+4*k}:{35+4*k}], v7, s[40:43], {soffs[k>>2]} offen offset:{(k&3)*1024}{pollf}')
        A(f'''
        s_sub_u32 s63, s63, 1
        s_waitcnt vmcnt(0)
        s_cbranch_scc1 {lab}_done
        v_xor_b32 v24, s62, v32
        v_xor_b32 v25, s48, v33
        ''')
        for r in range(34, 32 + 4*n, 2):
            A(f'v_bitop3_b32 v24, v{r}, {"s49" if r & 2 else "s62"}, v24 bitop3:0xbe')
            A(f'v_bitop3_b32 v25, v{r+1}, {"s50" if r & 2 else "s48"}, v25 bitop3:0xbe')
        A(f'''
        v_or_b32 v24, v24, v25
        v_and_b32 v24, s47, v24
        v_cmp_ne_u32 vcc, 0, v24
        s_cbranch_vccnz {lab}
        {lab}_done:
        ''')
        for r in range(32, 32 + 4*n):
            A(f'v_and_b32 v{r}, s51, v{r}')
    gather('L_gq', 4, ['s67'])
    A(f'''
    v_pk_add_f32 v[32:33], v[32:33], v[40:41]
    v_pk_add_f32 v[34:35], v[34:35], v[42:43]
    v_pk_add_f32 v[36:37], v[36:37], v[44:45]
    v_pk_add_f32 v[38:39], v[38:39], v[46:47]
    v_add_u32 v24, {QL}, v29
    v_cvt_pk_bf16_f32 v8, v32, v33
    v_cvt_pk_bf16_f32 v9, v34, v35
    v_cvt_pk_bf16_f32 v10, v36, v37
    v_cvt_pk_bf16_f32 v11, v38, v39
    ds_write_b64 v24, v[8:9]
    ds_write_b64 v24, v[10:11] offset:512
    ds_write_b32 v31, v30 offset:{FLQ-MISC}
    v_mov_b32 v27, v28
    ''')
    hstamp(6)
    A('s_add_u32 s60, s67, 4096\ns_add_u32 s61, s67, 8192')
    gather('L_gh', 8, ['s60', 's61'])
    for k in range(4):
        A(f'v_pk_add_f32 v[{32+2*k}:{33+2*k}], v[{32+2*k}:{33+2*k}], v[{40+2*k}:{41+2*k}]')
        A(f'v_pk_add_f32 v[{48+2*k}:{49+2*k}], v[{48+2*k}:{49+2*k}], v[{56+2*k}:{57+2*k}]')
    for k in range(4):
        A(f'v_pk_add_f32 v[{32+2*k}:{33+2*k}], v[{32+2*k}:{33+2*k}], v[{48+2*k}:{49+2*k}]')
    for k in range(4):
        A(f'v_cvt_pk_bf16_f32 v{33+2*k}, v{32+2*k}, v{33+2*k}')
        A(f'v_lshlrev_b32 v{32+2*k}, 16, v{33+2*k}')
        A(f'v_and_b32 v{33+2*k}, 0xffff0000, v{33+2*k}')
        A(f'v_max_f32 v{32+2*k}, 0, v{32+2*k}')
        A(f'v_mul_f32 v{32+2*k}, v{32+2*k}, v{33+2*k}')
    A(f'''
    v_cvt_pk_bf16_f32 v8, v32, v34
    v_cvt_pk_bf16_f32 v9, v36, v38
    v_add_u32 v24, {HL}, v6
    ds_write2st64_b32 v24, v8, v9 offset0:0 offset1:1
    ''')
    hstamp(5)
    if gov:
        A(f'''
        s_lshr_b32 s60, s2, 3
        s_lshl_b32 s60, s60, 7
        s_add_u32 s60, s60, {TK2}
        s_add_u32 s32, s38, s60
        s_addc_u32 s33, s39, 0
        v_mov_b32 v56, s60
        v_not_b32 v57, v28
        s_mov_b64 exec, 1
        buffer_store_byte v57, v56, s[40:43], s4 offen sc1
        s_mov_b64 exec, -1
        s_lshl_b32 s60, s4, 3
        s_lshl_b64 s[30:31], 0xff, s60
        ''')
    A(f'''
    v_mov_b32 v32, -1
    v_mov_b32 v33, -1
    v_mov_b32 v34, -1
    v_mov_b32 v35, -1
    s_cmp_eq_u32 s5, 7
    s_cbranch_scc1 L_notk
    s_lshl3_add_u32 s60, s64, s4
    s_lshl_b32 s60, s60, 8
    s_add_u32 s60, s60, {P2}
    buffer_store_dword v32, v6, s[40:43], s60 offen sc1
    s_cmp_lg_u32 s4, 0
    s_cbranch_scc1 L_notk
    s_lshl_b32 s60, s64, 7
    s_add_u32 s60, s60, {TK}
    v_mov_b32 v26, 0
    s_mov_b64 exec, 1
    buffer_store_dwordx2 v[26:27], v6, s[40:43], s60 offen sc1
    s_mov_b64 exec, -1
    L_notk:
    s_lshl3_add_u32 s60, s56, s5
    s_lshl_b32 s60, s60, 10
    s_add_u32 s60, s60, {P1}
    ''')
    store2(['buffer_store_dwordx4 v[32:35], v7, s[40:43], s60 offen'])
    A('s_waitcnt vmcnt(0)')
    cntwait(CNT, 'L_wc', 4, govn if gov else 8)
    if gov:
        tbl = sum(n << (4*(k+1)) for k, n in enumerate(gov))
        A(f'''
        s_atomic_xor_x2 s[30:31], s[32:33], 0 glc
        s_and_b32 s60, s62, 0xff
        s_mul_i32 s26, s60, 0x01010101
        s_mov_b32 s27, s26
        s_mov_b32 s28, {tbl & 0xffffffff}
        s_mov_b32 s29, {tbl >> 32}
        s_waitcnt lgkmcnt(0)
        s_xor_b64 s[30:31], s[30:31], s[26:27]
        s_bcnt1_i32_b64 s60, s[30:31]
        s_lshr_b32 s60, s60, 3
        s_lshl_b32 s60, s60, 2
        s_lshr_b64 s[28:29], s[28:29], s60
        s_and_b32 s60, s28, 15
        v_mov_b32 v9, s60
        ds_write_b32 v31, v9 offset:{THR-MISC}
        ''')
        cntwait(CNT, 'L_wc2', 4)
    hstamp(7)
    A(f'''
    ; workgroup stats from the 8 waves (lane = h*8+w)
    v_lshlrev_b32 v8, 3, v2
    v_add_u32 v8, {STW}, v8
    ds_read_b64 v[4:5], v8
    s_lshl4_add_u32 s61, s5, s7
    v_mov_b32 v25, v28
    s_waitcnt lgkmcnt(0)
    v_max_f32_dpp v24, v4, v4 quad_perm:[1,0,3,2] row_mask:0xf bank_mask:0xf
    v_max_f32_dpp v24, v24, v24 quad_perm:[2,3,0,1] row_mask:0xf bank_mask:0xf
    v_max_f32_dpp v24, v24, v24 row_half_mirror row_mask:0xf bank_mask:0xf
    v_sub_f32 v26, v4, v24
    v_mul_f32 v26, {CEXP}, v26
    v_exp_f32 v26, v26
    v_mul_f32 v26, v26, v5
    v_add_f32_dpp v26, v26, v26 quad_perm:[1,0,3,2] row_mask:0xf bank_mask:0xf
    v_add_f32_dpp v26, v26, v26 quad_perm:[2,3,0,1] row_mask:0xf bank_mask:0xf
    v_add_f32_dpp v26, v26, v26 row_half_mirror row_mask:0xf bank_mask:0xf
    s_mov_b64 exec, 0x101
    ''')
    store2([f'buffer_store_dwordx4 v[24:27], v7, s[40:43], s61 offen'])
    A(f'''
    s_mov_b64 exec, 0xffff
    s_mov_b32 s63, {SPIN}
    L_polls:
    s_sleep {psleep}
    buffer_load_dwordx4 v[16:19], v7, s[40:43], s7 offen{pollf}
    s_sub_u32 s63, s63, 1
    s_waitcnt vmcnt(0)
    s_cbranch_scc1 L_polls_done
    v_min3_u32 v10, v17, v19, v28
    v_max3_u32 v11, v17, v19, v28
    v_cmp_ne_u32 vcc, v10, v11
    s_cbranch_vccnz L_polls
    L_polls_done:
    ''')
    hstamp(8)
    A(f'''
    v_max_f32_dpp v10, v16, v16 quad_perm:[1,0,3,2] row_mask:0xf bank_mask:0xf
    v_max_f32_dpp v10, v10, v10 quad_perm:[2,3,0,1] row_mask:0xf bank_mask:0xf
    v_max_f32_dpp v10, v10, v10 row_half_mirror row_mask:0xf bank_mask:0xf
    v_sub_f32 v11, v16, v10
    v_sub_f32 v10, v4, v10
    v_mul_f32 v11, {CEXP}, v11
    v_mul_f32 v10, {CEXP}, v10
    v_exp_f32 v11, v11
    v_exp_f32 v10, v10
    v_mul_f32 v11, v11, v18
    v_add_f32_dpp v11, v11, v11 quad_perm:[1,0,3,2] row_mask:0xf bank_mask:0xf
    v_add_f32_dpp v11, v11, v11 quad_perm:[2,3,0,1] row_mask:0xf bank_mask:0xf
    v_add_f32_dpp v11, v11, v11 row_half_mirror row_mask:0xf bank_mask:0xf
    v_rcp_f32 v11, v11
    v_mul_f32 v10, v10, v11                  ; factor for (wave = lane&7, head = lane>>3)
    v_and_b32 v9, 56, v29
    v_lshrrev_b32 v8, 1, v0
    v_and_b32 v8, 4, v8
    v_add3_u32 v9, v9, v8, v31
    v_subrev_u32 v9, {MISC-FACW}, v9
    ds_write_b32 v9, v10
    s_mov_b64 exec, -1
    v_mov_b32 v24, 1
    v_mov_b32 v25, s58
    v_mov_b32 v26, v28
    ds_write_b128 v31, v[24:27] offset:{FLF-MISC}
    s_cmp_eq_u32 s5, 7
    s_waitcnt lgkmcnt(0)
    {'' if early else 's_cbranch_scc1 ' + ('L_end' if pad else 'L_hdone')}
    ''')
    if dirty:
        A(f's_lshl_b32 s60, s2, 14\ns_add_u32 s60, s60, 0x400000\ns_mov_b32 s42, 0x1000000')
        for k in range(dirty):
            A(f'buffer_store_dwordx4 v[24:27], v7, s[40:43], s60 offen\ns_add_u32 s60, s60, 1024')
    if wb:
        A(f's_cmp_ge_u32 s2, {8*wb}\ns_cbranch_scc1 L_nowb\nbuffer_wbl2 sc1\ns_waitcnt vmcnt(0)\nL_nowb:')
    A(f'''
    v_mov_b32 v4, v162
    v_mov_b32 v5, v163
    s_mov_b64 s[52:53], s[34:35]
    s_movk_i32 s54, 3584
    s_mov_b32 s55, 0x20000
    s_lshl_b32 s60, s64, {11 if p2b else 12}
    s_add_u32 s60, s60, {P2}
    v_add_u32 v6, s60, {'v6' if p2b else 'v29'}
    v_lshlrev_b32 v7, 2, v0
    v_add_u32 v7, {YL}, v7
    ''')
    for i in range(1, 8):
        A(f's_xor_b32 s{18+i}, s4, {i}')
        A(f's_lshl_b32 s{18+i}, s{18+i}, {8 if p2b else 9}')
    A(f'''
    s_lshl_b32 s60, s56, 13
    s_add_u32 s60, s60, {P1 + 8192 - 128}
    v_lshl_add_u32 v57, v0, 3, s60           ; last line of the group's O hand-off
    s_lshl_b32 s60, s64, 7
    s_add_u32 s60, s60, {TK}
    s_add_u32 s32, s38, s60
    s_addc_u32 s33, s39, 0
    s_mov_b32 s63, {SPIN}
    L_tkw:
    s_load_dwordx2 s[28:29], s[32:33], 0 glc
    s_sub_u32 s63, s63, 1
    s_waitcnt lgkmcnt(0)
    s_cbranch_scc1 L_tkw_done
    s_cmp_eq_u32 s29, s62
    s_cbranch_scc1 L_tkw_done
    s_sleep {psleep}
    s_branch L_tkw
    L_tkw_done:
    s_mov_b32 s30, 1
    s_mov_b32 s63, {SPIN}
    s_mov_b64 exec, 0xffff
    s_barrier                               ; #4
    ''')
    hstamp(9)
    def trigpoll(done):
        A(f'''
        buffer_load_dword v61, v57, s[40:43], 0 offen sc1
        s_waitcnt vmcnt(0)
        v_cmp_eq_u32 vcc, -1, v61
        s_cbranch_vccz {done}
        ''')
    A('L_trig:')
    if peek:
        A('s_load_dword s28, s[32:33], 0 glc')
        for k in range(peek + 1): trigpoll('L_trig_done')
        A('s_waitcnt lgkmcnt(0)\ns_cmp_eq_u32 s28, 7\ns_cbranch_scc1 L_sure')
    else:
        trigpoll('L_trig_done')
    A(f'''
    s_sub_u32 s63, s63, 1
    s_cbranch_scc0 L_trig
    L_trig_done:
    s_atomic_add s30, s[32:33], 0 glc
    s_mov_b64 exec, -1
    L_b5:
    ''')
    hstamp(10)
    A(f'''
    s_barrier                               ; #5
    ds_read2st64_b32 v[48:49], v7 offset0:0 offset1:1
    ds_read2st64_b32 v[50:51], v7 offset0:2 offset1:3
    ds_read2st64_b32 v[52:53], v7 offset0:4 offset1:5
    ds_read2st64_b32 v[54:55], v7 offset0:6 offset1:7
    s_mov_b32 s63, {SPIN}
    s_waitcnt lgkmcnt(0)
    s_cmp_lt_u32 s30, 7
    s_cbranch_scc1 L_hdone
    ''')
    hstamp(13)
    A(f'''
    {'s_cmp_eq_u32 s30, 8' if peek else ''}
    {'s_cbranch_scc1 L_adds' if peek else ''}
    buffer_load_dword v34, v6, s[40:43], s19 offen sc1
    buffer_load_dword v36, v6, s[40:43], s20 offen sc1
    buffer_load_dword v38, v6, s[40:43], s21 offen sc1
    buffer_load_dword v40, v6, s[40:43], s22 offen sc1
    buffer_load_dword v42, v6, s[40:43], s23 offen sc1
    buffer_load_dword v44, v6, s[40:43], s24 offen sc1
    buffer_load_dword v46, v6, s[40:43], s25 offen sc1
    L_adds:
    v_add_f32 v48, v48, v49
    v_add_f32 v50, v50, v51
    v_add_f32 v52, v52, v53
    v_add_f32 v54, v54, v55
    v_add_f32 v48, v48, v50
    v_add_f32 v52, v52, v54
    v_add_f32 v26, v48, v52
    L_fchk:
    s_sub_u32 s63, s63, 1
    s_waitcnt vmcnt(0)
    s_cbranch_scc1 L_fsum
    v_max3_u32 v12, v34, v36, v38
    v_max3_u32 v13, v40, v42, v44
    v_max3_u32 v12, v12, v13, v46
    v_cmp_eq_u32 vcc, -1, v12
    s_cbranch_vccnz L_fpoll
    L_fsum:
    v_add_f32 v34, v34, v26                  ; slots hkv^i: the tree is the same for every finisher
    v_add_f32 v36, v36, v38
    v_add_f32 v40, v40, v42
    v_add_f32 v44, v44, v46
    v_add_f32 v34, v34, v36
    v_add_f32 v40, v40, v44
    L_finish:
    v_add_f32 v34, v34, v40
    v_add_f32 v34, v34, v5
    v_cvt_pk_bf16_f32 v34, v34, v34
    buffer_store_short v34, v4, s[52:55], 0 offen{outf}
    ''')
    hstamp(11)
    if stamps and 14 in hl:
        A(f's_sub_u32 s60, {SPIN}, s63\ns_mul_i32 s60, s60, 100\ns_add_u32 s60, s68, s60\ns_addc_u32 s61, s69, 0\nv_writelane_b32 v164, s60, 14\nv_writelane_b32 v165, s61, 14')
    A(f'''
    s_cmp_lg_u32 s64, 21
    s_cbranch_scc1 L_hdone
    s_mov_b64 exec, 1
    v_mov_b32 v1, {EPOCH}
    buffer_store_dword v28, v1, s[40:43], 0 offen
    L_hdone:
    ''')
    if padat == 'hz': A('s_waitcnt vmcnt(0)\ns_memrealtime s[100:101]\ns_waitcnt lgkmcnt(0)')
    if pad and padat[0] == 'h': dopad('L_padh')
    if stamps:
        A('s_waitcnt vmcnt(0)')
        hstamp(12)
        A('''
        s_memtime s[92:93]
        s_waitcnt lgkmcnt(0)
        s_sub_u32 s92, s92, s94
        s_sub_u32 s93, s100, s96
        v_cvt_f32_u32 v1, s92
        v_cvt_f32_u32 v2, s93
        v_rcp_f32 v2, v2
        v_mul_f32 v1, v1, v2
        v_mul_f32 v1, 0x42c80000, v1
        v_cvt_u32_f32 v1, v1
        v_readfirstlane_b32 s92, v1
        s_add_u32 s92, s92, s68
        s_addc_u32 s93, s69, 0
        v_writelane_b32 v164, s92, 15
        v_writelane_b32 v165, s93, 15
        ''')
        A(f'''
        s_mov_b64 exec, 0xffff
        s_lshl_b32 s60, s2, 9
        s_add_u32 s60, s60, {STAMPS+256}
        buffer_store_dwordx2 v[164:165], v29, s[40:43], s60 offen
        ''')
    A(f'''
    L_end:
    s_endpgm
    L_fpoll:
    buffer_load_dword v34, v6, s[40:43], s19 offen sc1
    buffer_load_dword v36, v6, s[40:43], s20 offen sc1
    buffer_load_dword v38, v6, s[40:43], s21 offen sc1
    buffer_load_dword v40, v6, s[40:43], s22 offen sc1
    buffer_load_dword v42, v6, s[40:43], s23 offen sc1
    buffer_load_dword v44, v6, s[40:43], s24 offen sc1
    buffer_load_dword v46, v6, s[40:43], s25 offen sc1
    s_branch L_fchk
    ''')
    if peek:
        A(f'''
    L_sure:                                 ; the seven others have arrived already
    ds_write_b32 v31, v30 offset:{NOPUB-MISC}
    s_mov_b32 s30, 8
    L_trig2:
    ''')
        trigpoll('L_trig2_done')
        A(f'''
    s_sub_u32 s63, s63, 1
    s_cbranch_scc0 L_trig2
    L_trig2_done:
    s_mov_b64 exec, -1
    buffer_load_dword v34, v6, s[40:43], s19 offen sc1
    buffer_load_dword v36, v6, s[40:43], s20 offen sc1
    buffer_load_dword v38, v6, s[40:43], s21 offen sc1
    buffer_load_dword v40, v6, s[40:43], s22 offen sc1
    buffer_load_dword v42, v6, s[40:43], s23 offen sc1
    buffer_load_dword v44, v6, s[40:43], s24 offen sc1
    buffer_load_dword v46, v6, s[40:43], s25 offen sc1
    s_waitcnt lgkmcnt(0)
    s_branch L_b5
    ''')
    A(f'''
    L_stream:
    s_barrier
    s_add_u32 s12, s20, s57
    s_addc_u32 s13, s21, 0
    s_mov_b64 s[14:15], s[10:11]
    s_mov_b64 s[40:41], s[38:39]
    s_mov_b32 s42, {WSN}
    s_mov_b32 s43, s11
    v_mov_b32 v26, {MISC}
    ''')
    if fastmask:
        A(f'''
        s_getreg_b32 s60, hwreg(HW_REG_XCC_ID, 0, 3)
        s_bitcmp1_b32 {fastmask}, s60
        s_cselect_b64 vcc, -1, 0
        ''')
        vm.d = dthr
    if kfirst == 1: hb('K0', 0, k0thr)
    if kfirst == 2: ha('K1', 1, k0thr)
    A(f'''
    s_mov_b64 s[52:53], s[24:25]
    s_mov_b64 s[48:49], s[32:33]
    s_mov_b32 s51, s11
    s_mov_b32 s55, s11
    s_cmp_lt_u32 s5, 7
    s_cselect_b32 s54, {Z(4096*896)}, 0
    s_cselect_b32 s61, s5, 0
    s_lshl_b32 s61, s61, 7
    s_lshl4_add_u32 s64, s4, s3
    s_mul_i32 s64, s64, {32*896}
    s_add_u32 s64, s64, s61
    s_lshl3_add_u32 s65, s4, s3
    s_mul_i32 s65, s65, {32*896}
    s_add_u32 s65, s65, s61
    s_cmp_lt_u32 s7, 7
    s_cselect_b32 s50, {Z(1792*896)}, 0
    s_cselect_b32 s65, s65, 0
    v_and_b32 v1, 15, v0                     ; row
    v_lshrrev_b32 v2, 4, v0                  ; g
    v_and_b32 v3, 7, v0
    v_lshlrev_b32 v3, 1, v3
    v_xor_b32 v3, v3, v2
    v_lshlrev_b32 v3, 4, v3
    v_lshl_add_u32 v3, v1, 9, v3
    v_add_u32 v8, s59, v3
    v_xor_b32 v9, 64, v8
    v_xor_b32 v10, 0x80, v8
    v_xor_b32 v11, 0xc0, v8
    ''')
    def readK(dst, slot):
        for t in range(8):
            A(f'ds_read_b128 v[{dst+4*t}:{dst+4*t+3}], v{vKA[t&3]} offset:{slot*8192 + (t>>2)*256}')
    def readQ(dst, ts):
        for n, t in enumerate(ts):
            A(f'ds_read_b128 v[{dst+4*n}:{dst+4*n+3}], v24 offset:{t*64}')
    def qk(tile, src, qf, ts=range(8)):
        for n, t in enumerate(ts):
            c = '0' if t == 0 else f'v[{Sx+4*tile}:{Sx+4*tile+3}]'
            A(f'v_mfma_f32_16x16x32_bf16 v[{Sx+4*tile}:{Sx+4*tile+3}], v[{src+4*t}:{src+4*t+3}], v[{qf+4*n}:{qf+4*n+3}], {c}')
    def flagwait(off, lab):
        if nohelp:
            A(f'{lab}_done:')
            return
        A(f'''
        s_mov_b32 s61, {SPIN*8}
        {lab}:
        ds_read_b32 v1, v26 offset:{off-MISC}
        s_sub_u32 s61, s61, 1
        s_waitcnt lgkmcnt(0)
        s_cbranch_scc1 {lab}_done
        v_readfirstlane_b32 s67, v1
        s_cmp_lg_u32 s67, 0
        s_cbranch_scc1 {lab}_done
        s_sleep 1
        s_branch {lab}
        {lab}_done:
        ''')
    vm.wait('small')
    A(f'''
    s_mov_b64 exec, 1
    ds_add_u32 v26, v28 offset:{CNT0-MISC}
    s_mov_b64 exec, -1
    ''')
    stamp(2)
    if not (kfirst or xlast == 2): hb('K0', 0)
    if kfirst != 2: ha('K1', 1)
    if kfirst != 2: vm.wait('K0')
    readK(KfA, 0)
    A(f'''
    v_lshrrev_b32 v21, 2, v0                 ; row = l/4
    v_and_b32 v22, 7, v21
    v_lshlrev_b32 v22, 5, v22
    v_lshl_add_u32 v22, v21, 9, v22
    v_and_b32 v23, 3, v0
    v_lshl_add_u32 v22, v23, 3, v22
    v_add_u32 v12, s59, v22
    ''')
    for t in range(1, 8):
        A(f'v_xor_b32 v{12+t}, {t*32}, v12')
    A(f'''
    v_and_b32 v24, 1, v0
    v_lshlrev_b32 v25, 6, v24                ; head*64
    v_lshlrev_b32 v24, 9, v24
    v_lshl_add_u32 v24, v2, 4, v24
    v_add_u32 v24, {QL}, v24
    s_lshl_b32 s60, s3, 3
    s_add_u32 s60, s60, {STW}
    v_add_u32 v25, s60, v25
    ''')
    hb('K1', 1)
    A('s_waitcnt lgkmcnt(0)')
    ha('K2', 0)
    vm.wait('K1')
    readK(KfB, 1)
    hb('K2', 0)
    A('s_waitcnt lgkmcnt(0)')
    ha('K3', 1)
    vm.wait('K2')
    if k3:
        readK(KfC, 0)
        hb('K3', 1)
        A('s_waitcnt lgkmcnt(0)')
        ha('V0', 0)
        vm.wait('K3')
        hb('V0', 0)
        stamp(3)
        if not nodep: flagwait(FLQ, 'L_wq')
        stamp(4)
        readQ(Pk, range(4))
        readQ(160, range(4, 6))
        A('s_waitcnt lgkmcnt(2)')
        for tile, src in enumerate((KfA, KfB, KfC)): qk(tile, src, Pk, range(4))
        readQ(Pk, range(6, 8))
        A('s_waitcnt lgkmcnt(2)')
        for tile, src in enumerate((KfA, KfB, KfC)): qk(tile, src, 160, range(4, 6))
        A('s_waitcnt lgkmcnt(0)')
        for tile, src in enumerate((KfA, KfB, KfC)): qk(tile, src, Pk, range(6, 8))
        readK(KfA, 1)
        readQ(KfB, range(8))
        A('s_waitcnt lgkmcnt(0)')
        issue('V1', 1, (0,))
        qk(3, KfA, KfB)
    else:
        hb('K3', 1)
        stamp(3)
        if not nodep: flagwait(FLQ, 'L_wq')
        stamp(4)
        readQ(KfC, range(8))
        A('s_waitcnt lgkmcnt(0)')
        qk(0, KfA, KfC)
        readK(KfA, 0)
        qk(1, KfB, KfC)
        A('s_waitcnt lgkmcnt(0)')
        qk(2, KfA, KfC)
        ha('V0', 0)
        vm.wait('K3')
        readK(KfB, 1)
        issue('V0', 0, (1,))
        A('s_waitcnt lgkmcnt(0)')
        qk(3, KfB, KfC)
    MK = 84
    A(f's_mov_b32 s{MK}, 0x00030003')
    A(f's_mov_b32 s{MK+1}, 0x00030003')
    for u in range(1, 8):
        A(f's_lshl_b64 s[{MK+2*u}:{MK+2*u+1}], s[{MK}:{MK+1}], {2*u}')
    A(f's_mov_b32 s63, {CEXP}')
    for i in range(8):
        a, b = Sx + 2*i, Sx + 2*i + 1
        A(f'v_cvt_pk_bf16_f32 v{b}, v{a}, v{b}')
        A(f'v_lshlrev_b32 v{a}, 16, v{b}')
        A(f'v_and_b32 v{b}, 0xffff0000, v{b}')
    A(f'v_max3_f32 v22, v{Sx}, v{Sx+1}, v{Sx+2}')
    for i in range(3, 15, 2):
        A(f'v_max3_f32 v22, v22, v{Sx+i}, v{Sx+i+1}')
    A(f'''
    v_max_f32 v22, v22, v{Sx+15}
    v_mov_b32 v1, v22
    v_permlane16_swap_b32 v22, v1
    v_max_f32 v22, v22, v1
    v_mov_b32 v1, v22
    v_permlane32_swap_b32 v22, v1
    v_max_f32 v22, v22, v1                   ; wave max per head
    ''')
    for i in range(16):
        A(f'v_sub_f32 v{Sx+i}, v{Sx+i}, v22')
    for i in range(16):
        A(f'v_mul_f32 v{Sx+i}, s63, v{Sx+i}')
    for i in range(16):
        A(f'v_exp_f32 v{Sx+i}, v{Sx+i}')
    for i in range(8):
        A(f'v_cvt_pk_bf16_f32 v{Pk+i}, v{Sx+2*i}, v{Sx+2*i+1}')
    for i in range(8):
        A(f'v_add_f32 v{Sx+i}, v{Sx+i}, v{Sx+8+i}')
    for i in range(4):
        A(f'v_add_f32 v{Sx+i}, v{Sx+i}, v{Sx+4+i}')
    A(f'''
    v_add_f32 v{Sx}, v{Sx}, v{Sx+2}
    v_add_f32 v{Sx+1}, v{Sx+1}, v{Sx+3}
    v_add_f32 v23, v{Sx}, v{Sx+1}
    v_mov_b32 v1, v23
    v_permlane16_swap_b32 v23, v1
    v_add_f32 v23, v23, v1
    v_mov_b32 v1, v23
    v_permlane32_swap_b32 v23, v1
    v_add_f32 v23, v23, v1                   ; wave sum per head
    s_mov_b64 exec, 3
    ds_write_b64 v25, v[22:23]
    s_mov_b64 exec, 1
    ds_add_u32 v26, v28 offset:{CNT-MISC}
    s_mov_b64 exec, -1
    ''')
    stamp(5)
    if not k3: ha('V1', 1)
    vWO, vWD, vOW, vOR, vP1s, vP1l, vYW, vHA = 22, 23, 24, 25, 27, 28, 29, 21
    vWA = [8, 9, 10, 11]
    A(f'''
    s_waitcnt lgkmcnt(0)
    s_movk_i32 s61, 896
    v_mad_u32_u24 v{vWD}, v{vR8}, s61, v{vCH}
    v_bfe_u32 v1, v0, 3, 1
    v_lshlrev_b32 v1, 8, v1
    v_and_b32 v3, 16, v0
    v_add_u32 v1, v1, v3
    v_lshrrev_b32 v3, 5, v0
    v_add_u32 v1, v1, v3
    v_mad_u32_u24 v{vWO}, v1, s61, v{vCH}
    v_lshrrev_b32 v1, 2, v0
    v_lshlrev_b32 v1, 7, v1
    v_bfe_u32 v2, v0, 3, 2
    v_lshl_add_u32 v1, v2, 5, v1
    v_and_b32 v2, 3, v0
    v_lshl_add_u32 v1, v2, 3, v1
    v_add_u32 v8, s59, v1
    v_xor_b32 v9, 32, v8
    v_xor_b32 v10, 64, v8
    v_xor_b32 v11, 0x60, v8
    v_lshlrev_b32 v1, 4, v0
    s_lshl_b32 s60, s3, 11
    s_add_u32 s60, s60, {AREA}
    v_add_u32 v{vOW}, s60, v1
    v_lshrrev_b32 v2, 4, v0                  ; g
    v_and_b32 v3, 15, v0                     ; c
    v_lshlrev_b32 v31, 12, v2                ; waves 2g, 2g+1
    v_lshl_add_u32 v31, v3, 4, v31
    s_lshl_b32 s60, s3, 8
    s_add_u32 s61, s60, {AREA}
    v_add_u32 v{vOR}, s61, v31
    s_add_u32 s61, s60, {YL}
    v_lshlrev_b32 v31, 2, v0
    v_add_u32 v{vYW}, s61, v31
    s_lshl3_add_u32 s60, s56, s3
    s_lshl_b32 s60, s60, 10
    s_add_u32 s60, s60, {P1}
    v_add_u32 v{vP1l}, s60, v1
    s_lshl4_add_u32 s61, s5, s60
    v_and_b32 v1, 3, v0
    v_lshlrev_b32 v1, 8, v1                  ; g*256
    v_and_b32 v3, 4, v0
    v_lshl_add_u32 v1, v3, 1, v1             ; half*8
    v_and_b32 v3, 8, v0
    v_lshl_add_u32 v1, v3, 4, v1             ; ks*128
    v_add_u32 v{vP1s}, s61, v1
    s_lshl_b32 s60, s3, 6
    s_add_u32 s60, s60, {HL}
    v_lshlrev_b32 v1, 3, v2
    v_add_u32 v{vHA}, s60, v1
    v_lshlrev_b32 v31, 4, v2
    v_add_u32 v31, {FACW}, v31
    s_mul_i32 s60, s6, 7
    s_add_u32 s60, s60, s5
    s_lshl3_add_u32 s60, s60, s4
    s_lshl_b32 s60, s60, {8 if p2b else 9}
    s_add_u32 s60, s60, {P2}
    v_lshl_add_u32 v30, v0, {2 if p2b else 3}, s60
    s_movk_i32 s66, 0xff
    ''')
    Vf = KfA; Mk = KfB
    WOf, WDf = KfC, Sx
    PL = 64
    def masks(i):
        M = Mk + 16*(i & 1)
        for u in range(8):
            A(f'v_cndmask_b32 v{M+2*u}, 0, v{Pk+2*i}, s[{MK+2*u}:{MK+2*u+1}]')
            A(f'v_cndmask_b32 v{M+2*u+1}, 0, v{Pk+2*i+1}, s[{MK+2*u}:{MK+2*u+1}]')
    def pv(i, slot, mid=None):
        M = Mk + 16*(i & 1)
        def rd(t): A(f'ds_read_b64_tr_b16 v[{Vf+2*t}:{Vf+2*t+1}], v{vVA[t&7]} offset:{slot*8192 + (t>>3)*256}')
        def mf(ii):
            acc = Oa + 4*(ii >> 2)
            c = '0' if (i == 0 and (ii & 3) == 0) else f'v[{acc}:{acc+3}]'
            A(f'v_mfma_f32_16x16x32_bf16 v[{acc}:{acc+3}], v[{M+4*(ii&3)}:{M+4*(ii&3)+3}], v[{Vf+4*ii}:{Vf+4*ii+3}], {c}')
        if ilv and i == 3 and mid is None:
            for t in range(8): rd(t)
            for ii in range(8):
                A(f's_waitcnt lgkmcnt({min(6, 14-2*ii)})')
                mf(ii)
                if ii < 4: rd(8+2*ii); rd(9+2*ii)
                if wlast == 6 and ii >= 4:
                    A(f's_add_u32 m0, s59, {8192 + ii*1024}')
                    A(f's_add_u32 s60, s64, {ii*2*896}')
                    A(f'buffer_load_dwordx4 v{vWO}, s[52:55], s60 offen{wnt} lds')
                    vm.add('WO', 1)
                if wlast == 3:
                    A(f's_add_u32 m0, s59, {8192 + ii*1024}')
                    A(f's_add_u32 s60, s64, {ii*2*896}')
                    A(f'buffer_load_dwordx4 v{vWO}, s[52:55], s60 offen{wnt} lds')
            if wlast == 3: vm.add('WO', 8)
            return
        for t in range(16): rd(t)
        if mid: mid()
        for ii in range(8):
            A(f's_waitcnt lgkmcnt({14-2*ii})')
            mf(ii)
    def issueW(p, slot, t=None, wdoff=0):
        vm.upto(thr if t is None else t)
        for k in range(4):
            if p < 2:
                A(f's_add_u32 m0, s59, {slot*8192 + (4*p+k)*1024}')
                A(f's_add_u32 s60, s64, {(4*p+k)*2*896}')
                A(f'buffer_load_dwordx4 v{vWO}, s[52:55], s60 offen{wnt} lds')
            else:
                A(f's_add_u32 m0, s59, {slot*8192 + wdoff + k*1024}')
                A(f's_add_u32 s60, s65, {k*8*896}')
                A(f'buffer_load_dwordx4 v{vWD}, s[48:51], s60 offen{wnt} lds')
        vm.add('WO' if p < 2 else 'WD', 4)
    def readWO(slot, kss=(0, 1)):
        for ks in kss:
            for T in range(4):
                for half in range(2):
                    d = WOf + 16*ks + 4*T + 2*half
                    A(f'ds_read_b64_tr_b16 v[{d}:{d+1}], v{vWA[T]} offset:{slot*8192 + ks*4096 + half*2048}')
    def readWD(slot, wdoff=0):
        for T in range(4):
            for half in range(2):
                A(f'ds_read_b64_tr_b16 v[{WDf+4*T+2*half}:{WDf+4*T+2*half+1}], v{vWA[T]} offset:{slot*8192 + wdoff + half*2048}')
    def pretouch():
        if p1pre == 2:
            A(f's_lshl_b32 s60, s5, 8\ns_mov_b64 exec, 0x101\nbuffer_load_dword v160, v{vP1l}, s[40:43], s60 offen{pref}\ns_mov_b64 exec, -1')
            vm.add('pre', 1)
            return
        for q in range(2):
            if p1pre: A(f'buffer_load_dwordx4 v[160:163], v{vP1l}, s[40:43], 0 offen offset:{q*1024}{pref}')
        vm.add('pre', 2 if p1pre else 0)
    masks(0)
    vm.wait('V0')
    pv(0, 0)
    masks(1)
    hb('V1', 1)
    if not wlast:
        issueW(0, 0)
        vm.wait('V1')
        pv(1, 1)
        issueW(1, 0)
        issueW(2, 1)
        masks(2)
        vm.wait('WO')
        readWO(0)
        A('s_waitcnt lgkmcnt(0)')
        issue('V2', 0, (0,))
        vm.wait('WD')
        readWD(1)
        hb('V2', 0)
        pretouch()
        A('s_waitcnt lgkmcnt(0)')
        ha('V3', 1, thr + 2)
        vm.wait('V2')
        pv(2, 0, lambda: issue('V3', 1, (1,)))
        s3 = 1
    elif wlast in (5, 6):
        issueW(0, 0)
        vm.wait('V1')
        if catch:
            A(f'v_mov_b32 v1, 1\ns_mov_b64 exec, 1\nds_add_rtn_u32 v1, v26, v1 offset:{RANK-MISC}\ns_mov_b64 exec, -1\ns_waitcnt lgkmcnt(0)\nv_readfirstlane_b32 s67, v1\ns_cmp_ge_u32 s67, {catch}\ns_cselect_b64 vcc, -1, 0')
            vm.skip = True
        pv(1, 1)
        issueW(2, 0, None, 4096)
        ha('V2', 1)
        masks(2)
        vm.wait('WD')
        readWO(0, (0,))
        readWD(0, 4096)
        hb('V2', 1)
        pretouch()
        A('s_waitcnt lgkmcnt(0)')
        ha('V3', 0, v3thr)
        vm.skip = False
        vm.wait('V2')
        pv(2, 1, lambda: issue('V3', 0, (1,)))
        s3 = 0
    else:
        issueW(2, 0)
        vm.wait('V1')
        pv(1, 1)
        ha('V2', 1)
        masks(2)
        vm.wait('WD')
        readWD(0)
        hb('V2', 1)
        pretouch()
        A('s_waitcnt lgkmcnt(0)')
        ha('V3', 0, v3thr)
        vm.wait('V2')
        pv(2, 1, lambda: issue('V3', 0, (1,)))
        s3 = 0
    masks(3)
    flagwait(FLF, 'L_wf')
    FC = 160
    A(f'''
    ds_read_b128 v[4:7], v26 offset:{FLF-MISC}
    ds_read2_b64 v[64:67], v{vHA} offset0:0 offset1:4
    s_mov_b32 s{MK}, 0x00010001
    s_mov_b32 s{MK+1}, 0x00010001
    s_mov_b32 s{MK+2}, 0x01000100
    s_mov_b32 s{MK+3}, 0x01000100
    s_mov_b32 s{MK+4}, 0x00ff00ff
    s_mov_b32 s{MK+5}, 0x00ff00ff
    ''')
    vm.wait('pre')
    A(f'''
    ds_read_b128 v[{FC}:{FC+3}], v31
    s_waitcnt lgkmcnt(0)
    v_readfirstlane_b32 s63, v5
    v_mov_b32 v{vTAG}, v6
    v_mov_b32 v5, v6
    ''')
    FA = 144
    for r in range(4):
        A(f'v_cndmask_b32 v{68+r}, 0, v{64+r}, s[{MK}:{MK+1}]')
        A(f'v_cndmask_b32 v{72+r}, 0, v{64+r}, s[{MK+2}:{MK+3}]')
    A(f'''
    v_mfma_f32_16x16x32_bf16 v[{FA}:{FA+3}], v[68:71], v[{WDf}:{WDf+3}], 0
    v_mfma_f32_16x16x32_bf16 v[{FA+4}:{FA+7}], v[68:71], v[{WDf+4}:{WDf+7}], 0
    v_mfma_f32_16x16x32_bf16 v[{FA}:{FA+3}], v[72:75], v[{WDf+8}:{WDf+11}], v[{FA}:{FA+3}]
    v_mfma_f32_16x16x32_bf16 v[{FA+4}:{FA+7}], v[72:75], v[{WDf+12}:{WDf+15}], v[{FA+4}:{FA+7}]
    s_mov_b32 s62, {SPIN}
    ''')
    if wlast in (1, 2):
        issueW(0, 1, wthr)
        if wlast == 1: issueW(1, 1, wthr + 2)
    if early: A('v_mov_b32 v1, 1\ns_mov_b64 exec, 1')
    vm.wait('V3')
    if early: A(f'ds_add_u32 v26, v1 offset:{CNTV-MISC}\ns_mov_b64 exec, -1')
    stamp(6)
    pv(3, s3, (lambda: issueW(1, 1, 99)) if wlast == 2 else None)
    A(f'''
    ds_write_b128 v{vOW}, v[{Oa}:{Oa+3}]
    ds_write_b128 v{vOW}, v[{Oa+4}:{Oa+7}] offset:1024
    ''')
    if wlast == 4:
        issueW(0, 1, 99); issueW(1, 1, 99)
    if wlast == 5: issueW(1, 1, 99)
    A('s_waitcnt lgkmcnt(0)')
    stamp(7)
    A(f'''
    s_barrier                               ; #4: O partials
    ds_read_b128 v[32:35], v{vOR}
    ds_read_b128 v[36:39], v{vOR} offset:2048
    s_cmp_eq_u32 s63, 0
    s_waitcnt lgkmcnt(1)
    v_mul_f32 v32, v32, v{FC}
    v_mul_f32 v34, v34, v{FC}
    v_mul_f32 v33, v33, v{FC+1}
    v_mul_f32 v35, v35, v{FC+1}
    s_waitcnt lgkmcnt(0)
    v_fmac_f32 v32, v36, v{FC+2}
    v_fmac_f32 v34, v38, v{FC+2}
    v_fmac_f32 v33, v37, v{FC+3}
    v_fmac_f32 v35, v39, v{FC+3}
    v_permlane32_swap_b32 v32, v34
    v_permlane32_swap_b32 v33, v35
    v_add_f32 v36, v32, v34
    v_add_f32 v37, v33, v35
    v_add_f32 v32, v32, v34
    v_add_f32 v33, v33, v35
    v_permlane16_swap_b32 v32, v36
    v_permlane16_swap_b32 v33, v37
    v_add_f32 v32, v32, v36
    v_add_f32 v33, v33, v37
    v_cvt_pk_bf16_f32 v32, v32, v33
    v_min_u32 v6, -2, v32
    v_min_u32 v7, -2, v32
    v_permlane32_swap_b32 v6, v7
    s_mov_b64 exec, 0xffff
    s_cbranch_scc1 L_slowpub
    buffer_store_dwordx2 v[6:7], v{vP1s}, s[40:43], 0 offen
    L_pubdone:
    s_mov_b64 exec, -1
    ''')
    vm.add('pub', 1)
    stamp(8)
    A(f'''
    s_cmp_eq_u32 s5, 7
    s_cbranch_scc1 L_sdone
    ''')
    def polls():
        A(f'buffer_load_dwordx4 v[{PL}:{PL+3}], v{vP1l}, s[40:43], 0 offen sc1')
    if wlast:
        polls(); vm.add('poll', 1)
        vm.wait('WO')
        readWO(1, (1,) if wlast in (5, 6) else (0, 1))
        A('s_branch L_poll1_chk')
    A('L_poll1:')
    polls()
    A(f'''
    L_poll1_chk:
    s_sub_u32 s62, s62, 1
    s_waitcnt vmcnt(0)
    s_cbranch_scc1 L_poll1_done
    v_max3_u32 v1, v{PL}, v{PL+1}, v{PL+2}
    v_max_u32 v1, v1, v{PL+3}
    v_cmp_eq_u32 vcc, -1, v1
    {'s_mov_b64 exec, vcc' if mpoll else ''}
    {'' if nohelp else 's_cbranch_vccnz L_poll1'}
    L_poll1_done:
    {'s_mov_b64 exec, -1' if mpoll else ''}
    ''')
    stamp(9)
    LO, HI = 80, 88
    def omm(a, ks, T0):
        for x in range(2):
            acc = FA + 4*x
            bb = WOf + 16*ks + 4*(T0 + x)
            A(f'v_mfma_f32_16x16x32_bf16 v[{acc}:{acc+3}], v[{a}:{a+3}], v[{bb}:{bb+3}], v[{acc}:{acc+3}]')
    for q in range(4):
        A(f'v_cndmask_b32 v{LO+q}, 0, v{PL+q}, s[{MK+4}:{MK+5}]')
    for q in range(4):
        A(f'v_cndmask_b32 v{HI+4+q}, v{PL+q}, 0, s[{MK+4}:{MK+5}]')
    if wlast: A('s_waitcnt lgkmcnt(0)')
    omm(LO, 0, 0)
    for q in range(4):
        A(f'v_mov_b32_dpp v{HI+q}, v{PL+q} row_shr:8 row_mask:0xf bank_mask:0xf bound_ctrl:0')
    omm(HI+4, 1, 2)
    for q in range(4):
        A(f'v_mov_b32_dpp v{LO+4+q}, v{PL+q} row_shl:8 row_mask:0xf bank_mask:0xf bound_ctrl:0')
    omm(HI, 0, 2)
    omm(LO+4, 1, 0)
    A(f'''
    v_add_f32 v{FA}, v{FA}, v{FA+1}
    v_add_f32 v{FA+2}, v{FA+2}, v{FA+3}
    v_add_f32 v{FA+4}, v{FA+4}, v{FA+5}
    v_add_f32 v{FA+6}, v{FA+6}, v{FA+7}
    v_add_f32 v{FA}, v{FA}, v{FA+2}
    v_add_f32 v{FA+4}, v{FA+4}, v{FA+6}
    v_permlane16_swap_b32 v{FA}, v{FA+4}
    v_add_f32 v{FA}, v{FA}, v{FA+4}
    ds_write_b32 v{vYW}, v{FA}
    s_waitcnt lgkmcnt(0)
    ''')
    stamp(10)
    if fin != 'D': A('s_cmp_lg_u32 s3, 0')
    A('s_barrier                               ; #5')
    if fin != 'D':
        A(f'''
        s_cbranch_scc1 {'L_clean' if clean else 'L_sdone'}
        {f'ds_read_b32 v1, v26 offset:{NOPUB-MISC}' if peek else ''}
        ds_read2st64_b32 v[48:49], v{vYW} offset0:0 offset1:1
        ds_read2st64_b32 v[50:51], v{vYW} offset0:2 offset1:3
        ds_read2st64_b32 v[52:53], v{vYW} offset0:4 offset1:5
        ds_read2st64_b32 v[54:55], v{vYW} offset0:6 offset1:7
        s_waitcnt lgkmcnt(2)
        {'v_cmp_ne_u32 vcc, 0, v1' if peek else ''}
        v_add_f32 v48, v48, v49
        v_add_f32 v50, v50, v51
        {'s_cbranch_vccnz L_sdone' if peek else ''}
        s_waitcnt lgkmcnt(0)
        v_add_f32 v52, v52, v53
        v_add_f32 v54, v54, v55
        v_add_f32 v48, v48, v50
        v_add_f32 v52, v52, v54
        v_add_f32 v4, v48, v52
        v_min_u32 v4, -2, v4
        {'buffer_store_dword v4, v30, s[40:43], 0 offen sc1' if p2b else 'buffer_store_dwordx2 v[4:5], v30, s[40:43], 0 offen sc1'}
        ''')
        if stamps: A('s_waitcnt vmcnt(0)\ns_memrealtime s[70:71]')
        if clean:
            A(f'''
            L_clean:
            s_lshl_b32 s60, s5, 8
            s_cmp_eq_u32 s5, 6
            s_cselect_b32 s61, 0x1010101, 0x101
            s_mov_b32 exec_lo, s61
            s_mov_b32 exec_hi, 0
            buffer_store_dword v{vTAG}, v{vP1l}, s[40:43], s60 offen offset:4 sc1
            '''.replace('s_cselect_b32 s61, 0x1010101, 0x101', 's_movk_i32 s61, 0x101\ns_cselect_b32 s61, 0x1010101, s61'))
    if pad and padat[0] == 's': dopad('L_pads')
    A('L_sdone:')
    if stamps:
        A(f's_cmp_eq_u32 s3, 0')
        A('s_cbranch_scc1 L_dump0')
        A(f's_cmp_lg_u32 s3, 7')
        A('s_cbranch_scc1 L_end')
        dump_stamps(16, [sreg(k) for k in range(11)])
        A('s_endpgm')
        A('L_dump0:')
        dump_stamps(0, [sreg(k) for k in range(11)])
    A('s_endpgm')
    A(f'''
    L_slowpub:
    buffer_store_dwordx2 v[6:7], v{vP1s}, s[40:43], 0 offen sc1
    s_branch L_pubdone
    ''')
    A('.section .rodata,"a"')
    A('.p2align 6')
    A(f'.amdhsa_kernel {NAME}_kernel')
    A('.amdhsa_next_free_vgpr 168')
    A('.amdhsa_next_free_sgpr 102')
    A('.amdhsa_accum_offset 168')
    A('.amdhsa_group_segment_fixed_size 0')
    A('.amdhsa_kernarg_size 96')
    A('.amdhsa_user_sgpr_count 2')
    A('.amdhsa_user_sgpr_kernarg_segment_ptr 1')
    A('.amdhsa_system_sgpr_workgroup_id_x 1')
    A('.end_amdhsa_kernel')
    return top + A.finalize()

if __name__ == '__main__':
    out = sys.argv[1] if len(sys.argv) > 1 else f'cdna_kernels/{NAME}.s'
    kw = eval('dict(%s)' % sys.argv[2]) if len(sys.argv) > 2 else {}
    open(out, 'w').write(gen(**kw))
    print('wrote', out)
```

```python
import sys, struct, math
from asmlib import Asm
NAME = 'parallel_sum__sliding_block_cached__glu_gated_reglu__decode'

def f32(x): return '0x%08x' % struct.unpack('<I', struct.pack('<f', x))[0]

AREA = 131072
TAB = AREA + 16384
STW = TAB
FACW = TAB + 128
HL = TAB + 512
QL = TAB + 1024
YL = TAB + 2048
MISC = AREA + 28672
FLQ = MISC
CNT = MISC + 4
CNT0 = MISC + 12
FLF = MISC + 16
CNTV = MISC + 32
THR = MISC + 36
RANK = MISC + 40
NOPUB = MISC + 44
XN = MISC + 256
LDS_TOTAL = 163840
EPOCH = 0
ST = 0x3C000
TK2 = 0x2000
TK = 0x3000
P2 = 0x1C0000
P1 = 0x40000
QP = 0xC0000
WS_END = 0x1E0000
STAMPS = 0x300000
SPIN = 400000
CEXP = f32(math.log2(math.e)/16)

DOC = '''; ---------------------------------------------------------------------------------------------
; One persistent launch: 256 workgroups (one per CU), 8 stream waves + 1 helper wave each.
;   wg = b*64 + j*8 + hkv ; group (b, hkv) = 8 workgroups j that split the 4096-key window.
; Stream wave: 4 K tiles then 4 V tiles (16 keys x 512 B) by LDS-DMA through two 8 KB slots,
; Helper wave: LayerNorm, one 64-column piece of x*wq / x*W_gate / x*W_up, gathers q and h,
;   merges the softmax statistics of the group, runs the last reduction over the kv heads.
;   "empty" marker written earlier in the same launch. Plain stores are used only after d_debug
;   shows that every reader runs on this XCD; otherwise all hand-off stores are write-through.
; ---------------------------------------------------------------------------------------------
'''

class VM:
    def __init__(self, A): self.A = A; self.q = []
    def add(self, name, n): self.q.append((name, n))
    def wait(self, name, extra=''):
        idx = max(i for i, (nm, _) in enumerate(self.q) if nm == name)
        n = sum(c for _, c in self.q[idx+1:])
        self.q = self.q[idx+1:]
        self.A(f's_waitcnt vmcnt({n}){extra}')
    d = 0; nl = 0; skip = False
    def upto(self, n):
        tot = sum(c for _, c in self.q)
        if self.skip and tot > n:
            self.nl += 1
            self.A(f's_cbranch_vccnz L_pc{self.nl}\ns_waitcnt vmcnt({n})\nL_pc{self.nl}:')
            return
        if tot > n: self.A(f's_waitcnt vmcnt({n})')
        if self.d and n < 50 and tot > max(n - self.d, 0):
            self.nl += 1
            self.A(f's_cbranch_vccz L_pc{self.nl}\ns_waitcnt vmcnt({max(n - self.d, 0)})\nL_pc{self.nl}:')

def gen(stamps=0, wnt='', snt=' nt', kvnt=' nt', forceslow=False, now=False, pad=0, padat=None, thr=1,
        hpre=3, psleep=32, xlast=0, xtries=12, sync=False, xs='rev', light=False, kfirst=True, k3=True, wlast=5, hs=None, wthr=4, fastmask=0, dthr=0, fh=(), fin='T', spec=False, fsleep=0, hl=(6, 12), early=False, satom=True, noxc=False, pkr=True, wq4=False, rtm=False, hsw=2, peek=2, catch=0, bent=None, lin=None, p2b=True, v3thr=2, k0thr=5, dirty=0, wb=0, clean=0, p2pre=1, outf='', perm=0, gov=None, govh=('V2a', 'V2b', 'V3a'), govn=4, ilv=True, mpoll=True, nohelp=False, nodep=False, tlb=False, presl=32, pref=' sc1', pollf=' sc1', p1pre=0, sl=(0, 6, 10)):
    A = Asm()
    def sreg(k): return 68 + 2*k if k < 3 else 16 + 2*(k-3)
    def stamp(k):
        if stamps and (not light or k in sl): A(f's_memrealtime s[{sreg(k)}:{sreg(k)+1}]')
        if padat == f's{k}': A('s_memrealtime s[100:101]')
    def hstamp(k):
        if nohelp and nohelp - 1 == k: A('s_endpgm')
        if stamps and (not light or k in hl):
            A(f's_memrealtime s[100:101]\ns_waitcnt lgkmcnt(0)\nv_writelane_b32 v164, s100, {k}\nv_writelane_b32 v165, s101, {k}')
        if padat == f'h{k}': A('s_memrealtime s[100:101]\ns_waitcnt lgkmcnt(0)')
    def dopad(lab):
        A(f'''
        {lab}:
        s_memrealtime s[98:99]
        s_waitcnt lgkmcnt(0)
        s_sub_u32 s98, s98, s100
        s_cmp_lt_u32 s98, {pad}
        s_cbranch_scc1 {lab}
        ''')
    def dump_stamps(slot0, regs_):
        A('s_waitcnt vmcnt(0) lgkmcnt(0)')
        A('s_mov_b64 exec, 1')
        A('s_lshl_b32 s60, s2, 9')
        A(f's_add_u32 s60, s60, {STAMPS}')
        A('v_mov_b32 v1, s60')
        for k, r in enumerate(regs_):
            A(f'v_mov_b32 v2, s{r}')
            A(f'v_mov_b32 v3, s{r+1}')
            A(f'buffer_store_dwordx2 v[2:3], v1, s[40:43], 0 offen offset:{8*(slot0+k)}')
    WSN = 0x400000 if stamps else WS_END
    Z = lambda n: 0 if (now is True or (now == 'small' and n in (448*3584, 448*8192) and not ZW[0]) or (now == 'W' and ZW[0]) or (now == 'wq' and n == 448*8192 and not ZW[0])) else n
    ZW = [False]
    hdr = open('cdna_kernels/%s.s.ref' % NAME).read().split('; Override launch geometry')[0]
    top = hdr + f'; @launch grid=(256,1,1) block=(576,1,1) lds={LDS_TOTAL}\n'
    A('.amdgcn_target "amdgcn-amd-amdhsa--gfx950"')
    A('.text')
    for ln in DOC.strip().split('\n'): A(ln)
    A(f'.globl {NAME}_kernel')
    A('.p2align 8')
    A(f'.type {NAME}_kernel,@function')
    A(f'{NAME}_kernel:')
    if sync:
        A('''
        s_memrealtime s[4:5]
        s_waitcnt lgkmcnt(0)
        s_add_u32 s6, s4, 4096+600
        s_and_b32 s6, s6, -4096
        s_load_dwordx2 s[8:9], s[0:1], 88
        s_lshl_b32 s7, s2, 3
        s_add_u32 s7, s7, 0x380000
        v_mov_b32 v2, s4
        v_mov_b32 v3, s6
        v_mov_b32 v1, s7
        s_waitcnt lgkmcnt(0)
        global_store_dwordx2 v1, v[2:3], s[8:9] sc1
        s_waitcnt vmcnt(0)
        ''')
        if rtm:
            A('''
            s_load_dwordx2 s[8:9], s[0:1], 80
            v_readfirstlane_b32 s3, v0
            s_waitcnt lgkmcnt(0)
            s_load_dwordx16 s[84:99], s[8:9], 4096
            s_lshr_b32 s3, s3, 6
            s_and_b32 s3, s3, 7
            s_and_b32 s7, s2, 0x38
            s_or_b32 s3, s3, s7
            s_and_b32 s7, s2, 7
            s_lshl_b32 s7, s7, 6
            s_or_b32 s3, s3, s7
            s_lshr_b32 s7, s2, 6
            s_lshl_b32 s7, s7, 9
            s_or_b32 s3, s3, s7
            s_mov_b32 s68, 0
            s_waitcnt lgkmcnt(0)
            ''')
            for k in range(11):
                A(f's_bitcmp1_b32 s3, {k}\ns_cselect_b32 s7, s{84+k}, 0\ns_xor_b32 s68, s68, s7')
            A('s_xor_b32 s69, s68, s95\ns_xor_b32 s70, s68, s96\ns_xor_b32 s71, s69, s96')
            for k in range(4): A(f's_xor_b32 s{72+k}, s{68+k}, s97')
        A('''
        L_sync:
        s_memrealtime s[4:5]
        s_waitcnt lgkmcnt(0)
        s_sub_u32 s4, s4, s6
        s_cmp_lt_i32 s4, 0
        s_cbranch_scc1 L_sync
        s_branch L_go
        .p2align 10
        L_go:
        ''')
    if perm == 1:
        A('s_cmpk_ge_u32 s2, 256\ns_cbranch_scc1 L_end\ns_lshr_b32 s3, s2, 3\ns_and_b32 s3, s3, 7\ns_xor_b32 s2, s2, s3')
    if perm == 2:
        A('s_and_b32 s3, s2, -2\ns_cmp_eq_u32 s3, 74\ns_cselect_b32 s3, 1, 0\ns_xor_b32 s2, s2, s3')
    if padat == 'he': A('s_memrealtime s[100:101]')
    stamp(0)
    def msk(bits): return sum(1 << x for x in bits)
    def tmask(i, half):
        if not lin: return i*524288 + half*4096
        t = [msk(x) for x in lin['t']]
        return (t[0] if half else 0) ^ (t[1] if i & 1 else 0) ^ (t[2] if i & 2 else 0)
    lincode = ''
    if xs == 'rev':
        xs = None
        if not (lin or bent): lincode = 's_brev_b32 s62, s5\ns_lshr_b32 s62, s62, 10\ns_and_b32 s62, s62, 0x180000\ns_or_b32 s58, s58, s62\n'
    if hsw == 1: lincode += 's_lshl_b32 s62, s66, 11\ns_lshl_b32 s63, s66, 9\ns_xor_b32 s62, s62, s63\ns_and_b32 s62, s62, 0x1000\ns_or_b32 s58, s58, s62\n'
    if hsw == 2: lincode += 's_lshl_b32 s62, s66, 11\ns_and_b32 s62, s62, 0x1000\ns_or_b32 s58, s58, s62\n'
    if lin:
        xs = None
        lincode = 's_mov_b32 s58, 0\n'
        for key, reg in (('w', 's3'), ('j', 's5'), ('h', 's4'), ('b', 's6')):
            for bit, m in enumerate(lin.get(key, [])):
                if m: lincode += f's_bitcmp1_b32 {reg}, {bit}\ns_cselect_b32 s62, {msk(m)}, 0\ns_xor_b32 s58, s58, s62\n'
    if bent:
        xs = None
        def gmul(a, b):
            r = 0
            for k in range(3):
                if b >> k & 1: r ^= a << k
            for k in (4, 3):
                if r >> k & 1: r ^= 0xb << (k - 3)
            return r
        for k, bit in enumerate(bent):
            if bit is None: continue
            m = sum((gmul(i >> 3, i & 7) >> k & 1) << i for i in range(64))
            lincode += f's_mov_b32 s76, {m & 0xffffffff}\ns_mov_b32 s77, {m >> 32}\ns_bitcmp1_b64 s[76:77], s66\ns_cselect_b32 s62, {1 << bit}, 0\ns_xor_b32 s58, s58, s62\n'
    vm = VM(A)
    vD = [4, 5, 6, 7]; vKA = [8, 9, 10, 11]; vVA = list(range(12, 20)); vTAG = 20
    KfA, KfB, KfC, Sx, Pk, Oa = 32, 64, 96, 128, 144, 152
    vCH, vR8 = 30, 31
    KS, VS = 's[8:11]', 's[12:15]'
    def issue(name, slot, halves=(0, 1)):
        srd = KS if name[0] == 'K' else VS
        i = int(name[1])
        for half in halves:
            first = (name == 'K0' and half == 0)
            hn = name + 'ab'[half]
            if gov and hn in govh:
                A(f'ds_read_b32 v1, v26 offset:{THR-MISC}\ns_waitcnt lgkmcnt(0)\nv_cmp_lt_u32 vcc, {govh.index(hn)}, v1')
            if not first:
                A(f's_xor_b32 m0, {"s74" if hs else "s59"}, {slot*8192 + half*4096}')
                A(f's_mov_b32 s60, s{68+2*i+half}' if rtm else f's_xor_b32 s60, s58, {tmask(i, half)}')
            for q in range(4):
                if q in (0, 2) and (hn in fh or (gov and hn in govh)):
                    A(f's_cbranch_vccz L_f{name}{half}{q}\ns_waitcnt vmcnt(1)\nL_f{name}{half}{q}:')
                A(f'buffer_load_dwordx4 v{vD[q]}, {srd}, {("s68" if rtm else "s58") if first else "s60"} offen offset:{q*1024}{kvnt} lds')
            vm.add(name, 4)
    def ha(name, slot, t=None):
        vm.upto(thr if t is None else t); issue(name, slot, (0,))
    def hb(name, slot, t=None):
        vm.upto(thr if t is None else t); issue(name, slot, (1,))
    A(f'''
    s_load_dwordx16 s[16:31], s[0:1], 0      ; x K V wq wo Bx wg wu
    s_load_dwordx8 s[32:39], s[0:1], 64
    v_readfirstlane_b32 s3, v0
    s_cmpk_ge_u32 s2, 256
    s_cbranch_scc1 L_end
    v_and_b32 v0, 63, v0                     ; lane
    s_lshr_b32 s3, s3, 6                     ; wave
    s_and_b32 s4, s2, 7                      ; hkv
    s_bfe_u32 s5, s2, 0x30003                ; j
    s_lshr_b32 s6, s2, 6                     ; b
    s_lshl3_add_u32 s56, s6, s4
    s_cmp_eq_u32 s3, 8
    s_cbranch_scc1 L_helper
    v_lshrrev_b32 v1, 4, v0
    v_and_b32 v1, 2, v1
    v_xor_b32 v1, v1, v0
    v_lshlrev_b32 v4, 4, v1
    v_xor_b32 v5, 64, v4
    v_xor_b32 v6, 0x80, v4
    v_xor_b32 v7, 64, v6
    s_lshl3_add_u32 s66, s5, s3              ; 8j + w
    s_lshl_b32 s57, s56, 23
    s_add_u32 s57, s57, {12288*512}
    s_lshl_b32 s59, s3, 14
    s_lshl_b32 s58, s66, 13
    {lincode}
    {f's_bfe_u32 s62, {xs[0]}, {0x20000 + xs[1]}' if xs else ''}
    {'s_lshl_b32 s62, s62, 19' if xs else ''}
    {'s_or_b32 s58, s58, s62' if xs else ''}
    {f's_bfe_u32 s62, {hs[0]}, {0x10000 + hs[1]}' if hs else ''}
    {'s_lshl_b32 s62, s62, 12' if hs else ''}
    {'s_or_b32 s58, s58, s62' if hs else ''}
    {'s_or_b32 s74, s59, s62' if hs else ''}
    s_mov_b32 s10, 0x200000
    s_mov_b32 s11, 0x20000
    ''')
    saddr = f'''
    v_bfe_u32 v2, v0, 4, 2
    v_lshlrev_b32 v2, 1, v2
    v_and_b32 v3, 7, v0
    v_xor_b32 v2, v2, v3
    v_lshlrev_b32 v{vCH}, 4, v2
    v_lshrrev_b32 v{vR8}, 3, v0
    s_movk_i32 s61, 3584
    s_bfe_u32 s65, s2, 0x30004               ; wq role: 64-column block
    s_lshl3_add_u32 s65, s4, s65
    s_bfe_u32 s67, s2, 0x20005
    s_lshl2_add_u32 s67, s4, s67
    s_and_b32 s63, s5, 3                     ; K quarter
    s_and_b32 s64, s5, 1
    s_lshl_b32 s64, s64, 1
    s_cmp_lt_u32 s4, 7
    s_cselect_b32 s46, {Z(448*3584)}, 0
    s_cselect_b32 s67, s67, 0
    s_cmp_lt_u32 s6, 2                       ; SCC: wq role
    s_cselect_b32 s46, {Z(448*8192)}, s46
    s_cselect_b32 s61, 0x2000, s61
    s_cselect_b32 s65, s65, s67
    s_cselect_b32 s63, s64, s63
    s_cselect_b32 s67, {112*8192}, 0
    s_cselect_b64 vcc, -1, 0
    s_mul_i32 s63, s63, 7
    s_add_u32 s63, s63, s3
    s_lshl_b32 s63, s63, 4
    s_mul_i32 s63, s63, s61
    s_lshl_b32 s65, s65, 7
    s_add_u32 s63, s63, s65
    s_add_u32 s67, s67, s63
    v_mad_u32_u24 v21, v{vR8}, s61, v{vCH}
    s_lshl_b32 s61, s61, 3
    s_lshl_b32 s62, s3, 11
    s_mov_b32 s47, s11
    s_max_u32 s7, s4, s5
    '''
    if not kfirst: A(saddr)
    A(f'''
    s_mov_b32 m0, {'s74' if hs else 's59'}
    {'s_memrealtime s[100:101]' if padat == 'sa' else ''}
    s_waitcnt lgkmcnt(0)
    {'s_memrealtime s[100:101]' if padat == 'sb' else ''}
    s_add_u32 s8, s18, s57
    s_addc_u32 s9, s19, 0
    ''')
    if kfirst:
        issue('K0', 0, (0, 1) if kfirst == 2 else (0,))
        A(saddr)
    A(f'''
    v_mov_b32 v28, 1
    s_cmp_eq_u32 s3, 7
    s_cbranch_scc1 L_ldx
    s_cmp_lg_u64 vcc, 0
    s_cselect_b64 s[44:45], s[22:23], s[28:29]
    s_cselect_b64 s[48:49], s[22:23], s[30:31]
    s_add_u32 m0, s62, {AREA}
    s_mov_b64 s[50:51], s[46:47]
    buffer_load_dwordx4 v21, s[44:47], s63 offen{snt} lds
    s_add_u32 m0, s62, {AREA+14336}
    s_add_u32 s63, s63, s61
    buffer_load_dwordx4 v21, s[48:51], s67 offen{snt} lds
    s_add_u32 m0, s62, {AREA+1024}
    s_add_u32 s67, s67, s61
    buffer_load_dwordx4 v21, s[44:47], s63 offen{snt} lds
    s_add_u32 m0, s62, {AREA+14336+1024}
    buffer_load_dwordx4 v21, s[48:51], s67 offen{snt} lds
    s_branch L_ldk
    L_ldx:
    v_lshlrev_b32 v21, 4, v0
    s_mov_b32 m0, {XN}
    s_mov_b64 s[44:45], s[16:17]
    s_movk_i32 s46, 3584
    buffer_load_dwordx4 v21, s[44:47], 0 offen lds
    buffer_load_dwordx4 v21, s[44:47], 0 offen offset:1024 lds
    buffer_load_dwordx4 v21, s[44:47], 0 offen offset:2048 lds
    s_mov_b32 exec_hi, 0
    buffer_load_dwordx4 v21, s[44:47], 0 offen offset:3072 lds
    s_mov_b32 exec_hi, -1
    L_ldk:
    ''')
    vm.add('small', 4)
    if not kfirst:
        A(f's_mov_b32 m0, {"s74" if hs else "s59"}')
        issue('K0', 0, (0,))
    stamp(1)
    A('s_branch L_stream')

    XR = 8
    XF = 32
    RA = 156
    WF = 64
    AC = 132
    PB = 64
    nstore = [0]
    def store2(ins):
        n = nstore[0]; nstore[0] += 1
        A(f's_cmp_eq_u32 s58, 0\ns_cbranch_scc1 L_ss{n}')
        for i in ins: A(i)
        A(f's_branch L_sd{n}\nL_ss{n}:')
        for i in ins: A(i + ' sc1')
        A(f'L_sd{n}:')
    def cntwait(off, lab, sl, n=8):
        A(f'''
        s_mov_b32 s63, {SPIN*8}
        {lab}:
        ds_read_b32 v9, v31 offset:{off-MISC}
        s_sub_u32 s63, s63, 1
        s_waitcnt lgkmcnt(0)
        s_cbranch_scc1 {lab}_done
        v_cmp_le_u32 vcc, {n}, v9
        s_cbranch_vccnz {lab}_done
        {f's_sleep {sl}' if sl else ''}
        s_branch {lab}
        {lab}_done:
        ''')
    A(f'''
    L_helper:
    s_setprio 3
    s_getreg_b32 s57, hwreg(HW_REG_XCC_ID, 0, 7)
    s_lshl_b32 s66, s4, 5
    s_lshr_b32 s61, s2, 3
    s_add_u32 s61, s61, s66
    s_add_u32 s57, s57, 1
    v_mov_b32 v9, s61
    v_mov_b32 v10, s57
    v_mov_b32 v31, {MISC}
    v_lshl_add_u32 v1, v0, 2, v31
    v_mov_b32 v2, 0
    ds_write_b32 v1, v2                      ; flags = 0
    s_mov_b64 exec, 1
    s_waitcnt lgkmcnt(0)
    {'' if noxc else 'global_store_byte v9, v10, s[36:37]      ; my XCD, for the workgroups that share my heads'}
    s_load_dword s62, s[38:39], {EPOCH}
    s_mov_b64 exec, -1
    ''')
    if tlb:
        A(f'''
        s_lshl_b32 s60, s56, 23
        s_add_u32 s60, s60, {12288*512}
        s_load_dword s76, s[20:21], s60          ; touch the pages used later: V window, wo, W_down, out
        s_add_u32 s60, s60, {(1<<21) - 64}
        s_load_dword s77, s[20:21], s60
        s_mul_i32 s60, s4, {512*896}
        s_load_dword s78, s[24:25], s60
        s_add_u32 s60, s60, {512*896 - 64}
        s_load_dword s79, s[24:25], s60
        s_load_dword s80, s[32:33], 0
        s_mov_b32 s60, {1792*896 - 64}
        s_load_dword s81, s[32:33], s60
        s_load_dword s82, s[34:35], 0
        ''')
    if stamps: A('v_mov_b32 v164, 0\nv_mov_b32 v165, 0\ns_memtime s[94:95]\ns_memrealtime s[96:97]')
    A(f'''
    s_mov_b64 s[40:41], s[38:39]
    s_mov_b32 s42, {WSN}
    s_mov_b32 s43, 0x20000
    s_mul_i32 s67, s56, 12288
    s_add_u32 s67, s67, {QP}
    s_mul_i32 s64, s6, 7
    s_add_u32 s64, s64, s5                   ; 7b + j
    s_lshl_b32 s7, s56, 9
    s_add_u32 s7, s7, {ST}
    ''')
    if hpre:
        A('v_lshlrev_b32 v8, 7, v0')
        if hpre in (2, 3):
            A(f'''
            s_cmp_lg_u32 s5, 7
            s_cbranch_scc1 L_nopre
            s_mov_b64 exec, 3
            buffer_load_dword v166, v8, s[40:43], s7 offen{pref}
            L_nopre:
            ''')
        A('s_mov_b64 exec, -1')
    XB = 128
    A(f'''
    v_lshrrev_b32 v1, 4, v0                  ; g
    v_and_b32 v2, 15, v0
    v_and_b32 v3, 3, v0
    v_mul_u32_u24 v3, 896, v3
    v_add_u32 v3, {XN}, v3                   ; row of batch l%4
    v_lshl_add_u32 v4, v1, 3, v3             ; + g*8
    v_and_b32 v5, 60, v0
    v_lshl_add_u32 v3, v5, 1, v3             ; + (l/4)*8
    s_and_b32 s60, s5, 3
    s_and_b32 s61, s5, 1
    s_lshl_b32 s65, s61, 11                  ; wq role: half * 2048
    s_bfe_u32 s59, s2, 0x30004
    s_lshl_b32 s59, s59, 8
    s_add_u32 s65, s65, s59                  ;   + block * 256
    s_lshl_b32 s63, s60, 11
    s_bfe_u32 s59, s2, 0x20005
    s_lshl_b32 s59, s59, 9
    s_add_u32 s63, s63, s59                  ;   + block * 512
    s_add_u32 s63, s63, 4096
    s_lshl_b32 s61, s61, 1
    s_cmp_lt_u32 s6, 2
    s_cselect_b32 s60, s61, s60
    s_cselect_b32 s61, 224, 0
    s_cselect_b32 s65, s65, s63
    s_mul_i32 s60, s60, 224
    v_add_u32 v4, s60, v4
    v_add_u32 v5, s61, v4
    s_mul_i32 s60, s4, 12288
    s_add_u32 s65, s65, s60
    s_add_u32 s65, s65, {QP}
    v_lshrrev_b32 v7, 2, v0
    v_lshlrev_b32 v7, 7, v7
    v_bfe_u32 v6, v0, 3, 2
    v_lshl_add_u32 v7, v6, 5, v7
    v_and_b32 v6, 3, v0
    v_lshl_add_u32 v7, v6, 3, v7
    v_add_u32 v156, {AREA}, v7
    v_xor_b32 v157, 32, v156
    v_xor_b32 v158, 64, v156
    v_xor_b32 v159, 0x60, v156
    s_mov_b64 s[8:9], 0xffff
    s_lshl_b64 s[10:11], s[8:9], 16
    s_lshl_b64 s[12:13], s[8:9], 32
    v_mov_b32 v30, 1
    v_lshlrev_b32 v29, 3, v0                 ; lane*8
    v_lshlrev_b32 v7, 4, v0                  ; lane*16
    v_lshlrev_b32 v6, 2, v0                  ; lane*4
    s_min_u32 s60, s64, 27
    s_lshl_b32 s60, s60, 7
    v_lshl_add_u32 v162, v0, 1, s60
    v_add_u32 v163, {XN}, v162
    v_and_b32 v160, 7, v0
    v_lshlrev_b32 v160, 2, v160
    v_add_u32 v160, s66, v160
    s_mul_i32 s46, s57, 0x01010101
    {'v_mov_b32 v161, s46' if noxc else 'global_load_dword v161, v160, s[36:37] sc1'}
    s_barrier
    ''')
    hstamp(0)
    cntwait(CNT0, 'L_w0', 1)
    hstamp(1)
    def wreads(s_):
        for hs_ in range(7):
            for T in range(4):
                d = WF + 14*T + 2*hs_
                A(f'ds_read_b64_tr_b16 v[{d}:{d+1}], v{156+T} offset:{s_*14336 + hs_*2048}')
    for u in range(7):
        A(f'ds_read_b64 v[{XR+2*u}:{XR+2*u+1}], v3 offset:{128*u}')
    A('ds_read_u16 v163, v163                   ; residual x')
    wreads(0)
    A(f'''
    s_mul_i32 s62, s62, 1664525
    s_add_u32 s62, s62, 1013904223
    v_mov_b32 v28, s62
    s_movk_i32 s47, 0xff
    s_waitcnt lgkmcnt(15)
    ''')
    for u in range(14):
        A(f'v_lshlrev_b32 v{XF+2*u}, 16, v{XR+u}')
        A(f'v_and_b32 v{XF+2*u+1}, 0xffff0000, v{XR+u}')
    def allsum(r):
        A(f'''
        v_add_f32_dpp v{r}, v{r}, v{r} row_ror:4 row_mask:0xf bank_mask:0xf
        v_add_f32_dpp v{r}, v{r}, v{r} row_ror:8 row_mask:0xf bank_mask:0xf
        v_mov_b32 v23, v{r}
        v_permlane16_swap_b32 v{r}, v23
        v_add_f32 v{r}, v{r}, v23
        v_mov_b32 v23, v{r}
        v_permlane32_swap_b32 v{r}, v23
        v_add_f32 v{r}, v{r}, v23
        ''')
    A(f'v_pk_add_f32 v[22:23], v[{XF}:{XF+1}], v[{XF+2}:{XF+3}]')
    A(f'v_pk_add_f32 v[26:27], v[{XF+4}:{XF+5}], v[{XF+6}:{XF+7}]')
    for u in range(4, 14, 2):
        A(f'v_pk_add_f32 v[22:23], v[22:23], v[{XF+2*u}:{XF+2*u+1}]')
        A(f'v_pk_add_f32 v[26:27], v[26:27], v[{XF+2*u+2}:{XF+2*u+3}]')
    A('v_pk_add_f32 v[22:23], v[22:23], v[26:27]')
    A('v_add_f32 v22, v22, v23')
    allsum(22)
    A(f'''
    v_mul_f32 v22, {f32(1/448)}, v22           ; mean
    v_cvt_pk_bf16_f32 v24, v22, v22
    v_and_b32 v24, 0xffff0000, v24           ; bf16(mean)
    v_sub_f32 v22, v22, v24
    ''')
    for u in range(14):
        A(f'v_pk_add_f32 v[{XF+2*u}:{XF+2*u+1}], v[{XF+2*u}:{XF+2*u+1}], v[24:25] op_sel_hi:[1,0] neg_lo:[0,1] neg_hi:[0,1]')
    A(f'v_pk_mul_f32 v[26:27], v[{XF}:{XF+1}], v[{XF}:{XF+1}]')
    A(f'v_pk_mul_f32 v[24:25], v[{XF+2}:{XF+3}], v[{XF+2}:{XF+3}]')
    for u in range(2, 14, 2):
        A(f'v_pk_fma_f32 v[26:27], v[{XF+2*u}:{XF+2*u+1}], v[{XF+2*u}:{XF+2*u+1}], v[26:27]')
        A(f'v_pk_fma_f32 v[24:25], v[{XF+2*u+2}:{XF+2*u+3}], v[{XF+2*u+2}:{XF+2*u+3}], v[24:25]')
    A('v_pk_add_f32 v[26:27], v[26:27], v[24:25]')
    A('v_add_f32 v26, v26, v27')
    for u in range(14):
        A(f'v_cvt_pk_bf16_f32 v{XR+u}, v{XF+2*u}, v{XF+2*u+1}')
    allsum(26)
    A(f'''
    v_mul_f32 v26, {f32(1/448)}, v26
    v_fma_f32 v26, -v22, v22, v26            ; var
    v_max_f32 v26, 0, v26
    v_cvt_pk_bf16_f32 v26, v26, v26
    v_and_b32 v26, 0xffff0000, v26           ; bf16(var)
    v_add_f32 v26, {f32(1e-5)}, v26
    v_cvt_pk_bf16_f32 v26, v26, v26
    v_and_b32 v26, 0xffff0000, v26
    v_sqrt_f32 v26, v26
    v_cvt_pk_bf16_f32 v26, v26, v26
    v_and_b32 v26, 0xffff0000, v26
    v_rcp_f32 v26, v26
    ''')
    for u in range(14):
        A(f'v_lshlrev_b32 v{XF+2*u}, 16, v{XR+u}')
        A(f'v_and_b32 v{XF+2*u+1}, 0xffff0000, v{XR+u}')
    for u in range(14):
        A(f'v_pk_mul_f32 v[{XF+2*u}:{XF+2*u+1}], v[{XF+2*u}:{XF+2*u+1}], v[26:27] op_sel_hi:[1,0]')
    for u in range(14):
        A(f'v_cvt_pk_bf16_f32 v{XR+u}, v{XF+2*u}, v{XF+2*u+1}')
    for u in range(7):
        A(f'ds_write_b64 v3, v[{XR+2*u}:{XR+2*u+1}] offset:{128*u}')
    for s_ in range(2):
        for ks in range(3):
            A(f'ds_read2_b64 v[{XB+14*s_+4*ks}:{XB+14*s_+4*ks+3}], v{4+s_} offset0:{8*ks} offset1:{8*ks+4}')
        A(f'ds_read_b64 v[{XB+14*s_+12}:{XB+14*s_+13}], v{4+s_} offset:192')
    def mm(s_):
        for ks in range(4):
            for T in range(4):
                acc = 32 + 16*s_ + 4*T
                xa = XB + 14*s_ + 4*ks; bb = WF + 14*T + 4*ks
                c = '0' if ks == 0 else f'v[{acc}:{acc+3}]'
                if ks < 3: A(f'v_mfma_f32_16x16x32_bf16 v[{acc}:{acc+3}], v[{xa}:{xa+3}], v[{bb}:{bb+3}], {c}')
                else: A(f'v_mfma_f32_16x16x16_bf16 v[{acc}:{acc+3}], v[{xa}:{xa+1}], v[{bb}:{bb+1}], {c}')
    hstamp(2)
    A('s_waitcnt lgkmcnt(0)')
    mm(0)
    wreads(1)
    A(f'''
    s_mov_b32 s58, {0 if forceslow else 1}
    s_movk_i32 s63, {xtries}
    L_xc:
    s_waitcnt vmcnt(0)
    v_cmp_ne_u32 vcc, s46, v161
    s_cbranch_vccz L_xc_done
    global_load_dword v161, v160, s[36:37] sc1
    s_sub_u32 s63, s63, 1
    s_cbranch_scc0 L_xc
    s_mov_b32 s58, 0
    L_xc_done:
    s_waitcnt lgkmcnt(0)
    ''')
    mm(1)
    A(f'''
    s_add_u32 s60, s65, {8*12288}
    s_add_u32 s61, s65, {16*12288}
    s_add_u32 s63, s65, {24*12288}
    v_lshlrev_b32 v163, 16, v163
    v_and_b32 v16, 24, v29
    v_lshrrev_b32 v16, v16, v28
    v_and_b32 v17, 16, v7
    v_lshrrev_b32 v17, v17, v28
    v_lshrrev_b32 v18, 8, v17
    s_lshr_b32 s48, s62, 8
    s_lshr_b32 s49, s62, 16
    s_lshr_b32 s50, s62, 24
    s_movk_i32 s51, 0xff00
    ''')
    for s_ in range(2):
        a_ = 32 + 16*s_
        for r in range(4):
            A(f'v_cndmask_b32 v{a_+12+r}, v{a_+12+r}, v{a_+8+r}, s[12:13]')
        for r in range(4):
            A(f'v_cndmask_b32 v{a_+12+r}, v{a_+12+r}, v{a_+4+r}, s[10:11]')
        for r in range(4):
            A(f'v_cndmask_b32 v{8+2*r+s_}, v{a_+12+r}, v{a_+r}, s[8:9]')
    so4 = ('s65', 's60', 's61', 's63')
    A('s_cmp_lt_u32 s6, 2')
    A('s_cbranch_scc1 L_pubq')
    for r in range(8):
        A(f'v_bfi_b32 v{8+r}, s47, v{17 + (r & 1)}, v{8+r}')
    store2([f'buffer_store_dwordx2 v[{8+2*r}:{9+2*r}], v29, s[40:43], {so4[r]} offen' for r in range(4)])
    A('s_branch L_pubd')
    A('L_pubq:')
    for r in range(4):
        A(f'v_add_f32 v{8+2*r}, v{8+2*r}, v{9+2*r}')
    for r in range(4):
        A(f'v_bfi_b32 v{8+2*r}, s47, v16, v{8+2*r}')
    store2([f'buffer_store_dword v{8+2*r}, v6, s[40:43], {so4[r]} offen' for r in range(4)])
    A('L_pubd:')
    hstamp(3)
    def gather(lab, n, soffs):
        A(f's_mov_b32 s63, {SPIN}\n{lab}:\ns_sleep {psleep}')
        for k in range(n):
            A(f'buffer_load_dwordx4 v[{32+4*k}:{35+4*k}], v7, s[40:43], {soffs[k>>2]} offen offset:{(k&3)*1024}{pollf}')
        A(f'''
        s_sub_u32 s63, s63, 1
        s_waitcnt vmcnt(0)
        s_cbranch_scc1 {lab}_done
        v_xor_b32 v24, s62, v32
        v_xor_b32 v25, s48, v33
        ''')
        for r in range(34, 32 + 4*n, 2):
            A(f'v_bitop3_b32 v24, v{r}, {"s49" if r & 2 else "s62"}, v24 bitop3:0xbe')
            A(f'v_bitop3_b32 v25, v{r+1}, {"s50" if r & 2 else "s48"}, v25 bitop3:0xbe')
        A(f'''
        v_or_b32 v24, v24, v25
        v_and_b32 v24, s47, v24
        v_cmp_ne_u32 vcc, 0, v24
        s_cbranch_vccnz {lab}
        {lab}_done:
        ''')
        for r in range(32, 32 + 4*n):
            A(f'v_and_b32 v{r}, s51, v{r}')
    gather('L_gq', 4, ['s67'])
    A(f'''
    v_pk_add_f32 v[32:33], v[32:33], v[40:41]
    v_pk_add_f32 v[34:35], v[34:35], v[42:43]
    v_pk_add_f32 v[36:37], v[36:37], v[44:45]
    v_pk_add_f32 v[38:39], v[38:39], v[46:47]
    v_add_u32 v24, {QL}, v29
    v_cvt_pk_bf16_f32 v8, v32, v33
    v_cvt_pk_bf16_f32 v9, v34, v35
    v_cvt_pk_bf16_f32 v10, v36, v37
    v_cvt_pk_bf16_f32 v11, v38, v39
    ds_write_b64 v24, v[8:9]
    ds_write_b64 v24, v[10:11] offset:512
    ds_write_b32 v31, v30 offset:{FLQ-MISC}
    v_mov_b32 v27, v28
    ''')
    hstamp(6)
    A('s_add_u32 s60, s67, 4096\ns_add_u32 s61, s67, 8192')
    gather('L_gh', 8, ['s60', 's61'])
    for k in range(4):
        A(f'v_pk_add_f32 v[{32+2*k}:{33+2*k}], v[{32+2*k}:{33+2*k}], v[{40+2*k}:{41+2*k}]')
        A(f'v_pk_add_f32 v[{48+2*k}:{49+2*k}], v[{48+2*k}:{49+2*k}], v[{56+2*k}:{57+2*k}]')
    for k in range(4):
        A(f'v_pk_add_f32 v[{32+2*k}:{33+2*k}], v[{32+2*k}:{33+2*k}], v[{48+2*k}:{49+2*k}]')
    for k in range(4):
        A(f'v_cvt_pk_bf16_f32 v{33+2*k}, v{32+2*k}, v{33+2*k}')
        A(f'v_lshlrev_b32 v{32+2*k}, 16, v{33+2*k}')
        A(f'v_and_b32 v{33+2*k}, 0xffff0000, v{33+2*k}')
        A(f'v_max_f32 v{32+2*k}, 0, v{32+2*k}')
        A(f'v_mul_f32 v{32+2*k}, v{32+2*k}, v{33+2*k}')
    A(f'''
    v_cvt_pk_bf16_f32 v8, v32, v34
    v_cvt_pk_bf16_f32 v9, v36, v38
    v_add_u32 v24, {HL}, v6
    ds_write2st64_b32 v24, v8, v9 offset0:0 offset1:1
    ''')
    hstamp(5)
    if gov:
        A(f'''
        s_lshr_b32 s60, s2, 3
        s_lshl_b32 s60, s60, 7
        s_add_u32 s60, s60, {TK2}
        s_add_u32 s32, s38, s60
        s_addc_u32 s33, s39, 0
        v_mov_b32 v56, s60
        v_not_b32 v57, v28
        s_mov_b64 exec, 1
        buffer_store_byte v57, v56, s[40:43], s4 offen sc1
        s_mov_b64 exec, -1
        s_lshl_b32 s60, s4, 3
        s_lshl_b64 s[30:31], 0xff, s60
        ''')
    A(f'''
    v_mov_b32 v32, -1
    v_mov_b32 v33, -1
    v_mov_b32 v34, -1
    v_mov_b32 v35, -1
    s_cmp_eq_u32 s5, 7
    s_cbranch_scc1 L_notk
    s_lshl3_add_u32 s60, s64, s4
    s_lshl_b32 s60, s60, 8
    s_add_u32 s60, s60, {P2}
    buffer_store_dword v32, v6, s[40:43], s60 offen sc1
    s_cmp_lg_u32 s4, 0
    s_cbranch_scc1 L_notk
    s_lshl_b32 s60, s64, 7
    s_add_u32 s60, s60, {TK}
    v_mov_b32 v26, 0
    s_mov_b64 exec, 1
    buffer_store_dwordx2 v[26:27], v6, s[40:43], s60 offen sc1
    s_mov_b64 exec, -1
    L_notk:
    s_lshl3_add_u32 s60, s56, s5
    s_lshl_b32 s60, s60, 10
    s_add_u32 s60, s60, {P1}
    ''')
    store2(['buffer_store_dwordx4 v[32:35], v7, s[40:43], s60 offen'])
    A('s_waitcnt vmcnt(0)')
    cntwait(CNT, 'L_wc', 4, govn if gov else 8)
    if gov:
        tbl = sum(n << (4*(k+1)) for k, n in enumerate(gov))
        A(f'''
        s_atomic_xor_x2 s[30:31], s[32:33], 0 glc
        s_and_b32 s60, s62, 0xff
        s_mul_i32 s26, s60, 0x01010101
        s_mov_b32 s27, s26
        s_mov_b32 s28, {tbl & 0xffffffff}
        s_mov_b32 s29, {tbl >> 32}
        s_waitcnt lgkmcnt(0)
        s_xor_b64 s[30:31], s[30:31], s[26:27]
        s_bcnt1_i32_b64 s60, s[30:31]
        s_lshr_b32 s60, s60, 3
        s_lshl_b32 s60, s60, 2
        s_lshr_b64 s[28:29], s[28:29], s60
        s_and_b32 s60, s28, 15
        v_mov_b32 v9, s60
        ds_write_b32 v31, v9 offset:{THR-MISC}
        ''')
        cntwait(CNT, 'L_wc2', 4)
    hstamp(7)
    A(f'''
    ; workgroup stats from the 8 waves (lane = h*8+w)
    v_lshlrev_b32 v8, 3, v2
    v_add_u32 v8, {STW}, v8
    ds_read_b64 v[4:5], v8
    s_lshl4_add_u32 s61, s5, s7
    v_mov_b32 v25, v28
    s_waitcnt lgkmcnt(0)
    v_max_f32_dpp v24, v4, v4 quad_perm:[1,0,3,2] row_mask:0xf bank_mask:0xf
    v_max_f32_dpp v24, v24, v24 quad_perm:[2,3,0,1] row_mask:0xf bank_mask:0xf
    v_max_f32_dpp v24, v24, v24 row_half_mirror row_mask:0xf bank_mask:0xf
    v_sub_f32 v26, v4, v24
    v_mul_f32 v26, {CEXP}, v26
    v_exp_f32 v26, v26
    v_mul_f32 v26, v26, v5
    v_add_f32_dpp v26, v26, v26 quad_perm:[1,0,3,2] row_mask:0xf bank_mask:0xf
    v_add_f32_dpp v26, v26, v26 quad_perm:[2,3,0,1] row_mask:0xf bank_mask:0xf
    v_add_f32_dpp v26, v26, v26 row_half_mirror row_mask:0xf bank_mask:0xf
    s_mov_b64 exec, 0x101
    ''')
    store2([f'buffer_store_dwordx4 v[24:27], v7, s[40:43], s61 offen'])
    A(f'''
    s_mov_b64 exec, 0xffff
    s_mov_b32 s63, {SPIN}
    L_polls:
    s_sleep {psleep}
    buffer_load_dwordx4 v[16:19], v7, s[40:43], s7 offen{pollf}
    s_sub_u32 s63, s63, 1
    s_waitcnt vmcnt(0)
    s_cbranch_scc1 L_polls_done
    v_min3_u32 v10, v17, v19, v28
    v_max3_u32 v11, v17, v19, v28
    v_cmp_ne_u32 vcc, v10, v11
    s_cbranch_vccnz L_polls
    L_polls_done:
    ''')
    hstamp(8)
    A(f'''
    v_max_f32_dpp v10, v16, v16 quad_perm:[1,0,3,2] row_mask:0xf bank_mask:0xf
    v_max_f32_dpp v10, v10, v10 quad_perm:[2,3,0,1] row_mask:0xf bank_mask:0xf
    v_max_f32_dpp v10, v10, v10 row_half_mirror row_mask:0xf bank_mask:0xf
    v_sub_f32 v11, v16, v10
    v_sub_f32 v10, v4, v10
    v_mul_f32 v11, {CEXP}, v11
    v_mul_f32 v10, {CEXP}, v10
    v_exp_f32 v11, v11
    v_exp_f32 v10, v10
    v_mul_f32 v11, v11, v18
    v_add_f32_dpp v11, v11, v11 quad_perm:[1,0,3,2] row_mask:0xf bank_mask:0xf
    v_add_f32_dpp v11, v11, v11 quad_perm:[2,3,0,1] row_mask:0xf bank_mask:0xf
    v_add_f32_dpp v11, v11, v11 row_half_mirror row_mask:0xf bank_mask:0xf
    v_rcp_f32 v11, v11
    v_mul_f32 v10, v10, v11                  ; factor for (wave = lane&7, head = lane>>3)
    v_and_b32 v9, 56, v29
    v_lshrrev_b32 v8, 1, v0
    v_and_b32 v8, 4, v8
    v_add3_u32 v9, v9, v8, v31
    v_subrev_u32 v9, {MISC-FACW}, v9
    ds_write_b32 v9, v10
    s_mov_b64 exec, -1
    v_mov_b32 v24, 1
    v_mov_b32 v25, s58
    v_mov_b32 v26, v28
    ds_write_b128 v31, v[24:27] offset:{FLF-MISC}
    s_cmp_eq_u32 s5, 7
    s_waitcnt lgkmcnt(0)
    {'' if early else 's_cbranch_scc1 ' + ('L_end' if pad else 'L_hdone')}
    ''')
    if dirty:
        A(f's_lshl_b32 s60, s2, 14\ns_add_u32 s60, s60, 0x400000\ns_mov_b32 s42, 0x1000000')
        for k in range(dirty):
            A(f'buffer_store_dwordx4 v[24:27], v7, s[40:43], s60 offen\ns_add_u32 s60, s60, 1024')
    if wb:
        A(f's_cmp_ge_u32 s2, {8*wb}\ns_cbranch_scc1 L_nowb\nbuffer_wbl2 sc1\ns_waitcnt vmcnt(0)\nL_nowb:')
    A(f'''
    v_mov_b32 v4, v162
    v_mov_b32 v5, v163
    s_mov_b64 s[52:53], s[34:35]
    s_movk_i32 s54, 3584
    s_mov_b32 s55, 0x20000
    s_lshl_b32 s60, s64, {11 if p2b else 12}
    s_add_u32 s60, s60, {P2}
    v_add_u32 v6, s60, {'v6' if p2b else 'v29'}
    v_lshlrev_b32 v7, 2, v0
    v_add_u32 v7, {YL}, v7
    ''')
    for i in range(1, 8):
        A(f's_xor_b32 s{18+i}, s4, {i}')
        A(f's_lshl_b32 s{18+i}, s{18+i}, {8 if p2b else 9}')
    A(f'''
    s_lshl_b32 s60, s56, 13
    s_add_u32 s60, s60, {P1 + 8192 - 128}
    v_lshl_add_u32 v57, v0, 3, s60           ; last line of the group's O hand-off
    s_lshl_b32 s60, s64, 7
    s_add_u32 s60, s60, {TK}
    s_add_u32 s32, s38, s60
    s_addc_u32 s33, s39, 0
    s_mov_b32 s63, {SPIN}
    L_tkw:
    s_load_dwordx2 s[28:29], s[32:33], 0 glc
    s_sub_u32 s63, s63, 1
    s_waitcnt lgkmcnt(0)
    s_cbranch_scc1 L_tkw_done
    s_cmp_eq_u32 s29, s62
    s_cbranch_scc1 L_tkw_done
    s_sleep {psleep}
    s_branch L_tkw
    L_tkw_done:
    s_mov_b32 s30, 1
    s_mov_b32 s63, {SPIN}
    s_mov_b64 exec, 0xffff
    s_barrier                               ; #4
    ''')
    hstamp(9)
    def trigpoll(done):
        A(f'''
        buffer_load_dword v61, v57, s[40:43], 0 offen sc1
        s_waitcnt vmcnt(0)
        v_cmp_eq_u32 vcc, -1, v61
        s_cbranch_vccz {done}
        ''')
    A('L_trig:')
    if peek:
        A('s_load_dword s28, s[32:33], 0 glc')
        for k in range(peek + 1): trigpoll('L_trig_done')
        A('s_waitcnt lgkmcnt(0)\ns_cmp_eq_u32 s28, 7\ns_cbranch_scc1 L_sure')
    else:
        trigpoll('L_trig_done')
    A(f'''
    s_sub_u32 s63, s63, 1
    s_cbranch_scc0 L_trig
    L_trig_done:
    s_atomic_add s30, s[32:33], 0 glc
    s_mov_b64 exec, -1
    L_b5:
    ''')
    hstamp(10)
    A(f'''
    s_barrier                               ; #5
    ds_read2st64_b32 v[48:49], v7 offset0:0 offset1:1
    ds_read2st64_b32 v[50:51], v7 offset0:2 offset1:3
    ds_read2st64_b32 v[52:53], v7 offset0:4 offset1:5
    ds_read2st64_b32 v[54:55], v7 offset0:6 offset1:7
    s_mov_b32 s63, {SPIN}
    s_waitcnt lgkmcnt(0)
    s_cmp_lt_u32 s30, 7
    s_cbranch_scc1 L_hdone
    ''')
    hstamp(13)
    A(f'''
    {'s_cmp_eq_u32 s30, 8' if peek else ''}
    {'s_cbranch_scc1 L_adds' if peek else ''}
    buffer_load_dword v34, v6, s[40:43], s19 offen sc1
    buffer_load_dword v36, v6, s[40:43], s20 offen sc1
    buffer_load_dword v38, v6, s[40:43], s21 offen sc1
    buffer_load_dword v40, v6, s[40:43], s22 offen sc1
    buffer_load_dword v42, v6, s[40:43], s23 offen sc1
    buffer_load_dword v44, v6, s[40:43], s24 offen sc1
    buffer_load_dword v46, v6, s[40:43], s25 offen sc1
    L_adds:
    v_add_f32 v48, v48, v49
    v_add_f32 v50, v50, v51
    v_add_f32 v52, v52, v53
    v_add_f32 v54, v54, v55
    v_add_f32 v48, v48, v50
    v_add_f32 v52, v52, v54
    v_add_f32 v26, v48, v52
    L_fchk:
    s_sub_u32 s63, s63, 1
    s_waitcnt vmcnt(0)
    s_cbranch_scc1 L_fsum
    v_max3_u32 v12, v34, v36, v38
    v_max3_u32 v13, v40, v42, v44
    v_max3_u32 v12, v12, v13, v46
    v_cmp_eq_u32 vcc, -1, v12
    s_cbranch_vccnz L_fpoll
    L_fsum:
    v_add_f32 v34, v34, v26                  ; slots hkv^i: the tree is the same for every finisher
    v_add_f32 v36, v36, v38
    v_add_f32 v40, v40, v42
    v_add_f32 v44, v44, v46
    v_add_f32 v34, v34, v36
    v_add_f32 v40, v40, v44
    L_finish:
    v_add_f32 v34, v34, v40
    v_add_f32 v34, v34, v5
    v_cvt_pk_bf16_f32 v34, v34, v34
    buffer_store_short v34, v4, s[52:55], 0 offen{outf}
    ''')
    hstamp(11)
    if stamps and 14 in hl:
        A(f's_sub_u32 s60, {SPIN}, s63\ns_mul_i32 s60, s60, 100\ns_add_u32 s60, s68, s60\ns_addc_u32 s61, s69, 0\nv_writelane_b32 v164, s60, 14\nv_writelane_b32 v165, s61, 14')
    A(f'''
    s_cmp_lg_u32 s64, 21
    s_cbranch_scc1 L_hdone
    s_mov_b64 exec, 1
    v_mov_b32 v1, {EPOCH}
    buffer_store_dword v28, v1, s[40:43], 0 offen
    L_hdone:
    ''')
    if padat == 'hz': A('s_waitcnt vmcnt(0)\ns_memrealtime s[100:101]\ns_waitcnt lgkmcnt(0)')
    if pad and padat[0] == 'h': dopad('L_padh')
    if stamps:
        A('s_waitcnt vmcnt(0)')
        hstamp(12)
        A('''
        s_memtime s[92:93]
        s_waitcnt lgkmcnt(0)
        s_sub_u32 s92, s92, s94
        s_sub_u32 s93, s100, s96
        v_cvt_f32_u32 v1, s92
        v_cvt_f32_u32 v2, s93
        v_rcp_f32 v2, v2
        v_mul_f32 v1, v1, v2
        v_mul_f32 v1, 0x42c80000, v1
        v_cvt_u32_f32 v1, v1
        v_readfirstlane_b32 s92, v1
        s_add_u32 s92, s92, s68
        s_addc_u32 s93, s69, 0
        v_writelane_b32 v164, s92, 15
        v_writelane_b32 v165, s93, 15
        ''')
        A(f'''
        s_mov_b64 exec, 0xffff
        s_lshl_b32 s60, s2, 9
        s_add_u32 s60, s60, {STAMPS+256}
        buffer_store_dwordx2 v[164:165], v29, s[40:43], s60 offen
        ''')
    A(f'''
    L_end:
    s_endpgm
    L_fpoll:
    buffer_load_dword v34, v6, s[40:43], s19 offen sc1
    buffer_load_dword v36, v6, s[40:43], s20 offen sc1
    buffer_load_dword v38, v6, s[40:43], s21 offen sc1
    buffer_load_dword v40, v6, s[40:43], s22 offen sc1
    buffer_load_dword v42, v6, s[40:43], s23 offen sc1
    buffer_load_dword v44, v6, s[40:43], s24 offen sc1
    buffer_load_dword v46, v6, s[40:43], s25 offen sc1
    s_branch L_fchk
    ''')
    if peek:
        A(f'''
    L_sure:                                 ; the seven others have arrived already
    ds_write_b32 v31, v30 offset:{NOPUB-MISC}
    s_mov_b32 s30, 8
    L_trig2:
    ''')
        trigpoll('L_trig2_done')
        A(f'''
    s_sub_u32 s63, s63, 1
    s_cbranch_scc0 L_trig2
    L_trig2_done:
    s_mov_b64 exec, -1
    buffer_load_dword v34, v6, s[40:43], s19 offen sc1
    buffer_load_dword v36, v6, s[40:43], s20 offen sc1
    buffer_load_dword v38, v6, s[40:43], s21 offen sc1
    buffer_load_dword v40, v6, s[40:43], s22 offen sc1
    buffer_load_dword v42, v6, s[40:43], s23 offen sc1
    buffer_load_dword v44, v6, s[40:43], s24 offen sc1
    buffer_load_dword v46, v6, s[40:43], s25 offen sc1
    s_waitcnt lgkmcnt(0)
    s_branch L_b5
    ''')
    ZW[0] = True
    A(f'''
    L_stream:
    s_barrier
    s_add_u32 s12, s20, s57
    s_addc_u32 s13, s21, 0
    s_mov_b64 s[14:15], s[10:11]
    s_mov_b64 s[40:41], s[38:39]
    s_mov_b32 s42, {WSN}
    s_mov_b32 s43, s11
    v_mov_b32 v26, {MISC}
    ''')
    if fastmask:
        A(f'''
        s_getreg_b32 s60, hwreg(HW_REG_XCC_ID, 0, 3)
        s_bitcmp1_b32 {fastmask}, s60
        s_cselect_b64 vcc, -1, 0
        ''')
        vm.d = dthr
    if kfirst == 1: hb('K0', 0, k0thr)
    if kfirst == 2: ha('K1', 1, k0thr)
    A(f'''
    s_mov_b64 s[52:53], s[24:25]
    s_mov_b64 s[48:49], s[32:33]
    s_mov_b32 s51, s11
    s_mov_b32 s55, s11
    s_cmp_lt_u32 s5, 7
    s_cselect_b32 s54, {Z(4096*896)}, 0
    s_cselect_b32 s61, s5, 0
    s_lshl_b32 s61, s61, 7
    s_lshl4_add_u32 s64, s4, s3
    s_mul_i32 s64, s64, {32*896}
    s_add_u32 s64, s64, s61
    s_lshl3_add_u32 s65, s4, s3
    s_mul_i32 s65, s65, {32*896}
    s_add_u32 s65, s65, s61
    s_cmp_lt_u32 s7, 7
    s_cselect_b32 s50, {Z(1792*896)}, 0
    s_cselect_b32 s65, s65, 0
    v_and_b32 v1, 15, v0                     ; row
    v_lshrrev_b32 v2, 4, v0                  ; g
    v_and_b32 v3, 7, v0
    v_lshlrev_b32 v3, 1, v3
    v_xor_b32 v3, v3, v2
    v_lshlrev_b32 v3, 4, v3
    v_lshl_add_u32 v3, v1, 9, v3
    v_add_u32 v8, s59, v3
    v_xor_b32 v9, 64, v8
    v_xor_b32 v10, 0x80, v8
    v_xor_b32 v11, 0xc0, v8
    ''')
    def readK(dst, slot):
        for t in range(8):
            A(f'ds_read_b128 v[{dst+4*t}:{dst+4*t+3}], v{vKA[t&3]} offset:{slot*8192 + (t>>2)*256}')
    def readQ(dst, ts):
        for n, t in enumerate(ts):
            A(f'ds_read_b128 v[{dst+4*n}:{dst+4*n+3}], v24 offset:{t*64}')
    def qk(tile, src, qf, ts=range(8)):
        for n, t in enumerate(ts):
            c = '0' if t == 0 else f'v[{Sx+4*tile}:{Sx+4*tile+3}]'
            A(f'v_mfma_f32_16x16x32_bf16 v[{Sx+4*tile}:{Sx+4*tile+3}], v[{src+4*t}:{src+4*t+3}], v[{qf+4*n}:{qf+4*n+3}], {c}')
    def flagwait(off, lab):
        if nohelp:
            A(f'{lab}_done:')
            return
        A(f'''
        s_mov_b32 s61, {SPIN*8}
        {lab}:
        ds_read_b32 v1, v26 offset:{off-MISC}
        s_sub_u32 s61, s61, 1
        s_waitcnt lgkmcnt(0)
        s_cbranch_scc1 {lab}_done
        v_readfirstlane_b32 s67, v1
        s_cmp_lg_u32 s67, 0
        s_cbranch_scc1 {lab}_done
        s_sleep 1
        s_branch {lab}
        {lab}_done:
        ''')
    vm.wait('small')
    A(f'''
    s_mov_b64 exec, 1
    ds_add_u32 v26, v28 offset:{CNT0-MISC}
    s_mov_b64 exec, -1
    ''')
    stamp(2)
    if not (kfirst or xlast == 2): hb('K0', 0)
    if kfirst != 2: ha('K1', 1)
    if kfirst != 2: vm.wait('K0')
    readK(KfA, 0)
    A(f'''
    v_lshrrev_b32 v21, 2, v0                 ; row = l/4
    v_and_b32 v22, 7, v21
    v_lshlrev_b32 v22, 5, v22
    v_lshl_add_u32 v22, v21, 9, v22
    v_and_b32 v23, 3, v0
    v_lshl_add_u32 v22, v23, 3, v22
    v_add_u32 v12, s59, v22
    ''')
    for t in range(1, 8):
        A(f'v_xor_b32 v{12+t}, {t*32}, v12')
    A(f'''
    v_and_b32 v24, 1, v0
    v_lshlrev_b32 v25, 6, v24                ; head*64
    v_lshlrev_b32 v24, 9, v24
    v_lshl_add_u32 v24, v2, 4, v24
    v_add_u32 v24, {QL}, v24
    s_lshl_b32 s60, s3, 3
    s_add_u32 s60, s60, {STW}
    v_add_u32 v25, s60, v25
    ''')
    hb('K1', 1)
    A('s_waitcnt lgkmcnt(0)')
    ha('K2', 0)
    vm.wait('K1')
    readK(KfB, 1)
    hb('K2', 0)
    A('s_waitcnt lgkmcnt(0)')
    ha('K3', 1)
    vm.wait('K2')
    if k3:
        readK(KfC, 0)
        hb('K3', 1)
        A('s_waitcnt lgkmcnt(0)')
        ha('V0', 0)
        vm.wait('K3')
        hb('V0', 0)
        stamp(3)
        if not nodep: flagwait(FLQ, 'L_wq')
        stamp(4)
        readQ(Pk, range(4))
        readQ(160, range(4, 6))
        A('s_waitcnt lgkmcnt(2)')
        for tile, src in enumerate((KfA, KfB, KfC)): qk(tile, src, Pk, range(4))
        readQ(Pk, range(6, 8))
        A('s_waitcnt lgkmcnt(2)')
        for tile, src in enumerate((KfA, KfB, KfC)): qk(tile, src, 160, range(4, 6))
        A('s_waitcnt lgkmcnt(0)')
        for tile, src in enumerate((KfA, KfB, KfC)): qk(tile, src, Pk, range(6, 8))
        readK(KfA, 1)
        readQ(KfB, range(8))
        A('s_waitcnt lgkmcnt(0)')
        issue('V1', 1, (0,))
        qk(3, KfA, KfB)
    else:
        hb('K3', 1)
        stamp(3)
        if not nodep: flagwait(FLQ, 'L_wq')
        stamp(4)
        readQ(KfC, range(8))
        A('s_waitcnt lgkmcnt(0)')
        qk(0, KfA, KfC)
        readK(KfA, 0)
        qk(1, KfB, KfC)
        A('s_waitcnt lgkmcnt(0)')
        qk(2, KfA, KfC)
        ha('V0', 0)
        vm.wait('K3')
        readK(KfB, 1)
        issue('V0', 0, (1,))
        A('s_waitcnt lgkmcnt(0)')
        qk(3, KfB, KfC)
    MK = 84
    A(f's_mov_b32 s{MK}, 0x00030003')
    A(f's_mov_b32 s{MK+1}, 0x00030003')
    for u in range(1, 8):
        A(f's_lshl_b64 s[{MK+2*u}:{MK+2*u+1}], s[{MK}:{MK+1}], {2*u}')
    A(f's_mov_b32 s63, {CEXP}')
    for i in range(8):
        a, b = Sx + 2*i, Sx + 2*i + 1
        A(f'v_cvt_pk_bf16_f32 v{b}, v{a}, v{b}')
        A(f'v_lshlrev_b32 v{a}, 16, v{b}')
        A(f'v_and_b32 v{b}, 0xffff0000, v{b}')
    A(f'v_max3_f32 v22, v{Sx}, v{Sx+1}, v{Sx+2}')
    for i in range(3, 15, 2):
        A(f'v_max3_f32 v22, v22, v{Sx+i}, v{Sx+i+1}')
    A(f'''
    v_max_f32 v22, v22, v{Sx+15}
    v_mov_b32 v1, v22
    v_permlane16_swap_b32 v22, v1
    v_max_f32 v22, v22, v1
    v_mov_b32 v1, v22
    v_permlane32_swap_b32 v22, v1
    v_max_f32 v22, v22, v1                   ; wave max per head
    ''')
    for i in range(16):
        A(f'v_sub_f32 v{Sx+i}, v{Sx+i}, v22')
    for i in range(16):
        A(f'v_mul_f32 v{Sx+i}, s63, v{Sx+i}')
    for i in range(16):
        A(f'v_exp_f32 v{Sx+i}, v{Sx+i}')
    for i in range(8):
        A(f'v_cvt_pk_bf16_f32 v{Pk+i}, v{Sx+2*i}, v{Sx+2*i+1}')
    for i in range(8):
        A(f'v_add_f32 v{Sx+i}, v{Sx+i}, v{Sx+8+i}')
    for i in range(4):
        A(f'v_add_f32 v{Sx+i}, v{Sx+i}, v{Sx+4+i}')
    A(f'''
    v_add_f32 v{Sx}, v{Sx}, v{Sx+2}
    v_add_f32 v{Sx+1}, v{Sx+1}, v{Sx+3}
    v_add_f32 v23, v{Sx}, v{Sx+1}
    v_mov_b32 v1, v23
    v_permlane16_swap_b32 v23, v1
    v_add_f32 v23, v23, v1
    v_mov_b32 v1, v23
    v_permlane32_swap_b32 v23, v1
    v_add_f32 v23, v23, v1                   ; wave sum per head
    s_mov_b64 exec, 3
    ds_write_b64 v25, v[22:23]
    s_mov_b64 exec, 1
    ds_add_u32 v26, v28 offset:{CNT-MISC}
    s_mov_b64 exec, -1
    ''')
    stamp(5)
    if not k3: ha('V1', 1)
    vWO, vWD, vOW, vOR, vP1s, vP1l, vYW, vHA = 22, 23, 24, 25, 27, 28, 29, 21
    vWA = [8, 9, 10, 11]
    A(f'''
    s_waitcnt lgkmcnt(0)
    s_movk_i32 s61, 896
    v_mad_u32_u24 v{vWD}, v{vR8}, s61, v{vCH}
    v_bfe_u32 v1, v0, 3, 1
    v_lshlrev_b32 v1, 8, v1
    v_and_b32 v3, 16, v0
    v_add_u32 v1, v1, v3
    v_lshrrev_b32 v3, 5, v0
    v_add_u32 v1, v1, v3
    v_mad_u32_u24 v{vWO}, v1, s61, v{vCH}
    v_lshrrev_b32 v1, 2, v0
    v_lshlrev_b32 v1, 7, v1
    v_bfe_u32 v2, v0, 3, 2
    v_lshl_add_u32 v1, v2, 5, v1
    v_and_b32 v2, 3, v0
    v_lshl_add_u32 v1, v2, 3, v1
    v_add_u32 v8, s59, v1
    v_xor_b32 v9, 32, v8
    v_xor_b32 v10, 64, v8
    v_xor_b32 v11, 0x60, v8
    v_lshlrev_b32 v1, 4, v0
    s_lshl_b32 s60, s3, 11
    s_add_u32 s60, s60, {AREA}
    v_add_u32 v{vOW}, s60, v1
    v_lshrrev_b32 v2, 4, v0                  ; g
    v_and_b32 v3, 15, v0                     ; c
    v_lshlrev_b32 v31, 12, v2                ; waves 2g, 2g+1
    v_lshl_add_u32 v31, v3, 4, v31
    s_lshl_b32 s60, s3, 8
    s_add_u32 s61, s60, {AREA}
    v_add_u32 v{vOR}, s61, v31
    s_add_u32 s61, s60, {YL}
    v_lshlrev_b32 v31, 2, v0
    v_add_u32 v{vYW}, s61, v31
    s_lshl3_add_u32 s60, s56, s3
    s_lshl_b32 s60, s60, 10
    s_add_u32 s60, s60, {P1}
    v_add_u32 v{vP1l}, s60, v1
    s_lshl4_add_u32 s61, s5, s60
    v_and_b32 v1, 3, v0
    v_lshlrev_b32 v1, 8, v1                  ; g*256
    v_and_b32 v3, 4, v0
    v_lshl_add_u32 v1, v3, 1, v1             ; half*8
    v_and_b32 v3, 8, v0
    v_lshl_add_u32 v1, v3, 4, v1             ; ks*128
    v_add_u32 v{vP1s}, s61, v1
    s_lshl_b32 s60, s3, 6
    s_add_u32 s60, s60, {HL}
    v_lshlrev_b32 v1, 3, v2
    v_add_u32 v{vHA}, s60, v1
    v_lshlrev_b32 v31, 4, v2
    v_add_u32 v31, {FACW}, v31
    s_mul_i32 s60, s6, 7
    s_add_u32 s60, s60, s5
    s_lshl3_add_u32 s60, s60, s4
    s_lshl_b32 s60, s60, {8 if p2b else 9}
    s_add_u32 s60, s60, {P2}
    v_lshl_add_u32 v30, v0, {2 if p2b else 3}, s60
    s_movk_i32 s66, 0xff
    ''')
    Vf = KfA; Mk = KfB
    WOf, WDf = KfC, Sx
    PL = 64
    def masks(i):
        M = Mk + 16*(i & 1)
        for u in range(8):
            A(f'v_cndmask_b32 v{M+2*u}, 0, v{Pk+2*i}, s[{MK+2*u}:{MK+2*u+1}]')
            A(f'v_cndmask_b32 v{M+2*u+1}, 0, v{Pk+2*i+1}, s[{MK+2*u}:{MK+2*u+1}]')
    def pv(i, slot, mid=None):
        M = Mk + 16*(i & 1)
        def rd(t): A(f'ds_read_b64_tr_b16 v[{Vf+2*t}:{Vf+2*t+1}], v{vVA[t&7]} offset:{slot*8192 + (t>>3)*256}')
        def mf(ii):
            acc = Oa + 4*(ii >> 2)
            c = '0' if (i == 0 and (ii & 3) == 0) else f'v[{acc}:{acc+3}]'
            A(f'v_mfma_f32_16x16x32_bf16 v[{acc}:{acc+3}], v[{M+4*(ii&3)}:{M+4*(ii&3)+3}], v[{Vf+4*ii}:{Vf+4*ii+3}], {c}')
        if ilv and i == 3 and mid is None:
            for t in range(8): rd(t)
            for ii in range(8):
                A(f's_waitcnt lgkmcnt({min(6, 14-2*ii)})')
                mf(ii)
                if ii < 4: rd(8+2*ii); rd(9+2*ii)
                if wlast == 6 and ii >= 4:
                    A(f's_add_u32 m0, s59, {8192 + ii*1024}')
                    A(f's_add_u32 s60, s64, {ii*2*896}')
                    A(f'buffer_load_dwordx4 v{vWO}, s[52:55], s60 offen{wnt} lds')
                    vm.add('WO', 1)
                if wlast == 3:
                    A(f's_add_u32 m0, s59, {8192 + ii*1024}')
                    A(f's_add_u32 s60, s64, {ii*2*896}')
                    A(f'buffer_load_dwordx4 v{vWO}, s[52:55], s60 offen{wnt} lds')
            if wlast == 3: vm.add('WO', 8)
            return
        for t in range(16): rd(t)
        if mid: mid()
        for ii in range(8):
            A(f's_waitcnt lgkmcnt({14-2*ii})')
            mf(ii)
    def issueW(p, slot, t=None, wdoff=0):
        vm.upto(thr if t is None else t)
        if wq4: A('s_lshl_b32 s60, s6, 4\ns_lshl_b64 exec, 0xffff, s60')
        for k in range(4):
            if p < 2:
                A(f's_add_u32 m0, s59, {slot*8192 + (4*p+k)*1024}')
                A(f's_add_u32 s60, s64, {(4*p+k)*2*896}')
                A(f'buffer_load_dwordx4 v{vWO}, s[52:55], s60 offen{wnt} lds')
            else:
                A(f's_add_u32 m0, s59, {slot*8192 + wdoff + k*1024}')
                A(f's_add_u32 s60, s65, {k*8*896}')
                A(f'buffer_load_dwordx4 v{vWD}, s[48:51], s60 offen{wnt} lds')
        if wq4: A('s_mov_b64 exec, -1')
        vm.add('WO' if p < 2 else 'WD', 4)
    def readWO(slot, kss=(0, 1)):
        for ks in kss:
            for T in range(4):
                for half in range(2):
                    d = WOf + 16*ks + 4*T + 2*half
                    A(f'ds_read_b64_tr_b16 v[{d}:{d+1}], v{vWA[T]} offset:{slot*8192 + ks*4096 + half*2048}')
    def readWD(slot, wdoff=0):
        for T in range(4):
            for half in range(2):
                A(f'ds_read_b64_tr_b16 v[{WDf+4*T+2*half}:{WDf+4*T+2*half+1}], v{vWA[T]} offset:{slot*8192 + wdoff + half*2048}')
    def pretouch():
        if p1pre == 2:
            A(f's_lshl_b32 s60, s5, 8\ns_mov_b64 exec, 0x101\nbuffer_load_dword v160, v{vP1l}, s[40:43], s60 offen{pref}\ns_mov_b64 exec, -1')
            vm.add('pre', 1)
            return
        for q in range(2):
            if p1pre: A(f'buffer_load_dwordx4 v[160:163], v{vP1l}, s[40:43], 0 offen offset:{q*1024}{pref}')
        vm.add('pre', 2 if p1pre else 0)
    masks(0)
    vm.wait('V0')
    pv(0, 0)
    masks(1)
    hb('V1', 1)
    if not wlast:
        issueW(0, 0)
        vm.wait('V1')
        pv(1, 1)
        issueW(1, 0)
        issueW(2, 1)
        masks(2)
        vm.wait('WO')
        readWO(0)
        A('s_waitcnt lgkmcnt(0)')
        issue('V2', 0, (0,))
        vm.wait('WD')
        readWD(1)
        hb('V2', 0)
        pretouch()
        A('s_waitcnt lgkmcnt(0)')
        ha('V3', 1, thr + 2)
        vm.wait('V2')
        pv(2, 0, lambda: issue('V3', 1, (1,)))
        s3 = 1
    elif wlast in (5, 6):
        issueW(0, 0)
        vm.wait('V1')
        if catch:
            A(f'v_mov_b32 v1, 1\ns_mov_b64 exec, 1\nds_add_rtn_u32 v1, v26, v1 offset:{RANK-MISC}\ns_mov_b64 exec, -1\ns_waitcnt lgkmcnt(0)\nv_readfirstlane_b32 s67, v1\ns_cmp_ge_u32 s67, {catch}\ns_cselect_b64 vcc, -1, 0')
            vm.skip = True
        pv(1, 1)
        issueW(2, 0, None, 4096)
        ha('V2', 1)
        masks(2)
        vm.wait('WD')
        readWO(0, (0,))
        readWD(0, 4096)
        hb('V2', 1)
        pretouch()
        A('s_waitcnt lgkmcnt(0)')
        ha('V3', 0, v3thr)
        vm.skip = False
        vm.wait('V2')
        pv(2, 1, lambda: issue('V3', 0, (1,)))
        s3 = 0
    else:
        issueW(2, 0)
        vm.wait('V1')
        pv(1, 1)
        ha('V2', 1)
        masks(2)
        vm.wait('WD')
        readWD(0)
        hb('V2', 1)
        pretouch()
        A('s_waitcnt lgkmcnt(0)')
        ha('V3', 0, v3thr)
        vm.wait('V2')
        pv(2, 1, lambda: issue('V3', 0, (1,)))
        s3 = 0
    masks(3)
    flagwait(FLF, 'L_wf')
    FC = 160
    PKR = f'''    v_pk_mul_f32 v[32:33], v[32:33], v[{FC}:{FC+1}]
    v_pk_mul_f32 v[34:35], v[34:35], v[{FC}:{FC+1}]
    s_waitcnt lgkmcnt(0)
    v_pk_fma_f32 v[32:33], v[36:37], v[{FC+2}:{FC+3}], v[32:33]
    v_pk_fma_f32 v[34:35], v[38:39], v[{FC+2}:{FC+3}], v[34:35]
    v_permlane32_swap_b32 v32, v34
    v_permlane32_swap_b32 v33, v35
    v_pk_add_f32 v[36:37], v[32:33], v[34:35]
    v_pk_add_f32 v[32:33], v[32:33], v[34:35]
    v_permlane16_swap_b32 v32, v36
    v_permlane16_swap_b32 v33, v37
    v_pk_add_f32 v[32:33], v[32:33], v[36:37]
'''
    OLDR = f'''    v_mul_f32 v32, v32, v{FC}
    v_mul_f32 v34, v34, v{FC}
    v_mul_f32 v33, v33, v{FC+1}
    v_mul_f32 v35, v35, v{FC+1}
    s_waitcnt lgkmcnt(0)
    v_fmac_f32 v32, v36, v{FC+2}
    v_fmac_f32 v34, v38, v{FC+2}
    v_fmac_f32 v33, v37, v{FC+3}
    v_fmac_f32 v35, v39, v{FC+3}
    v_permlane32_swap_b32 v32, v34
    v_permlane32_swap_b32 v33, v35
    v_add_f32 v36, v32, v34
    v_add_f32 v37, v33, v35
    v_add_f32 v32, v32, v34
    v_add_f32 v33, v33, v35
    v_permlane16_swap_b32 v32, v36
    v_permlane16_swap_b32 v33, v37
    v_add_f32 v32, v32, v36
    v_add_f32 v33, v33, v37
'''
    A(f'''
    ds_read_b128 v[4:7], v26 offset:{FLF-MISC}
    ds_read2_b64 v[64:67], v{vHA} offset0:0 offset1:4
    s_mov_b32 s{MK}, 0x00010001
    s_mov_b32 s{MK+1}, 0x00010001
    s_mov_b32 s{MK+2}, 0x01000100
    s_mov_b32 s{MK+3}, 0x01000100
    s_mov_b32 s{MK+4}, 0x00ff00ff
    s_mov_b32 s{MK+5}, 0x00ff00ff
    ''')
    vm.wait('pre')
    A(f'''
    ds_read_b128 v[{FC}:{FC+3}], v31
    s_waitcnt lgkmcnt(0)
    v_readfirstlane_b32 s63, v5
    v_mov_b32 v{vTAG}, v6
    v_mov_b32 v5, v6
    ''')
    FA = 144
    for r in range(4):
        A(f'v_cndmask_b32 v{68+r}, 0, v{64+r}, s[{MK}:{MK+1}]')
        A(f'v_cndmask_b32 v{72+r}, 0, v{64+r}, s[{MK+2}:{MK+3}]')
    A(f'''
    v_mfma_f32_16x16x32_bf16 v[{FA}:{FA+3}], v[68:71], v[{WDf}:{WDf+3}], 0
    v_mfma_f32_16x16x32_bf16 v[{FA+4}:{FA+7}], v[68:71], v[{WDf+4}:{WDf+7}], 0
    v_mfma_f32_16x16x32_bf16 v[{FA}:{FA+3}], v[72:75], v[{WDf+8}:{WDf+11}], v[{FA}:{FA+3}]
    v_mfma_f32_16x16x32_bf16 v[{FA+4}:{FA+7}], v[72:75], v[{WDf+12}:{WDf+15}], v[{FA+4}:{FA+7}]
    s_mov_b32 s62, {SPIN}
    ''')
    if wlast in (1, 2):
        issueW(0, 1, wthr)
        if wlast == 1: issueW(1, 1, wthr + 2)
    if early: A('v_mov_b32 v1, 1\ns_mov_b64 exec, 1')
    vm.wait('V3')
    if early: A(f'ds_add_u32 v26, v1 offset:{CNTV-MISC}\ns_mov_b64 exec, -1')
    stamp(6)
    pv(3, s3, (lambda: issueW(1, 1, 99)) if wlast == 2 else None)
    A(f'''
    ds_write_b128 v{vOW}, v[{Oa}:{Oa+3}]
    ds_write_b128 v{vOW}, v[{Oa+4}:{Oa+7}] offset:1024
    ''')
    if wlast == 4:
        issueW(0, 1, 99); issueW(1, 1, 99)
    if wlast == 5: issueW(1, 1, 99)
    A('s_waitcnt lgkmcnt(0)')
    stamp(7)
    A(f'''
    s_barrier                               ; #4: O partials
    ds_read_b128 v[32:35], v{vOR}
    ds_read_b128 v[36:39], v{vOR} offset:2048
    s_cmp_eq_u32 s63, 0
    s_waitcnt lgkmcnt(1)
{PKR if pkr else OLDR}
    v_cvt_pk_bf16_f32 v32, v32, v33
    v_min_u32 v6, -2, v32
    v_min_u32 v7, -2, v32
    v_permlane32_swap_b32 v6, v7
    s_mov_b64 exec, 0xffff
    s_cbranch_scc1 L_slowpub
    buffer_store_dwordx2 v[6:7], v{vP1s}, s[40:43], 0 offen
    L_pubdone:
    s_mov_b64 exec, -1
    ''')
    vm.add('pub', 1)
    stamp(8)
    A(f'''
    s_cmp_eq_u32 s5, 7
    s_cbranch_scc1 L_sdone
    ''')
    def polls():
        A(f'buffer_load_dwordx4 v[{PL}:{PL+3}], v{vP1l}, s[40:43], 0 offen sc1')
    if wlast:
        polls(); vm.add('poll', 1)
        vm.wait('WO')
        readWO(1, (1,) if wlast in (5, 6) else (0, 1))
        A('s_branch L_poll1_chk')
    A('L_poll1:')
    polls()
    A(f'''
    L_poll1_chk:
    s_sub_u32 s62, s62, 1
    s_waitcnt vmcnt(0)
    s_cbranch_scc1 L_poll1_done
    v_max3_u32 v1, v{PL}, v{PL+1}, v{PL+2}
    v_max_u32 v1, v1, v{PL+3}
    v_cmp_eq_u32 vcc, -1, v1
    {'s_mov_b64 exec, vcc' if mpoll else ''}
    {'' if nohelp else 's_cbranch_vccnz L_poll1'}
    L_poll1_done:
    {'s_mov_b64 exec, -1' if mpoll else ''}
    ''')
    stamp(9)
    LO, HI = 80, 88
    def omm(a, ks, T0):
        for x in range(2):
            acc = FA + 4*x
            bb = WOf + 16*ks + 4*(T0 + x)
            A(f'v_mfma_f32_16x16x32_bf16 v[{acc}:{acc+3}], v[{a}:{a+3}], v[{bb}:{bb+3}], v[{acc}:{acc+3}]')
    for q in range(4):
        A(f'v_cndmask_b32 v{LO+q}, 0, v{PL+q}, s[{MK+4}:{MK+5}]')
    for q in range(4):
        A(f'v_cndmask_b32 v{HI+4+q}, v{PL+q}, 0, s[{MK+4}:{MK+5}]')
    if wlast: A('s_waitcnt lgkmcnt(0)')
    omm(LO, 0, 0)
    for q in range(4):
        A(f'v_mov_b32_dpp v{HI+q}, v{PL+q} row_shr:8 row_mask:0xf bank_mask:0xf bound_ctrl:0')
    omm(HI+4, 1, 2)
    for q in range(4):
        A(f'v_mov_b32_dpp v{LO+4+q}, v{PL+q} row_shl:8 row_mask:0xf bank_mask:0xf bound_ctrl:0')
    omm(HI, 0, 2)
    omm(LO+4, 1, 0)
    A(f'''
    v_pk_add_f32 v[{FA}:{FA+1}], v[{FA}:{FA+1}], v[{FA+2}:{FA+3}]
    v_pk_add_f32 v[{FA+4}:{FA+5}], v[{FA+4}:{FA+5}], v[{FA+6}:{FA+7}]
    v_add_f32 v{FA}, v{FA}, v{FA+1}
    v_add_f32 v{FA+4}, v{FA+4}, v{FA+5}
    v_permlane16_swap_b32 v{FA}, v{FA+4}
    v_add_f32 v{FA}, v{FA}, v{FA+4}
    ds_write_b32 v{vYW}, v{FA}
    s_waitcnt lgkmcnt(0)
    ''')
    stamp(10)
    if fin != 'D': A('s_cmp_lg_u32 s3, 0')
    A('s_barrier                               ; #5')
    if fin != 'D':
        A(f'''
        s_cbranch_scc1 {'L_clean' if clean else 'L_sdone'}
        {f'ds_read_b32 v1, v26 offset:{NOPUB-MISC}' if peek else ''}
        ds_read2st64_b32 v[48:49], v{vYW} offset0:0 offset1:1
        ds_read2st64_b32 v[50:51], v{vYW} offset0:2 offset1:3
        ds_read2st64_b32 v[52:53], v{vYW} offset0:4 offset1:5
        ds_read2st64_b32 v[54:55], v{vYW} offset0:6 offset1:7
        s_waitcnt lgkmcnt(2)
        {'v_cmp_ne_u32 vcc, 0, v1' if peek else ''}
        v_add_f32 v48, v48, v49
        v_add_f32 v50, v50, v51
        {'s_cbranch_vccnz L_sdone' if peek else ''}
        s_waitcnt lgkmcnt(0)
        v_add_f32 v52, v52, v53
        v_add_f32 v54, v54, v55
        v_add_f32 v48, v48, v50
        v_add_f32 v52, v52, v54
        v_add_f32 v4, v48, v52
        v_min_u32 v4, -2, v4
        {'buffer_store_dword v4, v30, s[40:43], 0 offen sc1' if p2b else 'buffer_store_dwordx2 v[4:5], v30, s[40:43], 0 offen sc1'}
        ''')
        if stamps: A('s_waitcnt vmcnt(0)\ns_memrealtime s[70:71]')
        if clean:
            A(f'''
            L_clean:
            s_lshl_b32 s60, s5, 8
            s_cmp_eq_u32 s5, 6
            s_cselect_b32 s61, 0x1010101, 0x101
            s_mov_b32 exec_lo, s61
            s_mov_b32 exec_hi, 0
            buffer_store_dword v{vTAG}, v{vP1l}, s[40:43], s60 offen offset:4 sc1
            '''.replace('s_cselect_b32 s61, 0x1010101, 0x101', 's_movk_i32 s61, 0x101\ns_cselect_b32 s61, 0x1010101, s61'))
    if pad and padat[0] == 's': dopad('L_pads')
    A('L_sdone:')
    if stamps:
        A(f's_cmp_eq_u32 s3, 0')
        A('s_cbranch_scc1 L_dump0')
        A(f's_cmp_lg_u32 s3, 7')
        A('s_cbranch_scc1 L_end')
        dump_stamps(16, [sreg(k) for k in range(11)])
        A('s_endpgm')
        A('L_dump0:')
        dump_stamps(0, [sreg(k) for k in range(11)])
    A('s_endpgm')
    A(f'''
    L_slowpub:
    buffer_store_dwordx2 v[6:7], v{vP1s}, s[40:43], 0 offen sc1
    s_branch L_pubdone
    ''')
    A('.section .rodata,"a"')
    A('.p2align 6')
    A(f'.amdhsa_kernel {NAME}_kernel')
    A('.amdhsa_next_free_vgpr 168')
    A('.amdhsa_next_free_sgpr 102')
    A('.amdhsa_accum_offset 168')
    A('.amdhsa_group_segment_fixed_size 0')
    A('.amdhsa_kernarg_size 96')
    A('.amdhsa_user_sgpr_count 2')
    A('.amdhsa_user_sgpr_kernarg_segment_ptr 1')
    A('.amdhsa_system_sgpr_workgroup_id_x 1')
    A('.end_amdhsa_kernel')
    return top + A.finalize()

if __name__ == '__main__':
    out = sys.argv[1] if len(sys.argv) > 1 else f'cdna_kernels/{NAME}.s'
    kw = eval('dict(%s)' % sys.argv[2]) if len(sys.argv) > 2 else {}
    open(out, 'w').write(gen(**kw))
    print('wrote', out)
```

```python
import sys, struct, math
from asmlib import Asm
NAME = 'parallel_sum__sliding_block_cached__glu_gated_reglu__decode'

def f32(x): return '0x%08x' % struct.unpack('<I', struct.pack('<f', x))[0]

AREA = 131072
TAB = AREA + 16384
STW = TAB
FACW = TAB + 128
HL = TAB + 512
QL = TAB + 1024
YL = TAB + 2048
MISC = AREA + 28672
FLQ = MISC
CNT = MISC + 4
CNT0 = MISC + 12
FLF = MISC + 16
CNTV = MISC + 32
THR = MISC + 36
RANK = MISC + 40
NOPUB = MISC + 44
XN = MISC + 256
LDS_TOTAL = 163840
EPOCH = 0
ST = 0x3C000
TK2 = 0x2000
TK = 0x3000
P2 = 0x1C0000
P1 = 0x40000
QP = 0xC0000
WS_END = 0x1E0000
STAMPS = 0x300000
SPIN = 400000
CEXP = f32(math.log2(math.e)/16)

DOC = '''; ---------------------------------------------------------------------------------------------
; One persistent launch: 256 workgroups (one per CU), 8 stream waves + 1 helper wave each.
;   wg = b*64 + j*8 + hkv ; group (b, hkv) = 8 workgroups j that split the 4096-key window.
; Stream wave: 4 K tiles then 4 V tiles (16 keys x 512 B) by LDS-DMA through two 8 KB slots,
; Helper wave: LayerNorm, one 64-column piece of x*wq / x*W_gate / x*W_up, gathers q and h,
;   merges the softmax statistics of the group, runs the last reduction over the kv heads.
;   "empty" marker written earlier in the same launch. Plain stores are used only after d_debug
;   shows that every reader runs on this XCD; otherwise all hand-off stores are write-through.
; ---------------------------------------------------------------------------------------------
'''

class VM:
    def __init__(self, A): self.A = A; self.q = []
    def add(self, name, n): self.q.append((name, n))
    def wait(self, name, extra=''):
        idx = max(i for i, (nm, _) in enumerate(self.q) if nm == name)
        n = sum(c for _, c in self.q[idx+1:])
        self.q = self.q[idx+1:]
        self.A(f's_waitcnt vmcnt({n}){extra}')
    d = 0; nl = 0; skip = False
    def upto(self, n):
        tot = sum(c for _, c in self.q)
        if self.skip and tot > n:
            self.nl += 1
            self.A(f's_cbranch_vccnz L_pc{self.nl}\ns_waitcnt vmcnt({n})\nL_pc{self.nl}:')
            return
        if tot > n: self.A(f's_waitcnt vmcnt({n})')
        if self.d and n < 50 and tot > max(n - self.d, 0):
            self.nl += 1
            self.A(f's_cbranch_vccz L_pc{self.nl}\ns_waitcnt vmcnt({max(n - self.d, 0)})\nL_pc{self.nl}:')

def gen(stamps=0, wnt='', snt=' nt', kvnt=' nt', forceslow=False, now=False, pad=0, padat=None, thr=1,
        hpre=3, psleep=32, xlast=0, xtries=12, sync=False, xs='rev', light=False, kfirst=True, k3=True, wlast=5, hs=None, wthr=4, fastmask=0x55, dthr=0, fh=('K1b', 'K2a', 'K2b'), fin='T', spec=False, fsleep=0, hl=(6, 12), early=False, satom=True, noxc=False, vx=0, kord=(0, 1, 2, 3), bark=0, p2t=0, qclean=0, fast7=False, pkr=True, wq4=False, rtm=False, hsw=2, peek=2, catch=0, bent=None, lin=None, p2b=True, v3thr=2, k0thr=5, dirty=0, wb=0, clean=0, p2pre=1, outf='', perm=0, gov=None, govh=('V2a', 'V2b', 'V3a'), govn=4, ilv=True, mpoll=True, nohelp=False, nodep=False, tlb=False, presl=32, pref=' sc1', pollf=' sc1', p1pre=0, sl=(0, 6, 10)):
    A = Asm()
    def sreg(k): return 68 + 2*k if k < 3 else 16 + 2*(k-3)
    def stamp(k):
        if stamps and (not light or k in sl): A(f's_memrealtime s[{sreg(k)}:{sreg(k)+1}]')
        if padat == f's{k}': A('s_memrealtime s[100:101]')
    def hstamp(k):
        if nohelp and nohelp - 1 == k: A('s_endpgm')
        if stamps and (not light or k in hl):
            A(f's_memrealtime s[100:101]\ns_waitcnt lgkmcnt(0)\nv_writelane_b32 v164, s100, {k}\nv_writelane_b32 v165, s101, {k}')
        if padat == f'h{k}': A('s_memrealtime s[100:101]\ns_waitcnt lgkmcnt(0)')
    def dopad(lab):
        A(f'''
        {lab}:
        s_memrealtime s[98:99]
        s_waitcnt lgkmcnt(0)
        s_sub_u32 s98, s98, s100
        s_cmp_lt_u32 s98, {pad}
        s_cbranch_scc1 {lab}
        ''')
    def dump_stamps(slot0, regs_):
        A('s_waitcnt vmcnt(0) lgkmcnt(0)')
        A('s_mov_b64 exec, 1')
        A('s_lshl_b32 s60, s2, 9')
        A(f's_add_u32 s60, s60, {STAMPS}')
        A('v_mov_b32 v1, s60')
        for k, r in enumerate(regs_):
            A(f'v_mov_b32 v2, s{r}')
            A(f'v_mov_b32 v3, s{r+1}')
            A(f'buffer_store_dwordx2 v[2:3], v1, s[40:43], 0 offen offset:{8*(slot0+k)}')
    WSN = 0x400000 if stamps else WS_END
    Z = lambda n: 0 if (now is True or (now == 'small' and n in (448*3584, 448*8192) and not ZW[0]) or (now == 'W' and ZW[0]) or (now == 'wq' and n == 448*8192 and not ZW[0])) else n
    ZW = [False]
    hdr = open('cdna_kernels/%s.s.ref' % NAME).read().split('; Override launch geometry')[0]
    top = hdr + f'; @launch grid=(256,1,1) block=(576,1,1) lds={LDS_TOTAL}\n'
    A('.amdgcn_target "amdgcn-amd-amdhsa--gfx950"')
    A('.text')
    for ln in DOC.strip().split('\n'): A(ln)
    A(f'.globl {NAME}_kernel')
    A('.p2align 8')
    A(f'.type {NAME}_kernel,@function')
    A(f'{NAME}_kernel:')
    if sync:
        A('''
        s_memrealtime s[4:5]
        s_waitcnt lgkmcnt(0)
        s_add_u32 s6, s4, 4096+600
        s_and_b32 s6, s6, -4096
        s_load_dwordx2 s[8:9], s[0:1], 88
        s_lshl_b32 s7, s2, 3
        s_add_u32 s7, s7, 0x380000
        v_mov_b32 v2, s4
        v_mov_b32 v3, s6
        v_mov_b32 v1, s7
        s_waitcnt lgkmcnt(0)
        global_store_dwordx2 v1, v[2:3], s[8:9] sc1
        s_waitcnt vmcnt(0)
        ''')
        if rtm:
            A('''
            s_load_dwordx2 s[8:9], s[0:1], 80
            v_readfirstlane_b32 s3, v0
            s_waitcnt lgkmcnt(0)
            s_load_dwordx16 s[84:99], s[8:9], 4096
            s_lshr_b32 s3, s3, 6
            s_and_b32 s3, s3, 7
            s_and_b32 s7, s2, 0x38
            s_or_b32 s3, s3, s7
            s_and_b32 s7, s2, 7
            s_lshl_b32 s7, s7, 6
            s_or_b32 s3, s3, s7
            s_lshr_b32 s7, s2, 6
            s_lshl_b32 s7, s7, 9
            s_or_b32 s3, s3, s7
            s_mov_b32 s68, 0
            s_waitcnt lgkmcnt(0)
            ''')
            for k in range(11):
                A(f's_bitcmp1_b32 s3, {k}\ns_cselect_b32 s7, s{84+k}, 0\ns_xor_b32 s68, s68, s7')
            A('s_xor_b32 s69, s68, s95\ns_xor_b32 s70, s68, s96\ns_xor_b32 s71, s69, s96')
            for k in range(4): A(f's_xor_b32 s{72+k}, s{68+k}, s97')
        A('''
        L_sync:
        s_memrealtime s[4:5]
        s_waitcnt lgkmcnt(0)
        s_sub_u32 s4, s4, s6
        s_cmp_lt_i32 s4, 0
        s_cbranch_scc1 L_sync
        s_branch L_go
        .p2align 10
        L_go:
        ''')
    if perm == 1:
        A('s_cmpk_ge_u32 s2, 256\ns_cbranch_scc1 L_end\ns_lshr_b32 s3, s2, 3\ns_and_b32 s3, s3, 7\ns_xor_b32 s2, s2, s3')
    if perm == 2:
        A('s_and_b32 s3, s2, -2\ns_cmp_eq_u32 s3, 74\ns_cselect_b32 s3, 1, 0\ns_xor_b32 s2, s2, s3')
    if padat == 'he': A('s_memrealtime s[100:101]')
    stamp(0)
    def msk(bits): return sum(1 << x for x in bits)
    def tmask(i, half):
        if not lin: return i*524288 + half*4096
        t = [msk(x) for x in lin['t']]
        return (t[0] if half else 0) ^ (t[1] if i & 1 else 0) ^ (t[2] if i & 2 else 0)
    lincode = ''
    if xs == 'rev':
        xs = None
        if not (lin or bent): lincode = 's_brev_b32 s62, s5\ns_lshr_b32 s62, s62, 10\ns_and_b32 s62, s62, 0x180000\ns_or_b32 s58, s58, s62\n'
    if hsw == 1: lincode += 's_lshl_b32 s62, s66, 11\ns_lshl_b32 s63, s66, 9\ns_xor_b32 s62, s62, s63\ns_and_b32 s62, s62, 0x1000\ns_or_b32 s58, s58, s62\n'
    if hsw == 2: lincode += 's_lshl_b32 s62, s66, 11\ns_and_b32 s62, s62, 0x1000\ns_or_b32 s58, s58, s62\n'
    if lin:
        xs = None
        lincode = 's_mov_b32 s58, 0\n'
        for key, reg in (('w', 's3'), ('j', 's5'), ('h', 's4'), ('b', 's6')):
            for bit, m in enumerate(lin.get(key, [])):
                if m: lincode += f's_bitcmp1_b32 {reg}, {bit}\ns_cselect_b32 s62, {msk(m)}, 0\ns_xor_b32 s58, s58, s62\n'
    if bent:
        xs = None
        def gmul(a, b):
            r = 0
            for k in range(3):
                if b >> k & 1: r ^= a << k
            for k in (4, 3):
                if r >> k & 1: r ^= 0xb << (k - 3)
            return r
        for k, bit in enumerate(bent):
            if bit is None: continue
            m = sum((gmul(i >> 3, i & 7) >> k & 1) << i for i in range(64))
            lincode += f's_mov_b32 s76, {m & 0xffffffff}\ns_mov_b32 s77, {m >> 32}\ns_bitcmp1_b64 s[76:77], s66\ns_cselect_b32 s62, {1 << bit}, 0\ns_xor_b32 s58, s58, s62\n'
    vm = VM(A)
    vD = [4, 5, 6, 7]; vKA = [8, 9, 10, 11]; vVA = list(range(12, 20)); vTAG = 20
    KfA, KfB, KfC, Sx, Pk, Oa = 32, 64, 96, 128, 144, 152
    vCH, vR8 = 30, 31
    KS, VS = 's[8:11]', 's[12:15]'
    def issue(name, slot, halves=(0, 1)):
        srd = KS if name[0] == 'K' else VS
        i = kord[int(name[1]) ^ (vx if name[0] == 'V' else 0)]
        for half in halves:
            first = (name == 'K0' and half == 0)
            hn = name + 'ab'[half]
            if gov and hn in govh:
                A(f'ds_read_b32 v1, v26 offset:{THR-MISC}\ns_waitcnt lgkmcnt(0)\nv_cmp_lt_u32 vcc, {govh.index(hn)}, v1')
            if not first:
                A(f's_xor_b32 m0, {"s74" if hs else "s59"}, {slot*8192 + half*4096}')
                A(f's_mov_b32 s60, s{68+2*i+half}' if rtm else f's_xor_b32 s60, s58, {tmask(i, half)}')
            for q in range(4):
                if q in (0, 2) and (hn in fh or (gov and hn in govh)):
                    A(f's_cbranch_vccz L_f{name}{half}{q}\ns_waitcnt vmcnt(1)\nL_f{name}{half}{q}:')
                A(f'buffer_load_dwordx4 v{vD[q]}, {srd}, {("s68" if rtm else "s58") if first else "s60"} offen offset:{q*1024}{kvnt} lds')
            vm.add(name, 4)
    def ha(name, slot, t=None):
        vm.upto(thr if t is None else t); issue(name, slot, (0,))
    def hb(name, slot, t=None):
        vm.upto(thr if t is None else t); issue(name, slot, (1,))
    A(f'''
    s_load_dwordx16 s[16:31], s[0:1], 0      ; x K V wq wo Bx wg wu
    s_load_dwordx8 s[32:39], s[0:1], 64
    v_readfirstlane_b32 s3, v0
    s_cmpk_ge_u32 s2, 256
    s_cbranch_scc1 L_end
    v_and_b32 v0, 63, v0                     ; lane
    s_lshr_b32 s3, s3, 6                     ; wave
    s_and_b32 s4, s2, 7                      ; hkv
    s_bfe_u32 s5, s2, 0x30003                ; j
    s_lshr_b32 s6, s2, 6                     ; b
    s_lshl3_add_u32 s56, s6, s4
    s_cmp_eq_u32 s3, 8
    s_cbranch_scc1 L_helper
    v_lshrrev_b32 v1, 4, v0
    v_and_b32 v1, 2, v1
    v_xor_b32 v1, v1, v0
    v_lshlrev_b32 v4, 4, v1
    v_xor_b32 v5, 64, v4
    v_xor_b32 v6, 0x80, v4
    v_xor_b32 v7, 64, v6
    s_lshl3_add_u32 s66, s5, s3              ; 8j + w
    s_lshl_b32 s57, s56, 23
    s_add_u32 s57, s57, {12288*512}
    s_lshl_b32 s59, s3, 14
    s_lshl_b32 s58, s66, 13
    {lincode}
    {f's_bfe_u32 s62, {xs[0]}, {0x20000 + xs[1]}' if xs else ''}
    {'s_lshl_b32 s62, s62, 19' if xs else ''}
    {'s_or_b32 s58, s58, s62' if xs else ''}
    {f's_bfe_u32 s62, {hs[0]}, {0x10000 + hs[1]}' if hs else ''}
    {'s_lshl_b32 s62, s62, 12' if hs else ''}
    {'s_or_b32 s58, s58, s62' if hs else ''}
    {'s_or_b32 s74, s59, s62' if hs else ''}
    s_mov_b32 s10, 0x200000
    s_mov_b32 s11, 0x20000
    ''')
    saddr = f'''
    v_bfe_u32 v2, v0, 4, 2
    v_lshlrev_b32 v2, 1, v2
    v_and_b32 v3, 7, v0
    v_xor_b32 v2, v2, v3
    v_lshlrev_b32 v{vCH}, 4, v2
    v_lshrrev_b32 v{vR8}, 3, v0
    s_movk_i32 s61, 3584
    s_bfe_u32 s65, s2, 0x30004               ; wq role: 64-column block
    s_lshl3_add_u32 s65, s4, s65
    s_bfe_u32 s67, s2, 0x20005
    s_lshl2_add_u32 s67, s4, s67
    s_and_b32 s63, s5, 3                     ; K quarter
    s_and_b32 s64, s5, 1
    s_lshl_b32 s64, s64, 1
    s_cmp_lt_u32 s4, 7
    s_cselect_b32 s46, {Z(448*3584)}, 0
    s_cselect_b32 s67, s67, 0
    s_cmp_lt_u32 s6, 2                       ; SCC: wq role
    s_cselect_b32 s46, {Z(448*8192)}, s46
    s_cselect_b32 s61, 0x2000, s61
    s_cselect_b32 s65, s65, s67
    s_cselect_b32 s63, s64, s63
    s_cselect_b32 s67, {112*8192}, 0
    s_cselect_b64 vcc, -1, 0
    s_mul_i32 s63, s63, 7
    s_add_u32 s63, s63, s3
    s_lshl_b32 s63, s63, 4
    s_mul_i32 s63, s63, s61
    s_lshl_b32 s65, s65, 7
    s_add_u32 s63, s63, s65
    s_add_u32 s67, s67, s63
    v_mad_u32_u24 v21, v{vR8}, s61, v{vCH}
    s_lshl_b32 s61, s61, 3
    s_lshl_b32 s62, s3, 11
    s_mov_b32 s47, s11
    s_max_u32 s7, s4, s5
    '''
    if not kfirst: A(saddr)
    A(f'''
    s_mov_b32 m0, {'s74' if hs else 's59'}
    {'s_memrealtime s[100:101]' if padat == 'sa' else ''}
    s_waitcnt lgkmcnt(0)
    {'s_memrealtime s[100:101]' if padat == 'sb' else ''}
    s_add_u32 s8, s18, s57
    s_addc_u32 s9, s19, 0
    ''')
    if kfirst:
        issue('K0', 0, (0, 1) if kfirst == 2 else (0,))
        A(saddr)
    A(f'''
    v_mov_b32 v28, 1
    s_cmp_eq_u32 s3, 7
    s_cbranch_scc1 L_ldx
    s_cmp_lg_u64 vcc, 0
    s_cselect_b64 s[44:45], s[22:23], s[28:29]
    s_cselect_b64 s[48:49], s[22:23], s[30:31]
    s_add_u32 m0, s62, {AREA}
    s_mov_b64 s[50:51], s[46:47]
    buffer_load_dwordx4 v21, s[44:47], s63 offen{snt} lds
    s_add_u32 m0, s62, {AREA+14336}
    s_add_u32 s63, s63, s61
    buffer_load_dwordx4 v21, s[48:51], s67 offen{snt} lds
    s_add_u32 m0, s62, {AREA+1024}
    s_add_u32 s67, s67, s61
    buffer_load_dwordx4 v21, s[44:47], s63 offen{snt} lds
    s_add_u32 m0, s62, {AREA+14336+1024}
    buffer_load_dwordx4 v21, s[48:51], s67 offen{snt} lds
    s_branch L_ldk
    L_ldx:
    v_lshlrev_b32 v21, 4, v0
    s_mov_b32 m0, {XN}
    s_mov_b64 s[44:45], s[16:17]
    s_movk_i32 s46, 3584
    buffer_load_dwordx4 v21, s[44:47], 0 offen lds
    buffer_load_dwordx4 v21, s[44:47], 0 offen offset:1024 lds
    buffer_load_dwordx4 v21, s[44:47], 0 offen offset:2048 lds
    s_mov_b32 exec_hi, 0
    buffer_load_dwordx4 v21, s[44:47], 0 offen offset:3072 lds
    s_mov_b32 exec_hi, -1
    L_ldk:
    ''')
    vm.add('small', 4)
    if not kfirst:
        A(f's_mov_b32 m0, {"s74" if hs else "s59"}')
        issue('K0', 0, (0,))
    stamp(1)
    A('s_branch L_stream')

    XR = 8
    XF = 32
    RA = 156
    WF = 64
    AC = 132
    PB = 64
    nstore = [0]
    def store2(ins):
        n = nstore[0]; nstore[0] += 1
        A(f's_cmp_eq_u32 s58, 0\ns_cbranch_scc1 L_ss{n}')
        for i in ins: A(i)
        A(f's_branch L_sd{n}\nL_ss{n}:')
        for i in ins: A(i + ' sc1')
        A(f'L_sd{n}:')
    def cntwait(off, lab, sl, n=8):
        A(f'''
        s_mov_b32 s63, {SPIN*8}
        {lab}:
        ds_read_b32 v9, v31 offset:{off-MISC}
        s_sub_u32 s63, s63, 1
        s_waitcnt lgkmcnt(0)
        s_cbranch_scc1 {lab}_done
        v_cmp_le_u32 vcc, {n}, v9
        s_cbranch_vccnz {lab}_done
        {f's_sleep {sl}' if sl else ''}
        s_branch {lab}
        {lab}_done:
        ''')
    A(f'''
    L_helper:
    s_setprio 3
    s_getreg_b32 s57, hwreg(HW_REG_XCC_ID, 0, 7)
    s_lshl_b32 s66, s4, 5
    s_lshr_b32 s61, s2, 3
    s_add_u32 s61, s61, s66
    s_add_u32 s57, s57, 1
    v_mov_b32 v9, s61
    v_mov_b32 v10, s57
    v_mov_b32 v31, {MISC}
    v_lshl_add_u32 v1, v0, 2, v31
    v_mov_b32 v2, 0
    ds_write_b32 v1, v2                      ; flags = 0
    s_mov_b64 exec, 1
    s_waitcnt lgkmcnt(0)
    {'' if noxc else 'global_store_byte v9, v10, s[36:37]      ; my XCD, for the workgroups that share my heads'}
    s_load_dword s62, s[38:39], {EPOCH}
    s_mov_b64 exec, -1
    ''')
    if tlb:
        A(f'''
        s_lshl_b32 s60, s56, 23
        s_add_u32 s60, s60, {12288*512}
        s_load_dword s76, s[20:21], s60          ; touch the pages used later: V window, wo, W_down, out
        s_add_u32 s60, s60, {(1<<21) - 64}
        s_load_dword s77, s[20:21], s60
        s_mul_i32 s60, s4, {512*896}
        s_load_dword s78, s[24:25], s60
        s_add_u32 s60, s60, {512*896 - 64}
        s_load_dword s79, s[24:25], s60
        s_load_dword s80, s[32:33], 0
        s_mov_b32 s60, {1792*896 - 64}
        s_load_dword s81, s[32:33], s60
        s_load_dword s82, s[34:35], 0
        ''')
    if stamps: A('v_mov_b32 v164, 0\nv_mov_b32 v165, 0\ns_memtime s[94:95]\ns_memrealtime s[96:97]')
    A(f'''
    s_mov_b64 s[40:41], s[38:39]
    s_mov_b32 s42, {WSN}
    s_mov_b32 s43, 0x20000
    s_mul_i32 s67, s56, 12288
    s_add_u32 s67, s67, {QP}
    s_mul_i32 s64, s6, 7
    s_add_u32 s64, s64, s5                   ; 7b + j
    s_lshl_b32 s7, s56, 9
    s_add_u32 s7, s7, {ST}
    ''')
    if hpre:
        A('v_lshlrev_b32 v8, 7, v0')
        if hpre in (2, 3):
            A(f'''
            s_cmp_lg_u32 s5, 7
            s_cbranch_scc1 L_nopre
            s_mov_b64 exec, 3
            buffer_load_dword v166, v8, s[40:43], s7 offen{pref}
            L_nopre:
            ''')
        A('s_mov_b64 exec, -1')
    XB = 128
    A(f'''
    v_lshrrev_b32 v1, 4, v0                  ; g
    v_and_b32 v2, 15, v0
    v_and_b32 v3, 3, v0
    v_mul_u32_u24 v3, 896, v3
    v_add_u32 v3, {XN}, v3                   ; row of batch l%4
    v_lshl_add_u32 v4, v1, 3, v3             ; + g*8
    v_and_b32 v5, 60, v0
    v_lshl_add_u32 v3, v5, 1, v3             ; + (l/4)*8
    s_and_b32 s60, s5, 3
    s_and_b32 s61, s5, 1
    s_lshl_b32 s65, s61, 11                  ; wq role: half * 2048
    s_bfe_u32 s59, s2, 0x30004
    s_lshl_b32 s59, s59, 8
    s_add_u32 s65, s65, s59                  ;   + block * 256
    s_lshl_b32 s63, s60, 11
    s_bfe_u32 s59, s2, 0x20005
    s_lshl_b32 s59, s59, 9
    s_add_u32 s63, s63, s59                  ;   + block * 512
    s_add_u32 s63, s63, 4096
    s_lshl_b32 s61, s61, 1
    s_cmp_lt_u32 s6, 2
    s_cselect_b32 s60, s61, s60
    s_cselect_b32 s61, 224, 0
    s_cselect_b32 s65, s65, s63
    s_mul_i32 s60, s60, 224
    v_add_u32 v4, s60, v4
    v_add_u32 v5, s61, v4
    s_mul_i32 s60, s4, 12288
    s_add_u32 s65, s65, s60
    s_add_u32 s65, s65, {QP}
    v_lshrrev_b32 v7, 2, v0
    v_lshlrev_b32 v7, 7, v7
    v_bfe_u32 v6, v0, 3, 2
    v_lshl_add_u32 v7, v6, 5, v7
    v_and_b32 v6, 3, v0
    v_lshl_add_u32 v7, v6, 3, v7
    v_add_u32 v156, {AREA}, v7
    v_xor_b32 v157, 32, v156
    v_xor_b32 v158, 64, v156
    v_xor_b32 v159, 0x60, v156
    s_mov_b64 s[8:9], 0xffff
    s_lshl_b64 s[10:11], s[8:9], 16
    s_lshl_b64 s[12:13], s[8:9], 32
    v_mov_b32 v30, 1
    v_lshlrev_b32 v29, 3, v0                 ; lane*8
    v_lshlrev_b32 v7, 4, v0                  ; lane*16
    v_lshlrev_b32 v6, 2, v0                  ; lane*4
    s_min_u32 s60, s64, 27
    s_lshl_b32 s60, s60, 7
    v_lshl_add_u32 v162, v0, 1, s60
    v_add_u32 v163, {XN}, v162
    v_and_b32 v160, 7, v0
    v_lshlrev_b32 v160, 2, v160
    v_add_u32 v160, s66, v160
    s_mul_i32 s46, s57, 0x01010101
    {'v_mov_b32 v161, s46' if noxc else 'global_load_dword v161, v160, s[36:37] sc1'}
    s_barrier
    ''')
    hstamp(0)
    cntwait(CNT0, 'L_w0', 1)
    hstamp(1)
    def wreads(s_):
        for hs_ in range(7):
            for T in range(4):
                d = WF + 14*T + 2*hs_
                A(f'ds_read_b64_tr_b16 v[{d}:{d+1}], v{156+T} offset:{s_*14336 + hs_*2048}')
    for u in range(7):
        A(f'ds_read_b64 v[{XR+2*u}:{XR+2*u+1}], v3 offset:{128*u}')
    A('ds_read_u16 v163, v163                   ; residual x')
    wreads(0)
    A(f'''
    s_mul_i32 s62, s62, 1664525
    s_add_u32 s62, s62, 1013904223
    v_mov_b32 v28, s62
    s_movk_i32 s47, 0xff
    s_waitcnt lgkmcnt(15)
    ''')
    for u in range(14):
        A(f'v_lshlrev_b32 v{XF+2*u}, 16, v{XR+u}')
        A(f'v_and_b32 v{XF+2*u+1}, 0xffff0000, v{XR+u}')
    def allsum(r):
        A(f'''
        v_add_f32_dpp v{r}, v{r}, v{r} row_ror:4 row_mask:0xf bank_mask:0xf
        v_add_f32_dpp v{r}, v{r}, v{r} row_ror:8 row_mask:0xf bank_mask:0xf
        v_mov_b32 v23, v{r}
        v_permlane16_swap_b32 v{r}, v23
        v_add_f32 v{r}, v{r}, v23
        v_mov_b32 v23, v{r}
        v_permlane32_swap_b32 v{r}, v23
        v_add_f32 v{r}, v{r}, v23
        ''')
    A(f'v_pk_add_f32 v[22:23], v[{XF}:{XF+1}], v[{XF+2}:{XF+3}]')
    A(f'v_pk_add_f32 v[26:27], v[{XF+4}:{XF+5}], v[{XF+6}:{XF+7}]')
    for u in range(4, 14, 2):
        A(f'v_pk_add_f32 v[22:23], v[22:23], v[{XF+2*u}:{XF+2*u+1}]')
        A(f'v_pk_add_f32 v[26:27], v[26:27], v[{XF+2*u+2}:{XF+2*u+3}]')
    A('v_pk_add_f32 v[22:23], v[22:23], v[26:27]')
    A('v_add_f32 v22, v22, v23')
    allsum(22)
    A(f'''
    v_mul_f32 v22, {f32(1/448)}, v22           ; mean
    v_cvt_pk_bf16_f32 v24, v22, v22
    v_and_b32 v24, 0xffff0000, v24           ; bf16(mean)
    v_sub_f32 v22, v22, v24
    ''')
    for u in range(14):
        A(f'v_pk_add_f32 v[{XF+2*u}:{XF+2*u+1}], v[{XF+2*u}:{XF+2*u+1}], v[24:25] op_sel_hi:[1,0] neg_lo:[0,1] neg_hi:[0,1]')
    A(f'v_pk_mul_f32 v[26:27], v[{XF}:{XF+1}], v[{XF}:{XF+1}]')
    A(f'v_pk_mul_f32 v[24:25], v[{XF+2}:{XF+3}], v[{XF+2}:{XF+3}]')
    for u in range(2, 14, 2):
        A(f'v_pk_fma_f32 v[26:27], v[{XF+2*u}:{XF+2*u+1}], v[{XF+2*u}:{XF+2*u+1}], v[26:27]')
        A(f'v_pk_fma_f32 v[24:25], v[{XF+2*u+2}:{XF+2*u+3}], v[{XF+2*u+2}:{XF+2*u+3}], v[24:25]')
    A('v_pk_add_f32 v[26:27], v[26:27], v[24:25]')
    A('v_add_f32 v26, v26, v27')
    for u in range(14):
        A(f'v_cvt_pk_bf16_f32 v{XR+u}, v{XF+2*u}, v{XF+2*u+1}')
    allsum(26)
    A(f'''
    v_mul_f32 v26, {f32(1/448)}, v26
    v_fma_f32 v26, -v22, v22, v26            ; var
    v_max_f32 v26, 0, v26
    v_cvt_pk_bf16_f32 v26, v26, v26
    v_and_b32 v26, 0xffff0000, v26           ; bf16(var)
    v_add_f32 v26, {f32(1e-5)}, v26
    v_cvt_pk_bf16_f32 v26, v26, v26
    v_and_b32 v26, 0xffff0000, v26
    v_sqrt_f32 v26, v26
    v_cvt_pk_bf16_f32 v26, v26, v26
    v_and_b32 v26, 0xffff0000, v26
    v_rcp_f32 v26, v26
    ''')
    for u in range(14):
        A(f'v_lshlrev_b32 v{XF+2*u}, 16, v{XR+u}')
        A(f'v_and_b32 v{XF+2*u+1}, 0xffff0000, v{XR+u}')
    for u in range(14):
        A(f'v_pk_mul_f32 v[{XF+2*u}:{XF+2*u+1}], v[{XF+2*u}:{XF+2*u+1}], v[26:27] op_sel_hi:[1,0]')
    for u in range(14):
        A(f'v_cvt_pk_bf16_f32 v{XR+u}, v{XF+2*u}, v{XF+2*u+1}')
    for u in range(7):
        A(f'ds_write_b64 v3, v[{XR+2*u}:{XR+2*u+1}] offset:{128*u}')
    for s_ in range(2):
        for ks in range(3):
            A(f'ds_read2_b64 v[{XB+14*s_+4*ks}:{XB+14*s_+4*ks+3}], v{4+s_} offset0:{8*ks} offset1:{8*ks+4}')
        A(f'ds_read_b64 v[{XB+14*s_+12}:{XB+14*s_+13}], v{4+s_} offset:192')
    def mm(s_):
        for ks in range(4):
            for T in range(4):
                acc = 32 + 16*s_ + 4*T
                xa = XB + 14*s_ + 4*ks; bb = WF + 14*T + 4*ks
                c = '0' if ks == 0 else f'v[{acc}:{acc+3}]'
                if ks < 3: A(f'v_mfma_f32_16x16x32_bf16 v[{acc}:{acc+3}], v[{xa}:{xa+3}], v[{bb}:{bb+3}], {c}')
                else: A(f'v_mfma_f32_16x16x16_bf16 v[{acc}:{acc+3}], v[{xa}:{xa+1}], v[{bb}:{bb+1}], {c}')
    hstamp(2)
    A('s_waitcnt lgkmcnt(0)')
    mm(0)
    wreads(1)
    A(f'''
    s_mov_b32 s58, {0 if forceslow else 1}
    s_movk_i32 s63, {xtries}
    L_xc:
    s_waitcnt vmcnt(0)
    v_cmp_ne_u32 vcc, s46, v161
    s_cbranch_vccz L_xc_done
    global_load_dword v161, v160, s[36:37] sc1
    s_sub_u32 s63, s63, 1
    s_cbranch_scc0 L_xc
    s_mov_b32 s58, 0
    L_xc_done:
    s_waitcnt lgkmcnt(0)
    ''')
    mm(1)
    A(f'''
    s_add_u32 s60, s65, {8*12288}
    s_add_u32 s61, s65, {16*12288}
    s_add_u32 s63, s65, {24*12288}
    v_lshlrev_b32 v163, 16, v163
    v_and_b32 v16, 24, v29
    v_lshrrev_b32 v16, v16, v28
    v_and_b32 v17, 16, v7
    v_lshrrev_b32 v17, v17, v28
    v_lshrrev_b32 v18, 8, v17
    {'v_mov_b32 v167, v16' if p2t else ''}
    s_lshr_b32 s48, s62, 8
    s_lshr_b32 s49, s62, 16
    s_lshr_b32 s50, s62, 24
    s_movk_i32 s51, 0xff00
    ''')
    for s_ in range(2):
        a_ = 32 + 16*s_
        for r in range(4):
            A(f'v_cndmask_b32 v{a_+12+r}, v{a_+12+r}, v{a_+8+r}, s[12:13]')
        for r in range(4):
            A(f'v_cndmask_b32 v{a_+12+r}, v{a_+12+r}, v{a_+4+r}, s[10:11]')
        for r in range(4):
            A(f'v_cndmask_b32 v{8+2*r+s_}, v{a_+12+r}, v{a_+r}, s[8:9]')
    so4 = ('s65', 's60', 's61', 's63')
    A('s_cmp_lt_u32 s6, 2')
    A('s_cbranch_scc1 L_pubq')
    for r in range(8):
        A(f'v_bfi_b32 v{8+r}, s47, v{17 + (r & 1)}, v{8+r}')
    store2([f'buffer_store_dwordx2 v[{8+2*r}:{9+2*r}], v29, s[40:43], {so4[r]} offen' for r in range(4)])
    A('s_branch L_pubd')
    A('L_pubq:')
    for r in range(4):
        A(f'v_add_f32 v{8+2*r}, v{8+2*r}, v{9+2*r}')
    for r in range(4):
        A(f'v_bfi_b32 v{8+2*r}, s47, v16, v{8+2*r}')
    store2([f'buffer_store_dword v{8+2*r}, v6, s[40:43], {so4[r]} offen' for r in range(4)])
    A('L_pubd:')
    if qclean:
        for r in range(8): A(f'v_mov_b32 v{120+r}, v{8+r}')
        A('s_mov_b32 s76, s65\ns_mov_b32 s77, s60\ns_mov_b32 s78, s61\ns_mov_b32 s79, s63')
    hstamp(3)
    def gather(lab, n, soffs):
        A(f's_mov_b32 s63, {SPIN}\n{lab}:\ns_sleep {psleep}')
        for k in range(n):
            A(f'buffer_load_dwordx4 v[{32+4*k}:{35+4*k}], v7, s[40:43], {soffs[k>>2]} offen offset:{(k&3)*1024}{pollf}')
        A(f'''
        s_sub_u32 s63, s63, 1
        s_waitcnt vmcnt(0)
        s_cbranch_scc1 {lab}_done
        v_xor_b32 v24, s62, v32
        v_xor_b32 v25, s48, v33
        ''')
        for r in range(34, 32 + 4*n, 2):
            A(f'v_bitop3_b32 v24, v{r}, {"s49" if r & 2 else "s62"}, v24 bitop3:0xbe')
            A(f'v_bitop3_b32 v25, v{r+1}, {"s50" if r & 2 else "s48"}, v25 bitop3:0xbe')
        A(f'''
        v_or_b32 v24, v24, v25
        v_and_b32 v24, s47, v24
        v_cmp_ne_u32 vcc, 0, v24
        s_cbranch_vccnz {lab}
        {lab}_done:
        ''')
        for r in range(32, 32 + 4*n):
            A(f'v_and_b32 v{r}, s51, v{r}')
    gather('L_gq', 4, ['s67'])
    A(f'''
    v_pk_add_f32 v[32:33], v[32:33], v[40:41]
    v_pk_add_f32 v[34:35], v[34:35], v[42:43]
    v_pk_add_f32 v[36:37], v[36:37], v[44:45]
    v_pk_add_f32 v[38:39], v[38:39], v[46:47]
    v_add_u32 v24, {QL}, v29
    v_cvt_pk_bf16_f32 v8, v32, v33
    v_cvt_pk_bf16_f32 v9, v34, v35
    v_cvt_pk_bf16_f32 v10, v36, v37
    v_cvt_pk_bf16_f32 v11, v38, v39
    ds_write_b64 v24, v[8:9]
    ds_write_b64 v24, v[10:11] offset:512
    ds_write_b32 v31, v30 offset:{FLQ-MISC}
    v_mov_b32 v27, v28
    ''')
    hstamp(6)
    A('s_add_u32 s60, s67, 4096\ns_add_u32 s61, s67, 8192')
    gather('L_gh', 8, ['s60', 's61'])
    for k in range(4):
        A(f'v_pk_add_f32 v[{32+2*k}:{33+2*k}], v[{32+2*k}:{33+2*k}], v[{40+2*k}:{41+2*k}]')
        A(f'v_pk_add_f32 v[{48+2*k}:{49+2*k}], v[{48+2*k}:{49+2*k}], v[{56+2*k}:{57+2*k}]')
    for k in range(4):
        A(f'v_pk_add_f32 v[{32+2*k}:{33+2*k}], v[{32+2*k}:{33+2*k}], v[{48+2*k}:{49+2*k}]')
    for k in range(4):
        A(f'v_cvt_pk_bf16_f32 v{33+2*k}, v{32+2*k}, v{33+2*k}')
        A(f'v_lshlrev_b32 v{32+2*k}, 16, v{33+2*k}')
        A(f'v_and_b32 v{33+2*k}, 0xffff0000, v{33+2*k}')
        A(f'v_max_f32 v{32+2*k}, 0, v{32+2*k}')
        A(f'v_mul_f32 v{32+2*k}, v{32+2*k}, v{33+2*k}')
    A(f'''
    v_cvt_pk_bf16_f32 v8, v32, v34
    v_cvt_pk_bf16_f32 v9, v36, v38
    v_add_u32 v24, {HL}, v6
    ds_write2st64_b32 v24, v8, v9 offset0:0 offset1:1
    ''')
    hstamp(5)
    if gov:
        A(f'''
        s_lshr_b32 s60, s2, 3
        s_lshl_b32 s60, s60, 7
        s_add_u32 s60, s60, {TK2}
        s_add_u32 s32, s38, s60
        s_addc_u32 s33, s39, 0
        v_mov_b32 v56, s60
        v_not_b32 v57, v28
        s_mov_b64 exec, 1
        buffer_store_byte v57, v56, s[40:43], s4 offen sc1
        s_mov_b64 exec, -1
        s_lshl_b32 s60, s4, 3
        s_lshl_b64 s[30:31], 0xff, s60
        ''')
    A(f'''
    v_mov_b32 v32, -1
    v_mov_b32 v33, -1
    v_mov_b32 v34, -1
    v_mov_b32 v35, -1
    s_cmp_eq_u32 s5, 7
    s_cbranch_scc1 L_notk
    s_lshl3_add_u32 s60, s64, s4
    s_lshl_b32 s60, s60, 8
    s_add_u32 s60, s60, {P2}
    {'buffer_store_dword v32, v6, s[40:43], s60 offen sc1        ; my output partial := empty' if not p2t else ('buffer_load_dword v166, v6, s[40:43], s60 offen' if p2t == 1 else '')}
    s_cmp_lg_u32 s4, 0
    s_cbranch_scc1 L_notk
    s_lshl_b32 s60, s64, 7
    s_add_u32 s60, s60, {TK}
    v_mov_b32 v26, 0
    s_mov_b64 exec, 1
    buffer_store_dwordx2 v[26:27], v6, s[40:43], s60 offen sc1
    s_mov_b64 exec, -1
    L_notk:
    s_lshl3_add_u32 s60, s56, s5
    s_lshl_b32 s60, s60, 10
    s_add_u32 s60, s60, {P1}
    ''')
    store2(['buffer_store_dwordx4 v[32:35], v7, s[40:43], s60 offen'])
    A('s_waitcnt vmcnt(0)')
    cntwait(CNT, 'L_wc', 4, govn if gov else 8)
    if gov:
        tbl = sum(n << (4*(k+1)) for k, n in enumerate(gov))
        A(f'''
        s_atomic_xor_x2 s[30:31], s[32:33], 0 glc
        s_and_b32 s60, s62, 0xff
        s_mul_i32 s26, s60, 0x01010101
        s_mov_b32 s27, s26
        s_mov_b32 s28, {tbl & 0xffffffff}
        s_mov_b32 s29, {tbl >> 32}
        s_waitcnt lgkmcnt(0)
        s_xor_b64 s[30:31], s[30:31], s[26:27]
        s_bcnt1_i32_b64 s60, s[30:31]
        s_lshr_b32 s60, s60, 3
        s_lshl_b32 s60, s60, 2
        s_lshr_b64 s[28:29], s[28:29], s60
        s_and_b32 s60, s28, 15
        v_mov_b32 v9, s60
        ds_write_b32 v31, v9 offset:{THR-MISC}
        ''')
        cntwait(CNT, 'L_wc2', 4)
    hstamp(7)
    A(f'''
    ; workgroup stats from the 8 waves (lane = h*8+w)
    v_lshlrev_b32 v8, 3, v2
    v_add_u32 v8, {STW}, v8
    ds_read_b64 v[4:5], v8
    s_lshl4_add_u32 s61, s5, s7
    v_mov_b32 v25, v28
    s_waitcnt lgkmcnt(0)
    v_max_f32_dpp v24, v4, v4 quad_perm:[1,0,3,2] row_mask:0xf bank_mask:0xf
    v_max_f32_dpp v24, v24, v24 quad_perm:[2,3,0,1] row_mask:0xf bank_mask:0xf
    v_max_f32_dpp v24, v24, v24 row_half_mirror row_mask:0xf bank_mask:0xf
    v_sub_f32 v26, v4, v24
    v_mul_f32 v26, {CEXP}, v26
    v_exp_f32 v26, v26
    v_mul_f32 v26, v26, v5
    v_add_f32_dpp v26, v26, v26 quad_perm:[1,0,3,2] row_mask:0xf bank_mask:0xf
    v_add_f32_dpp v26, v26, v26 quad_perm:[2,3,0,1] row_mask:0xf bank_mask:0xf
    v_add_f32_dpp v26, v26, v26 row_half_mirror row_mask:0xf bank_mask:0xf
    s_mov_b64 exec, 0x101
    ''')
    store2([f'buffer_store_dwordx4 v[24:27], v7, s[40:43], s61 offen'])
    A(f'''
    s_mov_b64 exec, 0xffff
    s_mov_b32 s63, {SPIN}
    L_polls:
    s_sleep {psleep}
    buffer_load_dwordx4 v[16:19], v7, s[40:43], s7 offen{pollf}
    s_sub_u32 s63, s63, 1
    s_waitcnt vmcnt(0)
    s_cbranch_scc1 L_polls_done
    v_min3_u32 v10, v17, v19, v28
    v_max3_u32 v11, v17, v19, v28
    v_cmp_ne_u32 vcc, v10, v11
    s_cbranch_vccnz L_polls
    L_polls_done:
    ''')
    hstamp(8)
    A(f'''
    v_max_f32_dpp v10, v16, v16 quad_perm:[1,0,3,2] row_mask:0xf bank_mask:0xf
    v_max_f32_dpp v10, v10, v10 quad_perm:[2,3,0,1] row_mask:0xf bank_mask:0xf
    v_max_f32_dpp v10, v10, v10 row_half_mirror row_mask:0xf bank_mask:0xf
    v_sub_f32 v11, v16, v10
    v_sub_f32 v10, v4, v10
    v_mul_f32 v11, {CEXP}, v11
    v_mul_f32 v10, {CEXP}, v10
    v_exp_f32 v11, v11
    v_exp_f32 v10, v10
    v_mul_f32 v11, v11, v18
    v_add_f32_dpp v11, v11, v11 quad_perm:[1,0,3,2] row_mask:0xf bank_mask:0xf
    v_add_f32_dpp v11, v11, v11 quad_perm:[2,3,0,1] row_mask:0xf bank_mask:0xf
    v_add_f32_dpp v11, v11, v11 row_half_mirror row_mask:0xf bank_mask:0xf
    v_rcp_f32 v11, v11
    v_mul_f32 v10, v10, v11                  ; factor for (wave = lane&7, head = lane>>3)
    v_and_b32 v9, 56, v29
    v_lshrrev_b32 v8, 1, v0
    v_and_b32 v8, 4, v8
    v_add3_u32 v9, v9, v8, v31
    v_subrev_u32 v9, {MISC-FACW}, v9
    ds_write_b32 v9, v10
    s_mov_b64 exec, -1
    v_mov_b32 v24, 1
    v_mov_b32 v25, s58
    v_mov_b32 v26, v28
    ds_write_b128 v31, v[24:27] offset:{FLF-MISC}
    ''')
    if qclean:
        A('s_cmp_lt_u32 s6, 2\ns_cbranch_scc1 L_cq')
        for r in range(4): A(f'buffer_store_dwordx2 v[{120+2*r}:{121+2*r}], v29, s[40:43], s{76+r} offen sc1')
        A('s_branch L_cd\nL_cq:')
        for r in range(4): A(f'buffer_store_dword v{120+2*r}, v6, s[40:43], s{76+r} offen sc1')
        A('L_cd:')
    A(f'''
    s_cmp_eq_u32 s5, 7
    s_waitcnt lgkmcnt(0)
    {'' if early else 's_cbranch_scc1 ' + ('L_end' if pad else 'L_hdone')}
    ''')
    if dirty:
        A(f's_lshl_b32 s60, s2, 14\ns_add_u32 s60, s60, 0x400000\ns_mov_b32 s42, 0x1000000')
        for k in range(dirty):
            A(f'buffer_store_dwordx4 v[24:27], v7, s[40:43], s60 offen\ns_add_u32 s60, s60, 1024')
    if wb:
        A(f's_cmp_ge_u32 s2, {8*wb}\ns_cbranch_scc1 L_nowb\nbuffer_wbl2 sc1\ns_waitcnt vmcnt(0)\nL_nowb:')
    A(f'''
    v_mov_b32 v4, v162
    {'v_and_b32 v167, s47, v167' if p2t else ''}
    v_mov_b32 v5, v163
    s_mov_b64 s[52:53], s[34:35]
    s_movk_i32 s54, 3584
    s_mov_b32 s55, 0x20000
    s_lshl_b32 s60, s64, {11 if p2b else 12}
    s_add_u32 s60, s60, {P2}
    v_add_u32 v6, s60, {'v6' if p2b else 'v29'}
    v_lshlrev_b32 v7, 2, v0
    v_add_u32 v7, {YL}, v7
    ''')
    for i in range(1, 8):
        A(f's_xor_b32 s{18+i}, s4, {i}')
        A(f's_lshl_b32 s{18+i}, s{18+i}, {8 if p2b else 9}')
    A(f'''
    s_lshl_b32 s60, s56, 13
    s_add_u32 s60, s60, {P1 + 8192 - 128}
    v_lshl_add_u32 v57, v0, 3, s60           ; last line of the group's O hand-off
    s_lshl_b32 s60, s64, 7
    s_add_u32 s60, s60, {TK}
    s_add_u32 s32, s38, s60
    s_addc_u32 s33, s39, 0
    s_mov_b32 s63, {SPIN}
    L_tkw:
    s_load_dwordx2 s[28:29], s[32:33], 0 glc
    s_sub_u32 s63, s63, 1
    s_waitcnt lgkmcnt(0)
    s_cbranch_scc1 L_tkw_done
    s_cmp_eq_u32 s29, s62
    s_cbranch_scc1 L_tkw_done
    s_sleep {psleep}
    s_branch L_tkw
    L_tkw_done:
    s_mov_b32 s30, 1
    s_mov_b32 s63, {SPIN}
    s_mov_b64 exec, 0xffff
    s_barrier                               ; #4
    ''')
    hstamp(9)
    def trigpoll(done):
        A(f'''
        buffer_load_dword v61, v57, s[40:43], 0 offen sc1
        s_waitcnt vmcnt(0)
        v_cmp_eq_u32 vcc, -1, v61
        s_cbranch_vccz {done}
        ''')
    A('L_trig:')
    if peek:
        A('s_load_dword s28, s[32:33], 0 glc')
        for k in range(peek + 1): trigpoll('L_trig_done')
        A('s_waitcnt lgkmcnt(0)\ns_cmp_eq_u32 s28, 7\ns_cbranch_scc1 L_sure')
    else:
        trigpoll('L_trig_done')
    A(f'''
    s_sub_u32 s63, s63, 1
    s_cbranch_scc0 L_trig
    L_trig_done:
    s_atomic_add s30, s[32:33], 0 glc
    s_mov_b64 exec, -1
    L_b5:
    ''')
    hstamp(10)
    A(f'''
    s_barrier                               ; #5
    ds_read2st64_b32 v[48:49], v7 offset0:0 offset1:1
    ds_read2st64_b32 v[50:51], v7 offset0:2 offset1:3
    ds_read2st64_b32 v[52:53], v7 offset0:4 offset1:5
    ds_read2st64_b32 v[54:55], v7 offset0:6 offset1:7
    s_mov_b32 s63, {SPIN}
    s_waitcnt lgkmcnt(0)
    s_cmp_lt_u32 s30, 7
    s_cbranch_scc1 L_hdone
    ''')
    hstamp(13)
    A(f'''
    {'s_cmp_eq_u32 s30, 8' if peek else ''}
    {'s_cbranch_scc1 L_adds' if peek else ''}
    buffer_load_dword v34, v6, s[40:43], s19 offen sc1
    buffer_load_dword v36, v6, s[40:43], s20 offen sc1
    buffer_load_dword v38, v6, s[40:43], s21 offen sc1
    buffer_load_dword v40, v6, s[40:43], s22 offen sc1
    buffer_load_dword v42, v6, s[40:43], s23 offen sc1
    buffer_load_dword v44, v6, s[40:43], s24 offen sc1
    buffer_load_dword v46, v6, s[40:43], s25 offen sc1
    L_adds:
    v_add_f32 v48, v48, v49
    v_add_f32 v50, v50, v51
    v_add_f32 v52, v52, v53
    v_add_f32 v54, v54, v55
    v_add_f32 v48, v48, v50
    v_add_f32 v52, v52, v54
    v_add_f32 v26, v48, v52
    {'v_and_b32 v26, s51, v26' if p2t else ''}
    L_fchk:
    s_sub_u32 s63, s63, 1
    s_waitcnt vmcnt(0)
    s_cbranch_scc1 L_fsum
    ''')
    if p2t:
        for i in range(1, 8): A(f'v_xor_b32 v{32+2*i}, v167, v{32+2*i}')
        A('''
        v_or3_b32 v12, v34, v36, v38
        v_or3_b32 v13, v40, v42, v44
        v_or3_b32 v12, v12, v13, v46
        v_and_b32 v12, s47, v12
        v_cmp_ne_u32 vcc, 0, v12
        ''')
    else:
        A('''
        v_max3_u32 v12, v34, v36, v38
        v_max3_u32 v13, v40, v42, v44
        v_max3_u32 v12, v12, v13, v46
        v_cmp_eq_u32 vcc, -1, v12
        ''')
    A(f'''
    s_cbranch_vccnz L_fpoll
    L_fsum:
    v_add_f32 v34, v34, v26                  ; slots hkv^i: the tree is the same for every finisher
    v_add_f32 v36, v36, v38
    v_add_f32 v40, v40, v42
    v_add_f32 v44, v44, v46
    v_add_f32 v34, v34, v36
    v_add_f32 v40, v40, v44
    L_finish:
    v_add_f32 v34, v34, v40
    v_add_f32 v34, v34, v5
    v_cvt_pk_bf16_f32 v34, v34, v34
    buffer_store_short v34, v4, s[52:55], 0 offen{outf}
    ''')
    hstamp(11)
    if stamps and 14 in hl:
        A(f's_sub_u32 s60, {SPIN}, s63\ns_mul_i32 s60, s60, 100\ns_add_u32 s60, s68, s60\ns_addc_u32 s61, s69, 0\nv_writelane_b32 v164, s60, 14\nv_writelane_b32 v165, s61, 14')
    A(f'''
    s_cmp_lg_u32 s64, 21
    s_cbranch_scc1 L_hdone
    s_mov_b64 exec, 1
    v_mov_b32 v1, {EPOCH}
    buffer_store_dword v28, v1, s[40:43], 0 offen
    L_hdone:
    ''')
    if padat == 'hz': A('s_waitcnt vmcnt(0)\ns_memrealtime s[100:101]\ns_waitcnt lgkmcnt(0)')
    if pad and padat[0] == 'h': dopad('L_padh')
    if stamps:
        A('s_waitcnt vmcnt(0)')
        hstamp(12)
        A('''
        s_memtime s[92:93]
        s_waitcnt lgkmcnt(0)
        s_sub_u32 s92, s92, s94
        s_sub_u32 s93, s100, s96
        v_cvt_f32_u32 v1, s92
        v_cvt_f32_u32 v2, s93
        v_rcp_f32 v2, v2
        v_mul_f32 v1, v1, v2
        v_mul_f32 v1, 0x42c80000, v1
        v_cvt_u32_f32 v1, v1
        v_readfirstlane_b32 s92, v1
        s_add_u32 s92, s92, s68
        s_addc_u32 s93, s69, 0
        v_writelane_b32 v164, s92, 15
        v_writelane_b32 v165, s93, 15
        ''')
        A(f'''
        s_mov_b64 exec, 0xffff
        s_lshl_b32 s60, s2, 9
        s_add_u32 s60, s60, {STAMPS+256}
        buffer_store_dwordx2 v[164:165], v29, s[40:43], s60 offen
        ''')
    A(f'''
    L_end:
    s_endpgm
    L_fpoll:
    buffer_load_dword v34, v6, s[40:43], s19 offen sc1
    buffer_load_dword v36, v6, s[40:43], s20 offen sc1
    buffer_load_dword v38, v6, s[40:43], s21 offen sc1
    buffer_load_dword v40, v6, s[40:43], s22 offen sc1
    buffer_load_dword v42, v6, s[40:43], s23 offen sc1
    buffer_load_dword v44, v6, s[40:43], s24 offen sc1
    buffer_load_dword v46, v6, s[40:43], s25 offen sc1
    s_branch L_fchk
    ''')
    if peek:
        A(f'''
    L_sure:                                 ; the seven others have arrived already
    ds_write_b32 v31, v30 offset:{NOPUB-MISC}
    s_mov_b32 s30, 8
    L_trig2:
    ''')
        trigpoll('L_trig2_done')
        A(f'''
    s_sub_u32 s63, s63, 1
    s_cbranch_scc0 L_trig2
    L_trig2_done:
    s_mov_b64 exec, -1
    buffer_load_dword v34, v6, s[40:43], s19 offen sc1
    buffer_load_dword v36, v6, s[40:43], s20 offen sc1
    buffer_load_dword v38, v6, s[40:43], s21 offen sc1
    buffer_load_dword v40, v6, s[40:43], s22 offen sc1
    buffer_load_dword v42, v6, s[40:43], s23 offen sc1
    buffer_load_dword v44, v6, s[40:43], s24 offen sc1
    buffer_load_dword v46, v6, s[40:43], s25 offen sc1
    s_waitcnt lgkmcnt(0)
    s_branch L_b5
    ''')
    ZW[0] = True
    A(f'''
    L_stream:
    {'' if bark else 's_barrier                               ; flags zeroed'}
    s_add_u32 s12, s20, s57
    s_addc_u32 s13, s21, 0
    s_mov_b64 s[14:15], s[10:11]
    s_mov_b64 s[40:41], s[38:39]
    s_mov_b32 s42, {WSN}
    s_mov_b32 s43, s11
    v_mov_b32 v26, {MISC}
    ''')
    if fastmask:
        A(f'''
        s_getreg_b32 s60, hwreg(HW_REG_XCC_ID, 0, 3)
        s_bitcmp1_b32 {fastmask}, s60
        s_cselect_b64 vcc, -1, 0
        {'s_cmp_eq_u32 s4, 7' if fast7 else ''}
        {'s_cselect_b64 vcc, -1, vcc' if fast7 else ''}
        {'s_cmp_eq_u32 s5, 7' if fast7 == 2 else ''}
        {'s_cselect_b64 vcc, -1, vcc' if fast7 == 2 else ''}
        ''')
        vm.d = dthr
    if kfirst == 1: hb('K0', 0, k0thr)
    if kfirst == 2: ha('K1', 1, k0thr)
    A(f'''
    s_mov_b64 s[52:53], s[24:25]
    s_mov_b64 s[48:49], s[32:33]
    s_mov_b32 s51, s11
    s_mov_b32 s55, s11
    s_cmp_lt_u32 s5, 7
    s_cselect_b32 s54, {Z(4096*896)}, 0
    s_cselect_b32 s61, s5, 0
    s_lshl_b32 s61, s61, 7
    s_lshl4_add_u32 s64, s4, s3
    s_mul_i32 s64, s64, {32*896}
    s_add_u32 s64, s64, s61
    s_lshl3_add_u32 s65, s4, s3
    s_mul_i32 s65, s65, {32*896}
    s_add_u32 s65, s65, s61
    s_cmp_lt_u32 s7, 7
    s_cselect_b32 s50, {Z(1792*896)}, 0
    s_cselect_b32 s65, s65, 0
    v_and_b32 v1, 15, v0                     ; row
    v_lshrrev_b32 v2, 4, v0                  ; g
    v_and_b32 v3, 7, v0
    v_lshlrev_b32 v3, 1, v3
    v_xor_b32 v3, v3, v2
    v_lshlrev_b32 v3, 4, v3
    v_lshl_add_u32 v3, v1, 9, v3
    v_add_u32 v8, s59, v3
    v_xor_b32 v9, 64, v8
    v_xor_b32 v10, 0x80, v8
    v_xor_b32 v11, 0xc0, v8
    ''')
    def readK(dst, slot):
        for t in range(8):
            A(f'ds_read_b128 v[{dst+4*t}:{dst+4*t+3}], v{vKA[t&3]} offset:{slot*8192 + (t>>2)*256}')
    def readQ(dst, ts):
        for n, t in enumerate(ts):
            A(f'ds_read_b128 v[{dst+4*n}:{dst+4*n+3}], v24 offset:{t*64}')
    def qk(tile, src, qf, ts=range(8)):
        for n, t in enumerate(ts):
            c = '0' if t == 0 else f'v[{Sx+4*tile}:{Sx+4*tile+3}]'
            A(f'v_mfma_f32_16x16x32_bf16 v[{Sx+4*tile}:{Sx+4*tile+3}], v[{src+4*t}:{src+4*t+3}], v[{qf+4*n}:{qf+4*n+3}], {c}')
    def flagwait(off, lab):
        if nohelp:
            A(f'{lab}_done:')
            return
        A(f'''
        s_mov_b32 s61, {SPIN*8}
        {lab}:
        ds_read_b32 v1, v26 offset:{off-MISC}
        s_sub_u32 s61, s61, 1
        s_waitcnt lgkmcnt(0)
        s_cbranch_scc1 {lab}_done
        v_readfirstlane_b32 s67, v1
        s_cmp_lg_u32 s67, 0
        s_cbranch_scc1 {lab}_done
        s_sleep 1
        s_branch {lab}
        {lab}_done:
        ''')
    if bark: A('s_barrier')
    vm.wait('small')
    A(f'''
    s_mov_b64 exec, 1
    ds_add_u32 v26, v28 offset:{CNT0-MISC}
    s_mov_b64 exec, -1
    ''')
    stamp(2)
    if not (kfirst or xlast == 2): hb('K0', 0)
    if kfirst != 2: ha('K1', 1)
    if kfirst != 2: vm.wait('K0')
    readK(KfA, 0)
    A(f'''
    v_lshrrev_b32 v21, 2, v0                 ; row = l/4
    v_and_b32 v22, 7, v21
    v_lshlrev_b32 v22, 5, v22
    v_lshl_add_u32 v22, v21, 9, v22
    v_and_b32 v23, 3, v0
    v_lshl_add_u32 v22, v23, 3, v22
    v_add_u32 v12, s59, v22
    ''')
    for t in range(1, 8):
        A(f'v_xor_b32 v{12+t}, {t*32}, v12')
    A(f'''
    v_and_b32 v24, 1, v0
    v_lshlrev_b32 v25, 6, v24                ; head*64
    v_lshlrev_b32 v24, 9, v24
    v_lshl_add_u32 v24, v2, 4, v24
    v_add_u32 v24, {QL}, v24
    s_lshl_b32 s60, s3, 3
    s_add_u32 s60, s60, {STW}
    v_add_u32 v25, s60, v25
    ''')
    hb('K1', 1)
    A('s_waitcnt lgkmcnt(0)')
    ha('K2', 0)
    vm.wait('K1')
    readK(KfB, 1)
    hb('K2', 0)
    A('s_waitcnt lgkmcnt(0)')
    ha('K3', 1)
    vm.wait('K2')
    if k3:
        readK(KfC, 0)
        hb('K3', 1)
        A('s_waitcnt lgkmcnt(0)')
        ha('V0', 0)
        vm.wait('K3')
        hb('V0', 0)
        stamp(3)
        if not nodep: flagwait(FLQ, 'L_wq')
        stamp(4)
        readQ(Pk, range(4))
        readQ(160, range(4, 6))
        A('s_waitcnt lgkmcnt(2)')
        for tile, src in enumerate((KfA, KfB, KfC)): qk(tile, src, Pk, range(4))
        readQ(Pk, range(6, 8))
        A('s_waitcnt lgkmcnt(2)')
        for tile, src in enumerate((KfA, KfB, KfC)): qk(tile, src, 160, range(4, 6))
        A('s_waitcnt lgkmcnt(0)')
        for tile, src in enumerate((KfA, KfB, KfC)): qk(tile, src, Pk, range(6, 8))
        readK(KfA, 1)
        readQ(KfB, range(8))
        A('s_waitcnt lgkmcnt(0)')
        issue('V1', 1, (0,))
        qk(3, KfA, KfB)
    else:
        hb('K3', 1)
        stamp(3)
        if not nodep: flagwait(FLQ, 'L_wq')
        stamp(4)
        readQ(KfC, range(8))
        A('s_waitcnt lgkmcnt(0)')
        qk(0, KfA, KfC)
        readK(KfA, 0)
        qk(1, KfB, KfC)
        A('s_waitcnt lgkmcnt(0)')
        qk(2, KfA, KfC)
        ha('V0', 0)
        vm.wait('K3')
        readK(KfB, 1)
        issue('V0', 0, (1,))
        A('s_waitcnt lgkmcnt(0)')
        qk(3, KfB, KfC)
    MK = 84
    A(f's_mov_b32 s{MK}, 0x00030003')
    A(f's_mov_b32 s{MK+1}, 0x00030003')
    for u in range(1, 8):
        A(f's_lshl_b64 s[{MK+2*u}:{MK+2*u+1}], s[{MK}:{MK+1}], {2*u}')
    A(f's_mov_b32 s63, {CEXP}')
    for i in range(8):
        a, b = Sx + 2*i, Sx + 2*i + 1
        A(f'v_cvt_pk_bf16_f32 v{b}, v{a}, v{b}')
        A(f'v_lshlrev_b32 v{a}, 16, v{b}')
        A(f'v_and_b32 v{b}, 0xffff0000, v{b}')
    A(f'v_max3_f32 v22, v{Sx}, v{Sx+1}, v{Sx+2}')
    for i in range(3, 15, 2):
        A(f'v_max3_f32 v22, v22, v{Sx+i}, v{Sx+i+1}')
    A(f'''
    v_max_f32 v22, v22, v{Sx+15}
    v_mov_b32 v1, v22
    v_permlane16_swap_b32 v22, v1
    v_max_f32 v22, v22, v1
    v_mov_b32 v1, v22
    v_permlane32_swap_b32 v22, v1
    v_max_f32 v22, v22, v1                   ; wave max per head
    ''')
    for i in range(16):
        A(f'v_sub_f32 v{Sx+i}, v{Sx+i}, v22')
    for i in range(16):
        A(f'v_mul_f32 v{Sx+i}, s63, v{Sx+i}')
    for i in range(16):
        A(f'v_exp_f32 v{Sx+i}, v{Sx+i}')
    for i in range(8):
        A(f'v_cvt_pk_bf16_f32 v{Pk+i}, v{Sx+2*i}, v{Sx+2*i+1}')
    for i in range(8):
        A(f'v_add_f32 v{Sx+i}, v{Sx+i}, v{Sx+8+i}')
    for i in range(4):
        A(f'v_add_f32 v{Sx+i}, v{Sx+i}, v{Sx+4+i}')
    A(f'''
    v_add_f32 v{Sx}, v{Sx}, v{Sx+2}
    v_add_f32 v{Sx+1}, v{Sx+1}, v{Sx+3}
    v_add_f32 v23, v{Sx}, v{Sx+1}
    v_mov_b32 v1, v23
    v_permlane16_swap_b32 v23, v1
    v_add_f32 v23, v23, v1
    v_mov_b32 v1, v23
    v_permlane32_swap_b32 v23, v1
    v_add_f32 v23, v23, v1                   ; wave sum per head
    s_mov_b64 exec, 3
    ds_write_b64 v25, v[22:23]
    s_mov_b64 exec, 1
    ds_add_u32 v26, v28 offset:{CNT-MISC}
    s_mov_b64 exec, -1
    ''')
    stamp(5)
    if not k3: ha('V1', 1)
    vWO, vWD, vOW, vOR, vP1s, vP1l, vYW, vHA = 22, 23, 24, 25, 27, 28, 29, 21
    vWA = [8, 9, 10, 11]
    A(f'''
    s_waitcnt lgkmcnt(0)
    s_movk_i32 s61, 896
    v_mad_u32_u24 v{vWD}, v{vR8}, s61, v{vCH}
    v_bfe_u32 v1, v0, 3, 1
    v_lshlrev_b32 v1, 8, v1
    v_and_b32 v3, 16, v0
    v_add_u32 v1, v1, v3
    v_lshrrev_b32 v3, 5, v0
    v_add_u32 v1, v1, v3
    v_mad_u32_u24 v{vWO}, v1, s61, v{vCH}
    v_lshrrev_b32 v1, 2, v0
    v_lshlrev_b32 v1, 7, v1
    v_bfe_u32 v2, v0, 3, 2
    v_lshl_add_u32 v1, v2, 5, v1
    v_and_b32 v2, 3, v0
    v_lshl_add_u32 v1, v2, 3, v1
    v_add_u32 v8, s59, v1
    v_xor_b32 v9, 32, v8
    v_xor_b32 v10, 64, v8
    v_xor_b32 v11, 0x60, v8
    v_lshlrev_b32 v1, 4, v0
    s_lshl_b32 s60, s3, 11
    s_add_u32 s60, s60, {AREA}
    v_add_u32 v{vOW}, s60, v1
    v_lshrrev_b32 v2, 4, v0                  ; g
    v_and_b32 v3, 15, v0                     ; c
    v_lshlrev_b32 v31, 12, v2                ; waves 2g, 2g+1
    v_lshl_add_u32 v31, v3, 4, v31
    s_lshl_b32 s60, s3, 8
    s_add_u32 s61, s60, {AREA}
    v_add_u32 v{vOR}, s61, v31
    s_add_u32 s61, s60, {YL}
    v_lshlrev_b32 v31, 2, v0
    v_add_u32 v{vYW}, s61, v31
    s_lshl3_add_u32 s60, s56, s3
    s_lshl_b32 s60, s60, 10
    s_add_u32 s60, s60, {P1}
    v_add_u32 v{vP1l}, s60, v1
    s_lshl4_add_u32 s61, s5, s60
    v_and_b32 v1, 3, v0
    v_lshlrev_b32 v1, 8, v1                  ; g*256
    v_and_b32 v3, 4, v0
    v_lshl_add_u32 v1, v3, 1, v1             ; half*8
    v_and_b32 v3, 8, v0
    v_lshl_add_u32 v1, v3, 4, v1             ; ks*128
    v_add_u32 v{vP1s}, s61, v1
    s_lshl_b32 s60, s3, 6
    s_add_u32 s60, s60, {HL}
    v_lshlrev_b32 v1, 3, v2
    v_add_u32 v{vHA}, s60, v1
    v_lshlrev_b32 v31, 4, v2
    v_add_u32 v31, {FACW}, v31
    s_mul_i32 s60, s6, 7
    s_add_u32 s60, s60, s5
    s_lshl3_add_u32 s60, s60, s4
    s_lshl_b32 s60, s60, {8 if p2b else 9}
    s_add_u32 s60, s60, {P2}
    v_lshl_add_u32 v30, v0, {2 if p2b else 3}, s60
    {'s_movk_i32 s66, 0xff' if p2t else ''}
    ''')
    Vf = KfA; Mk = KfB
    WOf, WDf = KfC, Sx
    PL = 64
    def masks(i):
        M = Mk + 16*(i & 1)
        for u in range(8):
            A(f'v_cndmask_b32 v{M+2*u}, 0, v{Pk+2*(i^vx)}, s[{MK+2*u}:{MK+2*u+1}]')
            A(f'v_cndmask_b32 v{M+2*u+1}, 0, v{Pk+2*(i^vx)+1}, s[{MK+2*u}:{MK+2*u+1}]')
    def pv(i, slot, mid=None):
        M = Mk + 16*(i & 1)
        def rd(t): A(f'ds_read_b64_tr_b16 v[{Vf+2*t}:{Vf+2*t+1}], v{vVA[t&7]} offset:{slot*8192 + (t>>3)*256}')
        def mf(ii):
            acc = Oa + 4*(ii >> 2)
            c = '0' if (i == 0 and (ii & 3) == 0) else f'v[{acc}:{acc+3}]'
            A(f'v_mfma_f32_16x16x32_bf16 v[{acc}:{acc+3}], v[{M+4*(ii&3)}:{M+4*(ii&3)+3}], v[{Vf+4*ii}:{Vf+4*ii+3}], {c}')
        if ilv and i == 3 and mid is None:
            for t in range(8): rd(t)
            for ii in range(8):
                A(f's_waitcnt lgkmcnt({min(6, 14-2*ii)})')
                mf(ii)
                if ii < 4: rd(8+2*ii); rd(9+2*ii)
                if wlast == 6 and ii >= 4:
                    A(f's_add_u32 m0, s59, {8192 + ii*1024}')
                    A(f's_add_u32 s60, s64, {ii*2*896}')
                    A(f'buffer_load_dwordx4 v{vWO}, s[52:55], s60 offen{wnt} lds')
                    vm.add('WO', 1)
                if wlast == 3:
                    A(f's_add_u32 m0, s59, {8192 + ii*1024}')
                    A(f's_add_u32 s60, s64, {ii*2*896}')
                    A(f'buffer_load_dwordx4 v{vWO}, s[52:55], s60 offen{wnt} lds')
            if wlast == 3: vm.add('WO', 8)
            return
        for t in range(16): rd(t)
        if mid: mid()
        for ii in range(8):
            A(f's_waitcnt lgkmcnt({14-2*ii})')
            mf(ii)
    def issueW(p, slot, t=None, wdoff=0):
        vm.upto(thr if t is None else t)
        if wq4: A('s_lshl_b32 s60, s6, 4\ns_lshl_b64 exec, 0xffff, s60')
        for k in range(4):
            if p < 2:
                A(f's_add_u32 m0, s59, {slot*8192 + (4*p+k)*1024}')
                A(f's_add_u32 s60, s64, {(4*p+k)*2*896}')
                A(f'buffer_load_dwordx4 v{vWO}, s[52:55], s60 offen{wnt} lds')
            else:
                A(f's_add_u32 m0, s59, {slot*8192 + wdoff + k*1024}')
                A(f's_add_u32 s60, s65, {k*8*896}')
                A(f'buffer_load_dwordx4 v{vWD}, s[48:51], s60 offen{wnt} lds')
        if wq4: A('s_mov_b64 exec, -1')
        vm.add('WO' if p < 2 else 'WD', 4)
    def readWO(slot, kss=(0, 1)):
        for ks in kss:
            for T in range(4):
                for half in range(2):
                    d = WOf + 16*ks + 4*T + 2*half
                    A(f'ds_read_b64_tr_b16 v[{d}:{d+1}], v{vWA[T]} offset:{slot*8192 + ks*4096 + half*2048}')
    def readWD(slot, wdoff=0):
        for T in range(4):
            for half in range(2):
                A(f'ds_read_b64_tr_b16 v[{WDf+4*T+2*half}:{WDf+4*T+2*half+1}], v{vWA[T]} offset:{slot*8192 + wdoff + half*2048}')
    def pretouch():
        if p1pre == 2:
            A(f's_lshl_b32 s60, s5, 8\ns_mov_b64 exec, 0x101\nbuffer_load_dword v160, v{vP1l}, s[40:43], s60 offen{pref}\ns_mov_b64 exec, -1')
            vm.add('pre', 1)
            return
        for q in range(2):
            if p1pre: A(f'buffer_load_dwordx4 v[160:163], v{vP1l}, s[40:43], 0 offen offset:{q*1024}{pref}')
        vm.add('pre', 2 if p1pre else 0)
    masks(0)
    vm.wait('V0')
    pv(0, 0)
    masks(1)
    hb('V1', 1)
    if not wlast:
        issueW(0, 0)
        vm.wait('V1')
        pv(1, 1)
        issueW(1, 0)
        issueW(2, 1)
        masks(2)
        vm.wait('WO')
        readWO(0)
        A('s_waitcnt lgkmcnt(0)')
        issue('V2', 0, (0,))
        vm.wait('WD')
        readWD(1)
        hb('V2', 0)
        pretouch()
        A('s_waitcnt lgkmcnt(0)')
        ha('V3', 1, thr + 2)
        vm.wait('V2')
        pv(2, 0, lambda: issue('V3', 1, (1,)))
        s3 = 1
    elif wlast in (5, 6):
        issueW(0, 0)
        vm.wait('V1')
        if catch:
            A(f'v_mov_b32 v1, 1\ns_mov_b64 exec, 1\nds_add_rtn_u32 v1, v26, v1 offset:{RANK-MISC}\ns_mov_b64 exec, -1\ns_waitcnt lgkmcnt(0)\nv_readfirstlane_b32 s67, v1\ns_cmp_ge_u32 s67, {catch}\ns_cselect_b64 vcc, -1, 0')
            vm.skip = True
        pv(1, 1)
        issueW(2, 0, None, 4096)
        ha('V2', 1)
        masks(2)
        vm.wait('WD')
        readWO(0, (0,))
        readWD(0, 4096)
        hb('V2', 1)
        pretouch()
        A('s_waitcnt lgkmcnt(0)')
        ha('V3', 0, v3thr)
        vm.skip = False
        vm.wait('V2')
        pv(2, 1, lambda: issue('V3', 0, (1,)))
        s3 = 0
    else:
        issueW(2, 0)
        vm.wait('V1')
        pv(1, 1)
        ha('V2', 1)
        masks(2)
        vm.wait('WD')
        readWD(0)
        hb('V2', 1)
        pretouch()
        A('s_waitcnt lgkmcnt(0)')
        ha('V3', 0, v3thr)
        vm.wait('V2')
        pv(2, 1, lambda: issue('V3', 0, (1,)))
        s3 = 0
    masks(3)
    flagwait(FLF, 'L_wf')
    FC = 160
    PKR = f'''    v_pk_mul_f32 v[32:33], v[32:33], v[{FC}:{FC+1}]
    v_pk_mul_f32 v[34:35], v[34:35], v[{FC}:{FC+1}]
    s_waitcnt lgkmcnt(0)
    v_pk_fma_f32 v[32:33], v[36:37], v[{FC+2}:{FC+3}], v[32:33]
    v_pk_fma_f32 v[34:35], v[38:39], v[{FC+2}:{FC+3}], v[34:35]
    v_permlane32_swap_b32 v32, v34
    v_permlane32_swap_b32 v33, v35
    v_pk_add_f32 v[36:37], v[32:33], v[34:35]
    v_pk_add_f32 v[32:33], v[32:33], v[34:35]
    v_permlane16_swap_b32 v32, v36
    v_permlane16_swap_b32 v33, v37
    v_pk_add_f32 v[32:33], v[32:33], v[36:37]
'''
    OLDR = f'''    v_mul_f32 v32, v32, v{FC}
    v_mul_f32 v34, v34, v{FC}
    v_mul_f32 v33, v33, v{FC+1}
    v_mul_f32 v35, v35, v{FC+1}
    s_waitcnt lgkmcnt(0)
    v_fmac_f32 v32, v36, v{FC+2}
    v_fmac_f32 v34, v38, v{FC+2}
    v_fmac_f32 v33, v37, v{FC+3}
    v_fmac_f32 v35, v39, v{FC+3}
    v_permlane32_swap_b32 v32, v34
    v_permlane32_swap_b32 v33, v35
    v_add_f32 v36, v32, v34
    v_add_f32 v37, v33, v35
    v_add_f32 v32, v32, v34
    v_add_f32 v33, v33, v35
    v_permlane16_swap_b32 v32, v36
    v_permlane16_swap_b32 v33, v37
    v_add_f32 v32, v32, v36
    v_add_f32 v33, v33, v37
'''
    A(f'''
    ds_read_b128 v[4:7], v26 offset:{FLF-MISC}
    ds_read2_b64 v[64:67], v{vHA} offset0:0 offset1:4
    s_mov_b32 s{MK}, 0x00010001
    s_mov_b32 s{MK+1}, 0x00010001
    s_mov_b32 s{MK+2}, 0x01000100
    s_mov_b32 s{MK+3}, 0x01000100
    s_mov_b32 s{MK+4}, 0x00ff00ff
    s_mov_b32 s{MK+5}, 0x00ff00ff
    ''')
    vm.wait('pre')
    A(f'''
    ds_read_b128 v[{FC}:{FC+3}], v31
    s_waitcnt lgkmcnt(0)
    v_readfirstlane_b32 s63, v5
    {'v_lshlrev_b32 v5, 3, v0' if p2t else ''}
    {'v_and_b32 v5, 24, v5' if p2t else ''}
    {'v_lshrrev_b32 v5, v5, v6' if p2t else ''}
    ''')
    FA = 144
    for r in range(4):
        A(f'v_cndmask_b32 v{68+r}, 0, v{64+r}, s[{MK}:{MK+1}]')
        A(f'v_cndmask_b32 v{72+r}, 0, v{64+r}, s[{MK+2}:{MK+3}]')
    A(f'''
    v_mfma_f32_16x16x32_bf16 v[{FA}:{FA+3}], v[68:71], v[{WDf}:{WDf+3}], 0
    v_mfma_f32_16x16x32_bf16 v[{FA+4}:{FA+7}], v[68:71], v[{WDf+4}:{WDf+7}], 0
    v_mfma_f32_16x16x32_bf16 v[{FA}:{FA+3}], v[72:75], v[{WDf+8}:{WDf+11}], v[{FA}:{FA+3}]
    v_mfma_f32_16x16x32_bf16 v[{FA+4}:{FA+7}], v[72:75], v[{WDf+12}:{WDf+15}], v[{FA+4}:{FA+7}]
    s_mov_b32 s62, {SPIN}
    ''')
    if wlast in (1, 2):
        issueW(0, 1, wthr)
        if wlast == 1: issueW(1, 1, wthr + 2)
    if early: A('v_mov_b32 v1, 1\ns_mov_b64 exec, 1')
    vm.wait('V3')
    if early: A(f'ds_add_u32 v26, v1 offset:{CNTV-MISC}\ns_mov_b64 exec, -1')
    stamp(6)
    pv(3, s3, (lambda: issueW(1, 1, 99)) if wlast == 2 else None)
    A(f'''
    ds_write_b128 v{vOW}, v[{Oa}:{Oa+3}]
    ds_write_b128 v{vOW}, v[{Oa+4}:{Oa+7}] offset:1024
    ''')
    if wlast == 4:
        issueW(0, 1, 99); issueW(1, 1, 99)
    if wlast == 5: issueW(1, 1, 99)
    A('s_waitcnt lgkmcnt(0)')
    stamp(7)
    A(f'''
    s_barrier                               ; #4: O partials
    ds_read_b128 v[32:35], v{vOR}
    ds_read_b128 v[36:39], v{vOR} offset:2048
    s_cmp_eq_u32 s63, 0
    s_waitcnt lgkmcnt(1)
{PKR if pkr else OLDR}
    v_cvt_pk_bf16_f32 v32, v32, v33
    v_min_u32 v6, -2, v32
    v_min_u32 v7, -2, v32
    v_permlane32_swap_b32 v6, v7
    s_mov_b64 exec, 0xffff
    s_cbranch_scc1 L_slowpub
    buffer_store_dwordx2 v[6:7], v{vP1s}, s[40:43], 0 offen
    L_pubdone:
    s_mov_b64 exec, -1
    ''')
    vm.add('pub', 1)
    stamp(8)
    A(f'''
    s_cmp_eq_u32 s5, 7
    s_cbranch_scc1 L_sdone
    ''')
    def polls():
        A(f'buffer_load_dwordx4 v[{PL}:{PL+3}], v{vP1l}, s[40:43], 0 offen sc1')
    if wlast:
        polls(); vm.add('poll', 1)
        vm.wait('pub')
        readWO(1, (1,) if wlast in (5, 6) else (0, 1))
        A('s_branch L_poll1_chk')
    A('L_poll1:')
    polls()
    A(f'''
    L_poll1_chk:
    s_sub_u32 s62, s62, 1
    s_waitcnt vmcnt(0)
    s_cbranch_scc1 L_poll1_done
    v_max3_u32 v1, v{PL}, v{PL+1}, v{PL+2}
    v_max_u32 v1, v1, v{PL+3}
    v_cmp_eq_u32 vcc, -1, v1
    {'s_mov_b64 exec, vcc' if mpoll else ''}
    {'' if nohelp else 's_cbranch_vccnz L_poll1'}
    L_poll1_done:
    {'s_mov_b64 exec, -1' if mpoll else ''}
    ''')
    stamp(9)
    LO, HI = 80, 88
    def omm(a, ks, T0):
        for x in range(2):
            acc = FA + 4*x
            bb = WOf + 16*ks + 4*(T0 + x)
            A(f'v_mfma_f32_16x16x32_bf16 v[{acc}:{acc+3}], v[{a}:{a+3}], v[{bb}:{bb+3}], v[{acc}:{acc+3}]')
    for q in range(4):
        A(f'v_cndmask_b32 v{LO+q}, 0, v{PL+q}, s[{MK+4}:{MK+5}]')
    for q in range(4):
        A(f'v_cndmask_b32 v{HI+4+q}, v{PL+q}, 0, s[{MK+4}:{MK+5}]')
    if wlast: A('s_waitcnt lgkmcnt(0)')
    omm(LO, 0, 0)
    for q in range(4):
        A(f'v_mov_b32_dpp v{HI+q}, v{PL+q} row_shr:8 row_mask:0xf bank_mask:0xf bound_ctrl:0')
    omm(HI+4, 1, 2)
    for q in range(4):
        A(f'v_mov_b32_dpp v{LO+4+q}, v{PL+q} row_shl:8 row_mask:0xf bank_mask:0xf bound_ctrl:0')
    omm(HI, 0, 2)
    omm(LO+4, 1, 0)
    A(f'''
    v_pk_add_f32 v[{FA}:{FA+1}], v[{FA}:{FA+1}], v[{FA+2}:{FA+3}]
    v_pk_add_f32 v[{FA+4}:{FA+5}], v[{FA+4}:{FA+5}], v[{FA+6}:{FA+7}]
    v_add_f32 v{FA}, v{FA}, v{FA+1}
    v_add_f32 v{FA+4}, v{FA+4}, v{FA+5}
    v_permlane16_swap_b32 v{FA}, v{FA+4}
    v_add_f32 v{FA}, v{FA}, v{FA+4}
    ds_write_b32 v{vYW}, v{FA}
    s_waitcnt lgkmcnt(0)
    ''')
    stamp(10)
    if fin != 'D': A('s_cmp_lg_u32 s3, 0')
    A('s_barrier                               ; #5')
    if fin != 'D':
        A(f'''
        s_cbranch_scc1 {'L_clean' if clean else 'L_sdone'}
        {f'ds_read_b32 v1, v26 offset:{NOPUB-MISC}' if peek else ''}
        ds_read2st64_b32 v[48:49], v{vYW} offset0:0 offset1:1
        ds_read2st64_b32 v[50:51], v{vYW} offset0:2 offset1:3
        ds_read2st64_b32 v[52:53], v{vYW} offset0:4 offset1:5
        ds_read2st64_b32 v[54:55], v{vYW} offset0:6 offset1:7
        s_waitcnt lgkmcnt(2)
        {'v_cmp_ne_u32 vcc, 0, v1' if peek else ''}
        v_add_f32 v48, v48, v49
        v_add_f32 v50, v50, v51
        {'s_cbranch_vccnz L_sdone' if peek else ''}
        s_waitcnt lgkmcnt(0)
        v_add_f32 v52, v52, v53
        v_add_f32 v54, v54, v55
        v_add_f32 v48, v48, v50
        v_add_f32 v52, v52, v54
        v_add_f32 v4, v48, v52
        {'v_bfi_b32 v4, s66, v5, v4' if p2t else 'v_min_u32 v4, -2, v4'}
        {'buffer_store_dword v4, v30, s[40:43], 0 offen sc1' if p2b else 'buffer_store_dwordx2 v[4:5], v30, s[40:43], 0 offen sc1'}
        ''')
        if stamps: A('s_waitcnt vmcnt(0)\ns_memrealtime s[70:71]')
        if clean:
            A(f'''
            L_clean:
            s_lshl_b32 s60, s5, 8
            s_cmp_eq_u32 s5, 6
            s_cselect_b32 s61, 0x1010101, 0x101
            s_mov_b32 exec_lo, s61
            s_mov_b32 exec_hi, 0
            buffer_store_dword v{vTAG}, v{vP1l}, s[40:43], s60 offen offset:4 sc1
            '''.replace('s_cselect_b32 s61, 0x1010101, 0x101', 's_movk_i32 s61, 0x101\ns_cselect_b32 s61, 0x1010101, s61'))
    if pad and padat[0] == 's': dopad('L_pads')
    A('L_sdone:')
    if stamps:
        A(f's_cmp_eq_u32 s3, 0')
        A('s_cbranch_scc1 L_dump0')
        A(f's_cmp_lg_u32 s3, 7')
        A('s_cbranch_scc1 L_end')
        dump_stamps(16, [sreg(k) for k in range(11)])
        A('s_endpgm')
        A('L_dump0:')
        dump_stamps(0, [sreg(k) for k in range(11)])
    A('s_endpgm')
    A(f'''
    L_slowpub:
    buffer_store_dwordx2 v[6:7], v{vP1s}, s[40:43], 0 offen sc1
    s_branch L_pubdone
    ''')
    A('.section .rodata,"a"')
    A('.p2align 6')
    A(f'.amdhsa_kernel {NAME}_kernel')
    A('.amdhsa_next_free_vgpr 168')
    A('.amdhsa_next_free_sgpr 102')
    A('.amdhsa_accum_offset 168')
    A('.amdhsa_group_segment_fixed_size 0')
    A('.amdhsa_kernarg_size 96')
    A('.amdhsa_user_sgpr_count 2')
    A('.amdhsa_user_sgpr_kernarg_segment_ptr 1')
    A('.amdhsa_system_sgpr_workgroup_id_x 1')
    A('.end_amdhsa_kernel')
    return top + A.finalize()

if __name__ == '__main__':
    out = sys.argv[1] if len(sys.argv) > 1 else f'cdna_kernels/{NAME}.s'
    kw = eval('dict(%s)' % sys.argv[2]) if len(sys.argv) > 2 else {}
    open(out, 'w').write(gen(**kw))
    print('wrote', out)
```

```python
import sys, struct, math
from asmlib import Asm
NAME = 'parallel_sum__sliding_block_cached__glu_gated_reglu__decode'

def f32(x): return '0x%08x' % struct.unpack('<I', struct.pack('<f', x))[0]

AREA = 131072
TAB = AREA + 16384
STW = TAB
FACW = TAB + 128
HL = TAB + 512
QL = TAB + 1024
YL = TAB + 2048
MISC = AREA + 28672
FLQ = MISC
CNT = MISC + 4
CNT0 = MISC + 12
FLF = MISC + 16
CNTV = MISC + 32
THR = MISC + 36
RANK = MISC + 40
NOPUB = MISC + 44
XN = MISC + 256
LDS_TOTAL = 163840
EPOCH = 0
ST = 0x3C000
TK2 = 0x2000
TK = 0x3000
P2 = 0x1C0000
P1 = 0x40000
QP = 0xC0000
WS_END = 0x1E0000
STAMPS = 0x300000
SPIN = 400000
CEXP = f32(math.log2(math.e)/16)

DOC = '''; ---------------------------------------------------------------------------------------------
; One persistent launch: 256 workgroups (one per CU), 8 stream waves + 1 helper wave each.
;   wg = b*64 + j*8 + hkv ; group (b, hkv) = 8 workgroups j that split the 4096-key window.
; Stream wave: 4 K tiles then 4 V tiles (16 keys x 512 B) by LDS-DMA through two 8 KB slots,
; Helper wave: LayerNorm, one 64-column piece of x*wq / x*W_gate / x*W_up, gathers q and h,
;   merges the softmax statistics of the group, runs the last reduction over the kv heads.
;   "empty" marker written earlier in the same launch. Plain stores are used only after d_debug
;   shows that every reader runs on this XCD; otherwise all hand-off stores are write-through.
; ---------------------------------------------------------------------------------------------
'''

class VM:
    def __init__(self, A): self.A = A; self.q = []
    def add(self, name, n): self.q.append((name, n))
    def wait(self, name, extra=''):
        idx = max(i for i, (nm, _) in enumerate(self.q) if nm == name)
        n = sum(c for _, c in self.q[idx+1:])
        self.q = self.q[idx+1:]
        self.A(f's_waitcnt vmcnt({n}){extra}')
    d = 0; nl = 0; skip = False
    def upto(self, n):
        tot = sum(c for _, c in self.q)
        if self.skip and tot > n:
            self.nl += 1
            self.A(f's_cbranch_vccnz L_pc{self.nl}\ns_waitcnt vmcnt({n})\nL_pc{self.nl}:')
            return
        if tot > n: self.A(f's_waitcnt vmcnt({n})')
        if self.d and n < 50 and tot > max(n - self.d, 0):
            self.nl += 1
            self.A(f's_cbranch_vccz L_pc{self.nl}\ns_waitcnt vmcnt({max(n - self.d, 0)})\nL_pc{self.nl}:')

def gen(stamps=0, wnt='', snt=' nt', kvnt=' nt', forceslow=False, now=False, pad=0, padat=None, thr=1,
        hpre=3, psleep=32, xlast=0, xtries=12, sync=False, xs='rev', light=False, kfirst=True, k3=True, wlast=5, hs=None, wthr=4, fastmask=0x55, dthr=0, fh=('K1b', 'K2a', 'K2b'), fin='T', spec=False, fsleep=0, hl=(6, 12), early=False, satom=True, noxc=False, first=(2, 0, 0), vx=0, kord=(0, 1, 2, 3), bark=0, p2t=0, qclean=0, fast7=False, pkr=True, wq4=False, rtm=False, hsw=2, peek=2, catch=0, bent=None, lin=None, p2b=True, v3thr=2, k0thr=5, dirty=0, wb=0, clean=0, p2pre=1, outf='', perm=0, gov=None, govh=('V2a', 'V2b', 'V3a'), govn=4, ilv=True, mpoll=True, nohelp=False, nodep=False, tlb=False, presl=32, pref=' sc1', pollf=' sc1', p1pre=0, sl=(0, 6, 10)):
    A = Asm()
    def sreg(k): return 68 + 2*k if k < 3 else 16 + 2*(k-3)
    def stamp(k):
        if stamps and (not light or k in sl): A(f's_memrealtime s[{sreg(k)}:{sreg(k)+1}]')
        if padat == f's{k}': A('s_memrealtime s[100:101]')
    def hstamp(k):
        if nohelp and nohelp - 1 == k: A('s_endpgm')
        if stamps and (not light or k in hl):
            A(f's_memrealtime s[100:101]\ns_waitcnt lgkmcnt(0)\nv_writelane_b32 v164, s100, {k}\nv_writelane_b32 v165, s101, {k}')
        if padat == f'h{k}': A('s_memrealtime s[100:101]\ns_waitcnt lgkmcnt(0)')
    def dopad(lab):
        A(f'''
        {lab}:
        s_memrealtime s[98:99]
        s_waitcnt lgkmcnt(0)
        s_sub_u32 s98, s98, s100
        s_cmp_lt_u32 s98, {pad}
        s_cbranch_scc1 {lab}
        ''')
    def dump_stamps(slot0, regs_):
        A('s_waitcnt vmcnt(0) lgkmcnt(0)')
        A('s_mov_b64 exec, 1')
        A('s_lshl_b32 s60, s2, 9')
        A(f's_add_u32 s60, s60, {STAMPS}')
        A('v_mov_b32 v1, s60')
        for k, r in enumerate(regs_):
            A(f'v_mov_b32 v2, s{r}')
            A(f'v_mov_b32 v3, s{r+1}')
            A(f'buffer_store_dwordx2 v[2:3], v1, s[40:43], 0 offen offset:{8*(slot0+k)}')
    WSN = 0x400000 if stamps else WS_END
    Z = lambda n: 0 if (now is True or (now == 'small' and n in (448*3584, 448*8192) and not ZW[0]) or (now == 'W' and ZW[0]) or (now == 'wq' and n == 448*8192 and not ZW[0])) else n
    ZW = [False]
    hdr = open('cdna_kernels/%s.s.ref' % NAME).read().split('; Override launch geometry')[0]
    top = hdr + f'; @launch grid=(256,1,1) block=(576,1,1) lds={LDS_TOTAL}\n'
    A('.amdgcn_target "amdgcn-amd-amdhsa--gfx950"')
    A('.text')
    for ln in DOC.strip().split('\n'): A(ln)
    A(f'.globl {NAME}_kernel')
    A('.p2align 8')
    A(f'.type {NAME}_kernel,@function')
    A(f'{NAME}_kernel:')
    if sync:
        A('''
        s_memrealtime s[4:5]
        s_waitcnt lgkmcnt(0)
        s_add_u32 s6, s4, 4096+600
        s_and_b32 s6, s6, -4096
        s_load_dwordx2 s[8:9], s[0:1], 88
        s_lshl_b32 s7, s2, 3
        s_add_u32 s7, s7, 0x380000
        v_mov_b32 v2, s4
        v_mov_b32 v3, s6
        v_mov_b32 v1, s7
        s_waitcnt lgkmcnt(0)
        global_store_dwordx2 v1, v[2:3], s[8:9] sc1
        s_waitcnt vmcnt(0)
        ''')
        if rtm:
            A('''
            s_load_dwordx2 s[8:9], s[0:1], 80
            v_readfirstlane_b32 s3, v0
            s_waitcnt lgkmcnt(0)
            s_load_dwordx16 s[84:99], s[8:9], 4096
            s_lshr_b32 s3, s3, 6
            s_and_b32 s3, s3, 7
            s_and_b32 s7, s2, 0x38
            s_or_b32 s3, s3, s7
            s_and_b32 s7, s2, 7
            s_lshl_b32 s7, s7, 6
            s_or_b32 s3, s3, s7
            s_lshr_b32 s7, s2, 6
            s_lshl_b32 s7, s7, 9
            s_or_b32 s3, s3, s7
            s_mov_b32 s68, 0
            s_waitcnt lgkmcnt(0)
            ''')
            for k in range(11):
                A(f's_bitcmp1_b32 s3, {k}\ns_cselect_b32 s7, s{84+k}, 0\ns_xor_b32 s68, s68, s7')
            A('s_xor_b32 s69, s68, s95\ns_xor_b32 s70, s68, s96\ns_xor_b32 s71, s69, s96')
            for k in range(4): A(f's_xor_b32 s{72+k}, s{68+k}, s97')
        A('''
        L_sync:
        s_memrealtime s[4:5]
        s_waitcnt lgkmcnt(0)
        s_sub_u32 s4, s4, s6
        s_cmp_lt_i32 s4, 0
        s_cbranch_scc1 L_sync
        s_branch L_go
        .p2align 10
        L_go:
        ''')
    if perm == 1:
        A('s_cmpk_ge_u32 s2, 256\ns_cbranch_scc1 L_end\ns_lshr_b32 s3, s2, 3\ns_and_b32 s3, s3, 7\ns_xor_b32 s2, s2, s3')
    if perm == 2:
        A('s_and_b32 s3, s2, -2\ns_cmp_eq_u32 s3, 74\ns_cselect_b32 s3, 1, 0\ns_xor_b32 s2, s2, s3')
    if padat == 'he': A('s_memrealtime s[100:101]')
    stamp(0)
    def msk(bits): return sum(1 << x for x in bits)
    def tmask(i, half):
        if not lin: return i*524288 + half*4096
        t = [msk(x) for x in lin['t']]
        return (t[0] if half else 0) ^ (t[1] if i & 1 else 0) ^ (t[2] if i & 2 else 0)
    lincode = ''
    if xs == 'rev':
        xs = None
        if not (lin or bent): lincode = 's_brev_b32 s62, s5\ns_lshr_b32 s62, s62, 10\ns_and_b32 s62, s62, 0x180000\ns_or_b32 s58, s58, s62\n'
    if hsw == 1: lincode += 's_lshl_b32 s62, s66, 11\ns_lshl_b32 s63, s66, 9\ns_xor_b32 s62, s62, s63\ns_and_b32 s62, s62, 0x1000\ns_or_b32 s58, s58, s62\n'
    if hsw == 2: lincode += 's_lshl_b32 s62, s66, 11\ns_and_b32 s62, s62, 0x1000\ns_or_b32 s58, s58, s62\n'
    if lin:
        xs = None
        lincode = 's_mov_b32 s58, 0\n'
        for key, reg in (('w', 's3'), ('j', 's5'), ('h', 's4'), ('b', 's6')):
            for bit, m in enumerate(lin.get(key, [])):
                if m: lincode += f's_bitcmp1_b32 {reg}, {bit}\ns_cselect_b32 s62, {msk(m)}, 0\ns_xor_b32 s58, s58, s62\n'
    if bent:
        xs = None
        def gmul(a, b):
            r = 0
            for k in range(3):
                if b >> k & 1: r ^= a << k
            for k in (4, 3):
                if r >> k & 1: r ^= 0xb << (k - 3)
            return r
        for k, bit in enumerate(bent):
            if bit is None: continue
            m = sum((gmul(i >> 3, i & 7) >> k & 1) << i for i in range(64))
            lincode += f's_mov_b32 s76, {m & 0xffffffff}\ns_mov_b32 s77, {m >> 32}\ns_bitcmp1_b64 s[76:77], s66\ns_cselect_b32 s62, {1 << bit}, 0\ns_xor_b32 s58, s58, s62\n'
    vm = VM(A)
    vD = [4, 5, 6, 7]; vKA = [8, 9, 10, 11]; vVA = list(range(12, 20)); vTAG = 20
    KfA, KfB, KfC, Sx, Pk, Oa = 32, 64, 96, 128, 144, 152
    vCH, vR8 = 30, 31
    KS, VS = 's[8:11]', 's[12:15]'
    def issue(name, slot, halves=(0, 1)):
        srd = KS if name[0] == 'K' else VS
        i = kord[int(name[1]) ^ (vx if name[0] == 'V' else 0)]
        for half in halves:
            first = (name == 'K0' and half == 0)
            hn = name + 'ab'[half]
            if gov and hn in govh:
                A(f'ds_read_b32 v1, v26 offset:{THR-MISC}\ns_waitcnt lgkmcnt(0)\nv_cmp_lt_u32 vcc, {govh.index(hn)}, v1')
            if not first:
                A(f's_xor_b32 m0, {"s74" if hs else "s59"}, {slot*8192 + half*4096}')
                A(f's_mov_b32 s60, s{68+2*i+half}' if rtm else f's_xor_b32 s60, s58, {tmask(i, half)}')
            for q in range(4):
                if q in (0, 2) and (hn in fh or (gov and hn in govh)):
                    A(f's_cbranch_vccz L_f{name}{half}{q}\ns_waitcnt vmcnt(1)\nL_f{name}{half}{q}:')
                A(f'buffer_load_dwordx4 v{vD[q]}, {srd}, {("s68" if rtm else "s58") if first else "s60"} offen offset:{q*1024}{kvnt} lds')
            vm.add(name, 4)
    def ha(name, slot, t=None):
        vm.upto(thr if t is None else t); issue(name, slot, (0,))
    def hb(name, slot, t=None):
        vm.upto(thr if t is None else t); issue(name, slot, (1,))
    A(f'''
    s_load_dwordx16 s[16:31], s[0:1], 0      ; x K V wq wo Bx wg wu
    s_load_dwordx8 s[32:39], s[0:1], 64
    v_readfirstlane_b32 s3, v0
    s_cmpk_ge_u32 s2, 256
    s_cbranch_scc1 L_end
    v_and_b32 v0, 63, v0                     ; lane
    s_lshr_b32 s3, s3, 6                     ; wave
    s_and_b32 s4, s2, 7                      ; hkv
    s_bfe_u32 s5, s2, 0x30003                ; j
    s_lshr_b32 s6, s2, 6                     ; b
    s_lshl3_add_u32 s56, s6, s4
    s_cmp_eq_u32 s3, 8
    s_cbranch_scc1 L_helper
    v_lshrrev_b32 v1, 4, v0
    v_and_b32 v1, 2, v1
    v_xor_b32 v1, v1, v0
    v_lshlrev_b32 v4, 4, v1
    v_xor_b32 v5, 64, v4
    v_xor_b32 v6, 0x80, v4
    v_xor_b32 v7, 64, v6
    s_lshl3_add_u32 s66, s5, s3              ; 8j + w
    s_lshl_b32 s57, s56, 23
    s_add_u32 s57, s57, {12288*512}
    s_lshl_b32 s59, s3, 14
    s_lshl_b32 s58, s66, 13
    {lincode}
    {f's_bfe_u32 s62, {xs[0]}, {0x20000 + xs[1]}' if xs else ''}
    {'s_lshl_b32 s62, s62, 19' if xs else ''}
    {'s_or_b32 s58, s58, s62' if xs else ''}
    {f's_bfe_u32 s62, {hs[0]}, {0x10000 + hs[1]}' if hs else ''}
    {'s_lshl_b32 s62, s62, 12' if hs else ''}
    {'s_or_b32 s58, s58, s62' if hs else ''}
    {'s_or_b32 s74, s59, s62' if hs else ''}
    s_mov_b32 s10, 0x200000
    s_mov_b32 s11, 0x20000
    ''')
    saddr = f'''
    v_bfe_u32 v2, v0, 4, 2
    v_lshlrev_b32 v2, 1, v2
    v_and_b32 v3, 7, v0
    v_xor_b32 v2, v2, v3
    v_lshlrev_b32 v{vCH}, 4, v2
    v_lshrrev_b32 v{vR8}, 3, v0
    s_movk_i32 s61, 3584
    s_bfe_u32 s65, s2, 0x30004               ; wq role: 64-column block
    s_lshl3_add_u32 s65, s4, s65
    s_bfe_u32 s67, s2, 0x20005
    s_lshl2_add_u32 s67, s4, s67
    s_and_b32 s63, s5, 3                     ; K quarter
    s_and_b32 s64, s5, 1
    s_lshl_b32 s64, s64, 1
    s_cmp_lt_u32 s4, 7
    s_cselect_b32 s46, {Z(448*3584)}, 0
    s_cselect_b32 s67, s67, 0
    s_cmp_lt_u32 s6, 2                       ; SCC: wq role
    s_cselect_b32 s46, {Z(448*8192)}, s46
    s_cselect_b32 s61, 0x2000, s61
    s_cselect_b32 s65, s65, s67
    s_cselect_b32 s63, s64, s63
    s_cselect_b32 s67, {112*8192}, 0
    s_cselect_b64 vcc, -1, 0
    s_mul_i32 s63, s63, 7
    s_add_u32 s63, s63, s3
    s_lshl_b32 s63, s63, 4
    s_mul_i32 s63, s63, s61
    s_lshl_b32 s65, s65, 7
    s_add_u32 s63, s63, s65
    s_add_u32 s67, s67, s63
    v_mad_u32_u24 v21, v{vR8}, s61, v{vCH}
    s_lshl_b32 s61, s61, 3
    s_lshl_b32 s62, s3, 11
    s_mov_b32 s47, s11
    s_max_u32 s7, s4, s5
    '''
    if not kfirst: A(saddr)
    A(f'''
    s_mov_b32 m0, {'s74' if hs else 's59'}
    {'s_memrealtime s[100:101]' if padat == 'sa' else ''}
    s_waitcnt lgkmcnt(0)
    {'s_memrealtime s[100:101]' if padat == 'sb' else ''}
    s_add_u32 s8, s18, s57
    s_addc_u32 s9, s19, 0
    ''')
    if kfirst:
        issue('K0', 0, (0, 1) if kfirst == 2 else (0,))
        A(saddr)
    A(f'''
    v_mov_b32 v28, 1
    s_cmp_eq_u32 s3, 7
    s_cbranch_scc1 L_ldx
    s_cmp_lg_u64 vcc, 0
    s_cselect_b64 s[44:45], s[22:23], s[28:29]
    s_cselect_b64 s[48:49], s[22:23], s[30:31]
    s_add_u32 m0, s62, {AREA}
    s_mov_b64 s[50:51], s[46:47]
    buffer_load_dwordx4 v21, s[44:47], s63 offen{snt} lds
    s_add_u32 m0, s62, {AREA+14336}
    s_add_u32 s63, s63, s61
    buffer_load_dwordx4 v21, s[48:51], s67 offen{snt} lds
    s_add_u32 m0, s62, {AREA+1024}
    s_add_u32 s67, s67, s61
    buffer_load_dwordx4 v21, s[44:47], s63 offen{snt} lds
    s_add_u32 m0, s62, {AREA+14336+1024}
    buffer_load_dwordx4 v21, s[48:51], s67 offen{snt} lds
    s_branch L_ldk
    L_ldx:
    v_lshlrev_b32 v21, 4, v0
    s_mov_b32 m0, {XN}
    s_mov_b64 s[44:45], s[16:17]
    s_movk_i32 s46, 3584
    buffer_load_dwordx4 v21, s[44:47], 0 offen lds
    buffer_load_dwordx4 v21, s[44:47], 0 offen offset:1024 lds
    buffer_load_dwordx4 v21, s[44:47], 0 offen offset:2048 lds
    s_mov_b32 exec_hi, 0
    buffer_load_dwordx4 v21, s[44:47], 0 offen offset:3072 lds
    s_mov_b32 exec_hi, -1
    L_ldk:
    ''')
    vm.add('small', 4)
    if not kfirst:
        A(f's_mov_b32 m0, {"s74" if hs else "s59"}')
        issue('K0', 0, (0,))
    stamp(1)
    A('s_branch L_stream')

    XR = 8
    XF = 32
    RA = 156
    WF = 64
    AC = 132
    PB = 64
    nstore = [0]
    def store2(ins):
        n = nstore[0]; nstore[0] += 1
        A(f's_cmp_eq_u32 s58, 0\ns_cbranch_scc1 L_ss{n}')
        for i in ins: A(i)
        A(f's_branch L_sd{n}\nL_ss{n}:')
        for i in ins: A(i + ' sc1')
        A(f'L_sd{n}:')
    def cntwait(off, lab, sl, n=8):
        A(f'''
        s_mov_b32 s63, {SPIN*8}
        {lab}:
        ds_read_b32 v9, v31 offset:{off-MISC}
        s_sub_u32 s63, s63, 1
        s_waitcnt lgkmcnt(0)
        s_cbranch_scc1 {lab}_done
        v_cmp_le_u32 vcc, {n}, v9
        s_cbranch_vccnz {lab}_done
        {f's_sleep {sl}' if sl else ''}
        s_branch {lab}
        {lab}_done:
        ''')
    A(f'''
    L_helper:
    s_setprio 3
    s_getreg_b32 s57, hwreg(HW_REG_XCC_ID, 0, 7)
    s_lshl_b32 s66, s4, 5
    s_lshr_b32 s61, s2, 3
    s_add_u32 s61, s61, s66
    s_add_u32 s57, s57, 1
    v_mov_b32 v9, s61
    v_mov_b32 v10, s57
    v_mov_b32 v31, {MISC}
    v_lshl_add_u32 v1, v0, 2, v31
    v_mov_b32 v2, 0
    ds_write_b32 v1, v2                      ; flags = 0
    s_mov_b64 exec, 1
    s_waitcnt lgkmcnt(0)
    {'' if noxc else 'global_store_byte v9, v10, s[36:37]      ; my XCD, for the workgroups that share my heads'}
    s_load_dword s62, s[38:39], {EPOCH}
    s_mov_b64 exec, -1
    ''')
    if tlb:
        A(f'''
        s_lshl_b32 s60, s56, 23
        s_add_u32 s60, s60, {12288*512}
        s_load_dword s76, s[20:21], s60          ; touch the pages used later: V window, wo, W_down, out
        s_add_u32 s60, s60, {(1<<21) - 64}
        s_load_dword s77, s[20:21], s60
        s_mul_i32 s60, s4, {512*896}
        s_load_dword s78, s[24:25], s60
        s_add_u32 s60, s60, {512*896 - 64}
        s_load_dword s79, s[24:25], s60
        s_load_dword s80, s[32:33], 0
        s_mov_b32 s60, {1792*896 - 64}
        s_load_dword s81, s[32:33], s60
        s_load_dword s82, s[34:35], 0
        ''')
    if stamps: A('v_mov_b32 v164, 0\nv_mov_b32 v165, 0\ns_memtime s[94:95]\ns_memrealtime s[96:97]')
    A(f'''
    s_mov_b64 s[40:41], s[38:39]
    s_mov_b32 s42, {WSN}
    s_mov_b32 s43, 0x20000
    s_mul_i32 s67, s56, 12288
    s_add_u32 s67, s67, {QP}
    s_mul_i32 s64, s6, 7
    s_add_u32 s64, s64, s5                   ; 7b + j
    s_lshl_b32 s7, s56, 9
    s_add_u32 s7, s7, {ST}
    ''')
    if hpre:
        A('v_lshlrev_b32 v8, 7, v0')
        if hpre in (2, 3):
            A(f'''
            s_cmp_lg_u32 s5, 7
            s_cbranch_scc1 L_nopre
            s_mov_b64 exec, 3
            buffer_load_dword v166, v8, s[40:43], s7 offen{pref}
            L_nopre:
            ''')
        A('s_mov_b64 exec, -1')
    XB = 128
    A(f'''
    v_lshrrev_b32 v1, 4, v0                  ; g
    v_and_b32 v2, 15, v0
    v_and_b32 v3, 3, v0
    v_mul_u32_u24 v3, 896, v3
    v_add_u32 v3, {XN}, v3                   ; row of batch l%4
    v_lshl_add_u32 v4, v1, 3, v3             ; + g*8
    v_and_b32 v5, 60, v0
    v_lshl_add_u32 v3, v5, 1, v3             ; + (l/4)*8
    s_and_b32 s60, s5, 3
    s_and_b32 s61, s5, 1
    s_lshl_b32 s65, s61, 11                  ; wq role: half * 2048
    s_bfe_u32 s59, s2, 0x30004
    s_lshl_b32 s59, s59, 8
    s_add_u32 s65, s65, s59                  ;   + block * 256
    s_lshl_b32 s63, s60, 11
    s_bfe_u32 s59, s2, 0x20005
    s_lshl_b32 s59, s59, 9
    s_add_u32 s63, s63, s59                  ;   + block * 512
    s_add_u32 s63, s63, 4096
    s_lshl_b32 s61, s61, 1
    s_cmp_lt_u32 s6, 2
    s_cselect_b32 s60, s61, s60
    s_cselect_b32 s61, 224, 0
    s_cselect_b32 s65, s65, s63
    s_mul_i32 s60, s60, 224
    v_add_u32 v4, s60, v4
    v_add_u32 v5, s61, v4
    s_mul_i32 s60, s4, 12288
    s_add_u32 s65, s65, s60
    s_add_u32 s65, s65, {QP}
    v_lshrrev_b32 v7, 2, v0
    v_lshlrev_b32 v7, 7, v7
    v_bfe_u32 v6, v0, 3, 2
    v_lshl_add_u32 v7, v6, 5, v7
    v_and_b32 v6, 3, v0
    v_lshl_add_u32 v7, v6, 3, v7
    v_add_u32 v156, {AREA}, v7
    v_xor_b32 v157, 32, v156
    v_xor_b32 v158, 64, v156
    v_xor_b32 v159, 0x60, v156
    s_mov_b64 s[8:9], 0xffff
    s_lshl_b64 s[10:11], s[8:9], 16
    s_lshl_b64 s[12:13], s[8:9], 32
    v_mov_b32 v30, 1
    v_lshlrev_b32 v29, 3, v0                 ; lane*8
    v_lshlrev_b32 v7, 4, v0                  ; lane*16
    v_lshlrev_b32 v6, 2, v0                  ; lane*4
    s_min_u32 s60, s64, 27
    s_lshl_b32 s60, s60, 7
    v_lshl_add_u32 v162, v0, 1, s60
    v_add_u32 v163, {XN}, v162
    v_and_b32 v160, 7, v0
    v_lshlrev_b32 v160, 2, v160
    v_add_u32 v160, s66, v160
    s_mul_i32 s46, s57, 0x01010101
    {'v_mov_b32 v161, s46' if noxc else 'global_load_dword v161, v160, s[36:37] sc1'}
    s_barrier
    ''')
    hstamp(0)
    cntwait(CNT0, 'L_w0', 1)
    hstamp(1)
    def wreads(s_):
        for hs_ in range(7):
            for T in range(4):
                d = WF + 14*T + 2*hs_
                A(f'ds_read_b64_tr_b16 v[{d}:{d+1}], v{156+T} offset:{s_*14336 + hs_*2048}')
    for u in range(7):
        A(f'ds_read_b64 v[{XR+2*u}:{XR+2*u+1}], v3 offset:{128*u}')
    A('ds_read_u16 v163, v163                   ; residual x')
    wreads(0)
    A(f'''
    s_mul_i32 s62, s62, 1664525
    s_add_u32 s62, s62, 1013904223
    v_mov_b32 v28, s62
    s_movk_i32 s47, 0xff
    s_waitcnt lgkmcnt(15)
    ''')
    for u in range(14):
        A(f'v_lshlrev_b32 v{XF+2*u}, 16, v{XR+u}')
        A(f'v_and_b32 v{XF+2*u+1}, 0xffff0000, v{XR+u}')
    def allsum(r):
        A(f'''
        v_add_f32_dpp v{r}, v{r}, v{r} row_ror:4 row_mask:0xf bank_mask:0xf
        v_add_f32_dpp v{r}, v{r}, v{r} row_ror:8 row_mask:0xf bank_mask:0xf
        v_mov_b32 v23, v{r}
        v_permlane16_swap_b32 v{r}, v23
        v_add_f32 v{r}, v{r}, v23
        v_mov_b32 v23, v{r}
        v_permlane32_swap_b32 v{r}, v23
        v_add_f32 v{r}, v{r}, v23
        ''')
    A(f'v_pk_add_f32 v[22:23], v[{XF}:{XF+1}], v[{XF+2}:{XF+3}]')
    A(f'v_pk_add_f32 v[26:27], v[{XF+4}:{XF+5}], v[{XF+6}:{XF+7}]')
    for u in range(4, 14, 2):
        A(f'v_pk_add_f32 v[22:23], v[22:23], v[{XF+2*u}:{XF+2*u+1}]')
        A(f'v_pk_add_f32 v[26:27], v[26:27], v[{XF+2*u+2}:{XF+2*u+3}]')
    A('v_pk_add_f32 v[22:23], v[22:23], v[26:27]')
    A('v_add_f32 v22, v22, v23')
    allsum(22)
    A(f'''
    v_mul_f32 v22, {f32(1/448)}, v22           ; mean
    v_cvt_pk_bf16_f32 v24, v22, v22
    v_and_b32 v24, 0xffff0000, v24           ; bf16(mean)
    v_sub_f32 v22, v22, v24
    ''')
    for u in range(14):
        A(f'v_pk_add_f32 v[{XF+2*u}:{XF+2*u+1}], v[{XF+2*u}:{XF+2*u+1}], v[24:25] op_sel_hi:[1,0] neg_lo:[0,1] neg_hi:[0,1]')
    A(f'v_pk_mul_f32 v[26:27], v[{XF}:{XF+1}], v[{XF}:{XF+1}]')
    A(f'v_pk_mul_f32 v[24:25], v[{XF+2}:{XF+3}], v[{XF+2}:{XF+3}]')
    for u in range(2, 14, 2):
        A(f'v_pk_fma_f32 v[26:27], v[{XF+2*u}:{XF+2*u+1}], v[{XF+2*u}:{XF+2*u+1}], v[26:27]')
        A(f'v_pk_fma_f32 v[24:25], v[{XF+2*u+2}:{XF+2*u+3}], v[{XF+2*u+2}:{XF+2*u+3}], v[24:25]')
    A('v_pk_add_f32 v[26:27], v[26:27], v[24:25]')
    A('v_add_f32 v26, v26, v27')
    for u in range(14):
        A(f'v_cvt_pk_bf16_f32 v{XR+u}, v{XF+2*u}, v{XF+2*u+1}')
    allsum(26)
    A(f'''
    v_mul_f32 v26, {f32(1/448)}, v26
    v_fma_f32 v26, -v22, v22, v26            ; var
    v_max_f32 v26, 0, v26
    v_cvt_pk_bf16_f32 v26, v26, v26
    v_and_b32 v26, 0xffff0000, v26           ; bf16(var)
    v_add_f32 v26, {f32(1e-5)}, v26
    v_cvt_pk_bf16_f32 v26, v26, v26
    v_and_b32 v26, 0xffff0000, v26
    v_sqrt_f32 v26, v26
    v_cvt_pk_bf16_f32 v26, v26, v26
    v_and_b32 v26, 0xffff0000, v26
    v_rcp_f32 v26, v26
    ''')
    for u in range(14):
        A(f'v_lshlrev_b32 v{XF+2*u}, 16, v{XR+u}')
        A(f'v_and_b32 v{XF+2*u+1}, 0xffff0000, v{XR+u}')
    for u in range(14):
        A(f'v_pk_mul_f32 v[{XF+2*u}:{XF+2*u+1}], v[{XF+2*u}:{XF+2*u+1}], v[26:27] op_sel_hi:[1,0]')
    for u in range(14):
        A(f'v_cvt_pk_bf16_f32 v{XR+u}, v{XF+2*u}, v{XF+2*u+1}')
    for u in range(7):
        A(f'ds_write_b64 v3, v[{XR+2*u}:{XR+2*u+1}] offset:{128*u}')
    for s_ in range(2):
        for ks in range(3):
            A(f'ds_read2_b64 v[{XB+14*s_+4*ks}:{XB+14*s_+4*ks+3}], v{4+s_} offset0:{8*ks} offset1:{8*ks+4}')
        A(f'ds_read_b64 v[{XB+14*s_+12}:{XB+14*s_+13}], v{4+s_} offset:192')
    def mm(s_):
        for ks in range(4):
            for T in range(4):
                acc = 32 + 16*s_ + 4*T
                xa = XB + 14*s_ + 4*ks; bb = WF + 14*T + 4*ks
                c = '0' if ks == 0 else f'v[{acc}:{acc+3}]'
                if ks < 3: A(f'v_mfma_f32_16x16x32_bf16 v[{acc}:{acc+3}], v[{xa}:{xa+3}], v[{bb}:{bb+3}], {c}')
                else: A(f'v_mfma_f32_16x16x16_bf16 v[{acc}:{acc+3}], v[{xa}:{xa+1}], v[{bb}:{bb+1}], {c}')
    hstamp(2)
    A('s_waitcnt lgkmcnt(0)')
    mm(0)
    wreads(1)
    A(f'''
    s_mov_b32 s58, {0 if forceslow else 1}
    s_movk_i32 s63, {xtries}
    L_xc:
    s_waitcnt vmcnt(0)
    v_cmp_ne_u32 vcc, s46, v161
    s_cbranch_vccz L_xc_done
    global_load_dword v161, v160, s[36:37] sc1
    s_sub_u32 s63, s63, 1
    s_cbranch_scc0 L_xc
    s_mov_b32 s58, 0
    L_xc_done:
    s_waitcnt lgkmcnt(0)
    ''')
    mm(1)
    A(f'''
    s_add_u32 s60, s65, {8*12288}
    s_add_u32 s61, s65, {16*12288}
    s_add_u32 s63, s65, {24*12288}
    v_lshlrev_b32 v163, 16, v163
    v_and_b32 v16, 24, v29
    v_lshrrev_b32 v16, v16, v28
    v_and_b32 v17, 16, v7
    v_lshrrev_b32 v17, v17, v28
    v_lshrrev_b32 v18, 8, v17
    {'v_mov_b32 v167, v16' if p2t else ''}
    s_lshr_b32 s48, s62, 8
    s_lshr_b32 s49, s62, 16
    s_lshr_b32 s50, s62, 24
    s_movk_i32 s51, 0xff00
    ''')
    for s_ in range(2):
        a_ = 32 + 16*s_
        for r in range(4):
            A(f'v_cndmask_b32 v{a_+12+r}, v{a_+12+r}, v{a_+8+r}, s[12:13]')
        for r in range(4):
            A(f'v_cndmask_b32 v{a_+12+r}, v{a_+12+r}, v{a_+4+r}, s[10:11]')
        for r in range(4):
            A(f'v_cndmask_b32 v{8+2*r+s_}, v{a_+12+r}, v{a_+r}, s[8:9]')
    so4 = ('s65', 's60', 's61', 's63')
    A('s_cmp_lt_u32 s6, 2')
    A('s_cbranch_scc1 L_pubq')
    for r in range(8):
        A(f'v_bfi_b32 v{8+r}, s47, v{17 + (r & 1)}, v{8+r}')
    store2([f'buffer_store_dwordx2 v[{8+2*r}:{9+2*r}], v29, s[40:43], {so4[r]} offen' for r in range(4)])
    A('s_branch L_pubd')
    A('L_pubq:')
    for r in range(4):
        A(f'v_add_f32 v{8+2*r}, v{8+2*r}, v{9+2*r}')
    for r in range(4):
        A(f'v_bfi_b32 v{8+2*r}, s47, v16, v{8+2*r}')
    store2([f'buffer_store_dword v{8+2*r}, v6, s[40:43], {so4[r]} offen' for r in range(4)])
    A('L_pubd:')
    if qclean:
        for r in range(8): A(f'v_mov_b32 v{120+r}, v{8+r}')
        A('s_mov_b32 s76, s65\ns_mov_b32 s77, s60\ns_mov_b32 s78, s61\ns_mov_b32 s79, s63')
    hstamp(3)
    def gather(lab, n, soffs):
        f_ = first[0 if lab == 'L_gq' else 1]
        A(f's_mov_b32 s63, {SPIN}')
        if f_ == 2: A('s_waitcnt vmcnt(0)')
        if f_ != 1: A(f's_branch {lab}_go')
        A(f'{lab}:\ns_sleep {psleep}\n{lab}_go:')
        for k in range(n):
            A(f'buffer_load_dwordx4 v[{32+4*k}:{35+4*k}], v7, s[40:43], {soffs[k>>2]} offen offset:{(k&3)*1024}{pollf}')
        A(f'''
        s_sub_u32 s63, s63, 1
        s_waitcnt vmcnt(0)
        s_cbranch_scc1 {lab}_done
        v_xor_b32 v24, s62, v32
        v_xor_b32 v25, s48, v33
        ''')
        for r in range(34, 32 + 4*n, 2):
            A(f'v_bitop3_b32 v24, v{r}, {"s49" if r & 2 else "s62"}, v24 bitop3:0xbe')
            A(f'v_bitop3_b32 v25, v{r+1}, {"s50" if r & 2 else "s48"}, v25 bitop3:0xbe')
        A(f'''
        v_or_b32 v24, v24, v25
        v_and_b32 v24, s47, v24
        v_cmp_ne_u32 vcc, 0, v24
        s_cbranch_vccnz {lab}
        {lab}_done:
        ''')
        for r in range(32, 32 + 4*n):
            A(f'v_and_b32 v{r}, s51, v{r}')
    gather('L_gq', 4, ['s67'])
    A(f'''
    v_pk_add_f32 v[32:33], v[32:33], v[40:41]
    v_pk_add_f32 v[34:35], v[34:35], v[42:43]
    v_pk_add_f32 v[36:37], v[36:37], v[44:45]
    v_pk_add_f32 v[38:39], v[38:39], v[46:47]
    v_add_u32 v24, {QL}, v29
    v_cvt_pk_bf16_f32 v8, v32, v33
    v_cvt_pk_bf16_f32 v9, v34, v35
    v_cvt_pk_bf16_f32 v10, v36, v37
    v_cvt_pk_bf16_f32 v11, v38, v39
    ds_write_b64 v24, v[8:9]
    ds_write_b64 v24, v[10:11] offset:512
    ds_write_b32 v31, v30 offset:{FLQ-MISC}
    v_mov_b32 v27, v28
    ''')
    hstamp(6)
    A('s_add_u32 s60, s67, 4096\ns_add_u32 s61, s67, 8192')
    gather('L_gh', 8, ['s60', 's61'])
    for k in range(4):
        A(f'v_pk_add_f32 v[{32+2*k}:{33+2*k}], v[{32+2*k}:{33+2*k}], v[{40+2*k}:{41+2*k}]')
        A(f'v_pk_add_f32 v[{48+2*k}:{49+2*k}], v[{48+2*k}:{49+2*k}], v[{56+2*k}:{57+2*k}]')
    for k in range(4):
        A(f'v_pk_add_f32 v[{32+2*k}:{33+2*k}], v[{32+2*k}:{33+2*k}], v[{48+2*k}:{49+2*k}]')
    for k in range(4):
        A(f'v_cvt_pk_bf16_f32 v{33+2*k}, v{32+2*k}, v{33+2*k}')
        A(f'v_lshlrev_b32 v{32+2*k}, 16, v{33+2*k}')
        A(f'v_and_b32 v{33+2*k}, 0xffff0000, v{33+2*k}')
        A(f'v_max_f32 v{32+2*k}, 0, v{32+2*k}')
        A(f'v_mul_f32 v{32+2*k}, v{32+2*k}, v{33+2*k}')
    A(f'''
    v_cvt_pk_bf16_f32 v8, v32, v34
    v_cvt_pk_bf16_f32 v9, v36, v38
    v_add_u32 v24, {HL}, v6
    ds_write2st64_b32 v24, v8, v9 offset0:0 offset1:1
    ''')
    hstamp(5)
    if gov:
        A(f'''
        s_lshr_b32 s60, s2, 3
        s_lshl_b32 s60, s60, 7
        s_add_u32 s60, s60, {TK2}
        s_add_u32 s32, s38, s60
        s_addc_u32 s33, s39, 0
        v_mov_b32 v56, s60
        v_not_b32 v57, v28
        s_mov_b64 exec, 1
        buffer_store_byte v57, v56, s[40:43], s4 offen sc1
        s_mov_b64 exec, -1
        s_lshl_b32 s60, s4, 3
        s_lshl_b64 s[30:31], 0xff, s60
        ''')
    A(f'''
    v_mov_b32 v32, -1
    v_mov_b32 v33, -1
    v_mov_b32 v34, -1
    v_mov_b32 v35, -1
    s_cmp_eq_u32 s5, 7
    s_cbranch_scc1 L_notk
    s_lshl3_add_u32 s60, s64, s4
    s_lshl_b32 s60, s60, 8
    s_add_u32 s60, s60, {P2}
    {'buffer_store_dword v32, v6, s[40:43], s60 offen sc1        ; my output partial := empty' if not p2t else ('buffer_load_dword v166, v6, s[40:43], s60 offen' if p2t == 1 else '')}
    s_cmp_lg_u32 s4, 0
    s_cbranch_scc1 L_notk
    s_lshl_b32 s60, s64, 7
    s_add_u32 s60, s60, {TK}
    v_mov_b32 v26, 0
    s_mov_b64 exec, 1
    buffer_store_dwordx2 v[26:27], v6, s[40:43], s60 offen sc1
    s_mov_b64 exec, -1
    L_notk:
    s_lshl3_add_u32 s60, s56, s5
    s_lshl_b32 s60, s60, 10
    s_add_u32 s60, s60, {P1}
    ''')
    store2(['buffer_store_dwordx4 v[32:35], v7, s[40:43], s60 offen'])
    A('s_waitcnt vmcnt(0)')
    cntwait(CNT, 'L_wc', 4, govn if gov else 8)
    if gov:
        tbl = sum(n << (4*(k+1)) for k, n in enumerate(gov))
        A(f'''
        s_atomic_xor_x2 s[30:31], s[32:33], 0 glc
        s_and_b32 s60, s62, 0xff
        s_mul_i32 s26, s60, 0x01010101
        s_mov_b32 s27, s26
        s_mov_b32 s28, {tbl & 0xffffffff}
        s_mov_b32 s29, {tbl >> 32}
        s_waitcnt lgkmcnt(0)
        s_xor_b64 s[30:31], s[30:31], s[26:27]
        s_bcnt1_i32_b64 s60, s[30:31]
        s_lshr_b32 s60, s60, 3
        s_lshl_b32 s60, s60, 2
        s_lshr_b64 s[28:29], s[28:29], s60
        s_and_b32 s60, s28, 15
        v_mov_b32 v9, s60
        ds_write_b32 v31, v9 offset:{THR-MISC}
        ''')
        cntwait(CNT, 'L_wc2', 4)
    hstamp(7)
    A(f'''
    ; workgroup stats from the 8 waves (lane = h*8+w)
    v_lshlrev_b32 v8, 3, v2
    v_add_u32 v8, {STW}, v8
    ds_read_b64 v[4:5], v8
    s_lshl4_add_u32 s61, s5, s7
    v_mov_b32 v25, v28
    s_waitcnt lgkmcnt(0)
    v_max_f32_dpp v24, v4, v4 quad_perm:[1,0,3,2] row_mask:0xf bank_mask:0xf
    v_max_f32_dpp v24, v24, v24 quad_perm:[2,3,0,1] row_mask:0xf bank_mask:0xf
    v_max_f32_dpp v24, v24, v24 row_half_mirror row_mask:0xf bank_mask:0xf
    v_sub_f32 v26, v4, v24
    v_mul_f32 v26, {CEXP}, v26
    v_exp_f32 v26, v26
    v_mul_f32 v26, v26, v5
    v_add_f32_dpp v26, v26, v26 quad_perm:[1,0,3,2] row_mask:0xf bank_mask:0xf
    v_add_f32_dpp v26, v26, v26 quad_perm:[2,3,0,1] row_mask:0xf bank_mask:0xf
    v_add_f32_dpp v26, v26, v26 row_half_mirror row_mask:0xf bank_mask:0xf
    s_mov_b64 exec, 0x101
    ''')
    store2([f'buffer_store_dwordx4 v[24:27], v7, s[40:43], s61 offen'])
    A(f'''
    s_mov_b64 exec, 0xffff
    s_mov_b32 s63, {SPIN}
    {'' if first[2] else 's_branch L_polls_go'}
    L_polls:
    s_sleep {psleep}
    L_polls_go:
    buffer_load_dwordx4 v[16:19], v7, s[40:43], s7 offen{pollf}
    s_sub_u32 s63, s63, 1
    s_waitcnt vmcnt(0)
    s_cbranch_scc1 L_polls_done
    v_min3_u32 v10, v17, v19, v28
    v_max3_u32 v11, v17, v19, v28
    v_cmp_ne_u32 vcc, v10, v11
    s_cbranch_vccnz L_polls
    L_polls_done:
    ''')
    hstamp(8)
    A(f'''
    v_max_f32_dpp v10, v16, v16 quad_perm:[1,0,3,2] row_mask:0xf bank_mask:0xf
    v_max_f32_dpp v10, v10, v10 quad_perm:[2,3,0,1] row_mask:0xf bank_mask:0xf
    v_max_f32_dpp v10, v10, v10 row_half_mirror row_mask:0xf bank_mask:0xf
    v_sub_f32 v11, v16, v10
    v_sub_f32 v10, v4, v10
    v_mul_f32 v11, {CEXP}, v11
    v_mul_f32 v10, {CEXP}, v10
    v_exp_f32 v11, v11
    v_exp_f32 v10, v10
    v_mul_f32 v11, v11, v18
    v_add_f32_dpp v11, v11, v11 quad_perm:[1,0,3,2] row_mask:0xf bank_mask:0xf
    v_add_f32_dpp v11, v11, v11 quad_perm:[2,3,0,1] row_mask:0xf bank_mask:0xf
    v_add_f32_dpp v11, v11, v11 row_half_mirror row_mask:0xf bank_mask:0xf
    v_rcp_f32 v11, v11
    v_mul_f32 v10, v10, v11                  ; factor for (wave = lane&7, head = lane>>3)
    v_and_b32 v9, 56, v29
    v_lshrrev_b32 v8, 1, v0
    v_and_b32 v8, 4, v8
    v_add3_u32 v9, v9, v8, v31
    v_subrev_u32 v9, {MISC-FACW}, v9
    ds_write_b32 v9, v10
    s_mov_b64 exec, -1
    v_mov_b32 v24, 1
    v_mov_b32 v25, s58
    v_mov_b32 v26, v28
    ds_write_b128 v31, v[24:27] offset:{FLF-MISC}
    ''')
    if qclean:
        A('s_cmp_lt_u32 s6, 2\ns_cbranch_scc1 L_cq')
        for r in range(4): A(f'buffer_store_dwordx2 v[{120+2*r}:{121+2*r}], v29, s[40:43], s{76+r} offen sc1')
        A('s_branch L_cd\nL_cq:')
        for r in range(4): A(f'buffer_store_dword v{120+2*r}, v6, s[40:43], s{76+r} offen sc1')
        A('L_cd:')
    A(f'''
    s_cmp_eq_u32 s5, 7
    s_waitcnt lgkmcnt(0)
    {'' if early else 's_cbranch_scc1 ' + ('L_end' if pad else 'L_hdone')}
    ''')
    if dirty:
        A(f's_lshl_b32 s60, s2, 14\ns_add_u32 s60, s60, 0x400000\ns_mov_b32 s42, 0x1000000')
        for k in range(dirty):
            A(f'buffer_store_dwordx4 v[24:27], v7, s[40:43], s60 offen\ns_add_u32 s60, s60, 1024')
    if wb:
        A(f's_cmp_ge_u32 s2, {8*wb}\ns_cbranch_scc1 L_nowb\nbuffer_wbl2 sc1\ns_waitcnt vmcnt(0)\nL_nowb:')
    A(f'''
    v_mov_b32 v4, v162
    {'v_and_b32 v167, s47, v167' if p2t else ''}
    v_mov_b32 v5, v163
    s_mov_b64 s[52:53], s[34:35]
    s_movk_i32 s54, 3584
    s_mov_b32 s55, 0x20000
    s_lshl_b32 s60, s64, {11 if p2b else 12}
    s_add_u32 s60, s60, {P2}
    v_add_u32 v6, s60, {'v6' if p2b else 'v29'}
    v_lshlrev_b32 v7, 2, v0
    v_add_u32 v7, {YL}, v7
    ''')
    for i in range(1, 8):
        A(f's_xor_b32 s{18+i}, s4, {i}')
        A(f's_lshl_b32 s{18+i}, s{18+i}, {8 if p2b else 9}')
    A(f'''
    s_lshl_b32 s60, s56, 13
    s_add_u32 s60, s60, {P1 + 8192 - 128}
    v_lshl_add_u32 v57, v0, 3, s60           ; last line of the group's O hand-off
    s_lshl_b32 s60, s64, 7
    s_add_u32 s60, s60, {TK}
    s_add_u32 s32, s38, s60
    s_addc_u32 s33, s39, 0
    s_mov_b32 s63, {SPIN}
    L_tkw:
    s_load_dwordx2 s[28:29], s[32:33], 0 glc
    s_sub_u32 s63, s63, 1
    s_waitcnt lgkmcnt(0)
    s_cbranch_scc1 L_tkw_done
    s_cmp_eq_u32 s29, s62
    s_cbranch_scc1 L_tkw_done
    s_sleep {psleep}
    s_branch L_tkw
    L_tkw_done:
    s_mov_b32 s30, 1
    s_mov_b32 s63, {SPIN}
    s_mov_b64 exec, 0xffff
    s_barrier                               ; #4
    ''')
    hstamp(9)
    def trigpoll(done):
        A(f'''
        buffer_load_dword v61, v57, s[40:43], 0 offen sc1
        s_waitcnt vmcnt(0)
        v_cmp_eq_u32 vcc, -1, v61
        s_cbranch_vccz {done}
        ''')
    A('L_trig:')
    if peek:
        A('s_load_dword s28, s[32:33], 0 glc')
        for k in range(peek + 1): trigpoll('L_trig_done')
        A('s_waitcnt lgkmcnt(0)\ns_cmp_eq_u32 s28, 7\ns_cbranch_scc1 L_sure')
    else:
        trigpoll('L_trig_done')
    A(f'''
    s_sub_u32 s63, s63, 1
    s_cbranch_scc0 L_trig
    L_trig_done:
    s_atomic_add s30, s[32:33], 0 glc
    s_mov_b64 exec, -1
    L_b5:
    ''')
    hstamp(10)
    A(f'''
    s_barrier                               ; #5
    ds_read2st64_b32 v[48:49], v7 offset0:0 offset1:1
    ds_read2st64_b32 v[50:51], v7 offset0:2 offset1:3
    ds_read2st64_b32 v[52:53], v7 offset0:4 offset1:5
    ds_read2st64_b32 v[54:55], v7 offset0:6 offset1:7
    s_mov_b32 s63, {SPIN}
    s_waitcnt lgkmcnt(0)
    s_cmp_lt_u32 s30, 7
    s_cbranch_scc1 L_hdone
    ''')
    hstamp(13)
    A(f'''
    {'s_cmp_eq_u32 s30, 8' if peek else ''}
    {'s_cbranch_scc1 L_adds' if peek else ''}
    buffer_load_dword v34, v6, s[40:43], s19 offen sc1
    buffer_load_dword v36, v6, s[40:43], s20 offen sc1
    buffer_load_dword v38, v6, s[40:43], s21 offen sc1
    buffer_load_dword v40, v6, s[40:43], s22 offen sc1
    buffer_load_dword v42, v6, s[40:43], s23 offen sc1
    buffer_load_dword v44, v6, s[40:43], s24 offen sc1
    buffer_load_dword v46, v6, s[40:43], s25 offen sc1
    L_adds:
    v_add_f32 v48, v48, v49
    v_add_f32 v50, v50, v51
    v_add_f32 v52, v52, v53
    v_add_f32 v54, v54, v55
    v_add_f32 v48, v48, v50
    v_add_f32 v52, v52, v54
    v_add_f32 v26, v48, v52
    {'v_and_b32 v26, s51, v26' if p2t else ''}
    L_fchk:
    s_sub_u32 s63, s63, 1
    s_waitcnt vmcnt(0)
    s_cbranch_scc1 L_fsum
    ''')
    if p2t:
        for i in range(1, 8): A(f'v_xor_b32 v{32+2*i}, v167, v{32+2*i}')
        A('''
        v_or3_b32 v12, v34, v36, v38
        v_or3_b32 v13, v40, v42, v44
        v_or3_b32 v12, v12, v13, v46
        v_and_b32 v12, s47, v12
        v_cmp_ne_u32 vcc, 0, v12
        ''')
    else:
        A('''
        v_max3_u32 v12, v34, v36, v38
        v_max3_u32 v13, v40, v42, v44
        v_max3_u32 v12, v12, v13, v46
        v_cmp_eq_u32 vcc, -1, v12
        ''')
    A(f'''
    s_cbranch_vccnz L_fpoll
    L_fsum:
    v_add_f32 v34, v34, v26                  ; slots hkv^i: the tree is the same for every finisher
    v_add_f32 v36, v36, v38
    v_add_f32 v40, v40, v42
    v_add_f32 v44, v44, v46
    v_add_f32 v34, v34, v36
    v_add_f32 v40, v40, v44
    L_finish:
    v_add_f32 v34, v34, v40
    v_add_f32 v34, v34, v5
    v_cvt_pk_bf16_f32 v34, v34, v34
    buffer_store_short v34, v4, s[52:55], 0 offen{outf}
    ''')
    hstamp(11)
    if stamps and 14 in hl:
        A(f's_sub_u32 s60, {SPIN}, s63\ns_mul_i32 s60, s60, 100\ns_add_u32 s60, s68, s60\ns_addc_u32 s61, s69, 0\nv_writelane_b32 v164, s60, 14\nv_writelane_b32 v165, s61, 14')
    A(f'''
    s_cmp_lg_u32 s64, 21
    s_cbranch_scc1 L_hdone
    s_mov_b64 exec, 1
    v_mov_b32 v1, {EPOCH}
    buffer_store_dword v28, v1, s[40:43], 0 offen
    L_hdone:
    ''')
    if padat == 'hz': A('s_waitcnt vmcnt(0)\ns_memrealtime s[100:101]\ns_waitcnt lgkmcnt(0)')
    if pad and padat[0] == 'h': dopad('L_padh')
    if stamps:
        A('s_waitcnt vmcnt(0)')
        hstamp(12)
        A('''
        s_memtime s[92:93]
        s_waitcnt lgkmcnt(0)
        s_sub_u32 s92, s92, s94
        s_sub_u32 s93, s100, s96
        v_cvt_f32_u32 v1, s92
        v_cvt_f32_u32 v2, s93
        v_rcp_f32 v2, v2
        v_mul_f32 v1, v1, v2
        v_mul_f32 v1, 0x42c80000, v1
        v_cvt_u32_f32 v1, v1
        v_readfirstlane_b32 s92, v1
        s_add_u32 s92, s92, s68
        s_addc_u32 s93, s69, 0
        v_writelane_b32 v164, s92, 15
        v_writelane_b32 v165, s93, 15
        ''')
        A(f'''
        s_mov_b64 exec, 0xffff
        s_lshl_b32 s60, s2, 9
        s_add_u32 s60, s60, {STAMPS+256}
        buffer_store_dwordx2 v[164:165], v29, s[40:43], s60 offen
        ''')
    A(f'''
    L_end:
    s_endpgm
    L_fpoll:
    buffer_load_dword v34, v6, s[40:43], s19 offen sc1
    buffer_load_dword v36, v6, s[40:43], s20 offen sc1
    buffer_load_dword v38, v6, s[40:43], s21 offen sc1
    buffer_load_dword v40, v6, s[40:43], s22 offen sc1
    buffer_load_dword v42, v6, s[40:43], s23 offen sc1
    buffer_load_dword v44, v6, s[40:43], s24 offen sc1
    buffer_load_dword v46, v6, s[40:43], s25 offen sc1
    s_branch L_fchk
    ''')
    if peek:
        A(f'''
    L_sure:                                 ; the seven others have arrived already
    ds_write_b32 v31, v30 offset:{NOPUB-MISC}
    s_mov_b32 s30, 8
    L_trig2:
    ''')
        trigpoll('L_trig2_done')
        A(f'''
    s_sub_u32 s63, s63, 1
    s_cbranch_scc0 L_trig2
    L_trig2_done:
    s_mov_b64 exec, -1
    buffer_load_dword v34, v6, s[40:43], s19 offen sc1
    buffer_load_dword v36, v6, s[40:43], s20 offen sc1
    buffer_load_dword v38, v6, s[40:43], s21 offen sc1
    buffer_load_dword v40, v6, s[40:43], s22 offen sc1
    buffer_load_dword v42, v6, s[40:43], s23 offen sc1
    buffer_load_dword v44, v6, s[40:43], s24 offen sc1
    buffer_load_dword v46, v6, s[40:43], s25 offen sc1
    s_waitcnt lgkmcnt(0)
    s_branch L_b5
    ''')
    ZW[0] = True
    A(f'''
    L_stream:
    {'' if bark else 's_barrier                               ; flags zeroed'}
    s_add_u32 s12, s20, s57
    s_addc_u32 s13, s21, 0
    s_mov_b64 s[14:15], s[10:11]
    s_mov_b64 s[40:41], s[38:39]
    s_mov_b32 s42, {WSN}
    s_mov_b32 s43, s11
    v_mov_b32 v26, {MISC}
    ''')
    if fastmask:
        A(f'''
        s_getreg_b32 s60, hwreg(HW_REG_XCC_ID, 0, 3)
        s_bitcmp1_b32 {fastmask}, s60
        s_cselect_b64 vcc, -1, 0
        {'s_cmp_eq_u32 s4, 7' if fast7 else ''}
        {'s_cselect_b64 vcc, -1, vcc' if fast7 else ''}
        {'s_cmp_eq_u32 s5, 7' if fast7 == 2 else ''}
        {'s_cselect_b64 vcc, -1, vcc' if fast7 == 2 else ''}
        ''')
        vm.d = dthr
    if kfirst == 1: hb('K0', 0, k0thr)
    if kfirst == 2: ha('K1', 1, k0thr)
    A(f'''
    s_mov_b64 s[52:53], s[24:25]
    s_mov_b64 s[48:49], s[32:33]
    s_mov_b32 s51, s11
    s_mov_b32 s55, s11
    s_cmp_lt_u32 s5, 7
    s_cselect_b32 s54, {Z(4096*896)}, 0
    s_cselect_b32 s61, s5, 0
    s_lshl_b32 s61, s61, 7
    s_lshl4_add_u32 s64, s4, s3
    s_mul_i32 s64, s64, {32*896}
    s_add_u32 s64, s64, s61
    s_lshl3_add_u32 s65, s4, s3
    s_mul_i32 s65, s65, {32*896}
    s_add_u32 s65, s65, s61
    s_cmp_lt_u32 s7, 7
    s_cselect_b32 s50, {Z(1792*896)}, 0
    s_cselect_b32 s65, s65, 0
    v_and_b32 v1, 15, v0                     ; row
    v_lshrrev_b32 v2, 4, v0                  ; g
    v_and_b32 v3, 7, v0
    v_lshlrev_b32 v3, 1, v3
    v_xor_b32 v3, v3, v2
    v_lshlrev_b32 v3, 4, v3
    v_lshl_add_u32 v3, v1, 9, v3
    v_add_u32 v8, s59, v3
    v_xor_b32 v9, 64, v8
    v_xor_b32 v10, 0x80, v8
    v_xor_b32 v11, 0xc0, v8
    ''')
    def readK(dst, slot):
        for t in range(8):
            A(f'ds_read_b128 v[{dst+4*t}:{dst+4*t+3}], v{vKA[t&3]} offset:{slot*8192 + (t>>2)*256}')
    def readQ(dst, ts):
        for n, t in enumerate(ts):
            A(f'ds_read_b128 v[{dst+4*n}:{dst+4*n+3}], v24 offset:{t*64}')
    def qk(tile, src, qf, ts=range(8)):
        for n, t in enumerate(ts):
            c = '0' if t == 0 else f'v[{Sx+4*tile}:{Sx+4*tile+3}]'
            A(f'v_mfma_f32_16x16x32_bf16 v[{Sx+4*tile}:{Sx+4*tile+3}], v[{src+4*t}:{src+4*t+3}], v[{qf+4*n}:{qf+4*n+3}], {c}')
    def flagwait(off, lab):
        if nohelp:
            A(f'{lab}_done:')
            return
        A(f'''
        s_mov_b32 s61, {SPIN*8}
        {lab}:
        ds_read_b32 v1, v26 offset:{off-MISC}
        s_sub_u32 s61, s61, 1
        s_waitcnt lgkmcnt(0)
        s_cbranch_scc1 {lab}_done
        v_readfirstlane_b32 s67, v1
        s_cmp_lg_u32 s67, 0
        s_cbranch_scc1 {lab}_done
        s_sleep 1
        s_branch {lab}
        {lab}_done:
        ''')
    if bark: A('s_barrier')
    vm.wait('small')
    A(f'''
    s_mov_b64 exec, 1
    ds_add_u32 v26, v28 offset:{CNT0-MISC}
    s_mov_b64 exec, -1
    ''')
    stamp(2)
    if not (kfirst or xlast == 2): hb('K0', 0)
    if kfirst != 2: ha('K1', 1)
    if kfirst != 2: vm.wait('K0')
    readK(KfA, 0)
    A(f'''
    v_lshrrev_b32 v21, 2, v0                 ; row = l/4
    v_and_b32 v22, 7, v21
    v_lshlrev_b32 v22, 5, v22
    v_lshl_add_u32 v22, v21, 9, v22
    v_and_b32 v23, 3, v0
    v_lshl_add_u32 v22, v23, 3, v22
    v_add_u32 v12, s59, v22
    ''')
    for t in range(1, 8):
        A(f'v_xor_b32 v{12+t}, {t*32}, v12')
    A(f'''
    v_and_b32 v24, 1, v0
    v_lshlrev_b32 v25, 6, v24                ; head*64
    v_lshlrev_b32 v24, 9, v24
    v_lshl_add_u32 v24, v2, 4, v24
    v_add_u32 v24, {QL}, v24
    s_lshl_b32 s60, s3, 3
    s_add_u32 s60, s60, {STW}
    v_add_u32 v25, s60, v25
    ''')
    hb('K1', 1)
    A('s_waitcnt lgkmcnt(0)')
    ha('K2', 0)
    vm.wait('K1')
    readK(KfB, 1)
    hb('K2', 0)
    A('s_waitcnt lgkmcnt(0)')
    ha('K3', 1)
    vm.wait('K2')
    if k3:
        readK(KfC, 0)
        hb('K3', 1)
        A('s_waitcnt lgkmcnt(0)')
        ha('V0', 0)
        vm.wait('K3')
        hb('V0', 0)
        stamp(3)
        if not nodep: flagwait(FLQ, 'L_wq')
        stamp(4)
        readQ(Pk, range(4))
        readQ(160, range(4, 6))
        A('s_waitcnt lgkmcnt(2)')
        for tile, src in enumerate((KfA, KfB, KfC)): qk(tile, src, Pk, range(4))
        readQ(Pk, range(6, 8))
        A('s_waitcnt lgkmcnt(2)')
        for tile, src in enumerate((KfA, KfB, KfC)): qk(tile, src, 160, range(4, 6))
        A('s_waitcnt lgkmcnt(0)')
        for tile, src in enumerate((KfA, KfB, KfC)): qk(tile, src, Pk, range(6, 8))
        readK(KfA, 1)
        readQ(KfB, range(8))
        A('s_waitcnt lgkmcnt(0)')
        issue('V1', 1, (0,))
        qk(3, KfA, KfB)
    else:
        hb('K3', 1)
        stamp(3)
        if not nodep: flagwait(FLQ, 'L_wq')
        stamp(4)
        readQ(KfC, range(8))
        A('s_waitcnt lgkmcnt(0)')
        qk(0, KfA, KfC)
        readK(KfA, 0)
        qk(1, KfB, KfC)
        A('s_waitcnt lgkmcnt(0)')
        qk(2, KfA, KfC)
        ha('V0', 0)
        vm.wait('K3')
        readK(KfB, 1)
        issue('V0', 0, (1,))
        A('s_waitcnt lgkmcnt(0)')
        qk(3, KfB, KfC)
    MK = 84
    A(f's_mov_b32 s{MK}, 0x00030003')
    A(f's_mov_b32 s{MK+1}, 0x00030003')
    for u in range(1, 8):
        A(f's_lshl_b64 s[{MK+2*u}:{MK+2*u+1}], s[{MK}:{MK+1}], {2*u}')
    A(f's_mov_b32 s63, {CEXP}')
    for i in range(8):
        a, b = Sx + 2*i, Sx + 2*i + 1
        A(f'v_cvt_pk_bf16_f32 v{b}, v{a}, v{b}')
        A(f'v_lshlrev_b32 v{a}, 16, v{b}')
        A(f'v_and_b32 v{b}, 0xffff0000, v{b}')
    A(f'v_max3_f32 v22, v{Sx}, v{Sx+1}, v{Sx+2}')
    for i in range(3, 15, 2):
        A(f'v_max3_f32 v22, v22, v{Sx+i}, v{Sx+i+1}')
    A(f'''
    v_max_f32 v22, v22, v{Sx+15}
    v_mov_b32 v1, v22
    v_permlane16_swap_b32 v22, v1
    v_max_f32 v22, v22, v1
    v_mov_b32 v1, v22
    v_permlane32_swap_b32 v22, v1
    v_max_f32 v22, v22, v1                   ; wave max per head
    ''')
    for i in range(16):
        A(f'v_sub_f32 v{Sx+i}, v{Sx+i}, v22')
    for i in range(16):
        A(f'v_mul_f32 v{Sx+i}, s63, v{Sx+i}')
    for i in range(16):
        A(f'v_exp_f32 v{Sx+i}, v{Sx+i}')
    for i in range(8):
        A(f'v_cvt_pk_bf16_f32 v{Pk+i}, v{Sx+2*i}, v{Sx+2*i+1}')
    for i in range(8):
        A(f'v_add_f32 v{Sx+i}, v{Sx+i}, v{Sx+8+i}')
    for i in range(4):
        A(f'v_add_f32 v{Sx+i}, v{Sx+i}, v{Sx+4+i}')
    A(f'''
    v_add_f32 v{Sx}, v{Sx}, v{Sx+2}
    v_add_f32 v{Sx+1}, v{Sx+1}, v{Sx+3}
    v_add_f32 v23, v{Sx}, v{Sx+1}
    v_mov_b32 v1, v23
    v_permlane16_swap_b32 v23, v1
    v_add_f32 v23, v23, v1
    v_mov_b32 v1, v23
    v_permlane32_swap_b32 v23, v1
    v_add_f32 v23, v23, v1                   ; wave sum per head
    s_mov_b64 exec, 3
    ds_write_b64 v25, v[22:23]
    s_mov_b64 exec, 1
    ds_add_u32 v26, v28 offset:{CNT-MISC}
    s_mov_b64 exec, -1
    ''')
    stamp(5)
    if not k3: ha('V1', 1)
    vWO, vWD, vOW, vOR, vP1s, vP1l, vYW, vHA = 22, 23, 24, 25, 27, 28, 29, 21
    vWA = [8, 9, 10, 11]
    A(f'''
    s_waitcnt lgkmcnt(0)
    s_movk_i32 s61, 896
    v_mad_u32_u24 v{vWD}, v{vR8}, s61, v{vCH}
    v_bfe_u32 v1, v0, 3, 1
    v_lshlrev_b32 v1, 8, v1
    v_and_b32 v3, 16, v0
    v_add_u32 v1, v1, v3
    v_lshrrev_b32 v3, 5, v0
    v_add_u32 v1, v1, v3
    v_mad_u32_u24 v{vWO}, v1, s61, v{vCH}
    v_lshrrev_b32 v1, 2, v0
    v_lshlrev_b32 v1, 7, v1
    v_bfe_u32 v2, v0, 3, 2
    v_lshl_add_u32 v1, v2, 5, v1
    v_and_b32 v2, 3, v0
    v_lshl_add_u32 v1, v2, 3, v1
    v_add_u32 v8, s59, v1
    v_xor_b32 v9, 32, v8
    v_xor_b32 v10, 64, v8
    v_xor_b32 v11, 0x60, v8
    v_lshlrev_b32 v1, 4, v0
    s_lshl_b32 s60, s3, 11
    s_add_u32 s60, s60, {AREA}
    v_add_u32 v{vOW}, s60, v1
    v_lshrrev_b32 v2, 4, v0                  ; g
    v_and_b32 v3, 15, v0                     ; c
    v_lshlrev_b32 v31, 12, v2                ; waves 2g, 2g+1
    v_lshl_add_u32 v31, v3, 4, v31
    s_lshl_b32 s60, s3, 8
    s_add_u32 s61, s60, {AREA}
    v_add_u32 v{vOR}, s61, v31
    s_add_u32 s61, s60, {YL}
    v_lshlrev_b32 v31, 2, v0
    v_add_u32 v{vYW}, s61, v31
    s_lshl3_add_u32 s60, s56, s3
    s_lshl_b32 s60, s60, 10
    s_add_u32 s60, s60, {P1}
    v_add_u32 v{vP1l}, s60, v1
    s_lshl4_add_u32 s61, s5, s60
    v_and_b32 v1, 3, v0
    v_lshlrev_b32 v1, 8, v1                  ; g*256
    v_and_b32 v3, 4, v0
    v_lshl_add_u32 v1, v3, 1, v1             ; half*8
    v_and_b32 v3, 8, v0
    v_lshl_add_u32 v1, v3, 4, v1             ; ks*128
    v_add_u32 v{vP1s}, s61, v1
    s_lshl_b32 s60, s3, 6
    s_add_u32 s60, s60, {HL}
    v_lshlrev_b32 v1, 3, v2
    v_add_u32 v{vHA}, s60, v1
    v_lshlrev_b32 v31, 4, v2
    v_add_u32 v31, {FACW}, v31
    s_mul_i32 s60, s6, 7
    s_add_u32 s60, s60, s5
    s_lshl3_add_u32 s60, s60, s4
    s_lshl_b32 s60, s60, {8 if p2b else 9}
    s_add_u32 s60, s60, {P2}
    v_lshl_add_u32 v30, v0, {2 if p2b else 3}, s60
    {'s_movk_i32 s66, 0xff' if p2t else ''}
    ''')
    Vf = KfA; Mk = KfB
    WOf, WDf = KfC, Sx
    PL = 64
    def masks(i):
        M = Mk + 16*(i & 1)
        for u in range(8):
            A(f'v_cndmask_b32 v{M+2*u}, 0, v{Pk+2*(i^vx)}, s[{MK+2*u}:{MK+2*u+1}]')
            A(f'v_cndmask_b32 v{M+2*u+1}, 0, v{Pk+2*(i^vx)+1}, s[{MK+2*u}:{MK+2*u+1}]')
    def pv(i, slot, mid=None):
        M = Mk + 16*(i & 1)
        def rd(t): A(f'ds_read_b64_tr_b16 v[{Vf+2*t}:{Vf+2*t+1}], v{vVA[t&7]} offset:{slot*8192 + (t>>3)*256}')
        def mf(ii):
            acc = Oa + 4*(ii >> 2)
            c = '0' if (i == 0 and (ii & 3) == 0) else f'v[{acc}:{acc+3}]'
            A(f'v_mfma_f32_16x16x32_bf16 v[{acc}:{acc+3}], v[{M+4*(ii&3)}:{M+4*(ii&3)+3}], v[{Vf+4*ii}:{Vf+4*ii+3}], {c}')
        if ilv and i == 3 and mid is None:
            for t in range(8): rd(t)
            for ii in range(8):
                A(f's_waitcnt lgkmcnt({min(6, 14-2*ii)})')
                mf(ii)
                if ii < 4: rd(8+2*ii); rd(9+2*ii)
                if wlast == 6 and ii >= 4:
                    A(f's_add_u32 m0, s59, {8192 + ii*1024}')
                    A(f's_add_u32 s60, s64, {ii*2*896}')
                    A(f'buffer_load_dwordx4 v{vWO}, s[52:55], s60 offen{wnt} lds')
                    vm.add('WO', 1)
                if wlast == 3:
                    A(f's_add_u32 m0, s59, {8192 + ii*1024}')
                    A(f's_add_u32 s60, s64, {ii*2*896}')
                    A(f'buffer_load_dwordx4 v{vWO}, s[52:55], s60 offen{wnt} lds')
            if wlast == 3: vm.add('WO', 8)
            return
        for t in range(16): rd(t)
        if mid: mid()
        for ii in range(8):
            A(f's_waitcnt lgkmcnt({14-2*ii})')
            mf(ii)
    def issueW(p, slot, t=None, wdoff=0):
        vm.upto(thr if t is None else t)
        if wq4: A('s_lshl_b32 s60, s6, 4\ns_lshl_b64 exec, 0xffff, s60')
        for k in range(4):
            if p < 2:
                A(f's_add_u32 m0, s59, {slot*8192 + (4*p+k)*1024}')
                A(f's_add_u32 s60, s64, {(4*p+k)*2*896}')
                A(f'buffer_load_dwordx4 v{vWO}, s[52:55], s60 offen{wnt} lds')
            else:
                A(f's_add_u32 m0, s59, {slot*8192 + wdoff + k*1024}')
                A(f's_add_u32 s60, s65, {k*8*896}')
                A(f'buffer_load_dwordx4 v{vWD}, s[48:51], s60 offen{wnt} lds')
        if wq4: A('s_mov_b64 exec, -1')
        vm.add('WO' if p < 2 else 'WD', 4)
    def readWO(slot, kss=(0, 1)):
        for ks in kss:
            for T in range(4):
                for half in range(2):
                    d = WOf + 16*ks + 4*T + 2*half
                    A(f'ds_read_b64_tr_b16 v[{d}:{d+1}], v{vWA[T]} offset:{slot*8192 + ks*4096 + half*2048}')
    def readWD(slot, wdoff=0):
        for T in range(4):
            for half in range(2):
                A(f'ds_read_b64_tr_b16 v[{WDf+4*T+2*half}:{WDf+4*T+2*half+1}], v{vWA[T]} offset:{slot*8192 + wdoff + half*2048}')
    def pretouch():
        if p1pre == 2:
            A(f's_lshl_b32 s60, s5, 8\ns_mov_b64 exec, 0x101\nbuffer_load_dword v160, v{vP1l}, s[40:43], s60 offen{pref}\ns_mov_b64 exec, -1')
            vm.add('pre', 1)
            return
        for q in range(2):
            if p1pre: A(f'buffer_load_dwordx4 v[160:163], v{vP1l}, s[40:43], 0 offen offset:{q*1024}{pref}')
        vm.add('pre', 2 if p1pre else 0)
    masks(0)
    vm.wait('V0')
    pv(0, 0)
    masks(1)
    hb('V1', 1)
    if not wlast:
        issueW(0, 0)
        vm.wait('V1')
        pv(1, 1)
        issueW(1, 0)
        issueW(2, 1)
        masks(2)
        vm.wait('WO')
        readWO(0)
        A('s_waitcnt lgkmcnt(0)')
        issue('V2', 0, (0,))
        vm.wait('WD')
        readWD(1)
        hb('V2', 0)
        pretouch()
        A('s_waitcnt lgkmcnt(0)')
        ha('V3', 1, thr + 2)
        vm.wait('V2')
        pv(2, 0, lambda: issue('V3', 1, (1,)))
        s3 = 1
    elif wlast in (5, 6):
        issueW(0, 0)
        vm.wait('V1')
        if catch:
            A(f'v_mov_b32 v1, 1\ns_mov_b64 exec, 1\nds_add_rtn_u32 v1, v26, v1 offset:{RANK-MISC}\ns_mov_b64 exec, -1\ns_waitcnt lgkmcnt(0)\nv_readfirstlane_b32 s67, v1\ns_cmp_ge_u32 s67, {catch}\ns_cselect_b64 vcc, -1, 0')
            vm.skip = True
        pv(1, 1)
        issueW(2, 0, None, 4096)
        ha('V2', 1)
        masks(2)
        vm.wait('WD')
        readWO(0, (0,))
        readWD(0, 4096)
        hb('V2', 1)
        pretouch()
        A('s_waitcnt lgkmcnt(0)')
        ha('V3', 0, v3thr)
        vm.skip = False
        vm.wait('V2')
        pv(2, 1, lambda: issue('V3', 0, (1,)))
        s3 = 0
    else:
        issueW(2, 0)
        vm.wait('V1')
        pv(1, 1)
        ha('V2', 1)
        masks(2)
        vm.wait('WD')
        readWD(0)
        hb('V2', 1)
        pretouch()
        A('s_waitcnt lgkmcnt(0)')
        ha('V3', 0, v3thr)
        vm.wait('V2')
        pv(2, 1, lambda: issue('V3', 0, (1,)))
        s3 = 0
    masks(3)
    flagwait(FLF, 'L_wf')
    FC = 160
    PKR = f'''    v_pk_mul_f32 v[32:33], v[32:33], v[{FC}:{FC+1}]
    v_pk_mul_f32 v[34:35], v[34:35], v[{FC}:{FC+1}]
    s_waitcnt lgkmcnt(0)
    v_pk_fma_f32 v[32:33], v[36:37], v[{FC+2}:{FC+3}], v[32:33]
    v_pk_fma_f32 v[34:35], v[38:39], v[{FC+2}:{FC+3}], v[34:35]
    v_permlane32_swap_b32 v32, v34
    v_permlane32_swap_b32 v33, v35
    v_pk_add_f32 v[36:37], v[32:33], v[34:35]
    v_pk_add_f32 v[32:33], v[32:33], v[34:35]
    v_permlane16_swap_b32 v32, v36
    v_permlane16_swap_b32 v33, v37
    v_pk_add_f32 v[32:33], v[32:33], v[36:37]
'''
    OLDR = f'''    v_mul_f32 v32, v32, v{FC}
    v_mul_f32 v34, v34, v{FC}
    v_mul_f32 v33, v33, v{FC+1}
    v_mul_f32 v35, v35, v{FC+1}
    s_waitcnt lgkmcnt(0)
    v_fmac_f32 v32, v36, v{FC+2}
    v_fmac_f32 v34, v38, v{FC+2}
    v_fmac_f32 v33, v37, v{FC+3}
    v_fmac_f32 v35, v39, v{FC+3}
    v_permlane32_swap_b32 v32, v34
    v_permlane32_swap_b32 v33, v35
    v_add_f32 v36, v32, v34
    v_add_f32 v37, v33, v35
    v_add_f32 v32, v32, v34
    v_add_f32 v33, v33, v35
    v_permlane16_swap_b32 v32, v36
    v_permlane16_swap_b32 v33, v37
    v_add_f32 v32, v32, v36
    v_add_f32 v33, v33, v37
'''
    A(f'''
    ds_read_b128 v[4:7], v26 offset:{FLF-MISC}
    ds_read2_b64 v[64:67], v{vHA} offset0:0 offset1:4
    s_mov_b32 s{MK}, 0x00010001
    s_mov_b32 s{MK+1}, 0x00010001
    s_mov_b32 s{MK+2}, 0x01000100
    s_mov_b32 s{MK+3}, 0x01000100
    s_mov_b32 s{MK+4}, 0x00ff00ff
    s_mov_b32 s{MK+5}, 0x00ff00ff
    ''')
    vm.wait('pre')
    A(f'''
    ds_read_b128 v[{FC}:{FC+3}], v31
    s_waitcnt lgkmcnt(0)
    v_readfirstlane_b32 s63, v5
    {'v_lshlrev_b32 v5, 3, v0' if p2t else ''}
    {'v_and_b32 v5, 24, v5' if p2t else ''}
    {'v_lshrrev_b32 v5, v5, v6' if p2t else ''}
    ''')
    FA = 144
    for r in range(4):
        A(f'v_cndmask_b32 v{68+r}, 0, v{64+r}, s[{MK}:{MK+1}]')
        A(f'v_cndmask_b32 v{72+r}, 0, v{64+r}, s[{MK+2}:{MK+3}]')
    A(f'''
    v_mfma_f32_16x16x32_bf16 v[{FA}:{FA+3}], v[68:71], v[{WDf}:{WDf+3}], 0
    v_mfma_f32_16x16x32_bf16 v[{FA+4}:{FA+7}], v[68:71], v[{WDf+4}:{WDf+7}], 0
    v_mfma_f32_16x16x32_bf16 v[{FA}:{FA+3}], v[72:75], v[{WDf+8}:{WDf+11}], v[{FA}:{FA+3}]
    v_mfma_f32_16x16x32_bf16 v[{FA+4}:{FA+7}], v[72:75], v[{WDf+12}:{WDf+15}], v[{FA+4}:{FA+7}]
    s_mov_b32 s62, {SPIN}
    ''')
    if wlast in (1, 2):
        issueW(0, 1, wthr)
        if wlast == 1: issueW(1, 1, wthr + 2)
    if early: A('v_mov_b32 v1, 1\ns_mov_b64 exec, 1')
    vm.wait('V3')
    if early: A(f'ds_add_u32 v26, v1 offset:{CNTV-MISC}\ns_mov_b64 exec, -1')
    stamp(6)
    pv(3, s3, (lambda: issueW(1, 1, 99)) if wlast == 2 else None)
    A(f'''
    ds_write_b128 v{vOW}, v[{Oa}:{Oa+3}]
    ds_write_b128 v{vOW}, v[{Oa+4}:{Oa+7}] offset:1024
    ''')
    if wlast == 4:
        issueW(0, 1, 99); issueW(1, 1, 99)
    if wlast == 5: issueW(1, 1, 99)
    A('s_waitcnt lgkmcnt(0)')
    stamp(7)
    A(f'''
    s_barrier                               ; #4: O partials
    ds_read_b128 v[32:35], v{vOR}
    ds_read_b128 v[36:39], v{vOR} offset:2048
    s_cmp_eq_u32 s63, 0
    s_waitcnt lgkmcnt(1)
{PKR if pkr else OLDR}
    v_cvt_pk_bf16_f32 v32, v32, v33
    v_min_u32 v6, -2, v32
    v_min_u32 v7, -2, v32
    v_permlane32_swap_b32 v6, v7
    s_mov_b64 exec, 0xffff
    s_cbranch_scc1 L_slowpub
    buffer_store_dwordx2 v[6:7], v{vP1s}, s[40:43], 0 offen
    L_pubdone:
    s_mov_b64 exec, -1
    ''')
    vm.add('pub', 1)
    stamp(8)
    A(f'''
    s_cmp_eq_u32 s5, 7
    s_cbranch_scc1 L_sdone
    ''')
    def polls():
        A(f'buffer_load_dwordx4 v[{PL}:{PL+3}], v{vP1l}, s[40:43], 0 offen sc1')
    if wlast:
        polls(); vm.add('poll', 1)
        vm.wait('pub')
        readWO(1, (1,) if wlast in (5, 6) else (0, 1))
        A('s_branch L_poll1_chk')
    A('L_poll1:')
    polls()
    A(f'''
    L_poll1_chk:
    s_sub_u32 s62, s62, 1
    s_waitcnt vmcnt(0)
    s_cbranch_scc1 L_poll1_done
    v_max3_u32 v1, v{PL}, v{PL+1}, v{PL+2}
    v_max_u32 v1, v1, v{PL+3}
    v_cmp_eq_u32 vcc, -1, v1
    {'s_mov_b64 exec, vcc' if mpoll else ''}
    {'' if nohelp else 's_cbranch_vccnz L_poll1'}
    L_poll1_done:
    {'s_mov_b64 exec, -1' if mpoll else ''}
    ''')
    stamp(9)
    LO, HI = 80, 88
    def omm(a, ks, T0):
        for x in range(2):
            acc = FA + 4*x
            bb = WOf + 16*ks + 4*(T0 + x)
            A(f'v_mfma_f32_16x16x32_bf16 v[{acc}:{acc+3}], v[{a}:{a+3}], v[{bb}:{bb+3}], v[{acc}:{acc+3}]')
    for q in range(4):
        A(f'v_cndmask_b32 v{LO+q}, 0, v{PL+q}, s[{MK+4}:{MK+5}]')
    for q in range(4):
        A(f'v_cndmask_b32 v{HI+4+q}, v{PL+q}, 0, s[{MK+4}:{MK+5}]')
    if wlast: A('s_waitcnt lgkmcnt(0)')
    omm(LO, 0, 0)
    for q in range(4):
        A(f'v_mov_b32_dpp v{HI+q}, v{PL+q} row_shr:8 row_mask:0xf bank_mask:0xf bound_ctrl:0')
    omm(HI+4, 1, 2)
    for q in range(4):
        A(f'v_mov_b32_dpp v{LO+4+q}, v{PL+q} row_shl:8 row_mask:0xf bank_mask:0xf bound_ctrl:0')
    omm(HI, 0, 2)
    omm(LO+4, 1, 0)
    A(f'''
    v_pk_add_f32 v[{FA}:{FA+1}], v[{FA}:{FA+1}], v[{FA+2}:{FA+3}]
    v_pk_add_f32 v[{FA+4}:{FA+5}], v[{FA+4}:{FA+5}], v[{FA+6}:{FA+7}]
    v_add_f32 v{FA}, v{FA}, v{FA+1}
    v_add_f32 v{FA+4}, v{FA+4}, v{FA+5}
    v_permlane16_swap_b32 v{FA}, v{FA+4}
    v_add_f32 v{FA}, v{FA}, v{FA+4}
    ds_write_b32 v{vYW}, v{FA}
    s_waitcnt lgkmcnt(0)
    ''')
    stamp(10)
    if fin != 'D': A('s_cmp_lg_u32 s3, 0')
    A('s_barrier                               ; #5')
    if fin != 'D':
        A(f'''
        s_cbranch_scc1 {'L_clean' if clean else 'L_sdone'}
        {f'ds_read_b32 v1, v26 offset:{NOPUB-MISC}' if peek else ''}
        ds_read2st64_b32 v[48:49], v{vYW} offset0:0 offset1:1
        ds_read2st64_b32 v[50:51], v{vYW} offset0:2 offset1:3
        ds_read2st64_b32 v[52:53], v{vYW} offset0:4 offset1:5
        ds_read2st64_b32 v[54:55], v{vYW} offset0:6 offset1:7
        s_waitcnt lgkmcnt(2)
        {'v_cmp_ne_u32 vcc, 0, v1' if peek else ''}
        v_add_f32 v48, v48, v49
        v_add_f32 v50, v50, v51
        {'s_cbranch_vccnz L_sdone' if peek else ''}
        s_waitcnt lgkmcnt(0)
        v_add_f32 v52, v52, v53
        v_add_f32 v54, v54, v55
        v_add_f32 v48, v48, v50
        v_add_f32 v52, v52, v54
        v_add_f32 v4, v48, v52
        {'v_bfi_b32 v4, s66, v5, v4' if p2t else 'v_min_u32 v4, -2, v4'}
        {'buffer_store_dword v4, v30, s[40:43], 0 offen sc1' if p2b else 'buffer_store_dwordx2 v[4:5], v30, s[40:43], 0 offen sc1'}
        ''')
        if stamps: A('s_waitcnt vmcnt(0)\ns_memrealtime s[70:71]')
        if clean:
            A(f'''
            L_clean:
            s_lshl_b32 s60, s5, 8
            s_cmp_eq_u32 s5, 6
            s_cselect_b32 s61, 0x1010101, 0x101
            s_mov_b32 exec_lo, s61
            s_mov_b32 exec_hi, 0
            buffer_store_dword v{vTAG}, v{vP1l}, s[40:43], s60 offen offset:4 sc1
            '''.replace('s_cselect_b32 s61, 0x1010101, 0x101', 's_movk_i32 s61, 0x101\ns_cselect_b32 s61, 0x1010101, s61'))
    if pad and padat[0] == 's': dopad('L_pads')
    A('L_sdone:')
    if stamps:
        A(f's_cmp_eq_u32 s3, 0')
        A('s_cbranch_scc1 L_dump0')
        A(f's_cmp_lg_u32 s3, 7')
        A('s_cbranch_scc1 L_end')
        dump_stamps(16, [sreg(k) for k in range(11)])
        A('s_endpgm')
        A('L_dump0:')
        dump_stamps(0, [sreg(k) for k in range(11)])
    A('s_endpgm')
    A(f'''
    L_slowpub:
    buffer_store_dwordx2 v[6:7], v{vP1s}, s[40:43], 0 offen sc1
    s_branch L_pubdone
    ''')
    A('.section .rodata,"a"')
    A('.p2align 6')
    A(f'.amdhsa_kernel {NAME}_kernel')
    A('.amdhsa_next_free_vgpr 168')
    A('.amdhsa_next_free_sgpr 102')
    A('.amdhsa_accum_offset 168')
    A('.amdhsa_group_segment_fixed_size 0')
    A('.amdhsa_kernarg_size 96')
    A('.amdhsa_user_sgpr_count 2')
    A('.amdhsa_user_sgpr_kernarg_segment_ptr 1')
    A('.amdhsa_system_sgpr_workgroup_id_x 1')
    A('.end_amdhsa_kernel')
    return top + A.finalize()

if __name__ == '__main__':
    out = sys.argv[1] if len(sys.argv) > 1 else f'cdna_kernels/{NAME}.s'
    kw = eval('dict(%s)' % sys.argv[2]) if len(sys.argv) > 2 else {}
    open(out, 'w').write(gen(**kw))
    print('wrote', out)
```

```python
import sys, struct, math
from asmlib import Asm
NAME = 'parallel_sum__sliding_block_cached__glu_gated_reglu__decode'

def f32(x): return '0x%08x' % struct.unpack('<I', struct.pack('<f', x))[0]

AREA = 131072
TAB = AREA + 16384
STW = TAB
FACW = TAB + 128
HL = TAB + 512
QL = TAB + 1024
YL = TAB + 2048
MISC = AREA + 28672
FLQ = MISC
CNT = MISC + 4
CNT0 = MISC + 12
FLF = MISC + 16
CNTV = MISC + 32
THR = MISC + 36
RANK = MISC + 40
NOPUB = MISC + 44
XN = MISC + 256
LDS_TOTAL = 163840
EPOCH = 0
ST = 0x3C000
TK2 = 0x2000
TK = 0x3000
P2 = 0x1C0000
P1 = 0x40000
QP = 0xC0000
WS_END = 0x1E0000
STAMPS = 0x300000
SPIN = 400000
CEXP = f32(math.log2(math.e)/16)

DOC = '''; ---------------------------------------------------------------------------------------------
; One persistent launch: 256 workgroups (one per CU), 8 stream waves + 1 helper wave each.
;   wg = b*64 + j*8 + hkv ; group (b, hkv) = 8 workgroups j that split the 4096-key window.
; Stream wave: 4 K tiles then 4 V tiles (16 keys x 512 B) by LDS-DMA through two 8 KB slots,
; Helper wave: LayerNorm, one 64-column piece of x*wq / x*W_gate / x*W_up, gathers q and h,
;   merges the softmax statistics of the group, runs the last reduction over the kv heads.
;   "empty" marker written earlier in the same launch. Plain stores are used only after d_debug
;   shows that every reader runs on this XCD; otherwise all hand-off stores are write-through.
; ---------------------------------------------------------------------------------------------
'''

class VM:
    def __init__(self, A): self.A = A; self.q = []
    def add(self, name, n): self.q.append((name, n))
    def wait(self, name, extra=''):
        idx = max(i for i, (nm, _) in enumerate(self.q) if nm == name)
        n = sum(c for _, c in self.q[idx+1:])
        self.q = self.q[idx+1:]
        self.A(f's_waitcnt vmcnt({n}){extra}')
    d = 0; nl = 0; skip = False
    def upto(self, n):
        tot = sum(c for _, c in self.q)
        if self.skip and tot > n:
            self.nl += 1
            self.A(f's_cbranch_vccnz L_pc{self.nl}\ns_waitcnt vmcnt({n})\nL_pc{self.nl}:')
            return
        if tot > n: self.A(f's_waitcnt vmcnt({n})')
        if self.d and n < 50 and tot > max(n - self.d, 0):
            self.nl += 1
            self.A(f's_cbranch_vccz L_pc{self.nl}\ns_waitcnt vmcnt({max(n - self.d, 0)})\nL_pc{self.nl}:')

def gen(stamps=0, wnt='', snt=' nt', kvnt=' nt', forceslow=False, now=False, pad=0, padat=None, thr=1,
        hpre=3, psleep=32, xlast=0, xtries=12, sync=False, xs='rev', light=False, kfirst=True, k3=True, wlast=5, hs=None, wthr=4, fastmask=0x55, dthr=0, fh=('K1b', 'K2a', 'K2b'), fin='T', spec=False, fsleep=0, hl=(6, 12), early=False, satom=True, noxc=False, kl=1, wlate=0, wmid=False, hsplit=True, first=(2, 0, 0), vx=0, kord=(0, 1, 2, 3), bark=0, p2t=0, qclean=0, fast7=False, pkr=True, wq4=False, rtm=False, hsw=2, peek=2, catch=0, bent=None, lin=None, p2b=True, v3thr=2, k0thr=5, dirty=0, wb=0, clean=0, p2pre=1, outf='', perm=0, gov=None, govh=('V2a', 'V2b', 'V3a'), govn=4, ilv=True, mpoll=True, nohelp=False, nodep=False, tlb=False, presl=32, pref=' sc1', pollf=' sc1', p1pre=0, sl=(0, 6, 10)):
    A = Asm()
    def sreg(k): return 68 + 2*k if k < 3 else 16 + 2*(k-3)
    def stamp(k):
        if stamps and (not light or k in sl): A(f's_memrealtime s[{sreg(k)}:{sreg(k)+1}]')
        if padat == f's{k}': A('s_memrealtime s[100:101]')
    def hstamp(k):
        if nohelp and nohelp - 1 == k: A('s_endpgm')
        if stamps and (not light or k in hl):
            A(f's_memrealtime s[100:101]\ns_waitcnt lgkmcnt(0)\nv_writelane_b32 v164, s100, {k}\nv_writelane_b32 v165, s101, {k}')
        if padat == f'h{k}': A('s_memrealtime s[100:101]\ns_waitcnt lgkmcnt(0)')
    def dopad(lab):
        A(f'''
        {lab}:
        s_memrealtime s[98:99]
        s_waitcnt lgkmcnt(0)
        s_sub_u32 s98, s98, s100
        s_cmp_lt_u32 s98, {pad}
        s_cbranch_scc1 {lab}
        ''')
    def dump_stamps(slot0, regs_):
        A('s_waitcnt vmcnt(0) lgkmcnt(0)')
        A('s_mov_b64 exec, 1')
        A('s_lshl_b32 s60, s2, 9')
        A(f's_add_u32 s60, s60, {STAMPS}')
        A('v_mov_b32 v1, s60')
        for k, r in enumerate(regs_):
            A(f'v_mov_b32 v2, s{r}')
            A(f'v_mov_b32 v3, s{r+1}')
            A(f'buffer_store_dwordx2 v[2:3], v1, s[40:43], 0 offen offset:{8*(slot0+k)}')
    WSN = 0x400000 if stamps else WS_END
    Z = lambda n: 0 if (now is True or (now == 'small' and n in (448*3584, 448*8192) and not ZW[0]) or (now == 'W' and ZW[0]) or (now == 'wq' and n == 448*8192 and not ZW[0])) else n
    ZW = [False]
    hdr = open('cdna_kernels/%s.s.ref' % NAME).read().split('; Override launch geometry')[0]
    top = hdr + f'; @launch grid=(256,1,1) block=(576,1,1) lds={LDS_TOTAL}\n'
    A('.amdgcn_target "amdgcn-amd-amdhsa--gfx950"')
    A('.text')
    for ln in DOC.strip().split('\n'): A(ln)
    A(f'.globl {NAME}_kernel')
    A('.p2align 8')
    A(f'.type {NAME}_kernel,@function')
    A(f'{NAME}_kernel:')
    if sync:
        A('''
        s_memrealtime s[4:5]
        s_waitcnt lgkmcnt(0)
        s_add_u32 s6, s4, 4096+600
        s_and_b32 s6, s6, -4096
        s_load_dwordx2 s[8:9], s[0:1], 88
        s_lshl_b32 s7, s2, 3
        s_add_u32 s7, s7, 0x380000
        v_mov_b32 v2, s4
        v_mov_b32 v3, s6
        v_mov_b32 v1, s7
        s_waitcnt lgkmcnt(0)
        global_store_dwordx2 v1, v[2:3], s[8:9] sc1
        s_waitcnt vmcnt(0)
        ''')
        if rtm:
            A('''
            s_load_dwordx2 s[8:9], s[0:1], 80
            v_readfirstlane_b32 s3, v0
            s_waitcnt lgkmcnt(0)
            s_load_dwordx16 s[84:99], s[8:9], 4096
            s_lshr_b32 s3, s3, 6
            s_and_b32 s3, s3, 7
            s_and_b32 s7, s2, 0x38
            s_or_b32 s3, s3, s7
            s_and_b32 s7, s2, 7
            s_lshl_b32 s7, s7, 6
            s_or_b32 s3, s3, s7
            s_lshr_b32 s7, s2, 6
            s_lshl_b32 s7, s7, 9
            s_or_b32 s3, s3, s7
            s_mov_b32 s68, 0
            s_waitcnt lgkmcnt(0)
            ''')
            for k in range(11):
                A(f's_bitcmp1_b32 s3, {k}\ns_cselect_b32 s7, s{84+k}, 0\ns_xor_b32 s68, s68, s7')
            A('s_xor_b32 s69, s68, s95\ns_xor_b32 s70, s68, s96\ns_xor_b32 s71, s69, s96')
            for k in range(4): A(f's_xor_b32 s{72+k}, s{68+k}, s97')
        A('''
        L_sync:
        s_memrealtime s[4:5]
        s_waitcnt lgkmcnt(0)
        s_sub_u32 s4, s4, s6
        s_cmp_lt_i32 s4, 0
        s_cbranch_scc1 L_sync
        s_branch L_go
        .p2align 10
        L_go:
        ''')
    if perm == 1:
        A('s_cmpk_ge_u32 s2, 256\ns_cbranch_scc1 L_end\ns_lshr_b32 s3, s2, 3\ns_and_b32 s3, s3, 7\ns_xor_b32 s2, s2, s3')
    if perm == 2:
        A('s_and_b32 s3, s2, -2\ns_cmp_eq_u32 s3, 74\ns_cselect_b32 s3, 1, 0\ns_xor_b32 s2, s2, s3')
    if padat == 'he': A('s_memrealtime s[100:101]')
    stamp(0)
    def msk(bits): return sum(1 << x for x in bits)
    def tmask(i, half):
        if not lin: return i*524288 + half*4096
        t = [msk(x) for x in lin['t']]
        return (t[0] if half else 0) ^ (t[1] if i & 1 else 0) ^ (t[2] if i & 2 else 0)
    lincode = ''
    if xs == 'rev':
        xs = None
        if not (lin or bent): lincode = 's_brev_b32 s62, s5\ns_lshr_b32 s62, s62, 10\ns_and_b32 s62, s62, 0x180000\ns_or_b32 s58, s58, s62\n'
    if hsw == 1: lincode += 's_lshl_b32 s62, s66, 11\ns_lshl_b32 s63, s66, 9\ns_xor_b32 s62, s62, s63\ns_and_b32 s62, s62, 0x1000\ns_or_b32 s58, s58, s62\n'
    if hsw == 2: lincode += 's_lshl_b32 s62, s66, 11\ns_and_b32 s62, s62, 0x1000\ns_or_b32 s58, s58, s62\n'
    if lin:
        xs = None
        lincode = 's_mov_b32 s58, 0\n'
        for key, reg in (('w', 's3'), ('j', 's5'), ('h', 's4'), ('b', 's6')):
            for bit, m in enumerate(lin.get(key, [])):
                if m: lincode += f's_bitcmp1_b32 {reg}, {bit}\ns_cselect_b32 s62, {msk(m)}, 0\ns_xor_b32 s58, s58, s62\n'
    if bent:
        xs = None
        def gmul(a, b):
            r = 0
            for k in range(3):
                if b >> k & 1: r ^= a << k
            for k in (4, 3):
                if r >> k & 1: r ^= 0xb << (k - 3)
            return r
        for k, bit in enumerate(bent):
            if bit is None: continue
            m = sum((gmul(i >> 3, i & 7) >> k & 1) << i for i in range(64))
            lincode += f's_mov_b32 s76, {m & 0xffffffff}\ns_mov_b32 s77, {m >> 32}\ns_bitcmp1_b64 s[76:77], s66\ns_cselect_b32 s62, {1 << bit}, 0\ns_xor_b32 s58, s58, s62\n'
    KARG = '''    s_load_dwordx16 s[16:31], s[0:1], 0      ; x K V wq wo Bx wg wu
    s_load_dwordx8 s[32:39], s[0:1], 64
'''
    vm = VM(A)
    vD = [4, 5, 6, 7]; vKA = [8, 9, 10, 11]; vVA = list(range(12, 20)); vTAG = 20
    KfA, KfB, KfC, Sx, Pk, Oa = 32, 64, 96, 128, 144, 152
    vCH, vR8 = 30, 31
    KS, VS = 's[8:11]', 's[12:15]'
    def issue(name, slot, halves=(0, 1)):
        srd = KS if name[0] == 'K' else VS
        i = kord[int(name[1]) ^ (vx if name[0] == 'V' else 0)]
        for half in halves:
            first = (name == 'K0' and half == 0)
            hn = name + 'ab'[half]
            if gov and hn in govh:
                A(f'ds_read_b32 v1, v26 offset:{THR-MISC}\ns_waitcnt lgkmcnt(0)\nv_cmp_lt_u32 vcc, {govh.index(hn)}, v1')
            if not first:
                A(f's_xor_b32 m0, {"s74" if hs else "s59"}, {slot*8192 + half*4096}')
                A(f's_mov_b32 s60, s{68+2*i+half}' if rtm else f's_xor_b32 s60, s58, {tmask(i, half)}')
            for q in range(4):
                if q in (0, 2) and (hn in fh or (gov and hn in govh)):
                    A(f's_cbranch_vccz L_f{name}{half}{q}\ns_waitcnt vmcnt(1)\nL_f{name}{half}{q}:')
                A(f'buffer_load_dwordx4 v{vD[q]}, {srd}, {("s68" if rtm else "s58") if first else "s60"} offen offset:{q*1024}{kvnt} lds')
            vm.add(name, 4)
    def ha(name, slot, t=None):
        vm.upto(thr if t is None else t); issue(name, slot, (0,))
    def hb(name, slot, t=None):
        vm.upto(thr if t is None else t); issue(name, slot, (1,))
    A(f'''
    {'s_load_dwordx2 s[8:9], s[0:1], 8' if kl else KARG}
    v_readfirstlane_b32 s3, v0
    s_cmpk_ge_u32 s2, 256
    s_cbranch_scc1 L_end
    v_and_b32 v0, 63, v0                     ; lane
    s_lshr_b32 s3, s3, 6                     ; wave
    s_and_b32 s4, s2, 7                      ; hkv
    s_bfe_u32 s5, s2, 0x30003                ; j
    s_lshr_b32 s6, s2, 6                     ; b
    s_lshl3_add_u32 s56, s6, s4
    s_cmp_eq_u32 s3, 8
    s_cbranch_scc1 L_helper
    v_lshrrev_b32 v1, 4, v0
    v_and_b32 v1, 2, v1
    v_xor_b32 v1, v1, v0
    v_lshlrev_b32 v4, 4, v1
    v_xor_b32 v5, 64, v4
    v_xor_b32 v6, 0x80, v4
    v_xor_b32 v7, 64, v6
    s_lshl3_add_u32 s66, s5, s3              ; 8j + w
    s_lshl_b32 s57, s56, 23
    s_add_u32 s57, s57, {12288*512}
    s_lshl_b32 s59, s3, 14
    s_lshl_b32 s58, s66, 13
    {lincode}
    {f's_bfe_u32 s62, {xs[0]}, {0x20000 + xs[1]}' if xs else ''}
    {'s_lshl_b32 s62, s62, 19' if xs else ''}
    {'s_or_b32 s58, s58, s62' if xs else ''}
    {f's_bfe_u32 s62, {hs[0]}, {0x10000 + hs[1]}' if hs else ''}
    {'s_lshl_b32 s62, s62, 12' if hs else ''}
    {'s_or_b32 s58, s58, s62' if hs else ''}
    {'s_or_b32 s74, s59, s62' if hs else ''}
    s_mov_b32 s10, 0x200000
    s_mov_b32 s11, 0x20000
    ''')
    saddr = f'''
    v_bfe_u32 v2, v0, 4, 2
    v_lshlrev_b32 v2, 1, v2
    v_and_b32 v3, 7, v0
    v_xor_b32 v2, v2, v3
    v_lshlrev_b32 v{vCH}, 4, v2
    v_lshrrev_b32 v{vR8}, 3, v0
    s_movk_i32 s61, 3584
    s_bfe_u32 s65, s2, 0x30004               ; wq role: 64-column block
    s_lshl3_add_u32 s65, s4, s65
    s_bfe_u32 s67, s2, 0x20005
    s_lshl2_add_u32 s67, s4, s67
    s_and_b32 s63, s5, 3                     ; K quarter
    s_and_b32 s64, s5, 1
    s_lshl_b32 s64, s64, 1
    s_cmp_lt_u32 s4, 7
    s_cselect_b32 s46, {Z(448*3584)}, 0
    s_cselect_b32 s67, s67, 0
    s_cmp_lt_u32 s6, 2                       ; SCC: wq role
    s_cselect_b32 s46, {Z(448*8192)}, s46
    s_cselect_b32 s61, 0x2000, s61
    s_cselect_b32 s65, s65, s67
    s_cselect_b32 s63, s64, s63
    s_cselect_b32 s67, {112*8192}, 0
    s_cselect_b64 vcc, -1, 0
    s_mul_i32 s63, s63, 7
    s_add_u32 s63, s63, s3
    s_lshl_b32 s63, s63, 4
    s_mul_i32 s63, s63, s61
    s_lshl_b32 s65, s65, 7
    s_add_u32 s63, s63, s65
    s_add_u32 s67, s67, s63
    v_mad_u32_u24 v21, v{vR8}, s61, v{vCH}
    s_lshl_b32 s61, s61, 3
    s_lshl_b32 s62, s3, 11
    s_mov_b32 s47, s11
    s_max_u32 s7, s4, s5
    '''
    if not kfirst: A(saddr)
    A(f'''
    s_mov_b32 m0, {'s74' if hs else 's59'}
    {'s_memrealtime s[100:101]' if padat == 'sa' else ''}
    s_waitcnt lgkmcnt(0)
    {'s_memrealtime s[100:101]' if padat == 'sb' else ''}
    s_add_u32 s8, {'s8' if kl else 's18'}, s57
    s_addc_u32 s9, {'s9' if kl else 's19'}, 0
    {KARG if kl else ''}
    ''')
    if kfirst:
        issue('K0', 0, (0, 1) if kfirst == 2 else (0,))
        A(saddr)
    A(f'''
    v_mov_b32 v28, 1
    s_cmp_eq_u32 s3, 7
    {'s_waitcnt lgkmcnt(0)' if kl else ''}
    s_cbranch_scc1 L_ldx
    s_cmp_lg_u64 vcc, 0
    s_cselect_b64 s[44:45], s[22:23], s[28:29]
    s_cselect_b64 s[48:49], s[22:23], s[30:31]
    s_add_u32 m0, s62, {AREA}
    s_mov_b64 s[50:51], s[46:47]
    buffer_load_dwordx4 v21, s[44:47], s63 offen{snt} lds
    s_add_u32 m0, s62, {AREA+14336}
    s_add_u32 s63, s63, s61
    buffer_load_dwordx4 v21, s[48:51], s67 offen{snt} lds
    s_add_u32 m0, s62, {AREA+1024}
    s_add_u32 s67, s67, s61
    buffer_load_dwordx4 v21, s[44:47], s63 offen{snt} lds
    s_add_u32 m0, s62, {AREA+14336+1024}
    buffer_load_dwordx4 v21, s[48:51], s67 offen{snt} lds
    s_branch L_ldk
    L_ldx:
    v_lshlrev_b32 v21, 4, v0
    s_mov_b32 m0, {XN}
    s_mov_b64 s[44:45], s[16:17]
    s_movk_i32 s46, 3584
    buffer_load_dwordx4 v21, s[44:47], 0 offen lds
    buffer_load_dwordx4 v21, s[44:47], 0 offen offset:1024 lds
    buffer_load_dwordx4 v21, s[44:47], 0 offen offset:2048 lds
    s_mov_b32 exec_hi, 0
    buffer_load_dwordx4 v21, s[44:47], 0 offen offset:3072 lds
    s_mov_b32 exec_hi, -1
    L_ldk:
    ''')
    vm.add('small', 4)
    if not kfirst:
        A(f's_mov_b32 m0, {"s74" if hs else "s59"}')
        issue('K0', 0, (0,))
    stamp(1)
    A('s_branch L_stream')

    XR = 8
    XF = 32
    RA = 156
    WF = 64
    AC = 132
    PB = 64
    nstore = [0]
    def store2(ins):
        n = nstore[0]; nstore[0] += 1
        A(f's_cmp_eq_u32 s58, 0\ns_cbranch_scc1 L_ss{n}')
        for i in ins: A(i)
        A(f's_branch L_sd{n}\nL_ss{n}:')
        for i in ins: A(i + ' sc1')
        A(f'L_sd{n}:')
    def cntwait(off, lab, sl, n=8):
        A(f'''
        s_mov_b32 s63, {SPIN*8}
        {lab}:
        ds_read_b32 v9, v31 offset:{off-MISC}
        s_sub_u32 s63, s63, 1
        s_waitcnt lgkmcnt(0)
        s_cbranch_scc1 {lab}_done
        v_cmp_le_u32 vcc, {n}, v9
        s_cbranch_vccnz {lab}_done
        {f's_sleep {sl}' if sl else ''}
        s_branch {lab}
        {lab}_done:
        ''')
    A(f'''
    L_helper:
    {KARG if kl else ''}
    s_setprio 3
    s_getreg_b32 s57, hwreg(HW_REG_XCC_ID, 0, 7)
    s_lshl_b32 s66, s4, 5
    s_lshr_b32 s61, s2, 3
    s_add_u32 s61, s61, s66
    s_add_u32 s57, s57, 1
    v_mov_b32 v9, s61
    v_mov_b32 v10, s57
    v_mov_b32 v31, {MISC}
    v_lshl_add_u32 v1, v0, 2, v31
    v_mov_b32 v2, 0
    ds_write_b32 v1, v2                      ; flags = 0
    s_mov_b64 exec, 1
    s_waitcnt lgkmcnt(0)
    {'' if noxc else 'global_store_byte v9, v10, s[36:37]      ; my XCD, for the workgroups that share my heads'}
    s_load_dword s62, s[38:39], {EPOCH}
    s_mov_b64 exec, -1
    ''')
    if tlb:
        A(f'''
        s_lshl_b32 s60, s56, 23
        s_add_u32 s60, s60, {12288*512}
        s_load_dword s76, s[20:21], s60          ; touch the pages used later: V window, wo, W_down, out
        s_add_u32 s60, s60, {(1<<21) - 64}
        s_load_dword s77, s[20:21], s60
        s_mul_i32 s60, s4, {512*896}
        s_load_dword s78, s[24:25], s60
        s_add_u32 s60, s60, {512*896 - 64}
        s_load_dword s79, s[24:25], s60
        s_load_dword s80, s[32:33], 0
        s_mov_b32 s60, {1792*896 - 64}
        s_load_dword s81, s[32:33], s60
        s_load_dword s82, s[34:35], 0
        ''')
    if stamps: A('v_mov_b32 v164, 0\nv_mov_b32 v165, 0\ns_memtime s[94:95]\ns_memrealtime s[96:97]')
    A(f'''
    s_mov_b64 s[40:41], s[38:39]
    s_mov_b32 s42, {WSN}
    s_mov_b32 s43, 0x20000
    s_mul_i32 s67, s56, 12288
    s_add_u32 s67, s67, {QP}
    s_mul_i32 s64, s6, 7
    s_add_u32 s64, s64, s5                   ; 7b + j
    s_lshl_b32 s7, s56, 9
    s_add_u32 s7, s7, {ST}
    ''')
    if hpre:
        A('v_lshlrev_b32 v8, 7, v0')
        if hpre in (2, 3):
            A(f'''
            s_cmp_lg_u32 s5, 7
            s_cbranch_scc1 L_nopre
            s_mov_b64 exec, 3
            buffer_load_dword v166, v8, s[40:43], s7 offen{pref}
            L_nopre:
            ''')
        A('s_mov_b64 exec, -1')
    XB = 128
    A(f'''
    v_lshrrev_b32 v1, 4, v0                  ; g
    v_and_b32 v2, 15, v0
    v_and_b32 v3, 3, v0
    v_mul_u32_u24 v3, 896, v3
    v_add_u32 v3, {XN}, v3                   ; row of batch l%4
    v_lshl_add_u32 v4, v1, 3, v3             ; + g*8
    v_and_b32 v5, 60, v0
    v_lshl_add_u32 v3, v5, 1, v3             ; + (l/4)*8
    s_and_b32 s60, s5, 3
    s_and_b32 s61, s5, 1
    s_lshl_b32 s65, s61, 11                  ; wq role: half * 2048
    s_bfe_u32 s59, s2, 0x30004
    s_lshl_b32 s59, s59, 8
    s_add_u32 s65, s65, s59                  ;   + block * 256
    s_lshl_b32 s63, s60, 11
    s_bfe_u32 s59, s2, 0x20005
    s_lshl_b32 s59, s59, 9
    s_add_u32 s63, s63, s59                  ;   + block * 512
    s_add_u32 s63, s63, 4096
    s_lshl_b32 s61, s61, 1
    s_cmp_lt_u32 s6, 2
    s_cselect_b32 s60, s61, s60
    s_cselect_b32 s61, 224, 0
    s_cselect_b32 s65, s65, s63
    s_mul_i32 s60, s60, 224
    v_add_u32 v4, s60, v4
    v_add_u32 v5, s61, v4
    s_mul_i32 s60, s4, 12288
    s_add_u32 s65, s65, s60
    s_add_u32 s65, s65, {QP}
    v_lshrrev_b32 v7, 2, v0
    v_lshlrev_b32 v7, 7, v7
    v_bfe_u32 v6, v0, 3, 2
    v_lshl_add_u32 v7, v6, 5, v7
    v_and_b32 v6, 3, v0
    v_lshl_add_u32 v7, v6, 3, v7
    v_add_u32 v156, {AREA}, v7
    v_xor_b32 v157, 32, v156
    v_xor_b32 v158, 64, v156
    v_xor_b32 v159, 0x60, v156
    s_mov_b64 s[8:9], 0xffff
    s_lshl_b64 s[10:11], s[8:9], 16
    s_lshl_b64 s[12:13], s[8:9], 32
    v_mov_b32 v30, 1
    v_lshlrev_b32 v29, 3, v0                 ; lane*8
    v_lshlrev_b32 v7, 4, v0                  ; lane*16
    v_lshlrev_b32 v6, 2, v0                  ; lane*4
    s_min_u32 s60, s64, 27
    s_lshl_b32 s60, s60, 7
    v_lshl_add_u32 v162, v0, 1, s60
    v_add_u32 v163, {XN}, v162
    v_and_b32 v160, 7, v0
    v_lshlrev_b32 v160, 2, v160
    v_add_u32 v160, s66, v160
    s_mul_i32 s46, s57, 0x01010101
    {'v_mov_b32 v161, s46' if noxc else 'global_load_dword v161, v160, s[36:37] sc1'}
    s_barrier
    ''')
    hstamp(0)
    cntwait(CNT0, 'L_w0', 1)
    hstamp(1)
    def wreads(s_):
        for hs_ in range(7):
            for T in range(4):
                d = WF + 14*T + 2*hs_
                A(f'ds_read_b64_tr_b16 v[{d}:{d+1}], v{156+T} offset:{s_*14336 + hs_*2048}')
    for u in range(7):
        A(f'ds_read_b64 v[{XR+2*u}:{XR+2*u+1}], v3 offset:{128*u}')
    A('ds_read_u16 v163, v163                   ; residual x')
    wreads(0)
    A(f'''
    s_mul_i32 s62, s62, 1664525
    s_add_u32 s62, s62, 1013904223
    v_mov_b32 v28, s62
    s_movk_i32 s47, 0xff
    s_waitcnt lgkmcnt(15)
    ''')
    for u in range(14):
        A(f'v_lshlrev_b32 v{XF+2*u}, 16, v{XR+u}')
        A(f'v_and_b32 v{XF+2*u+1}, 0xffff0000, v{XR+u}')
    def allsum(r):
        A(f'''
        v_add_f32_dpp v{r}, v{r}, v{r} row_ror:4 row_mask:0xf bank_mask:0xf
        v_add_f32_dpp v{r}, v{r}, v{r} row_ror:8 row_mask:0xf bank_mask:0xf
        v_mov_b32 v23, v{r}
        v_permlane16_swap_b32 v{r}, v23
        v_add_f32 v{r}, v{r}, v23
        v_mov_b32 v23, v{r}
        v_permlane32_swap_b32 v{r}, v23
        v_add_f32 v{r}, v{r}, v23
        ''')
    A(f'v_pk_add_f32 v[22:23], v[{XF}:{XF+1}], v[{XF+2}:{XF+3}]')
    A(f'v_pk_add_f32 v[26:27], v[{XF+4}:{XF+5}], v[{XF+6}:{XF+7}]')
    for u in range(4, 14, 2):
        A(f'v_pk_add_f32 v[22:23], v[22:23], v[{XF+2*u}:{XF+2*u+1}]')
        A(f'v_pk_add_f32 v[26:27], v[26:27], v[{XF+2*u+2}:{XF+2*u+3}]')
    A('v_pk_add_f32 v[22:23], v[22:23], v[26:27]')
    A('v_add_f32 v22, v22, v23')
    allsum(22)
    A(f'''
    v_mul_f32 v22, {f32(1/448)}, v22           ; mean
    v_cvt_pk_bf16_f32 v24, v22, v22
    v_and_b32 v24, 0xffff0000, v24           ; bf16(mean)
    v_sub_f32 v22, v22, v24
    ''')
    for u in range(14):
        A(f'v_pk_add_f32 v[{XF+2*u}:{XF+2*u+1}], v[{XF+2*u}:{XF+2*u+1}], v[24:25] op_sel_hi:[1,0] neg_lo:[0,1] neg_hi:[0,1]')
    A(f'v_pk_mul_f32 v[26:27], v[{XF}:{XF+1}], v[{XF}:{XF+1}]')
    A(f'v_pk_mul_f32 v[24:25], v[{XF+2}:{XF+3}], v[{XF+2}:{XF+3}]')
    for u in range(2, 14, 2):
        A(f'v_pk_fma_f32 v[26:27], v[{XF+2*u}:{XF+2*u+1}], v[{XF+2*u}:{XF+2*u+1}], v[26:27]')
        A(f'v_pk_fma_f32 v[24:25], v[{XF+2*u+2}:{XF+2*u+3}], v[{XF+2*u+2}:{XF+2*u+3}], v[24:25]')
    A('v_pk_add_f32 v[26:27], v[26:27], v[24:25]')
    A('v_add_f32 v26, v26, v27')
    for u in range(14):
        A(f'v_cvt_pk_bf16_f32 v{XR+u}, v{XF+2*u}, v{XF+2*u+1}')
    allsum(26)
    A(f'''
    v_mul_f32 v26, {f32(1/448)}, v26
    v_fma_f32 v26, -v22, v22, v26            ; var
    v_max_f32 v26, 0, v26
    v_cvt_pk_bf16_f32 v26, v26, v26
    v_and_b32 v26, 0xffff0000, v26           ; bf16(var)
    v_add_f32 v26, {f32(1e-5)}, v26
    v_cvt_pk_bf16_f32 v26, v26, v26
    v_and_b32 v26, 0xffff0000, v26
    v_sqrt_f32 v26, v26
    v_cvt_pk_bf16_f32 v26, v26, v26
    v_and_b32 v26, 0xffff0000, v26
    v_rcp_f32 v26, v26
    ''')
    for u in range(14):
        A(f'v_lshlrev_b32 v{XF+2*u}, 16, v{XR+u}')
        A(f'v_and_b32 v{XF+2*u+1}, 0xffff0000, v{XR+u}')
    for u in range(14):
        A(f'v_pk_mul_f32 v[{XF+2*u}:{XF+2*u+1}], v[{XF+2*u}:{XF+2*u+1}], v[26:27] op_sel_hi:[1,0]')
    for u in range(14):
        A(f'v_cvt_pk_bf16_f32 v{XR+u}, v{XF+2*u}, v{XF+2*u+1}')
    for u in range(7):
        A(f'ds_write_b64 v3, v[{XR+2*u}:{XR+2*u+1}] offset:{128*u}')
    for s_ in range(2):
        for ks in range(3):
            A(f'ds_read2_b64 v[{XB+14*s_+4*ks}:{XB+14*s_+4*ks+3}], v{4+s_} offset0:{8*ks} offset1:{8*ks+4}')
        A(f'ds_read_b64 v[{XB+14*s_+12}:{XB+14*s_+13}], v{4+s_} offset:192')
    def mm(s_):
        for ks in range(4):
            for T in range(4):
                acc = 32 + 16*s_ + 4*T
                xa = XB + 14*s_ + 4*ks; bb = WF + 14*T + 4*ks
                c = '0' if ks == 0 else f'v[{acc}:{acc+3}]'
                if ks < 3: A(f'v_mfma_f32_16x16x32_bf16 v[{acc}:{acc+3}], v[{xa}:{xa+3}], v[{bb}:{bb+3}], {c}')
                else: A(f'v_mfma_f32_16x16x16_bf16 v[{acc}:{acc+3}], v[{xa}:{xa+1}], v[{bb}:{bb+1}], {c}')
    hstamp(2)
    A('s_waitcnt lgkmcnt(0)')
    mm(0)
    wreads(1)
    A(f'''
    s_mov_b32 s58, {0 if forceslow else 1}
    s_movk_i32 s63, {xtries}
    L_xc:
    s_waitcnt vmcnt(0)
    v_cmp_ne_u32 vcc, s46, v161
    s_cbranch_vccz L_xc_done
    global_load_dword v161, v160, s[36:37] sc1
    s_sub_u32 s63, s63, 1
    s_cbranch_scc0 L_xc
    s_mov_b32 s58, 0
    L_xc_done:
    s_waitcnt lgkmcnt(0)
    ''')
    mm(1)
    A(f'''
    s_add_u32 s60, s65, {8*12288}
    s_add_u32 s61, s65, {16*12288}
    s_add_u32 s63, s65, {24*12288}
    v_lshlrev_b32 v163, 16, v163
    v_and_b32 v16, 24, v29
    v_lshrrev_b32 v16, v16, v28
    v_and_b32 v17, 16, v7
    v_lshrrev_b32 v17, v17, v28
    v_lshrrev_b32 v18, 8, v17
    {'v_mov_b32 v167, v16' if p2t else ''}
    s_lshr_b32 s48, s62, 8
    s_lshr_b32 s49, s62, 16
    s_lshr_b32 s50, s62, 24
    s_movk_i32 s51, 0xff00
    ''')
    for s_ in range(2):
        a_ = 32 + 16*s_
        for r in range(4):
            A(f'v_cndmask_b32 v{a_+12+r}, v{a_+12+r}, v{a_+8+r}, s[12:13]')
        for r in range(4):
            A(f'v_cndmask_b32 v{a_+12+r}, v{a_+12+r}, v{a_+4+r}, s[10:11]')
        for r in range(4):
            A(f'v_cndmask_b32 v{8+2*r+s_}, v{a_+12+r}, v{a_+r}, s[8:9]')
    so4 = ('s65', 's60', 's61', 's63')
    A('s_cmp_lt_u32 s6, 2')
    A('s_cbranch_scc1 L_pubq')
    for r in range(8):
        A(f'v_bfi_b32 v{8+r}, s47, v{17 + (r & 1)}, v{8+r}')
    store2([f'buffer_store_dwordx2 v[{8+2*r}:{9+2*r}], v29, s[40:43], {so4[r]} offen' for r in range(4)])
    A('s_branch L_pubd')
    A('L_pubq:')
    for r in range(4):
        A(f'v_add_f32 v{8+2*r}, v{8+2*r}, v{9+2*r}')
    for r in range(4):
        A(f'v_bfi_b32 v{8+2*r}, s47, v16, v{8+2*r}')
    store2([f'buffer_store_dword v{8+2*r}, v6, s[40:43], {so4[r]} offen' for r in range(4)])
    A('L_pubd:')
    if qclean:
        for r in range(8): A(f'v_mov_b32 v{120+r}, v{8+r}')
        A('s_mov_b32 s76, s65\ns_mov_b32 s77, s60\ns_mov_b32 s78, s61\ns_mov_b32 s79, s63')
    hstamp(3)
    def gather(lab, n, soffs):
        f_ = first[0 if lab == 'L_gq' else 1]
        A(f's_mov_b32 s63, {SPIN}')
        if f_ == 2: A('s_waitcnt vmcnt(0)')
        if f_ != 1: A(f's_branch {lab}_go')
        A(f'{lab}:\ns_sleep {psleep}\n{lab}_go:')
        for k in range(n):
            A(f'buffer_load_dwordx4 v[{32+4*k}:{35+4*k}], v7, s[40:43], {soffs[k>>2]} offen offset:{(k&3)*1024}{pollf}')
        A(f'''
        s_sub_u32 s63, s63, 1
        s_waitcnt vmcnt(0)
        s_cbranch_scc1 {lab}_done
        v_xor_b32 v24, s62, v32
        v_xor_b32 v25, s48, v33
        ''')
        for r in range(34, 32 + 4*n, 2):
            A(f'v_bitop3_b32 v24, v{r}, {"s49" if r & 2 else "s62"}, v24 bitop3:0xbe')
            A(f'v_bitop3_b32 v25, v{r+1}, {"s50" if r & 2 else "s48"}, v25 bitop3:0xbe')
        A(f'''
        v_or_b32 v24, v24, v25
        v_and_b32 v24, s47, v24
        v_cmp_ne_u32 vcc, 0, v24
        s_cbranch_vccnz {lab}
        {lab}_done:
        ''')
        for r in range(32, 32 + 4*n):
            A(f'v_and_b32 v{r}, s51, v{r}')
    gather('L_gq', 4, ['s67'])
    A(f'''
    v_pk_add_f32 v[32:33], v[32:33], v[40:41]
    v_pk_add_f32 v[34:35], v[34:35], v[42:43]
    v_pk_add_f32 v[36:37], v[36:37], v[44:45]
    v_pk_add_f32 v[38:39], v[38:39], v[46:47]
    v_add_u32 v24, {QL}, v29
    v_cvt_pk_bf16_f32 v8, v32, v33
    v_cvt_pk_bf16_f32 v9, v34, v35
    v_cvt_pk_bf16_f32 v10, v36, v37
    v_cvt_pk_bf16_f32 v11, v38, v39
    ds_write_b64 v24, v[8:9]
    ds_write_b64 v24, v[10:11] offset:512
    ds_write_b32 v31, v30 offset:{FLQ-MISC}
    v_mov_b32 v27, v28
    ''')
    hstamp(6)
    A('s_add_u32 s60, s67, 4096\ns_add_u32 s61, s67, 8192')
    gather('L_gh', 8, ['s60', 's61'])
    for k in range(4):
        A(f'v_pk_add_f32 v[{32+2*k}:{33+2*k}], v[{32+2*k}:{33+2*k}], v[{40+2*k}:{41+2*k}]')
        A(f'v_pk_add_f32 v[{48+2*k}:{49+2*k}], v[{48+2*k}:{49+2*k}], v[{56+2*k}:{57+2*k}]')
    for k in range(4):
        A(f'v_pk_add_f32 v[{32+2*k}:{33+2*k}], v[{32+2*k}:{33+2*k}], v[{48+2*k}:{49+2*k}]')
    for k in range(4):
        A(f'v_cvt_pk_bf16_f32 v{33+2*k}, v{32+2*k}, v{33+2*k}')
        A(f'v_lshlrev_b32 v{32+2*k}, 16, v{33+2*k}')
        A(f'v_and_b32 v{33+2*k}, 0xffff0000, v{33+2*k}')
        A(f'v_max_f32 v{32+2*k}, 0, v{32+2*k}')
        A(f'v_mul_f32 v{32+2*k}, v{32+2*k}, v{33+2*k}')
    A(f'''
    v_cvt_pk_bf16_f32 v8, v32, v34
    v_cvt_pk_bf16_f32 v9, v36, v38
    v_add_u32 v24, {HL}, v6
    ds_write2st64_b32 v24, v8, v9 offset0:0 offset1:1
    ''')
    hstamp(5)
    if gov:
        A(f'''
        s_lshr_b32 s60, s2, 3
        s_lshl_b32 s60, s60, 7
        s_add_u32 s60, s60, {TK2}
        s_add_u32 s32, s38, s60
        s_addc_u32 s33, s39, 0
        v_mov_b32 v56, s60
        v_not_b32 v57, v28
        s_mov_b64 exec, 1
        buffer_store_byte v57, v56, s[40:43], s4 offen sc1
        s_mov_b64 exec, -1
        s_lshl_b32 s60, s4, 3
        s_lshl_b64 s[30:31], 0xff, s60
        ''')
    A(f'''
    v_mov_b32 v32, -1
    v_mov_b32 v33, -1
    v_mov_b32 v34, -1
    v_mov_b32 v35, -1
    s_cmp_eq_u32 s5, 7
    s_cbranch_scc1 L_notk
    s_lshl3_add_u32 s60, s64, s4
    s_lshl_b32 s60, s60, 8
    s_add_u32 s60, s60, {P2}
    {'buffer_store_dword v32, v6, s[40:43], s60 offen sc1        ; my output partial := empty' if not p2t else ('buffer_load_dword v166, v6, s[40:43], s60 offen' if p2t == 1 else '')}
    s_cmp_lg_u32 s4, 0
    s_cbranch_scc1 L_notk
    s_lshl_b32 s60, s64, 7
    s_add_u32 s60, s60, {TK}
    v_mov_b32 v26, 0
    s_mov_b64 exec, 1
    buffer_store_dwordx2 v[26:27], v6, s[40:43], s60 offen sc1
    s_mov_b64 exec, -1
    L_notk:
    s_lshl3_add_u32 s60, s56, s5
    s_lshl_b32 s60, s60, 10
    s_add_u32 s60, s60, {P1}
    ''')
    store2(['buffer_store_dwordx4 v[32:35], v7, s[40:43], s60 offen'])
    A('s_waitcnt vmcnt(0)')
    cntwait(CNT, 'L_wc', 4, govn if gov else 8)
    if gov:
        tbl = sum(n << (4*(k+1)) for k, n in enumerate(gov))
        A(f'''
        s_atomic_xor_x2 s[30:31], s[32:33], 0 glc
        s_and_b32 s60, s62, 0xff
        s_mul_i32 s26, s60, 0x01010101
        s_mov_b32 s27, s26
        s_mov_b32 s28, {tbl & 0xffffffff}
        s_mov_b32 s29, {tbl >> 32}
        s_waitcnt lgkmcnt(0)
        s_xor_b64 s[30:31], s[30:31], s[26:27]
        s_bcnt1_i32_b64 s60, s[30:31]
        s_lshr_b32 s60, s60, 3
        s_lshl_b32 s60, s60, 2
        s_lshr_b64 s[28:29], s[28:29], s60
        s_and_b32 s60, s28, 15
        v_mov_b32 v9, s60
        ds_write_b32 v31, v9 offset:{THR-MISC}
        ''')
        cntwait(CNT, 'L_wc2', 4)
    hstamp(7)
    A(f'''
    ; workgroup stats from the 8 waves (lane = h*8+w)
    v_lshlrev_b32 v8, 3, v2
    v_add_u32 v8, {STW}, v8
    ds_read_b64 v[4:5], v8
    s_lshl4_add_u32 s61, s5, s7
    v_mov_b32 v25, v28
    s_waitcnt lgkmcnt(0)
    v_max_f32_dpp v24, v4, v4 quad_perm:[1,0,3,2] row_mask:0xf bank_mask:0xf
    v_max_f32_dpp v24, v24, v24 quad_perm:[2,3,0,1] row_mask:0xf bank_mask:0xf
    v_max_f32_dpp v24, v24, v24 row_half_mirror row_mask:0xf bank_mask:0xf
    v_sub_f32 v26, v4, v24
    v_mul_f32 v26, {CEXP}, v26
    v_exp_f32 v26, v26
    v_mul_f32 v26, v26, v5
    v_add_f32_dpp v26, v26, v26 quad_perm:[1,0,3,2] row_mask:0xf bank_mask:0xf
    v_add_f32_dpp v26, v26, v26 quad_perm:[2,3,0,1] row_mask:0xf bank_mask:0xf
    v_add_f32_dpp v26, v26, v26 row_half_mirror row_mask:0xf bank_mask:0xf
    s_mov_b64 exec, 0x101
    ''')
    store2([f'buffer_store_dwordx4 v[24:27], v7, s[40:43], s61 offen'])
    A(f'''
    s_mov_b64 exec, 0xffff
    s_mov_b32 s63, {SPIN}
    {'' if first[2] else 's_branch L_polls_go'}
    L_polls:
    s_sleep {psleep}
    L_polls_go:
    buffer_load_dwordx4 v[16:19], v7, s[40:43], s7 offen{pollf}
    s_sub_u32 s63, s63, 1
    s_waitcnt vmcnt(0)
    s_cbranch_scc1 L_polls_done
    v_min3_u32 v10, v17, v19, v28
    v_max3_u32 v11, v17, v19, v28
    v_cmp_ne_u32 vcc, v10, v11
    s_cbranch_vccnz L_polls
    L_polls_done:
    ''')
    hstamp(8)
    A(f'''
    v_max_f32_dpp v10, v16, v16 quad_perm:[1,0,3,2] row_mask:0xf bank_mask:0xf
    v_max_f32_dpp v10, v10, v10 quad_perm:[2,3,0,1] row_mask:0xf bank_mask:0xf
    v_max_f32_dpp v10, v10, v10 row_half_mirror row_mask:0xf bank_mask:0xf
    v_sub_f32 v11, v16, v10
    v_sub_f32 v10, v4, v10
    v_mul_f32 v11, {CEXP}, v11
    v_mul_f32 v10, {CEXP}, v10
    v_exp_f32 v11, v11
    v_exp_f32 v10, v10
    v_mul_f32 v11, v11, v18
    v_add_f32_dpp v11, v11, v11 quad_perm:[1,0,3,2] row_mask:0xf bank_mask:0xf
    v_add_f32_dpp v11, v11, v11 quad_perm:[2,3,0,1] row_mask:0xf bank_mask:0xf
    v_add_f32_dpp v11, v11, v11 row_half_mirror row_mask:0xf bank_mask:0xf
    v_rcp_f32 v11, v11
    v_mul_f32 v10, v10, v11                  ; factor for (wave = lane&7, head = lane>>3)
    v_and_b32 v9, 56, v29
    v_lshrrev_b32 v8, 1, v0
    v_and_b32 v8, 4, v8
    v_add3_u32 v9, v9, v8, v31
    v_subrev_u32 v9, {MISC-FACW}, v9
    ds_write_b32 v9, v10
    s_mov_b64 exec, -1
    v_mov_b32 v24, 1
    v_mov_b32 v25, s58
    v_mov_b32 v26, v28
    ds_write_b128 v31, v[24:27] offset:{FLF-MISC}
    ''')
    if qclean:
        A('s_cmp_lt_u32 s6, 2\ns_cbranch_scc1 L_cq')
        for r in range(4): A(f'buffer_store_dwordx2 v[{120+2*r}:{121+2*r}], v29, s[40:43], s{76+r} offen sc1')
        A('s_branch L_cd\nL_cq:')
        for r in range(4): A(f'buffer_store_dword v{120+2*r}, v6, s[40:43], s{76+r} offen sc1')
        A('L_cd:')
    A(f'''
    s_cmp_eq_u32 s5, 7
    s_waitcnt lgkmcnt(0)
    {'' if early else 's_cbranch_scc1 ' + ('L_end' if pad else 'L_hdone')}
    ''')
    if dirty:
        A(f's_lshl_b32 s60, s2, 14\ns_add_u32 s60, s60, 0x400000\ns_mov_b32 s42, 0x1000000')
        for k in range(dirty):
            A(f'buffer_store_dwordx4 v[24:27], v7, s[40:43], s60 offen\ns_add_u32 s60, s60, 1024')
    if wb:
        A(f's_cmp_ge_u32 s2, {8*wb}\ns_cbranch_scc1 L_nowb\nbuffer_wbl2 sc1\ns_waitcnt vmcnt(0)\nL_nowb:')
    A(f'''
    v_mov_b32 v4, v162
    {'v_and_b32 v167, s47, v167' if p2t else ''}
    v_mov_b32 v5, v163
    s_mov_b64 s[52:53], s[34:35]
    s_movk_i32 s54, 3584
    s_mov_b32 s55, 0x20000
    s_lshl_b32 s60, s64, {11 if p2b else 12}
    s_add_u32 s60, s60, {P2}
    v_add_u32 v6, s60, {'v6' if p2b else 'v29'}
    v_lshlrev_b32 v7, 2, v0
    v_add_u32 v7, {YL}, v7
    ''')
    for i in range(1, 8):
        A(f's_xor_b32 s{18+i}, s4, {i}')
        A(f's_lshl_b32 s{18+i}, s{18+i}, {8 if p2b else 9}')
    A(f'''
    s_lshl_b32 s60, s56, 13
    s_add_u32 s60, s60, {P1 + 8192 - 128}
    v_lshl_add_u32 v57, v0, 3, s60           ; last line of the group's O hand-off
    s_lshl_b32 s60, s64, 7
    s_add_u32 s60, s60, {TK}
    s_add_u32 s32, s38, s60
    s_addc_u32 s33, s39, 0
    s_mov_b32 s63, {SPIN}
    L_tkw:
    s_load_dwordx2 s[28:29], s[32:33], 0 glc
    s_sub_u32 s63, s63, 1
    s_waitcnt lgkmcnt(0)
    s_cbranch_scc1 L_tkw_done
    s_cmp_eq_u32 s29, s62
    s_cbranch_scc1 L_tkw_done
    s_sleep {psleep}
    s_branch L_tkw
    L_tkw_done:
    s_mov_b32 s30, 1
    s_mov_b32 s63, {SPIN}
    s_mov_b64 exec, 0xffff
    s_barrier                               ; #4
    ''')
    hstamp(9)
    def trigpoll(done):
        A(f'''
        buffer_load_dword v61, v57, s[40:43], 0 offen sc1
        s_waitcnt vmcnt(0)
        v_cmp_eq_u32 vcc, -1, v61
        s_cbranch_vccz {done}
        ''')
    A('L_trig:')
    if peek:
        A('s_load_dword s28, s[32:33], 0 glc')
        for k in range(peek + 1): trigpoll('L_trig_done')
        A('s_waitcnt lgkmcnt(0)\ns_cmp_eq_u32 s28, 7\ns_cbranch_scc1 L_sure')
    else:
        trigpoll('L_trig_done')
    A(f'''
    s_sub_u32 s63, s63, 1
    s_cbranch_scc0 L_trig
    L_trig_done:
    s_atomic_add s30, s[32:33], 0 glc
    s_mov_b64 exec, -1
    L_b5:
    ''')
    hstamp(10)
    A(f'''
    s_barrier                               ; #5
    ds_read2st64_b32 v[48:49], v7 offset0:0 offset1:1
    ds_read2st64_b32 v[50:51], v7 offset0:2 offset1:3
    ds_read2st64_b32 v[52:53], v7 offset0:4 offset1:5
    ds_read2st64_b32 v[54:55], v7 offset0:6 offset1:7
    s_mov_b32 s63, {SPIN}
    s_waitcnt lgkmcnt(0)
    s_cmp_lt_u32 s30, 7
    s_cbranch_scc1 L_hdone
    ''')
    hstamp(13)
    A(f'''
    {'s_cmp_eq_u32 s30, 8' if peek else ''}
    {'s_cbranch_scc1 L_adds' if peek else ''}
    buffer_load_dword v34, v6, s[40:43], s19 offen sc1
    buffer_load_dword v36, v6, s[40:43], s20 offen sc1
    buffer_load_dword v38, v6, s[40:43], s21 offen sc1
    buffer_load_dword v40, v6, s[40:43], s22 offen sc1
    buffer_load_dword v42, v6, s[40:43], s23 offen sc1
    buffer_load_dword v44, v6, s[40:43], s24 offen sc1
    buffer_load_dword v46, v6, s[40:43], s25 offen sc1
    L_adds:
    v_add_f32 v48, v48, v49
    v_add_f32 v50, v50, v51
    v_add_f32 v52, v52, v53
    v_add_f32 v54, v54, v55
    v_add_f32 v48, v48, v50
    v_add_f32 v52, v52, v54
    v_add_f32 v26, v48, v52
    {'v_and_b32 v26, s51, v26' if p2t else ''}
    L_fchk:
    s_sub_u32 s63, s63, 1
    s_waitcnt vmcnt(0)
    s_cbranch_scc1 L_fsum
    ''')
    if p2t:
        for i in range(1, 8): A(f'v_xor_b32 v{32+2*i}, v167, v{32+2*i}')
        A('''
        v_or3_b32 v12, v34, v36, v38
        v_or3_b32 v13, v40, v42, v44
        v_or3_b32 v12, v12, v13, v46
        v_and_b32 v12, s47, v12
        v_cmp_ne_u32 vcc, 0, v12
        ''')
    else:
        A('''
        v_max3_u32 v12, v34, v36, v38
        v_max3_u32 v13, v40, v42, v44
        v_max3_u32 v12, v12, v13, v46
        v_cmp_eq_u32 vcc, -1, v12
        ''')
    A(f'''
    s_cbranch_vccnz L_fpoll
    L_fsum:
    v_add_f32 v34, v34, v26                  ; slots hkv^i: the tree is the same for every finisher
    v_add_f32 v36, v36, v38
    v_add_f32 v40, v40, v42
    v_add_f32 v44, v44, v46
    v_add_f32 v34, v34, v36
    v_add_f32 v40, v40, v44
    L_finish:
    v_add_f32 v34, v34, v40
    v_add_f32 v34, v34, v5
    v_cvt_pk_bf16_f32 v34, v34, v34
    buffer_store_short v34, v4, s[52:55], 0 offen{outf}
    ''')
    hstamp(11)
    if stamps and 14 in hl:
        A(f's_sub_u32 s60, {SPIN}, s63\ns_mul_i32 s60, s60, 100\ns_add_u32 s60, s68, s60\ns_addc_u32 s61, s69, 0\nv_writelane_b32 v164, s60, 14\nv_writelane_b32 v165, s61, 14')
    A(f'''
    s_cmp_lg_u32 s64, 21
    s_cbranch_scc1 L_hdone
    s_mov_b64 exec, 1
    v_mov_b32 v1, {EPOCH}
    buffer_store_dword v28, v1, s[40:43], 0 offen
    L_hdone:
    ''')
    if padat == 'hz': A('s_waitcnt vmcnt(0)\ns_memrealtime s[100:101]\ns_waitcnt lgkmcnt(0)')
    if pad and padat[0] == 'h': dopad('L_padh')
    if stamps:
        A('s_waitcnt vmcnt(0)')
        hstamp(12)
        A('''
        s_memtime s[92:93]
        s_waitcnt lgkmcnt(0)
        s_sub_u32 s92, s92, s94
        s_sub_u32 s93, s100, s96
        v_cvt_f32_u32 v1, s92
        v_cvt_f32_u32 v2, s93
        v_rcp_f32 v2, v2
        v_mul_f32 v1, v1, v2
        v_mul_f32 v1, 0x42c80000, v1
        v_cvt_u32_f32 v1, v1
        v_readfirstlane_b32 s92, v1
        s_add_u32 s92, s92, s68
        s_addc_u32 s93, s69, 0
        v_writelane_b32 v164, s92, 15
        v_writelane_b32 v165, s93, 15
        ''')
        A(f'''
        s_mov_b64 exec, 0xffff
        s_lshl_b32 s60, s2, 9
        s_add_u32 s60, s60, {STAMPS+256}
        buffer_store_dwordx2 v[164:165], v29, s[40:43], s60 offen
        ''')
    A(f'''
    L_end:
    s_endpgm
    L_fpoll:
    buffer_load_dword v34, v6, s[40:43], s19 offen sc1
    buffer_load_dword v36, v6, s[40:43], s20 offen sc1
    buffer_load_dword v38, v6, s[40:43], s21 offen sc1
    buffer_load_dword v40, v6, s[40:43], s22 offen sc1
    buffer_load_dword v42, v6, s[40:43], s23 offen sc1
    buffer_load_dword v44, v6, s[40:43], s24 offen sc1
    buffer_load_dword v46, v6, s[40:43], s25 offen sc1
    s_branch L_fchk
    ''')
    if peek:
        A(f'''
    L_sure:                                 ; the seven others have arrived already
    ds_write_b32 v31, v30 offset:{NOPUB-MISC}
    s_mov_b32 s30, 8
    L_trig2:
    ''')
        trigpoll('L_trig2_done')
        A(f'''
    s_sub_u32 s63, s63, 1
    s_cbranch_scc0 L_trig2
    L_trig2_done:
    s_mov_b64 exec, -1
    buffer_load_dword v34, v6, s[40:43], s19 offen sc1
    buffer_load_dword v36, v6, s[40:43], s20 offen sc1
    buffer_load_dword v38, v6, s[40:43], s21 offen sc1
    buffer_load_dword v40, v6, s[40:43], s22 offen sc1
    buffer_load_dword v42, v6, s[40:43], s23 offen sc1
    buffer_load_dword v44, v6, s[40:43], s24 offen sc1
    buffer_load_dword v46, v6, s[40:43], s25 offen sc1
    s_waitcnt lgkmcnt(0)
    s_branch L_b5
    ''')
    ZW[0] = True
    A(f'''
    L_stream:
    {'' if bark else 's_barrier                               ; flags zeroed'}
    s_add_u32 s12, s20, s57
    s_addc_u32 s13, s21, 0
    s_mov_b64 s[14:15], s[10:11]
    s_mov_b64 s[40:41], s[38:39]
    s_mov_b32 s42, {WSN}
    s_mov_b32 s43, s11
    v_mov_b32 v26, {MISC}
    ''')
    if fastmask:
        A(f'''
        s_getreg_b32 s60, hwreg(HW_REG_XCC_ID, 0, 3)
        s_bitcmp1_b32 {fastmask}, s60
        s_cselect_b64 vcc, -1, 0
        {'s_cmp_eq_u32 s4, 7' if fast7 else ''}
        {'s_cselect_b64 vcc, -1, vcc' if fast7 else ''}
        {'s_cmp_eq_u32 s5, 7' if fast7 == 2 else ''}
        {'s_cselect_b64 vcc, -1, vcc' if fast7 == 2 else ''}
        ''')
        vm.d = dthr
    if kfirst == 1: hb('K0', 0, k0thr)
    if kfirst == 2: ha('K1', 1, k0thr)
    A(f'''
    s_mov_b64 s[52:53], s[24:25]
    s_mov_b64 s[48:49], s[32:33]
    s_mov_b32 s51, s11
    s_mov_b32 s55, s11
    s_cmp_lt_u32 s5, 7
    s_cselect_b32 s54, {Z(4096*896)}, 0
    s_cselect_b32 s61, s5, 0
    s_lshl_b32 s61, s61, 7
    s_lshl4_add_u32 s64, s4, s3
    s_mul_i32 s64, s64, {32*896}
    s_add_u32 s64, s64, s61
    s_lshl3_add_u32 s65, s4, s3
    s_mul_i32 s65, s65, {32*896}
    s_add_u32 s65, s65, s61
    s_cmp_lt_u32 s7, 7
    s_cselect_b32 s50, {Z(1792*896)}, 0
    s_cselect_b32 s65, s65, 0
    v_and_b32 v1, 15, v0                     ; row
    v_lshrrev_b32 v2, 4, v0                  ; g
    v_and_b32 v3, 7, v0
    v_lshlrev_b32 v3, 1, v3
    v_xor_b32 v3, v3, v2
    v_lshlrev_b32 v3, 4, v3
    v_lshl_add_u32 v3, v1, 9, v3
    v_add_u32 v8, s59, v3
    v_xor_b32 v9, 64, v8
    v_xor_b32 v10, 0x80, v8
    v_xor_b32 v11, 0xc0, v8
    ''')
    def readK(dst, slot):
        for t in range(8):
            A(f'ds_read_b128 v[{dst+4*t}:{dst+4*t+3}], v{vKA[t&3]} offset:{slot*8192 + (t>>2)*256}')
    def readQ(dst, ts):
        for n, t in enumerate(ts):
            A(f'ds_read_b128 v[{dst+4*n}:{dst+4*n+3}], v24 offset:{t*64}')
    def qk(tile, src, qf, ts=range(8)):
        for n, t in enumerate(ts):
            c = '0' if t == 0 else f'v[{Sx+4*tile}:{Sx+4*tile+3}]'
            A(f'v_mfma_f32_16x16x32_bf16 v[{Sx+4*tile}:{Sx+4*tile+3}], v[{src+4*t}:{src+4*t+3}], v[{qf+4*n}:{qf+4*n+3}], {c}')
    def flagwait(off, lab):
        if nohelp:
            A(f'{lab}_done:')
            return
        A(f'''
        s_mov_b32 s61, {SPIN*8}
        {lab}:
        ds_read_b32 v1, v26 offset:{off-MISC}
        s_sub_u32 s61, s61, 1
        s_waitcnt lgkmcnt(0)
        s_cbranch_scc1 {lab}_done
        v_readfirstlane_b32 s67, v1
        s_cmp_lg_u32 s67, 0
        s_cbranch_scc1 {lab}_done
        s_sleep 1
        s_branch {lab}
        {lab}_done:
        ''')
    if bark: A('s_barrier')
    vm.wait('small')
    A(f'''
    s_mov_b64 exec, 1
    ds_add_u32 v26, v28 offset:{CNT0-MISC}
    s_mov_b64 exec, -1
    ''')
    stamp(2)
    if not (kfirst or xlast == 2): hb('K0', 0)
    if kfirst != 2: ha('K1', 1)
    if kfirst != 2: vm.wait('K0')
    readK(KfA, 0)
    A(f'''
    v_lshrrev_b32 v21, 2, v0                 ; row = l/4
    v_and_b32 v22, 7, v21
    v_lshlrev_b32 v22, 5, v22
    v_lshl_add_u32 v22, v21, 9, v22
    v_and_b32 v23, 3, v0
    v_lshl_add_u32 v22, v23, 3, v22
    v_add_u32 v12, s59, v22
    ''')
    for t in range(1, 8):
        A(f'v_xor_b32 v{12+t}, {t*32}, v12')
    A(f'''
    v_and_b32 v24, 1, v0
    v_lshlrev_b32 v25, 6, v24                ; head*64
    v_lshlrev_b32 v24, 9, v24
    v_lshl_add_u32 v24, v2, 4, v24
    v_add_u32 v24, {QL}, v24
    s_lshl_b32 s60, s3, 3
    s_add_u32 s60, s60, {STW}
    v_add_u32 v25, s60, v25
    ''')
    hb('K1', 1)
    A('s_waitcnt lgkmcnt(0)')
    ha('K2', 0)
    vm.wait('K1')
    readK(KfB, 1)
    hb('K2', 0)
    A('s_waitcnt lgkmcnt(0)')
    ha('K3', 1)
    vm.wait('K2')
    if k3:
        readK(KfC, 0)
        hb('K3', 1)
        A('s_waitcnt lgkmcnt(0)')
        ha('V0', 0)
        vm.wait('K3')
        hb('V0', 0)
        stamp(3)
        if not nodep: flagwait(FLQ, 'L_wq')
        stamp(4)
        readQ(Pk, range(4))
        readQ(160, range(4, 6))
        A('s_waitcnt lgkmcnt(2)')
        for tile, src in enumerate((KfA, KfB, KfC)): qk(tile, src, Pk, range(4))
        readQ(Pk, range(6, 8))
        A('s_waitcnt lgkmcnt(2)')
        for tile, src in enumerate((KfA, KfB, KfC)): qk(tile, src, 160, range(4, 6))
        A('s_waitcnt lgkmcnt(0)')
        for tile, src in enumerate((KfA, KfB, KfC)): qk(tile, src, Pk, range(6, 8))
        readK(KfA, 1)
        readQ(KfB, range(8))
        A('s_waitcnt lgkmcnt(0)')
        issue('V1', 1, (0,))
        qk(3, KfA, KfB)
    else:
        hb('K3', 1)
        stamp(3)
        if not nodep: flagwait(FLQ, 'L_wq')
        stamp(4)
        readQ(KfC, range(8))
        A('s_waitcnt lgkmcnt(0)')
        qk(0, KfA, KfC)
        readK(KfA, 0)
        qk(1, KfB, KfC)
        A('s_waitcnt lgkmcnt(0)')
        qk(2, KfA, KfC)
        ha('V0', 0)
        vm.wait('K3')
        readK(KfB, 1)
        issue('V0', 0, (1,))
        A('s_waitcnt lgkmcnt(0)')
        qk(3, KfB, KfC)
    MK = 84
    A(f's_mov_b32 s{MK}, 0x00030003')
    A(f's_mov_b32 s{MK+1}, 0x00030003')
    for u in range(1, 8):
        A(f's_lshl_b64 s[{MK+2*u}:{MK+2*u+1}], s[{MK}:{MK+1}], {2*u}')
    A(f's_mov_b32 s63, {CEXP}')
    for i in range(8):
        a, b = Sx + 2*i, Sx + 2*i + 1
        A(f'v_cvt_pk_bf16_f32 v{b}, v{a}, v{b}')
        A(f'v_lshlrev_b32 v{a}, 16, v{b}')
        A(f'v_and_b32 v{b}, 0xffff0000, v{b}')
    A(f'v_max3_f32 v22, v{Sx}, v{Sx+1}, v{Sx+2}')
    for i in range(3, 15, 2):
        A(f'v_max3_f32 v22, v22, v{Sx+i}, v{Sx+i+1}')
    A(f'''
    v_max_f32 v22, v22, v{Sx+15}
    v_mov_b32 v1, v22
    v_permlane16_swap_b32 v22, v1
    v_max_f32 v22, v22, v1
    v_mov_b32 v1, v22
    v_permlane32_swap_b32 v22, v1
    v_max_f32 v22, v22, v1                   ; wave max per head
    ''')
    for i in range(16):
        A(f'v_sub_f32 v{Sx+i}, v{Sx+i}, v22')
    for i in range(16):
        A(f'v_mul_f32 v{Sx+i}, s63, v{Sx+i}')
    for i in range(16):
        A(f'v_exp_f32 v{Sx+i}, v{Sx+i}')
    for i in range(8):
        A(f'v_cvt_pk_bf16_f32 v{Pk+i}, v{Sx+2*i}, v{Sx+2*i+1}')
    for i in range(8):
        A(f'v_add_f32 v{Sx+i}, v{Sx+i}, v{Sx+8+i}')
    for i in range(4):
        A(f'v_add_f32 v{Sx+i}, v{Sx+i}, v{Sx+4+i}')
    A(f'''
    v_add_f32 v{Sx}, v{Sx}, v{Sx+2}
    v_add_f32 v{Sx+1}, v{Sx+1}, v{Sx+3}
    v_add_f32 v23, v{Sx}, v{Sx+1}
    v_mov_b32 v1, v23
    v_permlane16_swap_b32 v23, v1
    v_add_f32 v23, v23, v1
    v_mov_b32 v1, v23
    v_permlane32_swap_b32 v23, v1
    v_add_f32 v23, v23, v1                   ; wave sum per head
    s_mov_b64 exec, 3
    ds_write_b64 v25, v[22:23]
    s_mov_b64 exec, 1
    ds_add_u32 v26, v28 offset:{CNT-MISC}
    s_mov_b64 exec, -1
    ''')
    stamp(5)
    if not k3: ha('V1', 1)
    vWO, vWD, vOW, vOR, vP1s, vP1l, vYW, vHA = 22, 23, 24, 25, 27, 28, 29, 21
    vWA = [8, 9, 10, 11]
    A(f'''
    s_waitcnt lgkmcnt(0)
    s_movk_i32 s61, 896
    v_mad_u32_u24 v{vWD}, v{vR8}, s61, v{vCH}
    v_bfe_u32 v1, v0, 3, 1
    v_lshlrev_b32 v1, 8, v1
    v_and_b32 v3, 16, v0
    v_add_u32 v1, v1, v3
    v_lshrrev_b32 v3, 5, v0
    v_add_u32 v1, v1, v3
    v_mad_u32_u24 v{vWO}, v1, s61, v{vCH}
    v_lshrrev_b32 v1, 2, v0
    v_lshlrev_b32 v1, 7, v1
    v_bfe_u32 v2, v0, 3, 2
    v_lshl_add_u32 v1, v2, 5, v1
    v_and_b32 v2, 3, v0
    v_lshl_add_u32 v1, v2, 3, v1
    v_add_u32 v8, s59, v1
    v_xor_b32 v9, 32, v8
    v_xor_b32 v10, 64, v8
    v_xor_b32 v11, 0x60, v8
    v_lshlrev_b32 v1, 4, v0
    s_lshl_b32 s60, s3, 11
    s_add_u32 s60, s60, {AREA}
    v_add_u32 v{vOW}, s60, v1
    v_lshrrev_b32 v2, 4, v0                  ; g
    v_and_b32 v3, 15, v0                     ; c
    v_lshlrev_b32 v31, 12, v2                ; waves 2g, 2g+1
    v_lshl_add_u32 v31, v3, 4, v31
    s_lshl_b32 s60, s3, 8
    s_add_u32 s61, s60, {AREA}
    v_add_u32 v{vOR}, s61, v31
    s_add_u32 s61, s60, {YL}
    v_lshlrev_b32 v31, 2, v0
    v_add_u32 v{vYW}, s61, v31
    s_lshl3_add_u32 s60, s56, s3
    s_lshl_b32 s60, s60, 10
    s_add_u32 s60, s60, {P1}
    v_add_u32 v{vP1l}, s60, v1
    s_lshl4_add_u32 s61, s5, s60
    v_and_b32 v1, 3, v0
    v_lshlrev_b32 v1, 8, v1                  ; g*256
    v_and_b32 v3, 4, v0
    v_lshl_add_u32 v1, v3, 1, v1             ; half*8
    v_and_b32 v3, 8, v0
    v_lshl_add_u32 v1, v3, 4, v1             ; ks*128
    v_add_u32 v{vP1s}, s61, v1
    s_lshl_b32 s60, s3, 6
    s_add_u32 s60, s60, {HL}
    v_lshlrev_b32 v1, 3, v2
    v_add_u32 v{vHA}, s60, v1
    v_lshlrev_b32 v31, 4, v2
    v_add_u32 v31, {FACW}, v31
    s_mul_i32 s60, s6, 7
    s_add_u32 s60, s60, s5
    s_lshl3_add_u32 s60, s60, s4
    s_lshl_b32 s60, s60, {8 if p2b else 9}
    s_add_u32 s60, s60, {P2}
    v_lshl_add_u32 v30, v0, {2 if p2b else 3}, s60
    {'s_movk_i32 s66, 0xff' if p2t else ''}
    ''')
    Vf = KfA; Mk = KfB
    WOf, WDf = KfC, Sx
    PL = 64
    def masks(i):
        M = Mk + 16*(i & 1)
        for u in range(8):
            A(f'v_cndmask_b32 v{M+2*u}, 0, v{Pk+2*(i^vx)}, s[{MK+2*u}:{MK+2*u+1}]')
            A(f'v_cndmask_b32 v{M+2*u+1}, 0, v{Pk+2*(i^vx)+1}, s[{MK+2*u}:{MK+2*u+1}]')
    def pv(i, slot, mid=None):
        M = Mk + 16*(i & 1)
        def rd(t): A(f'ds_read_b64_tr_b16 v[{Vf+2*t}:{Vf+2*t+1}], v{vVA[t&7]} offset:{slot*8192 + (t>>3)*256}')
        def mf(ii):
            acc = Oa + 4*(ii >> 2)
            c = '0' if (i == 0 and (ii & 3) == 0) else f'v[{acc}:{acc+3}]'
            A(f'v_mfma_f32_16x16x32_bf16 v[{acc}:{acc+3}], v[{M+4*(ii&3)}:{M+4*(ii&3)+3}], v[{Vf+4*ii}:{Vf+4*ii+3}], {c}')
        if ilv and i == 3 and mid is None:
            for t in range(8): rd(t)
            for ii in range(8):
                A(f's_waitcnt lgkmcnt({min(6, 14-2*ii)})')
                mf(ii)
                if ii < 4: rd(8+2*ii); rd(9+2*ii)
                if wlast == 6 and ii >= 4:
                    A(f's_add_u32 m0, s59, {8192 + ii*1024}')
                    A(f's_add_u32 s60, s64, {ii*2*896}')
                    A(f'buffer_load_dwordx4 v{vWO}, s[52:55], s60 offen{wnt} lds')
                    vm.add('WO', 1)
                if wlast == 3:
                    A(f's_add_u32 m0, s59, {8192 + ii*1024}')
                    A(f's_add_u32 s60, s64, {ii*2*896}')
                    A(f'buffer_load_dwordx4 v{vWO}, s[52:55], s60 offen{wnt} lds')
            if wlast == 3: vm.add('WO', 8)
            return
        for t in range(16): rd(t)
        if mid: mid()
        for ii in range(8):
            A(f's_waitcnt lgkmcnt({14-2*ii})')
            mf(ii)
    def issueW(p, slot, t=None, wdoff=0):
        vm.upto(thr if t is None else t)
        if wq4: A('s_lshl_b32 s60, s6, 4\ns_lshl_b64 exec, 0xffff, s60')
        for k in range(4):
            if p < 2:
                A(f's_add_u32 m0, s59, {slot*8192 + (4*p+k)*1024}')
                A(f's_add_u32 s60, s64, {(4*p+k)*2*896}')
                A(f'buffer_load_dwordx4 v{vWO}, s[52:55], s60 offen{wnt} lds')
            else:
                A(f's_add_u32 m0, s59, {slot*8192 + wdoff + k*1024}')
                A(f's_add_u32 s60, s65, {k*8*896}')
                A(f'buffer_load_dwordx4 v{vWD}, s[48:51], s60 offen{wnt} lds')
        if wq4: A('s_mov_b64 exec, -1')
        vm.add('WO' if p < 2 else 'WD', 4)
    def readWO(slot, kss=(0, 1)):
        for ks in kss:
            for T in range(4):
                for half in range(2):
                    d = WOf + 16*ks + 4*T + 2*half
                    A(f'ds_read_b64_tr_b16 v[{d}:{d+1}], v{vWA[T]} offset:{slot*8192 + ks*4096 + half*2048}')
    def readWD(slot, wdoff=0):
        for T in range(4):
            for half in range(2):
                A(f'ds_read_b64_tr_b16 v[{WDf+4*T+2*half}:{WDf+4*T+2*half+1}], v{vWA[T]} offset:{slot*8192 + wdoff + half*2048}')
    def pretouch():
        if p1pre == 2:
            A(f's_lshl_b32 s60, s5, 8\ns_mov_b64 exec, 0x101\nbuffer_load_dword v160, v{vP1l}, s[40:43], s60 offen{pref}\ns_mov_b64 exec, -1')
            vm.add('pre', 1)
            return
        for q in range(2):
            if p1pre: A(f'buffer_load_dwordx4 v[160:163], v{vP1l}, s[40:43], 0 offen offset:{q*1024}{pref}')
        vm.add('pre', 2 if p1pre else 0)
    masks(0)
    vm.wait('V0')
    pv(0, 0)
    masks(1)
    hb('V1', 1)
    if not wlast:
        issueW(0, 0)
        vm.wait('V1')
        pv(1, 1)
        issueW(1, 0)
        issueW(2, 1)
        masks(2)
        vm.wait('WO')
        readWO(0)
        A('s_waitcnt lgkmcnt(0)')
        issue('V2', 0, (0,))
        vm.wait('WD')
        readWD(1)
        hb('V2', 0)
        pretouch()
        A('s_waitcnt lgkmcnt(0)')
        ha('V3', 1, thr + 2)
        vm.wait('V2')
        pv(2, 0, lambda: issue('V3', 1, (1,)))
        s3 = 1
    elif wlast in (5, 6):
        issueW(0, 0)
        vm.wait('V1')
        if catch:
            A(f'v_mov_b32 v1, 1\ns_mov_b64 exec, 1\nds_add_rtn_u32 v1, v26, v1 offset:{RANK-MISC}\ns_mov_b64 exec, -1\ns_waitcnt lgkmcnt(0)\nv_readfirstlane_b32 s67, v1\ns_cmp_ge_u32 s67, {catch}\ns_cselect_b64 vcc, -1, 0')
            vm.skip = True
        pv(1, 1)
        issueW(2, 0, None, 4096)
        ha('V2', 1)
        masks(2)
        vm.wait('WD')
        readWO(0, (0,))
        readWD(0, 4096)
        hb('V2', 1)
        pretouch()
        A('s_waitcnt lgkmcnt(0)')
        ha('V3', 0, v3thr)
        vm.skip = False
        vm.wait('V2')
        pv(2, 1, lambda: issue('V3', 0, (1,)))
        s3 = 0
    else:
        issueW(2, 0)
        vm.wait('V1')
        pv(1, 1)
        ha('V2', 1)
        masks(2)
        vm.wait('WD')
        readWD(0)
        hb('V2', 1)
        pretouch()
        A('s_waitcnt lgkmcnt(0)')
        ha('V3', 0, v3thr)
        vm.wait('V2')
        pv(2, 1, lambda: issue('V3', 0, (1,)))
        s3 = 0
    if hsplit:
        p0, p1 = Pk + 2*(3 ^ vx), Pk + 2*(3 ^ vx) + 1
        A(f'''
        v_mov_b32 v2, v{p0}
        v_mov_b32 v3, v{p1}
        v_lshrrev_b32 v1, 5, v0
        v_mul_u32_u24 v1, 0x1080, v1
        v_permlane32_swap_b32 v{p0}, v2
        v_permlane32_swap_b32 v{p1}, v3
        ''')
        for u in range(4):
            A(f's_mov_b32 s{MK+2*u+1}, s{MK+2*u+9}')
            A(f'v_xor_b32 v{vVA[u]}, v{vVA[u]}, v1')
        for h_, (a_, b_) in enumerate(((p0, p1), (2, 3))):
            for u in range(4):
                A(f'v_cndmask_b32 v{Mk+16+8*h_+2*u}, 0, v{a_}, s[{MK+2*u}:{MK+2*u+1}]')
                A(f'v_cndmask_b32 v{Mk+16+8*h_+2*u+1}, 0, v{b_}, s[{MK+2*u}:{MK+2*u+1}]')
    else:
        masks(3)
    flagwait(FLF, 'L_wf')
    FC = 160
    PKR = f'''    v_pk_mul_f32 v[32:33], v[32:33], v[{FC}:{FC+1}]
    v_pk_mul_f32 v[34:35], v[34:35], v[{FC}:{FC+1}]
    s_waitcnt lgkmcnt(0)
    v_pk_fma_f32 v[32:33], v[36:37], v[{FC+2}:{FC+3}], v[32:33]
    v_pk_fma_f32 v[34:35], v[38:39], v[{FC+2}:{FC+3}], v[34:35]
    v_permlane32_swap_b32 v32, v34
    v_permlane32_swap_b32 v33, v35
    v_pk_add_f32 v[36:37], v[32:33], v[34:35]
    v_pk_add_f32 v[32:33], v[32:33], v[34:35]
    v_permlane16_swap_b32 v32, v36
    v_permlane16_swap_b32 v33, v37
    v_pk_add_f32 v[32:33], v[32:33], v[36:37]
'''
    OLDR = f'''    v_mul_f32 v32, v32, v{FC}
    v_mul_f32 v34, v34, v{FC}
    v_mul_f32 v33, v33, v{FC+1}
    v_mul_f32 v35, v35, v{FC+1}
    s_waitcnt lgkmcnt(0)
    v_fmac_f32 v32, v36, v{FC+2}
    v_fmac_f32 v34, v38, v{FC+2}
    v_fmac_f32 v33, v37, v{FC+3}
    v_fmac_f32 v35, v39, v{FC+3}
    v_permlane32_swap_b32 v32, v34
    v_permlane32_swap_b32 v33, v35
    v_add_f32 v36, v32, v34
    v_add_f32 v37, v33, v35
    v_add_f32 v32, v32, v34
    v_add_f32 v33, v33, v35
    v_permlane16_swap_b32 v32, v36
    v_permlane16_swap_b32 v33, v37
    v_add_f32 v32, v32, v36
    v_add_f32 v33, v33, v37
'''
    A(f'''
    ds_read_b128 v[4:7], v26 offset:{FLF-MISC}
    ds_read2_b64 v[64:67], v{vHA} offset0:0 offset1:4
    s_mov_b32 s{MK}, 0x00010001
    s_mov_b32 s{MK+1}, 0x00010001
    s_mov_b32 s{MK+2}, 0x01000100
    s_mov_b32 s{MK+3}, 0x01000100
    s_mov_b32 s{MK+4}, 0x00ff00ff
    s_mov_b32 s{MK+5}, 0x00ff00ff
    ''')
    vm.wait('pre')
    A(f'''
    ds_read_b128 v[{FC}:{FC+3}], v31
    s_waitcnt lgkmcnt(0)
    v_readfirstlane_b32 s63, v5
    {'v_lshlrev_b32 v5, 3, v0' if p2t else ''}
    {'v_and_b32 v5, 24, v5' if p2t else ''}
    {'v_lshrrev_b32 v5, v5, v6' if p2t else ''}
    ''')
    FA = 144
    for r in range(4):
        A(f'v_cndmask_b32 v{68+r}, 0, v{64+r}, s[{MK}:{MK+1}]')
        A(f'v_cndmask_b32 v{72+r}, 0, v{64+r}, s[{MK+2}:{MK+3}]')
    A(f'''
    v_mfma_f32_16x16x32_bf16 v[{FA}:{FA+3}], v[68:71], v[{WDf}:{WDf+3}], 0
    v_mfma_f32_16x16x32_bf16 v[{FA+4}:{FA+7}], v[68:71], v[{WDf+4}:{WDf+7}], 0
    v_mfma_f32_16x16x32_bf16 v[{FA}:{FA+3}], v[72:75], v[{WDf+8}:{WDf+11}], v[{FA}:{FA+3}]
    v_mfma_f32_16x16x32_bf16 v[{FA+4}:{FA+7}], v[72:75], v[{WDf+12}:{WDf+15}], v[{FA+4}:{FA+7}]
    s_mov_b32 s62, {SPIN}
    ''')
    if wlast in (1, 2):
        issueW(0, 1, wthr)
        if wlast == 1: issueW(1, 1, wthr + 2)
    if early: A('v_mov_b32 v1, 1\ns_mov_b64 exec, 1')
    def pvh(h_):
        for v_ in range(2):
            for t in range(4):
                d = Vf + 16*h_ + 8*v_ + 2*t
                A(f'ds_read_b64_tr_b16 v[{d}:{d+1}], v{vVA[t]} offset:{s3*8192 + h_*4096 + v_*256}')
        for k in range(4):
            v_, m_ = k >> 1, k & 1
            A(f's_waitcnt lgkmcnt({6-2*k})')
            a_ = Mk + 16 + 8*h_ + 4*m_; b_ = Vf + 16*h_ + 8*v_ + 4*m_
            A(f'v_mfma_f32_16x16x32_bf16 v[{Oa+4*v_}:{Oa+4*v_+3}], v[{a_}:{a_+3}], v[{b_}:{b_+3}], v[{Oa+4*v_}:{Oa+4*v_+3}]')
    if hsplit:
        A('s_waitcnt vmcnt(4)')
        pvh(0)
        if wmid: issueW(1, 1, wmid - 1 if wmid > 1 else 99)
    vm.wait('V3')
    if early: A(f'ds_add_u32 v26, v1 offset:{CNTV-MISC}\ns_mov_b64 exec, -1')
    stamp(6)
    if hsplit: pvh(1)
    else: pv(3, s3, (lambda: issueW(1, 1, 99)) if wlast == 2 else None)
    A(f'''
    ds_write_b128 v{vOW}, v[{Oa}:{Oa+3}]
    ds_write_b128 v{vOW}, v[{Oa+4}:{Oa+7}] offset:1024
    ''')
    if wlast == 4:
        issueW(0, 1, 99); issueW(1, 1, 99)
    if wlast == 5 and not wmid and not wlate: issueW(1, 1, 99)
    A('s_waitcnt lgkmcnt(0)')
    stamp(7)
    A(f'''
    s_barrier                               ; #4: O partials
    ds_read_b128 v[32:35], v{vOR}
    ds_read_b128 v[36:39], v{vOR} offset:2048
    ''')
    if wlate == 1: issueW(1, 1, 99)
    A(f'''
    s_cmp_eq_u32 s63, 0
    s_waitcnt lgkmcnt(1)
{PKR if pkr else OLDR}
    v_cvt_pk_bf16_f32 v32, v32, v33
    v_min_u32 v6, -2, v32
    v_min_u32 v7, -2, v32
    v_permlane32_swap_b32 v6, v7
    s_mov_b64 exec, 0xffff
    s_cbranch_scc1 L_slowpub
    buffer_store_dwordx2 v[6:7], v{vP1s}, s[40:43], 0 offen
    L_pubdone:
    s_mov_b64 exec, -1
    ''')
    vm.add('pub', 1)
    stamp(8)
    A(f'''
    s_cmp_eq_u32 s5, 7
    s_cbranch_scc1 L_sdone
    ''')
    def polls():
        A(f'buffer_load_dwordx4 v[{PL}:{PL+3}], v{vP1l}, s[40:43], 0 offen sc1')
    if wlast:
        polls(); vm.add('poll', 1)
        vm.wait('pub')
        readWO(1, (1,) if wlast in (5, 6) else (0, 1))
        A('s_branch L_poll1_chk')
    A('L_poll1:')
    polls()
    A(f'''
    L_poll1_chk:
    s_sub_u32 s62, s62, 1
    s_waitcnt vmcnt(0)
    s_cbranch_scc1 L_poll1_done
    v_max3_u32 v1, v{PL}, v{PL+1}, v{PL+2}
    v_max_u32 v1, v1, v{PL+3}
    v_cmp_eq_u32 vcc, -1, v1
    {'s_mov_b64 exec, vcc' if mpoll else ''}
    {'' if nohelp else 's_cbranch_vccnz L_poll1'}
    L_poll1_done:
    {'s_mov_b64 exec, -1' if mpoll else ''}
    ''')
    stamp(9)
    LO, HI = 80, 88
    def omm(a, ks, T0):
        for x in range(2):
            acc = FA + 4*x
            bb = WOf + 16*ks + 4*(T0 + x)
            A(f'v_mfma_f32_16x16x32_bf16 v[{acc}:{acc+3}], v[{a}:{a+3}], v[{bb}:{bb+3}], v[{acc}:{acc+3}]')
    for q in range(4):
        A(f'v_cndmask_b32 v{LO+q}, 0, v{PL+q}, s[{MK+4}:{MK+5}]')
    for q in range(4):
        A(f'v_cndmask_b32 v{HI+4+q}, v{PL+q}, 0, s[{MK+4}:{MK+5}]')
    if wlast: A('s_waitcnt lgkmcnt(0)')
    omm(LO, 0, 0)
    for q in range(4):
        A(f'v_mov_b32_dpp v{HI+q}, v{PL+q} row_shr:8 row_mask:0xf bank_mask:0xf bound_ctrl:0')
    omm(HI+4, 1, 2)
    for q in range(4):
        A(f'v_mov_b32_dpp v{LO+4+q}, v{PL+q} row_shl:8 row_mask:0xf bank_mask:0xf bound_ctrl:0')
    omm(HI, 0, 2)
    omm(LO+4, 1, 0)
    A(f'''
    v_pk_add_f32 v[{FA}:{FA+1}], v[{FA}:{FA+1}], v[{FA+2}:{FA+3}]
    v_pk_add_f32 v[{FA+4}:{FA+5}], v[{FA+4}:{FA+5}], v[{FA+6}:{FA+7}]
    v_add_f32 v{FA}, v{FA}, v{FA+1}
    v_add_f32 v{FA+4}, v{FA+4}, v{FA+5}
    v_permlane16_swap_b32 v{FA}, v{FA+4}
    v_add_f32 v{FA}, v{FA}, v{FA+4}
    ds_write_b32 v{vYW}, v{FA}
    s_waitcnt lgkmcnt(0)
    ''')
    stamp(10)
    if fin != 'D': A('s_cmp_lg_u32 s3, 0')
    A('s_barrier                               ; #5')
    if fin != 'D':
        A(f'''
        s_cbranch_scc1 {'L_clean' if clean else 'L_sdone'}
        {f'ds_read_b32 v1, v26 offset:{NOPUB-MISC}' if peek else ''}
        ds_read2st64_b32 v[48:49], v{vYW} offset0:0 offset1:1
        ds_read2st64_b32 v[50:51], v{vYW} offset0:2 offset1:3
        ds_read2st64_b32 v[52:53], v{vYW} offset0:4 offset1:5
        ds_read2st64_b32 v[54:55], v{vYW} offset0:6 offset1:7
        s_waitcnt lgkmcnt(2)
        {'v_cmp_ne_u32 vcc, 0, v1' if peek else ''}
        v_add_f32 v48, v48, v49
        v_add_f32 v50, v50, v51
        {'s_cbranch_vccnz L_sdone' if peek else ''}
        s_waitcnt lgkmcnt(0)
        v_add_f32 v52, v52, v53
        v_add_f32 v54, v54, v55
        v_add_f32 v48, v48, v50
        v_add_f32 v52, v52, v54
        v_add_f32 v4, v48, v52
        {'v_bfi_b32 v4, s66, v5, v4' if p2t else 'v_min_u32 v4, -2, v4'}
        {'buffer_store_dword v4, v30, s[40:43], 0 offen sc1' if p2b else 'buffer_store_dwordx2 v[4:5], v30, s[40:43], 0 offen sc1'}
        ''')
        if stamps: A('s_waitcnt vmcnt(0)\ns_memrealtime s[70:71]')
        if clean:
            A(f'''
            L_clean:
            s_lshl_b32 s60, s5, 8
            s_cmp_eq_u32 s5, 6
            s_cselect_b32 s61, 0x1010101, 0x101
            s_mov_b32 exec_lo, s61
            s_mov_b32 exec_hi, 0
            buffer_store_dword v{vTAG}, v{vP1l}, s[40:43], s60 offen offset:4 sc1
            '''.replace('s_cselect_b32 s61, 0x1010101, 0x101', 's_movk_i32 s61, 0x101\ns_cselect_b32 s61, 0x1010101, s61'))
    if pad and padat[0] == 's': dopad('L_pads')
    A('L_sdone:')
    if stamps:
        A(f's_cmp_eq_u32 s3, 0')
        A('s_cbranch_scc1 L_dump0')
        A(f's_cmp_lg_u32 s3, 7')
        A('s_cbranch_scc1 L_end')
        dump_stamps(16, [sreg(k) for k in range(11)])
        A('s_endpgm')
        A('L_dump0:')
        dump_stamps(0, [sreg(k) for k in range(11)])
    A('s_endpgm')
    A(f'''
    L_slowpub:
    buffer_store_dwordx2 v[6:7], v{vP1s}, s[40:43], 0 offen sc1
    s_branch L_pubdone
    ''')
    A('.section .rodata,"a"')
    A('.p2align 6')
    A(f'.amdhsa_kernel {NAME}_kernel')
    A('.amdhsa_next_free_vgpr 168')
    A('.amdhsa_next_free_sgpr 102')
    A('.amdhsa_accum_offset 168')
    A('.amdhsa_group_segment_fixed_size 0')
    A('.amdhsa_kernarg_size 96')
    A('.amdhsa_user_sgpr_count 2')
    A('.amdhsa_user_sgpr_kernarg_segment_ptr 1')
    A('.amdhsa_system_sgpr_workgroup_id_x 1')
    A('.end_amdhsa_kernel')
    return top + A.finalize()

if __name__ == '__main__':
    out = sys.argv[1] if len(sys.argv) > 1 else f'cdna_kernels/{NAME}.s'
    kw = eval('dict(%s)' % sys.argv[2]) if len(sys.argv) > 2 else {}
    open(out, 'w').write(gen(**kw))
    print('wrote', out)
```

```python
import sys, struct, math
from asmlib import Asm
NAME = 'parallel_sum__sliding_block_cached__glu_gated_reglu__decode'

def f32(x): return '0x%08x' % struct.unpack('<I', struct.pack('<f', x))[0]

AREA = 131072
TAB = AREA + 16384
STW = TAB
FACW = TAB + 128
HL = TAB + 512
QL = TAB + 1024
YL = TAB + 2048
MISC = AREA + 28672
FLQ = MISC
CNT = MISC + 4
CNT0 = MISC + 12
FLF = MISC + 16
CNTV = MISC + 32
THR = MISC + 36
RANK = MISC + 40
NOPUB = MISC + 44
XN = MISC + 256
LDS_TOTAL = 163840
EPOCH = 0
ST = 0x3C000
TK2 = 0x2000
TK = 0x3000
P2 = 0x1C0000
P1 = 0x40000
QP = 0xC0000
WS_END = 0x1E0000
STAMPS = 0x300000
SPIN = 400000
CEXP = f32(math.log2(math.e)/16)

DOC = '''; ---------------------------------------------------------------------------------------------
; One persistent launch: 256 workgroups (one per CU), 8 stream waves + 1 helper wave each.
;   wg = b*64 + j*8 + hkv ; group (b, hkv) = 8 workgroups j that split the 4096-key window.
; Stream wave: 4 K tiles then 4 V tiles (16 keys x 512 B) by LDS-DMA through two 8 KB slots,
; Helper wave: LayerNorm, one 64-column piece of x*wq / x*W_gate / x*W_up, gathers q and h,
;   merges the softmax statistics of the group, runs the last reduction over the kv heads.
;   "empty" marker written earlier in the same launch. Plain stores are used only after d_debug
;   shows that every reader runs on this XCD; otherwise all hand-off stores are write-through.
; ---------------------------------------------------------------------------------------------
'''

class VM:
    def __init__(self, A): self.A = A; self.q = []
    def add(self, name, n): self.q.append((name, n))
    def wait(self, name, extra=''):
        idx = max(i for i, (nm, _) in enumerate(self.q) if nm == name)
        n = sum(c for _, c in self.q[idx+1:])
        self.q = self.q[idx+1:]
        self.A(f's_waitcnt vmcnt({n}){extra}')
    d = 0; nl = 0; skip = False
    def upto(self, n):
        tot = sum(c for _, c in self.q)
        if self.skip and tot > n:
            self.nl += 1
            self.A(f's_cbranch_vccnz L_pc{self.nl}\ns_waitcnt vmcnt({n})\nL_pc{self.nl}:')
            return
        if tot > n: self.A(f's_waitcnt vmcnt({n})')
        if self.d and n < 50 and tot > max(n - self.d, 0):
            self.nl += 1
            self.A(f's_cbranch_vccz L_pc{self.nl}\ns_waitcnt vmcnt({max(n - self.d, 0)})\nL_pc{self.nl}:')

def gen(stamps=0, wnt='', snt=' nt', kvnt=' nt', forceslow=False, now=False, pad=0, padat=None, thr=1,
        hpre=3, psleep=32, xlast=0, xtries=12, sync=False, xs='rev', light=False, kfirst=True, k3=True, wlast=5, hs=None, wthr=4, fastmask=0x55, dthr=0, fh=('K1b', 'K2a', 'K2b'), fin='T', spec=False, fsleep=0, hl=(6, 12), early=False, satom=True, noxc=False, rs0=True, kl=1, wlate=0, wmid=False, hsplit=True, first=(2, 0, 0), vx=0, kord=(0, 1, 2, 3), bark=0, p2t=0, qclean=0, fast7=False, pkr=True, wq4=False, rtm=False, hsw=2, peek=2, catch=0, bent=None, lin=None, p2b=True, v3thr=2, k0thr=5, dirty=0, wb=0, clean=0, p2pre=1, outf='', perm=0, gov=None, govh=('V2a', 'V2b', 'V3a'), govn=4, ilv=True, mpoll=True, nohelp=False, nodep=False, tlb=False, presl=32, pref=' sc1', pollf=' sc1', p1pre=0, sl=(0, 6, 10)):
    A = Asm()
    def sreg(k): return 68 + 2*k if k < 3 else 16 + 2*(k-3)
    def stamp(k):
        if stamps and (not light or k in sl): A(f's_memrealtime s[{sreg(k)}:{sreg(k)+1}]')
        if padat == f's{k}': A('s_memrealtime s[100:101]')
    def hstamp(k):
        if nohelp and nohelp - 1 == k: A('s_endpgm')
        if stamps and (not light or k in hl):
            A(f's_memrealtime s[100:101]\ns_waitcnt lgkmcnt(0)\nv_writelane_b32 v164, s100, {k}\nv_writelane_b32 v165, s101, {k}')
        if padat == f'h{k}': A('s_memrealtime s[100:101]\ns_waitcnt lgkmcnt(0)')
    def dopad(lab):
        A(f'''
        {lab}:
        s_memrealtime s[98:99]
        s_waitcnt lgkmcnt(0)
        s_sub_u32 s98, s98, s100
        s_cmp_lt_u32 s98, {pad}
        s_cbranch_scc1 {lab}
        ''')
    def dump_stamps(slot0, regs_):
        A('s_waitcnt vmcnt(0) lgkmcnt(0)')
        A('s_mov_b64 exec, 1')
        A('s_lshl_b32 s60, s2, 9')
        A(f's_add_u32 s60, s60, {STAMPS}')
        A('v_mov_b32 v1, s60')
        for k, r in enumerate(regs_):
            A(f'v_mov_b32 v2, s{r}')
            A(f'v_mov_b32 v3, s{r+1}')
            A(f'buffer_store_dwordx2 v[2:3], v1, s[40:43], 0 offen offset:{8*(slot0+k)}')
    WSN = 0x400000 if stamps else WS_END
    Z = lambda n: 0 if (now is True or (now == 'small' and n in (448*3584, 448*8192) and not ZW[0]) or (now == 'W' and ZW[0]) or (now == 'wq' and n == 448*8192 and not ZW[0])) else n
    ZW = [False]
    hdr = open('cdna_kernels/%s.s.ref' % NAME).read().split('; Override launch geometry')[0]
    top = hdr + f'; @launch grid=(256,1,1) block=(576,1,1) lds={LDS_TOTAL}\n'
    A('.amdgcn_target "amdgcn-amd-amdhsa--gfx950"')
    A('.text')
    for ln in DOC.strip().split('\n'): A(ln)
    A(f'.globl {NAME}_kernel')
    A('.p2align 8')
    A(f'.type {NAME}_kernel,@function')
    A(f'{NAME}_kernel:')
    if sync:
        A('''
        s_memrealtime s[4:5]
        s_waitcnt lgkmcnt(0)
        s_add_u32 s6, s4, 4096+600
        s_and_b32 s6, s6, -4096
        s_load_dwordx2 s[8:9], s[0:1], 88
        s_lshl_b32 s7, s2, 3
        s_add_u32 s7, s7, 0x380000
        v_mov_b32 v2, s4
        v_mov_b32 v3, s6
        v_mov_b32 v1, s7
        s_waitcnt lgkmcnt(0)
        global_store_dwordx2 v1, v[2:3], s[8:9] sc1
        s_waitcnt vmcnt(0)
        ''')
        if rtm:
            A('''
            s_load_dwordx2 s[8:9], s[0:1], 80
            v_readfirstlane_b32 s3, v0
            s_waitcnt lgkmcnt(0)
            s_load_dwordx16 s[84:99], s[8:9], 4096
            s_lshr_b32 s3, s3, 6
            s_and_b32 s3, s3, 7
            s_and_b32 s7, s2, 0x38
            s_or_b32 s3, s3, s7
            s_and_b32 s7, s2, 7
            s_lshl_b32 s7, s7, 6
            s_or_b32 s3, s3, s7
            s_lshr_b32 s7, s2, 6
            s_lshl_b32 s7, s7, 9
            s_or_b32 s3, s3, s7
            s_mov_b32 s68, 0
            s_waitcnt lgkmcnt(0)
            ''')
            for k in range(11):
                A(f's_bitcmp1_b32 s3, {k}\ns_cselect_b32 s7, s{84+k}, 0\ns_xor_b32 s68, s68, s7')
            A('s_xor_b32 s69, s68, s95\ns_xor_b32 s70, s68, s96\ns_xor_b32 s71, s69, s96')
            for k in range(4): A(f's_xor_b32 s{72+k}, s{68+k}, s97')
        A('''
        L_sync:
        s_memrealtime s[4:5]
        s_waitcnt lgkmcnt(0)
        s_sub_u32 s4, s4, s6
        s_cmp_lt_i32 s4, 0
        s_cbranch_scc1 L_sync
        s_branch L_go
        .p2align 10
        L_go:
        ''')
    if perm == 1:
        A('s_cmpk_ge_u32 s2, 256\ns_cbranch_scc1 L_end\ns_lshr_b32 s3, s2, 3\ns_and_b32 s3, s3, 7\ns_xor_b32 s2, s2, s3')
    if perm == 2:
        A('s_and_b32 s3, s2, -2\ns_cmp_eq_u32 s3, 74\ns_cselect_b32 s3, 1, 0\ns_xor_b32 s2, s2, s3')
    if padat == 'he': A('s_memrealtime s[100:101]')
    stamp(0)
    def msk(bits): return sum(1 << x for x in bits)
    def tmask(i, half):
        if not lin: return i*524288 + half*4096
        t = [msk(x) for x in lin['t']]
        return (t[0] if half else 0) ^ (t[1] if i & 1 else 0) ^ (t[2] if i & 2 else 0)
    lincode = ''
    if xs == 'rev':
        xs = None
        if not (lin or bent): lincode = 's_brev_b32 s62, s5\ns_lshr_b32 s62, s62, 10\ns_and_b32 s62, s62, 0x180000\ns_or_b32 s58, s58, s62\n'
    if hsw == 1: lincode += 's_lshl_b32 s62, s66, 11\ns_lshl_b32 s63, s66, 9\ns_xor_b32 s62, s62, s63\ns_and_b32 s62, s62, 0x1000\ns_or_b32 s58, s58, s62\n'
    if hsw == 2: lincode += 's_lshl_b32 s62, s66, 11\ns_and_b32 s62, s62, 0x1000\ns_or_b32 s58, s58, s62\n'
    if lin:
        xs = None
        lincode = 's_mov_b32 s58, 0\n'
        for key, reg in (('w', 's3'), ('j', 's5'), ('h', 's4'), ('b', 's6')):
            for bit, m in enumerate(lin.get(key, [])):
                if m: lincode += f's_bitcmp1_b32 {reg}, {bit}\ns_cselect_b32 s62, {msk(m)}, 0\ns_xor_b32 s58, s58, s62\n'
    if bent:
        xs = None
        def gmul(a, b):
            r = 0
            for k in range(3):
                if b >> k & 1: r ^= a << k
            for k in (4, 3):
                if r >> k & 1: r ^= 0xb << (k - 3)
            return r
        for k, bit in enumerate(bent):
            if bit is None: continue
            m = sum((gmul(i >> 3, i & 7) >> k & 1) << i for i in range(64))
            lincode += f's_mov_b32 s76, {m & 0xffffffff}\ns_mov_b32 s77, {m >> 32}\ns_bitcmp1_b64 s[76:77], s66\ns_cselect_b32 s62, {1 << bit}, 0\ns_xor_b32 s58, s58, s62\n'
    KARG = '''    s_load_dwordx16 s[16:31], s[0:1], 0      ; x K V wq wo Bx wg wu
    s_load_dwordx8 s[32:39], s[0:1], 64
'''
    vm = VM(A)
    vD = [4, 5, 6, 7]; vKA = [8, 9, 10, 11]; vVA = list(range(12, 20)); vTAG = 20
    KfA, KfB, KfC, Sx, Pk, Oa = 32, 64, 96, 128, 144, 152
    vCH, vR8 = 30, 31
    KS, VS = 's[8:11]', 's[12:15]'
    def issue(name, slot, halves=(0, 1)):
        srd = KS if name[0] == 'K' else VS
        i = kord[int(name[1]) ^ (vx if name[0] == 'V' else 0)]
        for half in halves:
            first = (name == 'K0' and half == 0)
            hn = name + 'ab'[half]
            if gov and hn in govh:
                A(f'ds_read_b32 v1, v26 offset:{THR-MISC}\ns_waitcnt lgkmcnt(0)\nv_cmp_lt_u32 vcc, {govh.index(hn)}, v1')
            if not first:
                A(f's_xor_b32 m0, {"s74" if hs else "s59"}, {slot*8192 + half*4096}')
                A(f's_mov_b32 s60, s{68+2*i+half}' if rtm else f's_xor_b32 s60, s58, {tmask(i, half)}')
            for q in range(4):
                if q in (0, 2) and (hn in fh or (gov and hn in govh)):
                    A(f's_cbranch_vccz L_f{name}{half}{q}\ns_waitcnt vmcnt(1)\nL_f{name}{half}{q}:')
                A(f'buffer_load_dwordx4 v{vD[q]}, {srd}, {("s68" if rtm else "s58") if first else "s60"} offen offset:{q*1024}{kvnt} lds')
            vm.add(name, 4)
    def ha(name, slot, t=None):
        vm.upto(thr if t is None else t); issue(name, slot, (0,))
    def hb(name, slot, t=None):
        vm.upto(thr if t is None else t); issue(name, slot, (1,))
    A(f'''
    {'s_load_dwordx2 s[8:9], s[0:1], 8' if kl else KARG}
    v_readfirstlane_b32 s3, v0
    s_cmpk_ge_u32 s2, 256
    s_cbranch_scc1 L_end
    v_and_b32 v0, 63, v0                     ; lane
    s_lshr_b32 s3, s3, 6                     ; wave
    s_and_b32 s4, s2, 7                      ; hkv
    s_bfe_u32 s5, s2, 0x30003                ; j
    s_lshr_b32 s6, s2, 6                     ; b
    s_lshl3_add_u32 s56, s6, s4
    s_cmp_eq_u32 s3, 8
    s_cbranch_scc1 L_helper
    v_lshrrev_b32 v1, 4, v0
    v_and_b32 v1, 2, v1
    v_xor_b32 v1, v1, v0
    v_lshlrev_b32 v4, 4, v1
    v_xor_b32 v5, 64, v4
    v_xor_b32 v6, 0x80, v4
    v_xor_b32 v7, 64, v6
    s_lshl3_add_u32 s66, s5, s3              ; 8j + w
    s_lshl_b32 s57, s56, 23
    s_add_u32 s57, s57, {12288*512}
    s_lshl_b32 s59, s3, 14
    s_lshl_b32 s58, s66, 13
    {lincode}
    {f's_bfe_u32 s62, {xs[0]}, {0x20000 + xs[1]}' if xs else ''}
    {'s_lshl_b32 s62, s62, 19' if xs else ''}
    {'s_or_b32 s58, s58, s62' if xs else ''}
    {f's_bfe_u32 s62, {hs[0]}, {0x10000 + hs[1]}' if hs else ''}
    {'s_lshl_b32 s62, s62, 12' if hs else ''}
    {'s_or_b32 s58, s58, s62' if hs else ''}
    {'s_or_b32 s74, s59, s62' if hs else ''}
    s_mov_b32 s10, 0x200000
    s_mov_b32 s11, 0x20000
    ''')
    saddr = f'''
    v_bfe_u32 v2, v0, 4, 2
    v_lshlrev_b32 v2, 1, v2
    v_and_b32 v3, 7, v0
    v_xor_b32 v2, v2, v3
    v_lshlrev_b32 v{vCH}, 4, v2
    v_lshrrev_b32 v{vR8}, 3, v0
    s_movk_i32 s61, 3584
    s_bfe_u32 s65, s2, 0x30004               ; wq role: 64-column block
    s_lshl3_add_u32 s65, s4, s65
    s_bfe_u32 s67, s2, 0x20005
    s_lshl2_add_u32 s67, s4, s67
    s_and_b32 s63, s5, 3                     ; K quarter
    s_and_b32 s64, s5, 1
    s_lshl_b32 s64, s64, 1
    s_cmp_lt_u32 s4, 7
    s_cselect_b32 s46, {Z(448*3584)}, 0
    s_cselect_b32 s67, s67, 0
    s_cmp_lt_u32 s6, 2                       ; SCC: wq role
    s_cselect_b32 s46, {Z(448*8192)}, s46
    s_cselect_b32 s61, 0x2000, s61
    s_cselect_b32 s65, s65, s67
    s_cselect_b32 s63, s64, s63
    s_cselect_b32 s67, {112*8192}, 0
    s_cselect_b64 vcc, -1, 0
    s_mul_i32 s63, s63, 7
    s_add_u32 s63, s63, s3
    s_lshl_b32 s63, s63, 4
    s_mul_i32 s63, s63, s61
    s_lshl_b32 s65, s65, 7
    s_add_u32 s63, s63, s65
    s_add_u32 s67, s67, s63
    v_mad_u32_u24 v21, v{vR8}, s61, v{vCH}
    s_lshl_b32 s61, s61, 3
    s_lshl_b32 s62, s3, 11
    s_mov_b32 s47, s11
    s_max_u32 s7, s4, s5
    '''
    if not kfirst: A(saddr)
    A(f'''
    s_mov_b32 m0, {'s74' if hs else 's59'}
    {'s_memrealtime s[100:101]' if padat == 'sa' else ''}
    s_waitcnt lgkmcnt(0)
    {'s_memrealtime s[100:101]' if padat == 'sb' else ''}
    s_add_u32 s8, {'s8' if kl else 's18'}, s57
    s_addc_u32 s9, {'s9' if kl else 's19'}, 0
    {KARG if kl else ''}
    ''')
    if kfirst:
        issue('K0', 0, (0, 1) if kfirst == 2 else (0,))
        A(saddr)
    A(f'''
    v_mov_b32 v28, 1
    s_cmp_eq_u32 s3, 7
    {'s_waitcnt lgkmcnt(0)' if kl else ''}
    s_cbranch_scc1 L_ldx
    s_cmp_lg_u64 vcc, 0
    s_cselect_b64 s[44:45], s[22:23], s[28:29]
    s_cselect_b64 s[48:49], s[22:23], s[30:31]
    s_add_u32 m0, s62, {AREA}
    s_mov_b64 s[50:51], s[46:47]
    buffer_load_dwordx4 v21, s[44:47], s63 offen{snt} lds
    s_add_u32 m0, s62, {AREA+14336}
    s_add_u32 s63, s63, s61
    buffer_load_dwordx4 v21, s[48:51], s67 offen{snt} lds
    s_add_u32 m0, s62, {AREA+1024}
    s_add_u32 s67, s67, s61
    buffer_load_dwordx4 v21, s[44:47], s63 offen{snt} lds
    s_add_u32 m0, s62, {AREA+14336+1024}
    buffer_load_dwordx4 v21, s[48:51], s67 offen{snt} lds
    s_branch L_ldk
    L_ldx:
    v_lshlrev_b32 v21, 4, v0
    s_mov_b32 m0, {XN}
    s_mov_b64 s[44:45], s[16:17]
    s_movk_i32 s46, 3584
    buffer_load_dwordx4 v21, s[44:47], 0 offen lds
    buffer_load_dwordx4 v21, s[44:47], 0 offen offset:1024 lds
    buffer_load_dwordx4 v21, s[44:47], 0 offen offset:2048 lds
    s_mov_b32 exec_hi, 0
    buffer_load_dwordx4 v21, s[44:47], 0 offen offset:3072 lds
    s_mov_b32 exec_hi, -1
    L_ldk:
    ''')
    vm.add('small', 4)
    if not kfirst:
        A(f's_mov_b32 m0, {"s74" if hs else "s59"}')
        issue('K0', 0, (0,))
    stamp(1)
    A('s_branch L_stream')

    XR = 8
    XF = 32
    RA = 156
    WF = 64
    AC = 132
    PB = 64
    nstore = [0]
    def store2(ins):
        n = nstore[0]; nstore[0] += 1
        A(f's_cmp_eq_u32 s58, 0\ns_cbranch_scc1 L_ss{n}')
        for i in ins: A(i)
        A(f's_branch L_sd{n}\nL_ss{n}:')
        for i in ins: A(i + ' sc1')
        A(f'L_sd{n}:')
    def cntwait(off, lab, sl, n=8):
        A(f'''
        s_mov_b32 s63, {SPIN*8}
        {lab}:
        ds_read_b32 v9, v31 offset:{off-MISC}
        s_sub_u32 s63, s63, 1
        s_waitcnt lgkmcnt(0)
        s_cbranch_scc1 {lab}_done
        v_cmp_le_u32 vcc, {n}, v9
        s_cbranch_vccnz {lab}_done
        {f's_sleep {sl}' if sl else ''}
        s_branch {lab}
        {lab}_done:
        ''')
    A(f'''
    L_helper:
    {KARG if kl else ''}
    s_setprio 3
    s_getreg_b32 s57, hwreg(HW_REG_XCC_ID, 0, 7)
    s_lshl_b32 s66, s4, 5
    s_lshr_b32 s61, s2, 3
    s_add_u32 s61, s61, s66
    s_add_u32 s57, s57, 1
    v_mov_b32 v9, s61
    v_mov_b32 v10, s57
    v_mov_b32 v31, {MISC}
    v_lshl_add_u32 v1, v0, 2, v31
    v_mov_b32 v2, 0
    ds_write_b32 v1, v2                      ; flags = 0
    s_mov_b64 exec, 1
    s_waitcnt lgkmcnt(0)
    {'' if noxc else 'global_store_byte v9, v10, s[36:37]      ; my XCD, for the workgroups that share my heads'}
    s_load_dword s62, s[38:39], {EPOCH}
    s_mov_b64 exec, -1
    ''')
    if tlb:
        A(f'''
        s_lshl_b32 s60, s56, 23
        s_add_u32 s60, s60, {12288*512}
        s_load_dword s76, s[20:21], s60          ; touch the pages used later: V window, wo, W_down, out
        s_add_u32 s60, s60, {(1<<21) - 64}
        s_load_dword s77, s[20:21], s60
        s_mul_i32 s60, s4, {512*896}
        s_load_dword s78, s[24:25], s60
        s_add_u32 s60, s60, {512*896 - 64}
        s_load_dword s79, s[24:25], s60
        s_load_dword s80, s[32:33], 0
        s_mov_b32 s60, {1792*896 - 64}
        s_load_dword s81, s[32:33], s60
        s_load_dword s82, s[34:35], 0
        ''')
    if stamps: A('v_mov_b32 v164, 0\nv_mov_b32 v165, 0\ns_memtime s[94:95]\ns_memrealtime s[96:97]')
    A(f'''
    s_mov_b64 s[40:41], s[38:39]
    s_mov_b32 s42, {WSN}
    s_mov_b32 s43, 0x20000
    s_mul_i32 s67, s56, 12288
    s_add_u32 s67, s67, {QP}
    s_mul_i32 s64, s6, 7
    s_add_u32 s64, s64, s5                   ; 7b + j
    s_lshl_b32 s7, s56, 9
    s_add_u32 s7, s7, {ST}
    ''')
    if rs0:
        A(f'''
        s_cmp_eq_u32 s5, 7
        s_cbranch_scc1 L_nors
        s_lshl3_add_u32 s60, s64, s4
        s_lshl_b32 s60, s60, 8
        s_add_u32 s60, s60, {P2}
        v_lshlrev_b32 v8, 2, v0
        v_mov_b32 v11, -1
        buffer_store_dword v11, v8, s[40:43], s60 offen sc1
        L_nors:
        ''')
    if hpre:
        A('v_lshlrev_b32 v8, 7, v0')
        if hpre in (2, 3):
            A(f'''
            s_cmp_lg_u32 s5, 7
            s_cbranch_scc1 L_nopre
            s_mov_b64 exec, 3
            buffer_load_dword v166, v8, s[40:43], s7 offen{pref}
            L_nopre:
            ''')
        A('s_mov_b64 exec, -1')
    XB = 128
    A(f'''
    v_lshrrev_b32 v1, 4, v0                  ; g
    v_and_b32 v2, 15, v0
    v_and_b32 v3, 3, v0
    v_mul_u32_u24 v3, 896, v3
    v_add_u32 v3, {XN}, v3                   ; row of batch l%4
    v_lshl_add_u32 v4, v1, 3, v3             ; + g*8
    v_and_b32 v5, 60, v0
    v_lshl_add_u32 v3, v5, 1, v3             ; + (l/4)*8
    s_and_b32 s60, s5, 3
    s_and_b32 s61, s5, 1
    s_lshl_b32 s65, s61, 11                  ; wq role: half * 2048
    s_bfe_u32 s59, s2, 0x30004
    s_lshl_b32 s59, s59, 8
    s_add_u32 s65, s65, s59                  ;   + block * 256
    s_lshl_b32 s63, s60, 11
    s_bfe_u32 s59, s2, 0x20005
    s_lshl_b32 s59, s59, 9
    s_add_u32 s63, s63, s59                  ;   + block * 512
    s_add_u32 s63, s63, 4096
    s_lshl_b32 s61, s61, 1
    s_cmp_lt_u32 s6, 2
    s_cselect_b32 s60, s61, s60
    s_cselect_b32 s61, 224, 0
    s_cselect_b32 s65, s65, s63
    s_mul_i32 s60, s60, 224
    v_add_u32 v4, s60, v4
    v_add_u32 v5, s61, v4
    s_mul_i32 s60, s4, 12288
    s_add_u32 s65, s65, s60
    s_add_u32 s65, s65, {QP}
    v_lshrrev_b32 v7, 2, v0
    v_lshlrev_b32 v7, 7, v7
    v_bfe_u32 v6, v0, 3, 2
    v_lshl_add_u32 v7, v6, 5, v7
    v_and_b32 v6, 3, v0
    v_lshl_add_u32 v7, v6, 3, v7
    v_add_u32 v156, {AREA}, v7
    v_xor_b32 v157, 32, v156
    v_xor_b32 v158, 64, v156
    v_xor_b32 v159, 0x60, v156
    s_mov_b64 s[8:9], 0xffff
    s_lshl_b64 s[10:11], s[8:9], 16
    s_lshl_b64 s[12:13], s[8:9], 32
    v_mov_b32 v30, 1
    v_lshlrev_b32 v29, 3, v0                 ; lane*8
    v_lshlrev_b32 v7, 4, v0                  ; lane*16
    v_lshlrev_b32 v6, 2, v0                  ; lane*4
    s_min_u32 s60, s64, 27
    s_lshl_b32 s60, s60, 7
    v_lshl_add_u32 v162, v0, 1, s60
    v_add_u32 v163, {XN}, v162
    v_and_b32 v160, 7, v0
    v_lshlrev_b32 v160, 2, v160
    v_add_u32 v160, s66, v160
    s_mul_i32 s46, s57, 0x01010101
    {'v_mov_b32 v161, s46' if noxc else 'global_load_dword v161, v160, s[36:37] sc1'}
    s_barrier
    ''')
    hstamp(0)
    cntwait(CNT0, 'L_w0', 1)
    hstamp(1)
    def wreads(s_):
        for hs_ in range(7):
            for T in range(4):
                d = WF + 14*T + 2*hs_
                A(f'ds_read_b64_tr_b16 v[{d}:{d+1}], v{156+T} offset:{s_*14336 + hs_*2048}')
    for u in range(7):
        A(f'ds_read_b64 v[{XR+2*u}:{XR+2*u+1}], v3 offset:{128*u}')
    A('ds_read_u16 v163, v163                   ; residual x')
    wreads(0)
    A(f'''
    s_mul_i32 s62, s62, 1664525
    s_add_u32 s62, s62, 1013904223
    v_mov_b32 v28, s62
    s_movk_i32 s47, 0xff
    s_waitcnt lgkmcnt(15)
    ''')
    for u in range(14):
        A(f'v_lshlrev_b32 v{XF+2*u}, 16, v{XR+u}')
        A(f'v_and_b32 v{XF+2*u+1}, 0xffff0000, v{XR+u}')
    def allsum(r):
        A(f'''
        v_add_f32_dpp v{r}, v{r}, v{r} row_ror:4 row_mask:0xf bank_mask:0xf
        v_add_f32_dpp v{r}, v{r}, v{r} row_ror:8 row_mask:0xf bank_mask:0xf
        v_mov_b32 v23, v{r}
        v_permlane16_swap_b32 v{r}, v23
        v_add_f32 v{r}, v{r}, v23
        v_mov_b32 v23, v{r}
        v_permlane32_swap_b32 v{r}, v23
        v_add_f32 v{r}, v{r}, v23
        ''')
    A(f'v_pk_add_f32 v[22:23], v[{XF}:{XF+1}], v[{XF+2}:{XF+3}]')
    A(f'v_pk_add_f32 v[26:27], v[{XF+4}:{XF+5}], v[{XF+6}:{XF+7}]')
    for u in range(4, 14, 2):
        A(f'v_pk_add_f32 v[22:23], v[22:23], v[{XF+2*u}:{XF+2*u+1}]')
        A(f'v_pk_add_f32 v[26:27], v[26:27], v[{XF+2*u+2}:{XF+2*u+3}]')
    A('v_pk_add_f32 v[22:23], v[22:23], v[26:27]')
    A('v_add_f32 v22, v22, v23')
    allsum(22)
    A(f'''
    v_mul_f32 v22, {f32(1/448)}, v22           ; mean
    v_cvt_pk_bf16_f32 v24, v22, v22
    v_and_b32 v24, 0xffff0000, v24           ; bf16(mean)
    v_sub_f32 v22, v22, v24
    ''')
    for u in range(14):
        A(f'v_pk_add_f32 v[{XF+2*u}:{XF+2*u+1}], v[{XF+2*u}:{XF+2*u+1}], v[24:25] op_sel_hi:[1,0] neg_lo:[0,1] neg_hi:[0,1]')
    A(f'v_pk_mul_f32 v[26:27], v[{XF}:{XF+1}], v[{XF}:{XF+1}]')
    A(f'v_pk_mul_f32 v[24:25], v[{XF+2}:{XF+3}], v[{XF+2}:{XF+3}]')
    for u in range(2, 14, 2):
        A(f'v_pk_fma_f32 v[26:27], v[{XF+2*u}:{XF+2*u+1}], v[{XF+2*u}:{XF+2*u+1}], v[26:27]')
        A(f'v_pk_fma_f32 v[24:25], v[{XF+2*u+2}:{XF+2*u+3}], v[{XF+2*u+2}:{XF+2*u+3}], v[24:25]')
    A('v_pk_add_f32 v[26:27], v[26:27], v[24:25]')
    A('v_add_f32 v26, v26, v27')
    for u in range(14):
        A(f'v_cvt_pk_bf16_f32 v{XR+u}, v{XF+2*u}, v{XF+2*u+1}')
    allsum(26)
    A(f'''
    v_mul_f32 v26, {f32(1/448)}, v26
    v_fma_f32 v26, -v22, v22, v26            ; var
    v_max_f32 v26, 0, v26
    v_cvt_pk_bf16_f32 v26, v26, v26
    v_and_b32 v26, 0xffff0000, v26           ; bf16(var)
    v_add_f32 v26, {f32(1e-5)}, v26
    v_cvt_pk_bf16_f32 v26, v26, v26
    v_and_b32 v26, 0xffff0000, v26
    v_sqrt_f32 v26, v26
    v_cvt_pk_bf16_f32 v26, v26, v26
    v_and_b32 v26, 0xffff0000, v26
    v_rcp_f32 v26, v26
    ''')
    for u in range(14):
        A(f'v_lshlrev_b32 v{XF+2*u}, 16, v{XR+u}')
        A(f'v_and_b32 v{XF+2*u+1}, 0xffff0000, v{XR+u}')
    for u in range(14):
        A(f'v_pk_mul_f32 v[{XF+2*u}:{XF+2*u+1}], v[{XF+2*u}:{XF+2*u+1}], v[26:27] op_sel_hi:[1,0]')
    for u in range(14):
        A(f'v_cvt_pk_bf16_f32 v{XR+u}, v{XF+2*u}, v{XF+2*u+1}')
    for u in range(7):
        A(f'ds_write_b64 v3, v[{XR+2*u}:{XR+2*u+1}] offset:{128*u}')
    for s_ in range(2):
        for ks in range(3):
            A(f'ds_read2_b64 v[{XB+14*s_+4*ks}:{XB+14*s_+4*ks+3}], v{4+s_} offset0:{8*ks} offset1:{8*ks+4}')
        A(f'ds_read_b64 v[{XB+14*s_+12}:{XB+14*s_+13}], v{4+s_} offset:192')
    def mm(s_):
        for ks in range(4):
            for T in range(4):
                acc = 32 + 16*s_ + 4*T
                xa = XB + 14*s_ + 4*ks; bb = WF + 14*T + 4*ks
                c = '0' if ks == 0 else f'v[{acc}:{acc+3}]'
                if ks < 3: A(f'v_mfma_f32_16x16x32_bf16 v[{acc}:{acc+3}], v[{xa}:{xa+3}], v[{bb}:{bb+3}], {c}')
                else: A(f'v_mfma_f32_16x16x16_bf16 v[{acc}:{acc+3}], v[{xa}:{xa+1}], v[{bb}:{bb+1}], {c}')
    hstamp(2)
    A('s_waitcnt lgkmcnt(0)')
    mm(0)
    wreads(1)
    A(f'''
    s_mov_b32 s58, {0 if forceslow else 1}
    s_movk_i32 s63, {xtries}
    L_xc:
    s_waitcnt vmcnt(0)
    v_cmp_ne_u32 vcc, s46, v161
    s_cbranch_vccz L_xc_done
    global_load_dword v161, v160, s[36:37] sc1
    s_sub_u32 s63, s63, 1
    s_cbranch_scc0 L_xc
    s_mov_b32 s58, 0
    L_xc_done:
    s_waitcnt lgkmcnt(0)
    ''')
    mm(1)
    A(f'''
    s_add_u32 s60, s65, {8*12288}
    s_add_u32 s61, s65, {16*12288}
    s_add_u32 s63, s65, {24*12288}
    v_lshlrev_b32 v163, 16, v163
    v_and_b32 v16, 24, v29
    v_lshrrev_b32 v16, v16, v28
    v_and_b32 v17, 16, v7
    v_lshrrev_b32 v17, v17, v28
    v_lshrrev_b32 v18, 8, v17
    {'v_mov_b32 v167, v16' if p2t else ''}
    s_lshr_b32 s48, s62, 8
    s_lshr_b32 s49, s62, 16
    s_lshr_b32 s50, s62, 24
    s_movk_i32 s51, 0xff00
    ''')
    for s_ in range(2):
        a_ = 32 + 16*s_
        for r in range(4):
            A(f'v_cndmask_b32 v{a_+12+r}, v{a_+12+r}, v{a_+8+r}, s[12:13]')
        for r in range(4):
            A(f'v_cndmask_b32 v{a_+12+r}, v{a_+12+r}, v{a_+4+r}, s[10:11]')
        for r in range(4):
            A(f'v_cndmask_b32 v{8+2*r+s_}, v{a_+12+r}, v{a_+r}, s[8:9]')
    so4 = ('s65', 's60', 's61', 's63')
    A('s_cmp_lt_u32 s6, 2')
    A('s_cbranch_scc1 L_pubq')
    for r in range(8):
        A(f'v_bfi_b32 v{8+r}, s47, v{17 + (r & 1)}, v{8+r}')
    store2([f'buffer_store_dwordx2 v[{8+2*r}:{9+2*r}], v29, s[40:43], {so4[r]} offen' for r in range(4)])
    A('s_branch L_pubd')
    A('L_pubq:')
    for r in range(4):
        A(f'v_add_f32 v{8+2*r}, v{8+2*r}, v{9+2*r}')
    for r in range(4):
        A(f'v_bfi_b32 v{8+2*r}, s47, v16, v{8+2*r}')
    store2([f'buffer_store_dword v{8+2*r}, v6, s[40:43], {so4[r]} offen' for r in range(4)])
    A('L_pubd:')
    if qclean:
        for r in range(8): A(f'v_mov_b32 v{120+r}, v{8+r}')
        A('s_mov_b32 s76, s65\ns_mov_b32 s77, s60\ns_mov_b32 s78, s61\ns_mov_b32 s79, s63')
    hstamp(3)
    def gather(lab, n, soffs):
        f_ = first[0 if lab == 'L_gq' else 1]
        A(f's_mov_b32 s63, {SPIN}')
        if f_ == 2: A('s_waitcnt vmcnt(0)')
        if f_ != 1: A(f's_branch {lab}_go')
        A(f'{lab}:\ns_sleep {psleep}\n{lab}_go:')
        for k in range(n):
            A(f'buffer_load_dwordx4 v[{32+4*k}:{35+4*k}], v7, s[40:43], {soffs[k>>2]} offen offset:{(k&3)*1024}{pollf}')
        A(f'''
        s_sub_u32 s63, s63, 1
        s_waitcnt vmcnt(0)
        s_cbranch_scc1 {lab}_done
        v_xor_b32 v24, s62, v32
        v_xor_b32 v25, s48, v33
        ''')
        for r in range(34, 32 + 4*n, 2):
            A(f'v_bitop3_b32 v24, v{r}, {"s49" if r & 2 else "s62"}, v24 bitop3:0xbe')
            A(f'v_bitop3_b32 v25, v{r+1}, {"s50" if r & 2 else "s48"}, v25 bitop3:0xbe')
        A(f'''
        v_or_b32 v24, v24, v25
        v_and_b32 v24, s47, v24
        v_cmp_ne_u32 vcc, 0, v24
        s_cbranch_vccnz {lab}
        {lab}_done:
        ''')
        for r in range(32, 32 + 4*n):
            A(f'v_and_b32 v{r}, s51, v{r}')
    gather('L_gq', 4, ['s67'])
    A(f'''
    v_pk_add_f32 v[32:33], v[32:33], v[40:41]
    v_pk_add_f32 v[34:35], v[34:35], v[42:43]
    v_pk_add_f32 v[36:37], v[36:37], v[44:45]
    v_pk_add_f32 v[38:39], v[38:39], v[46:47]
    v_add_u32 v24, {QL}, v29
    v_cvt_pk_bf16_f32 v8, v32, v33
    v_cvt_pk_bf16_f32 v9, v34, v35
    v_cvt_pk_bf16_f32 v10, v36, v37
    v_cvt_pk_bf16_f32 v11, v38, v39
    ds_write_b64 v24, v[8:9]
    ds_write_b64 v24, v[10:11] offset:512
    ds_write_b32 v31, v30 offset:{FLQ-MISC}
    v_mov_b32 v27, v28
    ''')
    hstamp(6)
    A('s_add_u32 s60, s67, 4096\ns_add_u32 s61, s67, 8192')
    gather('L_gh', 8, ['s60', 's61'])
    for k in range(4):
        A(f'v_pk_add_f32 v[{32+2*k}:{33+2*k}], v[{32+2*k}:{33+2*k}], v[{40+2*k}:{41+2*k}]')
        A(f'v_pk_add_f32 v[{48+2*k}:{49+2*k}], v[{48+2*k}:{49+2*k}], v[{56+2*k}:{57+2*k}]')
    for k in range(4):
        A(f'v_pk_add_f32 v[{32+2*k}:{33+2*k}], v[{32+2*k}:{33+2*k}], v[{48+2*k}:{49+2*k}]')
    for k in range(4):
        A(f'v_cvt_pk_bf16_f32 v{33+2*k}, v{32+2*k}, v{33+2*k}')
        A(f'v_lshlrev_b32 v{32+2*k}, 16, v{33+2*k}')
        A(f'v_and_b32 v{33+2*k}, 0xffff0000, v{33+2*k}')
        A(f'v_max_f32 v{32+2*k}, 0, v{32+2*k}')
        A(f'v_mul_f32 v{32+2*k}, v{32+2*k}, v{33+2*k}')
    A(f'''
    v_cvt_pk_bf16_f32 v8, v32, v34
    v_cvt_pk_bf16_f32 v9, v36, v38
    v_add_u32 v24, {HL}, v6
    ds_write2st64_b32 v24, v8, v9 offset0:0 offset1:1
    ''')
    hstamp(5)
    if gov:
        A(f'''
        s_lshr_b32 s60, s2, 3
        s_lshl_b32 s60, s60, 7
        s_add_u32 s60, s60, {TK2}
        s_add_u32 s32, s38, s60
        s_addc_u32 s33, s39, 0
        v_mov_b32 v56, s60
        v_not_b32 v57, v28
        s_mov_b64 exec, 1
        buffer_store_byte v57, v56, s[40:43], s4 offen sc1
        s_mov_b64 exec, -1
        s_lshl_b32 s60, s4, 3
        s_lshl_b64 s[30:31], 0xff, s60
        ''')
    A(f'''
    v_mov_b32 v32, -1
    v_mov_b32 v33, -1
    v_mov_b32 v34, -1
    v_mov_b32 v35, -1
    s_cmp_eq_u32 s5, 7
    s_cbranch_scc1 L_notk
    s_lshl3_add_u32 s60, s64, s4
    s_lshl_b32 s60, s60, 8
    s_add_u32 s60, s60, {P2}
    {'buffer_store_dword v32, v6, s[40:43], s60 offen sc1        ; my output partial := empty' if not (p2t or rs0) else ('buffer_load_dword v166, v6, s[40:43], s60 offen' if p2t == 1 else '')}
    s_cmp_lg_u32 s4, 0
    s_cbranch_scc1 L_notk
    s_lshl_b32 s60, s64, 7
    s_add_u32 s60, s60, {TK}
    v_mov_b32 v26, 0
    s_mov_b64 exec, 1
    buffer_store_dwordx2 v[26:27], v6, s[40:43], s60 offen sc1
    s_mov_b64 exec, -1
    L_notk:
    s_lshl3_add_u32 s60, s56, s5
    s_lshl_b32 s60, s60, 10
    s_add_u32 s60, s60, {P1}
    ''')
    store2(['buffer_store_dwordx4 v[32:35], v7, s[40:43], s60 offen'])
    A('s_waitcnt vmcnt(0)')
    cntwait(CNT, 'L_wc', 4, govn if gov else 8)
    if gov:
        tbl = sum(n << (4*(k+1)) for k, n in enumerate(gov))
        A(f'''
        s_atomic_xor_x2 s[30:31], s[32:33], 0 glc
        s_and_b32 s60, s62, 0xff
        s_mul_i32 s26, s60, 0x01010101
        s_mov_b32 s27, s26
        s_mov_b32 s28, {tbl & 0xffffffff}
        s_mov_b32 s29, {tbl >> 32}
        s_waitcnt lgkmcnt(0)
        s_xor_b64 s[30:31], s[30:31], s[26:27]
        s_bcnt1_i32_b64 s60, s[30:31]
        s_lshr_b32 s60, s60, 3
        s_lshl_b32 s60, s60, 2
        s_lshr_b64 s[28:29], s[28:29], s60
        s_and_b32 s60, s28, 15
        v_mov_b32 v9, s60
        ds_write_b32 v31, v9 offset:{THR-MISC}
        ''')
        cntwait(CNT, 'L_wc2', 4)
    hstamp(7)
    A(f'''
    ; workgroup stats from the 8 waves (lane = h*8+w)
    v_lshlrev_b32 v8, 3, v2
    v_add_u32 v8, {STW}, v8
    ds_read_b64 v[4:5], v8
    s_lshl4_add_u32 s61, s5, s7
    v_mov_b32 v25, v28
    s_waitcnt lgkmcnt(0)
    v_max_f32_dpp v24, v4, v4 quad_perm:[1,0,3,2] row_mask:0xf bank_mask:0xf
    v_max_f32_dpp v24, v24, v24 quad_perm:[2,3,0,1] row_mask:0xf bank_mask:0xf
    v_max_f32_dpp v24, v24, v24 row_half_mirror row_mask:0xf bank_mask:0xf
    v_sub_f32 v26, v4, v24
    v_mul_f32 v26, {CEXP}, v26
    v_exp_f32 v26, v26
    v_mul_f32 v26, v26, v5
    v_add_f32_dpp v26, v26, v26 quad_perm:[1,0,3,2] row_mask:0xf bank_mask:0xf
    v_add_f32_dpp v26, v26, v26 quad_perm:[2,3,0,1] row_mask:0xf bank_mask:0xf
    v_add_f32_dpp v26, v26, v26 row_half_mirror row_mask:0xf bank_mask:0xf
    s_mov_b64 exec, 0x101
    ''')
    store2([f'buffer_store_dwordx4 v[24:27], v7, s[40:43], s61 offen'])
    A(f'''
    s_mov_b64 exec, 0xffff
    s_mov_b32 s63, {SPIN}
    {'' if first[2] else 's_branch L_polls_go'}
    L_polls:
    s_sleep {psleep}
    L_polls_go:
    buffer_load_dwordx4 v[16:19], v7, s[40:43], s7 offen{pollf}
    s_sub_u32 s63, s63, 1
    s_waitcnt vmcnt(0)
    s_cbranch_scc1 L_polls_done
    v_min3_u32 v10, v17, v19, v28
    v_max3_u32 v11, v17, v19, v28
    v_cmp_ne_u32 vcc, v10, v11
    s_cbranch_vccnz L_polls
    L_polls_done:
    ''')
    hstamp(8)
    A(f'''
    v_max_f32_dpp v10, v16, v16 quad_perm:[1,0,3,2] row_mask:0xf bank_mask:0xf
    v_max_f32_dpp v10, v10, v10 quad_perm:[2,3,0,1] row_mask:0xf bank_mask:0xf
    v_max_f32_dpp v10, v10, v10 row_half_mirror row_mask:0xf bank_mask:0xf
    v_sub_f32 v11, v16, v10
    v_sub_f32 v10, v4, v10
    v_mul_f32 v11, {CEXP}, v11
    v_mul_f32 v10, {CEXP}, v10
    v_exp_f32 v11, v11
    v_exp_f32 v10, v10
    v_mul_f32 v11, v11, v18
    v_add_f32_dpp v11, v11, v11 quad_perm:[1,0,3,2] row_mask:0xf bank_mask:0xf
    v_add_f32_dpp v11, v11, v11 quad_perm:[2,3,0,1] row_mask:0xf bank_mask:0xf
    v_add_f32_dpp v11, v11, v11 row_half_mirror row_mask:0xf bank_mask:0xf
    v_rcp_f32 v11, v11
    v_mul_f32 v10, v10, v11                  ; factor for (wave = lane&7, head = lane>>3)
    v_and_b32 v9, 56, v29
    v_lshrrev_b32 v8, 1, v0
    v_and_b32 v8, 4, v8
    v_add3_u32 v9, v9, v8, v31
    v_subrev_u32 v9, {MISC-FACW}, v9
    ds_write_b32 v9, v10
    s_mov_b64 exec, -1
    v_mov_b32 v24, 1
    v_mov_b32 v25, s58
    v_mov_b32 v26, v28
    ds_write_b128 v31, v[24:27] offset:{FLF-MISC}
    ''')
    if qclean:
        A('s_cmp_lt_u32 s6, 2\ns_cbranch_scc1 L_cq')
        for r in range(4): A(f'buffer_store_dwordx2 v[{120+2*r}:{121+2*r}], v29, s[40:43], s{76+r} offen sc1')
        A('s_branch L_cd\nL_cq:')
        for r in range(4): A(f'buffer_store_dword v{120+2*r}, v6, s[40:43], s{76+r} offen sc1')
        A('L_cd:')
    A(f'''
    s_cmp_eq_u32 s5, 7
    s_waitcnt lgkmcnt(0)
    {'' if early else 's_cbranch_scc1 ' + ('L_end' if pad else 'L_hdone')}
    ''')
    if dirty:
        A(f's_lshl_b32 s60, s2, 14\ns_add_u32 s60, s60, 0x400000\ns_mov_b32 s42, 0x1000000')
        for k in range(dirty):
            A(f'buffer_store_dwordx4 v[24:27], v7, s[40:43], s60 offen\ns_add_u32 s60, s60, 1024')
    if wb:
        A(f's_cmp_ge_u32 s2, {8*wb}\ns_cbranch_scc1 L_nowb\nbuffer_wbl2 sc1\ns_waitcnt vmcnt(0)\nL_nowb:')
    A(f'''
    v_mov_b32 v4, v162
    {'v_and_b32 v167, s47, v167' if p2t else ''}
    v_mov_b32 v5, v163
    s_mov_b64 s[52:53], s[34:35]
    s_movk_i32 s54, 3584
    s_mov_b32 s55, 0x20000
    s_lshl_b32 s60, s64, {11 if p2b else 12}
    s_add_u32 s60, s60, {P2}
    v_add_u32 v6, s60, {'v6' if p2b else 'v29'}
    v_lshlrev_b32 v7, 2, v0
    v_add_u32 v7, {YL}, v7
    ''')
    for i in range(1, 8):
        A(f's_xor_b32 s{18+i}, s4, {i}')
        A(f's_lshl_b32 s{18+i}, s{18+i}, {8 if p2b else 9}')
    A(f'''
    s_lshl_b32 s60, s56, 13
    s_add_u32 s60, s60, {P1 + 8192 - 128}
    v_lshl_add_u32 v57, v0, 3, s60           ; last line of the group's O hand-off
    s_lshl_b32 s60, s64, 7
    s_add_u32 s60, s60, {TK}
    s_add_u32 s32, s38, s60
    s_addc_u32 s33, s39, 0
    s_mov_b32 s63, {SPIN}
    L_tkw:
    s_load_dwordx2 s[28:29], s[32:33], 0 glc
    s_sub_u32 s63, s63, 1
    s_waitcnt lgkmcnt(0)
    s_cbranch_scc1 L_tkw_done
    s_cmp_eq_u32 s29, s62
    s_cbranch_scc1 L_tkw_done
    s_sleep {psleep}
    s_branch L_tkw
    L_tkw_done:
    s_mov_b32 s30, 1
    s_mov_b32 s63, {SPIN}
    s_mov_b64 exec, 0xffff
    s_barrier                               ; #4
    ''')
    hstamp(9)
    def trigpoll(done):
        A(f'''
        buffer_load_dword v61, v57, s[40:43], 0 offen sc1
        s_waitcnt vmcnt(0)
        v_cmp_eq_u32 vcc, -1, v61
        s_cbranch_vccz {done}
        ''')
    A('L_trig:')
    if peek:
        A('s_load_dword s28, s[32:33], 0 glc')
        for k in range(peek + 1): trigpoll('L_trig_done')
        A('s_waitcnt lgkmcnt(0)\ns_cmp_eq_u32 s28, 7\ns_cbranch_scc1 L_sure')
    else:
        trigpoll('L_trig_done')
    A(f'''
    s_sub_u32 s63, s63, 1
    s_cbranch_scc0 L_trig
    L_trig_done:
    s_atomic_add s30, s[32:33], 0 glc
    s_mov_b64 exec, -1
    L_b5:
    ''')
    hstamp(10)
    A(f'''
    s_barrier                               ; #5
    ds_read2st64_b32 v[48:49], v7 offset0:0 offset1:1
    ds_read2st64_b32 v[50:51], v7 offset0:2 offset1:3
    ds_read2st64_b32 v[52:53], v7 offset0:4 offset1:5
    ds_read2st64_b32 v[54:55], v7 offset0:6 offset1:7
    s_mov_b32 s63, {SPIN}
    s_waitcnt lgkmcnt(0)
    s_cmp_lt_u32 s30, 7
    s_cbranch_scc1 L_hdone
    ''')
    hstamp(13)
    A(f'''
    {'s_cmp_eq_u32 s30, 8' if peek else ''}
    {'s_cbranch_scc1 L_adds' if peek else ''}
    buffer_load_dword v34, v6, s[40:43], s19 offen sc1
    buffer_load_dword v36, v6, s[40:43], s20 offen sc1
    buffer_load_dword v38, v6, s[40:43], s21 offen sc1
    buffer_load_dword v40, v6, s[40:43], s22 offen sc1
    buffer_load_dword v42, v6, s[40:43], s23 offen sc1
    buffer_load_dword v44, v6, s[40:43], s24 offen sc1
    buffer_load_dword v46, v6, s[40:43], s25 offen sc1
    L_adds:
    v_add_f32 v48, v48, v49
    v_add_f32 v50, v50, v51
    v_add_f32 v52, v52, v53
    v_add_f32 v54, v54, v55
    v_add_f32 v48, v48, v50
    v_add_f32 v52, v52, v54
    v_add_f32 v26, v48, v52
    {'v_and_b32 v26, s51, v26' if p2t else ''}
    L_fchk:
    s_sub_u32 s63, s63, 1
    s_waitcnt vmcnt(0)
    s_cbranch_scc1 L_fsum
    ''')
    if p2t:
        for i in range(1, 8): A(f'v_xor_b32 v{32+2*i}, v167, v{32+2*i}')
        A('''
        v_or3_b32 v12, v34, v36, v38
        v_or3_b32 v13, v40, v42, v44
        v_or3_b32 v12, v12, v13, v46
        v_and_b32 v12, s47, v12
        v_cmp_ne_u32 vcc, 0, v12
        ''')
    else:
        A('''
        v_max3_u32 v12, v34, v36, v38
        v_max3_u32 v13, v40, v42, v44
        v_max3_u32 v12, v12, v13, v46
        v_cmp_eq_u32 vcc, -1, v12
        ''')
    A(f'''
    s_cbranch_vccnz L_fpoll
    L_fsum:
    v_add_f32 v34, v34, v26                  ; slots hkv^i: the tree is the same for every finisher
    v_add_f32 v36, v36, v38
    v_add_f32 v40, v40, v42
    v_add_f32 v44, v44, v46
    v_add_f32 v34, v34, v36
    v_add_f32 v40, v40, v44
    L_finish:
    v_add_f32 v34, v34, v40
    v_add_f32 v34, v34, v5
    v_cvt_pk_bf16_f32 v34, v34, v34
    buffer_store_short v34, v4, s[52:55], 0 offen{outf}
    ''')
    hstamp(11)
    if stamps and 14 in hl:
        A(f's_sub_u32 s60, {SPIN}, s63\ns_mul_i32 s60, s60, 100\ns_add_u32 s60, s68, s60\ns_addc_u32 s61, s69, 0\nv_writelane_b32 v164, s60, 14\nv_writelane_b32 v165, s61, 14')
    A(f'''
    s_cmp_lg_u32 s64, 21
    s_cbranch_scc1 L_hdone
    s_mov_b64 exec, 1
    v_mov_b32 v1, {EPOCH}
    buffer_store_dword v28, v1, s[40:43], 0 offen
    L_hdone:
    ''')
    if padat == 'hz': A('s_waitcnt vmcnt(0)\ns_memrealtime s[100:101]\ns_waitcnt lgkmcnt(0)')
    if pad and padat[0] == 'h': dopad('L_padh')
    if stamps:
        A('s_waitcnt vmcnt(0)')
        hstamp(12)
        A('''
        s_memtime s[92:93]
        s_waitcnt lgkmcnt(0)
        s_sub_u32 s92, s92, s94
        s_sub_u32 s93, s100, s96
        v_cvt_f32_u32 v1, s92
        v_cvt_f32_u32 v2, s93
        v_rcp_f32 v2, v2
        v_mul_f32 v1, v1, v2
        v_mul_f32 v1, 0x42c80000, v1
        v_cvt_u32_f32 v1, v1
        v_readfirstlane_b32 s92, v1
        s_add_u32 s92, s92, s68
        s_addc_u32 s93, s69, 0
        v_writelane_b32 v164, s92, 15
        v_writelane_b32 v165, s93, 15
        ''')
        A(f'''
        s_mov_b64 exec, 0xffff
        s_lshl_b32 s60, s2, 9
        s_add_u32 s60, s60, {STAMPS+256}
        buffer_store_dwordx2 v[164:165], v29, s[40:43], s60 offen
        ''')
    A(f'''
    L_end:
    s_endpgm
    L_fpoll:
    buffer_load_dword v34, v6, s[40:43], s19 offen sc1
    buffer_load_dword v36, v6, s[40:43], s20 offen sc1
    buffer_load_dword v38, v6, s[40:43], s21 offen sc1
    buffer_load_dword v40, v6, s[40:43], s22 offen sc1
    buffer_load_dword v42, v6, s[40:43], s23 offen sc1
    buffer_load_dword v44, v6, s[40:43], s24 offen sc1
    buffer_load_dword v46, v6, s[40:43], s25 offen sc1
    s_branch L_fchk
    ''')
    if peek:
        A(f'''
    L_sure:                                 ; the seven others have arrived already
    ds_write_b32 v31, v30 offset:{NOPUB-MISC}
    s_mov_b32 s30, 8
    L_trig2:
    ''')
        trigpoll('L_trig2_done')
        A(f'''
    s_sub_u32 s63, s63, 1
    s_cbranch_scc0 L_trig2
    L_trig2_done:
    s_mov_b64 exec, -1
    buffer_load_dword v34, v6, s[40:43], s19 offen sc1
    buffer_load_dword v36, v6, s[40:43], s20 offen sc1
    buffer_load_dword v38, v6, s[40:43], s21 offen sc1
    buffer_load_dword v40, v6, s[40:43], s22 offen sc1
    buffer_load_dword v42, v6, s[40:43], s23 offen sc1
    buffer_load_dword v44, v6, s[40:43], s24 offen sc1
    buffer_load_dword v46, v6, s[40:43], s25 offen sc1
    s_waitcnt lgkmcnt(0)
    s_branch L_b5
    ''')
    ZW[0] = True
    A(f'''
    L_stream:
    {'' if bark else 's_barrier                               ; flags zeroed'}
    s_add_u32 s12, s20, s57
    s_addc_u32 s13, s21, 0
    s_mov_b64 s[14:15], s[10:11]
    s_mov_b64 s[40:41], s[38:39]
    s_mov_b32 s42, {WSN}
    s_mov_b32 s43, s11
    v_mov_b32 v26, {MISC}
    ''')
    if fastmask:
        A(f'''
        s_getreg_b32 s60, hwreg(HW_REG_XCC_ID, 0, 3)
        s_bitcmp1_b32 {fastmask}, s60
        s_cselect_b64 vcc, -1, 0
        {'s_cmp_eq_u32 s4, 7' if fast7 else ''}
        {'s_cselect_b64 vcc, -1, vcc' if fast7 else ''}
        {'s_cmp_eq_u32 s5, 7' if fast7 == 2 else ''}
        {'s_cselect_b64 vcc, -1, vcc' if fast7 == 2 else ''}
        ''')
        vm.d = dthr
    if kfirst == 1: hb('K0', 0, k0thr)
    if kfirst == 2: ha('K1', 1, k0thr)
    A(f'''
    s_mov_b64 s[52:53], s[24:25]
    s_mov_b64 s[48:49], s[32:33]
    s_mov_b32 s51, s11
    s_mov_b32 s55, s11
    s_cmp_lt_u32 s5, 7
    s_cselect_b32 s54, {Z(4096*896)}, 0
    s_cselect_b32 s61, s5, 0
    s_lshl_b32 s61, s61, 7
    s_lshl4_add_u32 s64, s4, s3
    s_mul_i32 s64, s64, {32*896}
    s_add_u32 s64, s64, s61
    s_lshl3_add_u32 s65, s4, s3
    s_mul_i32 s65, s65, {32*896}
    s_add_u32 s65, s65, s61
    s_cmp_lt_u32 s7, 7
    s_cselect_b32 s50, {Z(1792*896)}, 0
    s_cselect_b32 s65, s65, 0
    v_and_b32 v1, 15, v0                     ; row
    v_lshrrev_b32 v2, 4, v0                  ; g
    v_and_b32 v3, 7, v0
    v_lshlrev_b32 v3, 1, v3
    v_xor_b32 v3, v3, v2
    v_lshlrev_b32 v3, 4, v3
    v_lshl_add_u32 v3, v1, 9, v3
    v_add_u32 v8, s59, v3
    v_xor_b32 v9, 64, v8
    v_xor_b32 v10, 0x80, v8
    v_xor_b32 v11, 0xc0, v8
    ''')
    def readK(dst, slot):
        for t in range(8):
            A(f'ds_read_b128 v[{dst+4*t}:{dst+4*t+3}], v{vKA[t&3]} offset:{slot*8192 + (t>>2)*256}')
    def readQ(dst, ts):
        for n, t in enumerate(ts):
            A(f'ds_read_b128 v[{dst+4*n}:{dst+4*n+3}], v24 offset:{t*64}')
    def qk(tile, src, qf, ts=range(8)):
        for n, t in enumerate(ts):
            c = '0' if t == 0 else f'v[{Sx+4*tile}:{Sx+4*tile+3}]'
            A(f'v_mfma_f32_16x16x32_bf16 v[{Sx+4*tile}:{Sx+4*tile+3}], v[{src+4*t}:{src+4*t+3}], v[{qf+4*n}:{qf+4*n+3}], {c}')
    def flagwait(off, lab):
        if nohelp:
            A(f'{lab}_done:')
            return
        A(f'''
        s_mov_b32 s61, {SPIN*8}
        {lab}:
        ds_read_b32 v1, v26 offset:{off-MISC}
        s_sub_u32 s61, s61, 1
        s_waitcnt lgkmcnt(0)
        s_cbranch_scc1 {lab}_done
        v_readfirstlane_b32 s67, v1
        s_cmp_lg_u32 s67, 0
        s_cbranch_scc1 {lab}_done
        s_sleep 1
        s_branch {lab}
        {lab}_done:
        ''')
    if bark: A('s_barrier')
    vm.wait('small')
    A(f'''
    s_mov_b64 exec, 1
    ds_add_u32 v26, v28 offset:{CNT0-MISC}
    s_mov_b64 exec, -1
    ''')
    stamp(2)
    if not (kfirst or xlast == 2): hb('K0', 0)
    if kfirst != 2: ha('K1', 1)
    if kfirst != 2: vm.wait('K0')
    readK(KfA, 0)
    A(f'''
    v_lshrrev_b32 v21, 2, v0                 ; row = l/4
    v_and_b32 v22, 7, v21
    v_lshlrev_b32 v22, 5, v22
    v_lshl_add_u32 v22, v21, 9, v22
    v_and_b32 v23, 3, v0
    v_lshl_add_u32 v22, v23, 3, v22
    v_add_u32 v12, s59, v22
    ''')
    for t in range(1, 8):
        A(f'v_xor_b32 v{12+t}, {t*32}, v12')
    A(f'''
    v_and_b32 v24, 1, v0
    v_lshlrev_b32 v25, 6, v24                ; head*64
    v_lshlrev_b32 v24, 9, v24
    v_lshl_add_u32 v24, v2, 4, v24
    v_add_u32 v24, {QL}, v24
    s_lshl_b32 s60, s3, 3
    s_add_u32 s60, s60, {STW}
    v_add_u32 v25, s60, v25
    ''')
    hb('K1', 1)
    A('s_waitcnt lgkmcnt(0)')
    ha('K2', 0)
    vm.wait('K1')
    readK(KfB, 1)
    hb('K2', 0)
    A('s_waitcnt lgkmcnt(0)')
    ha('K3', 1)
    vm.wait('K2')
    if k3:
        readK(KfC, 0)
        hb('K3', 1)
        A('s_waitcnt lgkmcnt(0)')
        ha('V0', 0)
        vm.wait('K3')
        hb('V0', 0)
        stamp(3)
        if not nodep: flagwait(FLQ, 'L_wq')
        stamp(4)
        readQ(Pk, range(4))
        readQ(160, range(4, 6))
        A('s_waitcnt lgkmcnt(2)')
        for tile, src in enumerate((KfA, KfB, KfC)): qk(tile, src, Pk, range(4))
        readQ(Pk, range(6, 8))
        A('s_waitcnt lgkmcnt(2)')
        for tile, src in enumerate((KfA, KfB, KfC)): qk(tile, src, 160, range(4, 6))
        A('s_waitcnt lgkmcnt(0)')
        for tile, src in enumerate((KfA, KfB, KfC)): qk(tile, src, Pk, range(6, 8))
        readK(KfA, 1)
        readQ(KfB, range(8))
        A('s_waitcnt lgkmcnt(0)')
        issue('V1', 1, (0,))
        qk(3, KfA, KfB)
    else:
        hb('K3', 1)
        stamp(3)
        if not nodep: flagwait(FLQ, 'L_wq')
        stamp(4)
        readQ(KfC, range(8))
        A('s_waitcnt lgkmcnt(0)')
        qk(0, KfA, KfC)
        readK(KfA, 0)
        qk(1, KfB, KfC)
        A('s_waitcnt lgkmcnt(0)')
        qk(2, KfA, KfC)
        ha('V0', 0)
        vm.wait('K3')
        readK(KfB, 1)
        issue('V0', 0, (1,))
        A('s_waitcnt lgkmcnt(0)')
        qk(3, KfB, KfC)
    MK = 84
    A(f's_mov_b32 s{MK}, 0x00030003')
    A(f's_mov_b32 s{MK+1}, 0x00030003')
    for u in range(1, 8):
        A(f's_lshl_b64 s[{MK+2*u}:{MK+2*u+1}], s[{MK}:{MK+1}], {2*u}')
    A(f's_mov_b32 s63, {CEXP}')
    for i in range(8):
        a, b = Sx + 2*i, Sx + 2*i + 1
        A(f'v_cvt_pk_bf16_f32 v{b}, v{a}, v{b}')
        A(f'v_lshlrev_b32 v{a}, 16, v{b}')
        A(f'v_and_b32 v{b}, 0xffff0000, v{b}')
    A(f'v_max3_f32 v22, v{Sx}, v{Sx+1}, v{Sx+2}')
    for i in range(3, 15, 2):
        A(f'v_max3_f32 v22, v22, v{Sx+i}, v{Sx+i+1}')
    A(f'''
    v_max_f32 v22, v22, v{Sx+15}
    v_mov_b32 v1, v22
    v_permlane16_swap_b32 v22, v1
    v_max_f32 v22, v22, v1
    v_mov_b32 v1, v22
    v_permlane32_swap_b32 v22, v1
    v_max_f32 v22, v22, v1                   ; wave max per head
    ''')
    for i in range(16):
        A(f'v_sub_f32 v{Sx+i}, v{Sx+i}, v22')
    for i in range(16):
        A(f'v_mul_f32 v{Sx+i}, s63, v{Sx+i}')
    for i in range(16):
        A(f'v_exp_f32 v{Sx+i}, v{Sx+i}')
    for i in range(8):
        A(f'v_cvt_pk_bf16_f32 v{Pk+i}, v{Sx+2*i}, v{Sx+2*i+1}')
    for i in range(8):
        A(f'v_add_f32 v{Sx+i}, v{Sx+i}, v{Sx+8+i}')
    for i in range(4):
        A(f'v_add_f32 v{Sx+i}, v{Sx+i}, v{Sx+4+i}')
    A(f'''
    v_add_f32 v{Sx}, v{Sx}, v{Sx+2}
    v_add_f32 v{Sx+1}, v{Sx+1}, v{Sx+3}
    v_add_f32 v23, v{Sx}, v{Sx+1}
    v_mov_b32 v1, v23
    v_permlane16_swap_b32 v23, v1
    v_add_f32 v23, v23, v1
    v_mov_b32 v1, v23
    v_permlane32_swap_b32 v23, v1
    v_add_f32 v23, v23, v1                   ; wave sum per head
    s_mov_b64 exec, 3
    ds_write_b64 v25, v[22:23]
    s_mov_b64 exec, 1
    ds_add_u32 v26, v28 offset:{CNT-MISC}
    s_mov_b64 exec, -1
    ''')
    stamp(5)
    if not k3: ha('V1', 1)
    vWO, vWD, vOW, vOR, vP1s, vP1l, vYW, vHA = 22, 23, 24, 25, 27, 28, 29, 21
    vWA = [8, 9, 10, 11]
    A(f'''
    s_waitcnt lgkmcnt(0)
    s_movk_i32 s61, 896
    v_mad_u32_u24 v{vWD}, v{vR8}, s61, v{vCH}
    v_bfe_u32 v1, v0, 3, 1
    v_lshlrev_b32 v1, 8, v1
    v_and_b32 v3, 16, v0
    v_add_u32 v1, v1, v3
    v_lshrrev_b32 v3, 5, v0
    v_add_u32 v1, v1, v3
    v_mad_u32_u24 v{vWO}, v1, s61, v{vCH}
    v_lshrrev_b32 v1, 2, v0
    v_lshlrev_b32 v1, 7, v1
    v_bfe_u32 v2, v0, 3, 2
    v_lshl_add_u32 v1, v2, 5, v1
    v_and_b32 v2, 3, v0
    v_lshl_add_u32 v1, v2, 3, v1
    v_add_u32 v8, s59, v1
    v_xor_b32 v9, 32, v8
    v_xor_b32 v10, 64, v8
    v_xor_b32 v11, 0x60, v8
    v_lshlrev_b32 v1, 4, v0
    s_lshl_b32 s60, s3, 11
    s_add_u32 s60, s60, {AREA}
    v_add_u32 v{vOW}, s60, v1
    v_lshrrev_b32 v2, 4, v0                  ; g
    v_and_b32 v3, 15, v0                     ; c
    v_lshlrev_b32 v31, 12, v2                ; waves 2g, 2g+1
    v_lshl_add_u32 v31, v3, 4, v31
    s_lshl_b32 s60, s3, 8
    s_add_u32 s61, s60, {AREA}
    v_add_u32 v{vOR}, s61, v31
    s_add_u32 s61, s60, {YL}
    v_lshlrev_b32 v31, 2, v0
    v_add_u32 v{vYW}, s61, v31
    s_lshl3_add_u32 s60, s56, s3
    s_lshl_b32 s60, s60, 10
    s_add_u32 s60, s60, {P1}
    v_add_u32 v{vP1l}, s60, v1
    s_lshl4_add_u32 s61, s5, s60
    v_and_b32 v1, 3, v0
    v_lshlrev_b32 v1, 8, v1                  ; g*256
    v_and_b32 v3, 4, v0
    v_lshl_add_u32 v1, v3, 1, v1             ; half*8
    v_and_b32 v3, 8, v0
    v_lshl_add_u32 v1, v3, 4, v1             ; ks*128
    v_add_u32 v{vP1s}, s61, v1
    s_lshl_b32 s60, s3, 6
    s_add_u32 s60, s60, {HL}
    v_lshlrev_b32 v1, 3, v2
    v_add_u32 v{vHA}, s60, v1
    v_lshlrev_b32 v31, 4, v2
    v_add_u32 v31, {FACW}, v31
    s_mul_i32 s60, s6, 7
    s_add_u32 s60, s60, s5
    s_lshl3_add_u32 s60, s60, s4
    s_lshl_b32 s60, s60, {8 if p2b else 9}
    s_add_u32 s60, s60, {P2}
    v_lshl_add_u32 v30, v0, {2 if p2b else 3}, s60
    {'s_movk_i32 s66, 0xff' if p2t else ''}
    ''')
    Vf = KfA; Mk = KfB
    WOf, WDf = KfC, Sx
    PL = 64
    def masks(i):
        M = Mk + 16*(i & 1)
        for u in range(8):
            A(f'v_cndmask_b32 v{M+2*u}, 0, v{Pk+2*(i^vx)}, s[{MK+2*u}:{MK+2*u+1}]')
            A(f'v_cndmask_b32 v{M+2*u+1}, 0, v{Pk+2*(i^vx)+1}, s[{MK+2*u}:{MK+2*u+1}]')
    def pv(i, slot, mid=None):
        M = Mk + 16*(i & 1)
        def rd(t): A(f'ds_read_b64_tr_b16 v[{Vf+2*t}:{Vf+2*t+1}], v{vVA[t&7]} offset:{slot*8192 + (t>>3)*256}')
        def mf(ii):
            acc = Oa + 4*(ii >> 2)
            c = '0' if (i == 0 and (ii & 3) == 0) else f'v[{acc}:{acc+3}]'
            A(f'v_mfma_f32_16x16x32_bf16 v[{acc}:{acc+3}], v[{M+4*(ii&3)}:{M+4*(ii&3)+3}], v[{Vf+4*ii}:{Vf+4*ii+3}], {c}')
        if ilv and i == 3 and mid is None:
            for t in range(8): rd(t)
            for ii in range(8):
                A(f's_waitcnt lgkmcnt({min(6, 14-2*ii)})')
                mf(ii)
                if ii < 4: rd(8+2*ii); rd(9+2*ii)
                if wlast == 6 and ii >= 4:
                    A(f's_add_u32 m0, s59, {8192 + ii*1024}')
                    A(f's_add_u32 s60, s64, {ii*2*896}')
                    A(f'buffer_load_dwordx4 v{vWO}, s[52:55], s60 offen{wnt} lds')
                    vm.add('WO', 1)
                if wlast == 3:
                    A(f's_add_u32 m0, s59, {8192 + ii*1024}')
                    A(f's_add_u32 s60, s64, {ii*2*896}')
                    A(f'buffer_load_dwordx4 v{vWO}, s[52:55], s60 offen{wnt} lds')
            if wlast == 3: vm.add('WO', 8)
            return
        for t in range(16): rd(t)
        if mid: mid()
        for ii in range(8):
            A(f's_waitcnt lgkmcnt({14-2*ii})')
            mf(ii)
    def issueW(p, slot, t=None, wdoff=0):
        vm.upto(thr if t is None else t)
        if wq4: A('s_lshl_b32 s60, s6, 4\ns_lshl_b64 exec, 0xffff, s60')
        for k in range(4):
            if p < 2:
                A(f's_add_u32 m0, s59, {slot*8192 + (4*p+k)*1024}')
                A(f's_add_u32 s60, s64, {(4*p+k)*2*896}')
                A(f'buffer_load_dwordx4 v{vWO}, s[52:55], s60 offen{wnt} lds')
            else:
                A(f's_add_u32 m0, s59, {slot*8192 + wdoff + k*1024}')
                A(f's_add_u32 s60, s65, {k*8*896}')
                A(f'buffer_load_dwordx4 v{vWD}, s[48:51], s60 offen{wnt} lds')
        if wq4: A('s_mov_b64 exec, -1')
        vm.add('WO' if p < 2 else 'WD', 4)
    def readWO(slot, kss=(0, 1)):
        for ks in kss:
            for T in range(4):
                for half in range(2):
                    d = WOf + 16*ks + 4*T + 2*half
                    A(f'ds_read_b64_tr_b16 v[{d}:{d+1}], v{vWA[T]} offset:{slot*8192 + ks*4096 + half*2048}')
    def readWD(slot, wdoff=0):
        for T in range(4):
            for half in range(2):
                A(f'ds_read_b64_tr_b16 v[{WDf+4*T+2*half}:{WDf+4*T+2*half+1}], v{vWA[T]} offset:{slot*8192 + wdoff + half*2048}')
    def pretouch():
        if p1pre == 2:
            A(f's_lshl_b32 s60, s5, 8\ns_mov_b64 exec, 0x101\nbuffer_load_dword v160, v{vP1l}, s[40:43], s60 offen{pref}\ns_mov_b64 exec, -1')
            vm.add('pre', 1)
            return
        for q in range(2):
            if p1pre: A(f'buffer_load_dwordx4 v[160:163], v{vP1l}, s[40:43], 0 offen offset:{q*1024}{pref}')
        vm.add('pre', 2 if p1pre else 0)
    masks(0)
    vm.wait('V0')
    pv(0, 0)
    masks(1)
    hb('V1', 1)
    if not wlast:
        issueW(0, 0)
        vm.wait('V1')
        pv(1, 1)
        issueW(1, 0)
        issueW(2, 1)
        masks(2)
        vm.wait('WO')
        readWO(0)
        A('s_waitcnt lgkmcnt(0)')
        issue('V2', 0, (0,))
        vm.wait('WD')
        readWD(1)
        hb('V2', 0)
        pretouch()
        A('s_waitcnt lgkmcnt(0)')
        ha('V3', 1, thr + 2)
        vm.wait('V2')
        pv(2, 0, lambda: issue('V3', 1, (1,)))
        s3 = 1
    elif wlast in (5, 6):
        issueW(0, 0)
        vm.wait('V1')
        if catch:
            A(f'v_mov_b32 v1, 1\ns_mov_b64 exec, 1\nds_add_rtn_u32 v1, v26, v1 offset:{RANK-MISC}\ns_mov_b64 exec, -1\ns_waitcnt lgkmcnt(0)\nv_readfirstlane_b32 s67, v1\ns_cmp_ge_u32 s67, {catch}\ns_cselect_b64 vcc, -1, 0')
            vm.skip = True
        pv(1, 1)
        issueW(2, 0, None, 4096)
        ha('V2', 1)
        masks(2)
        vm.wait('WD')
        readWO(0, (0,))
        readWD(0, 4096)
        hb('V2', 1)
        pretouch()
        A('s_waitcnt lgkmcnt(0)')
        ha('V3', 0, v3thr)
        vm.skip = False
        vm.wait('V2')
        pv(2, 1, lambda: issue('V3', 0, (1,)))
        s3 = 0
    else:
        issueW(2, 0)
        vm.wait('V1')
        pv(1, 1)
        ha('V2', 1)
        masks(2)
        vm.wait('WD')
        readWD(0)
        hb('V2', 1)
        pretouch()
        A('s_waitcnt lgkmcnt(0)')
        ha('V3', 0, v3thr)
        vm.wait('V2')
        pv(2, 1, lambda: issue('V3', 0, (1,)))
        s3 = 0
    if hsplit:
        p0, p1 = Pk + 2*(3 ^ vx), Pk + 2*(3 ^ vx) + 1
        A(f'''
        v_mov_b32 v2, v{p0}
        v_mov_b32 v3, v{p1}
        v_lshrrev_b32 v1, 5, v0
        v_mul_u32_u24 v1, 0x1080, v1
        v_permlane32_swap_b32 v{p0}, v2
        v_permlane32_swap_b32 v{p1}, v3
        ''')
        for u in range(4):
            A(f's_mov_b32 s{MK+2*u+1}, s{MK+2*u+9}')
            A(f'v_xor_b32 v{vVA[u]}, v{vVA[u]}, v1')
        for h_, (a_, b_) in enumerate(((p0, p1), (2, 3))):
            for u in range(4):
                A(f'v_cndmask_b32 v{Mk+16+8*h_+2*u}, 0, v{a_}, s[{MK+2*u}:{MK+2*u+1}]')
                A(f'v_cndmask_b32 v{Mk+16+8*h_+2*u+1}, 0, v{b_}, s[{MK+2*u}:{MK+2*u+1}]')
    else:
        masks(3)
    flagwait(FLF, 'L_wf')
    FC = 160
    PKR = f'''    v_pk_mul_f32 v[32:33], v[32:33], v[{FC}:{FC+1}]
    v_pk_mul_f32 v[34:35], v[34:35], v[{FC}:{FC+1}]
    s_waitcnt lgkmcnt(0)
    v_pk_fma_f32 v[32:33], v[36:37], v[{FC+2}:{FC+3}], v[32:33]
    v_pk_fma_f32 v[34:35], v[38:39], v[{FC+2}:{FC+3}], v[34:35]
    v_permlane32_swap_b32 v32, v34
    v_permlane32_swap_b32 v33, v35
    v_pk_add_f32 v[36:37], v[32:33], v[34:35]
    v_pk_add_f32 v[32:33], v[32:33], v[34:35]
    v_permlane16_swap_b32 v32, v36
    v_permlane16_swap_b32 v33, v37
    v_pk_add_f32 v[32:33], v[32:33], v[36:37]
'''
    OLDR = f'''    v_mul_f32 v32, v32, v{FC}
    v_mul_f32 v34, v34, v{FC}
    v_mul_f32 v33, v33, v{FC+1}
    v_mul_f32 v35, v35, v{FC+1}
    s_waitcnt lgkmcnt(0)
    v_fmac_f32 v32, v36, v{FC+2}
    v_fmac_f32 v34, v38, v{FC+2}
    v_fmac_f32 v33, v37, v{FC+3}
    v_fmac_f32 v35, v39, v{FC+3}
    v_permlane32_swap_b32 v32, v34
    v_permlane32_swap_b32 v33, v35
    v_add_f32 v36, v32, v34
    v_add_f32 v37, v33, v35
    v_add_f32 v32, v32, v34
    v_add_f32 v33, v33, v35
    v_permlane16_swap_b32 v32, v36
    v_permlane16_swap_b32 v33, v37
    v_add_f32 v32, v32, v36
    v_add_f32 v33, v33, v37
'''
    A(f'''
    ds_read_b128 v[4:7], v26 offset:{FLF-MISC}
    ds_read2_b64 v[64:67], v{vHA} offset0:0 offset1:4
    s_mov_b32 s{MK}, 0x00010001
    s_mov_b32 s{MK+1}, 0x00010001
    s_mov_b32 s{MK+2}, 0x01000100
    s_mov_b32 s{MK+3}, 0x01000100
    s_mov_b32 s{MK+4}, 0x00ff00ff
    s_mov_b32 s{MK+5}, 0x00ff00ff
    ''')
    vm.wait('pre')
    A(f'''
    ds_read_b128 v[{FC}:{FC+3}], v31
    s_waitcnt lgkmcnt(0)
    v_readfirstlane_b32 s63, v5
    {'v_lshlrev_b32 v5, 3, v0' if p2t else ''}
    {'v_and_b32 v5, 24, v5' if p2t else ''}
    {'v_lshrrev_b32 v5, v5, v6' if p2t else ''}
    ''')
    FA = 144
    for r in range(4):
        A(f'v_cndmask_b32 v{68+r}, 0, v{64+r}, s[{MK}:{MK+1}]')
        A(f'v_cndmask_b32 v{72+r}, 0, v{64+r}, s[{MK+2}:{MK+3}]')
    A(f'''
    v_mfma_f32_16x16x32_bf16 v[{FA}:{FA+3}], v[68:71], v[{WDf}:{WDf+3}], 0
    v_mfma_f32_16x16x32_bf16 v[{FA+4}:{FA+7}], v[68:71], v[{WDf+4}:{WDf+7}], 0
    v_mfma_f32_16x16x32_bf16 v[{FA}:{FA+3}], v[72:75], v[{WDf+8}:{WDf+11}], v[{FA}:{FA+3}]
    v_mfma_f32_16x16x32_bf16 v[{FA+4}:{FA+7}], v[72:75], v[{WDf+12}:{WDf+15}], v[{FA+4}:{FA+7}]
    s_mov_b32 s62, {SPIN}
    ''')
    if wlast in (1, 2):
        issueW(0, 1, wthr)
        if wlast == 1: issueW(1, 1, wthr + 2)
    if early: A('v_mov_b32 v1, 1\ns_mov_b64 exec, 1')
    def pvh(h_):
        for v_ in range(2):
            for t in range(4):
                d = Vf + 16*h_ + 8*v_ + 2*t
                A(f'ds_read_b64_tr_b16 v[{d}:{d+1}], v{vVA[t]} offset:{s3*8192 + h_*4096 + v_*256}')
        for k in range(4):
            v_, m_ = k >> 1, k & 1
            A(f's_waitcnt lgkmcnt({6-2*k})')
            a_ = Mk + 16 + 8*h_ + 4*m_; b_ = Vf + 16*h_ + 8*v_ + 4*m_
            A(f'v_mfma_f32_16x16x32_bf16 v[{Oa+4*v_}:{Oa+4*v_+3}], v[{a_}:{a_+3}], v[{b_}:{b_+3}], v[{Oa+4*v_}:{Oa+4*v_+3}]')
    if hsplit:
        A('s_waitcnt vmcnt(4)')
        pvh(0)
        if wmid: issueW(1, 1, wmid - 1 if wmid > 1 else 99)
    vm.wait('V3')
    if early: A(f'ds_add_u32 v26, v1 offset:{CNTV-MISC}\ns_mov_b64 exec, -1')
    stamp(6)
    if hsplit: pvh(1)
    else: pv(3, s3, (lambda: issueW(1, 1, 99)) if wlast == 2 else None)
    A(f'''
    ds_write_b128 v{vOW}, v[{Oa}:{Oa+3}]
    ds_write_b128 v{vOW}, v[{Oa+4}:{Oa+7}] offset:1024
    ''')
    if wlast == 4:
        issueW(0, 1, 99); issueW(1, 1, 99)
    if wlast == 5 and not wmid and not wlate: issueW(1, 1, 99)
    A('s_waitcnt lgkmcnt(0)')
    stamp(7)
    A(f'''
    s_barrier                               ; #4: O partials
    ds_read_b128 v[32:35], v{vOR}
    ds_read_b128 v[36:39], v{vOR} offset:2048
    ''')
    if wlate == 1: issueW(1, 1, 99)
    A(f'''
    s_cmp_eq_u32 s63, 0
    s_waitcnt lgkmcnt(1)
{PKR if pkr else OLDR}
    v_cvt_pk_bf16_f32 v32, v32, v33
    v_min_u32 v6, -2, v32
    v_min_u32 v7, -2, v32
    v_permlane32_swap_b32 v6, v7
    s_mov_b64 exec, 0xffff
    s_cbranch_scc1 L_slowpub
    buffer_store_dwordx2 v[6:7], v{vP1s}, s[40:43], 0 offen
    L_pubdone:
    s_mov_b64 exec, -1
    ''')
    vm.add('pub', 1)
    stamp(8)
    A(f'''
    s_cmp_eq_u32 s5, 7
    s_cbranch_scc1 L_sdone
    ''')
    def polls():
        A(f'buffer_load_dwordx4 v[{PL}:{PL+3}], v{vP1l}, s[40:43], 0 offen sc1')
    if wlast:
        polls(); vm.add('poll', 1)
        vm.wait('pub')
        readWO(1, (1,) if wlast in (5, 6) else (0, 1))
        A('s_branch L_poll1_chk')
    A('L_poll1:')
    polls()
    A(f'''
    L_poll1_chk:
    s_sub_u32 s62, s62, 1
    s_waitcnt vmcnt(0)
    s_cbranch_scc1 L_poll1_done
    v_max3_u32 v1, v{PL}, v{PL+1}, v{PL+2}
    v_max_u32 v1, v1, v{PL+3}
    v_cmp_eq_u32 vcc, -1, v1
    {'s_mov_b64 exec, vcc' if mpoll else ''}
    {'' if nohelp else 's_cbranch_vccnz L_poll1'}
    L_poll1_done:
    {'s_mov_b64 exec, -1' if mpoll else ''}
    ''')
    stamp(9)
    LO, HI = 80, 88
    def omm(a, ks, T0):
        for x in range(2):
            acc = FA + 4*x
            bb = WOf + 16*ks + 4*(T0 + x)
            A(f'v_mfma_f32_16x16x32_bf16 v[{acc}:{acc+3}], v[{a}:{a+3}], v[{bb}:{bb+3}], v[{acc}:{acc+3}]')
    for q in range(4):
        A(f'v_cndmask_b32 v{LO+q}, 0, v{PL+q}, s[{MK+4}:{MK+5}]')
    for q in range(4):
        A(f'v_cndmask_b32 v{HI+4+q}, v{PL+q}, 0, s[{MK+4}:{MK+5}]')
    if wlast: A('s_waitcnt lgkmcnt(0)')
    omm(LO, 0, 0)
    for q in range(4):
        A(f'v_mov_b32_dpp v{HI+q}, v{PL+q} row_shr:8 row_mask:0xf bank_mask:0xf bound_ctrl:0')
    omm(HI+4, 1, 2)
    for q in range(4):
        A(f'v_mov_b32_dpp v{LO+4+q}, v{PL+q} row_shl:8 row_mask:0xf bank_mask:0xf bound_ctrl:0')
    omm(HI, 0, 2)
    omm(LO+4, 1, 0)
    A(f'''
    v_pk_add_f32 v[{FA}:{FA+1}], v[{FA}:{FA+1}], v[{FA+2}:{FA+3}]
    v_pk_add_f32 v[{FA+4}:{FA+5}], v[{FA+4}:{FA+5}], v[{FA+6}:{FA+7}]
    v_add_f32 v{FA}, v{FA}, v{FA+1}
    v_add_f32 v{FA+4}, v{FA+4}, v{FA+5}
    v_permlane16_swap_b32 v{FA}, v{FA+4}
    v_add_f32 v{FA}, v{FA}, v{FA+4}
    ds_write_b32 v{vYW}, v{FA}
    s_waitcnt lgkmcnt(0)
    ''')
    stamp(10)
    if fin != 'D': A('s_cmp_lg_u32 s3, 0')
    A('s_barrier                               ; #5')
    if fin != 'D':
        A(f'''
        s_cbranch_scc1 {'L_clean' if clean else 'L_sdone'}
        {f'ds_read_b32 v1, v26 offset:{NOPUB-MISC}' if peek else ''}
        ds_read2st64_b32 v[48:49], v{vYW} offset0:0 offset1:1
        ds_read2st64_b32 v[50:51], v{vYW} offset0:2 offset1:3
        ds_read2st64_b32 v[52:53], v{vYW} offset0:4 offset1:5
        ds_read2st64_b32 v[54:55], v{vYW} offset0:6 offset1:7
        s_waitcnt lgkmcnt(2)
        {'v_cmp_ne_u32 vcc, 0, v1' if peek else ''}
        v_add_f32 v48, v48, v49
        v_add_f32 v50, v50, v51
        {'s_cbranch_vccnz L_sdone' if peek else ''}
        s_waitcnt lgkmcnt(0)
        v_add_f32 v52, v52, v53
        v_add_f32 v54, v54, v55
        v_add_f32 v48, v48, v50
        v_add_f32 v52, v52, v54
        v_add_f32 v4, v48, v52
        {'v_bfi_b32 v4, s66, v5, v4' if p2t else 'v_min_u32 v4, -2, v4'}
        {'buffer_store_dword v4, v30, s[40:43], 0 offen sc1' if p2b else 'buffer_store_dwordx2 v[4:5], v30, s[40:43], 0 offen sc1'}
        ''')
        if stamps: A('s_waitcnt vmcnt(0)\ns_memrealtime s[70:71]')
        if clean:
            A(f'''
            L_clean:
            s_lshl_b32 s60, s5, 8
            s_cmp_eq_u32 s5, 6
            s_cselect_b32 s61, 0x1010101, 0x101
            s_mov_b32 exec_lo, s61
            s_mov_b32 exec_hi, 0
            buffer_store_dword v{vTAG}, v{vP1l}, s[40:43], s60 offen offset:4 sc1
            '''.replace('s_cselect_b32 s61, 0x1010101, 0x101', 's_movk_i32 s61, 0x101\ns_cselect_b32 s61, 0x1010101, s61'))
    if pad and padat[0] == 's': dopad('L_pads')
    A('L_sdone:')
    if stamps:
        A(f's_cmp_eq_u32 s3, 0')
        A('s_cbranch_scc1 L_dump0')
        A(f's_cmp_lg_u32 s3, 7')
        A('s_cbranch_scc1 L_end')
        dump_stamps(16, [sreg(k) for k in range(11)])
        A('s_endpgm')
        A('L_dump0:')
        dump_stamps(0, [sreg(k) for k in range(11)])
    A('s_endpgm')
    A(f'''
    L_slowpub:
    buffer_store_dwordx2 v[6:7], v{vP1s}, s[40:43], 0 offen sc1
    s_branch L_pubdone
    ''')
    A('.section .rodata,"a"')
    A('.p2align 6')
    A(f'.amdhsa_kernel {NAME}_kernel')
    A('.amdhsa_next_free_vgpr 168')
    A('.amdhsa_next_free_sgpr 102')
    A('.amdhsa_accum_offset 168')
    A('.amdhsa_group_segment_fixed_size 0')
    A('.amdhsa_kernarg_size 96')
    A('.amdhsa_user_sgpr_count 2')
    A('.amdhsa_user_sgpr_kernarg_segment_ptr 1')
    A('.amdhsa_system_sgpr_workgroup_id_x 1')
    A('.end_amdhsa_kernel')
    return top + A.finalize()

if __name__ == '__main__':
    out = sys.argv[1] if len(sys.argv) > 1 else f'cdna_kernels/{NAME}.s'
    kw = eval('dict(%s)' % sys.argv[2]) if len(sys.argv) > 2 else {}
    open(out, 'w').write(gen(**kw))
    print('wrote', out)
```
